```python
import torch

def _softmax(x, axis=-1):
    return torch.softmax(x, dim=axis)
def _gelu(x):
    return torch.nn.functional.gelu(x, approximate="tanh")
def _silu(x):
    return torch.nn.functional.silu(x)
def _sigmoid(x):
    return torch.sigmoid(x)
def _layernorm(x, axis=-1, eps=1e-5):
    m = x.mean(dim=axis, keepdim=True)
    v = x.var(dim=axis, keepdim=True, unbiased=False)
    return (x - m) / torch.sqrt(v + eps)
def _scatter_add(tgt, idx, src, axis=0):
    return tgt.clone().index_add_(axis, idx, src)
def _segment_sum(src, seg, n):
    out = torch.zeros((n,) + src.shape[1:], dtype=src.dtype)
    return out.index_add_(0, seg, src)
def _pad(x, pw):
    flat = tuple(v for pair in reversed(pw) for v in pair)
    return torch.nn.functional.pad(x, flat)

kernel_name = 'sequential_preLN__sliding_local_dilated__dense_activation_squared_relu__prompt'

def setup_inputs():

    _w = (lambda a: (lambda t: t.to(torch.bfloat16) if t.is_floating_point() else t)(torch.as_tensor(a)))
    def _A_setup():
        B, S, D = 1, 2048, 576
        return {
            "x": _w((lambda *s: torch.randn(*s, dtype=torch.bfloat16) * 0.05)(B, S, D)),
            "wqkv": _w((lambda *s: torch.randn(*s, dtype=torch.bfloat16) * 0.05)(D, 3 * D)),
            "wo": _w((lambda *s: torch.randn(*s, dtype=torch.bfloat16) * 0.05)(D, D)),
        }
    _A_in = _A_setup()

    def _B_setup():
        B, S, D, F = 1, 2048, 576, 4608
        return {
            "x": _w((lambda *s: torch.randn(*s, dtype=torch.bfloat16) * 0.05)(B, S, D)),
            "w1": _w((lambda *s: torch.randn(*s, dtype=torch.bfloat16) * 0.05)(D, F)),
            "b1": _w((lambda *s: torch.randn(*s, dtype=torch.bfloat16) * 0.2)(F)),
            "w2": _w((lambda *s: torch.randn(*s, dtype=torch.bfloat16) * 0.05)(F, D)),
            "b2": _w((lambda *s: torch.randn(*s, dtype=torch.bfloat16) * 1.6)(D)),
        }
    _B_in = _B_setup()

    return {
        "A_x": _A_in["x"],
        "A_wqkv": _A_in["wqkv"],
        "A_wo": _A_in["wo"],
        "B_x": _B_in["x"],
        "B_w1": _B_in["w1"],
        "B_b1": _B_in["b1"],
        "B_w2": _B_in["w2"],
        "B_b2": _B_in["b2"],
    }

def reference(A_x, A_wqkv, A_wo, B_x, B_w1, B_b1, B_w2, B_b2):
    def _A_ref(x, wqkv, wo):
        B, S, D = x.shape
        H = 32; Dh = D // H
        W, dil = 8, 2
        qkv = (lambda x, *d: x.permute(*d))((x @ wqkv).reshape(B, S, 3, H, Dh), 2, 0, 3, 1, 4)
        q, k, v = qkv[0], qkv[1], qkv[2]
        scale = Dh ** -0.5
        pos = torch.arange(S)
        off = torch.arange(W) * dil
        idx = pos[:, None] - off[None, :]
        mask = idx >= 0
        idx_c = torch.where(mask, idx, 0).reshape(-1)
        kg = k[:, :, idx_c, :].reshape(B, H, S, W, Dh)
        vg = v[:, :, idx_c, :].reshape(B, H, S, W, Dh)
        logits = torch.einsum("bhsd,bhswd->bhsw", q, kg) * scale
        logits = torch.where(mask[None, None, :, :], logits, -1e9)
        attn = _softmax(logits, axis=-1)
        o = torch.einsum("bhsw,bhswd->bhsd", attn, vg)
        return (lambda x, *d: x.permute(*d))(o, 0, 2, 1, 3).reshape(B, S, D) @ wo

    def _B_ref(x, w1, b1, w2, b2):
        h = torch.einsum("bsd,df->bsf", x, w1) + b1
        zero = torch.zeros_like(h)
        r = torch.where(h > zero, h, zero)
        h = r * r
        out = torch.einsum("bsf,fd->bsd", h, w2) + b2
        return out

    x = A_x
    h = x + _A_ref(_layernorm(x, axis=-1), A_wqkv, A_wo)
    h2 = h + _B_ref(_layernorm(h, axis=-1), B_w1, B_b1, B_w2, B_b2)
    return h2
```

```python
import re

TRANS = ("v_exp_f32", "v_log_f32", "v_rcp_f32", "v_rsq_f32", "v_sqrt_f32", "v_sin_f32", "v_cos_f32")
RMW = ("v_fmac_f32", "v_dot2c_f32_bf16", "v_pk_fmac")

_reg_re = re.compile(r"^-?\|?([vas])(\d+)\|?$")
_rng_re = re.compile(r"^-?\|?([vas])\[(\d+):(\d+)\]\|?$")

def regs_of(op):
    op = op.strip()
    m = _reg_re.match(op)
    if m: return [(m.group(1), int(m.group(2)))]
    m = _rng_re.match(op)
    if m: return [(m.group(1), k) for k in range(int(m.group(2)), int(m.group(3)) + 1)]
    if op == "vcc": return [("x", "vcc")]
    if op in ("exec", "exec_lo", "exec_hi"): return [("x", "exec")]
    if op == "m0": return [("x", "m0")]
    return []

def split_ops(s):
    out, depth, cur = [], 0, ""
    for ch in s:
        if ch in "[(": depth += 1
        if ch in "])": depth -= 1
        if ch == "," and depth == 0:
            out.append(cur.strip()); cur = ""
        else: cur += ch
    if cur.strip(): out.append(cur.strip())
    return out

class Ins:
    __slots__ = ("text", "kind", "rd", "wr", "tag", "mn", "srcc", "srcab", "width", "arg")
    def __init__(self, text, tag=None):
        self.text = text; self.tag = tag; self.rd = set(); self.wr = set(); self.srcc = set(); self.srcab = set(); self.width = 0; self.arg = None
        t = text.split(";")[0].strip()
        if t.endswith(":"):
            self.kind = "label"; self.mn = "label"; return
        if t.startswith("@"):
            p = t.split()
            self.kind = "pseudo"; self.mn = p[0]; self.arg = p[1:] ; return
        p = t.split(None, 1)
        mn = p[0]; self.mn = mn
        rest = p[1] if len(p) > 1 else ""
        ops = split_ops(rest)
        mods = ""
        if ops:
            q = ops[-1].split(None, 1)
            if len(q) > 1 and not ops[-1].startswith("hwreg"):
                ops[-1] = q[0]; mods = q[1]
        R = lambda i: set(regs_of(ops[i])) if i < len(ops) else set()
        allr = lambda a: set().union(*[R(i) for i in range(a, len(ops))]) if a < len(ops) else set()
        EX = {("x", "exec")}
        if mn.startswith("v_mfma"):
            self.kind = "mfma"; self.wr = R(0); self.srcab = R(1) | R(2); self.srcc = R(3); self.rd = self.srcab | self.srcc | EX
        elif mn.startswith("buffer_load"):
            if " lds" in (" " + mods):
                self.kind = "dma"; self.rd = allr(0) | {("x", "m0")} | EX
            else:
                self.kind = "vld"; self.wr = R(0); self.rd = allr(1) | EX
                if "d16" in mn: self.rd |= R(0)
        elif mn.startswith("buffer_store"):
            self.kind = "vst"; self.rd = allr(0) | EX; self.width = len(R(0)); self.srcab = R(0)
        elif mn.startswith("buffer_atomic"):
            self.kind = "vst"; self.rd = allr(0) | EX
        elif mn.startswith("ds_read") or mn.startswith("ds_bpermute") or mn.startswith("ds_swizzle"):
            self.kind = "dsr"; self.wr = R(0); self.rd = allr(1) | EX
        elif mn.startswith("ds_write"):
            self.kind = "dsw"; self.rd = allr(0) | EX
        elif mn.startswith("s_load") or mn in ("s_memtime", "s_memrealtime"):
            self.kind = "smem"; self.wr = R(0); self.rd = allr(1)
        elif mn == "s_waitcnt": self.kind = "wait"
        elif mn == "s_nop": self.kind = "nop"; self.arg = int(ops[0])
        elif mn == "s_barrier": self.kind = "barrier"
        elif mn in ("s_endpgm", "s_branch") or mn.startswith("s_cbranch"):
            self.kind = "branch"
            if "vcc" in mn: self.rd = {("x", "vcc")}
            if "scc" in mn: self.rd = {("x", "scc")}
            if "exec" in mn: self.rd = EX
        elif mn in ("s_sleep", "s_setprio"): self.kind = "salu"
        elif mn.startswith("s_cmp") or mn.startswith("s_bitcmp"):
            self.kind = "salu"; self.rd = allr(0); self.wr = {("x", "scc")}
        elif mn.startswith("s_"):
            self.kind = "salu"; self.wr = R(0); self.rd = allr(1)
            if "saveexec" in mn: self.wr |= EX; self.rd |= EX
            if mn.startswith("s_cselect") or mn.startswith("s_addc") or mn.startswith("s_subb"): self.rd |= {("x", "scc")}
            if not (mn.startswith("s_mov") or mn.startswith("s_cselect") or mn.startswith("s_mul") or mn.startswith("s_getreg") or mn.startswith("s_getpc")): self.wr |= {("x", "scc")}
        elif mn.startswith("v_"):
            self.kind = "trans" if mn.startswith(TRANS) else "valu"
            self.wr = R(0); self.rd = allr(1) | EX
            if mn.startswith("v_permlane") : self.wr = R(0) | R(1); self.rd = R(0) | R(1) | EX
            if mn.startswith(RMW): self.rd |= R(0)
            if "_co_" in mn: self.wr |= R(1); self.rd = allr(2) | EX
            if "_dpp" in mn or "row_" in mods or "quad_perm" in mods:
                self.arg = "dpp"
                self.rd |= R(0)
            if "sdwa" in mn or "op_sel" in mods: self.arg = "sdwa" if "sdwa" in mn else self.arg
            if mn.startswith("v_cndmask") and len(ops) == 3: self.rd |= {("x", "vcc")}
        else:
            raise ValueError("unknown instr: " + text)

class Prog:
    def __init__(self):
        self.ins = []
    def __call__(self, s, tag=None):
        for l in s.split("\n"):
            l = l.strip()
            if l and not l.startswith(";"): self.ins.append(Ins(l, tag))
    def add(self, i):
        if isinstance(i, str): self(i)
        elif isinstance(i, tuple): self(i[0], i[1])
        else: self.ins.append(i)
    def extend(self, L):
        for i in L: self.add(i)

def insert_waits(ins, verbose=False):
    out = []; vm = []; lg = []; smem_pending = set(); maxvm = 0
    def emit(nv, nl):
        parts = []
        if nv is not None:
            assert nv <= 63, nv
            parts.append(f"vmcnt({nv})"); del vm[:len(vm) - nv]
        if nl is not None:
            nl2 = min(nl, 15)
            parts.append(f"lgkmcnt({nl2})"); del lg[:len(lg) - nl2]
            if nl2 == 0: smem_pending.clear()
        if parts:
            out.append(Ins("s_waitcnt " + " ".join(parts)))
    for i in ins:
        if i.kind == "pseudo":
            if i.mn == "@waitvm":
                idx = [k for k, e in enumerate(vm) if e[0] in i.arg]
                if idx: emit(len(vm) - 1 - idx[-1], None)
            elif i.mn == "@waitvm_all":
                if vm: emit(0, None)
            elif i.mn == "@waitlg_all":
                if lg or smem_pending: emit(None, 0)
            elif i.mn == "@wait_all":
                emit(0 if vm else None, 0 if (lg or smem_pending) else None)
            elif i.mn == "@need":
                touch = set()
                for o in i.arg: touch |= set(regs_of(o))
                nv = nl = None
                for k in range(len(vm) - 1, -1, -1):
                    if vm[k][1] & touch:
                        nv = len(vm) - 1 - k; break
                for k in range(len(lg) - 1, -1, -1):
                    if lg[k][1] & touch:
                        nl = len(lg) - 1 - k; break
                if nl is not None and smem_pending: nl = 0
                emit(nv, nl)
            elif i.mn == "@flushvm": vm.clear()
            elif i.mn == "@flushlg": lg.clear(); smem_pending.clear()
            else: raise ValueError(i.mn)
            continue
        if i.kind == "wait":
            m = re.search(r"vmcnt\((\d+)\)", i.text)
            if m and len(vm) > int(m.group(1)): del vm[:len(vm) - int(m.group(1))]
            m = re.search(r"lgkmcnt\((\d+)\)", i.text)
            if m:
                n = int(m.group(1))
                if n == 0: lg.clear(); smem_pending.clear()
                elif not smem_pending and len(lg) > n: del lg[:len(lg) - n]
            out.append(i); continue
        touch = i.rd | i.wr
        nv = nl = None
        for k in range(len(vm) - 1, -1, -1):
            if vm[k][1] & touch:
                nv = len(vm) - 1 - k; break
        for k in range(len(lg) - 1, -1, -1):
            if lg[k][1] & touch:
                nl = len(lg) - 1 - k; break
        if smem_pending & touch: nl = 0
        if nl is not None and smem_pending: nl = 0
        if i.kind in ("vld", "vst", "dma") and len(vm) >= 63 and nv is None: nv = 62
        emit(nv, nl)
        out.append(i)
        if i.kind in ("vld", "vst", "dma"):
            vm.append((i.tag, set(i.wr))); maxvm = max(maxvm, len(vm))
        elif i.kind in ("dsr", "dsw"): lg.append((i.tag, set(i.wr)))
        elif i.kind == "smem": smem_pending |= i.wr
    if verbose: print("max vm outstanding", maxvm)
    return out

def isv(r): return r[0] in ("v", "a")
def iss(r): return r[0] == "s" or r == ("x", "vcc")

def need(p, c):
    n = 0
    pv = p.kind in ("valu", "trans")
    cv = c.kind in ("valu", "trans")
    vm = c.kind in ("vld", "vst", "dma")
    if p.kind == "mfma":
        passes = 8 if "32x32" in p.mn else 4
        d = p.wr
        if c.kind == "mfma":
            if d & c.srcab: n = max(n, {4: 8, 8: 12}[passes])
            if d & c.srcc and not (d == c.srcc): n = max(n, {4: 6, 8: 10}[passes])
            if d & c.wr and not (d & c.srcc): n = max(n, {4: 6, 8: 10}[passes])
        elif (cv or vm or c.kind in ("dsr", "dsw")) and d & (c.rd | c.wr): n = max(n, {4: 8, 8: 12}[passes])
        if (cv or c.kind in ("vld", "dsr")) and p.srcc & c.wr: n = max(n, {4: 3, 8: 7}[passes])
    if pv:
        w = p.wr
        wv = {r for r in w if isv(r)}; ws = {r for r in w if iss(r)}
        if c.kind == "mfma" and wv & c.rd: n = max(n, 2)
        if cv and c.arg == "dpp" and wv & c.rd: n = max(n, 2)
        if cv and c.mn.startswith("v_permlane") and wv & c.rd: n = max(n, 2)
        if c.mn.startswith(("v_readlane", "v_readfirstlane")) and wv & c.rd: n = max(n, 1)
        if vm and ws & c.rd: n = max(n, 5)
        if cv and ws & c.rd: n = max(n, 2)
        if c.kind == "salu" and ws & c.rd: n = max(n, 1)
        if p.kind == "trans" and c.kind in ("valu",) and wv & c.rd: n = max(n, 1)
        if p.kind == "trans" and c.kind in ("dsw", "vst") and wv & c.rd: n = max(n, 1)
        if p.arg == "sdwa" and cv and wv & (c.rd | c.wr): n = max(n, 1)
        if p.mn.startswith("v_dot2") and (c.kind != "valu" or c.mn != p.mn or (wv & (c.rd - c.wr))) and wv & (c.rd | c.wr): n = max(n, 3)
        if ("x", "exec") in w: n = max(n, 5)
    if p.kind == "vst" and p.width >= 3 and (cv or c.kind in ("vld", "dsr", "mfma")) and p.srcab & c.wr: n = max(n, 2)
    if p.kind == "salu" and ("x", "m0") in p.wr and c.kind == "dma": n = max(n, 1)
    if p.kind == "salu" and ("x", "exec") in p.wr and cv and c.arg == "dpp": n = max(n, 0)
    return n

def insert_nops(ins):
    out = []; added = 0
    for c in ins:
        if c.kind not in ("label", "wait", "nop", "barrier"):
            dist = 0; req = 0
            for p in reversed(out):
                if p.kind == "label": continue
                n = need(p, c)
                if n > dist: req = max(req, n - dist)
                dist += (p.arg + 1) if p.kind == "nop" else 1
                if dist >= 12: break
            if req:
                out.append(Ins(f"s_nop {req - 1}")); added += req
        out.append(c)
    return out, added

def finalize(prog, verbose=False):
    a = insert_waits(prog.ins, verbose)
    a, added = insert_nops(a)
    if verbose:
        from collections import Counter
        print("instrs", len(a), "nop states added", added, Counter(i.kind for i in a))
    return "\n".join(("" if i.kind == "label" else "  ") + i.text for i in a) + "\n"

def interleave(P, mains, fillers, per_gap=2):
    k = 0
    for n, m in enumerate(mains):
        P.add(m)
        c = 0
        while k < len(fillers) and c < per_gap and fillers[k][0] <= n:
            P.add(fillers[k][1])
            t = fillers[k][1][0] if isinstance(fillers[k][1], tuple) else fillers[k][1]
            if not t.startswith("@"): c += 1
            k += 1
    while k < len(fillers):
        P.add(fillers[k][1]); k += 1
```

```python
import sys
from ir import *

NAME = "sequential_preLN__sliding_local_dilated__dense_activation_squared_relu__prompt"

F0S, F1G, F1S, F2G, F2S, F3A, F3B = 0x10000, 0x20000, 0x48000, 0x50000, 0x78000, 0x80000, 0xA0000
WQP, WOP, OP, HP, W1R, W2R, PART, STAMPS = 0x100000, 0x300000, 0x400000, 0x700000, 0xA00000, 0x1000000, 0x1600000, 0x3000000
WS_BYTES = 0x4000000
OOB = 0x40000000
LDS_BYTES = 163840
XB = 71680
R0SCR = 49152
W1SCR = 0
WOB = 0
W2SCR = 98304
VXS = 139264
XN, HB = 0, 73728
sX, sWQ, sWO, sW1, sW2, sB1, sB2, sOUT, sWS, sR = 28, 32, 36, 40, 44, 48, 52, 56, 60, 64
sW, sG1, sJ1, sGF, sJF, sTAG = 68, 69, 70, 71, 72, 73
def srd(n): return f"s[{n}:{n+3}]"
def vq(n, k=4): return f"v[{n}:{n+k-1}]"
def aq(n, k=4): return f"a[{n}:{n+k-1}]"
MF = "v_mfma_f32_16x16x32_bf16"
vL, vI, vG, vL16 = 1, 2, 3, 4

class Cfg:
    stamps = False
    nx1 = 6
    p1depth = 8
    npre = 30
    stop = None

def gen(cfg):
    P = Prog()
    nstamp = [0]
    def stamp():
        if cfg.stamps:
            k = nstamp[0]; nstamp[0] += 1
            P(f"s_memrealtime s[100:101]\n@waitlg_all\ns_mov_b32 s{STAMP0+k}, s100")
    STAMP0 = 4
    npoll = [0]
    def poll(vaddr, vtmp):
        k = npoll[0]; npoll[0] += 1
        P(f"""s_mov_b32 s97, 0
L_poll{k}:
buffer_load_dword v{vtmp}, v{vaddr}, {srd(sWS)}, 0 offen sc1
s_add_u32 s97, s97, 1
s_waitcnt vmcnt(0)
v_cmp_ne_u32 vcc, s{sTAG}, v{vtmp}
s_cmp_gt_u32 s97, 400000
s_cbranch_scc1 L_pdone{k}
s_cbranch_vccnz L_poll{k}
L_pdone{k}:""")
    def set_flag(vaddr):
        P(f"v_mov_b32 v5, s{sTAG}")
        P(f"buffer_store_dword v5, v{vaddr}, {srd(sWS)}, 0 offen sc1", "flag")

    P("""s_cmp_ge_u32 s2, 256
s_cbranch_scc1 L_end
s_load_dwordx16 s[4:19], s[0:1], 0
s_load_dwordx4 s[20:23], s[0:1], 64
s_load_dwordx2 s[24:25], s[0:1], 80""")
    if cfg.stamps: P("s_memrealtime s[26:27]")
    P(f"""v_lshrrev_b32 v5, 6, v0
v_and_b32 v{vL}, 63, v0
v_readfirstlane_b32 s{sW}, v5
v_and_b32 v{vI}, 15, v0
v_lshrrev_b32 v{vG}, 4, v{vL}
v_lshlrev_b32 v{vL16}, 4, v{vL}
s_and_b32 s74, s2, 7
s_lshr_b32 s75, s2, 3
s_lshl_b32 s{sG1}, s74, 2
s_lshr_b32 s76, s75, 3
s_add_u32 s{sG1}, s{sG1}, s76
s_and_b32 s{sJ1}, s75, 7
s_lshr_b32 s{sGF}, s74, 2
s_lshl_b32 s{sGF}, s{sGF}, 4
s_lshr_b32 s76, s75, 1
s_add_u32 s{sGF}, s{sGF}, s76
s_and_b32 s{sJF}, s74, 3
s_lshl_b32 s{sJF}, s{sJF}, 1
s_and_b32 s76, s75, 1
s_add_u32 s{sJF}, s{sJF}, s76
s_lshl_b32 s77, s{sW}, 5
s_add_u32 s77, s77, s{sG1}
s_mul_i32 s78, s{sJ1}, 144""")
    P(f"""s_cmp_lt_u32 s77, 72
s_cbranch_scc0 L_r0_wo
v_mul_u32_u24 v6, 2428, v{vL}
v_lshrrev_b32 v6, 16, v6
v_mul_u32_u24 v7, 27, v6
v_sub_u32 v7, v{vL}, v7
v_mul_u32_u24 v8, 7282, v7
v_lshrrev_b32 v8, 16, v8
v_mul_u32_u24 v9, 9, v8
v_sub_u32 v9, v7, v9
v_mul_u32_u24 v6, 3456, v6
v_mul_u32_u24 v8, 1152, v8
v_lshlrev_b32 v9, 4, v9
v_add3_u32 v5, v6, v8, v9
v_cmp_gt_u32 vcc, 54, v{vL}
s_mul_i32 s80, s77, {8*3456}
s_add_u32 s80, s80, s78
s_add_u32 s81, s80, {6912-1024}
s_add_u32 s82, s81, {6912-1024}
s_add_u32 s83, s82, {6912-1024}
s_branch L_r0_join
L_r0_wo:
v_mul_u32_u24 v6, 7282, v{vL}
v_lshrrev_b32 v6, 16, v6
v_mul_u32_u24 v7, 9, v6
v_sub_u32 v7, v{vL}, v7
v_mul_u32_u24 v6, 1152, v6
v_lshl_add_u32 v5, v7, 4, v6
v_cmp_gt_u32 vcc, 36, v{vL}
s_sub_u32 s79, s77, 72""")
    for G in range(2):
        if G: P("s_add_u32 s79, s79, 36")
        P(f"""s_lshr_b32 s84, s79, 2
s_mul_i32 s84, s84, 36
s_bfe_u32 s85, s79, 0x10001
s_mul_i32 s85, s85, 20
s_add_u32 s84, s84, s85
s_and_b32 s85, s79, 1
s_lshl_b32 s85, s85, 3
s_add_u32 s84, s84, s85
s_add_u32 s85, s84, 4
s_sub_u32 s86, s79, 64
s_mul_i32 s86, s86, 72
s_add_u32 s86, s86, 16
s_add_u32 s87, s86, 36
s_cmp_lt_u32 s79, 64
s_cselect_b32 s84, s84, s86
s_cselect_b32 s85, s85, s87
s_mul_i32 s84, s84, 1152
s_mul_i32 s85, s85, 1152
s_add_u32 s84, s84, s78
s_add_u32 s85, s85, s78
s_sub_u32 s{80+2*G}, s84, {1024*(2*G)}
s_sub_u32 s{81+2*G}, s85, {1024*(2*G+1)}""")
    P(f"""s_cmp_lt_u32 s77, 108
s_cselect_b32 s80, s80, {OOB}
s_cselect_b32 s81, s81, {OOB}
s_cselect_b32 s82, s82, {OOB}
s_cselect_b32 s83, s83, {OOB}
L_r0_join:
s_nop 1
v_mov_b32 v6, {OOB}
v_cndmask_b32 v5, v6, v5, vcc
s_lshl_b32 s84, s{sW}, 12
s_add_u32 s84, s84, {R0SCR}
s_mov_b32 m0, s84
s_waitcnt lgkmcnt(0)""")
    def mksrd(d, p, n):
        P(f"s_mov_b32 s{d}, s{p}\ns_and_b32 s{d+1}, s{p+1}, 0xffff\ns_mov_b32 s{d+2}, {n}\ns_mov_b32 s{d+3}, 0x00020000")
    P(f"""s_cmp_lt_u32 s77, 72
s_cselect_b32 s{sR}, s6, s8
s_cselect_b32 s{sR+1}, s7, s9
s_mov_b32 s85, {576*1152}
s_cselect_b32 s{sR+2}, {576*3456}, s85
s_and_b32 s{sR+1}, s{sR+1}, 0xffff
s_mov_b32 s{sR+3}, 0x00020000""")
    for q in range(4):
        P(f"buffer_load_dwordx4 v5, {srd(sR)}, s{80+q} offen offset:{1024*q} lds", "r0")
    mksrd(sX, 4, 2048*1152)
    P(f"s_load_dword s{sTAG}, s[24:25], 0")
    XR, XH = 160, 232
    P(f"""s_lshl_b32 s84, s{sG1}, 6
s_and_b32 s85, s{sW}, 1
s_lshl_b32 s85, s85, 5
s_add_u32 s85, s85, s84
s_lshr_b32 s86, s{sW}, 1
s_add_u32 s85, s85, s86
s_mul_i32 s85, s85, 1152
v_lshrrev_b32 v8, 3, v{vL}
v_and_b32 v9, 7, v{vL}
v_mul_u32_u24 v6, 2304, v8
v_lshl_add_u32 v6, v9, 4, v6
v_add_u32 v6, s85, v6
v_add_u32 v7, {8*2304}, v6""")
    P(f"s_lshl_b32 s88, s{sJ1}, 7")
    for q in range(1, 9):
        P(f"s_add_u32 s{88+q}, s{87+q}, 128\ns_cmp_eq_u32 s{88+q}, 1152\ns_cselect_b32 s{88+q}, 0, s{88+q}")
    xl = []
    for q in range(9):
        for hh in range(2):
            xl.append(f"buffer_load_dwordx4 {vq(XR + (q*2+hh)*4)}, v{6+hh}, {srd(sX)}, s{88+q} offen")
    for l in xl[:cfg.nx1]: P(l, "x")
    mksrd(sWS, 24, WS_BYTES)
    P(f"""s_lshl_b32 s85, s{sW}, 2
v_add_u32 v10, s85, v{vG}
v_and_b32 v11, 7, v10
v_lshrrev_b32 v12, 3, v10
v_lshl_add_u32 v11, v11, 1, v12
v_add_u32 v11, s84, v11
v_subrev_u32 v11, 16, v11
v_mul_u32_u24 v11, 1152, v11
v_lshl_add_u32 v11, v{vI}, 4, v11
s_cmp_eq_u32 s{sG1}, 0
s_cselect_b32 s85, {OOB}, 0
s_cselect_b32 s86, 0, -1
v_and_b32 v11, s86, v11
v_or_b32 v11, s85, v11
v_mov_b32 v13, {OOB}
v_cmp_gt_u32 vcc, 8, v{vI}
v_cndmask_b32 v12, v13, v11, vcc""")
    hl = [f"buffer_load_dwordx4 {vq(XH + 4*q)}, v{11 if q < 4 else 12}, {srd(sX)}, 0 offen offset:{256*q}" for q in range(5)]
    P(f"""v_bfe_u32 v14, v{vL}, 2, 2
v_and_b32 v15, 3, v{vL}
s_lshl_b32 s84, s{sW}, 12
s_add_u32 s84, s84, {R0SCR}
s_cmp_lt_u32 s77, 72
s_cbranch_scc0 L_r1_wo
v_lshrrev_b32 v16, 1, v14
v_lshlrev_b32 v16, 10, v16
v_and_b32 v17, 1, v14
v_mul_u32_u24 v17, 432, v17
v_add3_u32 v16, v16, v17, s84
v_mul_u32_u24 v17, 36, v{vG}
v_and_b32 v18, 1, v{vG}
v_lshl_add_u32 v17, v18, 2, v17
v_lshl_add_u32 v17, v15, 3, v17
v_add_u32 v32, v16, v17
v_add_u32 v34, 144, v32
v_add_u32 v36, 288, v32
v_min_u32 v17, 2, v15
v_mul_u32_u24 v17, 144, v17
v_mul_u32_u24 v18, 72, v18
v_add3_u32 v38, v16, v17, v18
v_add_u32 v38, 32, v38
s_mov_b32 s85, 2048
s_lshr_b32 s86, s77, 2
s_mul_i32 s87, s{sJ1}, 72
s_add_u32 s86, s86, s87
s_mul_i32 s86, s86, 3584
s_add_u32 s86, s86, {WQP}
s_and_b32 s87, s77, 3
v_mul_u32_u24 v16, {18*3584}, v{vG}
v_lshl_add_u32 v16, v{vI}, 4, v16
s_lshl_b32 s79, s87, 8
s_add_u32 s79, s79, s86
v_add_u32 v40, s79, v16
v_add_u32 v41, 1024, v40
v_add_u32 v42, 2048, v40
v_lshrrev_b32 v16, 1, v15
v_lshl_add_u32 v16, v{vG}, 1, v16
v_mul_u32_u24 v16, {18*3584}, v16
v_and_b32 v17, 1, v15
v_lshl_add_u32 v17, v14, 1, v17
v_lshl_add_u32 v16, v17, 4, v16
s_lshl_b32 s79, s87, 7
s_add_u32 s79, s79, s86
s_add_u32 s79, s79, 3072
v_add_u32 v16, s79, v16
v_cmp_gt_u32 vcc, 32, v{vL}
v_cndmask_b32 v16, v13, v16, vcc
v_cmp_gt_u32 vcc, 12, v{vI}
v_cndmask_b32 v43, v13, v16, vcc
s_branch L_r1_join
L_r1_wo:
v_mul_u32_u24 v16, 144, v14
v_add_u32 v16, s84, v16
v_lshrrev_b32 v17, 1, v{vG}
v_lshlrev_b32 v17, 6, v17
v_and_b32 v18, 1, v{vG}
v_lshl_add_u32 v17, v18, 3, v17
v_lshl_add_u32 v17, v15, 4, v17
v_add_u32 v32, v16, v17
v_and_b32 v17, 1, v15
v_lshl_add_u32 v34, v17, 3, v16
v_add_u32 v34, 128, v34
v_add_u32 v36, 2048, v32
v_add_u32 v38, 2048, v34
s_mov_b32 s85, 1024
v_lshlrev_b32 v16, 10, v{vG}
v_lshl_add_u32 v16, v{vI}, 4, v16
v_cmp_gt_u32 vcc, 8, v{vL}
v_cndmask_b32 v17, v13, v{vL16}, vcc
s_sub_u32 s79, s77, 72""")
    for G in range(2):
        if G: P("s_add_u32 s79, s79, 36")
        P(f"""s_lshr_b32 s86, s79, 2
s_mul_i32 s87, s{sJ1}, 18
s_add_u32 s86, s86, s87
s_mul_i32 s86, s86, 4608
s_add_u32 s86, s86, {WOP}
s_cmp_lt_u32 s77, 108
s_cselect_b32 s86, s86, {OOB}
s_and_b32 s87, s79, 3
s_lshl_b32 s76, s87, 8
s_add_u32 s76, s76, s86
v_add_u32 v{40+2*G}, s76, v16
s_lshl_b32 s76, s87, 7
s_add_u32 s76, s76, s86
s_add_u32 s76, s76, 4096
v_add_u32 v{41+2*G}, s76, v17""")
    P("L_r1_join:\ns_nop 1")
    for t in range(4): P(f"v_add_u32 v{33+2*t}, s85, v{32+2*t}")
    mksrd(sW1, 12, 576*9216); mksrd(sW2, 16, 4608*1152); mksrd(sB1, 14, 9216); mksrd(sB2, 18, 1152); mksrd(sOUT, 20, 2048*1152)
    if cfg.stamps: P("@waitlg_all\ns_mov_b32 s4, s26"); nstamp[0] = 1
    P("@waitvm r0")
    stamp()
    for t in range(4):
        P(f"ds_read_b64_tr_b16 {vq(16+4*t,2)}, v{32+2*t}")
        P(f"ds_read_b64_tr_b16 {vq(18+4*t,2)}, v{33+2*t}")
    for t in range(4):
        P(f"buffer_store_dwordx4 {vq(16+4*t)}, v{40+t}, {srd(sWS)}, 0 offen sc1", "r0s")
    for l in xl[cfg.nx1:] + hl: P(l, "x")
    P(f"@waitlg_all\ns_add_u32 s{sTAG}, s{sTAG}, 0x9E3779B9")
    P(f"""s_lshl_b32 s84, s{sJ1}, 12
s_add_u32 s84, s84, {F0S}
s_lshl_b32 s85, s{sG1}, 2
s_add_u32 s85, s85, s84
v_mov_b32 v44, s85
v_cmp_eq_u32 vcc, 0, v0
v_cndmask_b32 v44, v13, v44, vcc
v_and_b32 v45, 31, v{vL}
v_lshl_add_u32 v45, v45, 2, s84""")
    def unit_params(z, is_w1, sS, sD):
        P(f"""s_add_u32 s84, s77, {128*z}
s_mul_i32 s85, s84, 7282
s_lshr_b32 s85, s85, 16
s_mul_i32 s86, s85, 9
s_sub_u32 s86, s84, s86""")
        if is_w1:
            P(f"s_mul_i32 s87, s85, {32*9216}\ns_mul_i32 s76, s{sJ1}, 1152\ns_add_u32 s87, s87, s76"); st = 9216
        else:
            P(f"s_mul_i32 s87, s85, {32*1152}\ns_mul_i32 s76, s{sJ1}, {576*1152}\ns_add_u32 s87, s87, s76"); st = 1152
        P(f"""s_lshl_b32 s76, s86, 7
s_add_u32 s87, s87, s76
s_cmp_lt_u32 s84, 162
s_cselect_b32 s{sS}, s87, {OOB}""")
        for q in range(1, 4): P(f"s_add_u32 s{sS+q}, s{sS+q-1}, {8*st-1024}")
        P(f"""s_lshr_b32 s87, s86, 1
s_mul_i32 s87, s87, 162
s_mul_i32 s76, s85, 5
s_lshl_b32 s75, s85, 2
s_add_u32 s75, s75, 90
s_bitcmp1_b32 s86, 0
s_cselect_b32 s75, s75, s76
s_add_u32 s87, s87, s75
s_add_u32 s76, s76, 4
s_cmp_eq_u32 s86, 8
s_cselect_b32 s87, s76, s87
s_cselect_b32 s75, 162, 1
s_lshl_b32 s75, s75, 10
s_mul_i32 s76, s{sJ1}, 648
s_add_u32 s87, s87, s76
s_lshl_b32 s87, s87, 10
s_add_u32 s87, s87, {W1R if is_w1 else W2R}
s_cmp_lt_u32 s84, 162
s_cselect_b32 s{sD}, s87, {OOB}""")
        for t in range(1, 4): P(f"s_add_u32 s{sD+t}, s{sD+t-1}, s75")
    P(f"""v_mul_u32_u24 v92, 9216, v8
v_lshl_add_u32 v92, v9, 4, v92
v_mul_u32_u24 v93, 1152, v8
v_lshl_add_u32 v93, v9, 4, v93
v_lshl_add_u32 v94, v{vG}, 3, v14
v_lshlrev_b32 v94, 7, v94
v_lshl_add_u32 v94, v15, 4, v94
s_lshl_b32 s84, s{sW}, 13
v_add_u32 v94, s84, v94""")
    P("@waitvm r0s\ns_barrier")
    set_flag(44)
    stamp()
    def unit_dma(is_w1, z, sS, scr):
        L = [f"s_lshl_b32 s84, s{sW}, 13", f"s_add_u32 s84, s84, {scr + 4096*z}", "s_mov_b32 m0, s84"]
        for q in range(4):
            L.append((f"buffer_load_dwordx4 v{92 if is_w1 else 93}, {srd(sW1 if is_w1 else sW2)}, s{sS+q} offen offset:{1024*q} lds", "wr"))
        return L
    def unit_tr(z, scr, vt):
        L = []
        for t in range(4):
            for hi in range(2):
                L.append(f"ds_read_b64_tr_b16 {vq(vt+4*t+2*hi,2)}, v94 offset:{scr + 4096*z + 64*(t>>1) + 8*(t&1) + 512*hi}")
        return L
    def unit_st(sD, vt):
        return [(f"buffer_store_dwordx4 {vq(vt+4*t)}, v{vL16}, {srd(sWS)}, s{sD+t} offen sc1", "wrs") for t in range(4)]
    D0, D1 = 32, 36
    for z in range(2):
        unit_params(z, True, 80, [D0, D1][z])
        P.extend(unit_dma(True, z, 80, W1SCR))
    P("s_mov_b32 s99, 0x3f803f80\ns_mov_b32 s98, 0xffff0000")
    def stats(groups, acc):
        order = []
        for gi, regs in enumerate(groups):
            for k, r in enumerate(regs): order.append((r, gi, k))
        order.sort()
        for r, gi, k in order:
            a = acc + 4*gi + 2*(k & 1)
            c0 = "0" if k < 2 else f"v{a}"; c1 = "0" if k < 2 else f"v{a+1}"
            P(f"v_dot2_f32_bf16 v{a}, v{r}, s99, {c0}\nv_dot2_f32_bf16 v{a+1}, v{r}, v{r}, {c1}")
        for gi in range(len(groups)):
            a = acc + 4*gi
            P(f"v_add_f32 v{a}, v{a}, v{a+2}\nv_add_f32 v{a+1}, v{a+1}, v{a+3}")
    def finish_stats(a):
        P(f"""v_mul_f32 v{a}, {hexf(1/576)}, v{a}
v_mul_f32 v{a+2}, v{a}, v{a}
v_mov_b32 v{a+3}, {hexf(1/576)}
v_fma_f32 v{a+1}, v{a+1}, v{a+3}, -v{a+2}
v_max_f32 v{a+1}, 0, v{a+1}
v_add_f32 v{a+1}, {hexf(1e-5)}, v{a+1}
v_rsq_f32 v{a+1}, v{a+1}
v_mul_f32 v{a+2}, v{a}, v{a+1}
v_mov_b32 v{a}, v{a+1}
v_sub_f32 v{a+2}, 0, v{a+2}
v_mov_b32 v{a+3}, v{a+2}""")
    def normalize(q, a, t):
        L = []
        for d in range(4):
            L.append(f"v_lshlrev_b32 v{t+2*d}, 16, v{q+d}")
            L.append(f"v_and_b32 v{t+2*d+1}, s98, v{q+d}")
        for d in range(4): L.append(f"v_pk_fma_f32 {vq(t+2*d,2)}, {vq(t+2*d,2)}, {vq(a,2)}, {vq(a+2,2)}")
        for d in range(4): L.append(f"v_cvt_pk_bf16_f32 v{q+d}, v{t+2*d}, v{t+2*d+1}")
        return L
    ST = 52
    stats([[XR + (q*2+hh)*4 + d for q in range(9) for d in range(4)] for hh in range(2)] + [[XH + k for k in range(20)]], ST)
    for mod in ["quad_perm:[1,0,3,2]", "quad_perm:[2,3,0,1]", "row_half_mirror"]:
        for gi in range(3):
            for k in range(2):
                a = ST + 4*gi + k
                P(f"v_add_f32_dpp v{a}, v{a}, v{a} {mod} row_mask:0xf bank_mask:0xf")
    for k in range(2): P(f"v_add_f32_dpp v{ST+8+k}, v{ST+8+k}, v{ST+8+k} row_mirror row_mask:0xf bank_mask:0xf")
    for gi in range(3): finish_stats(ST + 4*gi)
    P(f"""v_lshrrev_b32 v64, 2, v9
v_mul_u32_u24 v64, 5120, v64
v_and_b32 v65, 3, v9
v_lshl_add_u32 v64, v65, 8, v64
v_xor_b32 v65, v8, v9
v_lshl_add_u32 v64, v65, 4, v64
s_lshl_b32 s84, s{sW}, 10
s_add_u32 s84, s84, {XB}
v_add_u32 v64, s84, v64""")
    for q in range(9):
        P(f"s_mul_i32 s84, s{88+q}, 80\nv_add_u32 v65, s84, v64")
        for hh in range(2):
            r = XR + (q*2+hh)*4
            P.extend(normalize(r, ST + 4*hh, 68 + 8*hh))
            P(f"ds_write_b128 v65, {vq(r)} offset:{128*hh}")
    P(f"""v_lshrrev_b32 v64, 2, v{vI}
v_mul_u32_u24 v64, 5120, v64
v_lshl_add_u32 v64, v15, 8, v64
v_xor_b32 v65, v10, v9
v_lshl_add_u32 v64, v65, 4, v64
v_add_u32 v64, {XB + 4096}, v64
v_add_u32 v65, {20480*3}, v64""")
    for q in range(5):
        P.extend(normalize(XH + 4*q, ST + 8, 68 + 8*(q & 1)))
        if q == 4: P("s_mov_b32 exec_lo, 0x00ff00ff\ns_mov_b32 exec_hi, 0x00ff00ff")
        P(f"ds_write_b128 v{64 if q < 3 else 65}, {vq(XH+4*q)} offset:{20480*(q if q < 3 else q-3)}")
    P("s_mov_b64 exec, -1")
    stamp()
    MS, MP, ME, MO = 96, 100, 104, 108
    P(f"""v_mov_b32 v66, {hexf(-1e30)}
v_lshlrev_b32 v64, 2, v{vG}
v_sub_u32 v64, v64, v{vI}
s_cmp_eq_u32 s{sG1}, 0
s_cselect_b32 s84, 100, 0""")
    for r in range(4):
        P(f"""v_add_u32 v65, {r+7}, v64
v_cmp_gt_u32 vcc, 8, v65
v_cndmask_b32 v{MS+r}, v66, 0, vcc
v_add_u32 v65, {r}, v64
v_cmp_lt_i32 vcc, 8, v65
v_cndmask_b32 v{MP+r}, v66, 0, vcc
v_subrev_u32 v65, s84, v65
v_cmp_lt_i32 vcc, 8, v65
v_cndmask_b32 v{MO+r}, v66, 0, vcc
v_cmp_lt_i32 vcc, 0, v65
v_cndmask_b32 v{ME+r}, v66, 0, vcc
v_cmp_gt_u32 vcc, 2, v{vG}
v_cndmask_b32 v{ME+r}, v66, v{ME+r}, vcc""")
    P(f"""s_lshl_b32 s78, s{sJ1}, 2
s_add_u32 s78, s78, s{sW}
s_mul_i32 s78, s78, {18*3584}
s_add_u32 s78, s78, {WQP}
v_lshlrev_b32 v7, 7, v{vG}
v_lshl_add_u32 v7, v{vI}, 4, v7
v_cmp_gt_u32 vcc, 6, v{vI}
v_cndmask_b32 v7, v13, v7, vcc
v_xor_b32 v8, v{vI}, v{vG}
v_lshlrev_b32 v8, 4, v8
v_lshl_add_u32 v8, v{vG}, 8, v8
v_add_u32 v8, {XB}, v8
v_xor_b32 v9, 64, v8
v_add_u32 v10, 46080, v8
v_add_u32 v11, 46080, v9""")
    poll(45, 5)
    stamp()
    QA, KA, EA, VA = 16, 32, 52, 72
    WR = 64
    D = cfg.p1depth
    def wq_loads(s):
        b = WR + (s % D)*16
        L = [(f"buffer_load_dwordx4 {aq(b+4*t)}, v{vL16}, {srd(sWS)}, s78 offen offset:{1024*t} sc1", "wq") for t in range(3)]
        L.append((f"buffer_load_dwordx4 {aq(b+12)}, v7, {srd(sWS)}, s78 offen offset:3072 sc1", "wq"))
        L.append("s_add_u32 s78, s78, 3584")
        return L
    def x_reads(s):
        b = (s % 2)*20
        reg = (8 if s % 2 == 0 else 9) + (2 if s >= 9 else 0)
        return [f"ds_read_b128 {aq(b+4*m)}, v{reg} offset:{((s % 9)*5 + m)*1024}" for m in range(5)]
    for s in range(D-1): P.extend(wq_loads(s))
    P("@waitlg_all\ns_barrier")
    P.extend(x_reads(0))
    flex = []
    T0, T1 = 112, 128
    k0 = 19*1
    flex.append((k0, "@waitvm wr"))
    for l in unit_tr(0, W1SCR, T0) + unit_tr(1, W1SCR, T1): flex.append((k0, l))
    for l in unit_st(D0, T0) + unit_st(D1, T1): flex.append((k0 + 19, l))
    kb = 19*4
    flex.append((kb, "@waitlg_all")); flex.append((kb, "s_barrier"))
    flex.append((kb, f"s_mul_i32 s79, s{sJ1}, 82944")); flex.append((kb, f"s_add_u32 s79, s79, {WOP}"))
    flex.append((kb, f"s_lshl_b32 s84, s{sW}, 10")); flex.append((kb, "s_add_u32 s79, s79, s84"))
    nwo = 21
    for n in range(nwo):
        at = kb + 6 + (n * (19*13)) // nwo
        if n == 20:
            flex.append((at, f"s_lshl_b32 s85, s{sW}, 10")); flex.append((at, "s_sub_u32 s79, s79, s85"))
            flex.append((at, "s_sub_u32 s84, s84, s85"))
        flex.append((at, "s_mov_b32 m0, s84"))
        flex.append((at, "s_add_u32 s84, s84, 4096"))
        flex.append((at, (f"buffer_load_dwordx4 v{vL16}, {srd(sWS)}, s79 offen sc1 lds", "wo")))
        flex.append((at, "s_add_u32 s79, s79, 4096"))
    mains = []; fixed = {}
    for s in range(18):
        wb = WR + (s % D)*16; xb = (s % 2)*20
        base = len(mains)
        for m in range(5):
            x = aq(xb + 4*m)
            def acc(a): return (vq(a), "0" if s == 0 else vq(a))
            d, c = acc(KA + 4*m); mains.append(f"{MF} {d}, {aq(wb+4)}, {x}, {c}")
            d, c = acc(VA + 4*m); mains.append(f"{MF} {d}, {x}, {aq(wb+8)}, {c}")
            d, c = acc(EA + 4*m); mains.append(f"{MF} {d}, {aq(wb+12)}, {x}, {c}")
            if m < 4:
                d, c = acc(QA + 4*m); mains.append(f"{MF} {d}, {aq(wb)}, {x}, {c}")
        if s + 1 < 18:
            for k, l in enumerate(x_reads(s+1)): fixed.setdefault(base + 1 + 2*k, []).append(l)
            fixed.setdefault(base + 18, []).append(f"@need {aq(WR + ((s+1) % D)*16, 16)} {aq(((s+1) % 2)*20, 20)}")
        if s + D - 1 < 18:
            for k, l in enumerate(wq_loads(s + D - 1)): fixed.setdefault(base + 2 + 4*k, []).append(l)
    sched(P, mains, fixed, flex)
    stamp()
    P("s_barrier")
    for z in range(2):
        unit_params(z, False, 80, [D0, D1][z])
        P.extend(unit_dma(False, z, 80, W2SCR))
    QO, KO, VO, XO = 112, 128, 148, 160
    for m in range(5):
        P(f"v_cvt_pk_bf16_f32 v{KO+4*m}, v{KA+4*m}, v{KA+4*m+1}\nv_cvt_pk_bf16_f32 v{KO+4*m+1}, v{KA+4*m+2}, v{KA+4*m+3}")
        P(f"v_cvt_pk_bf16_f32 v{KO+4*m+2}, v{EA+4*m+2}, v{EA+4*m+3}\nv_mov_b32 v{KO+4*m+3}, 0")
    for m in range(4):
        P(f"v_cvt_pk_bf16_f32 v{QO+4*m}, v{QA+4*m}, v{QA+4*m+1}\nv_cvt_pk_bf16_f32 v{QO+4*m+1}, v{QA+4*m+2}, v{QA+4*m+3}")
        P(f"v_cvt_pk_bf16_f32 v{QO+4*m+2}, v{EA+4*m}, v{EA+4*m+1}\nv_mov_b32 v{QO+4*m+3}, 0")
    P(f"v_cvt_pk_bf16_f32 v172, v{EA+16}, v{EA+17}")
    P(f"""s_lshl_b32 s84, s{sW}, 10
s_add_u32 s84, s84, {VXS}
v_lshl_add_u32 v6, v{vI}, 1, s84
v_add_u32 v7, 512, v6
v_cmp_eq_u32 vcc, 1, v{vG}
v_cndmask_b32 v6, v7, v6, vcc
v_lshl_add_u32 v7, v{vL}, 2, s84
v_min_u32 v8, 2, v{vI}
v_mul_u32_u24 v8, 160, v8
v_lshl_add_u32 v8, v{vG}, 3, v8
v_add_u32 v8, s84, v8""")
    P(f"v_mov_b32 v5, s99\ns_mov_b32 exec_hi, 0xffff\nds_write_b32 v7, v5 offset:320\ns_mov_b32 exec_hi, -1")
    for m in range(5):
        r = QO + 4*m + 2 if m < 4 else 172
        P(f"ds_write_b16 v6, v{r} offset:{32*m}\nds_write_b16_d16_hi v6, v{r} offset:{160+32*m}")
    SA = 176
    prev = [4, 0, 4, 2]; pmask = [ME, MP, MO, MP]
    for m in range(4):
        P(f"{MF} {vq(SA+8*m)}, {vq(KO+4*prev[m])}, {vq(QO+4*m)}, {vq(pmask[m])}")
        P(f"{MF} {vq(SA+8*m+4)}, {vq(KO+4*m)}, {vq(QO+4*m)}, {vq(MS)}")
    vorder = [4, 0, 1, 4, 2, 3]
    for k, m in enumerate(vorder):
        P(f"v_cvt_pk_bf16_f32 v{VO+2*k}, v{VA+4*m}, v{VA+4*m+1}\nv_cvt_pk_bf16_f32 v{VO+2*k+1}, v{VA+4*m+2}, v{VA+4*m+3}")
    P("@waitlg_all")
    for k, m in enumerate(vorder): P(f"ds_read_b64 {vq(XO+2*k,2)}, v8 offset:{32*m}")
    MX = 208
    c = (18 ** -0.5) * 1.4426950408889634
    P(f"s_mov_b32 s84, {hexf(c)}")
    for m in range(4):
        s = SA + 8*m
        P(f"v_max3_f32 v{MX+m}, v{s}, v{s+1}, v{s+2}\nv_max3_f32 v{MX+4+m}, v{s+3}, v{s+4}, v{s+5}")
    for m in range(4):
        s = SA + 8*m
        P(f"v_max3_f32 v{MX+m}, v{MX+m}, v{s+6}, v{s+7}")
    for m in range(4): P(f"v_max_f32 v{MX+m}, v{MX+m}, v{MX+4+m}")
    for sw in ["v_permlane16_swap_b32", "v_permlane32_swap_b32"]:
        for m in range(4): P(f"v_mov_b32 v{MX+4+m}, v{MX+m}")
        for m in range(4): P(f"{sw} v{MX+m}, v{MX+4+m}")
        for m in range(4): P(f"v_max_f32 v{MX+m}, v{MX+m}, v{MX+4+m}")
    for m in range(4): P(f"v_mul_f32 v{MX+m}, s84, v{MX+m}")
    PO = 216; OA = 16; OX = 32
    for m in range(4):
        s = SA + 8*m
        for k in range(8): P(f"v_fma_f32 v{s+k}, v{s+k}, s84, -v{MX+m}")
        for k in range(8): P(f"v_exp_f32 v{s+k}, v{s+k}")
        for k in range(4): P(f"v_cvt_pk_bf16_f32 v{PO+4*m+k}, v{s+2*k}, v{s+2*k+1}")
        o = [0, 2, 6, 8][m]
        P(f"{MF} {vq(OX+4*m)}, {vq(XO+o)}, {vq(PO+4*m)}, 0")
        P(f"{MF} {vq(OA+4*m)}, {vq(VO+o)}, {vq(PO+4*m)}, 0")
    P(f"""s_mul_i32 s84, s{sG1}, 73728
s_add_u32 s84, s84, {OP}
s_lshl_b32 s85, s{sJ1}, 1
s_lshr_b32 s86, s{sW}, 1
s_add_u32 s85, s85, s86
s_lshl_b32 s85, s85, 12
s_and_b32 s86, s{sW}, 1
s_lshl_b32 s86, s86, 9
s_add_u32 s85, s85, s86
s_add_u32 s85, s85, s84
v_and_b32 v6, 1, v{vG}
v_lshlrev_b32 v6, 10, v6
v_lshrrev_b32 v7, 1, v{vG}
v_lshl_add_u32 v6, v7, 8, v6
v_lshl_add_u32 v6, v{vI}, 4, v6
v_add_u32 v6, s85, v6
s_lshr_b32 s85, s{sJ1}, 2
s_add_u32 s85, s85, 16
s_lshl_b32 s85, s85, 12
s_and_b32 s86, s{sJ1}, 3
s_lshl_b32 s86, s86, 8
s_add_u32 s85, s85, s86
s_lshl_b32 s86, s{sW}, 2
s_add_u32 s85, s85, s86
s_add_u32 s85, s85, s84
v_lshlrev_b32 v7, 10, v{vG}
v_lshl_add_u32 v7, v{vI}, 4, v7
v_add_u32 v7, s85, v7""")
    for m in range(4): P(f"v_rcp_f32 v{MX+m}, v{OX+4*m+2}")
    OP0 = 112
    for m in range(4):
        for r in range(4): P(f"v_mul_f32 v{OA+4*m+r}, v{OA+4*m+r}, v{MX+m}")
        for r in range(2): P(f"v_mul_f32 v{OX+4*m+r}, v{OX+4*m+r}, v{MX+m}")
        P(f"v_cvt_pk_bf16_f32 v{OP0+2*m}, v{OA+4*m}, v{OA+4*m+1}\nv_cvt_pk_bf16_f32 v{OP0+2*m+1}, v{OA+4*m+2}, v{OA+4*m+3}")
        P(f"v_cvt_pk_bf16_f32 v{OP0+8+m}, v{OX+4*m}, v{OX+4*m+1}")
    for p in range(2):
        b = OP0 + 4*p
        P(f"v_permlane16_swap_b32 v{b}, v{b+2}\nv_permlane16_swap_b32 v{b+1}, v{b+3}")
    P(f"v_permlane16_swap_b32 v{OP0+8}, v{OP0+9}\nv_permlane16_swap_b32 v{OP0+10}, v{OP0+11}")
    for p in range(2): P(f"buffer_store_dwordx4 {vq(OP0+4*p)}, v6, {srd(sWS)}, 0 offen offset:{2048*p} sc1", "o")
    P(f"v_permlane32_swap_b32 v{OP0+8}, v{OP0+10}")
    P(f"buffer_store_dword v{OP0+8}, v7, {srd(sWS)}, 0 offen sc1", "o")
    stamp()
    P(f"""s_lshl_b32 s84, s{sG1}, 6
s_and_b32 s85, s{sW}, 1
s_lshl_b32 s85, s85, 5
s_add_u32 s85, s85, s84
s_lshr_b32 s86, s{sW}, 1
s_add_u32 s85, s85, s86
s_mul_i32 s85, s85, 1152
s_mul_i32 s86, s{sJ1}, 144
s_add_u32 s85, s85, s86
v_mul_u32_u24 v8, 2304, v{vI}
v_lshl_add_u32 v9, v{vG}, 3, v8
v_lshl_add_u32 v8, v{vG}, 4, v8""")
    def two_flags(vd, grp_base, set_base):
        P(f"""s_lshl_b32 s86, s{sG1}, 12
s_lshl_b32 s87, s{sJ1}, 4
s_add_u32 s86, s86, s87
s_add_u32 s86, s86, {grp_base}
s_lshl_b32 s87, s{sJ1}, 12
s_lshl_b32 s76, s{sG1}, 2
s_add_u32 s87, s87, s76
s_add_u32 s87, s87, {set_base}
v_mov_b32 v{vd}, s87
v_mov_b32 v5, s86
v_cmp_eq_u32 vcc, 0, v0
v_cndmask_b32 v{vd}, v{vd}, v5, vcc
v_cmp_gt_u32 vcc, 2, v0
v_cndmask_b32 v{vd}, v13, v{vd}, vcc""")
    def grp_poll_addr(vd, sg, base):
        P(f"""s_lshl_b32 s86, s{sg}, 12
s_add_u32 s86, s86, {base}
v_and_b32 v{vd}, 7, v{vL}
v_lshl_add_u32 v{vd}, v{vd}, 4, s86""")
    def set_poll_addr(vd, sj, base):
        P(f"""s_lshl_b32 s86, s{sj}, 12
s_add_u32 s86, s86, {base}
v_and_b32 v{vd}, 31, v{vL}
v_lshl_add_u32 v{vd}, v{vd}, 2, s86""")
    two_flags(14, F1G, F1S)
    grp_poll_addr(15, sG1, F1G)
    P("@wait_all\ns_barrier")
    set_flag(14)
    stamp()
    XRES = 36
    P(f"buffer_load_dwordx4 {vq(XRES)}, v8, {srd(sX)}, s85 offen", "xr")
    P(f"buffer_load_dwordx4 {vq(XRES+4)}, v8, {srd(sX)}, s85 offen offset:64", "xr")
    P(f"buffer_load_dwordx2 {vq(XRES+8,2)}, v9, {srd(sX)}, s85 offen offset:128", "xr")
    P(f"v_add_u32 v94, {W2SCR}, v94")
    P.extend(unit_tr(0, 0, 52)); P.extend(unit_st(D0, 52))
    P.extend(unit_tr(1, 0, 112)); P.extend(unit_st(D1, 112))
    def wo_reg(s, t):
        n = s*5 + t
        return aq(4*n) if n < 64 else vq(152 + 4*(n-64))
    P(f"""v_add_u32 v10, 41472, v{vL16}
v_and_b32 v11, 7, v{vI}
v_lshlrev_b32 v11, 4, v11
v_lshl_add_u32 v11, v{vG}, 7, v11
v_add_u32 v12, 41472, v11""")
    for s in range(18):
        for t in range(5):
            reg = (vL16 if s < 9 else 10) if t < 4 else (11 if s < 9 else 12)
            P(f"ds_read_b128 {wo_reg(s,t)}, v{reg} offset:{WOB + (s % 9)*4608 + 1024*t}")
    HA = 16
    for k in range(10):
        t = k >> 1
        P(f"v_lshlrev_b32 v{HA+2*k}, 16, v{XRES+k}\nv_and_b32 v{HA+2*k+1}, s98, v{XRES+k}")
    P(f"""s_mul_i32 s84, s{sG1}, 73728
s_lshl_b32 s85, s{sW}, 10
s_add_u32 s84, s84, s85
s_add_u32 s78, s84, {OP}
s_add_u32 s84, s84, {HP}
s_mul_i32 s85, s{sJ1}, 9
v_add_u32 v6, s85, v{vG}
v_lshrrev_b32 v7, 2, v6
v_lshlrev_b32 v7, 12, v7
v_and_b32 v6, 3, v6
v_lshl_add_u32 v6, v6, 8, v7
v_lshl_add_u32 v6, v{vI}, 4, v6
v_add_u32 v6, s84, v6
s_add_u32 s85, s85, 8
s_lshr_b32 s86, s85, 2
s_lshl_b32 s86, s86, 12
s_and_b32 s85, s85, 3
s_lshl_b32 s85, s85, 8
s_add_u32 s85, s85, s86
s_add_u32 s85, s85, s84
v_lshlrev_b32 v7, 4, v{vI}
v_lshl_add_u32 v7, v{vG}, 3, v7
v_add_u32 v7, s85, v7
v_cmp_gt_u32 vcc, 2, v{vG}
v_cndmask_b32 v7, v13, v7, vcc
v_add_u32 v8, 4096, v6""")
    poll(15, 5)
    stamp()
    OF = 80
    for s in range(18):
        P(f"buffer_load_dwordx4 {vq(OF+4*s)}, v{vL16}, {srd(sWS)}, s78 offen sc1", "of")
        if s < 17: P("s_add_u32 s78, s78, 4096")
    two_flags(14, F2G, F2S)
    set_poll_addr(15, sJF, F1S)
    grp_poll_addr(46, sGF, F2G)
    for s in range(18):
        for t in range(5): P(f"{MF} {vq(HA+4*t)}, {wo_reg(s,t)}, {vq(OF+4*s)}, {vq(HA+4*t)}")
    HQ = 36
    for k in range(10): P(f"v_cvt_pk_bf16_f32 v{HQ+k}, v{HA+2*k}, v{HA+2*k+1}")
    P(f"buffer_store_dwordx4 {vq(HQ)}, v6, {srd(sWS)}, 0 offen sc1", "h")
    P(f"buffer_store_dwordx4 {vq(HQ+4)}, v8, {srd(sWS)}, 0 offen sc1", "h")
    P(f"buffer_store_dwordx2 {vq(HQ+8,2)}, v7, {srd(sWS)}, 0 offen sc1", "h")
    stamp()
    P("@wait_all\ns_barrier")
    set_flag(14)
    stamp()
    NR = 56; AF = 224
    P(f"""s_lshl_b32 s78, s{sJF}, 2
s_add_u32 s78, s78, s{sW}
s_mul_i32 s78, s78, {162*1024}
s_add_u32 s79, s78, {W2R}
s_add_u32 s78, s78, {W1R}""")
    def wload(n):
        L = []
        k = n % 162
        if n == 162: L.append("s_mov_b32 s78, s79")
        elif k % 4 == 0 and n > 0: L.append("s_add_u32 s78, s78, 4096")
        L.append((f"buffer_load_dwordx4 {aq(4*(n % NR))}, v{vL16}, {srd(sWS)}, s78 offen offset:{1024*(k % 4)} sc1", "w"))
        return L
    B1P = 232
    P(f"""s_mul_i32 s84, s{sJF}, 1152
s_lshl_b32 s85, s{sW}, 8
s_add_u32 s85, s85, s84
s_lshr_b32 s86, s{sW}, 1
s_lshl_b32 s86, s86, 6
s_and_b32 s87, s{sW}, 1
s_lshl_b32 s87, s87, 3
s_add_u32 s86, s86, s87
s_add_u32 s86, s86, s84
v_lshlrev_b32 v6, 4, v{vG}""")
    for p in range(4): P(f"buffer_load_dwordx4 {vq(B1P+4*p)}, v6, {srd(sB1)}, s85 offen offset:{64*p}", "b1")
    P(f"buffer_load_dwordx2 {vq(B1P+16,2)}, v6, {srd(sB1)}, s86 offen offset:1024", "b1")
    poll(15, 5)
    for n in range(cfg.npre): P.extend(wload(n))
    ACA, ACB = 16, 96
    CA, CB = 96, 160
    def unpack(dst, src, n):
        return sum([[f"v_lshlrev_b32 v{dst+2*k}, 16, v{src+k}", f"v_and_b32 v{dst+2*k+1}, s98, v{src+k}"] for k in range(n)], [])
    P.extend(unpack(CA, B1P, 8)); P.extend(unpack(CA+16, B1P+16, 2))
    P(f"""s_mul_i32 s84, s{sGF}, 73728
s_lshl_b32 s85, s{sW}, 10
s_add_u32 s84, s84, s85
s_add_u32 s77, s84, {HP}
v_add_u32 v6, s85, v{vL16}
v_add_u32 v7, 36864, v6
v_add_u32 v8, 36864, v{vL16}
v_add_u32 v9, {HB}, v{vL16}
v_add_u32 v10, {HB + 36864}, v{vL16}
s_lshl_b32 s85, s{sW}, 14
v_add_u32 v11, s85, v9
s_lshr_b32 s85, s{sW}, 1
s_lshl_b32 s85, s85, 12
s_and_b32 s86, s{sW}, 1
s_lshl_b32 s86, s86, 3
s_add_u32 s85, s85, s86
s_add_u32 s85, s85, 65536
v_add_u32 v12, s85, v9""")
    set_poll_addr(15, sJF, F2S)
    poll(46, 5)
    stamp()
    HR = 160
    for s in range(18):
        P(f"buffer_load_dwordx4 {vq(HR+4*s)}, v{vL16}, {srd(sWS)}, s77 offen sc1", "hf")
        if s < 17: P("s_add_u32 s77, s77, 4096")
    ST = 120
    stats([[HR + k for k in range(72)]], ST)
    for sw in ["v_permlane16_swap_b32", "v_permlane32_swap_b32"]:
        for k in range(2): P(f"v_mov_b32 v{ST+2+k}, v{ST+k}")
        for k in range(2): P(f"{sw} v{ST+k}, v{ST+2+k}")
        for k in range(2): P(f"v_add_f32 v{ST+k}, v{ST+k}, v{ST+2+k}")
    finish_stats(ST)
    for s in range(18):
        P.extend(normalize(HR + 4*s, ST, 128 + 8*(s & 1)))
        P(f"ds_write_b128 v{6 if s < 9 else 7}, {vq(HR+4*s)} offset:{XN + (s % 9)*4096}")
    P.extend(unpack(CB, B1P+8, 8))
    P("@waitlg_all\ns_barrier")
    stamp()
    horder = [0, 1, 4, 5, 8, 9, 12, 13, 16, 17, 2, 3, 6, 7, 10, 11, 14, 15]
    passes = [("A", 5, ACA, list(range(18)), 0, CA), ("B", 4, ACB, list(range(18)), 90, CB),
              ("C1", 5, ACA, horder, 162, None), ("C2", 4, ACB, list(range(18)), 252, None)]
    steps = []
    for pi, ps in enumerate(passes):
        for p, s in enumerate(ps[3]): steps.append((pi, p, s))
    cons = []
    for pi, p, s in steps:
        nt = passes[pi][1]
        for t in range(nt): cons.append(passes[pi][4] + s*nt + t)
    slot = {f: n % NR for n, f in enumerate(cons)}
    cur = [None]
    def wload2(n):
        f = cons[n]; L = []
        base = 78 if f < 162 else 79
        k = f % 162; blk = k // 4
        if cur[0] is None or cur[0][0] != base: cur[0] = [base, (cfg.npre - 1)//4 if base == 78 else 0]
        if blk != cur[0][1]:
            d = (blk - cur[0][1])*4096
            L.append(f"s_add_u32 s{base}, s{base}, {d}" if d > 0 else f"s_sub_u32 s{base}, s{base}, {-d}")
            cur[0][1] = blk
        L.append((f"buffer_load_dwordx4 {aq(4*(n % NR))}, v{vL16}, {srd(sWS)}, s{base} offen offset:{1024*(k % 4)} sc1", "w"))
        return L
    def act_reads(i):
        pi, p, s = steps[i]
        b = AF + (i % 2)*16
        if pi < 2: reg = vL16 if s < 9 else 8
        else: reg = 9 if s < 9 else 10
        return [f"ds_read_b128 {aq(b+4*m)}, v{reg} offset:{((s % 9)*4 + m)*1024}" for m in range(4)]
    P.extend(act_reads(0))
    mains = []; fixed = {}; start = []
    nl = cfg.npre; nc = 0
    for i, (pi, p, s) in enumerate(steps):
        name, nt, acc, _, f0, cin = passes[pi]
        base = len(mains); start.append(base)
        b = AF + (i % 2)*16
        for t in range(nt):
            w = aq(4*slot[f0 + s*nt + t])
            for m in range(4):
                d = vq(acc + (t*4 + m)*4)
                c = d if p > 0 else (vq(cin + 4*t) if cin is not None else "0")
                mains.append(f"{MF} {d}, {w}, {aq(b+4*m)}, {c}")
            if nl < len(cons):
                if nl == 162: fixed.setdefault(base + 4*t + 1, []).append("@pollw2")
                fixed.setdefault(base + 4*t + 1, []).extend(wload2(nl)); nl += 1
        if i + 1 < len(steps):
            for k, l in enumerate(act_reads(i+1)): fixed.setdefault(base + 2*k + (2 if i in (35, 45) else 0), []).append(l)
            pj, pp, sj = steps[i+1]
            nxt = " ".join(aq(4*slot[passes[pj][4] + sj*passes[pj][1] + t]) for t in range(passes[pj][1]))
            fixed.setdefault(base + 4*nt - 1, []).append(f"@need {nxt} {aq(AF + ((i+1) % 2)*16, 16)}")
    start.append(len(mains))
    S = lambda pi, p: start[pi*18 + p]
    flex = []
    TQ = 176
    tq = [0]
    def epi1(acc, pair_tiles, m, wr):
        L = []
        q = TQ + 4*(tq[0] % 4); tq[0] += 1
        regs = [acc + (t*4 + m)*4 + r for t in pair_tiles for r in range(4)]
        for r in regs: L.append(f"v_mul_f32 v{r}, v{r}, |v{r}|")
        for k in range(len(regs)//2): L.append(f"v_cvt_pk_bf16_f32 v{q+k}, v{regs[2*k]}, v{regs[2*k+1]}")
        for k in range(len(regs)//2): L.append(f"v_pk_max_i16 v{q+k}, v{q+k}, 0")
        L.append(wr(q))
        return L
    at = S(1, 0) + 3
    for pr in range(2):
        for m in range(4):
            for l in epi1(ACA, [2*pr, 2*pr+1], m, lambda q: f"ds_write_b128 v11, {vq(q)} offset:{pr*4096 + m*1024}"): flex.append((at, l))
    for m in range(4):
        for l in epi1(ACA, [4], m, lambda q: f"ds_write_b64 v12, {vq(q,2)} offset:{m*1024}"): flex.append((at, l))
    fixed.setdefault(S(1, 17), []).extend(["@flexdone0", "@waitlg_all", "s_barrier"])
    flex.append((at, "@mark0"))
    at = S(2, 0) + 3
    for pr in range(2):
        for m in range(4):
            for l in epi1(ACB, [2*pr, 2*pr+1], m, lambda q: f"ds_write_b128 v11, {vq(q)} offset:{8192 + pr*4096 + m*1024}"): flex.append((at, l))
    flex.append((at, "@mark1"))
    fixed.setdefault(S(2, 9), []).extend(["@flexdone1", "@waitlg_all", "s_barrier"])
    at = S(2, 10)
    setup = f"""s_lshl_b32 s84, s{sGF}, 6
s_add_u32 s84, s84, s{sJF}
s_mul_i32 s84, s84, 9216
s_add_u32 s84, s84, {PART}
v_lshrrev_b32 v14, 3, v{vI}
v_mul_u32_u24 v14, {8*9216}, v14
v_and_b32 v15, 7, v{vI}
v_lshl_add_u32 v14, v15, 4, v14
v_lshl_add_u32 v14, v{vG}, 7, v14
v_add_u32 v14, s84, v14
s_lshr_b32 s85, s{sW}, 1
s_lshl_b32 s85, s85, 9
s_and_b32 s86, s{sW}, 1
s_lshl_b32 s86, s86, 3
s_add_u32 s85, s85, s86
s_add_u32 s85, s85, 8192
v_add_u32 v15, s85, v14
s_lshl_b32 s85, s{sW}, 11
v_add_u32 v14, s85, v14
s_mov_b32 s80, 0
s_mov_b32 s81, {16*9216}
s_mov_b32 s82, {32*9216}
s_mov_b32 s83, {48*9216}
s_lshl_b32 s86, s{sGF}, 12
s_lshl_b32 s87, s{sJF}, 4
s_add_u32 s87, s87, s86
s_add_u32 s87, s87, {F3A}
v_mov_b32 v44, s87
v_cmp_eq_u32 vcc, 0, v0
v_cndmask_b32 v44, v13, v44, vcc
s_add_u32 s86, s86, {F3A}
v_and_b32 v46, 7, v{vL}
v_lshl_add_u32 v46, v46, 4, s86"""
    return_later = None
    setup = setup.replace("v44", "v250").replace("v46", "v251")
    setup += f"""
s_lshl_b32 s84, s{sGF}, 3
s_add_u32 s84, s84, s{sJF}
s_mul_i32 s84, s84, {8*9216}
s_add_u32 s84, s84, {PART}
s_lshl_b32 s85, s{sW}, 11
s_add_u32 s85, s85, s84
v_add_u32 v252, s85, v{vL16}
s_lshl_b32 s85, s{sW}, 8
s_add_u32 s85, s85, s84
s_add_u32 s85, s85, 8192
v_lshl_add_u32 v7, v{vI}, 4, s85
v_cmp_gt_u32 vcc, 16, v{vL}
v_cndmask_b32 v7, v13, v7, vcc
v_lshrrev_b32 v5, 5, v{vL}
v_bfe_u32 v6, v{vL}, 3, 2
v_and_b32 v8, 7, v{vL}
s_mul_i32 s84, s{sGF}, 73728
s_lshr_b32 s85, s{sJF}, 1
s_lshl_b32 s86, s85, 10
s_add_u32 s84, s84, s86
s_and_b32 s86, s{sJF}, 1
s_lshl_b32 s87, s86, 7
s_add_u32 s84, s84, s87
s_add_u32 s84, s84, {HP}
v_lshlrev_b32 v253, 12, v5
v_lshl_add_u32 v253, v6, 8, v253
v_lshl_add_u32 v253, v8, 4, v253
s_lshl_b32 s87, s{sW}, 14
s_add_u32 s74, s87, s84
s_lshr_b32 s87, s{sW}, 1
s_lshl_b32 s87, s87, 12
s_and_b32 s76, s{sW}, 1
s_lshl_b32 s76, s76, 9
s_add_u32 s87, s87, s76
s_add_u32 s87, s87, 65536
s_add_u32 s75, s87, s84
s_lshl_b32 s84, s{sGF}, 6
s_and_b32 s87, s85, 1
s_lshl_b32 s87, s87, 5
s_add_u32 s84, s84, s87
s_lshr_b32 s87, s85, 1
s_add_u32 s84, s84, s87
s_lshl_b32 s87, s86, 4
s_add_u32 s84, s84, s87
s_mul_i32 s84, s84, 1152
v_lshlrev_b32 v6, 4, v6
v_lshl_add_u32 v6, v5, 6, v6
v_mul_u32_u24 v254, 2304, v8
v_add3_u32 v254, v254, v6, s84
v_cndmask_b32 v255, v13, v254, vcc
s_lshl_b32 s88, s{sW}, 8
s_lshl_b32 s89, s{sW}, 5
s_add_u32 s89, s89, 1024"""
    for l in setup.split("\n"): flex.append((at, l))
    def epi2(acc, tiles, m, st):
        q = TQ + 4*(tq[0] % 4); tq[0] += 1
        regs = [acc + (t*4 + m)*4 + r for t in tiles for r in range(4)]
        L = [f"v_cvt_pk_bf16_f32 v{q+k}, v{regs[2*k]}, v{regs[2*k+1]}" for k in range(len(regs)//2)]
        L.append(st(q))
        return L
    at = S(3, 0) + 3
    for m in range(4):
        for pr in range(2):
            for l in epi2(ACA, [2*pr, 2*pr+1], m, lambda q: (f"buffer_store_dwordx4 {vq(q)}, v14, {srd(sWS)}, s{80+m} offen offset:{512*pr} sc1", "p1")): flex.append((at + 8*(2*m+pr), l))
        for l in epi2(ACA, [4], m, lambda q: (f"buffer_store_dwordx2 {vq(q,2)}, v15, {srd(sWS)}, s{80+m} offen sc1", "p1")): flex.append((at + 8*(2*m+1), l))
    flex.append((at, "@mark2"))
    fixed.setdefault(S(3, 9), []).extend(["@flexdone2", "@waitvm p1", "s_barrier", "@flag3a"])
    def special(name):
        if name == "@pollw2": poll(15, 5)
        elif name == "@flag3a": set_flag(250)
    sched(P, mains, fixed, flex, special)
    stamp()
    for m in range(4):
        for pr in range(2):
            P.extend(epi2(ACB, [2*pr, 2*pr+1], m, lambda q: (f"buffer_store_dwordx4 {vq(q)}, v14, {srd(sWS)}, s{80+m} offen offset:{1024 + 512*pr} sc1", "p2")))
    P(f"v_add_u32 v250, {F3B - F3A}, v250")
    def red_loads(vaddr, off, R0, vh, sh, hoff, vb, sb, boff):
        P("s_mov_b32 s84, 0")
        P(f"buffer_load_dwordx4 {vq(R0+32)}, v{vh}, {srd(sWS)}, s{sh} offen offset:{hoff} sc1", "rd")
        P(f"buffer_load_dwordx4 {vq(R0+36)}, v{vb}, {srd(sB2)}, s{sb} offen offset:{boff}", "rd")
        for j in range(8):
            P(f"buffer_load_dwordx4 {vq(R0+4*j)}, v{vaddr}, {srd(sWS)}, s84 offen offset:{off} sc1", "rd")
            if j < 7: P("s_add_u32 s84, s84, 9216")
    def red_sum(R0, T, vo, so, ooff):
        P.extend(unpack(T, R0+32, 4))
        for j in [9] + list(range(8)):
            P.extend(unpack(T+8, R0+4*j, 4))
            for d in range(4): P(f"v_pk_add_f32 {vq(T+2*d,2)}, {vq(T+2*d,2)}, {vq(T+8+2*d,2)}")
        for d in range(4): P(f"v_cvt_pk_bf16_f32 v{T+16+d}, v{T+2*d}, v{T+2*d+1}")
        P(f"buffer_store_dwordx4 {vq(T+16)}, v{vo}, {srd(sOUT)}, s{so} offen offset:{ooff}", "out")
    P("@waitvm p2\ns_barrier")
    set_flag(250)
    stamp()
    poll(251, 5)
    P("v_add_u32 v8, 8192, v253")
    red_loads(252, 0, 16, 253, 74, 0, 6, 88, 0)
    red_loads(7, 0, 56, 253, 75, 0, 6, 89, 0)
    red_sum(16, 192, 254, 88, 0)
    red_sum(56, 216, 255, 89, 0)
    P(f"v_add_u32 v251, {F3B - F3A}, v251")
    poll(251, 5)
    stamp()
    red_loads(252, 1024, 96, 8, 74, 0, 6, 88, 128)
    red_sum(96, 192, 254, 88, 128)
    P(f"""s_cmp_lg_u32 s2, 0
s_cbranch_scc1 L_noepoch
s_cmp_lg_u32 s{sW}, 0
s_cbranch_scc1 L_noepoch""")
    P(f"v_lshrrev_b32 v6, 5, v{vL}\nv_lshlrev_b32 v6, 12, v6\nv_and_b32 v7, 31, v{vL}\nv_lshl_add_u32 v6, v7, 2, v6\nv_add_u32 v6, {F0S}, v6")
    for k in range(4):
        poll(6, 5)
        P("v_add_u32 v6, 8192, v6")
    P(f"v_mov_b32 v6, 0\nv_mov_b32 v5, s{sTAG}\ns_mov_b64 exec, 1\nbuffer_store_dword v5, v6, {srd(sWS)}, 0 offen\ns_mov_b64 exec, -1\nL_noepoch:")
    if cfg.stamps:
        P("@wait_all")
        stamp()
        P(f"s_waitcnt vmcnt(0)\ns_lshl_b32 s84, s2, 2\ns_add_u32 s84, s84, s{sW}\ns_lshl_b32 s84, s84, 7\ns_add_u32 s84, s84, {STAMPS}\nv_mov_b32 v6, s84\ns_mov_b64 exec, 1")
        for k in range(nstamp[0]):
            P(f"v_mov_b32 v5, s{STAMP0+k}\nbuffer_store_dword v5, v6, {srd(sWS)}, 0 offen offset:{4*k}")
    P("L_end:\ns_endpgm")
    return P

def sched(P, mains, fixed, flex, special=None, cap=2):
    k = 0; marks = set()
    def put(it):
        t = it[0] if isinstance(it, tuple) else it
        if t.startswith("@mark"): marks.add(t[5:]); return 0
        if t.startswith("@flexdone"):
            nonlocal k
            while t[9:] not in marks:
                put(flex[k][1]); k += 1
            return 0
        if t in ("@pollw2", "@flag3a"): special(t); return 1
        P.add(it)
        return 0 if t.startswith("@") else 1
    for n, m in enumerate(mains):
        P.add(m)
        c = 0
        for it in fixed.get(n, []): c += put(it)
        while k < len(flex) and c < cap and flex[k][0] <= n:
            it = flex[k][1]; k += 1
            c += put(it)
    while k < len(flex):
        it = flex[k][1]; k += 1
        put(it)

import struct
def hexf(x): return hex(struct.unpack("<I", struct.pack("<f", x))[0])

HEADER = open("cdna_kernels/" + NAME + ".s.ref").read().split("; Override launch geometry")[0]
def build(cfg, verbose=False):
    body = finalize(gen(cfg), verbose)
    k = NAME + "_kernel"
    return (HEADER + f"; @launch grid=(256,1,1) block=(256,1,1) lds={LDS_BYTES}\n"
        + f'.amdgcn_target "amdgcn-amd-amdhsa--gfx950"\n.text\n.globl {k}\n.p2align 8\n.type {k},@function\n{k}:\n' + body
        + f""".section .rodata,"a"
.p2align 6
.amdhsa_kernel {k}
  .amdhsa_next_free_vgpr 512
  .amdhsa_next_free_sgpr 102
  .amdhsa_accum_offset 256
  .amdhsa_group_segment_fixed_size 0
  .amdhsa_kernarg_size 88
  .amdhsa_user_sgpr_count 2
  .amdhsa_user_sgpr_kernarg_segment_ptr 1
  .amdhsa_system_sgpr_workgroup_id_x 1
.end_amdhsa_kernel
""")

if __name__ == "__main__":
    cfg = Cfg()
    out = sys.argv[1]
    for a in sys.argv[2:]:
        k, v = a.split("=")
        setattr(cfg, k, eval(v))
    open(out, "w").write(build(cfg, True))
```

```python
import sys
from ir import *

NAME = "sequential_preLN__sliding_local_dilated__dense_activation_squared_relu__prompt"

F0S, F1G, F1S, F2G, F2S, F3A, F3B = 0x10000, 0x20000, 0x48000, 0x50000, 0x78000, 0x80000, 0xA0000
WQP, WOP, OP, HP, W1R, W2R, PART, STAMPS = 0x100000, 0x300000, 0x400000, 0x700000, 0xA00000, 0x1000000, 0x1600000, 0x3000000
WS_BYTES = 0x4000000
OOB = 0x40000000
LDS_BYTES = 163840
XB = 71680
R0SCR = 49152
W1SCR = 0
WOB = 0
W2SCR = 98304
VXS = 139264
XN, HB = 0, 73728
sX, sWQ, sWO, sW1, sW2, sB1, sB2, sOUT, sWS, sR = 28, 32, 36, 40, 44, 48, 52, 56, 60, 64
sW, sG1, sJ1, sGF, sJF, sTAG = 68, 69, 70, 71, 72, 73
def srd(n): return f"s[{n}:{n+3}]"
def vq(n, k=4): return f"v[{n}:{n+k-1}]"
def aq(n, k=4): return f"a[{n}:{n+k-1}]"
MF = "v_mfma_f32_16x16x32_bf16"
vL, vI, vG, vL16 = 1, 2, 3, 4

class Cfg:
    stamps = False
    nx1 = 6
    p1depth = 8
    npre = 25
    rot = True
    npre1 = 12
    wospan = 10
    f3 = (5, 9, 11)
    nleft = 60
    wsbase = 0
    only = None
    cap = 2
    wsc = " sc1"
    nwo1 = 40
    stop = None

def gen(cfg):
    P = Prog()
    nstamp = [0]
    names = []
    def stamp_txt(name):
        if cfg.stamps and (cfg.only is None or name in cfg.only or name == "end") and not (cfg.only is None and name.startswith("@")):
            k = nstamp[0]; nstamp[0] += 1; names.append(name); assert k < 20
            return f"{'s_memtime' if cfg.stamps == 2 else 's_memrealtime'} s[100:101]\n@waitlg_all\ns_mov_b32 s{STAMP0+k}, s100"
        return None
    def stamp(name):
        t = stamp_txt(name)
        if t: P(t)
    STAMP0 = 4
    npoll = [0]
    def poll(vaddr, vtmp):
        k = npoll[0]; npoll[0] += 1
        P(f"""s_mov_b32 s97, 0
L_poll{k}:
buffer_load_dword v{vtmp}, v{vaddr}, {srd(sWS)}, 0 offen sc1
s_add_u32 s97, s97, 1
s_waitcnt vmcnt(0)
v_cmp_ne_u32 vcc, s{sTAG}, v{vtmp}
s_cmp_gt_u32 s97, 400000
s_cbranch_scc1 L_pdone{k}
s_cbranch_vccnz L_poll{k}
L_pdone{k}:""")
    slow = []
    def poll_pre(vaddr, vtmp):
        return (f"buffer_load_dword v{vtmp}, v{vaddr}, {srd(sWS)}, 0 offen sc1", "pl")
    def poll_check(vaddr, vtmp):
        k = npoll[0]; npoll[0] += 1
        slow.append(f"""L_slow{k}:
s_mov_b32 s97, 0
L_poll{k}:
buffer_load_dword v{vtmp}, v{vaddr}, {srd(sWS)}, 0 offen sc1
s_add_u32 s97, s97, 1
s_waitcnt vmcnt(0)
v_cmp_ne_u32 vcc, s{sTAG}, v{vtmp}
s_cmp_gt_u32 s97, 400000
s_cbranch_scc1 L_back{k}
s_cbranch_vccnz L_poll{k}
s_branch L_back{k}""")
        return f"v_cmp_ne_u32 vcc, s{sTAG}, v{vtmp}\ns_cbranch_vccnz L_slow{k}\nL_back{k}:"
    def wrap(sr, step, send, sbeg):
        return f"s_add_u32 s{sr}, s{sr}, {step}\ns_cmp_eq_u32 s{sr}, s{send}\ns_cselect_b32 s{sr}, s{sbeg}, s{sr}"
    def set_flag(vaddr):
        P(f"v_mov_b32 v5, s{sTAG}")
        P(f"buffer_store_dword v5, v{vaddr}, {srd(sWS)}, 0 offen sc1", "flag")

    P("""s_cmp_ge_u32 s2, 256
s_cbranch_scc1 L_end
s_load_dwordx16 s[4:19], s[0:1], 0
s_load_dwordx4 s[20:23], s[0:1], 64
s_load_dwordx2 s[24:25], s[0:1], 80""")
    if cfg.stamps: P("s_memtime s[26:27]" if cfg.stamps == 2 else "s_memrealtime s[26:27]")
    P(f"""v_lshrrev_b32 v5, 6, v0
v_and_b32 v{vL}, 63, v0
v_readfirstlane_b32 s{sW}, v5
v_and_b32 v{vI}, 15, v0
v_lshrrev_b32 v{vG}, 4, v{vL}
v_lshlrev_b32 v{vL16}, 4, v{vL}
s_and_b32 s74, s2, 7
s_lshr_b32 s75, s2, 3
s_lshl_b32 s{sG1}, s74, 2
s_lshr_b32 s76, s75, 3
s_add_u32 s{sG1}, s{sG1}, s76
s_and_b32 s{sJ1}, s75, 7
s_lshr_b32 s{sGF}, s74, 2
s_lshl_b32 s{sGF}, s{sGF}, 4
s_lshr_b32 s76, s75, 1
s_add_u32 s{sGF}, s{sGF}, s76
s_and_b32 s{sJF}, s74, 3
s_lshl_b32 s{sJF}, s{sJF}, 1
s_and_b32 s76, s75, 1
s_add_u32 s{sJF}, s{sJF}, s76
s_lshl_b32 s77, s{sW}, 5
s_add_u32 s77, s77, s{sG1}
s_mul_i32 s78, s{sJ1}, 144""")
    sRP, sRF = 0, 1
    P(f"""s_cmp_lt_u32 s77, 72
s_cbranch_scc0 L_r0_wo
v_mul_u32_u24 v6, 2428, v{vL}
v_lshrrev_b32 v6, 16, v6
v_mul_u32_u24 v7, 27, v6
v_sub_u32 v7, v{vL}, v7
v_mul_u32_u24 v8, 7282, v7
v_lshrrev_b32 v8, 16, v8
v_mul_u32_u24 v9, 9, v8
v_sub_u32 v9, v7, v9
v_mul_u32_u24 v6, 3456, v6
v_mul_u32_u24 v8, 1152, v8
v_lshlrev_b32 v9, 4, v9
v_add3_u32 v5, v6, v8, v9
v_cmp_gt_u32 vcc, 54, v{vL}
s_mul_i32 s80, s77, {8*3456}
s_add_u32 s80, s80, s78
s_add_u32 s81, s80, {6912-1024}
s_add_u32 s82, s81, {6912-1024}
s_add_u32 s83, s82, {6912-1024}
s_branch L_r0_join
L_r0_wo:
v_mul_u32_u24 v6, 7282, v{vL}
v_lshrrev_b32 v6, 16, v6
v_mul_u32_u24 v7, 9, v6
v_sub_u32 v7, v{vL}, v7
v_mul_u32_u24 v6, 1152, v6
v_lshl_add_u32 v5, v7, 4, v6
v_cmp_gt_u32 vcc, 36, v{vL}
s_sub_u32 s79, s77, 72""")
    for G in range(2):
        if G: P("s_add_u32 s79, s79, 36")
        P(f"""s_lshr_b32 s84, s79, 2
s_mul_i32 s84, s84, 36
s_bfe_u32 s85, s79, 0x10001
s_mul_i32 s85, s85, 20
s_add_u32 s84, s84, s85
s_and_b32 s85, s79, 1
s_lshl_b32 s85, s85, 3
s_add_u32 s84, s84, s85
s_add_u32 s85, s84, 4
s_sub_u32 s86, s79, 64
s_mul_i32 s86, s86, 72
s_add_u32 s86, s86, 16
s_add_u32 s87, s86, 36
s_cmp_lt_u32 s79, 64
s_cselect_b32 s84, s84, s86
s_cselect_b32 s85, s85, s87
s_mul_i32 s84, s84, 1152
s_mul_i32 s85, s85, 1152
s_add_u32 s84, s84, s78
s_add_u32 s85, s85, s78
s_sub_u32 s{80+2*G}, s84, {1024*(2*G)}
s_sub_u32 s{81+2*G}, s85, {1024*(2*G+1)}""")
    P(f"""s_cmp_lt_u32 s77, 108
s_cselect_b32 s80, s80, {OOB}
s_cselect_b32 s81, s81, {OOB}
s_cselect_b32 s82, s82, {OOB}
s_cselect_b32 s83, s83, {OOB}
L_r0_join:
s_nop 1
v_mov_b32 v6, {OOB}
v_cndmask_b32 v5, v6, v5, vcc
s_lshl_b32 s84, s{sW}, 12
s_add_u32 s84, s84, {R0SCR}
s_mov_b32 m0, s84
s_waitcnt lgkmcnt(0)""")
    def mksrd(d, p, n):
        P(f"s_mov_b32 s{d}, s{p}\ns_and_b32 s{d+1}, s{p+1}, 0xffff\ns_mov_b32 s{d+2}, {n}\ns_mov_b32 s{d+3}, 0x00020000")
    P(f"""s_cmp_lt_u32 s77, 72
s_cselect_b32 s{sR}, s6, s8
s_cselect_b32 s{sR+1}, s7, s9
s_mov_b32 s85, {576*1152}
s_cselect_b32 s{sR+2}, {576*3456}, s85
s_and_b32 s{sR+1}, s{sR+1}, 0xffff
s_mov_b32 s{sR+3}, 0x00020000""")
    for q in range(4):
        P(f"buffer_load_dwordx4 v5, {srd(sR)}, s{80+q} offen offset:{1024*q} lds", "r0")
    mksrd(sX, 4, 2048*1152)
    if cfg.wsbase: P(f"s_add_u32 s24, s24, {cfg.wsbase}\ns_addc_u32 s25, s25, 0")
    P(f"s_load_dword s{sTAG}, s[24:25], 0")
    XR, XH = 160, 232
    P(f"""s_lshl_b32 s84, s{sG1}, 6
s_and_b32 s85, s{sW}, 1
s_lshl_b32 s85, s85, 5
s_add_u32 s85, s85, s84
s_lshr_b32 s86, s{sW}, 1
s_add_u32 s85, s85, s86
s_mul_i32 s85, s85, 1152
v_lshrrev_b32 v8, 3, v{vL}
v_and_b32 v9, 7, v{vL}
v_mul_u32_u24 v6, 2304, v8
v_lshl_add_u32 v6, v9, 4, v6
v_add_u32 v6, s85, v6
v_add_u32 v7, {8*2304}, v6""")
    if cfg.rot:
        P(f"""s_and_b32 s86, s{sG1}, 3
s_mul_i32 s86, s86, 9
s_add_u32 s86, s86, 2
s_lshr_b32 s86, s86, 2
s_add_u32 s86, s86, s{sJ1}
s_sub_u32 s87, s86, 9
s_cmp_ge_u32 s86, 9
s_cselect_b32 s{sRP}, s87, s86
s_and_b32 s86, s{sJF}, 1
s_mul_i32 s86, s86, 9
s_and_b32 s87, s{sGF}, 15
s_add_u32 s86, s86, s87
s_sub_u32 s87, s86, 18
s_cmp_ge_u32 s86, 18
s_cselect_b32 s{sRF}, s87, s86""")
    else:
        P(f"s_mov_b32 s{sRP}, 0\ns_mov_b32 s{sRF}, 0")
    P(f"s_lshl_b32 s88, s{sRP}, 7")
    for q in range(1, 9):
        P(f"s_add_u32 s{88+q}, s{87+q}, 128\ns_cmp_eq_u32 s{88+q}, 1152\ns_cselect_b32 s{88+q}, 0, s{88+q}")
    xl = []
    for q in range(9):
        for hh in range(2):
            xl.append(f"buffer_load_dwordx4 {vq(XR + (q*2+hh)*4)}, v{6+hh}, {srd(sX)}, s{88+q} offen")
    for l in xl[:cfg.nx1]: P(l, "x")
    mksrd(sWS, 24, WS_BYTES)
    P(f"""s_lshl_b32 s85, s{sW}, 2
v_add_u32 v10, s85, v{vG}
v_and_b32 v11, 7, v10
v_lshrrev_b32 v12, 3, v10
v_lshl_add_u32 v11, v11, 1, v12
v_add_u32 v11, s84, v11
v_subrev_u32 v11, 16, v11
v_mul_u32_u24 v11, 1152, v11
s_cmp_eq_u32 s{sG1}, 0
s_cselect_b32 s85, {OOB}, 0
s_cselect_b32 s86, 0, -1
v_and_b32 v11, s86, v11
v_or_b32 v11, s85, v11
v_mov_b32 v13, {OOB}
s_lshl_b32 s85, s{sRP}, 3
v_add_u32 v12, s85, v{vI}""")
    for q in range(5):
        P(f"""v_add_u32 v{84+q}, {16*q}, v12
v_subrev_u32 v89, 72, v{84+q}
v_min_u32 v{84+q}, v{84+q}, v89
v_lshl_add_u32 v{84+q}, v{84+q}, 4, v11""")
    P(f"v_cmp_gt_u32 vcc, 8, v{vI}\nv_cndmask_b32 v88, v13, v88, vcc")
    hl = [f"buffer_load_dwordx4 {vq(XH + 4*q)}, v{84+q}, {srd(sX)}, 0 offen" for q in range(5)]
    P(f"""v_bfe_u32 v14, v{vL}, 2, 2
v_and_b32 v15, 3, v{vL}
s_lshl_b32 s84, s{sW}, 12
s_add_u32 s84, s84, {R0SCR}
s_cmp_lt_u32 s77, 72
s_cbranch_scc0 L_r1_wo
v_lshrrev_b32 v16, 1, v14
v_lshlrev_b32 v16, 10, v16
v_and_b32 v17, 1, v14
v_mul_u32_u24 v17, 432, v17
v_add3_u32 v16, v16, v17, s84
v_mul_u32_u24 v17, 36, v{vG}
v_and_b32 v18, 1, v{vG}
v_lshl_add_u32 v17, v18, 2, v17
v_lshl_add_u32 v17, v15, 3, v17
v_add_u32 v32, v16, v17
v_add_u32 v34, 144, v32
v_add_u32 v36, 288, v32
v_min_u32 v17, 2, v15
v_mul_u32_u24 v17, 144, v17
v_mul_u32_u24 v18, 72, v18
v_add3_u32 v38, v16, v17, v18
v_add_u32 v38, 32, v38
s_mov_b32 s85, 2048
s_lshr_b32 s86, s77, 2
s_mul_i32 s87, s{sJ1}, 72
s_add_u32 s86, s86, s87
s_mul_i32 s86, s86, 3584
s_add_u32 s86, s86, {WQP}
s_and_b32 s87, s77, 3
v_mul_u32_u24 v16, {18*3584}, v{vG}
v_lshl_add_u32 v16, v{vI}, 4, v16
s_lshl_b32 s79, s87, 8
s_add_u32 s79, s79, s86
v_add_u32 v40, s79, v16
v_add_u32 v41, 1024, v40
v_add_u32 v42, 2048, v40
v_lshrrev_b32 v16, 1, v15
v_lshl_add_u32 v16, v{vG}, 1, v16
v_mul_u32_u24 v16, {18*3584}, v16
v_and_b32 v17, 1, v15
v_lshl_add_u32 v17, v14, 1, v17
v_lshl_add_u32 v16, v17, 4, v16
s_lshl_b32 s79, s87, 7
s_add_u32 s79, s79, s86
s_add_u32 s79, s79, 3072
v_add_u32 v16, s79, v16
v_cmp_gt_u32 vcc, 32, v{vL}
v_cndmask_b32 v16, v13, v16, vcc
v_cmp_gt_u32 vcc, 12, v{vI}
v_cndmask_b32 v43, v13, v16, vcc
s_branch L_r1_join
L_r1_wo:
v_mul_u32_u24 v16, 144, v14
v_add_u32 v16, s84, v16
v_lshrrev_b32 v17, 1, v{vG}
v_lshlrev_b32 v17, 6, v17
v_and_b32 v18, 1, v{vG}
v_lshl_add_u32 v17, v18, 3, v17
v_lshl_add_u32 v17, v15, 4, v17
v_add_u32 v32, v16, v17
v_and_b32 v17, 1, v15
v_lshl_add_u32 v34, v17, 3, v16
v_add_u32 v34, 128, v34
v_add_u32 v36, 2048, v32
v_add_u32 v38, 2048, v34
s_mov_b32 s85, 1024
v_lshlrev_b32 v16, 10, v{vG}
v_lshl_add_u32 v16, v{vI}, 4, v16
v_cmp_gt_u32 vcc, 8, v{vL}
v_cndmask_b32 v17, v13, v{vL16}, vcc
s_sub_u32 s79, s77, 72""")
    for G in range(2):
        if G: P("s_add_u32 s79, s79, 36")
        P(f"""s_lshr_b32 s86, s79, 2
s_mul_i32 s87, s{sJ1}, 18
s_add_u32 s86, s86, s87
s_mul_i32 s86, s86, 4608
s_add_u32 s86, s86, {WOP}
s_cmp_lt_u32 s77, 108
s_cselect_b32 s86, s86, {OOB}
s_and_b32 s87, s79, 3
s_lshl_b32 s76, s87, 8
s_add_u32 s76, s76, s86
v_add_u32 v{40+2*G}, s76, v16
s_lshl_b32 s76, s87, 7
s_add_u32 s76, s76, s86
s_add_u32 s76, s76, 4096
v_add_u32 v{41+2*G}, s76, v17""")
    P("L_r1_join:\ns_nop 1")
    for t in range(4): P(f"v_add_u32 v{33+2*t}, s85, v{32+2*t}")
    mksrd(sW1, 12, 576*9216); mksrd(sW2, 16, 4608*1152); mksrd(sB1, 14, 9216); mksrd(sB2, 18, 1152); mksrd(sOUT, 20, 2048*1152)
    if cfg.stamps: P("@waitlg_all\ns_mov_b32 s4, s26"); nstamp[0] = 1; names.append("start")
    P("s_mov_b32 s99, 0x3f803f80\ns_mov_b32 s98, 0xffff0000")
    UP = {(1, 0): (32, 33, 34), (1, 1): (35, 36, 37), (2, 0): (24, 25, 34), (2, 1): (26, 27, 37)}
    for z in range(2):
        a1, d1, st = UP[(1, z)]; a2, d2, _ = UP[(2, z)]
        P(f"""s_add_u32 s84, s77, {128*z}
s_mul_i32 s85, s84, 7282
s_lshr_b32 s85, s85, 16
s_mul_i32 s86, s85, 9
s_sub_u32 s86, s84, s86
s_lshl_b32 s76, s86, 7
s_mul_i32 s87, s85, {32*9216}
s_add_u32 s87, s87, s76
s_mul_i32 s75, s{sJ1}, 1152
s_add_u32 s{a1}, s87, s75
s_mul_i32 s87, s85, {32*1152}
s_add_u32 s87, s87, s76
s_mul_i32 s75, s{sJ1}, {576*1152}
s_add_u32 s{a2}, s87, s75
s_lshr_b32 s79, s85, 2
s_lshl_b32 s79, s79, 1
s_and_b32 s75, s85, 1
s_add_u32 s79, s79, s75
s_add_u32 s75, s79, 10
s_bitcmp1_b32 s85, 1
s_cselect_b32 s79, s75, s79
s_lshr_b32 s87, s86, 1
s_mul_i32 s87, s87, 162
s_cmp_eq_u32 s86, 8
s_cselect_b32 s87, 4, s87
s_cselect_b32 s{st}, 162, 1
s_lshl_b32 s{st}, s{st}, 10
s_mul_i32 s76, s{sJ1}, 648
s_add_u32 s87, s87, s76
s_add_u32 s76, s87, 90
s_bitcmp1_b32 s86, 0
s_cselect_b32 s87, s76, s87
s_cselect_b32 s76, 4, 5
s_mul_i32 s75, s85, s76
s_add_u32 s75, s75, s87
s_lshl_b32 s75, s75, 10
s_add_u32 s{d1}, s75, {W1R}
s_mul_i32 s75, s79, s76
s_add_u32 s75, s75, s87
s_lshl_b32 s75, s75, 10
s_add_u32 s{d2}, s75, {W2R}""")
        if z:
            P("s_cmp_lt_u32 s84, 162")
            for r in (a1, d1, a2, d2): P(f"s_cselect_b32 s{r}, s{r}, {OOB}")
    P(f"""v_mul_u32_u24 v92, 9216, v8
v_lshl_add_u32 v92, v9, 4, v92
v_mul_u32_u24 v93, 1152, v8
v_lshl_add_u32 v93, v9, 4, v93
v_lshl_add_u32 v94, v{vG}, 3, v14
v_lshlrev_b32 v94, 7, v94
v_lshl_add_u32 v94, v15, 4, v94
s_lshl_b32 s84, s{sW}, 13
v_add_u32 v94, s84, v94""")
    def unit_dma(mat, z, scr):
        a = UP[(mat, z)][0]; st = 9216 if mat == 1 else 1152
        L = [f"s_lshl_b32 s84, s{sW}, 13\ns_add_u32 s84, s84, {scr + 4096*z}\ns_mov_b32 m0, s84"]
        for q in range(4):
            if q: L.append(f"s_add_u32 s{a}, s{a}, {8*st - 1024}")
            L.append((f"buffer_load_dwordx4 v{91+mat}, {srd(sW1 if mat == 1 else sW2)}, s{a} offen offset:{1024*q} lds", "wr"))
        return L
    def unit_tr(z, scr, vt):
        return [f"ds_read_b64_tr_b16 {vq(vt+4*t+2*hi,2)}, v94 offset:{scr + 4096*z + 64*(t>>1) + 8*(t&1) + 512*hi}" for t in range(4) for hi in range(2)]
    def unit_st(mat, z, vt):
        _, d, st = UP[(mat, z)]; L = []
        for t in range(4):
            if t: L.append(f"s_add_u32 s{d}, s{d}, s{st}")
            L.append((f"buffer_store_dwordx4 {vq(vt+4*t)}, v{vL16}, {srd(sWS)}, s{d} offen sc1", "wrs"))
        return L
    P("@waitvm r0")
    stamp("r0 landed")
    for t in range(4):
        P(f"ds_read_b64_tr_b16 {vq(16+4*t,2)}, v{32+2*t}")
        P(f"ds_read_b64_tr_b16 {vq(18+4*t,2)}, v{33+2*t}")
    for t in range(4):
        P(f"buffer_store_dwordx4 {vq(16+4*t)}, v{40+t}, {srd(sWS)}, 0 offen sc1", "r0s")
    for l in xl[cfg.nx1:] + hl: P(l, "x")
    P(f"@waitlg_all\ns_add_u32 s{sTAG}, s{sTAG}, 0x9E3779B9")
    P(f"""s_lshl_b32 s84, s{sJ1}, 12
s_add_u32 s84, s84, {F0S}
s_lshl_b32 s85, s{sG1}, 2
s_add_u32 s85, s85, s84
v_mov_b32 v44, s85
v_cmp_eq_u32 vcc, 0, v0
v_cndmask_b32 v44, v13, v44, vcc
v_and_b32 v45, 31, v{vL}
v_lshl_add_u32 v45, v45, 2, s84""")
    def stats(groups, acc):
        order = sorted((r, gi, k) for gi, regs in enumerate(groups) for k, r in enumerate(regs))
        L = []
        for r, gi, k in order:
            a = acc + 4*gi + 2*(k & 1)
            c0 = "0" if k < 2 else f"v{a}"; c1 = "0" if k < 2 else f"v{a+1}"
            L.append(f"v_dot2_f32_bf16 v{a}, v{r}, s99, {c0}\nv_dot2_f32_bf16 v{a+1}, v{r}, v{r}, {c1}")
        for gi in range(len(groups)):
            a = acc + 4*gi
            L.append(f"v_add_f32 v{a}, v{a}, v{a+2}\nv_add_f32 v{a+1}, v{a+1}, v{a+3}")
        return L
    def finish_stats(A):
        for t in [f"v_mul_f32 v@0, {hexf(1/576)}, v@0", f"v_mul_f32 v@2, v@0, v@0", f"v_mul_f32 v@1, {hexf(1/576)}, v@1", "v_sub_f32 v@1, v@1, v@2",
                  "v_max_f32 v@1, 0, v@1", f"v_add_f32 v@1, {hexf(1e-5)}, v@1", "v_rsq_f32 v@1, v@1", "v_mul_f32 v@2, v@0, -v@1",
                  "v_mov_b32 v@0, v@1", "v_mov_b32 v@3, v@2"]:
            for a in A: P(t.replace("@0", str(a)).replace("@1", str(a+1)).replace("@2", str(a+2)).replace("@3", str(a+3)))
    def normalize(q, a, t):
        L = []
        for d in range(4):
            L.append(f"v_lshlrev_b32 v{t+2*d}, 16, v{q+d}")
            L.append(f"v_and_b32 v{t+2*d+1}, s98, v{q+d}")
        for d in range(4): L.append(f"v_pk_fma_f32 {vq(t+2*d,2)}, {vq(t+2*d,2)}, {vq(a,2)}, {vq(a+2,2)}")
        for d in range(4): L.append(f"v_cvt_pk_bf16_f32 v{q+d}, v{t+2*d}, v{t+2*d+1}")
        return L
    ST = 144; NT = 112
    st = stats([[XR + (q*2+hh)*4 + d for q in range(9) for d in range(4)] for hh in range(2)] + [[XH + k for k in range(20)]], ST)
    n1 = cfg.nx1*4
    P.extend(st[:n1])
    MS, MP, ME, MO = 96, 100, 104, 108
    P(f"""v_mov_b32 v66, {hexf(-1e30)}
v_lshlrev_b32 v64, 2, v{vG}
v_sub_u32 v64, v64, v{vI}
s_cmp_eq_u32 s{sG1}, 0
s_cselect_b32 s84, 100, 0
v_cmp_gt_u32 s[80:81], 2, v{vG}""")
    for r in range(4):
        P(f"""v_add_u32 v65, {r+7}, v64
v_cmp_gt_u32 vcc, 8, v65
v_add_u32 v65, {r}, v64
v_subrev_u32 v67, s84, v65
v_cndmask_b32 v{MS+r}, v66, 0, vcc
v_cmp_lt_i32 vcc, 8, v65
v_cmp_lt_i32 s[82:83], 8, v67
v_cmp_lt_i32 s[86:87], 0, v67
v_cndmask_b32 v{MP+r}, v66, 0, vcc
s_and_b64 s[86:87], s[86:87], s[80:81]
v_cndmask_b32 v{MO+r}, v66, 0, s[82:83]
v_cndmask_b32 v{ME+r}, v66, 0, s[86:87]""")
    P("@waitvm r0s\ns_barrier")
    set_flag(44)
    stamp("F0 set")
    for z in range(2): P.extend(unit_dma(1, z, W1SCR))
    P(f"s_mul_i32 s84, s{sJF}, 1152\nv_lshlrev_b32 v5, 7, v{vI}")
    P(f"buffer_load_dword v90, v5, {srd(sB1)}, s84 offen", "wr")
    P(f"buffer_load_dword v91, v5, {srd(sB2)}, 0 offen", "wr")
    P.extend(st[n1:])
    for mod in ["quad_perm:[1,0,3,2]", "quad_perm:[2,3,0,1]", "row_half_mirror"]:
        for gi in range(3):
            for k in range(2):
                a = ST + 4*gi + k
                P(f"v_add_f32_dpp v{a}, v{a}, v{a} {mod} row_mask:0xf bank_mask:0xf")
    for k in range(2): P(f"v_add_f32_dpp v{ST+8+k}, v{ST+8+k}, v{ST+8+k} row_mirror row_mask:0xf bank_mask:0xf")
    finish_stats([ST, ST+4, ST+8])
    stamp("LN1 stats")
    P(f"""v_lshrrev_b32 v156, 2, v9
v_mul_u32_u24 v156, 5120, v156
v_and_b32 v157, 3, v9
v_lshl_add_u32 v156, v157, 8, v156
v_xor_b32 v157, v8, v9
v_lshl_add_u32 v156, v157, 4, v156
s_lshl_b32 s84, s{sW}, 10
s_add_u32 s84, s84, {XB}
v_add_u32 v156, s84, v156
v_add_u32 v157, {10240*5}, v156
v_lshrrev_b32 v158, 2, v{vI}
v_mul_u32_u24 v158, 5120, v158
v_lshl_add_u32 v158, v15, 8, v158
v_xor_b32 v159, v10, v9
v_lshl_add_u32 v158, v159, 4, v158
v_add_u32 v158, {XB + 4096}, v158
v_add_u32 v159, {20480*3}, v158""")
    ntc = [0]
    def ln1_batch(b):
        L = []
        for q in range(2*b, min(2*b+2, 9)):
            for hh in range(2):
                r = XR + (q*2+hh)*4
                L += normalize(r, ST + 4*hh, NT + 8*(ntc[0] & 1)); ntc[0] += 1
                L.append(f"ds_write_b128 v{156 if q < 5 else 157}, {vq(r)} offset:{10240*(q % 5) + 128*hh}")
        L += normalize(XH + 4*b, ST + 8, NT + 8*(ntc[0] & 1)); ntc[0] += 1
        wr = f"ds_write_b128 v{158 if b < 3 else 159}, {vq(XH+4*b)} offset:{20480*(b % 3)}"
        if b == 4: wr = "s_mov_b32 exec_lo, 0x00ff00ff\ns_mov_b32 exec_hi, 0x00ff00ff\n" + wr + "\ns_mov_b64 exec, -1"
        L.append(wr)
        return L
    P.extend(ln1_batch(0))
    P(f"""s_lshl_b32 s74, s{sJ1}, 2
s_add_u32 s74, s74, s{sW}
s_mul_i32 s74, s74, {18*3584}
s_add_u32 s74, s74, {WQP}
s_add_u32 s75, s74, {18*3584}
s_mul_i32 s78, s{sRP}, {2*3584}
s_add_u32 s78, s78, s74
v_lshlrev_b32 v7, 7, v{vG}
v_lshl_add_u32 v7, v{vI}, 4, v7
v_cmp_gt_u32 vcc, 6, v{vI}
v_cndmask_b32 v7, v13, v7, vcc
v_xor_b32 v8, v{vI}, v{vG}
v_lshlrev_b32 v8, 4, v8
v_lshl_add_u32 v8, v{vG}, 8, v8
v_add_u32 v8, {XB}, v8
v_xor_b32 v9, 64, v8
v_add_u32 v10, 46080, v8
v_add_u32 v11, 46080, v9""")
    stamp("LN1 b0")
    poll(45, 5)
    stamp("F0 seen")
    QA, KA, EA, VA = 16, 32, 52, 72
    WR = 64
    D = cfg.p1depth
    def wq_loads(s):
        b = WR + (s % D)*16
        L = [(f"buffer_load_dwordx4 {aq(b+4*t)}, v{vL16}, {srd(sWS)}, s78 offen offset:{1024*t}{cfg.wsc}", "wq") for t in range(3)]
        L.append((f"buffer_load_dwordx4 {aq(b+12)}, v7, {srd(sWS)}, s78 offen offset:3072{cfg.wsc}", "wq"))
        if s < 17: L.append(wrap(78, 3584, 75, 74))
        return L
    def x_reads(s):
        b = (s % 2)*20
        reg = (8 if s % 2 == 0 else 9) + (2 if s >= 9 else 0)
        return [f"ds_read_b128 {aq(b+4*m)}, v{reg} offset:{((s % 9)*5 + m)*1024}" for m in range(5)]
    for s in range(D-1): P.extend(wq_loads(s))
    P.extend(ln1_batch(1))
    P("@waitlg_all\ns_barrier")
    P.extend(x_reads(0))
    stamp("GEMM1 start")
    flex = []
    T0 = 128
    for l in ln1_batch(2): flex.append((0, l))
    flex.append((0, "@waitvm wr"))
    for z in range(2):
        for l in unit_tr(z, W1SCR, T0): flex.append((0, l))
        for l in [f"@need {vq(T0,16)}"] + unit_st(1, z, T0): flex.append((0, l))
    flex.append((0, "@mark0"))
    for l in ln1_batch(3) + ln1_batch(4): flex.append((0, l))
    flex.append((0, "@mark1"))
    XRES = 232
    for l in f"""s_lshl_b32 s84, s{sG1}, 6
s_and_b32 s85, s{sW}, 1
s_lshl_b32 s85, s85, 5
s_add_u32 s85, s85, s84
s_lshr_b32 s86, s{sW}, 1
s_add_u32 s85, s85, s86
s_mul_i32 s85, s85, 1152
s_mul_i32 s86, s{sJ1}, 144
s_add_u32 s85, s85, s86
v_mul_u32_u24 v5, 2304, v{vI}
v_lshl_add_u32 v6, v{vG}, 3, v5
v_lshl_add_u32 v5, v{vG}, 4, v5""".split("\n"): flex.append((19*12, l))
    flex.append((19*12, (f"buffer_load_dwordx4 {vq(XRES)}, v5, {srd(sX)}, s85 offen", "xr")))
    flex.append((19*12, (f"buffer_load_dwordx4 {vq(XRES+4)}, v5, {srd(sX)}, s85 offen offset:64", "xr")))
    flex.append((19*12, (f"buffer_load_dwordx2 {vq(XRES+8,2)}, v6, {srd(sX)}, s85 offen offset:128", "xr")))
    mains = []; fixed = {}
    for s in range(18):
        wb = WR + (s % D)*16; xb = (s % 2)*20
        base = len(mains)
        for m in range(5):
            x = aq(xb + 4*m)
            def acc(a): return (vq(a), "0" if s == 0 else vq(a))
            d, c = acc(KA + 4*m); mains.append(f"{MF} {d}, {aq(wb+4)}, {x}, {c}")
            d, c = acc(VA + 4*m); mains.append(f"{MF} {d}, {x}, {aq(wb+8)}, {c}")
            d, c = acc(EA + 4*m); mains.append(f"{MF} {d}, {aq(wb+12)}, {x}, {c}")
            if m < 4:
                d, c = acc(QA + 4*m); mains.append(f"{MF} {d}, {aq(wb)}, {x}, {c}")
        t_ = stamp_txt(f"@q{s}") if s else None
        if t_: fixed.setdefault(base - 1, []).append(t_)
        if s in (7, 11): fixed.setdefault(base, []).extend([f"@flexdone{0 if s == 7 else 1}", "@waitlg_all", "s_barrier"])
        if s + 1 < 18:
            for k, l in enumerate(x_reads(s+1)): fixed.setdefault(base + 1 + 2*k, []).append(l)
            fixed.setdefault(base + 18, []).append(f"@need {aq(WR + ((s+1) % D)*16, 16)} {aq(((s+1) % 2)*20, 20)}")
        if s + D - 1 < 18:
            for k, l in enumerate(wq_loads(s + D - 1)): fixed.setdefault(base + 2 + 4*k if k < 4 else base + 16, []).append(l)
    fixed.setdefault(19*7 - 3, []).append(f"""s_mul_i32 s88, s{sJ1}, 82944
s_add_u32 s88, s88, {WOP}
s_add_u32 s89, s88, 82944
s_lshl_b32 s76, s{sW}, 10
s_mul_i32 s79, s{sRP}, 9216
s_add_u32 s79, s79, s88
s_sub_u32 s90, s79, 1024
s_sub_u32 s91, s89, 1024
s_cmp_eq_u32 s{sRP}, 0
s_cselect_b32 s90, s91, s90
s_add_u32 s79, s79, s76""")
    nwo = 21
    for n in range(nwo):
        at = 19*7 + 4 + (n * (19*cfg.wospan)) // nwo
        if n == 20: pre = f"s_mov_b32 m0, {80*1024}\ns_mov_b32 s79, s90"
        else: pre = "s_mov_b32 m0, s76\ns_add_u32 s76, s76, 4096"
        fixed.setdefault(at, []).append(pre)
        fixed.setdefault(at + 1, []).append((f"buffer_load_dwordx4 v{vL16}, {srd(sWS)}, s79 offen sc1 lds", "wo"))
        if n < 19: fixed.setdefault(at + 2, []).append("s_add_u32 s79, s79, 4096\ns_sub_u32 s91, s79, 82944\ns_cmp_ge_u32 s79, s89\ns_cselect_b32 s79, s91, s79")
    sched(P, mains, fixed, flex)
    stamp("GEMM1 done")
    P("@waitvm wo\ns_barrier")
    for z in range(2): P.extend(unit_dma(2, z, W2SCR))
    QO, KO, VO, XO = 112, 128, 148, 160
    P(f"""s_lshl_b32 s84, s{sW}, 10
s_add_u32 s84, s84, {VXS}
v_lshl_add_u32 v6, v{vI}, 1, s84
v_add_u32 v7, 512, v6
v_cmp_eq_u32 vcc, 1, v{vG}
v_cndmask_b32 v6, v7, v6, vcc
v_lshl_add_u32 v7, v{vL}, 2, s84
v_min_u32 v8, 2, v{vI}
v_mul_u32_u24 v8, 160, v8
v_lshl_add_u32 v8, v{vG}, 3, v8
v_add_u32 v8, s84, v8""")
    P(f"v_mov_b32 v5, s99\ns_mov_b32 exec_hi, 0xffff\nds_write_b32 v7, v5 offset:320\ns_mov_b32 exec_hi, -1")
    for m in range(5):
        r = QO + 4*m + 2 if m < 4 else 172
        P(f"v_cvt_pk_bf16_f32 v{r}, v{EA+4*m}, v{EA+4*m+1}")
        P(f"ds_write_b16 v6, v{r} offset:{32*m}\nds_write_b16_d16_hi v6, v{r} offset:{160+32*m}")
    SA = 176
    prev = [4, 0, 4, 2]; pmask = [ME, MP, MO, MP]
    def kop(m): P(f"v_cvt_pk_bf16_f32 v{KO+4*m}, v{KA+4*m}, v{KA+4*m+1}\nv_cvt_pk_bf16_f32 v{KO+4*m+1}, v{KA+4*m+2}, v{KA+4*m+3}\nv_cvt_pk_bf16_f32 v{KO+4*m+2}, v{EA+4*m+2}, v{EA+4*m+3}\nv_mov_b32 v{KO+4*m+3}, 0")
    def qop(m): P(f"v_cvt_pk_bf16_f32 v{QO+4*m}, v{QA+4*m}, v{QA+4*m+1}\nv_cvt_pk_bf16_f32 v{QO+4*m+1}, v{QA+4*m+2}, v{QA+4*m+3}\nv_mov_b32 v{QO+4*m+3}, 0")
    kop(4)
    for m in range(4):
        qop(m); kop(m)
        if m: P(f"{MF} {vq(SA+8*(m-1)+4)}, {vq(KO+4*(m-1))}, {vq(QO+4*(m-1))}, {vq(MS)}")
        P(f"{MF} {vq(SA+8*m)}, {vq(KO+4*prev[m])}, {vq(QO+4*m)}, {vq(pmask[m])}")
    vorder = [4, 0, 1, 4, 2, 3]
    for k, m in enumerate(vorder):
        P(f"v_cvt_pk_bf16_f32 v{VO+2*k}, v{VA+4*m}, v{VA+4*m+1}\nv_cvt_pk_bf16_f32 v{VO+2*k+1}, v{VA+4*m+2}, v{VA+4*m+3}")
        if k == 0: P(f"{MF} {vq(SA+28)}, {vq(KO+12)}, {vq(QO+12)}, {vq(MS)}")
    P("@waitlg_all")
    for k, m in enumerate(vorder): P(f"ds_read_b64 {vq(XO+2*k,2)}, v8 offset:{32*m}")
    MX = 208
    c = (18 ** -0.5) * 1.4426950408889634
    P(f"s_mov_b32 s84, {hexf(c)}")
    for m in range(4):
        s = SA + 8*m
        P(f"v_max3_f32 v{MX+m}, v{s}, v{s+1}, v{s+2}\nv_max3_f32 v{MX+4+m}, v{s+3}, v{s+4}, v{s+5}")
    for m in range(4):
        s = SA + 8*m
        P(f"v_max3_f32 v{MX+m}, v{MX+m}, v{s+6}, v{s+7}")
    for m in range(4): P(f"v_max_f32 v{MX+m}, v{MX+m}, v{MX+4+m}")
    for sw in ["v_permlane16_swap_b32", "v_permlane32_swap_b32"]:
        for m in range(4): P(f"v_mov_b32 v{MX+4+m}, v{MX+m}")
        for m in range(4): P(f"{sw} v{MX+m}, v{MX+4+m}")
        for m in range(4): P(f"v_max_f32 v{MX+m}, v{MX+m}, v{MX+4+m}")
    for m in range(4): P(f"v_mul_f32 v{MX+m}, s84, v{MX+m}")
    PO = 216; OA = 16; OX = 32
    for m in range(4):
        s = SA + 8*m
        for k in range(8): P(f"v_fma_f32 v{s+k}, v{s+k}, s84, -v{MX+m}")
        if m:
            o = [0, 2, 6, 8][m-1]
            P(f"{MF} {vq(OX+4*(m-1))}, {vq(XO+o)}, {vq(PO+4*(m-1))}, 0")
            P(f"{MF} {vq(OA+4*(m-1))}, {vq(VO+o)}, {vq(PO+4*(m-1))}, 0")
        for k in range(8): P(f"v_exp_f32 v{s+k}, v{s+k}")
        for k in range(4): P(f"v_cvt_pk_bf16_f32 v{PO+4*m+k}, v{s+2*k}, v{s+2*k+1}")
    P(f"""s_mul_i32 s84, s{sG1}, 73728
s_add_u32 s84, s84, {OP}
{MF} {vq(OX+12)}, {vq(XO+8)}, {vq(PO+12)}, 0
{MF} {vq(OA+12)}, {vq(VO+8)}, {vq(PO+12)}, 0
s_lshl_b32 s85, s{sJ1}, 1
s_lshr_b32 s86, s{sW}, 1
s_add_u32 s85, s85, s86
s_lshl_b32 s85, s85, 12
s_and_b32 s86, s{sW}, 1
s_lshl_b32 s86, s86, 9
s_add_u32 s85, s85, s86
s_add_u32 s85, s85, s84
s_lshr_b32 s87, s{sJ1}, 2
s_add_u32 s87, s87, 16
s_lshl_b32 s87, s87, 12
s_and_b32 s86, s{sJ1}, 3
s_lshl_b32 s86, s86, 8
s_add_u32 s87, s87, s86
s_lshl_b32 s86, s{sW}, 2
s_add_u32 s87, s87, s86
s_add_u32 s87, s87, s84
v_and_b32 v6, 1, v{vG}
v_lshlrev_b32 v6, 10, v6
v_lshrrev_b32 v7, 1, v{vG}
v_lshl_add_u32 v6, v7, 8, v6
v_lshl_add_u32 v6, v{vI}, 4, v6
v_lshlrev_b32 v7, 10, v{vG}
v_lshl_add_u32 v7, v{vI}, 4, v7""")
    for m in range(4): P(f"v_rcp_f32 v{MX+m}, v{OX+4*m+2}")
    OP0 = 112
    for p in range(2):
        for m in (2*p, 2*p+1):
            for r in range(4): P(f"v_mul_f32 v{OA+4*m+r}, v{OA+4*m+r}, v{MX+m}")
            P(f"v_cvt_pk_bf16_f32 v{OP0+2*m}, v{OA+4*m}, v{OA+4*m+1}\nv_cvt_pk_bf16_f32 v{OP0+2*m+1}, v{OA+4*m+2}, v{OA+4*m+3}")
        for m in (2*p, 2*p+1):
            for r in range(2): P(f"v_mul_f32 v{OX+4*m+r}, v{OX+4*m+r}, v{MX+m}")
        b = OP0 + 4*p
        P(f"v_permlane16_swap_b32 v{b}, v{b+2}\nv_permlane16_swap_b32 v{b+1}, v{b+3}")
        P(f"buffer_store_dwordx4 {vq(OP0+4*p)}, v6, {srd(sWS)}, s85 offen offset:{2048*p} sc1", "o")
        for m in (2*p, 2*p+1): P(f"v_cvt_pk_bf16_f32 v{OP0+8+m}, v{OX+4*m}, v{OX+4*m+1}")
    P(f"v_permlane16_swap_b32 v{OP0+8}, v{OP0+9}\nv_permlane16_swap_b32 v{OP0+10}, v{OP0+11}")
    P(f"v_permlane32_swap_b32 v{OP0+8}, v{OP0+10}")
    P(f"buffer_store_dword v{OP0+8}, v7, {srd(sWS)}, s87 offen sc1", "o")
    stamp("attn done")
    def two_flags(vd, grp_base, set_base):
        return f"""s_lshl_b32 s86, s{sG1}, 12
s_lshl_b32 s87, s{sJ1}, 4
s_add_u32 s86, s86, s87
s_add_u32 s86, s86, {grp_base}
s_lshl_b32 s87, s{sJ1}, 12
s_lshl_b32 s76, s{sG1}, 2
s_add_u32 s87, s87, s76
s_add_u32 s87, s87, {set_base}
v_mov_b32 v{vd}, s87
v_mov_b32 v5, s86
v_cmp_eq_u32 vcc, 0, v0
v_cndmask_b32 v{vd}, v{vd}, v5, vcc
v_cmp_gt_u32 vcc, 2, v0
v_cndmask_b32 v{vd}, v13, v{vd}, vcc""".split("\n")
    def grp_poll_addr(vd, sg, base):
        return f"""s_lshl_b32 s86, s{sg}, 12
s_add_u32 s86, s86, {base}
v_and_b32 v{vd}, 7, v{vL}
v_lshl_add_u32 v{vd}, v{vd}, 4, s86""".split("\n")
    def set_poll_addr(vd, sj, base):
        return f"""s_lshl_b32 s86, s{sj}, 12
s_add_u32 s86, s86, {base}
v_and_b32 v{vd}, 31, v{vL}
v_lshl_add_u32 v{vd}, v{vd}, 2, s86""".split("\n")
    def unpack(dst, src, n):
        return sum([[f"v_lshlrev_b32 v{dst+2*k}, 16, v{src+k}", f"v_and_b32 v{dst+2*k+1}, s98, v{src+k}"] for k in range(n)], [])
    HA = 16
    P.extend(two_flags(14, F1G, F1S)); P.extend(grp_poll_addr(15, sG1, F1G))
    P.extend(unpack(HA, XRES, 10))
    def wo_reg(s, t):
        n = s*5 + t
        return aq(4*n) if n < 64 else vq(152 + 4*(n-64))
    P(f"""v_add_u32 v10, 41472, v{vL16}
v_and_b32 v11, 7, v{vI}
v_lshlrev_b32 v11, 4, v11
v_lshl_add_u32 v11, v{vG}, 7, v11
v_add_u32 v12, 41472, v11""")
    wor = []
    for s in range(18):
        for t in range(5):
            reg = (vL16 if s < 9 else 10) if t < 4 else (11 if s < 9 else 12)
            wor.append(f"ds_read_b128 {wo_reg(s,t)}, v{reg} offset:{WOB + (s % 9)*4608 + 1024*t}")
    P.extend(wor[:cfg.nwo1])
    P("@waitvm o\ns_barrier")
    set_flag(14)
    stamp("F1 set")
    P.add(poll_pre(15, 46))
    P.extend(wor[cfg.nwo1:])
    P(f"""s_mul_i32 s84, s{sG1}, 73728
s_lshl_b32 s85, s{sW}, 10
s_add_u32 s84, s84, s85
s_add_u32 s74, s84, {OP}
s_add_u32 s75, s74, 73728
s_lshl_b32 s78, s{sRP}, 13
s_add_u32 s78, s78, s74
s_add_u32 s84, s84, {HP}
s_mul_i32 s85, s{sJ1}, 9
v_add_u32 v6, s85, v{vG}
v_lshrrev_b32 v7, 2, v6
v_lshlrev_b32 v7, 12, v7
v_and_b32 v6, 3, v6
v_lshl_add_u32 v6, v6, 8, v7
v_lshl_add_u32 v6, v{vI}, 4, v6
v_add_u32 v6, s84, v6
s_add_u32 s85, s85, 8
s_lshr_b32 s86, s85, 2
s_lshl_b32 s86, s86, 12
s_and_b32 s85, s85, 3
s_lshl_b32 s85, s85, 8
s_add_u32 s85, s85, s86
s_add_u32 s85, s85, s84
v_lshlrev_b32 v7, 4, v{vI}
v_lshl_add_u32 v7, v{vG}, 3, v7
v_add_u32 v7, s85, v7
v_cmp_gt_u32 vcc, 2, v{vG}
v_cndmask_b32 v7, v13, v7, vcc
v_add_u32 v8, 4096, v6
v_add_u32 v47, {W2SCR}, v94""")
    P(poll_check(15, 46))
    stamp("F1 seen")
    OF = 80
    for s in range(18):
        P(f"buffer_load_dwordx4 {vq(OF+4*s)}, v{vL16}, {srd(sWS)}, s78 offen sc1", "of")
        if s < 17: P(wrap(78, 4096, 75, 74))
    flex = []
    for l in set_poll_addr(15, sJF, F1S): flex.append((0, l))
    flex.append((0, poll_pre(15, 9)))
    for z in range(2):
        for l in unit_tr(z, 0, 48 + 16*z): flex.append((0, l.replace("v94", "v47")))
    for z in range(2):
        for l in [f"@need {vq(48+16*z,16)}"] + unit_st(2, z, 48 + 16*z): flex.append((0, l))
    for l in two_flags(14, F2G, F2S) + grp_poll_addr(46, sGF, F2G): flex.append((0, l))
    for l in f"""s_lshl_b32 s88, s{sJF}, 2
s_add_u32 s88, s88, s{sW}
s_mul_i32 s88, s88, {162*1024}
s_add_u32 s89, s88, {W2R}
s_add_u32 s88, s88, {W1R}
s_mul_i32 s92, s{sRF}, 5120
s_add_u32 s92, s92, s88
s_mov_b32 s90, s88
s_add_u32 s91, s88, {90*1024}
v_add_u32 v12, 4096, v{vL16}
s_mul_i32 s84, s{sJF}, 1152
s_lshl_b32 s85, s{sW}, 8
s_add_u32 s85, s85, s84
s_lshr_b32 s86, s{sW}, 1
s_lshl_b32 s86, s86, 6
s_and_b32 s87, s{sW}, 1
s_lshl_b32 s87, s87, 3
s_add_u32 s86, s86, s87
s_add_u32 s86, s86, s84
v_lshlrev_b32 v10, 4, v{vG}""".split("\n"): flex.append((0, l))
    mains = [f"{MF} {vq(HA+4*t)}, {wo_reg(s,t)}, {vq(OF+4*s)}, {vq(HA+4*t)}" for s in range(18) for t in range(5)]
    sched(P, mains, {}, flex)
    HQ = 36
    P(f"v_cvt_pk_bf16_f32 v{HQ}, v{HA}, v{HA+1}\nv_cvt_pk_bf16_f32 v{HQ+1}, v{HA+2}, v{HA+3}\nv_cvt_pk_bf16_f32 v{HQ+2}, v{HA+4}, v{HA+5}\nv_cvt_pk_bf16_f32 v{HQ+3}, v{HA+6}, v{HA+7}")
    P(f"buffer_store_dwordx4 {vq(HQ)}, v6, {srd(sWS)}, 0 offen sc1", "h")
    for k in range(4, 8): P(f"v_cvt_pk_bf16_f32 v{HQ+k}, v{HA+2*k}, v{HA+2*k+1}")
    P(f"buffer_store_dwordx4 {vq(HQ+4)}, v8, {srd(sWS)}, 0 offen sc1", "h")
    for k in range(8, 10): P(f"v_cvt_pk_bf16_f32 v{HQ+k}, v{HA+2*k}, v{HA+2*k+1}")
    P(f"buffer_store_dwordx2 {vq(HQ+8,2)}, v7, {srd(sWS)}, 0 offen sc1", "h")
    stamp("proj done")
    NR = 56; AF = 224
    ACA, ACB = 16, 96
    CA, CB = 96, 160
    passes = [("A", 5, ACA, CA), ("B", 4, ACB, CB), ("C1", 5, ACA, None), ("C2", 4, ACB, None)]
    steps = [(pi, p) for pi in range(4) for p in range(18)]
    cons = [(pi, p, t) for pi, p in steps for t in range(passes[pi][1])]
    slot = {f: n % NR for n, f in enumerate(cons)}
    def wload(n):
        pi, p, t = cons[n]; nt = passes[pi][1]; L = []
        if t == 0 and n > 0:
            if pi == 1 and p == 0:
                L.append(f"s_add_u32 s90, s88, {90*1024}\ns_add_u32 s91, s88, {162*1024}\ns_lshl_b32 s92, s{sRF}, 12\ns_add_u32 s92, s92, s90")
            elif pi >= 2 and p in (0, 10):
                o = 0 if pi == 2 else 90*1024
                beg = o + (0 if p == 0 else 10*nt*1024); end = o + (10 if p == 0 else 18)*nt*1024
                L.append(f"s_add_u32 s90, s89, {beg}\ns_add_u32 s91, s89, {end}\ns_mul_i32 s92, s{93 if p == 0 else 94}, {nt*1024}\ns_add_u32 s92, s92, s90")
            else: L.append(wrap(92, nt*1024, 91, 90))
        L.append((f"buffer_load_dwordx4 {aq(4*(n % NR))}, v{vL16 if t < 4 else 12}, {srd(sWS)}, s92 offen offset:{1024*(t % 4)}{cfg.wsc}", "w"))
        return L
    B1P = 232
    P(poll_check(15, 9))
    for p in range(4): P(f"buffer_load_dwordx4 {vq(B1P+4*p)}, v10, {srd(sB1)}, s85 offen offset:{64*p}", "b1")
    P(f"buffer_load_dwordx2 {vq(B1P+16,2)}, v10, {srd(sB1)}, s86 offen offset:1024", "b1")
    for n in range(cfg.npre1): P.extend(wload(n))
    P("@waitvm h\n@waitlg_all\ns_barrier")
    set_flag(14)
    stamp("F2 set")
    for n in range(cfg.npre1, cfg.npre): P.extend(wload(n))
    P.extend(unpack(CA, B1P, 8)); P.extend(unpack(CA+16, B1P+16, 2))
    P(f"""s_mul_i32 s84, s{sGF}, 73728
s_lshl_b32 s85, s{sW}, 10
s_add_u32 s84, s84, s85
s_add_u32 s74, s84, {HP}
s_add_u32 s75, s74, 73728
s_lshl_b32 s77, s{sRF}, 12
s_add_u32 s77, s77, s74
v_add_u32 v6, s85, v{vL16}
v_add_u32 v7, 36864, v6
v_add_u32 v8, 36864, v{vL16}
v_add_u32 v9, {HB}, v{vL16}
v_add_u32 v10, {HB + 36864}, v{vL16}
s_and_b32 s93, s{sGF}, 15
s_lshr_b32 s94, s93, 1
s_mul_i32 s93, s93, 5
s_lshr_b32 s93, s93, 3""")
    if not cfg.rot: P("s_mov_b32 s93, 0\ns_mov_b32 s94, 0")
    P.extend(set_poll_addr(15, sJF, F2S))
    poll(46, 5)
    stamp("F2 seen")
    HR = 160
    for s in range(18):
        P(f"buffer_load_dwordx4 {vq(HR+4*s)}, v{vL16}, {srd(sWS)}, s77 offen sc1", "hf")
        if s < 17: P(wrap(77, 4096, 75, 74))
    ST = 120; NT = 128
    P.extend(stats([[HR + k for k in range(72)]], ST))
    for sw in ["v_permlane16_swap_b32", "v_permlane32_swap_b32"]:
        for k in range(2): P(f"v_mov_b32 v{ST+2+k}, v{ST+k}")
        for k in range(2): P(f"{sw} v{ST+k}, v{ST+2+k}")
        for k in range(2): P(f"v_add_f32 v{ST+k}, v{ST+k}, v{ST+2+k}")
    finish_stats([ST])
    stamp("LN2 stats")
    def ln2(s):
        return normalize(HR + 4*s, ST, NT + 8*(s & 1)) + [f"ds_write_b128 v{6 if s < 9 else 7}, {vq(HR+4*s)} offset:{XN + (s % 9)*4096}"]
    for s in range(3): P.extend(ln2(s))
    P("@waitlg_all\ns_barrier")
    def act_reads(i):
        pi, p = steps[i]
        b = AF + (i % 2)*16
        if pi < 2: reg = vL16 if p < 9 else 8
        else: reg = 9 if p < 9 else 10
        return [f"ds_read_b128 {aq(b+4*m)}, v{reg} offset:{((p % 9)*4 + m)*1024}" for m in range(4)]
    P.extend(act_reads(0))
    stamp("FFN start")
    mains = []; fixed = {}; start = []
    nl = cfg.npre
    bar = {2: "a", 5: "b", 9: "c", 13: "d", 35: "0", 45: "1"}
    for i, (pi, p) in enumerate(steps):
        name, nt, acc, cin = passes[pi]
        base = len(mains); start.append(base)
        b = AF + (i % 2)*16
        t_ = stamp_txt(f"@{name}{p}") if i else None
        if t_: fixed.setdefault(base - 1, []).append(t_)
        if i in bar: fixed.setdefault(base, []).extend([f"@flexdone{bar[i]}", "@waitlg_all", "s_barrier"])
        for t in range(nt):
            w = aq(4*slot[(pi, p, t)])
            for m in range(4):
                d = vq(acc + (t*4 + m)*4)
                c = d if p > 0 else (vq(cin + 4*t) if cin is not None else "0")
                mains.append(f"{MF} {d}, {w}, {aq(b+4*m)}, {c}")
            if nl < len(cons):
                if nl == 162 - 24: fixed.setdefault(base + 4*t + 3, []).append(poll_pre(15, 14))
                if nl == 162: fixed.setdefault(base + 4*t + 1, []).append(poll_check(15, 14))
                L = wload(nl); nl += 1
                fixed.setdefault(base + 4*t + 1, []).extend(L)
        if i + 1 < len(steps):
            for k, l in enumerate(act_reads(i+1)): fixed.setdefault(base + 2*k + (2 if i in bar else 0), []).append(l)
            pj, pp = steps[i+1]
            nxt = " ".join(aq(4*slot[(pj, pp, t)]) for t in range(passes[pj][1]))
            fixed.setdefault(base + 4*nt - 1, []).append(f"@need {nxt} {aq(AF + ((i+1) % 2)*16, 16)}")
    start.append(len(mains))
    S = lambda pi, p: start[pi*18 + p]
    flex = []
    for lo, hi, mk in [(3, 6, "a"), (6, 10, "b"), (10, 14, "c"), (14, 18, "d")]:
        for s in range(lo, hi):
            for l in ln2(s): flex.append((0, l))
        flex.append((0, f"@mark{mk}"))
    for l in unpack(CB, B1P+8, 8): flex.append((0, l))
    for k, (q, mod, sr, add) in enumerate([(f"s_lshl_b32 s84, s{sW}, 1", 10, 93, 0), (f"s_lshl_b32 s84, s{sW}, 1\ns_add_u32 s84, s84, 1", 10, 93, 0),
                                           (f"s_lshr_b32 s84, s{sW}, 1\ns_add_u32 s84, s84, 8", 10, 93, 0),
                                           (f"s_lshl_b32 s84, s{sW}, 1", 8, 94, 10), (f"s_lshl_b32 s84, s{sW}, 1\ns_add_u32 s84, s84, 1", 8, 94, 10)]):
        flex.append((0, q))
        flex.append((0, f"s_sub_u32 s84, s84, s{sr}\ns_cselect_b32 s85, {mod}, 0"))
        flex.append((0, f"s_add_u32 s84, s84, s85\ns_add_u32 s84, s84, {add}"))
        flex.append((0, "s_lshl_b32 s84, s84, 12"))
        if k == 2: flex.append((0, f"s_and_b32 s85, s{sW}, 1\ns_lshl_b32 s85, s85, 3\ns_add_u32 s84, s84, s85"))
        flex.append((0, f"v_add_u32 v{192+k}, s84, v9"))
    TQ = 176
    tq = [0]
    def epi1(acc, pair_tiles, m, wr):
        L = []
        q = TQ + 4*(tq[0] % 4); tq[0] += 1
        regs = [acc + (t*4 + m)*4 + r for t in pair_tiles for r in range(4)]
        for r in regs: L.append(f"v_mul_f32 v{r}, v{r}, |v{r}|")
        for k in range(len(regs)//2): L.append(f"v_cvt_pk_bf16_f32 v{q+k}, v{regs[2*k]}, v{regs[2*k+1]}")
        for k in range(len(regs)//2): L.append(f"v_pk_max_i16 v{q+k}, v{q+k}, 0")
        L.append(wr(q))
        return L
    at = S(1, 0) + 3
    for pr in range(2):
        for m in range(4):
            for l in epi1(ACA, [2*pr, 2*pr+1], m, lambda q: f"ds_write_b128 v{192+pr}, {vq(q)} offset:{m*1024}"): flex.append((at, l))
    for m in range(4):
        for l in epi1(ACA, [4], m, lambda q: f"ds_write_b64 v194, {vq(q,2)} offset:{m*1024}"): flex.append((at, l))
    flex.append((at, "@mark0"))
    at = S(2, 0) + 3
    for pr in range(2):
        for m in range(4):
            for l in epi1(ACB, [2*pr, 2*pr+1], m, lambda q: f"ds_write_b128 v{195+pr}, {vq(q)} offset:{m*1024}"): flex.append((at, l))
    flex.append((at, "@mark1"))
    at = S(2, 10)
    setup = f"""s_lshl_b32 s84, s{sGF}, 6
s_add_u32 s84, s84, s{sJF}
s_mul_i32 s84, s84, 9216
s_add_u32 s84, s84, {PART}
v_lshrrev_b32 v14, 3, v{vI}
v_mul_u32_u24 v14, {8*9216}, v14
v_and_b32 v15, 7, v{vI}
v_lshl_add_u32 v14, v15, 4, v14
v_lshl_add_u32 v14, v{vG}, 7, v14
v_add_u32 v14, s84, v14
s_lshr_b32 s85, s{sW}, 1
s_lshl_b32 s85, s85, 9
s_and_b32 s86, s{sW}, 1
s_lshl_b32 s86, s86, 3
s_add_u32 s85, s85, s86
s_add_u32 s85, s85, 8192
v_add_u32 v15, s85, v14
s_lshl_b32 s85, s{sW}, 11
v_add_u32 v14, s85, v14
s_mov_b32 s80, 0
s_mov_b32 s81, {16*9216}
s_mov_b32 s82, {32*9216}
s_mov_b32 s83, {48*9216}
s_lshl_b32 s86, s{sGF}, 12
s_lshl_b32 s87, s{sJF}, 4
s_add_u32 s87, s87, s86
s_add_u32 s87, s87, {F3A}
v_mov_b32 v250, s87
v_cmp_eq_u32 vcc, 0, v0
s_add_u32 s86, s86, {F3A}
v_and_b32 v251, 7, v{vL}
v_cndmask_b32 v250, v13, v250, vcc
v_lshl_add_u32 v251, v251, 4, s86
s_lshl_b32 s84, s{sGF}, 3
s_add_u32 s84, s84, s{sJF}
s_mul_i32 s84, s84, {8*9216}
s_add_u32 s84, s84, {PART}
s_lshl_b32 s85, s{sW}, 11
s_add_u32 s85, s85, s84
v_add_u32 v252, s85, v{vL16}
s_lshl_b32 s85, s{sW}, 8
s_add_u32 s85, s85, s84
s_add_u32 s85, s85, 8192
v_lshl_add_u32 v7, v{vI}, 4, s85
v_cmp_gt_u32 vcc, 16, v{vL}
v_lshrrev_b32 v5, 5, v{vL}
v_bfe_u32 v6, v{vL}, 3, 2
v_cndmask_b32 v7, v13, v7, vcc
v_and_b32 v8, 7, v{vL}
s_mul_i32 s84, s{sGF}, 73728
s_lshr_b32 s85, s{sJF}, 1
s_lshl_b32 s86, s85, 10
s_add_u32 s84, s84, s86
s_and_b32 s86, s{sJF}, 1
s_lshl_b32 s87, s86, 7
s_add_u32 s84, s84, s87
s_add_u32 s84, s84, {HP}
v_lshlrev_b32 v253, 12, v5
v_lshl_add_u32 v253, v6, 8, v253
v_lshl_add_u32 v253, v8, 4, v253
s_lshl_b32 s87, s{sW}, 14
s_add_u32 s74, s87, s84
s_lshr_b32 s87, s{sW}, 1
s_lshl_b32 s87, s87, 12
s_and_b32 s76, s{sW}, 1
s_lshl_b32 s76, s76, 9
s_add_u32 s87, s87, s76
s_add_u32 s87, s87, 65536
s_add_u32 s75, s87, s84
s_add_u32 s77, s74, 8192
s_lshl_b32 s84, s{sGF}, 6
s_and_b32 s87, s85, 1
s_lshl_b32 s87, s87, 5
s_add_u32 s84, s84, s87
s_lshr_b32 s87, s85, 1
s_add_u32 s84, s84, s87
s_lshl_b32 s87, s86, 4
s_add_u32 s84, s84, s87
s_mul_i32 s84, s84, 1152
v_lshlrev_b32 v6, 4, v6
v_lshl_add_u32 v6, v5, 6, v6
v_mul_u32_u24 v254, 2304, v8
v_add3_u32 v254, v254, v6, s84
s_lshl_b32 s78, s{sW}, 8
s_lshl_b32 s79, s{sW}, 5
v_cndmask_b32 v255, v13, v254, vcc
s_add_u32 s79, s79, 1024
s_mov_b32 s95, 0x00003f80
s_mov_b32 s96, 0x3f800000"""
    for l in setup.split("\n"): flex.append((at, l))
    RH = 200; RS = 224
    for r, (sh, sb, bo) in enumerate([(74, 78, 0), (75, 79, 0), (77, 78, 128)]):
        flex.append((at, (f"buffer_load_dwordx4 {vq(RH+8*r)}, v253, {srd(sWS)}, s{sh} offen sc1", "rh")))
        flex.append((at, (f"buffer_load_dwordx4 {vq(RH+8*r+4)}, v6, {srd(sB2)}, s{sb} offen offset:{bo}", "rh")))
    def acc_quad(T, q, first):
        L = []
        for d in range(4):
            L.append(f"v_dot2_f32_bf16 v{T+2*d}, v{q+d}, s95, {'0' if first else 'v%d' % (T+2*d)}")
            L.append(f"v_dot2_f32_bf16 v{T+2*d+1}, v{q+d}, s96, {'0' if first else 'v%d' % (T+2*d+1)}")
        return L
    def epi2(acc, tiles, m, st):
        q = TQ + 4*(tq[0] % 4); tq[0] += 1
        regs = [acc + (t*4 + m)*4 + r for t in tiles for r in range(4)]
        L = [f"v_cvt_pk_bf16_f32 v{q+k}, v{regs[2*k]}, v{regs[2*k+1]}" for k in range(len(regs)//2)]
        L.append(st(q))
        return L
    at = S(3, 0) + 3
    for m in range(4):
        for pr in range(2):
            for l in epi2(ACA, [2*pr, 2*pr+1], m, lambda q: (f"buffer_store_dwordx4 {vq(q)}, v14, {srd(sWS)}, s{80+m} offen offset:{512*pr} sc1", "p1")): flex.append((at, l))
        for l in epi2(ACA, [4], m, lambda q: (f"buffer_store_dwordx2 {vq(q,2)}, v15, {srd(sWS)}, s{80+m} offen sc1", "p1")): flex.append((at, l))
    flex.append((at, "@mark2"))
    for r in range(3):
        for l in acc_quad(RS+8*r, RH+8*r, True) + acc_quad(RS+8*r, RH+8*r+4, False): flex.append((at, l))
    fa, fb, fc = cfg.f3
    fixed.setdefault(S(3, fa), []).extend(["@flexdone2", "@waitvm p1", "s_barrier", f"v_mov_b32 v5, s{sTAG}",
        (f"buffer_store_dword v5, v250, {srd(sWS)}, 0 offen sc1", "flag")])
    fixed.setdefault(S(3, fb), []).append(poll_pre(251, 5))
    def red_loads(vaddr, off, R0):
        L = ["s_mov_b32 s84, 0"]
        for j in range(8):
            L.append((f"buffer_load_dwordx4 {vq(R0+4*j)}, v{vaddr}, {srd(sWS)}, s84 offen offset:{off} sc1", "rd"))
            if j < 7: L.append("s_add_u32 s84, s84, 9216")
        return L
    def red_sum(r, R0, vo, so, ooff):
        T = RS + 8*r; L = []
        for j in range(8): L += acc_quad(T, R0+4*j, False)
        for d in range(4): L.append(f"v_cvt_pk_bf16_f32 v{T+d}, v{T+2*d}, v{T+2*d+1}")
        L.append((f"buffer_store_dwordx4 {vq(T)}, v{vo}, {srd(sOUT)}, s{so} offen offset:{ooff}", "out"))
        return L
    at = S(3, fc)
    flex.append((at, poll_check(251, 5)))
    for l in red_loads(252, 0, 16) + red_loads(7, 0, 48): flex.append((at, l))
    at = S(3, min(fc + 3, 17))
    rest = red_sum(0, 16, 254, 78, 0) + red_sum(1, 48, 255, 79, 0)
    for l in rest: flex.append((at, l))
    left = sched(P, mains, fixed, flex, keep=True, cap=cfg.cap)
    assert not any("L_slow" in (x[0] if isinstance(x, tuple) else x) for x in left)
    print("left over flex items", len(left))
    stamp("FFN done")
    for m in range(4):
        for pr in range(2):
            P.extend(epi2(ACB, [2*pr, 2*pr+1], m, lambda q: (f"buffer_store_dwordx4 {vq(q)}, v14, {srd(sWS)}, s{80+m} offen offset:{1024 + 512*pr} sc1", "p2")))
    P(f"v_add_u32 v250, {F3B - F3A}, v250\nv_add_u32 v251, {F3B - F3A}, v251")
    nleft = min(len(left), cfg.nleft)
    P.extend(left[:nleft])
    P("@waitvm p2\ns_barrier")
    set_flag(250)
    stamp("F3b set")
    P.extend(left[nleft:])
    poll(251, 5)
    stamp("F3b seen")
    P.extend(red_loads(252, 1024, 96))
    P.extend(red_sum(2, 96, 254, 78, 128))
    P(f"""s_cmp_lg_u32 s2, 0
s_cbranch_scc1 L_noepoch
s_cmp_lg_u32 s{sW}, 0
s_cbranch_scc1 L_noepoch""")
    P(f"v_lshrrev_b32 v6, 5, v{vL}\nv_lshlrev_b32 v6, 12, v6\nv_and_b32 v7, 31, v{vL}\nv_lshl_add_u32 v6, v7, 2, v6\nv_add_u32 v6, {F0S}, v6")
    for k in range(4):
        poll(6, 5)
        P("v_add_u32 v6, 8192, v6")
    P(f"v_mov_b32 v6, 0\nv_mov_b32 v5, s{sTAG}\ns_mov_b64 exec, 1\nbuffer_store_dword v5, v6, {srd(sWS)}, 0 offen\ns_mov_b64 exec, -1\nL_noepoch:")
    if cfg.stamps:
        P("s_waitcnt vmcnt(0)")
        stamp("end")
        P(f"s_lshl_b32 s84, s2, 2\ns_add_u32 s84, s84, s{sW}\ns_lshl_b32 s84, s84, 7\ns_add_u32 s84, s84, {STAMPS}\nv_mov_b32 v6, s84\ns_mov_b64 exec, 1")
        for k in range(nstamp[0]):
            P(f"v_mov_b32 v5, s{STAMP0+k}\nbuffer_store_dword v5, v6, {srd(sWS)}, 0 offen offset:{4*k}")
    P("L_end:\ns_endpgm")
    for x in slow: P(x)
    cfg.names = names
    return P

def sched(P, mains, fixed, flex, cap=2, keep=False):
    k = 0; marks = set()
    def put(it):
        t = it[0] if isinstance(it, tuple) else it
        if t.startswith("@mark"): marks.add(t[5:]); return 0
        if t.startswith("@flexdone"):
            nonlocal k
            while t[9:] not in marks:
                put(flex[k][1]); k += 1
            return 0
        P.add(it)
        return sum(1 for l in t.split("\n") if not l.startswith("@") and not l.endswith(":"))
    for n, m in enumerate(mains):
        P.add(m)
        c = 0
        for it in fixed.get(n, []): c += put(it)
        while k < len(flex) and c < cap and flex[k][0] <= n:
            it = flex[k][1]; k += 1
            c += put(it)
    if keep: return [f[1] for f in flex[k:]]
    while k < len(flex):
        it = flex[k][1]; k += 1
        put(it)

import struct
def hexf(x): return hex(struct.unpack("<I", struct.pack("<f", x))[0])

HEADER = open("cdna_kernels/" + NAME + ".s.ref").read().split("; Override launch geometry")[0]
def build(cfg, verbose=False):
    body = finalize(gen(cfg), verbose)
    k = NAME + "_kernel"
    return (HEADER + f"; @launch grid=(256,1,1) block=(256,1,1) lds={LDS_BYTES}\n"
        + f'.amdgcn_target "amdgcn-amd-amdhsa--gfx950"\n.text\n.globl {k}\n.p2align 8\n.type {k},@function\n{k}:\n' + body
        + f""".section .rodata,"a"
.p2align 6
.amdhsa_kernel {k}
  .amdhsa_next_free_vgpr 512
  .amdhsa_next_free_sgpr 102
  .amdhsa_accum_offset 256
  .amdhsa_group_segment_fixed_size 0
  .amdhsa_kernarg_size 88
  .amdhsa_user_sgpr_count 2
  .amdhsa_user_sgpr_kernarg_segment_ptr 1
  .amdhsa_system_sgpr_workgroup_id_x 1
.end_amdhsa_kernel
""")

if __name__ == "__main__":
    cfg = Cfg()
    out = sys.argv[1]
    for a in sys.argv[2:]:
        k, v = a.split("=")
        setattr(cfg, k, eval(v))
    open(out, "w").write(build(cfg, True))
    if cfg.stamps: open(out + ".names", "w").write("|".join(cfg.names))
```

```python
import sys
from ir import *

NAME = "sequential_preLN__sliding_local_dilated__dense_activation_squared_relu__prompt"

F0S, F1G, F1S, F2G, F2S, F3A, F3B = 0x10000, 0x20000, 0x48000, 0x50000, 0x78000, 0x80000, 0xA0000
WQP, WOP, OP, HP, W1R, W2R, PART, STAMPS = 0x100000, 0x300000, 0x400000, 0x700000, 0xA00000, 0x1000000, 0x1600000, 0x3000000
WS_BYTES = 0x4000000
OOB = 0x40000000
LDS_BYTES = 163840
XB = 71680
R0SCR = 49152
W1SCR = 0
WOB = 0
W2SCR = 98304
VXS = 139264
XN, HB = 0, 73728
sX, sWQ, sWO, sW1, sW2, sB1, sB2, sOUT, sWS, sR = 28, 32, 36, 40, 44, 48, 52, 56, 60, 64
sW, sG1, sJ1, sGF, sJF, sTAG = 68, 69, 70, 71, 72, 73
def srd(n): return f"s[{n}:{n+3}]"
def vq(n, k=4): return f"v[{n}:{n+k-1}]"
def aq(n, k=4): return f"a[{n}:{n+k-1}]"
MF = "v_mfma_f32_16x16x32_bf16"
vL, vI, vG, vL16 = 1, 2, 3, 4

class Cfg:
    stamps = False
    nx1 = 6
    p1depth = 8
    npre = 25
    rot = True
    npre1 = 12
    wospan = 10
    f3 = (5, 9, 11)
    nleft = 60
    dbg = False
    wsbase = 0
    only = None
    cap = 2
    wsc = " sc1"
    nwo1 = 40
    stop = None

def gen(cfg):
    P = Prog()
    nstamp = [0]
    names = []
    def stamp_txt(name):
        if cfg.stamps and (cfg.only is None or name in cfg.only or name == "end") and not (cfg.only is None and name.startswith("@")):
            k = nstamp[0]; nstamp[0] += 1; names.append(name); assert k < 20
            return f"{'s_memtime' if cfg.stamps == 2 else 's_memrealtime'} s[100:101]\n@waitlg_all\ns_mov_b32 s{STAMP0+k}, s100"
        return None
    def stamp(name):
        t = stamp_txt(name)
        if t: P(t)
    STAMP0 = 4
    npoll = [0]
    def poll(vaddr, vtmp):
        k = npoll[0]; npoll[0] += 1
        P(f"""s_mov_b32 s97, 0
L_poll{k}:
buffer_load_dword v{vtmp}, v{vaddr}, {srd(sWS)}, 0 offen sc1
s_add_u32 s97, s97, 1
s_waitcnt vmcnt(0)
v_cmp_ne_u32 vcc, s{sTAG}, v{vtmp}
s_cmp_gt_u32 s97, 400000
s_cbranch_scc1 L_pdone{k}
s_cbranch_vccnz L_poll{k}
L_pdone{k}:""")
    slow = []
    def poll_pre(vaddr, vtmp):
        return (f"buffer_load_dword v{vtmp}, v{vaddr}, {srd(sWS)}, 0 offen sc1", "pl")
    def poll_check(vaddr, vtmp):
        k = npoll[0]; npoll[0] += 1
        slow.append(f"""L_slow{k}:
s_mov_b32 s97, 0
L_poll{k}:
buffer_load_dword v{vtmp}, v{vaddr}, {srd(sWS)}, 0 offen sc1
s_add_u32 s97, s97, 1
s_waitcnt vmcnt(0)
v_cmp_ne_u32 vcc, s{sTAG}, v{vtmp}
s_cmp_gt_u32 s97, 400000
s_cbranch_scc1 L_back{k}
s_cbranch_vccnz L_poll{k}
s_branch L_back{k}""")
        return f"v_cmp_ne_u32 vcc, s{sTAG}, v{vtmp}\ns_cbranch_vccnz L_slow{k}\nL_back{k}:"
    def wrap(sr, step, send, sbeg):
        return f"s_add_u32 s{sr}, s{sr}, {step}\ns_cmp_eq_u32 s{sr}, s{send}\ns_cselect_b32 s{sr}, s{sbeg}, s{sr}"
    def set_flag(vaddr):
        P(f"v_mov_b32 v5, s{sTAG}")
        P(f"buffer_store_dword v5, v{vaddr}, {srd(sWS)}, 0 offen sc1", "flag")

    P("""s_cmp_ge_u32 s2, 256
s_cbranch_scc1 L_end
s_load_dwordx16 s[4:19], s[0:1], 0
s_load_dwordx4 s[20:23], s[0:1], 64
s_load_dwordx2 s[24:25], s[0:1], 80""")
    if cfg.stamps: P("s_memtime s[26:27]" if cfg.stamps == 2 else "s_memrealtime s[26:27]")
    P(f"""v_lshrrev_b32 v5, 6, v0
v_and_b32 v{vL}, 63, v0
v_readfirstlane_b32 s{sW}, v5
v_and_b32 v{vI}, 15, v0
v_lshrrev_b32 v{vG}, 4, v{vL}
v_lshlrev_b32 v{vL16}, 4, v{vL}
s_and_b32 s74, s2, 7
s_lshr_b32 s75, s2, 3
s_lshl_b32 s{sG1}, s74, 2
s_lshr_b32 s76, s75, 3
s_add_u32 s{sG1}, s{sG1}, s76
s_and_b32 s{sJ1}, s75, 7
s_lshr_b32 s{sGF}, s74, 2
s_lshl_b32 s{sGF}, s{sGF}, 4
s_lshr_b32 s76, s75, 1
s_add_u32 s{sGF}, s{sGF}, s76
s_and_b32 s{sJF}, s74, 3
s_lshl_b32 s{sJF}, s{sJF}, 1
s_and_b32 s76, s75, 1
s_add_u32 s{sJF}, s{sJF}, s76
s_lshl_b32 s77, s{sW}, 5
s_add_u32 s77, s77, s{sG1}
s_mul_i32 s78, s{sJ1}, 144""")
    sRP, sRF = 0, 1
    P(f"""s_cmp_lt_u32 s77, 72
s_cbranch_scc0 L_r0_wo
v_mul_u32_u24 v6, 2428, v{vL}
v_lshrrev_b32 v6, 16, v6
v_mul_u32_u24 v7, 27, v6
v_sub_u32 v7, v{vL}, v7
v_mul_u32_u24 v8, 7282, v7
v_lshrrev_b32 v8, 16, v8
v_mul_u32_u24 v9, 9, v8
v_sub_u32 v9, v7, v9
v_mul_u32_u24 v6, 3456, v6
v_mul_u32_u24 v8, 1152, v8
v_lshlrev_b32 v9, 4, v9
v_add3_u32 v5, v6, v8, v9
v_cmp_gt_u32 vcc, 54, v{vL}
s_mul_i32 s80, s77, {8*3456}
s_add_u32 s80, s80, s78
s_add_u32 s81, s80, {6912-1024}
s_add_u32 s82, s81, {6912-1024}
s_add_u32 s83, s82, {6912-1024}
s_branch L_r0_join
L_r0_wo:
v_mul_u32_u24 v6, 7282, v{vL}
v_lshrrev_b32 v6, 16, v6
v_mul_u32_u24 v7, 9, v6
v_sub_u32 v7, v{vL}, v7
v_mul_u32_u24 v6, 1152, v6
v_lshl_add_u32 v5, v7, 4, v6
v_cmp_gt_u32 vcc, 36, v{vL}
s_sub_u32 s79, s77, 72""")
    for G in range(2):
        if G: P("s_add_u32 s79, s79, 36")
        P(f"""s_lshr_b32 s84, s79, 2
s_mul_i32 s84, s84, 36
s_bfe_u32 s85, s79, 0x10001
s_mul_i32 s85, s85, 20
s_add_u32 s84, s84, s85
s_and_b32 s85, s79, 1
s_lshl_b32 s85, s85, 3
s_add_u32 s84, s84, s85
s_add_u32 s85, s84, 4
s_sub_u32 s86, s79, 64
s_mul_i32 s86, s86, 72
s_add_u32 s86, s86, 16
s_add_u32 s87, s86, 36
s_cmp_lt_u32 s79, 64
s_cselect_b32 s84, s84, s86
s_cselect_b32 s85, s85, s87
s_mul_i32 s84, s84, 1152
s_mul_i32 s85, s85, 1152
s_add_u32 s84, s84, s78
s_add_u32 s85, s85, s78
s_sub_u32 s{80+2*G}, s84, {1024*(2*G)}
s_sub_u32 s{81+2*G}, s85, {1024*(2*G+1)}""")
    P(f"""s_cmp_lt_u32 s77, 108
s_cselect_b32 s80, s80, {OOB}
s_cselect_b32 s81, s81, {OOB}
s_cselect_b32 s82, s82, {OOB}
s_cselect_b32 s83, s83, {OOB}
L_r0_join:
s_nop 1
v_mov_b32 v6, {OOB}
v_cndmask_b32 v5, v6, v5, vcc
s_lshl_b32 s84, s{sW}, 12
s_add_u32 s84, s84, {R0SCR}
s_mov_b32 m0, s84
s_waitcnt lgkmcnt(0)""")
    def mksrd(d, p, n):
        P(f"s_mov_b32 s{d}, s{p}\ns_and_b32 s{d+1}, s{p+1}, 0xffff\ns_mov_b32 s{d+2}, {n}\ns_mov_b32 s{d+3}, 0x00020000")
    P(f"""s_cmp_lt_u32 s77, 72
s_cselect_b32 s{sR}, s6, s8
s_cselect_b32 s{sR+1}, s7, s9
s_mov_b32 s85, {576*1152}
s_cselect_b32 s{sR+2}, {576*3456}, s85
s_and_b32 s{sR+1}, s{sR+1}, 0xffff
s_mov_b32 s{sR+3}, 0x00020000""")
    for q in range(4):
        P(f"buffer_load_dwordx4 v5, {srd(sR)}, s{80+q} offen offset:{1024*q} lds", "r0")
    mksrd(sX, 4, 2048*1152)
    if cfg.wsbase: P(f"s_add_u32 s24, s24, {cfg.wsbase}\ns_addc_u32 s25, s25, 0")
    P(f"s_load_dword s{sTAG}, s[24:25], 0")
    XR, XH = 160, 232
    P(f"""s_lshl_b32 s84, s{sG1}, 6
s_and_b32 s85, s{sW}, 1
s_lshl_b32 s85, s85, 5
s_add_u32 s85, s85, s84
s_lshr_b32 s86, s{sW}, 1
s_add_u32 s85, s85, s86
s_mul_i32 s85, s85, 1152
v_lshrrev_b32 v8, 3, v{vL}
v_and_b32 v9, 7, v{vL}
v_mul_u32_u24 v6, 2304, v8
v_lshl_add_u32 v6, v9, 4, v6
v_add_u32 v6, s85, v6
v_add_u32 v7, {8*2304}, v6""")
    if cfg.rot:
        P(f"""s_and_b32 s86, s{sG1}, 3
s_mul_i32 s86, s86, 9
s_add_u32 s86, s86, 2
s_lshr_b32 s86, s86, 2
s_add_u32 s86, s86, s{sJ1}
s_sub_u32 s87, s86, 9
s_cmp_ge_u32 s86, 9
s_cselect_b32 s{sRP}, s87, s86
s_and_b32 s86, s{sJF}, 1
s_mul_i32 s86, s86, 9
s_and_b32 s87, s{sGF}, 15
s_add_u32 s86, s86, s87
s_sub_u32 s87, s86, 18
s_cmp_ge_u32 s86, 18
s_cselect_b32 s{sRF}, s87, s86""")
    else:
        P(f"s_mov_b32 s{sRP}, 0\ns_mov_b32 s{sRF}, 0")
    P(f"s_lshl_b32 s88, s{sRP}, 7")
    for q in range(1, 9):
        P(f"s_add_u32 s{88+q}, s{87+q}, 128\ns_cmp_eq_u32 s{88+q}, 1152\ns_cselect_b32 s{88+q}, 0, s{88+q}")
    xl = []
    for q in range(9):
        for hh in range(2):
            xl.append(f"buffer_load_dwordx4 {vq(XR + (q*2+hh)*4)}, v{6+hh}, {srd(sX)}, s{88+q} offen")
    for l in xl[:cfg.nx1]: P(l, "x")
    mksrd(sWS, 24, WS_BYTES)
    P(f"""s_lshl_b32 s85, s{sW}, 2
v_add_u32 v10, s85, v{vG}
v_and_b32 v11, 7, v10
v_lshrrev_b32 v12, 3, v10
v_lshl_add_u32 v11, v11, 1, v12
v_add_u32 v11, s84, v11
v_subrev_u32 v11, 16, v11
v_mul_u32_u24 v11, 1152, v11
s_cmp_eq_u32 s{sG1}, 0
s_cselect_b32 s85, {OOB}, 0
s_cselect_b32 s86, 0, -1
v_and_b32 v11, s86, v11
v_or_b32 v11, s85, v11
v_mov_b32 v13, {OOB}
s_lshl_b32 s85, s{sRP}, 3
v_add_u32 v12, s85, v{vI}""")
    for q in range(5):
        P(f"""v_add_u32 v{84+q}, {16*q}, v12
v_subrev_u32 v89, 72, v{84+q}
v_min_u32 v{84+q}, v{84+q}, v89
v_lshl_add_u32 v{84+q}, v{84+q}, 4, v11""")
    P(f"v_cmp_gt_u32 vcc, 8, v{vI}\nv_cndmask_b32 v88, v13, v88, vcc")
    hl = [f"buffer_load_dwordx4 {vq(XH + 4*q)}, v{84+q}, {srd(sX)}, 0 offen" for q in range(5)]
    P(f"""v_bfe_u32 v14, v{vL}, 2, 2
v_and_b32 v15, 3, v{vL}
s_lshl_b32 s84, s{sW}, 12
s_add_u32 s84, s84, {R0SCR}
s_cmp_lt_u32 s77, 72
s_cbranch_scc0 L_r1_wo
v_lshrrev_b32 v16, 1, v14
v_lshlrev_b32 v16, 10, v16
v_and_b32 v17, 1, v14
v_mul_u32_u24 v17, 432, v17
v_add3_u32 v16, v16, v17, s84
v_mul_u32_u24 v17, 36, v{vG}
v_and_b32 v18, 1, v{vG}
v_lshl_add_u32 v17, v18, 2, v17
v_lshl_add_u32 v17, v15, 3, v17
v_add_u32 v32, v16, v17
v_add_u32 v34, 144, v32
v_add_u32 v36, 288, v32
v_min_u32 v17, 2, v15
v_mul_u32_u24 v17, 144, v17
v_mul_u32_u24 v18, 72, v18
v_add3_u32 v38, v16, v17, v18
v_add_u32 v38, 32, v38
s_mov_b32 s85, 2048
s_lshr_b32 s86, s77, 2
s_mul_i32 s87, s{sJ1}, 72
s_add_u32 s86, s86, s87
s_mul_i32 s86, s86, 3584
s_add_u32 s86, s86, {WQP}
s_and_b32 s87, s77, 3
v_mul_u32_u24 v16, {18*3584}, v{vG}
v_lshl_add_u32 v16, v{vI}, 4, v16
s_lshl_b32 s79, s87, 8
s_add_u32 s79, s79, s86
v_add_u32 v40, s79, v16
v_add_u32 v41, 1024, v40
v_add_u32 v42, 2048, v40
v_lshrrev_b32 v16, 1, v15
v_lshl_add_u32 v16, v{vG}, 1, v16
v_mul_u32_u24 v16, {18*3584}, v16
v_and_b32 v17, 1, v15
v_lshl_add_u32 v17, v14, 1, v17
v_lshl_add_u32 v16, v17, 4, v16
s_lshl_b32 s79, s87, 7
s_add_u32 s79, s79, s86
s_add_u32 s79, s79, 3072
v_add_u32 v16, s79, v16
v_cmp_gt_u32 vcc, 32, v{vL}
v_cndmask_b32 v16, v13, v16, vcc
v_cmp_gt_u32 vcc, 12, v{vI}
v_cndmask_b32 v43, v13, v16, vcc
s_branch L_r1_join
L_r1_wo:
v_mul_u32_u24 v16, 144, v14
v_add_u32 v16, s84, v16
v_lshrrev_b32 v17, 1, v{vG}
v_lshlrev_b32 v17, 6, v17
v_and_b32 v18, 1, v{vG}
v_lshl_add_u32 v17, v18, 3, v17
v_lshl_add_u32 v17, v15, 4, v17
v_add_u32 v32, v16, v17
v_and_b32 v17, 1, v15
v_lshl_add_u32 v34, v17, 3, v16
v_add_u32 v34, 128, v34
v_add_u32 v36, 2048, v32
v_add_u32 v38, 2048, v34
s_mov_b32 s85, 1024
v_lshlrev_b32 v16, 10, v{vG}
v_lshl_add_u32 v16, v{vI}, 4, v16
v_cmp_gt_u32 vcc, 8, v{vL}
v_cndmask_b32 v17, v13, v{vL16}, vcc
s_sub_u32 s79, s77, 72""")
    for G in range(2):
        if G: P("s_add_u32 s79, s79, 36")
        P(f"""s_lshr_b32 s86, s79, 2
s_mul_i32 s87, s{sJ1}, 18
s_add_u32 s86, s86, s87
s_mul_i32 s86, s86, 4608
s_add_u32 s86, s86, {WOP}
s_cmp_lt_u32 s77, 108
s_cselect_b32 s86, s86, {OOB}
s_and_b32 s87, s79, 3
s_lshl_b32 s76, s87, 8
s_add_u32 s76, s76, s86
v_add_u32 v{40+2*G}, s76, v16
s_lshl_b32 s76, s87, 7
s_add_u32 s76, s76, s86
s_add_u32 s76, s76, 4096
v_add_u32 v{41+2*G}, s76, v17""")
    P("L_r1_join:\ns_nop 1")
    for t in range(4): P(f"v_add_u32 v{33+2*t}, s85, v{32+2*t}")
    mksrd(sW1, 12, 576*9216); mksrd(sW2, 16, 4608*1152); mksrd(sB1, 14, 9216); mksrd(sB2, 18, 1152); mksrd(sOUT, 20, 2048*1152)
    if cfg.dbg: mksrd(sR, 22, 256)
    if cfg.stamps: P("@waitlg_all\ns_mov_b32 s4, s26"); nstamp[0] = 1; names.append("start")
    P("s_mov_b32 s99, 0x3f803f80\ns_mov_b32 s98, 0xffff0000")
    UP = {(1, 0): (32, 33, 34), (1, 1): (35, 36, 37), (2, 0): (24, 25, 34), (2, 1): (26, 27, 37)}
    for z in range(2):
        a1, d1, st = UP[(1, z)]; a2, d2, _ = UP[(2, z)]
        P(f"""s_add_u32 s84, s77, {128*z}
s_mul_i32 s85, s84, 7282
s_lshr_b32 s85, s85, 16
s_mul_i32 s86, s85, 9
s_sub_u32 s86, s84, s86
s_lshl_b32 s76, s86, 7
s_mul_i32 s87, s85, {32*9216}
s_add_u32 s87, s87, s76
s_mul_i32 s75, s{sJ1}, 1152
s_add_u32 s{a1}, s87, s75
s_mul_i32 s87, s85, {32*1152}
s_add_u32 s87, s87, s76
s_mul_i32 s75, s{sJ1}, {576*1152}
s_add_u32 s{a2}, s87, s75
s_lshr_b32 s79, s85, 2
s_lshl_b32 s79, s79, 1
s_and_b32 s75, s85, 1
s_add_u32 s79, s79, s75
s_add_u32 s75, s79, 10
s_bitcmp1_b32 s85, 1
s_cselect_b32 s79, s75, s79
s_lshr_b32 s87, s86, 1
s_mul_i32 s87, s87, 162
s_cmp_eq_u32 s86, 8
s_cselect_b32 s87, 4, s87
s_cselect_b32 s{st}, 162, 1
s_lshl_b32 s{st}, s{st}, 10
s_mul_i32 s76, s{sJ1}, 648
s_add_u32 s87, s87, s76
s_add_u32 s76, s87, 90
s_bitcmp1_b32 s86, 0
s_cselect_b32 s87, s76, s87
s_cselect_b32 s76, 4, 5
s_mul_i32 s75, s85, s76
s_add_u32 s75, s75, s87
s_lshl_b32 s75, s75, 10
s_add_u32 s{d1}, s75, {W1R}
s_mul_i32 s75, s79, s76
s_add_u32 s75, s75, s87
s_lshl_b32 s75, s75, 10
s_add_u32 s{d2}, s75, {W2R}""")
        if z:
            P("s_cmp_lt_u32 s84, 162")
            for r in (a1, d1, a2, d2): P(f"s_cselect_b32 s{r}, s{r}, {OOB}")
    P(f"""v_mul_u32_u24 v92, 9216, v8
v_lshl_add_u32 v92, v9, 4, v92
v_mul_u32_u24 v93, 1152, v8
v_lshl_add_u32 v93, v9, 4, v93
v_lshl_add_u32 v94, v{vG}, 3, v14
v_lshlrev_b32 v94, 7, v94
v_lshl_add_u32 v94, v15, 4, v94
s_lshl_b32 s84, s{sW}, 13
v_add_u32 v94, s84, v94""")
    def unit_dma(mat, z, scr):
        a = UP[(mat, z)][0]; st = 9216 if mat == 1 else 1152
        L = [f"s_lshl_b32 s84, s{sW}, 13\ns_add_u32 s84, s84, {scr + 4096*z}\ns_mov_b32 m0, s84"]
        for q in range(4):
            if q: L.append(f"s_add_u32 s{a}, s{a}, {8*st - 1024}")
            L.append((f"buffer_load_dwordx4 v{91+mat}, {srd(sW1 if mat == 1 else sW2)}, s{a} offen offset:{1024*q} lds", "wr"))
        return L
    def unit_tr(z, scr, vt):
        return [f"ds_read_b64_tr_b16 {vq(vt+4*t+2*hi,2)}, v94 offset:{scr + 4096*z + 64*(t>>1) + 8*(t&1) + 512*hi}" for t in range(4) for hi in range(2)]
    def unit_st(mat, z, vt):
        _, d, st = UP[(mat, z)]; L = []
        for t in range(4):
            if t: L.append(f"s_add_u32 s{d}, s{d}, s{st}")
            L.append((f"buffer_store_dwordx4 {vq(vt+4*t)}, v{vL16}, {srd(sWS)}, s{d} offen sc1", "wrs"))
        return L
    P("@waitvm r0")
    stamp("r0 landed")
    for t in range(4):
        P(f"ds_read_b64_tr_b16 {vq(16+4*t,2)}, v{32+2*t}")
        P(f"ds_read_b64_tr_b16 {vq(18+4*t,2)}, v{33+2*t}")
    for t in range(4):
        P(f"buffer_store_dwordx4 {vq(16+4*t)}, v{40+t}, {srd(sWS)}, 0 offen sc1", "r0s")
    for l in xl[cfg.nx1:] + hl: P(l, "x")
    P(f"@waitlg_all\ns_add_u32 s{sTAG}, s{sTAG}, 0x9E3779B9")
    P(f"""s_lshl_b32 s84, s{sJ1}, 12
s_add_u32 s84, s84, {F0S}
s_lshl_b32 s85, s{sG1}, 2
s_add_u32 s85, s85, s84
v_mov_b32 v44, s85
v_cmp_eq_u32 vcc, 0, v0
v_cndmask_b32 v44, v13, v44, vcc
v_and_b32 v45, 31, v{vL}
v_lshl_add_u32 v45, v45, 2, s84""")
    def stats(groups, acc):
        order = sorted((r, gi, k) for gi, regs in enumerate(groups) for k, r in enumerate(regs))
        L = []
        for r, gi, k in order:
            a = acc + 4*gi + 2*(k & 1)
            c0 = "0" if k < 2 else f"v{a}"; c1 = "0" if k < 2 else f"v{a+1}"
            L.append(f"v_dot2_f32_bf16 v{a}, v{r}, s99, {c0}\nv_dot2_f32_bf16 v{a+1}, v{r}, v{r}, {c1}")
        for gi in range(len(groups)):
            a = acc + 4*gi
            L.append(f"v_add_f32 v{a}, v{a}, v{a+2}\nv_add_f32 v{a+1}, v{a+1}, v{a+3}")
        return L
    def finish_stats(A):
        for t in [f"v_mul_f32 v@0, {hexf(1/576)}, v@0", f"v_mul_f32 v@2, v@0, v@0", f"v_mul_f32 v@1, {hexf(1/576)}, v@1", "v_sub_f32 v@1, v@1, v@2",
                  "v_max_f32 v@1, 0, v@1", f"v_add_f32 v@1, {hexf(1e-5)}, v@1", "v_rsq_f32 v@1, v@1", "v_mul_f32 v@2, v@0, -v@1",
                  "v_mov_b32 v@0, v@1", "v_mov_b32 v@3, v@2"]:
            for a in A: P(t.replace("@0", str(a)).replace("@1", str(a+1)).replace("@2", str(a+2)).replace("@3", str(a+3)))
    def normalize(q, a, t):
        L = []
        for d in range(4):
            L.append(f"v_lshlrev_b32 v{t+2*d}, 16, v{q+d}")
            L.append(f"v_and_b32 v{t+2*d+1}, s98, v{q+d}")
        for d in range(4): L.append(f"v_pk_fma_f32 {vq(t+2*d,2)}, {vq(t+2*d,2)}, {vq(a,2)}, {vq(a+2,2)}")
        for d in range(4): L.append(f"v_cvt_pk_bf16_f32 v{q+d}, v{t+2*d}, v{t+2*d+1}")
        return L
    ST = 144; NT = 112
    st = stats([[XR + (q*2+hh)*4 + d for q in range(9) for d in range(4)] for hh in range(2)] + [[XH + k for k in range(20)]], ST)
    n1 = cfg.nx1*4
    P.extend(st[:n1])
    MS, MP, ME, MO = 96, 100, 104, 108
    P(f"""v_mov_b32 v66, {hexf(-1e30)}
v_lshlrev_b32 v64, 2, v{vG}
v_sub_u32 v64, v64, v{vI}
s_cmp_eq_u32 s{sG1}, 0
s_cselect_b32 s84, 100, 0
v_cmp_gt_u32 s[80:81], 2, v{vG}""")
    for r in range(4):
        P(f"""v_add_u32 v65, {r+7}, v64
v_cmp_gt_u32 vcc, 8, v65
v_add_u32 v65, {r}, v64
v_subrev_u32 v67, s84, v65
v_cndmask_b32 v{MS+r}, v66, 0, vcc
v_cmp_lt_i32 vcc, 8, v65
v_cmp_lt_i32 s[82:83], 8, v67
v_cmp_lt_i32 s[86:87], 0, v67
v_cndmask_b32 v{MP+r}, v66, 0, vcc
s_and_b64 s[86:87], s[86:87], s[80:81]
v_cndmask_b32 v{MO+r}, v66, 0, s[82:83]
v_cndmask_b32 v{ME+r}, v66, 0, s[86:87]""")
    P("@waitvm r0s\ns_barrier")
    set_flag(44)
    stamp("F0 set")
    for z in range(2): P.extend(unit_dma(1, z, W1SCR))
    P(f"s_mul_i32 s84, s{sJF}, 1152\nv_lshlrev_b32 v5, 7, v{vI}")
    P(f"buffer_load_dword v90, v5, {srd(sB1)}, s84 offen", "wr")
    P(f"buffer_load_dword v91, v5, {srd(sB2)}, 0 offen", "wr")
    P.extend(st[n1:])
    for mod in ["quad_perm:[1,0,3,2]", "quad_perm:[2,3,0,1]", "row_half_mirror"]:
        for gi in range(3):
            for k in range(2):
                a = ST + 4*gi + k
                P(f"v_add_f32_dpp v{a}, v{a}, v{a} {mod} row_mask:0xf bank_mask:0xf")
    for k in range(2): P(f"v_add_f32_dpp v{ST+8+k}, v{ST+8+k}, v{ST+8+k} row_mirror row_mask:0xf bank_mask:0xf")
    finish_stats([ST, ST+4, ST+8])
    stamp("LN1 stats")
    P(f"""v_lshrrev_b32 v156, 2, v9
v_mul_u32_u24 v156, 5120, v156
v_and_b32 v157, 3, v9
v_lshl_add_u32 v156, v157, 8, v156
v_xor_b32 v157, v8, v9
v_lshl_add_u32 v156, v157, 4, v156
s_lshl_b32 s84, s{sW}, 10
s_add_u32 s84, s84, {XB}
v_add_u32 v156, s84, v156
v_add_u32 v157, {10240*5}, v156
v_lshrrev_b32 v158, 2, v{vI}
v_mul_u32_u24 v158, 5120, v158
v_lshl_add_u32 v158, v15, 8, v158
v_xor_b32 v159, v10, v9
v_lshl_add_u32 v158, v159, 4, v158
v_add_u32 v158, {XB + 4096}, v158
v_add_u32 v159, {20480*3}, v158""")
    ntc = [0]
    def ln1_batch(b):
        L = []
        for q in range(2*b, min(2*b+2, 9)):
            for hh in range(2):
                r = XR + (q*2+hh)*4
                L += normalize(r, ST + 4*hh, NT + 8*(ntc[0] & 1)); ntc[0] += 1
                L.append(f"ds_write_b128 v{156 if q < 5 else 157}, {vq(r)} offset:{10240*(q % 5) + 128*hh}")
        L += normalize(XH + 4*b, ST + 8, NT + 8*(ntc[0] & 1)); ntc[0] += 1
        wr = f"ds_write_b128 v{158 if b < 3 else 159}, {vq(XH+4*b)} offset:{20480*(b % 3)}"
        if b == 4: wr = "s_mov_b32 exec_lo, 0x00ff00ff\ns_mov_b32 exec_hi, 0x00ff00ff\n" + wr + "\ns_mov_b64 exec, -1"
        L.append(wr)
        return L
    P.extend(ln1_batch(0))
    P(f"""s_lshl_b32 s74, s{sJ1}, 2
s_add_u32 s74, s74, s{sW}
s_mul_i32 s74, s74, {18*3584}
s_add_u32 s74, s74, {WQP}
s_add_u32 s75, s74, {18*3584}
s_mul_i32 s78, s{sRP}, {2*3584}
s_add_u32 s78, s78, s74
v_lshlrev_b32 v7, 7, v{vG}
v_lshl_add_u32 v7, v{vI}, 4, v7
v_cmp_gt_u32 vcc, 6, v{vI}
v_cndmask_b32 v7, v13, v7, vcc
v_xor_b32 v8, v{vI}, v{vG}
v_lshlrev_b32 v8, 4, v8
v_lshl_add_u32 v8, v{vG}, 8, v8
v_add_u32 v8, {XB}, v8
v_xor_b32 v9, 64, v8
v_add_u32 v10, 46080, v8
v_add_u32 v11, 46080, v9""")
    stamp("LN1 b0")
    poll(45, 5)
    stamp("F0 seen")
    QA, KA, EA, VA = 16, 32, 52, 72
    WR = 64
    D = cfg.p1depth
    def wq_loads(s):
        b = WR + (s % D)*16
        L = [(f"buffer_load_dwordx4 {aq(b+4*t)}, v{vL16}, {srd(sWS)}, s78 offen offset:{1024*t}{cfg.wsc}", "wq") for t in range(3)]
        L.append((f"buffer_load_dwordx4 {aq(b+12)}, v7, {srd(sWS)}, s78 offen offset:3072{cfg.wsc}", "wq"))
        if s < 17: L.append(wrap(78, 3584, 75, 74))
        return L
    def x_reads(s):
        b = (s % 2)*20
        reg = (8 if s % 2 == 0 else 9) + (2 if s >= 9 else 0)
        return [f"ds_read_b128 {aq(b+4*m)}, v{reg} offset:{((s % 9)*5 + m)*1024}" for m in range(5)]
    for s in range(D-1): P.extend(wq_loads(s))
    P.extend(ln1_batch(1))
    P("@waitlg_all\ns_barrier")
    P.extend(x_reads(0))
    stamp("GEMM1 start")
    flex = []
    T0 = 128
    for l in ln1_batch(2): flex.append((0, l))
    flex.append((0, "@waitvm wr"))
    for z in range(2):
        for l in unit_tr(z, W1SCR, T0): flex.append((0, l))
        for l in [f"@need {vq(T0,16)}"] + unit_st(1, z, T0): flex.append((0, l))
    flex.append((0, "@mark0"))
    for l in ln1_batch(3) + ln1_batch(4): flex.append((0, l))
    flex.append((0, "@mark1"))
    XRES = 232
    for l in f"""s_lshl_b32 s84, s{sG1}, 6
s_and_b32 s85, s{sW}, 1
s_lshl_b32 s85, s85, 5
s_add_u32 s85, s85, s84
s_lshr_b32 s86, s{sW}, 1
s_add_u32 s85, s85, s86
s_mul_i32 s85, s85, 1152
s_mul_i32 s86, s{sJ1}, 144
s_add_u32 s85, s85, s86
v_mul_u32_u24 v5, 2304, v{vI}
v_lshl_add_u32 v6, v{vG}, 3, v5
v_lshl_add_u32 v5, v{vG}, 4, v5""".split("\n"): flex.append((19*12, l))
    flex.append((19*12, (f"buffer_load_dwordx4 {vq(XRES)}, v5, {srd(sX)}, s85 offen", "xr")))
    flex.append((19*12, (f"buffer_load_dwordx4 {vq(XRES+4)}, v5, {srd(sX)}, s85 offen offset:64", "xr")))
    flex.append((19*12, (f"buffer_load_dwordx2 {vq(XRES+8,2)}, v6, {srd(sX)}, s85 offen offset:128", "xr")))
    mains = []; fixed = {}
    for s in range(18):
        wb = WR + (s % D)*16; xb = (s % 2)*20
        base = len(mains)
        for m in range(5):
            x = aq(xb + 4*m)
            def acc(a): return (vq(a), "0" if s == 0 else vq(a))
            d, c = acc(KA + 4*m); mains.append(f"{MF} {d}, {aq(wb+4)}, {x}, {c}")
            d, c = acc(VA + 4*m); mains.append(f"{MF} {d}, {x}, {aq(wb+8)}, {c}")
            d, c = acc(EA + 4*m); mains.append(f"{MF} {d}, {aq(wb+12)}, {x}, {c}")
            if m < 4:
                d, c = acc(QA + 4*m); mains.append(f"{MF} {d}, {aq(wb)}, {x}, {c}")
        t_ = stamp_txt(f"@q{s}") if s else None
        if t_: fixed.setdefault(base - 1, []).append(t_)
        if s in (7, 11): fixed.setdefault(base, []).extend([f"@flexdone{0 if s == 7 else 1}", "@waitlg_all", "s_barrier"])
        if s + 1 < 18:
            for k, l in enumerate(x_reads(s+1)): fixed.setdefault(base + 1 + 2*k, []).append(l)
            fixed.setdefault(base + 18, []).append(f"@need {aq(WR + ((s+1) % D)*16, 16)} {aq(((s+1) % 2)*20, 20)}")
        if s + D - 1 < 18:
            for k, l in enumerate(wq_loads(s + D - 1)): fixed.setdefault(base + 2 + 4*k if k < 4 else base + 16, []).append(l)
    fixed.setdefault(19*7 - 3, []).append(f"""s_mul_i32 s88, s{sJ1}, 82944
s_add_u32 s88, s88, {WOP}
s_add_u32 s89, s88, 82944
s_lshl_b32 s76, s{sW}, 10
s_mul_i32 s79, s{sRP}, 9216
s_add_u32 s79, s79, s88
s_sub_u32 s90, s79, 1024
s_sub_u32 s91, s89, 1024
s_cmp_eq_u32 s{sRP}, 0
s_cselect_b32 s90, s91, s90
s_add_u32 s79, s79, s76""")
    nwo = 21
    for n in range(nwo):
        at = 19*7 + 4 + (n * (19*cfg.wospan)) // nwo
        if n == 20: pre = f"s_mov_b32 m0, {80*1024}\ns_mov_b32 s79, s90"
        else: pre = "s_mov_b32 m0, s76\ns_add_u32 s76, s76, 4096"
        fixed.setdefault(at, []).append(pre)
        fixed.setdefault(at + 1, []).append((f"buffer_load_dwordx4 v{vL16}, {srd(sWS)}, s79 offen sc1 lds", "wo"))
        if n < 19: fixed.setdefault(at + 2, []).append("s_add_u32 s79, s79, 4096\ns_sub_u32 s91, s79, 82944\ns_cmp_ge_u32 s79, s89\ns_cselect_b32 s79, s91, s79")
    sched(P, mains, fixed, flex)
    stamp("GEMM1 done")
    P("@waitvm wo\ns_barrier")
    for z in range(2): P.extend(unit_dma(2, z, W2SCR))
    QO, KO, VO, XO = 112, 128, 148, 160
    P(f"""s_lshl_b32 s84, s{sW}, 10
s_add_u32 s84, s84, {VXS}
v_lshl_add_u32 v6, v{vI}, 1, s84
v_add_u32 v7, 512, v6
v_cmp_eq_u32 vcc, 1, v{vG}
v_cndmask_b32 v6, v7, v6, vcc
v_lshl_add_u32 v7, v{vL}, 2, s84
v_min_u32 v8, 2, v{vI}
v_mul_u32_u24 v8, 160, v8
v_lshl_add_u32 v8, v{vG}, 3, v8
v_add_u32 v8, s84, v8""")
    P(f"v_mov_b32 v5, s99\ns_mov_b32 exec_hi, 0xffff\nds_write_b32 v7, v5 offset:320\ns_mov_b32 exec_hi, -1")
    for m in range(5):
        r = QO + 4*m + 2 if m < 4 else 172
        P(f"v_cvt_pk_bf16_f32 v{r}, v{EA+4*m}, v{EA+4*m+1}")
        P(f"ds_write_b16 v6, v{r} offset:{32*m}\nds_write_b16_d16_hi v6, v{r} offset:{160+32*m}")
    SA = 176
    prev = [4, 0, 4, 2]; pmask = [ME, MP, MO, MP]
    def kop(m): P(f"v_cvt_pk_bf16_f32 v{KO+4*m}, v{KA+4*m}, v{KA+4*m+1}\nv_cvt_pk_bf16_f32 v{KO+4*m+1}, v{KA+4*m+2}, v{KA+4*m+3}\nv_cvt_pk_bf16_f32 v{KO+4*m+2}, v{EA+4*m+2}, v{EA+4*m+3}\nv_mov_b32 v{KO+4*m+3}, 0")
    def qop(m): P(f"v_cvt_pk_bf16_f32 v{QO+4*m}, v{QA+4*m}, v{QA+4*m+1}\nv_cvt_pk_bf16_f32 v{QO+4*m+1}, v{QA+4*m+2}, v{QA+4*m+3}\nv_mov_b32 v{QO+4*m+3}, 0")
    kop(4)
    for m in range(4):
        qop(m); kop(m)
        if m: P(f"{MF} {vq(SA+8*(m-1)+4)}, {vq(KO+4*(m-1))}, {vq(QO+4*(m-1))}, {vq(MS)}")
        P(f"{MF} {vq(SA+8*m)}, {vq(KO+4*prev[m])}, {vq(QO+4*m)}, {vq(pmask[m])}")
    vorder = [4, 0, 1, 4, 2, 3]
    for k, m in enumerate(vorder):
        P(f"v_cvt_pk_bf16_f32 v{VO+2*k}, v{VA+4*m}, v{VA+4*m+1}\nv_cvt_pk_bf16_f32 v{VO+2*k+1}, v{VA+4*m+2}, v{VA+4*m+3}")
        if k == 0: P(f"{MF} {vq(SA+28)}, {vq(KO+12)}, {vq(QO+12)}, {vq(MS)}")
    P("@waitlg_all")
    for k, m in enumerate(vorder): P(f"ds_read_b64 {vq(XO+2*k,2)}, v8 offset:{32*m}")
    MX = 208
    c = (18 ** -0.5) * 1.4426950408889634
    P(f"s_mov_b32 s84, {hexf(c)}")
    for m in range(4):
        s = SA + 8*m
        P(f"v_max3_f32 v{MX+m}, v{s}, v{s+1}, v{s+2}\nv_max3_f32 v{MX+4+m}, v{s+3}, v{s+4}, v{s+5}")
    for m in range(4):
        s = SA + 8*m
        P(f"v_max3_f32 v{MX+m}, v{MX+m}, v{s+6}, v{s+7}")
    for m in range(4): P(f"v_max_f32 v{MX+m}, v{MX+m}, v{MX+4+m}")
    for sw in ["v_permlane16_swap_b32", "v_permlane32_swap_b32"]:
        for m in range(4): P(f"v_mov_b32 v{MX+4+m}, v{MX+m}")
        for m in range(4): P(f"{sw} v{MX+m}, v{MX+4+m}")
        for m in range(4): P(f"v_max_f32 v{MX+m}, v{MX+m}, v{MX+4+m}")
    for m in range(4): P(f"v_mul_f32 v{MX+m}, s84, v{MX+m}")
    PO = 216; OA = 16; OX = 32
    for m in range(4):
        s = SA + 8*m
        for k in range(8): P(f"v_fma_f32 v{s+k}, v{s+k}, s84, -v{MX+m}")
        if m:
            o = [0, 2, 6, 8][m-1]
            P(f"{MF} {vq(OX+4*(m-1))}, {vq(XO+o)}, {vq(PO+4*(m-1))}, 0")
            P(f"{MF} {vq(OA+4*(m-1))}, {vq(VO+o)}, {vq(PO+4*(m-1))}, 0")
        for k in range(8): P(f"v_exp_f32 v{s+k}, v{s+k}")
        for k in range(4): P(f"v_cvt_pk_bf16_f32 v{PO+4*m+k}, v{s+2*k}, v{s+2*k+1}")
    P(f"""s_mul_i32 s84, s{sG1}, 73728
s_add_u32 s84, s84, {OP}
{MF} {vq(OX+12)}, {vq(XO+8)}, {vq(PO+12)}, 0
{MF} {vq(OA+12)}, {vq(VO+8)}, {vq(PO+12)}, 0
s_lshl_b32 s85, s{sJ1}, 1
s_lshr_b32 s86, s{sW}, 1
s_add_u32 s85, s85, s86
s_lshl_b32 s85, s85, 12
s_and_b32 s86, s{sW}, 1
s_lshl_b32 s86, s86, 9
s_add_u32 s85, s85, s86
s_add_u32 s85, s85, s84
s_lshr_b32 s87, s{sJ1}, 2
s_add_u32 s87, s87, 16
s_lshl_b32 s87, s87, 12
s_and_b32 s86, s{sJ1}, 3
s_lshl_b32 s86, s86, 8
s_add_u32 s87, s87, s86
s_lshl_b32 s86, s{sW}, 2
s_add_u32 s87, s87, s86
s_add_u32 s87, s87, s84
v_and_b32 v6, 1, v{vG}
v_lshlrev_b32 v6, 10, v6
v_lshrrev_b32 v7, 1, v{vG}
v_lshl_add_u32 v6, v7, 8, v6
v_lshl_add_u32 v6, v{vI}, 4, v6
v_lshlrev_b32 v7, 10, v{vG}
v_lshl_add_u32 v7, v{vI}, 4, v7""")
    for m in range(4): P(f"v_rcp_f32 v{MX+m}, v{OX+4*m+2}")
    OP0 = 112
    for p in range(2):
        for m in (2*p, 2*p+1):
            for r in range(4): P(f"v_mul_f32 v{OA+4*m+r}, v{OA+4*m+r}, v{MX+m}")
            P(f"v_cvt_pk_bf16_f32 v{OP0+2*m}, v{OA+4*m}, v{OA+4*m+1}\nv_cvt_pk_bf16_f32 v{OP0+2*m+1}, v{OA+4*m+2}, v{OA+4*m+3}")
        for m in (2*p, 2*p+1):
            for r in range(2): P(f"v_mul_f32 v{OX+4*m+r}, v{OX+4*m+r}, v{MX+m}")
        b = OP0 + 4*p
        P(f"v_permlane16_swap_b32 v{b}, v{b+2}\nv_permlane16_swap_b32 v{b+1}, v{b+3}")
        P(f"buffer_store_dwordx4 {vq(OP0+4*p)}, v6, {srd(sWS)}, s85 offen offset:{2048*p} sc1", "o")
        for m in (2*p, 2*p+1): P(f"v_cvt_pk_bf16_f32 v{OP0+8+m}, v{OX+4*m}, v{OX+4*m+1}")
    P(f"v_permlane16_swap_b32 v{OP0+8}, v{OP0+9}\nv_permlane16_swap_b32 v{OP0+10}, v{OP0+11}")
    P(f"v_permlane32_swap_b32 v{OP0+8}, v{OP0+10}")
    P(f"buffer_store_dword v{OP0+8}, v7, {srd(sWS)}, s87 offen sc1", "o")
    stamp("attn done")
    def two_flags(vd, grp_base, set_base):
        return f"""s_lshl_b32 s86, s{sG1}, 12
s_lshl_b32 s87, s{sJ1}, 4
s_add_u32 s86, s86, s87
s_add_u32 s86, s86, {grp_base}
s_lshl_b32 s87, s{sJ1}, 12
s_lshl_b32 s76, s{sG1}, 2
s_add_u32 s87, s87, s76
s_add_u32 s87, s87, {set_base}
v_mov_b32 v{vd}, s87
v_mov_b32 v5, s86
v_cmp_eq_u32 vcc, 0, v0
v_cndmask_b32 v{vd}, v{vd}, v5, vcc
v_cmp_gt_u32 vcc, 2, v0
v_cndmask_b32 v{vd}, v13, v{vd}, vcc""".split("\n")
    def grp_poll_addr(vd, sg, base):
        return f"""s_lshl_b32 s86, s{sg}, 12
s_add_u32 s86, s86, {base}
v_and_b32 v{vd}, 7, v{vL}
v_lshl_add_u32 v{vd}, v{vd}, 4, s86""".split("\n")
    def set_poll_addr(vd, sj, base):
        return f"""s_lshl_b32 s86, s{sj}, 12
s_add_u32 s86, s86, {base}
v_and_b32 v{vd}, 31, v{vL}
v_lshl_add_u32 v{vd}, v{vd}, 2, s86""".split("\n")
    def unpack(dst, src, n):
        return sum([[f"v_lshlrev_b32 v{dst+2*k}, 16, v{src+k}", f"v_and_b32 v{dst+2*k+1}, s98, v{src+k}"] for k in range(n)], [])
    HA = 16
    P.extend(two_flags(14, F1G, F1S)); P.extend(grp_poll_addr(15, sG1, F1G))
    P.extend(unpack(HA, XRES, 10))
    def wo_reg(s, t):
        n = s*5 + t
        return aq(4*n) if n < 64 else vq(152 + 4*(n-64))
    P(f"""v_add_u32 v10, 41472, v{vL16}
v_and_b32 v11, 7, v{vI}
v_lshlrev_b32 v11, 4, v11
v_lshl_add_u32 v11, v{vG}, 7, v11
v_add_u32 v12, 41472, v11""")
    wor = []
    for s in range(18):
        for t in range(5):
            reg = (vL16 if s < 9 else 10) if t < 4 else (11 if s < 9 else 12)
            wor.append(f"ds_read_b128 {wo_reg(s,t)}, v{reg} offset:{WOB + (s % 9)*4608 + 1024*t}")
    P.extend(wor[:cfg.nwo1])
    P("@waitvm o\ns_barrier")
    set_flag(14)
    stamp("F1 set")
    P.add(poll_pre(15, 46))
    P.extend(wor[cfg.nwo1:])
    P(f"""s_mul_i32 s84, s{sG1}, 73728
s_lshl_b32 s85, s{sW}, 10
s_add_u32 s84, s84, s85
s_add_u32 s74, s84, {OP}
s_add_u32 s75, s74, 73728
s_lshl_b32 s78, s{sRP}, 13
s_add_u32 s78, s78, s74
s_add_u32 s84, s84, {HP}
s_mul_i32 s85, s{sJ1}, 9
v_add_u32 v6, s85, v{vG}
v_lshrrev_b32 v7, 2, v6
v_lshlrev_b32 v7, 12, v7
v_and_b32 v6, 3, v6
v_lshl_add_u32 v6, v6, 8, v7
v_lshl_add_u32 v6, v{vI}, 4, v6
v_add_u32 v6, s84, v6
s_add_u32 s85, s85, 8
s_lshr_b32 s86, s85, 2
s_lshl_b32 s86, s86, 12
s_and_b32 s85, s85, 3
s_lshl_b32 s85, s85, 8
s_add_u32 s85, s85, s86
s_add_u32 s85, s85, s84
v_lshlrev_b32 v7, 4, v{vI}
v_lshl_add_u32 v7, v{vG}, 3, v7
v_add_u32 v7, s85, v7
v_cmp_gt_u32 vcc, 2, v{vG}
v_cndmask_b32 v7, v13, v7, vcc
v_add_u32 v8, 4096, v6
v_add_u32 v47, {W2SCR}, v94""")
    P(poll_check(15, 46))
    stamp("F1 seen")
    OF = 80
    for s in range(18):
        P(f"buffer_load_dwordx4 {vq(OF+4*s)}, v{vL16}, {srd(sWS)}, s78 offen sc1", "of")
        if s < 17: P(wrap(78, 4096, 75, 74))
    flex = []
    for l in set_poll_addr(15, sJF, F1S): flex.append((0, l))
    flex.append((0, poll_pre(15, 9)))
    for z in range(2):
        for l in unit_tr(z, 0, 48 + 16*z): flex.append((0, l.replace("v94", "v47")))
    for z in range(2):
        for l in [f"@need {vq(48+16*z,16)}"] + unit_st(2, z, 48 + 16*z): flex.append((0, l))
    for l in two_flags(14, F2G, F2S) + grp_poll_addr(46, sGF, F2G): flex.append((0, l))
    for l in f"""s_lshl_b32 s88, s{sJF}, 2
s_add_u32 s88, s88, s{sW}
s_mul_i32 s88, s88, {162*1024}
s_add_u32 s89, s88, {W2R}
s_add_u32 s88, s88, {W1R}
s_mul_i32 s92, s{sRF}, 5120
s_add_u32 s92, s92, s88
s_mov_b32 s90, s88
s_add_u32 s91, s88, {90*1024}
v_add_u32 v12, 4096, v{vL16}
s_mul_i32 s84, s{sJF}, 1152
s_lshl_b32 s85, s{sW}, 8
s_add_u32 s85, s85, s84
s_lshr_b32 s86, s{sW}, 1
s_lshl_b32 s86, s86, 6
s_and_b32 s87, s{sW}, 1
s_lshl_b32 s87, s87, 3
s_add_u32 s86, s86, s87
s_add_u32 s86, s86, s84
v_lshlrev_b32 v10, 4, v{vG}""".split("\n"): flex.append((0, l))
    mains = [f"{MF} {vq(HA+4*t)}, {wo_reg(s,t)}, {vq(OF+4*s)}, {vq(HA+4*t)}" for s in range(18) for t in range(5)]
    sched(P, mains, {}, flex)
    HQ = 36
    P(f"v_cvt_pk_bf16_f32 v{HQ}, v{HA}, v{HA+1}\nv_cvt_pk_bf16_f32 v{HQ+1}, v{HA+2}, v{HA+3}\nv_cvt_pk_bf16_f32 v{HQ+2}, v{HA+4}, v{HA+5}\nv_cvt_pk_bf16_f32 v{HQ+3}, v{HA+6}, v{HA+7}")
    P(f"buffer_store_dwordx4 {vq(HQ)}, v6, {srd(sWS)}, 0 offen sc1", "h")
    for k in range(4, 8): P(f"v_cvt_pk_bf16_f32 v{HQ+k}, v{HA+2*k}, v{HA+2*k+1}")
    P(f"buffer_store_dwordx4 {vq(HQ+4)}, v8, {srd(sWS)}, 0 offen sc1", "h")
    for k in range(8, 10): P(f"v_cvt_pk_bf16_f32 v{HQ+k}, v{HA+2*k}, v{HA+2*k+1}")
    P(f"buffer_store_dwordx2 {vq(HQ+8,2)}, v7, {srd(sWS)}, 0 offen sc1", "h")
    stamp("proj done")
    NR = 56; AF = 224
    ACA, ACB = 16, 96
    CA, CB = 96, 160
    passes = [("A", 5, ACA, CA), ("B", 4, ACB, CB), ("C1", 5, ACA, None), ("C2", 4, ACB, None)]
    steps = [(pi, p) for pi in range(4) for p in range(18)]
    cons = [(pi, p, t) for pi, p in steps for t in range(passes[pi][1])]
    slot = {f: n % NR for n, f in enumerate(cons)}
    def wload(n):
        pi, p, t = cons[n]; nt = passes[pi][1]; L = []
        if t == 0 and n > 0:
            if pi == 1 and p == 0:
                L.append(f"s_add_u32 s90, s88, {90*1024}\ns_add_u32 s91, s88, {162*1024}\ns_lshl_b32 s92, s{sRF}, 12\ns_add_u32 s92, s92, s90")
            elif pi >= 2 and p in (0, 10):
                o = 0 if pi == 2 else 90*1024
                beg = o + (0 if p == 0 else 10*nt*1024); end = o + (10 if p == 0 else 18)*nt*1024
                L.append(f"s_add_u32 s90, s89, {beg}\ns_add_u32 s91, s89, {end}\ns_mul_i32 s92, s{93 if p == 0 else 94}, {nt*1024}\ns_add_u32 s92, s92, s90")
            else: L.append(wrap(92, nt*1024, 91, 90))
        L.append((f"buffer_load_dwordx4 {aq(4*(n % NR))}, v{vL16 if t < 4 else 12}, {srd(sWS)}, s92 offen offset:{1024*(t % 4)}{cfg.wsc}", "w"))
        return L
    B1P = 232
    P(poll_check(15, 9))
    for p in range(4): P(f"buffer_load_dwordx4 {vq(B1P+4*p)}, v10, {srd(sB1)}, s85 offen offset:{64*p}", "b1")
    P(f"buffer_load_dwordx2 {vq(B1P+16,2)}, v10, {srd(sB1)}, s86 offen offset:1024", "b1")
    for n in range(cfg.npre1): P.extend(wload(n))
    P("@waitvm h\n@waitlg_all\ns_barrier")
    set_flag(14)
    stamp("F2 set")
    for n in range(cfg.npre1, cfg.npre): P.extend(wload(n))
    P.extend(unpack(CA, B1P, 8)); P.extend(unpack(CA+16, B1P+16, 2))
    P(f"""s_mul_i32 s84, s{sGF}, 73728
s_lshl_b32 s85, s{sW}, 10
s_add_u32 s84, s84, s85
s_add_u32 s74, s84, {HP}
s_add_u32 s75, s74, 73728
s_lshl_b32 s77, s{sRF}, 12
s_add_u32 s77, s77, s74
v_add_u32 v6, s85, v{vL16}
v_add_u32 v7, 36864, v6
v_add_u32 v8, 36864, v{vL16}
v_add_u32 v9, {HB}, v{vL16}
v_add_u32 v10, {HB + 36864}, v{vL16}
s_and_b32 s93, s{sGF}, 15
s_lshr_b32 s94, s93, 1
s_mul_i32 s93, s93, 5
s_lshr_b32 s93, s93, 3""")
    if not cfg.rot: P("s_mov_b32 s93, 0\ns_mov_b32 s94, 0")
    P.extend(set_poll_addr(15, sJF, F2S))
    poll(46, 5)
    stamp("F2 seen")
    HR = 160
    for s in range(18):
        P(f"buffer_load_dwordx4 {vq(HR+4*s)}, v{vL16}, {srd(sWS)}, s77 offen sc1", "hf")
        if s < 17: P(wrap(77, 4096, 75, 74))
    ST = 120; NT = 128
    P.extend(stats([[HR + k for k in range(72)]], ST))
    for sw in ["v_permlane16_swap_b32", "v_permlane32_swap_b32"]:
        for k in range(2): P(f"v_mov_b32 v{ST+2+k}, v{ST+k}")
        for k in range(2): P(f"{sw} v{ST+k}, v{ST+2+k}")
        for k in range(2): P(f"v_add_f32 v{ST+k}, v{ST+k}, v{ST+2+k}")
    finish_stats([ST])
    stamp("LN2 stats")
    def ln2(s):
        return normalize(HR + 4*s, ST, NT + 8*(s & 1)) + [f"ds_write_b128 v{6 if s < 9 else 7}, {vq(HR+4*s)} offset:{XN + (s % 9)*4096}"]
    for s in range(3): P.extend(ln2(s))
    P("@waitlg_all\ns_barrier")
    def act_reads(i):
        pi, p = steps[i]
        b = AF + (i % 2)*16
        if pi < 2: reg = vL16 if p < 9 else 8
        else: reg = 9 if p < 9 else 10
        return [f"ds_read_b128 {aq(b+4*m)}, v{reg} offset:{((p % 9)*4 + m)*1024}" for m in range(4)]
    P.extend(act_reads(0))
    stamp("FFN start")
    mains = []; fixed = {}; start = []
    nl = cfg.npre
    bar = {2: "a", 5: "b", 9: "c", 13: "d", 35: "0", 45: "1"}
    for i, (pi, p) in enumerate(steps):
        name, nt, acc, cin = passes[pi]
        base = len(mains); start.append(base)
        b = AF + (i % 2)*16
        t_ = stamp_txt(f"@{name}{p}") if i else None
        if t_: fixed.setdefault(base - 1, []).append(t_)
        if i in bar: fixed.setdefault(base, []).extend([f"@flexdone{bar[i]}", "@waitlg_all", "s_barrier"])
        for t in range(nt):
            w = aq(4*slot[(pi, p, t)])
            for m in range(4):
                d = vq(acc + (t*4 + m)*4)
                c = d if p > 0 else (vq(cin + 4*t) if cin is not None else "0")
                mains.append(f"{MF} {d}, {w}, {aq(b+4*m)}, {c}")
            if nl < len(cons):
                if nl == 162 - 24: fixed.setdefault(base + 4*t + 3, []).append(poll_pre(15, 14))
                if nl == 162: fixed.setdefault(base + 4*t + 1, []).append(poll_check(15, 14))
                L = wload(nl); nl += 1
                fixed.setdefault(base + 4*t + 1, []).extend(L)
        if i + 1 < len(steps):
            for k, l in enumerate(act_reads(i+1)): fixed.setdefault(base + 2*k + (2 if i in bar else 0), []).append(l)
            pj, pp = steps[i+1]
            nxt = " ".join(aq(4*slot[(pj, pp, t)]) for t in range(passes[pj][1]))
            fixed.setdefault(base + 4*nt - 1, []).append(f"@need {nxt} {aq(AF + ((i+1) % 2)*16, 16)}")
    start.append(len(mains))
    S = lambda pi, p: start[pi*18 + p]
    flex = []
    for lo, hi, mk in [(3, 6, "a"), (6, 10, "b"), (10, 14, "c"), (14, 18, "d")]:
        for s in range(lo, hi):
            for l in ln2(s): flex.append((0, l))
        flex.append((0, f"@mark{mk}"))
    for l in unpack(CB, B1P+8, 8): flex.append((0, l))
    for k, (q, mod, sr, add) in enumerate([(f"s_lshl_b32 s84, s{sW}, 1", 10, 93, 0), (f"s_lshl_b32 s84, s{sW}, 1\ns_add_u32 s84, s84, 1", 10, 93, 0),
                                           (f"s_lshr_b32 s84, s{sW}, 1\ns_add_u32 s84, s84, 8", 10, 93, 0),
                                           (f"s_lshl_b32 s84, s{sW}, 1", 8, 94, 10), (f"s_lshl_b32 s84, s{sW}, 1\ns_add_u32 s84, s84, 1", 8, 94, 10)]):
        flex.append((0, q))
        flex.append((0, f"s_sub_u32 s84, s84, s{sr}\ns_cselect_b32 s85, {mod}, 0"))
        flex.append((0, f"s_add_u32 s84, s84, s85\ns_add_u32 s84, s84, {add}"))
        flex.append((0, "s_lshl_b32 s84, s84, 12"))
        if k == 2: flex.append((0, f"s_and_b32 s85, s{sW}, 1\ns_lshl_b32 s85, s85, 3\ns_add_u32 s84, s84, s85"))
        flex.append((0, f"v_add_u32 v{192+k}, s84, v9"))
    TQ = 176
    tq = [0]
    def epi1(acc, pair_tiles, m, wr):
        L = []
        q = TQ + 4*(tq[0] % 4); tq[0] += 1
        regs = [acc + (t*4 + m)*4 + r for t in pair_tiles for r in range(4)]
        for r in regs: L.append(f"v_mul_f32 v{r}, v{r}, |v{r}|")
        for k in range(len(regs)//2): L.append(f"v_cvt_pk_bf16_f32 v{q+k}, v{regs[2*k]}, v{regs[2*k+1]}")
        for k in range(len(regs)//2): L.append(f"v_pk_max_i16 v{q+k}, v{q+k}, 0")
        L.append(wr(q))
        return L
    at = S(1, 0) + 3
    for pr in range(2):
        for m in range(4):
            for l in epi1(ACA, [2*pr, 2*pr+1], m, lambda q: f"ds_write_b128 v{192+pr}, {vq(q)} offset:{m*1024}"): flex.append((at, l))
    for m in range(4):
        for l in epi1(ACA, [4], m, lambda q: f"ds_write_b64 v194, {vq(q,2)} offset:{m*1024}"): flex.append((at, l))
    flex.append((at, "@mark0"))
    at = S(2, 0) + 3
    for pr in range(2):
        for m in range(4):
            for l in epi1(ACB, [2*pr, 2*pr+1], m, lambda q: f"ds_write_b128 v{195+pr}, {vq(q)} offset:{m*1024}"): flex.append((at, l))
    flex.append((at, "@mark1"))
    at = S(2, 10)
    setup = f"""s_lshl_b32 s84, s{sGF}, 6
s_add_u32 s84, s84, s{sJF}
s_mul_i32 s84, s84, 9216
s_add_u32 s84, s84, {PART}
v_lshrrev_b32 v14, 3, v{vI}
v_mul_u32_u24 v14, {8*9216}, v14
v_and_b32 v15, 7, v{vI}
v_lshl_add_u32 v14, v15, 4, v14
v_lshl_add_u32 v14, v{vG}, 7, v14
v_add_u32 v14, s84, v14
s_lshr_b32 s85, s{sW}, 1
s_lshl_b32 s85, s85, 9
s_and_b32 s86, s{sW}, 1
s_lshl_b32 s86, s86, 3
s_add_u32 s85, s85, s86
s_add_u32 s85, s85, 8192
v_add_u32 v15, s85, v14
s_lshl_b32 s85, s{sW}, 11
v_add_u32 v14, s85, v14
s_mov_b32 s80, 0
s_mov_b32 s81, {16*9216}
s_mov_b32 s82, {32*9216}
s_mov_b32 s83, {48*9216}
s_lshl_b32 s86, s{sGF}, 12
s_lshl_b32 s87, s{sJF}, 4
s_add_u32 s87, s87, s86
s_add_u32 s87, s87, {F3A}
v_mov_b32 v250, s87
v_cmp_eq_u32 vcc, 0, v0
s_add_u32 s86, s86, {F3A}
v_and_b32 v251, 7, v{vL}
v_cndmask_b32 v250, v13, v250, vcc
v_lshl_add_u32 v251, v251, 4, s86
s_lshl_b32 s84, s{sGF}, 3
s_add_u32 s84, s84, s{sJF}
s_mul_i32 s84, s84, {8*9216}
s_add_u32 s84, s84, {PART}
s_lshl_b32 s85, s{sW}, 11
s_add_u32 s85, s85, s84
v_add_u32 v252, s85, v{vL16}
s_lshl_b32 s85, s{sW}, 8
s_add_u32 s85, s85, s84
s_add_u32 s85, s85, 8192
v_lshl_add_u32 v7, v{vI}, 4, s85
v_cmp_gt_u32 vcc, 16, v{vL}
v_lshrrev_b32 v5, 5, v{vL}
v_bfe_u32 v6, v{vL}, 3, 2
v_cndmask_b32 v7, v13, v7, vcc
v_and_b32 v8, 7, v{vL}
s_mul_i32 s84, s{sGF}, 73728
s_lshr_b32 s85, s{sJF}, 1
s_lshl_b32 s86, s85, 10
s_add_u32 s84, s84, s86
s_and_b32 s86, s{sJF}, 1
s_lshl_b32 s87, s86, 7
s_add_u32 s84, s84, s87
s_add_u32 s84, s84, {HP}
v_lshlrev_b32 v253, 12, v5
v_lshl_add_u32 v253, v6, 8, v253
v_lshl_add_u32 v253, v8, 4, v253
s_lshl_b32 s87, s{sW}, 14
s_add_u32 s74, s87, s84
s_lshr_b32 s87, s{sW}, 1
s_lshl_b32 s87, s87, 12
s_and_b32 s76, s{sW}, 1
s_lshl_b32 s76, s76, 9
s_add_u32 s87, s87, s76
s_add_u32 s87, s87, 65536
s_add_u32 s75, s87, s84
s_add_u32 s77, s74, 8192
s_lshl_b32 s84, s{sGF}, 6
s_and_b32 s87, s85, 1
s_lshl_b32 s87, s87, 5
s_add_u32 s84, s84, s87
s_lshr_b32 s87, s85, 1
s_add_u32 s84, s84, s87
s_lshl_b32 s87, s86, 4
s_add_u32 s84, s84, s87
s_mul_i32 s84, s84, 1152
v_lshlrev_b32 v6, 4, v6
v_lshl_add_u32 v6, v5, 6, v6
v_mul_u32_u24 v254, 2304, v8
v_add3_u32 v254, v254, v6, s84
s_lshl_b32 s78, s{sW}, 8
s_lshl_b32 s79, s{sW}, 5
v_cndmask_b32 v255, v13, v254, vcc
s_add_u32 s79, s79, 1024
s_mov_b32 s95, 0x00003f80
s_mov_b32 s96, 0x3f800000"""
    for l in setup.split("\n"): flex.append((at, l))
    RH = 200; RS = 224
    for r, (sh, sb, bo) in enumerate([(74, 78, 0), (75, 79, 0), (77, 78, 128)]):
        flex.append((at, (f"buffer_load_dwordx4 {vq(RH+8*r)}, v253, {srd(sWS)}, s{sh} offen sc1", "rh")))
        flex.append((at, (f"buffer_load_dwordx4 {vq(RH+8*r+4)}, v6, {srd(sB2)}, s{sb} offen offset:{bo}", "rh")))
    def acc_quad(T, q, first):
        L = []
        for d in range(4):
            L.append(f"v_dot2_f32_bf16 v{T+2*d}, v{q+d}, s95, {'0' if first else 'v%d' % (T+2*d)}")
            L.append(f"v_dot2_f32_bf16 v{T+2*d+1}, v{q+d}, s96, {'0' if first else 'v%d' % (T+2*d+1)}")
        return L
    def epi2(acc, tiles, m, st):
        q = TQ + 4*(tq[0] % 4); tq[0] += 1
        regs = [acc + (t*4 + m)*4 + r for t in tiles for r in range(4)]
        L = [f"v_cvt_pk_bf16_f32 v{q+k}, v{regs[2*k]}, v{regs[2*k+1]}" for k in range(len(regs)//2)]
        L.append(st(q))
        return L
    at = S(3, 0) + 3
    for m in range(4):
        for pr in range(2):
            for l in epi2(ACA, [2*pr, 2*pr+1], m, lambda q: (f"buffer_store_dwordx4 {vq(q)}, v14, {srd(sWS)}, s{80+m} offen offset:{512*pr} sc1", "p1")): flex.append((at, l))
        for l in epi2(ACA, [4], m, lambda q: (f"buffer_store_dwordx2 {vq(q,2)}, v15, {srd(sWS)}, s{80+m} offen sc1", "p1")): flex.append((at, l))
    flex.append((at, "@mark2"))
    for r in range(3):
        for l in acc_quad(RS+8*r, RH+8*r, True) + acc_quad(RS+8*r, RH+8*r+4, False): flex.append((at, l))
    fa, fb, fc = cfg.f3
    fixed.setdefault(S(3, fa), []).extend(["@flexdone2", "@waitvm p1", "s_barrier", f"v_mov_b32 v5, s{sTAG}",
        (f"buffer_store_dword v5, v250, {srd(sWS)}, 0 offen sc1", "flag")])
    fixed.setdefault(S(3, fb), []).append(poll_pre(251, 5))
    def red_loads(vaddr, off, R0):
        L = ["s_mov_b32 s84, 0"]
        for j in range(8):
            L.append((f"buffer_load_dwordx4 {vq(R0+4*j)}, v{vaddr}, {srd(sWS)}, s84 offen offset:{off} sc1", "rd"))
            if j < 7: L.append("s_add_u32 s84, s84, 9216")
        return L
    def red_sum(r, R0, vo, so, ooff):
        T = RS + 8*r; L = []
        for j in range(8): L += acc_quad(T, R0+4*j, False)
        for d in range(4): L.append(f"v_cvt_pk_bf16_f32 v{T+d}, v{T+2*d}, v{T+2*d+1}")
        L.append((f"buffer_store_dwordx4 {vq(T)}, v{vo}, {srd(sOUT)}, s{so} offen offset:{ooff}", "out"))
        return L
    at = S(3, fc)
    flex.append((at, poll_check(251, 5)))
    for l in red_loads(252, 0, 16) + red_loads(7, 0, 48): flex.append((at, l))
    at = S(3, min(fc + 3, 17))
    rest = red_sum(0, 16, 254, 78, 0) + red_sum(1, 48, 255, 79, 0)
    for l in rest: flex.append((at, l))
    left = sched(P, mains, fixed, flex, keep=True, cap=cfg.cap)
    assert not any("L_slow" in (x[0] if isinstance(x, tuple) else x) for x in left)
    print("left over flex items", len(left))
    stamp("FFN done")
    for m in range(4):
        for pr in range(2):
            P.extend(epi2(ACB, [2*pr, 2*pr+1], m, lambda q: (f"buffer_store_dwordx4 {vq(q)}, v14, {srd(sWS)}, s{80+m} offen offset:{1024 + 512*pr} sc1", "p2")))
    P(f"v_add_u32 v250, {F3B - F3A}, v250\nv_add_u32 v251, {F3B - F3A}, v251")
    nleft = min(len(left), cfg.nleft)
    P.extend(left[:nleft])
    P("@waitvm p2\ns_barrier")
    set_flag(250)
    stamp("F3b set")
    P.extend(left[nleft:])
    poll(251, 5)
    stamp("F3b seen")
    P.extend(red_loads(252, 1024, 96))
    P.extend(red_sum(2, 96, 254, 78, 128))
    P(f"""s_cmp_lg_u32 s2, 0
s_cbranch_scc1 L_noepoch
s_cmp_lg_u32 s{sW}, 0
s_cbranch_scc1 L_noepoch""")
    P(f"v_lshrrev_b32 v6, 5, v{vL}\nv_lshlrev_b32 v6, 12, v6\nv_and_b32 v7, 31, v{vL}\nv_lshl_add_u32 v6, v7, 2, v6\nv_add_u32 v6, {F0S}, v6")
    for k in range(4):
        poll(6, 5)
        P("v_add_u32 v6, 8192, v6")
    P(f"v_mov_b32 v6, 0\nv_mov_b32 v5, s{sTAG}\ns_mov_b64 exec, 1\nbuffer_store_dword v5, v6, {srd(sWS)}, 0 offen\ns_mov_b64 exec, -1\nL_noepoch:")
    if cfg.stamps:
        P("s_waitcnt vmcnt(0)")
        stamp("end")
        P(f"s_lshl_b32 s84, s2, 2\ns_add_u32 s84, s84, s{sW}\ns_lshl_b32 s84, s84, 7\ns_add_u32 s84, s84, {STAMPS}\nv_mov_b32 v6, s84\ns_mov_b64 exec, 1")
        if cfg.dbg:
            P(f"v_mov_b32 v6, 0\ns_not_b32 s84, s{STAMP0}\nv_mov_b32 v5, s84\nbuffer_atomic_umax v5, v6, {srd(sR)}, 0 offen")
            for k in range(min(nstamp[0], 15)):
                P(f"v_mov_b32 v{16+k}, s{STAMP0+k}\nbuffer_atomic_umax v{16+k}, v6, {srd(sR)}, 0 offen offset:{4*k+4}")
        else:
          for k in range(nstamp[0]):
            P(f"v_mov_b32 v5, s{STAMP0+k}\nbuffer_store_dword v5, v6, {srd(sWS)}, 0 offen offset:{4*k}")
    P("L_end:\ns_endpgm")
    for x in slow: P(x)
    cfg.names = names
    return P

def sched(P, mains, fixed, flex, cap=2, keep=False):
    k = 0; marks = set()
    def put(it):
        t = it[0] if isinstance(it, tuple) else it
        if t.startswith("@mark"): marks.add(t[5:]); return 0
        if t.startswith("@flexdone"):
            nonlocal k
            while t[9:] not in marks:
                put(flex[k][1]); k += 1
            return 0
        P.add(it)
        return sum(1 for l in t.split("\n") if not l.startswith("@") and not l.endswith(":"))
    for n, m in enumerate(mains):
        P.add(m)
        c = 0
        for it in fixed.get(n, []): c += put(it)
        while k < len(flex) and c < cap and flex[k][0] <= n:
            it = flex[k][1]; k += 1
            c += put(it)
    if keep: return [f[1] for f in flex[k:]]
    while k < len(flex):
        it = flex[k][1]; k += 1
        put(it)

import struct
def hexf(x): return hex(struct.unpack("<I", struct.pack("<f", x))[0])

HEADER = open("cdna_kernels/" + NAME + ".s.ref").read().split("; Override launch geometry")[0]
def build(cfg, verbose=False):
    body = finalize(gen(cfg), verbose)
    k = NAME + "_kernel"
    return (HEADER + f"; @launch grid=(256,1,1) block=(256,1,1) lds={LDS_BYTES}\n"
        + f'.amdgcn_target "amdgcn-amd-amdhsa--gfx950"\n.text\n.globl {k}\n.p2align 8\n.type {k},@function\n{k}:\n' + body
        + f""".section .rodata,"a"
.p2align 6
.amdhsa_kernel {k}
  .amdhsa_next_free_vgpr 512
  .amdhsa_next_free_sgpr 102
  .amdhsa_accum_offset 256
  .amdhsa_group_segment_fixed_size 0
  .amdhsa_kernarg_size 88
  .amdhsa_user_sgpr_count 2
  .amdhsa_user_sgpr_kernarg_segment_ptr 1
  .amdhsa_system_sgpr_workgroup_id_x 1
.end_amdhsa_kernel
""")

if __name__ == "__main__":
    cfg = Cfg()
    out = sys.argv[1]
    for a in sys.argv[2:]:
        k, v = a.split("=")
        setattr(cfg, k, eval(v))
    open(out, "w").write(build(cfg, True))
    if cfg.stamps: open(out + ".names", "w").write("|".join(cfg.names))
```

```python
import sys
from ir import *

NAME = "sequential_preLN__sliding_local_dilated__dense_activation_squared_relu__prompt"

F0S, F1G, F1S, F2G, F2S, F3A, F3B = 0x10000, 0x20000, 0x48000, 0x50000, 0x78000, 0x80000, 0xA0000
WQP, WOP, OP, HP, W1R, W2R, PART, STAMPS = 0x100000, 0x300000, 0x400000, 0x700000, 0xA00000, 0x1000000, 0x1600000, 0x3000000
WS_BYTES = 0x4000000
OOB = 0x40000000
LDS_BYTES = 163840
XB = 71680
R0SCR = 49152
W1SCR = 0
WOB = 0
W2SCR = 98304
VXS = 139264
XN, HB = 0, 73728
sX, sWQ, sWO, sW1, sW2, sB1, sB2, sOUT, sWS, sR = 28, 32, 36, 40, 44, 48, 52, 56, 60, 64
sW, sG1, sJ1, sGF, sJF, sTAG = 68, 69, 70, 71, 72, 73
def srd(n): return f"s[{n}:{n+3}]"
def vq(n, k=4): return f"v[{n}:{n+k-1}]"
def aq(n, k=4): return f"a[{n}:{n+k-1}]"
MF = "v_mfma_f32_16x16x32_bf16"
vL, vI, vG, vL16 = 1, 2, 3, 4

class Cfg:
    stamps = False
    nx1 = 6
    p1depth = 8
    npre = 25
    rot = True
    npre1 = 12
    wospan = 10
    f3 = (5, 9, 11)
    nleft = 60
    dbg = False
    diag = None
    wsbase = 0
    only = None
    cap = 2
    wsc = " sc1"
    nwo1 = 40
    stop = None

def gen(cfg):
    P = Prog()
    nstamp = [0]
    names = []
    def stamp_txt(name):
        if cfg.stamps and (cfg.only is None or name in cfg.only or name == "end") and not (cfg.only is None and name.startswith("@")):
            k = nstamp[0]; nstamp[0] += 1; names.append(name); assert k < 20
            return f"{'s_memtime' if cfg.stamps == 2 else 's_memrealtime'} s[100:101]\n@waitlg_all\ns_mov_b32 s{STAMP0+k}, s100"
        return None
    def stamp(name):
        t = stamp_txt(name)
        if t: P(t)
    STAMP0 = 4
    npoll = [0]
    def poll(vaddr, vtmp):
        k = npoll[0]; npoll[0] += 1
        P(f"""s_mov_b32 s97, 0
L_poll{k}:
buffer_load_dword v{vtmp}, v{vaddr}, {srd(sWS)}, 0 offen sc1
s_add_u32 s97, s97, 1
s_waitcnt vmcnt(0)
v_cmp_ne_u32 vcc, s{sTAG}, v{vtmp}
s_cmp_gt_u32 s97, 400000
s_cbranch_scc1 L_pdone{k}
s_cbranch_vccnz L_poll{k}
L_pdone{k}:""")
    slow = []
    def poll_pre(vaddr, vtmp):
        return (f"buffer_load_dword v{vtmp}, v{vaddr}, {srd(sWS)}, 0 offen sc1", "pl")
    def poll_check(vaddr, vtmp):
        k = npoll[0]; npoll[0] += 1
        slow.append(f"""L_slow{k}:
s_mov_b32 s97, 0
L_poll{k}:
buffer_load_dword v{vtmp}, v{vaddr}, {srd(sWS)}, 0 offen sc1
s_add_u32 s97, s97, 1
s_waitcnt vmcnt(0)
v_cmp_ne_u32 vcc, s{sTAG}, v{vtmp}
s_cmp_gt_u32 s97, 400000
s_cbranch_scc1 L_back{k}
s_cbranch_vccnz L_poll{k}
s_branch L_back{k}""")
        return f"v_cmp_ne_u32 vcc, s{sTAG}, v{vtmp}\ns_cbranch_vccnz L_slow{k}\nL_back{k}:"
    def wrap(sr, step, send, sbeg):
        return f"s_add_u32 s{sr}, s{sr}, {step}\ns_cmp_eq_u32 s{sr}, s{send}\ns_cselect_b32 s{sr}, s{sbeg}, s{sr}"
    def set_flag(vaddr):
        P(f"v_mov_b32 v5, s{sTAG}")
        P(f"buffer_store_dword v5, v{vaddr}, {srd(sWS)}, 0 offen sc1", "flag")

    P("""s_cmp_ge_u32 s2, 256
s_cbranch_scc1 L_end
s_load_dwordx16 s[4:19], s[0:1], 0
s_load_dwordx4 s[20:23], s[0:1], 64
s_load_dwordx2 s[24:25], s[0:1], 80""")
    if cfg.stamps: P("s_memtime s[26:27]" if cfg.stamps == 2 else "s_memrealtime s[26:27]")
    P(f"""v_lshrrev_b32 v5, 6, v0
v_and_b32 v{vL}, 63, v0
v_readfirstlane_b32 s{sW}, v5
v_and_b32 v{vI}, 15, v0
v_lshrrev_b32 v{vG}, 4, v{vL}
v_lshlrev_b32 v{vL16}, 4, v{vL}
s_and_b32 s74, s2, 7
s_lshr_b32 s75, s2, 3
s_lshl_b32 s{sG1}, s74, 2
s_lshr_b32 s76, s75, 3
s_add_u32 s{sG1}, s{sG1}, s76
s_and_b32 s{sJ1}, s75, 7
s_lshr_b32 s{sGF}, s74, 2
s_lshl_b32 s{sGF}, s{sGF}, 4
s_lshr_b32 s76, s75, 1
s_add_u32 s{sGF}, s{sGF}, s76
s_and_b32 s{sJF}, s74, 3
s_lshl_b32 s{sJF}, s{sJF}, 1
s_and_b32 s76, s75, 1
s_add_u32 s{sJF}, s{sJF}, s76
s_lshl_b32 s77, s{sW}, 5
s_add_u32 s77, s77, s{sG1}
s_mul_i32 s78, s{sJ1}, 144""")
    sRP, sRF = 0, 1
    P(f"""s_cmp_lt_u32 s77, 72
s_cbranch_scc0 L_r0_wo
v_mul_u32_u24 v6, 2428, v{vL}
v_lshrrev_b32 v6, 16, v6
v_mul_u32_u24 v7, 27, v6
v_sub_u32 v7, v{vL}, v7
v_mul_u32_u24 v8, 7282, v7
v_lshrrev_b32 v8, 16, v8
v_mul_u32_u24 v9, 9, v8
v_sub_u32 v9, v7, v9
v_mul_u32_u24 v6, 3456, v6
v_mul_u32_u24 v8, 1152, v8
v_lshlrev_b32 v9, 4, v9
v_add3_u32 v5, v6, v8, v9
v_cmp_gt_u32 vcc, 54, v{vL}
s_mul_i32 s80, s77, {8*3456}
s_add_u32 s80, s80, s78
s_add_u32 s81, s80, {6912-1024}
s_add_u32 s82, s81, {6912-1024}
s_add_u32 s83, s82, {6912-1024}
s_branch L_r0_join
L_r0_wo:
v_mul_u32_u24 v6, 7282, v{vL}
v_lshrrev_b32 v6, 16, v6
v_mul_u32_u24 v7, 9, v6
v_sub_u32 v7, v{vL}, v7
v_mul_u32_u24 v6, 1152, v6
v_lshl_add_u32 v5, v7, 4, v6
v_cmp_gt_u32 vcc, 36, v{vL}
s_sub_u32 s79, s77, 72""")
    for G in range(2):
        if G: P("s_add_u32 s79, s79, 36")
        P(f"""s_lshr_b32 s84, s79, 2
s_mul_i32 s84, s84, 36
s_bfe_u32 s85, s79, 0x10001
s_mul_i32 s85, s85, 20
s_add_u32 s84, s84, s85
s_and_b32 s85, s79, 1
s_lshl_b32 s85, s85, 3
s_add_u32 s84, s84, s85
s_add_u32 s85, s84, 4
s_sub_u32 s86, s79, 64
s_mul_i32 s86, s86, 72
s_add_u32 s86, s86, 16
s_add_u32 s87, s86, 36
s_cmp_lt_u32 s79, 64
s_cselect_b32 s84, s84, s86
s_cselect_b32 s85, s85, s87
s_mul_i32 s84, s84, 1152
s_mul_i32 s85, s85, 1152
s_add_u32 s84, s84, s78
s_add_u32 s85, s85, s78
s_sub_u32 s{80+2*G}, s84, {1024*(2*G)}
s_sub_u32 s{81+2*G}, s85, {1024*(2*G+1)}""")
    P(f"""s_cmp_lt_u32 s77, 108
s_cselect_b32 s80, s80, {OOB}
s_cselect_b32 s81, s81, {OOB}
s_cselect_b32 s82, s82, {OOB}
s_cselect_b32 s83, s83, {OOB}
L_r0_join:
s_nop 1
v_mov_b32 v6, {OOB}
v_cndmask_b32 v5, v6, v5, vcc
s_lshl_b32 s84, s{sW}, 12
s_add_u32 s84, s84, {R0SCR}
s_mov_b32 m0, s84
s_waitcnt lgkmcnt(0)""")
    def mksrd(d, p, n):
        P(f"s_mov_b32 s{d}, s{p}\ns_and_b32 s{d+1}, s{p+1}, 0xffff\ns_mov_b32 s{d+2}, {n}\ns_mov_b32 s{d+3}, 0x00020000")
    P(f"""s_cmp_lt_u32 s77, 72
s_cselect_b32 s{sR}, s6, s8
s_cselect_b32 s{sR+1}, s7, s9
s_mov_b32 s85, {576*1152}
s_cselect_b32 s{sR+2}, {576*3456}, s85
s_and_b32 s{sR+1}, s{sR+1}, 0xffff
s_mov_b32 s{sR+3}, 0x00020000""")
    for q in range(4):
        P(f"buffer_load_dwordx4 v5, {srd(sR)}, s{80+q} offen offset:{1024*q} lds", "r0")
    mksrd(sX, 4, 2048*1152)
    if cfg.wsbase: P(f"s_add_u32 s24, s24, {cfg.wsbase}\ns_addc_u32 s25, s25, 0")
    P(f"s_load_dword s{sTAG}, s[24:25], 0")
    XR, XH = 160, 232
    P(f"""s_lshl_b32 s84, s{sG1}, 6
s_and_b32 s85, s{sW}, 1
s_lshl_b32 s85, s85, 5
s_add_u32 s85, s85, s84
s_lshr_b32 s86, s{sW}, 1
s_add_u32 s85, s85, s86
s_mul_i32 s85, s85, 1152
v_lshrrev_b32 v8, 3, v{vL}
v_and_b32 v9, 7, v{vL}
v_mul_u32_u24 v6, 2304, v8
v_lshl_add_u32 v6, v9, 4, v6
v_add_u32 v6, s85, v6
v_add_u32 v7, {8*2304}, v6""")
    if cfg.rot:
        P(f"""s_and_b32 s86, s{sG1}, 3
s_mul_i32 s86, s86, 9
s_add_u32 s86, s86, 2
s_lshr_b32 s86, s86, 2
s_add_u32 s86, s86, s{sJ1}
s_sub_u32 s87, s86, 9
s_cmp_ge_u32 s86, 9
s_cselect_b32 s{sRP}, s87, s86
s_and_b32 s86, s{sJF}, 1
s_mul_i32 s86, s86, 9
s_and_b32 s87, s{sGF}, 15
s_add_u32 s86, s86, s87
s_sub_u32 s87, s86, 18
s_cmp_ge_u32 s86, 18
s_cselect_b32 s{sRF}, s87, s86""")
    else:
        P(f"s_mov_b32 s{sRP}, 0\ns_mov_b32 s{sRF}, 0")
    P(f"s_lshl_b32 s88, s{sRP}, 7")
    for q in range(1, 9):
        P(f"s_add_u32 s{88+q}, s{87+q}, 128\ns_cmp_eq_u32 s{88+q}, 1152\ns_cselect_b32 s{88+q}, 0, s{88+q}")
    xl = []
    for q in range(9):
        for hh in range(2):
            xl.append(f"buffer_load_dwordx4 {vq(XR + (q*2+hh)*4)}, v{6+hh}, {srd(sX)}, s{88+q} offen")
    for l in xl[:cfg.nx1]: P(l, "x")
    mksrd(sWS, 24, WS_BYTES)
    P(f"""s_lshl_b32 s85, s{sW}, 2
v_add_u32 v10, s85, v{vG}
v_and_b32 v11, 7, v10
v_lshrrev_b32 v12, 3, v10
v_lshl_add_u32 v11, v11, 1, v12
v_add_u32 v11, s84, v11
v_subrev_u32 v11, 16, v11
v_mul_u32_u24 v11, 1152, v11
s_cmp_eq_u32 s{sG1}, 0
s_cselect_b32 s85, {OOB}, 0
s_cselect_b32 s86, 0, -1
v_and_b32 v11, s86, v11
v_or_b32 v11, s85, v11
v_mov_b32 v13, {OOB}
s_lshl_b32 s85, s{sRP}, 3
v_add_u32 v12, s85, v{vI}""")
    for q in range(5):
        P(f"""v_add_u32 v{84+q}, {16*q}, v12
v_subrev_u32 v89, 72, v{84+q}
v_min_u32 v{84+q}, v{84+q}, v89
v_lshl_add_u32 v{84+q}, v{84+q}, 4, v11""")
    P(f"v_cmp_gt_u32 vcc, 8, v{vI}\nv_cndmask_b32 v88, v13, v88, vcc")
    hl = [f"buffer_load_dwordx4 {vq(XH + 4*q)}, v{84+q}, {srd(sX)}, 0 offen" for q in range(5)]
    P(f"""v_bfe_u32 v14, v{vL}, 2, 2
v_and_b32 v15, 3, v{vL}
s_lshl_b32 s84, s{sW}, 12
s_add_u32 s84, s84, {R0SCR}
s_cmp_lt_u32 s77, 72
s_cbranch_scc0 L_r1_wo
v_lshrrev_b32 v16, 1, v14
v_lshlrev_b32 v16, 10, v16
v_and_b32 v17, 1, v14
v_mul_u32_u24 v17, 432, v17
v_add3_u32 v16, v16, v17, s84
v_mul_u32_u24 v17, 36, v{vG}
v_and_b32 v18, 1, v{vG}
v_lshl_add_u32 v17, v18, 2, v17
v_lshl_add_u32 v17, v15, 3, v17
v_add_u32 v32, v16, v17
v_add_u32 v34, 144, v32
v_add_u32 v36, 288, v32
v_min_u32 v17, 2, v15
v_mul_u32_u24 v17, 144, v17
v_mul_u32_u24 v18, 72, v18
v_add3_u32 v38, v16, v17, v18
v_add_u32 v38, 32, v38
s_mov_b32 s85, 2048
s_lshr_b32 s86, s77, 2
s_mul_i32 s87, s{sJ1}, 72
s_add_u32 s86, s86, s87
s_mul_i32 s86, s86, 3584
s_add_u32 s86, s86, {WQP}
s_and_b32 s87, s77, 3
v_mul_u32_u24 v16, {18*3584}, v{vG}
v_lshl_add_u32 v16, v{vI}, 4, v16
s_lshl_b32 s79, s87, 8
s_add_u32 s79, s79, s86
v_add_u32 v40, s79, v16
v_add_u32 v41, 1024, v40
v_add_u32 v42, 2048, v40
v_lshrrev_b32 v16, 1, v15
v_lshl_add_u32 v16, v{vG}, 1, v16
v_mul_u32_u24 v16, {18*3584}, v16
v_and_b32 v17, 1, v15
v_lshl_add_u32 v17, v14, 1, v17
v_lshl_add_u32 v16, v17, 4, v16
s_lshl_b32 s79, s87, 7
s_add_u32 s79, s79, s86
s_add_u32 s79, s79, 3072
v_add_u32 v16, s79, v16
v_cmp_gt_u32 vcc, 32, v{vL}
v_cndmask_b32 v16, v13, v16, vcc
v_cmp_gt_u32 vcc, 12, v{vI}
v_cndmask_b32 v43, v13, v16, vcc
s_branch L_r1_join
L_r1_wo:
v_mul_u32_u24 v16, 144, v14
v_add_u32 v16, s84, v16
v_lshrrev_b32 v17, 1, v{vG}
v_lshlrev_b32 v17, 6, v17
v_and_b32 v18, 1, v{vG}
v_lshl_add_u32 v17, v18, 3, v17
v_lshl_add_u32 v17, v15, 4, v17
v_add_u32 v32, v16, v17
v_and_b32 v17, 1, v15
v_lshl_add_u32 v34, v17, 3, v16
v_add_u32 v34, 128, v34
v_add_u32 v36, 2048, v32
v_add_u32 v38, 2048, v34
s_mov_b32 s85, 1024
v_lshlrev_b32 v16, 10, v{vG}
v_lshl_add_u32 v16, v{vI}, 4, v16
v_cmp_gt_u32 vcc, 8, v{vL}
v_cndmask_b32 v17, v13, v{vL16}, vcc
s_sub_u32 s79, s77, 72""")
    for G in range(2):
        if G: P("s_add_u32 s79, s79, 36")
        P(f"""s_lshr_b32 s86, s79, 2
s_mul_i32 s87, s{sJ1}, 18
s_add_u32 s86, s86, s87
s_mul_i32 s86, s86, 4608
s_add_u32 s86, s86, {WOP}
s_cmp_lt_u32 s77, 108
s_cselect_b32 s86, s86, {OOB}
s_and_b32 s87, s79, 3
s_lshl_b32 s76, s87, 8
s_add_u32 s76, s76, s86
v_add_u32 v{40+2*G}, s76, v16
s_lshl_b32 s76, s87, 7
s_add_u32 s76, s76, s86
s_add_u32 s76, s76, 4096
v_add_u32 v{41+2*G}, s76, v17""")
    P("L_r1_join:\ns_nop 1")
    for t in range(4): P(f"v_add_u32 v{33+2*t}, s85, v{32+2*t}")
    mksrd(sW1, 12, 576*9216); mksrd(sW2, 16, 4608*1152); mksrd(sB1, 14, 9216); mksrd(sB2, 18, 1152); mksrd(sOUT, 20, 2048*1152)
    if cfg.dbg: mksrd(sR, 22, 256)
    if cfg.stamps: P("@waitlg_all\ns_mov_b32 s4, s26"); nstamp[0] = 1; names.append("start")
    P("s_mov_b32 s99, 0x3f803f80\ns_mov_b32 s98, 0xffff0000")
    UP = {(1, 0): (32, 33, 34), (1, 1): (35, 36, 37), (2, 0): (24, 25, 34), (2, 1): (26, 27, 37)}
    for z in range(2):
        a1, d1, st = UP[(1, z)]; a2, d2, _ = UP[(2, z)]
        P(f"""s_add_u32 s84, s77, {128*z}
s_mul_i32 s85, s84, 7282
s_lshr_b32 s85, s85, 16
s_mul_i32 s86, s85, 9
s_sub_u32 s86, s84, s86
s_lshl_b32 s76, s86, 7
s_mul_i32 s87, s85, {32*9216}
s_add_u32 s87, s87, s76
s_mul_i32 s75, s{sJ1}, 1152
s_add_u32 s{a1}, s87, s75
s_mul_i32 s87, s85, {32*1152}
s_add_u32 s87, s87, s76
s_mul_i32 s75, s{sJ1}, {576*1152}
s_add_u32 s{a2}, s87, s75
s_lshr_b32 s79, s85, 2
s_lshl_b32 s79, s79, 1
s_and_b32 s75, s85, 1
s_add_u32 s79, s79, s75
s_add_u32 s75, s79, 10
s_bitcmp1_b32 s85, 1
s_cselect_b32 s79, s75, s79
s_lshr_b32 s87, s86, 1
s_mul_i32 s87, s87, 162
s_cmp_eq_u32 s86, 8
s_cselect_b32 s87, 4, s87
s_cselect_b32 s{st}, 162, 1
s_lshl_b32 s{st}, s{st}, 10
s_mul_i32 s76, s{sJ1}, 648
s_add_u32 s87, s87, s76
s_add_u32 s76, s87, 90
s_bitcmp1_b32 s86, 0
s_cselect_b32 s87, s76, s87
s_cselect_b32 s76, 4, 5
s_mul_i32 s75, s85, s76
s_add_u32 s75, s75, s87
s_lshl_b32 s75, s75, 10
s_add_u32 s{d1}, s75, {W1R}
s_mul_i32 s75, s79, s76
s_add_u32 s75, s75, s87
s_lshl_b32 s75, s75, 10
s_add_u32 s{d2}, s75, {W2R}""")
        if z:
            P("s_cmp_lt_u32 s84, 162")
            for r in (a1, d1, a2, d2): P(f"s_cselect_b32 s{r}, s{r}, {OOB}")
    P(f"""v_mul_u32_u24 v92, 9216, v8
v_lshl_add_u32 v92, v9, 4, v92
v_mul_u32_u24 v93, 1152, v8
v_lshl_add_u32 v93, v9, 4, v93
v_lshl_add_u32 v94, v{vG}, 3, v14
v_lshlrev_b32 v94, 7, v94
v_lshl_add_u32 v94, v15, 4, v94
s_lshl_b32 s84, s{sW}, 13
v_add_u32 v94, s84, v94""")
    def unit_dma(mat, z, scr):
        a = UP[(mat, z)][0]; st = 9216 if mat == 1 else 1152
        L = [f"s_lshl_b32 s84, s{sW}, 13\ns_add_u32 s84, s84, {scr + 4096*z}\ns_mov_b32 m0, s84"]
        for q in range(4):
            if q: L.append(f"s_add_u32 s{a}, s{a}, {8*st - 1024}")
            L.append((f"buffer_load_dwordx4 v{91+mat}, {srd(sW1 if mat == 1 else sW2)}, s{a} offen offset:{1024*q} lds", "wr"))
        return L
    def unit_tr(z, scr, vt):
        return [f"ds_read_b64_tr_b16 {vq(vt+4*t+2*hi,2)}, v94 offset:{scr + 4096*z + 64*(t>>1) + 8*(t&1) + 512*hi}" for t in range(4) for hi in range(2)]
    def unit_st(mat, z, vt):
        _, d, st = UP[(mat, z)]; L = []
        for t in range(4):
            if t: L.append(f"s_add_u32 s{d}, s{d}, s{st}")
            L.append((f"buffer_store_dwordx4 {vq(vt+4*t)}, v{vL16}, {srd(sWS)}, s{d} offen sc1", "wrs"))
        return L
    P("@waitvm r0")
    stamp("r0 landed")
    for t in range(4):
        P(f"ds_read_b64_tr_b16 {vq(16+4*t,2)}, v{32+2*t}")
        P(f"ds_read_b64_tr_b16 {vq(18+4*t,2)}, v{33+2*t}")
    for t in range(4):
        P(f"buffer_store_dwordx4 {vq(16+4*t)}, v{40+t}, {srd(sWS)}, 0 offen sc1", "r0s")
    for l in xl[cfg.nx1:] + hl: P(l, "x")
    P(f"@waitlg_all\ns_add_u32 s{sTAG}, s{sTAG}, 0x9E3779B9")
    P(f"""s_lshl_b32 s84, s{sJ1}, 12
s_add_u32 s84, s84, {F0S}
s_lshl_b32 s85, s{sG1}, 2
s_add_u32 s85, s85, s84
v_mov_b32 v44, s85
v_cmp_eq_u32 vcc, 0, v0
v_cndmask_b32 v44, v13, v44, vcc
v_and_b32 v45, 31, v{vL}
v_lshl_add_u32 v45, v45, 2, s84""")
    def stats(groups, acc):
        order = sorted((r, gi, k) for gi, regs in enumerate(groups) for k, r in enumerate(regs))
        L = []
        for r, gi, k in order:
            a = acc + 4*gi + 2*(k & 1)
            c0 = "0" if k < 2 else f"v{a}"; c1 = "0" if k < 2 else f"v{a+1}"
            L.append(f"v_dot2_f32_bf16 v{a}, v{r}, s99, {c0}\nv_dot2_f32_bf16 v{a+1}, v{r}, v{r}, {c1}")
        for gi in range(len(groups)):
            a = acc + 4*gi
            L.append(f"v_add_f32 v{a}, v{a}, v{a+2}\nv_add_f32 v{a+1}, v{a+1}, v{a+3}")
        return L
    def finish_stats(A):
        for t in [f"v_mul_f32 v@0, {hexf(1/576)}, v@0", f"v_mul_f32 v@2, v@0, v@0", f"v_mul_f32 v@1, {hexf(1/576)}, v@1", "v_sub_f32 v@1, v@1, v@2",
                  "v_max_f32 v@1, 0, v@1", f"v_add_f32 v@1, {hexf(1e-5)}, v@1", "v_rsq_f32 v@1, v@1", "v_mul_f32 v@2, v@0, -v@1",
                  "v_mov_b32 v@0, v@1", "v_mov_b32 v@3, v@2"]:
            for a in A: P(t.replace("@0", str(a)).replace("@1", str(a+1)).replace("@2", str(a+2)).replace("@3", str(a+3)))
    def normalize(q, a, t):
        L = []
        for d in range(4):
            L.append(f"v_lshlrev_b32 v{t+2*d}, 16, v{q+d}")
            L.append(f"v_and_b32 v{t+2*d+1}, s98, v{q+d}")
        for d in range(4): L.append(f"v_pk_fma_f32 {vq(t+2*d,2)}, {vq(t+2*d,2)}, {vq(a,2)}, {vq(a+2,2)}")
        for d in range(4): L.append(f"v_cvt_pk_bf16_f32 v{q+d}, v{t+2*d}, v{t+2*d+1}")
        return L
    ST = 144; NT = 112
    st = stats([[XR + (q*2+hh)*4 + d for q in range(9) for d in range(4)] for hh in range(2)] + [[XH + k for k in range(20)]], ST)
    n1 = cfg.nx1*4
    P.extend(st[:n1])
    MS, MP, ME, MO = 96, 100, 104, 108
    P(f"""v_mov_b32 v66, {hexf(-1e30)}
v_lshlrev_b32 v64, 2, v{vG}
v_sub_u32 v64, v64, v{vI}
s_cmp_eq_u32 s{sG1}, 0
s_cselect_b32 s84, 100, 0
v_cmp_gt_u32 s[80:81], 2, v{vG}""")
    for r in range(4):
        P(f"""v_add_u32 v65, {r+7}, v64
v_cmp_gt_u32 vcc, 8, v65
v_add_u32 v65, {r}, v64
v_subrev_u32 v67, s84, v65
v_cndmask_b32 v{MS+r}, v66, 0, vcc
v_cmp_lt_i32 vcc, 8, v65
v_cmp_lt_i32 s[82:83], 8, v67
v_cmp_lt_i32 s[86:87], 0, v67
v_cndmask_b32 v{MP+r}, v66, 0, vcc
s_and_b64 s[86:87], s[86:87], s[80:81]
v_cndmask_b32 v{MO+r}, v66, 0, s[82:83]
v_cndmask_b32 v{ME+r}, v66, 0, s[86:87]""")
    P("@waitvm r0s\ns_barrier")
    set_flag(44)
    stamp("F0 set")
    for z in range(2): P.extend(unit_dma(1, z, W1SCR))
    P(f"s_mul_i32 s84, s{sJF}, 1152\nv_lshlrev_b32 v5, 7, v{vI}")
    P(f"buffer_load_dword v90, v5, {srd(sB1)}, s84 offen", "wr")
    P(f"buffer_load_dword v91, v5, {srd(sB2)}, 0 offen", "wr")
    P.extend(st[n1:])
    for mod in ["quad_perm:[1,0,3,2]", "quad_perm:[2,3,0,1]", "row_half_mirror"]:
        for gi in range(3):
            for k in range(2):
                a = ST + 4*gi + k
                P(f"v_add_f32_dpp v{a}, v{a}, v{a} {mod} row_mask:0xf bank_mask:0xf")
    for k in range(2): P(f"v_add_f32_dpp v{ST+8+k}, v{ST+8+k}, v{ST+8+k} row_mirror row_mask:0xf bank_mask:0xf")
    finish_stats([ST, ST+4, ST+8])
    stamp("LN1 stats")
    P(f"""v_lshrrev_b32 v156, 2, v9
v_mul_u32_u24 v156, 5120, v156
v_and_b32 v157, 3, v9
v_lshl_add_u32 v156, v157, 8, v156
v_xor_b32 v157, v8, v9
v_lshl_add_u32 v156, v157, 4, v156
s_lshl_b32 s84, s{sW}, 10
s_add_u32 s84, s84, {XB}
v_add_u32 v156, s84, v156
v_add_u32 v157, {10240*5}, v156
v_lshrrev_b32 v158, 2, v{vI}
v_mul_u32_u24 v158, 5120, v158
v_lshl_add_u32 v158, v15, 8, v158
v_xor_b32 v159, v10, v9
v_lshl_add_u32 v158, v159, 4, v158
v_add_u32 v158, {XB + 4096}, v158
v_add_u32 v159, {20480*3}, v158""")
    ntc = [0]
    def ln1_batch(b):
        L = []
        for q in range(2*b, min(2*b+2, 9)):
            for hh in range(2):
                r = XR + (q*2+hh)*4
                L += normalize(r, ST + 4*hh, NT + 8*(ntc[0] & 1)); ntc[0] += 1
                L.append(f"ds_write_b128 v{156 if q < 5 else 157}, {vq(r)} offset:{10240*(q % 5) + 128*hh}")
        L += normalize(XH + 4*b, ST + 8, NT + 8*(ntc[0] & 1)); ntc[0] += 1
        wr = f"ds_write_b128 v{158 if b < 3 else 159}, {vq(XH+4*b)} offset:{20480*(b % 3)}"
        if b == 4: wr = "s_mov_b32 exec_lo, 0x00ff00ff\ns_mov_b32 exec_hi, 0x00ff00ff\n" + wr + "\ns_mov_b64 exec, -1"
        L.append(wr)
        return L
    P.extend(ln1_batch(0))
    P(f"""s_lshl_b32 s74, s{sJ1}, 2
s_add_u32 s74, s74, s{sW}
s_mul_i32 s74, s74, {18*3584}
s_add_u32 s74, s74, {WQP}
s_add_u32 s75, s74, {18*3584}
s_mul_i32 s78, s{sRP}, {2*3584}
s_add_u32 s78, s78, s74
v_lshlrev_b32 v7, 7, v{vG}
v_lshl_add_u32 v7, v{vI}, 4, v7
v_cmp_gt_u32 vcc, 6, v{vI}
v_cndmask_b32 v7, v13, v7, vcc
v_xor_b32 v8, v{vI}, v{vG}
v_lshlrev_b32 v8, 4, v8
v_lshl_add_u32 v8, v{vG}, 8, v8
v_add_u32 v8, {XB}, v8
v_xor_b32 v9, 64, v8
v_add_u32 v10, 46080, v8
v_add_u32 v11, 46080, v9""")
    stamp("LN1 b0")
    poll(45, 5)
    stamp("F0 seen")
    QA, KA, EA, VA = 16, 32, 52, 72
    WR = 64
    D = cfg.p1depth
    def wq_loads(s):
        b = WR + (s % D)*16
        L = [(f"buffer_load_dwordx4 {aq(b+4*t)}, v{vL16}, {srd(sWS)}, s78 offen offset:{1024*t}{cfg.wsc}", "wq") for t in range(3)]
        L.append((f"buffer_load_dwordx4 {aq(b+12)}, v7, {srd(sWS)}, s78 offen offset:3072{cfg.wsc}", "wq"))
        if s < 17: L.append(wrap(78, 3584, 75, 74))
        return L
    def x_reads(s):
        b = (s % 2)*20
        reg = (8 if s % 2 == 0 else 9) + (2 if s >= 9 else 0)
        return [f"ds_read_b128 {aq(b+4*m)}, v{reg} offset:{((s % 9)*5 + m)*1024}" for m in range(5)]
    for s in range(D-1): P.extend(wq_loads(s))
    P.extend(ln1_batch(1))
    P("@waitlg_all\ns_barrier")
    P.extend(x_reads(0))
    stamp("GEMM1 start")
    flex = []
    T0 = 128
    for l in ln1_batch(2): flex.append((0, l))
    flex.append((0, "@waitvm wr"))
    for z in range(2):
        for l in unit_tr(z, W1SCR, T0): flex.append((0, l))
        for l in [f"@need {vq(T0,16)}"] + unit_st(1, z, T0): flex.append((0, l))
    flex.append((0, "@mark0"))
    for l in ln1_batch(3) + ln1_batch(4): flex.append((0, l))
    flex.append((0, "@mark1"))
    XRES = 232
    for l in f"""s_lshl_b32 s84, s{sG1}, 6
s_and_b32 s85, s{sW}, 1
s_lshl_b32 s85, s85, 5
s_add_u32 s85, s85, s84
s_lshr_b32 s86, s{sW}, 1
s_add_u32 s85, s85, s86
s_mul_i32 s85, s85, 1152
s_mul_i32 s86, s{sJ1}, 144
s_add_u32 s85, s85, s86
v_mul_u32_u24 v5, 2304, v{vI}
v_lshl_add_u32 v6, v{vG}, 3, v5
v_lshl_add_u32 v5, v{vG}, 4, v5""".split("\n"): flex.append((19*12, l))
    flex.append((19*12, (f"buffer_load_dwordx4 {vq(XRES)}, v5, {srd(sX)}, s85 offen", "xr")))
    flex.append((19*12, (f"buffer_load_dwordx4 {vq(XRES+4)}, v5, {srd(sX)}, s85 offen offset:64", "xr")))
    flex.append((19*12, (f"buffer_load_dwordx2 {vq(XRES+8,2)}, v6, {srd(sX)}, s85 offen offset:128", "xr")))
    mains = []; fixed = {}
    for s in range(18):
        wb = WR + (s % D)*16; xb = (s % 2)*20
        base = len(mains)
        for m in range(5):
            x = aq(xb + 4*m)
            def acc(a): return (vq(a), "0" if s == 0 else vq(a))
            d, c = acc(KA + 4*m); mains.append(f"{MF} {d}, {aq(wb+4)}, {x}, {c}")
            d, c = acc(VA + 4*m); mains.append(f"{MF} {d}, {x}, {aq(wb+8)}, {c}")
            d, c = acc(EA + 4*m); mains.append(f"{MF} {d}, {aq(wb+12)}, {x}, {c}")
            if m < 4:
                d, c = acc(QA + 4*m); mains.append(f"{MF} {d}, {aq(wb)}, {x}, {c}")
        t_ = stamp_txt(f"@q{s}") if s else None
        if t_: fixed.setdefault(base - 1, []).append(t_)
        if s in (7, 11): fixed.setdefault(base, []).extend([f"@flexdone{0 if s == 7 else 1}", "@waitlg_all", "s_barrier"])
        if s + 1 < 18:
            for k, l in enumerate(x_reads(s+1)): fixed.setdefault(base + 1 + 2*k, []).append(l)
            fixed.setdefault(base + 18, []).append(f"@need {aq(WR + ((s+1) % D)*16, 16)} {aq(((s+1) % 2)*20, 20)}")
        if s + D - 1 < 18:
            for k, l in enumerate(wq_loads(s + D - 1)): fixed.setdefault(base + 2 + 4*k if k < 4 else base + 16, []).append(l)
    fixed.setdefault(19*7 - 3, []).append(f"""s_mul_i32 s88, s{sJ1}, 82944
s_add_u32 s88, s88, {WOP}
s_add_u32 s89, s88, 82944
s_lshl_b32 s76, s{sW}, 10
s_mul_i32 s79, s{sRP}, 9216
s_add_u32 s79, s79, s88
s_sub_u32 s90, s79, 1024
s_sub_u32 s91, s89, 1024
s_cmp_eq_u32 s{sRP}, 0
s_cselect_b32 s90, s91, s90
s_add_u32 s79, s79, s76""")
    nwo = 21
    for n in range(nwo):
        at = 19*7 + 4 + (n * (19*cfg.wospan)) // nwo
        if n == 20: pre = f"s_mov_b32 m0, {80*1024}\ns_mov_b32 s79, s90"
        else: pre = "s_mov_b32 m0, s76\ns_add_u32 s76, s76, 4096"
        fixed.setdefault(at, []).append(pre)
        fixed.setdefault(at + 1, []).append((f"buffer_load_dwordx4 v{vL16}, {srd(sWS)}, s79 offen sc1 lds", "wo"))
        if n < 19: fixed.setdefault(at + 2, []).append("s_add_u32 s79, s79, 4096\ns_sub_u32 s91, s79, 82944\ns_cmp_ge_u32 s79, s89\ns_cselect_b32 s79, s91, s79")
    sched(P, mains, fixed, flex)
    stamp("GEMM1 done")
    P("@waitvm wo\ns_barrier")
    for z in range(2): P.extend(unit_dma(2, z, W2SCR))
    QO, KO, VO, XO = 112, 128, 148, 160
    P(f"""s_lshl_b32 s84, s{sW}, 10
s_add_u32 s84, s84, {VXS}
v_lshl_add_u32 v6, v{vI}, 1, s84
v_add_u32 v7, 512, v6
v_cmp_eq_u32 vcc, 1, v{vG}
v_cndmask_b32 v6, v7, v6, vcc
v_lshl_add_u32 v7, v{vL}, 2, s84
v_min_u32 v8, 2, v{vI}
v_mul_u32_u24 v8, 160, v8
v_lshl_add_u32 v8, v{vG}, 3, v8
v_add_u32 v8, s84, v8""")
    P(f"v_mov_b32 v5, s99\ns_mov_b32 exec_hi, 0xffff\nds_write_b32 v7, v5 offset:320\ns_mov_b32 exec_hi, -1")
    for m in range(5):
        r = QO + 4*m + 2 if m < 4 else 172
        P(f"v_cvt_pk_bf16_f32 v{r}, v{EA+4*m}, v{EA+4*m+1}")
        P(f"ds_write_b16 v6, v{r} offset:{32*m}\nds_write_b16_d16_hi v6, v{r} offset:{160+32*m}")
    SA = 176
    prev = [4, 0, 4, 2]; pmask = [ME, MP, MO, MP]
    def kop(m): P(f"v_cvt_pk_bf16_f32 v{KO+4*m}, v{KA+4*m}, v{KA+4*m+1}\nv_cvt_pk_bf16_f32 v{KO+4*m+1}, v{KA+4*m+2}, v{KA+4*m+3}\nv_cvt_pk_bf16_f32 v{KO+4*m+2}, v{EA+4*m+2}, v{EA+4*m+3}\nv_mov_b32 v{KO+4*m+3}, 0")
    def qop(m): P(f"v_cvt_pk_bf16_f32 v{QO+4*m}, v{QA+4*m}, v{QA+4*m+1}\nv_cvt_pk_bf16_f32 v{QO+4*m+1}, v{QA+4*m+2}, v{QA+4*m+3}\nv_mov_b32 v{QO+4*m+3}, 0")
    kop(4)
    for m in range(4):
        qop(m); kop(m)
        if m: P(f"{MF} {vq(SA+8*(m-1)+4)}, {vq(KO+4*(m-1))}, {vq(QO+4*(m-1))}, {vq(MS)}")
        P(f"{MF} {vq(SA+8*m)}, {vq(KO+4*prev[m])}, {vq(QO+4*m)}, {vq(pmask[m])}")
    vorder = [4, 0, 1, 4, 2, 3]
    for k, m in enumerate(vorder):
        P(f"v_cvt_pk_bf16_f32 v{VO+2*k}, v{VA+4*m}, v{VA+4*m+1}\nv_cvt_pk_bf16_f32 v{VO+2*k+1}, v{VA+4*m+2}, v{VA+4*m+3}")
        if k == 0: P(f"{MF} {vq(SA+28)}, {vq(KO+12)}, {vq(QO+12)}, {vq(MS)}")
    P("@waitlg_all")
    for k, m in enumerate(vorder): P(f"ds_read_b64 {vq(XO+2*k,2)}, v8 offset:{32*m}")
    MX = 208
    c = (18 ** -0.5) * 1.4426950408889634
    P(f"s_mov_b32 s84, {hexf(c)}")
    for m in range(4):
        s = SA + 8*m
        P(f"v_max3_f32 v{MX+m}, v{s}, v{s+1}, v{s+2}\nv_max3_f32 v{MX+4+m}, v{s+3}, v{s+4}, v{s+5}")
    for m in range(4):
        s = SA + 8*m
        P(f"v_max3_f32 v{MX+m}, v{MX+m}, v{s+6}, v{s+7}")
    for m in range(4): P(f"v_max_f32 v{MX+m}, v{MX+m}, v{MX+4+m}")
    for sw in ["v_permlane16_swap_b32", "v_permlane32_swap_b32"]:
        for m in range(4): P(f"v_mov_b32 v{MX+4+m}, v{MX+m}")
        for m in range(4): P(f"{sw} v{MX+m}, v{MX+4+m}")
        for m in range(4): P(f"v_max_f32 v{MX+m}, v{MX+m}, v{MX+4+m}")
    for m in range(4): P(f"v_mul_f32 v{MX+m}, s84, v{MX+m}")
    PO = 216; OA = 16; OX = 32
    for m in range(4):
        s = SA + 8*m
        for k in range(8): P(f"v_fma_f32 v{s+k}, v{s+k}, s84, -v{MX+m}")
        if m:
            o = [0, 2, 6, 8][m-1]
            P(f"{MF} {vq(OX+4*(m-1))}, {vq(XO+o)}, {vq(PO+4*(m-1))}, 0")
            P(f"{MF} {vq(OA+4*(m-1))}, {vq(VO+o)}, {vq(PO+4*(m-1))}, 0")
        for k in range(8): P(f"v_exp_f32 v{s+k}, v{s+k}")
        for k in range(4): P(f"v_cvt_pk_bf16_f32 v{PO+4*m+k}, v{s+2*k}, v{s+2*k+1}")
    P(f"""s_mul_i32 s84, s{sG1}, 73728
s_add_u32 s84, s84, {OP}
{MF} {vq(OX+12)}, {vq(XO+8)}, {vq(PO+12)}, 0
{MF} {vq(OA+12)}, {vq(VO+8)}, {vq(PO+12)}, 0
s_lshl_b32 s85, s{sJ1}, 1
s_lshr_b32 s86, s{sW}, 1
s_add_u32 s85, s85, s86
s_lshl_b32 s85, s85, 12
s_and_b32 s86, s{sW}, 1
s_lshl_b32 s86, s86, 9
s_add_u32 s85, s85, s86
s_add_u32 s85, s85, s84
s_lshr_b32 s87, s{sJ1}, 2
s_add_u32 s87, s87, 16
s_lshl_b32 s87, s87, 12
s_and_b32 s86, s{sJ1}, 3
s_lshl_b32 s86, s86, 8
s_add_u32 s87, s87, s86
s_lshl_b32 s86, s{sW}, 2
s_add_u32 s87, s87, s86
s_add_u32 s87, s87, s84
v_and_b32 v6, 1, v{vG}
v_lshlrev_b32 v6, 10, v6
v_lshrrev_b32 v7, 1, v{vG}
v_lshl_add_u32 v6, v7, 8, v6
v_lshl_add_u32 v6, v{vI}, 4, v6
v_lshlrev_b32 v7, 10, v{vG}
v_lshl_add_u32 v7, v{vI}, 4, v7""")
    for m in range(4): P(f"v_rcp_f32 v{MX+m}, v{OX+4*m+2}")
    OP0 = 112
    for p in range(2):
        for m in (2*p, 2*p+1):
            for r in range(4): P(f"v_mul_f32 v{OA+4*m+r}, v{OA+4*m+r}, v{MX+m}")
            P(f"v_cvt_pk_bf16_f32 v{OP0+2*m}, v{OA+4*m}, v{OA+4*m+1}\nv_cvt_pk_bf16_f32 v{OP0+2*m+1}, v{OA+4*m+2}, v{OA+4*m+3}")
        for m in (2*p, 2*p+1):
            for r in range(2): P(f"v_mul_f32 v{OX+4*m+r}, v{OX+4*m+r}, v{MX+m}")
        b = OP0 + 4*p
        P(f"v_permlane16_swap_b32 v{b}, v{b+2}\nv_permlane16_swap_b32 v{b+1}, v{b+3}")
        P(f"buffer_store_dwordx4 {vq(OP0+4*p)}, v6, {srd(sWS)}, s85 offen offset:{2048*p} sc1", "o")
        for m in (2*p, 2*p+1): P(f"v_cvt_pk_bf16_f32 v{OP0+8+m}, v{OX+4*m}, v{OX+4*m+1}")
    P(f"v_permlane16_swap_b32 v{OP0+8}, v{OP0+9}\nv_permlane16_swap_b32 v{OP0+10}, v{OP0+11}")
    P(f"v_permlane32_swap_b32 v{OP0+8}, v{OP0+10}")
    P(f"buffer_store_dword v{OP0+8}, v7, {srd(sWS)}, s87 offen sc1", "o")
    stamp("attn done")
    def two_flags(vd, grp_base, set_base):
        return f"""s_lshl_b32 s86, s{sG1}, 12
s_lshl_b32 s87, s{sJ1}, 4
s_add_u32 s86, s86, s87
s_add_u32 s86, s86, {grp_base}
s_lshl_b32 s87, s{sJ1}, 12
s_lshl_b32 s76, s{sG1}, 2
s_add_u32 s87, s87, s76
s_add_u32 s87, s87, {set_base}
v_mov_b32 v{vd}, s87
v_mov_b32 v5, s86
v_cmp_eq_u32 vcc, 0, v0
v_cndmask_b32 v{vd}, v{vd}, v5, vcc
v_cmp_gt_u32 vcc, 2, v0
v_cndmask_b32 v{vd}, v13, v{vd}, vcc""".split("\n")
    def grp_poll_addr(vd, sg, base):
        return f"""s_lshl_b32 s86, s{sg}, 12
s_add_u32 s86, s86, {base}
v_and_b32 v{vd}, 7, v{vL}
v_lshl_add_u32 v{vd}, v{vd}, 4, s86""".split("\n")
    def set_poll_addr(vd, sj, base):
        return f"""s_lshl_b32 s86, s{sj}, 12
s_add_u32 s86, s86, {base}
v_and_b32 v{vd}, 31, v{vL}
v_lshl_add_u32 v{vd}, v{vd}, 2, s86""".split("\n")
    def unpack(dst, src, n):
        return sum([[f"v_lshlrev_b32 v{dst+2*k}, 16, v{src+k}", f"v_and_b32 v{dst+2*k+1}, s98, v{src+k}"] for k in range(n)], [])
    HA = 16
    P.extend(two_flags(14, F1G, F1S)); P.extend(grp_poll_addr(15, sG1, F1G))
    P.extend(unpack(HA, XRES, 10))
    def wo_reg(s, t):
        n = s*5 + t
        return aq(4*n) if n < 64 else vq(152 + 4*(n-64))
    P(f"""v_add_u32 v10, 41472, v{vL16}
v_and_b32 v11, 7, v{vI}
v_lshlrev_b32 v11, 4, v11
v_lshl_add_u32 v11, v{vG}, 7, v11
v_add_u32 v12, 41472, v11""")
    wor = []
    for s in range(18):
        for t in range(5):
            reg = (vL16 if s < 9 else 10) if t < 4 else (11 if s < 9 else 12)
            wor.append(f"ds_read_b128 {wo_reg(s,t)}, v{reg} offset:{WOB + (s % 9)*4608 + 1024*t}")
    P.extend(wor[:cfg.nwo1])
    P("@waitvm o\ns_barrier")
    set_flag(14)
    stamp("F1 set")
    P.add(poll_pre(15, 46))
    P.extend(wor[cfg.nwo1:])
    P(f"""s_mul_i32 s84, s{sG1}, 73728
s_lshl_b32 s85, s{sW}, 10
s_add_u32 s84, s84, s85
s_add_u32 s74, s84, {OP}
s_add_u32 s75, s74, 73728
s_lshl_b32 s78, s{sRP}, 13
s_add_u32 s78, s78, s74
s_add_u32 s84, s84, {HP}
s_mul_i32 s85, s{sJ1}, 9
v_add_u32 v6, s85, v{vG}
v_lshrrev_b32 v7, 2, v6
v_lshlrev_b32 v7, 12, v7
v_and_b32 v6, 3, v6
v_lshl_add_u32 v6, v6, 8, v7
v_lshl_add_u32 v6, v{vI}, 4, v6
v_add_u32 v6, s84, v6
s_add_u32 s85, s85, 8
s_lshr_b32 s86, s85, 2
s_lshl_b32 s86, s86, 12
s_and_b32 s85, s85, 3
s_lshl_b32 s85, s85, 8
s_add_u32 s85, s85, s86
s_add_u32 s85, s85, s84
v_lshlrev_b32 v7, 4, v{vI}
v_lshl_add_u32 v7, v{vG}, 3, v7
v_add_u32 v7, s85, v7
v_cmp_gt_u32 vcc, 2, v{vG}
v_cndmask_b32 v7, v13, v7, vcc
v_add_u32 v8, 4096, v6
v_add_u32 v47, {W2SCR}, v94""")
    P(poll_check(15, 46))
    stamp("F1 seen")
    OF = 80
    for s in range(18):
        P(f"buffer_load_dwordx4 {vq(OF+4*s)}, v{vL16}, {srd(sWS)}, s78 offen sc1", "of")
        if s < 17: P(wrap(78, 4096, 75, 74))
    flex = []
    for l in set_poll_addr(15, sJF, F1S): flex.append((0, l))
    flex.append((0, poll_pre(15, 9)))
    for z in range(2):
        for l in unit_tr(z, 0, 48 + 16*z): flex.append((0, l.replace("v94", "v47")))
    for z in range(2):
        for l in [f"@need {vq(48+16*z,16)}"] + unit_st(2, z, 48 + 16*z): flex.append((0, l))
    for l in two_flags(14, F2G, F2S) + grp_poll_addr(46, sGF, F2G): flex.append((0, l))
    for l in f"""s_lshl_b32 s88, s{sJF}, 2
s_add_u32 s88, s88, s{sW}
s_mul_i32 s88, s88, {162*1024}
s_add_u32 s89, s88, {W2R}
s_add_u32 s88, s88, {W1R}
s_mul_i32 s92, s{sRF}, 5120
s_add_u32 s92, s92, s88
s_mov_b32 s90, s88
s_add_u32 s91, s88, {90*1024}
v_add_u32 v12, 4096, v{vL16}
s_mul_i32 s84, s{sJF}, 1152
s_lshl_b32 s85, s{sW}, 8
s_add_u32 s85, s85, s84
s_lshr_b32 s86, s{sW}, 1
s_lshl_b32 s86, s86, 6
s_and_b32 s87, s{sW}, 1
s_lshl_b32 s87, s87, 3
s_add_u32 s86, s86, s87
s_add_u32 s86, s86, s84
v_lshlrev_b32 v10, 4, v{vG}""".split("\n"): flex.append((0, l))
    mains = [f"{MF} {vq(HA+4*t)}, {wo_reg(s,t)}, {vq(OF+4*s)}, {vq(HA+4*t)}" for s in range(18) for t in range(5)]
    sched(P, mains, {}, flex)
    HQ = 36
    P(f"v_cvt_pk_bf16_f32 v{HQ}, v{HA}, v{HA+1}\nv_cvt_pk_bf16_f32 v{HQ+1}, v{HA+2}, v{HA+3}\nv_cvt_pk_bf16_f32 v{HQ+2}, v{HA+4}, v{HA+5}\nv_cvt_pk_bf16_f32 v{HQ+3}, v{HA+6}, v{HA+7}")
    P(f"buffer_store_dwordx4 {vq(HQ)}, v6, {srd(sWS)}, 0 offen sc1", "h")
    for k in range(4, 8): P(f"v_cvt_pk_bf16_f32 v{HQ+k}, v{HA+2*k}, v{HA+2*k+1}")
    P(f"buffer_store_dwordx4 {vq(HQ+4)}, v8, {srd(sWS)}, 0 offen sc1", "h")
    for k in range(8, 10): P(f"v_cvt_pk_bf16_f32 v{HQ+k}, v{HA+2*k}, v{HA+2*k+1}")
    P(f"buffer_store_dwordx2 {vq(HQ+8,2)}, v7, {srd(sWS)}, 0 offen sc1", "h")
    stamp("proj done")
    NR = 56; AF = 224
    ACA, ACB = 16, 96
    CA, CB = 96, 160
    passes = [("A", 5, ACA, CA), ("B", 4, ACB, CB), ("C1", 5, ACA, None), ("C2", 4, ACB, None)]
    steps = [(pi, p) for pi in range(4) for p in range(18)]
    cons = [(pi, p, t) for pi, p in steps for t in range(passes[pi][1])]
    slot = {f: n % NR for n, f in enumerate(cons)}
    def wload(n):
        pi, p, t = cons[n]; nt = passes[pi][1]; L = []
        if t == 0 and n > 0:
            if pi == 1 and p == 0:
                L.append(f"s_add_u32 s90, s88, {90*1024}\ns_add_u32 s91, s88, {162*1024}\ns_lshl_b32 s92, s{sRF}, 12\ns_add_u32 s92, s92, s90")
            elif pi >= 2 and p in (0, 10):
                o = 0 if pi == 2 else 90*1024
                beg = o + (0 if p == 0 else 10*nt*1024); end = o + (10 if p == 0 else 18)*nt*1024
                L.append(f"s_add_u32 s90, s89, {beg}\ns_add_u32 s91, s89, {end}\ns_mul_i32 s92, s{93 if p == 0 else 94}, {nt*1024}\ns_add_u32 s92, s92, s90")
            else: L.append(wrap(92, nt*1024, 91, 90))
        L.append((f"buffer_load_dwordx4 {aq(4*(n % NR))}, v{vL16 if t < 4 else 12}, {srd(sWS)}, s92 offen offset:{1024*(t % 4)}{cfg.wsc}", "w"))
        return L
    B1P = 232
    P(poll_check(15, 9))
    for p in range(4): P(f"buffer_load_dwordx4 {vq(B1P+4*p)}, v10, {srd(sB1)}, s85 offen offset:{64*p}", "b1")
    P(f"buffer_load_dwordx2 {vq(B1P+16,2)}, v10, {srd(sB1)}, s86 offen offset:1024", "b1")
    for n in range(cfg.npre1): P.extend(wload(n))
    P("@waitvm h\n@waitlg_all\ns_barrier")
    set_flag(14)
    stamp("F2 set")
    for n in range(cfg.npre1, cfg.npre): P.extend(wload(n))
    P.extend(unpack(CA, B1P, 8)); P.extend(unpack(CA+16, B1P+16, 2))
    P(f"""s_mul_i32 s84, s{sGF}, 73728
s_lshl_b32 s85, s{sW}, 10
s_add_u32 s84, s84, s85
s_add_u32 s74, s84, {HP}
s_add_u32 s75, s74, 73728
s_lshl_b32 s77, s{sRF}, 12
s_add_u32 s77, s77, s74
v_add_u32 v6, s85, v{vL16}
v_add_u32 v7, 36864, v6
v_add_u32 v8, 36864, v{vL16}
v_add_u32 v9, {HB}, v{vL16}
v_add_u32 v10, {HB + 36864}, v{vL16}
s_and_b32 s93, s{sGF}, 15
s_lshr_b32 s94, s93, 1
s_mul_i32 s93, s93, 5
s_lshr_b32 s93, s93, 3""")
    if not cfg.rot: P("s_mov_b32 s93, 0\ns_mov_b32 s94, 0")
    P.extend(set_poll_addr(15, sJF, F2S))
    poll(46, 5)
    stamp("F2 seen")
    HR = 160
    for s in range(18):
        P(f"buffer_load_dwordx4 {vq(HR+4*s)}, v{vL16}, {srd(sWS)}, s77 offen sc1", "hf")
        if s < 17: P(wrap(77, 4096, 75, 74))
    ST = 120; NT = 128
    P.extend(stats([[HR + k for k in range(72)]], ST))
    for sw in ["v_permlane16_swap_b32", "v_permlane32_swap_b32"]:
        for k in range(2): P(f"v_mov_b32 v{ST+2+k}, v{ST+k}")
        for k in range(2): P(f"{sw} v{ST+k}, v{ST+2+k}")
        for k in range(2): P(f"v_add_f32 v{ST+k}, v{ST+k}, v{ST+2+k}")
    finish_stats([ST])
    stamp("LN2 stats")
    def ln2(s):
        return normalize(HR + 4*s, ST, NT + 8*(s & 1)) + [f"ds_write_b128 v{6 if s < 9 else 7}, {vq(HR+4*s)} offset:{XN + (s % 9)*4096}"]
    for s in range(3): P.extend(ln2(s))
    P("@waitlg_all\ns_barrier")
    def act_reads(i):
        pi, p = steps[i]
        b = AF + (i % 2)*16
        if pi < 2: reg = vL16 if p < 9 else 8
        else: reg = 9 if p < 9 else 10
        return [f"ds_read_b128 {aq(b+4*m)}, v{reg} offset:{((p % 9)*4 + m)*1024}" for m in range(4)]
    P.extend(act_reads(0))
    stamp("FFN start")
    mains = []; fixed = {}; start = []
    nl = cfg.npre
    bar = {2: "a", 5: "b", 9: "c", 13: "d", 35: "0", 45: "1"}
    for i, (pi, p) in enumerate(steps):
        name, nt, acc, cin = passes[pi]
        base = len(mains); start.append(base)
        b = AF + (i % 2)*16
        t_ = stamp_txt(f"@{name}{p}") if i else None
        if t_: fixed.setdefault(base - 1, []).append(t_)
        if i in bar: fixed.setdefault(base, []).extend([f"@flexdone{bar[i]}", "@waitlg_all", "s_barrier"])
        for t in range(nt):
            w = aq(4*slot[(pi, p, t)])
            for m in range(4):
                d = vq(acc + (t*4 + m)*4)
                c = d if p > 0 else (vq(cin + 4*t) if cin is not None else "0")
                mains.append(f"{MF} {d}, {w}, {aq(b+4*m)}, {c}")
            if nl < len(cons):
                if nl == 162 - 24: fixed.setdefault(base + 4*t + 3, []).append(poll_pre(15, 14))
                if nl == 162: fixed.setdefault(base + 4*t + 1, []).append(poll_check(15, 14))
                L = wload(nl); nl += 1
                fixed.setdefault(base + 4*t + 1, []).extend(L)
        if i + 1 < len(steps):
            for k, l in enumerate(act_reads(i+1)): fixed.setdefault(base + 2*k + (2 if i in bar else 0), []).append(l)
            pj, pp = steps[i+1]
            nxt = " ".join(aq(4*slot[(pj, pp, t)]) for t in range(passes[pj][1]))
            fixed.setdefault(base + 4*nt - 1, []).append(f"@need {nxt} {aq(AF + ((i+1) % 2)*16, 16)}")
    start.append(len(mains))
    S = lambda pi, p: start[pi*18 + p]
    flex = []
    for lo, hi, mk in [(3, 6, "a"), (6, 10, "b"), (10, 14, "c"), (14, 18, "d")]:
        for s in range(lo, hi):
            for l in ln2(s): flex.append((0, l))
        flex.append((0, f"@mark{mk}"))
    for l in unpack(CB, B1P+8, 8): flex.append((0, l))
    for k, (q, mod, sr, add) in enumerate([(f"s_lshl_b32 s84, s{sW}, 1", 10, 93, 0), (f"s_lshl_b32 s84, s{sW}, 1\ns_add_u32 s84, s84, 1", 10, 93, 0),
                                           (f"s_lshr_b32 s84, s{sW}, 1\ns_add_u32 s84, s84, 8", 10, 93, 0),
                                           (f"s_lshl_b32 s84, s{sW}, 1", 8, 94, 10), (f"s_lshl_b32 s84, s{sW}, 1\ns_add_u32 s84, s84, 1", 8, 94, 10)]):
        flex.append((0, q))
        flex.append((0, f"s_sub_u32 s84, s84, s{sr}\ns_cselect_b32 s85, {mod}, 0"))
        flex.append((0, f"s_add_u32 s84, s84, s85\ns_add_u32 s84, s84, {add}"))
        flex.append((0, "s_lshl_b32 s84, s84, 12"))
        if k == 2: flex.append((0, f"s_and_b32 s85, s{sW}, 1\ns_lshl_b32 s85, s85, 3\ns_add_u32 s84, s84, s85"))
        flex.append((0, f"v_add_u32 v{192+k}, s84, v9"))
    TQ = 176
    tq = [0]
    def epi1(acc, pair_tiles, m, wr):
        L = []
        q = TQ + 4*(tq[0] % 4); tq[0] += 1
        regs = [acc + (t*4 + m)*4 + r for t in pair_tiles for r in range(4)]
        for r in regs: L.append(f"v_mul_f32 v{r}, v{r}, |v{r}|")
        for k in range(len(regs)//2): L.append(f"v_cvt_pk_bf16_f32 v{q+k}, v{regs[2*k]}, v{regs[2*k+1]}")
        for k in range(len(regs)//2): L.append(f"v_pk_max_i16 v{q+k}, v{q+k}, 0")
        L.append(wr(q))
        return L
    at = S(1, 0) + 3
    for pr in range(2):
        for m in range(4):
            for l in epi1(ACA, [2*pr, 2*pr+1], m, lambda q: f"ds_write_b128 v{192+pr}, {vq(q)} offset:{m*1024}"): flex.append((at, l))
    for m in range(4):
        for l in epi1(ACA, [4], m, lambda q: f"ds_write_b64 v194, {vq(q,2)} offset:{m*1024}"): flex.append((at, l))
    flex.append((at, "@mark0"))
    at = S(2, 0) + 3
    for pr in range(2):
        for m in range(4):
            for l in epi1(ACB, [2*pr, 2*pr+1], m, lambda q: f"ds_write_b128 v{195+pr}, {vq(q)} offset:{m*1024}"): flex.append((at, l))
    flex.append((at, "@mark1"))
    at = S(2, 10)
    setup = f"""s_lshl_b32 s84, s{sGF}, 6
s_add_u32 s84, s84, s{sJF}
s_mul_i32 s84, s84, 9216
s_add_u32 s84, s84, {PART}
v_lshrrev_b32 v14, 3, v{vI}
v_mul_u32_u24 v14, {8*9216}, v14
v_and_b32 v15, 7, v{vI}
v_lshl_add_u32 v14, v15, 4, v14
v_lshl_add_u32 v14, v{vG}, 7, v14
v_add_u32 v14, s84, v14
s_lshr_b32 s85, s{sW}, 1
s_lshl_b32 s85, s85, 9
s_and_b32 s86, s{sW}, 1
s_lshl_b32 s86, s86, 3
s_add_u32 s85, s85, s86
s_add_u32 s85, s85, 8192
v_add_u32 v15, s85, v14
s_lshl_b32 s85, s{sW}, 11
v_add_u32 v14, s85, v14
s_mov_b32 s80, 0
s_mov_b32 s81, {16*9216}
s_mov_b32 s82, {32*9216}
s_mov_b32 s83, {48*9216}
s_lshl_b32 s86, s{sGF}, 12
s_lshl_b32 s87, s{sJF}, 4
s_add_u32 s87, s87, s86
s_add_u32 s87, s87, {F3A}
v_mov_b32 v250, s87
v_cmp_eq_u32 vcc, 0, v0
s_add_u32 s86, s86, {F3A}
v_and_b32 v251, 7, v{vL}
v_cndmask_b32 v250, v13, v250, vcc
v_lshl_add_u32 v251, v251, 4, s86
s_lshl_b32 s84, s{sGF}, 3
s_add_u32 s84, s84, s{sJF}
s_mul_i32 s84, s84, {8*9216}
s_add_u32 s84, s84, {PART}
s_lshl_b32 s85, s{sW}, 11
s_add_u32 s85, s85, s84
v_add_u32 v252, s85, v{vL16}
s_lshl_b32 s85, s{sW}, 8
s_add_u32 s85, s85, s84
s_add_u32 s85, s85, 8192
v_lshl_add_u32 v7, v{vI}, 4, s85
v_cmp_gt_u32 vcc, 16, v{vL}
v_lshrrev_b32 v5, 5, v{vL}
v_bfe_u32 v6, v{vL}, 3, 2
v_cndmask_b32 v7, v13, v7, vcc
v_and_b32 v8, 7, v{vL}
s_mul_i32 s84, s{sGF}, 73728
s_lshr_b32 s85, s{sJF}, 1
s_lshl_b32 s86, s85, 10
s_add_u32 s84, s84, s86
s_and_b32 s86, s{sJF}, 1
s_lshl_b32 s87, s86, 7
s_add_u32 s84, s84, s87
s_add_u32 s84, s84, {HP}
v_lshlrev_b32 v253, 12, v5
v_lshl_add_u32 v253, v6, 8, v253
v_lshl_add_u32 v253, v8, 4, v253
s_lshl_b32 s87, s{sW}, 14
s_add_u32 s74, s87, s84
s_lshr_b32 s87, s{sW}, 1
s_lshl_b32 s87, s87, 12
s_and_b32 s76, s{sW}, 1
s_lshl_b32 s76, s76, 9
s_add_u32 s87, s87, s76
s_add_u32 s87, s87, 65536
s_add_u32 s75, s87, s84
s_add_u32 s77, s74, 8192
s_lshl_b32 s84, s{sGF}, 6
s_and_b32 s87, s85, 1
s_lshl_b32 s87, s87, 5
s_add_u32 s84, s84, s87
s_lshr_b32 s87, s85, 1
s_add_u32 s84, s84, s87
s_lshl_b32 s87, s86, 4
s_add_u32 s84, s84, s87
s_mul_i32 s84, s84, 1152
v_lshlrev_b32 v6, 4, v6
v_lshl_add_u32 v6, v5, 6, v6
v_mul_u32_u24 v254, 2304, v8
v_add3_u32 v254, v254, v6, s84
s_lshl_b32 s78, s{sW}, 8
s_lshl_b32 s79, s{sW}, 5
v_cndmask_b32 v255, v13, v254, vcc
s_add_u32 s79, s79, 1024
s_mov_b32 s95, 0x00003f80
s_mov_b32 s96, 0x3f800000"""
    for l in setup.split("\n"): flex.append((at, l))
    RH = 200; RS = 224
    for r, (sh, sb, bo) in enumerate([(74, 78, 0), (75, 79, 0), (77, 78, 128)]):
        flex.append((at, (f"buffer_load_dwordx4 {vq(RH+8*r)}, v253, {srd(sWS)}, s{sh} offen sc1", "rh")))
        flex.append((at, (f"buffer_load_dwordx4 {vq(RH+8*r+4)}, v6, {srd(sB2)}, s{sb} offen offset:{bo}", "rh")))
    def acc_quad(T, q, first):
        L = []
        for d in range(4):
            L.append(f"v_dot2_f32_bf16 v{T+2*d}, v{q+d}, s95, {'0' if first else 'v%d' % (T+2*d)}")
            L.append(f"v_dot2_f32_bf16 v{T+2*d+1}, v{q+d}, s96, {'0' if first else 'v%d' % (T+2*d+1)}")
        return L
    def epi2(acc, tiles, m, st):
        q = TQ + 4*(tq[0] % 4); tq[0] += 1
        regs = [acc + (t*4 + m)*4 + r for t in tiles for r in range(4)]
        L = [f"v_cvt_pk_bf16_f32 v{q+k}, v{regs[2*k]}, v{regs[2*k+1]}" for k in range(len(regs)//2)]
        L.append(st(q))
        return L
    at = S(3, 0) + 3
    for m in range(4):
        for pr in range(2):
            for l in epi2(ACA, [2*pr, 2*pr+1], m, lambda q: (f"buffer_store_dwordx4 {vq(q)}, v14, {srd(sWS)}, s{80+m} offen offset:{512*pr} sc1", "p1")): flex.append((at, l))
        for l in epi2(ACA, [4], m, lambda q: (f"buffer_store_dwordx2 {vq(q,2)}, v15, {srd(sWS)}, s{80+m} offen sc1", "p1")): flex.append((at, l))
    flex.append((at, "@mark2"))
    for r in range(3):
        for l in acc_quad(RS+8*r, RH+8*r, True) + acc_quad(RS+8*r, RH+8*r+4, False): flex.append((at, l))
    fa, fb, fc = cfg.f3
    fixed.setdefault(S(3, fa), []).extend(["@flexdone2", "@waitvm p1", "s_barrier", f"v_mov_b32 v5, s{sTAG}",
        (f"buffer_store_dword v5, v250, {srd(sWS)}, 0 offen sc1", "flag")])
    fixed.setdefault(S(3, fb), []).append(poll_pre(251, 5))
    def red_loads(vaddr, off, R0):
        L = ["s_mov_b32 s84, 0"]
        for j in range(8):
            L.append((f"buffer_load_dwordx4 {vq(R0+4*j)}, v{vaddr}, {srd(sWS)}, s84 offen offset:{off} sc1", "rd"))
            if j < 7: L.append("s_add_u32 s84, s84, 9216")
        return L
    def red_sum(r, R0, vo, so, ooff):
        T = RS + 8*r; L = []
        for j in range(8): L += acc_quad(T, R0+4*j, False)
        for d in range(4): L.append(f"v_cvt_pk_bf16_f32 v{T+d}, v{T+2*d}, v{T+2*d+1}")
        L.append((f"buffer_store_dwordx4 {vq(T)}, v{vo}, {srd(sOUT)}, s{so} offen offset:{ooff}", "out"))
        return L
    at = S(3, fc)
    flex.append((at, poll_check(251, 5)))
    for l in red_loads(252, 0, 16) + red_loads(7, 0, 48): flex.append((at, l))
    at = S(3, min(fc + 3, 17))
    rest = red_sum(0, 16, 254, 78, 0) + red_sum(1, 48, 255, 79, 0)
    for l in rest: flex.append((at, l))
    left = sched(P, mains, fixed, flex, keep=True, cap=cfg.cap)
    assert not any("L_slow" in (x[0] if isinstance(x, tuple) else x) for x in left)
    print("left over flex items", len(left))
    stamp("FFN done")
    for m in range(4):
        for pr in range(2):
            P.extend(epi2(ACB, [2*pr, 2*pr+1], m, lambda q: (f"buffer_store_dwordx4 {vq(q)}, v14, {srd(sWS)}, s{80+m} offen offset:{1024 + 512*pr} sc1", "p2")))
    P(f"v_add_u32 v250, {F3B - F3A}, v250\nv_add_u32 v251, {F3B - F3A}, v251")
    nleft = min(len(left), cfg.nleft)
    P.extend(left[:nleft])
    P("@waitvm p2\ns_barrier")
    set_flag(250)
    stamp("F3b set")
    P.extend(left[nleft:])
    poll(251, 5)
    stamp("F3b seen")
    P.extend(red_loads(252, 1024, 96))
    P.extend(red_sum(2, 96, 254, 78, 128))
    P(f"""s_cmp_lg_u32 s2, 0
s_cbranch_scc1 L_noepoch
s_cmp_lg_u32 s{sW}, 0
s_cbranch_scc1 L_noepoch""")
    P(f"v_lshrrev_b32 v6, 5, v{vL}\nv_lshlrev_b32 v6, 12, v6\nv_and_b32 v7, 31, v{vL}\nv_lshl_add_u32 v6, v7, 2, v6\nv_add_u32 v6, {F0S}, v6")
    for k in range(4):
        poll(6, 5)
        P("v_add_u32 v6, 8192, v6")
    P(f"v_mov_b32 v6, 0\nv_mov_b32 v5, s{sTAG}\ns_mov_b64 exec, 1\nbuffer_store_dword v5, v6, {srd(sWS)}, 0 offen\ns_mov_b64 exec, -1\nL_noepoch:")
    if cfg.stamps:
        P("s_waitcnt vmcnt(0)")
        stamp("end")
        P(f"s_lshl_b32 s84, s2, 2\ns_add_u32 s84, s84, s{sW}\ns_lshl_b32 s84, s84, 7\ns_add_u32 s84, s84, {STAMPS}\nv_mov_b32 v6, s84\ns_mov_b64 exec, 1")
        if cfg.diag is not None:
            a, b = cfg.diag
            P(f"s_sub_u32 s84, s{STAMP0+b}, s{STAMP0+a}\ns_lshl_b32 s84, s84, 2\ns_add_u32 s84, s84, 10000\nL_spin:\ns_sleep 8\ns_memrealtime s[100:101]\ns_waitcnt lgkmcnt(0)\ns_sub_u32 s85, s100, s{STAMP0}\ns_cmp_lt_u32 s85, s84\ns_cbranch_scc1 L_spin")
        elif cfg.dbg:
            P(f"v_mov_b32 v6, 0\ns_not_b32 s84, s{STAMP0}\nv_mov_b32 v5, s84\nbuffer_atomic_umax v5, v6, {srd(sR)}, 0 offen")
            for k in range(min(nstamp[0], 15)):
                P(f"v_mov_b32 v{16+k}, s{STAMP0+k}\nbuffer_atomic_umax v{16+k}, v6, {srd(sR)}, 0 offen offset:{4*k+4}")
        else:
          for k in range(nstamp[0]):
            P(f"v_mov_b32 v5, s{STAMP0+k}\nbuffer_store_dword v5, v6, {srd(sWS)}, 0 offen offset:{4*k}")
    P("L_end:\ns_endpgm")
    for x in slow: P(x)
    cfg.names = names
    return P

def sched(P, mains, fixed, flex, cap=2, keep=False):
    k = 0; marks = set()
    def put(it):
        t = it[0] if isinstance(it, tuple) else it
        if t.startswith("@mark"): marks.add(t[5:]); return 0
        if t.startswith("@flexdone"):
            nonlocal k
            while t[9:] not in marks:
                put(flex[k][1]); k += 1
            return 0
        P.add(it)
        return sum(1 for l in t.split("\n") if not l.startswith("@") and not l.endswith(":"))
    for n, m in enumerate(mains):
        P.add(m)
        c = 0
        for it in fixed.get(n, []): c += put(it)
        while k < len(flex) and c < cap and flex[k][0] <= n:
            it = flex[k][1]; k += 1
            c += put(it)
    if keep: return [f[1] for f in flex[k:]]
    while k < len(flex):
        it = flex[k][1]; k += 1
        put(it)

import struct
def hexf(x): return hex(struct.unpack("<I", struct.pack("<f", x))[0])

HEADER = open("cdna_kernels/" + NAME + ".s.ref").read().split("; Override launch geometry")[0]
def build(cfg, verbose=False):
    body = finalize(gen(cfg), verbose)
    k = NAME + "_kernel"
    return (HEADER + f"; @launch grid=(256,1,1) block=(256,1,1) lds={LDS_BYTES}\n"
        + f'.amdgcn_target "amdgcn-amd-amdhsa--gfx950"\n.text\n.globl {k}\n.p2align 8\n.type {k},@function\n{k}:\n' + body
        + f""".section .rodata,"a"
.p2align 6
.amdhsa_kernel {k}
  .amdhsa_next_free_vgpr 512
  .amdhsa_next_free_sgpr 102
  .amdhsa_accum_offset 256
  .amdhsa_group_segment_fixed_size 0
  .amdhsa_kernarg_size 88
  .amdhsa_user_sgpr_count 2
  .amdhsa_user_sgpr_kernarg_segment_ptr 1
  .amdhsa_system_sgpr_workgroup_id_x 1
.end_amdhsa_kernel
""")

if __name__ == "__main__":
    cfg = Cfg()
    out = sys.argv[1]
    for a in sys.argv[2:]:
        k, v = a.split("=")
        setattr(cfg, k, eval(v))
    open(out, "w").write(build(cfg, True))
    if cfg.stamps: open(out + ".names", "w").write("|".join(cfg.names))
```

```python
import sys
from ir import *

NAME = "sequential_preLN__sliding_local_dilated__dense_activation_squared_relu__prompt"

F0S, F1G, F1S, F2G, F2S, F3A, F3B, STATS, F3C = 0x10000, 0x20000, 0x48000, 0x50000, 0x78000, 0x80000, 0xA0000, 0xC0000, 0xE0000
WQP, WOP, OP, HP, W1R, W2R, PART, STAMPS = 0x100000, 0x300000, 0x400000, 0x700000, 0xA00000, 0x1000000, 0x1600000, 0x3000000
WS_BYTES = 0x4000000
OOB = 0x40000000
LDS_BYTES = 163840
XB = 71680
R0SCR = 49152
W1SCR = 0
WOB = 0
W2SCR0 = 32768
W2SCR = 98304
XRS = 131072
VXS = 143360
XN, HB = 0, 73728
sX, sWQ, sWO, sW1, sW2, sB1, sB2, sOUT, sWS, sR = 28, 32, 36, 40, 44, 48, 52, 56, 60, 88
sW, sG2, sJ2, sGF, sJF, sTAG = 68, 69, 70, 71, 72, 73
def srd(n): return f"s[{n}:{n+3}]"
def vq(n, k=4): return f"v[{n}:{n+k-1}]"
def aq(n, k=4): return f"a[{n}:{n+k-1}]"
MF = "v_mfma_f32_16x16x32_bf16"
vL, vI, vG, vL16 = 1, 2, 3, 4

class Cfg:
    stamps = False
    nx1 = 4
    p1depth = 4
    npre = 25
    rot = True
    npre1 = 12
    wospan = 10
    f3 = (10, 14)
    pre = (12, 6, 6, 12, 18)
    wo_early = 8
    dmagap = 10
    touch = 0
    no1 = 8
    ogap = 3.5
    nh2 = 10
    hgap = 5
    p1early = False
    wflag = False
    tail4 = (18, 132, 110, 110, 200, 190, 20)
    scost = 130
    lcost = 70
    skip = ()
    lag = 6
    gq = (0, 0, 0, 0)
    f1s = 11
    tail = (14, 13, 232, 44, 5, 11, 18)
    tailord = 0
    backlog = 400
    tgap = 18.5
    slack = 70
    margin = 64
    wcost = 72
    rawfl = ' nt'
    r0fl = ' nt'
    wrsfl = ' sc1'
    rawat = 1
    ilv = True
    w2at = 1
    w2st = 0
    nh1 = 8
    hold = 0
    w2lead = 16
    nleft = 60
    p1z4 = 1
    nx2 = 8
    dbg = False
    diag = None
    wsbase = 0
    only = None
    cap = 2
    wsc = " sc1"
    nwo1 = 40
    stop = None

def gen(cfg):
    P = Prog()
    sG1, sJ1 = (sGF, sJF) if cfg.p1z4 == 1 else ((sG2, sJ2) if cfg.p1z4 == 0 else (65, 66))
    nstamp = [0]
    names = []
    def stamp_txt(name):
        if cfg.stamps and (cfg.only is None or name.replace(" ", "_") in cfg.only or name == "end") and not (cfg.only is None and name.startswith("@")):
            k = nstamp[0]; nstamp[0] += 1; names.append(name); assert k < 20, name
            return f"{'s_memtime' if cfg.stamps == 2 else 's_memrealtime'} s[100:101]\n@waitlg_all\ns_mov_b32 s{STAMP0+k}, s100"
        return None
    def stamp(name):
        t = stamp_txt(name)
        if t: P(t)
    STAMP0 = 4
    npoll = [0]
    def poll(vaddr, vtmp):
        k = npoll[0]; npoll[0] += 1
        P(f"""s_mov_b32 s97, 0
L_poll{k}:
buffer_load_dword v{vtmp}, v{vaddr}, {srd(sWS)}, 0 offen sc1
s_add_u32 s97, s97, 1
s_waitcnt vmcnt(0)
v_cmp_ne_u32 vcc, s{sTAG}, v{vtmp}
s_cmp_gt_u32 s97, 400000
s_cbranch_scc1 L_pdone{k}
s_cbranch_vccnz L_poll{k}
L_pdone{k}:""")
    slow = []
    def poll_pre(vaddr, vtmp):
        return (f"buffer_load_dword v{vtmp}, v{vaddr}, {srd(sWS)}, 0 offen sc1", "pl")
    def poll_check(vaddr, vtmp):
        k = npoll[0]; npoll[0] += 1
        slow.append(f"""L_slow{k}:
s_mov_b32 s97, 0
L_poll{k}:
buffer_load_dword v{vtmp}, v{vaddr}, {srd(sWS)}, 0 offen sc1
s_add_u32 s97, s97, 1
s_waitcnt vmcnt(0)
v_cmp_ne_u32 vcc, s{sTAG}, v{vtmp}
s_cmp_gt_u32 s97, 400000
s_cbranch_scc1 L_back{k}
s_cbranch_vccnz L_poll{k}
s_branch L_back{k}""")
        return f"v_cmp_ne_u32 vcc, s{sTAG}, v{vtmp}\ns_cbranch_vccnz L_slow{k}\nL_back{k}:"
    def wrap(sr, step, send, sbeg):
        return f"s_add_u32 s{sr}, s{sr}, {step}\ns_cmp_eq_u32 s{sr}, s{send}\ns_cselect_b32 s{sr}, s{sbeg}, s{sr}"
    def set_flag(vaddr):
        P(f"v_mov_b32 v5, s{sTAG}")
        P(f"buffer_store_dword v5, v{vaddr}, {srd(sWS)}, 0 offen sc1", "flag")

    P("""s_cmp_ge_u32 s2, 256
s_cbranch_scc1 L_end
s_load_dwordx16 s[4:19], s[0:1], 0
s_load_dwordx4 s[20:23], s[0:1], 64
s_load_dwordx2 s[24:25], s[0:1], 80""")
    if cfg.stamps: P("s_memtime s[26:27]" if cfg.stamps == 2 else "s_memrealtime s[26:27]")
    P(f"""v_lshrrev_b32 v5, 6, v0
v_and_b32 v{vL}, 63, v0
v_readfirstlane_b32 s{sW}, v5
v_and_b32 v{vI}, 15, v0
v_lshrrev_b32 v{vG}, 4, v{vL}
v_lshlrev_b32 v{vL16}, 4, v{vL}
s_and_b32 s74, s2, 7
s_lshr_b32 s75, s2, 3
s_lshl_b32 s{sG2}, s74, 2
s_lshr_b32 s76, s75, 3
s_add_u32 s{sG2}, s{sG2}, s76
s_and_b32 s{sJ2}, s75, 7
s_lshr_b32 s{sGF}, s74, 2
s_lshl_b32 s{sGF}, s{sGF}, 4
s_lshr_b32 s76, s75, 1
s_add_u32 s{sGF}, s{sGF}, s76
s_and_b32 s{sJF}, s74, 3
s_lshl_b32 s{sJF}, s{sJF}, 1
s_and_b32 s76, s75, 1
s_add_u32 s{sJF}, s{sJF}, s76
""")
    if cfg.p1z4 == 2:
        P(f"""s_lshr_b32 s65, s74, 1
s_lshl_b32 s65, s65, 3
s_lshr_b32 s76, s75, 2
s_add_u32 s65, s65, s76
s_and_b32 s66, s74, 1
s_lshl_b32 s66, s66, 2
s_and_b32 s76, s75, 3
s_add_u32 s66, s66, s76""")
    P(f"""s_lshl_b32 s77, s{sW}, 5
s_add_u32 s77, s77, s{sG1}
s_mul_i32 s78, s{sJ1}, 144""")
    sRP, sRF, sR2 = 0, 1, 3
    P(f"""s_cmp_lt_u32 s77, 72
s_cbranch_scc0 L_r0_wo
v_mul_u32_u24 v6, 2428, v{vL}
v_lshrrev_b32 v6, 16, v6
v_mul_u32_u24 v7, 27, v6
v_sub_u32 v7, v{vL}, v7
v_mul_u32_u24 v8, 7282, v7
v_lshrrev_b32 v8, 16, v8
v_mul_u32_u24 v9, 9, v8
v_sub_u32 v9, v7, v9
v_mul_u32_u24 v6, 3456, v6
v_mul_u32_u24 v8, 1152, v8
v_lshlrev_b32 v9, 4, v9
v_add3_u32 v5, v6, v8, v9
v_cmp_gt_u32 vcc, 54, v{vL}
s_mul_i32 s80, s77, {8*3456}
s_add_u32 s80, s80, s78
s_add_u32 s81, s80, {6912-1024}
s_add_u32 s82, s81, {6912-1024}
s_add_u32 s83, s82, {6912-1024}
s_branch L_r0_join
L_r0_wo:
v_mul_u32_u24 v6, 7282, v{vL}
v_lshrrev_b32 v6, 16, v6
v_mul_u32_u24 v7, 9, v6
v_sub_u32 v7, v{vL}, v7
v_mul_u32_u24 v6, 1152, v6
v_lshl_add_u32 v5, v7, 4, v6
v_cmp_gt_u32 vcc, 36, v{vL}
s_sub_u32 s79, s77, 72""")
    for G in range(2):
        if G: P("s_add_u32 s79, s79, 36")
        P(f"""s_lshr_b32 s84, s79, 2
s_mul_i32 s84, s84, 36
s_bfe_u32 s85, s79, 0x10001
s_mul_i32 s85, s85, 20
s_add_u32 s84, s84, s85
s_and_b32 s85, s79, 1
s_lshl_b32 s85, s85, 3
s_add_u32 s84, s84, s85
s_add_u32 s85, s84, 4
s_sub_u32 s86, s79, 64
s_mul_i32 s86, s86, 72
s_add_u32 s86, s86, 16
s_add_u32 s87, s86, 36
s_cmp_lt_u32 s79, 64
s_cselect_b32 s84, s84, s86
s_cselect_b32 s85, s85, s87
s_mul_i32 s84, s84, 1152
s_mul_i32 s85, s85, 1152
s_add_u32 s84, s84, s78
s_add_u32 s85, s85, s78
s_sub_u32 s{80+2*G}, s84, {1024*(2*G)}
s_sub_u32 s{81+2*G}, s85, {1024*(2*G+1)}""")
    P(f"""s_cmp_lt_u32 s77, 108
s_cselect_b32 s80, s80, {OOB}
s_cselect_b32 s81, s81, {OOB}
s_cselect_b32 s82, s82, {OOB}
s_cselect_b32 s83, s83, {OOB}
L_r0_join:
s_nop 1
v_mov_b32 v6, {OOB}
v_cndmask_b32 v5, v6, v5, vcc
s_lshl_b32 s84, s{sW}, 12
s_add_u32 s84, s84, {R0SCR}
s_mov_b32 m0, s84
s_waitcnt lgkmcnt(0)""")
    def mksrd(d, p, n):
        P(f"s_mov_b32 s{d}, s{p}\ns_and_b32 s{d+1}, s{p+1}, 0xffff\ns_mov_b32 s{d+2}, {n}\ns_mov_b32 s{d+3}, 0x00020000")
    P(f"""s_cmp_lt_u32 s77, 72
s_cselect_b32 s{sR}, s6, s8
s_cselect_b32 s{sR+1}, s7, s9
s_mov_b32 s85, {576*1152}
s_cselect_b32 s{sR+2}, {576*3456}, s85
s_and_b32 s{sR+1}, s{sR+1}, 0xffff
s_mov_b32 s{sR+3}, 0x00020000""")
    if cfg.stamps: P(("s_memtime" if cfg.stamps == 2 else "s_memrealtime") + " s[38:39]")
    for q in range(4):
        P(f"buffer_load_dwordx4 v5, {srd(sR)}, s{80+q} offen offset:{1024*q}{cfg.r0fl} lds", "r0")
    mksrd(sX, 4, 2048*1152)
    if cfg.wsbase: P(f"s_add_u32 s24, s24, {cfg.wsbase}\ns_addc_u32 s25, s25, 0")
    P(f"s_load_dword s{sTAG}, s[24:25], 0")
    XR, XH = 160, 232
    P(f"""s_lshl_b32 s84, s{sG1}, 6
s_and_b32 s85, s{sW}, 1
s_lshl_b32 s85, s85, 5
s_add_u32 s85, s85, s84
s_lshr_b32 s86, s{sW}, 1
s_add_u32 s85, s85, s86
s_mul_i32 s85, s85, 1152
v_lshrrev_b32 v8, 3, v{vL}
v_and_b32 v9, 7, v{vL}
v_mul_u32_u24 v6, 2304, v8
v_lshl_add_u32 v6, v9, 4, v6
v_add_u32 v6, s85, v6
v_add_u32 v7, {8*2304}, v6""")
    if cfg.rot:
        P(f"""s_and_b32 s86, s{sG2}, 3
s_mul_i32 s86, s86, 9
s_add_u32 s86, s86, 2
s_lshr_b32 s86, s86, 2
s_add_u32 s86, s86, s{sJ2}
s_sub_u32 s87, s86, 9
s_cmp_ge_u32 s86, 9
s_cselect_b32 s{sRP}, s87, s86
s_lshl_b32 s86, s{sG2}, 1
s_add_u32 s86, s86, s{sJ2}
s_and_b32 s{sR2}, s86, 7
s_and_b32 s86, s{sJF}, 1
s_mul_i32 s86, s86, 9
s_and_b32 s87, s{sGF}, 15
s_add_u32 s86, s86, s87
s_sub_u32 s87, s86, 18
s_cmp_ge_u32 s86, 18
s_cselect_b32 s{sRF}, s87, s86""")
        if cfg.p1z4 == 1: P(f"s_lshr_b32 s{sRP}, s{sRF}, 1")
        if cfg.p1z4 == 2:
            P(f"""s_and_b32 s86, s66, 3
s_mul_i32 s86, s86, 9
s_add_u32 s86, s86, 2
s_lshr_b32 s86, s86, 2
s_and_b32 s87, s65, 7
s_add_u32 s86, s86, s87
s_sub_u32 s87, s86, 9
s_cmp_ge_u32 s86, 9
s_cselect_b32 s{sRP}, s87, s86""")
    else:
        P(f"s_mov_b32 s{sRP}, 0\ns_mov_b32 s{sRF}, 0\ns_mov_b32 s{sR2}, 0")
    P(f"s_lshl_b32 s88, s{sRP}, 7")
    for q in range(1, 9):
        P(f"s_add_u32 s{88+q}, s{87+q}, 128\ns_cmp_eq_u32 s{88+q}, 1152\ns_cselect_b32 s{88+q}, 0, s{88+q}")
    xl = []
    for q in range(9):
        for hh in range(2):
            xl.append(f"buffer_load_dwordx4 {vq(XR + (q*2+hh)*4)}, v{6+hh}, {srd(sX)}, s{88+q} offen")
    for l in xl[:cfg.nx1]: P(l, "x")
    mksrd(sWS, 24, WS_BYTES)
    P(f"""s_lshl_b32 s85, s{sW}, 2
v_add_u32 v10, s85, v{vG}
v_and_b32 v11, 7, v10
v_lshrrev_b32 v12, 3, v10
v_lshl_add_u32 v11, v11, 1, v12
v_add_u32 v11, s84, v11
v_subrev_u32 v11, 16, v11
v_mul_u32_u24 v11, 1152, v11
s_cmp_eq_u32 s{sG1}, 0
s_cselect_b32 s85, {OOB}, 0
s_cselect_b32 s86, 0, -1
v_and_b32 v11, s86, v11
v_or_b32 v11, s85, v11
v_mov_b32 v13, {OOB}
s_lshl_b32 s85, s{sRP}, 3
v_add_u32 v12, s85, v{vI}""")
    for q in range(5):
        P(f"""v_add_u32 v{84+q}, {16*q}, v12
v_subrev_u32 v89, 72, v{84+q}
v_min_u32 v{84+q}, v{84+q}, v89
v_lshl_add_u32 v{84+q}, v{84+q}, 4, v11""")
    P(f"v_cmp_gt_u32 vcc, 8, v{vI}\nv_cndmask_b32 v88, v13, v88, vcc")
    hl = [f"buffer_load_dwordx4 {vq(XH + 4*q)}, v{84+q}, {srd(sX)}, 0 offen" for q in range(5)]
    P(f"""v_bfe_u32 v14, v{vL}, 2, 2
v_and_b32 v15, 3, v{vL}
s_lshl_b32 s84, s{sW}, 12
s_add_u32 s84, s84, {R0SCR}
s_cmp_lt_u32 s77, 72
s_cbranch_scc0 L_r1_wo
v_lshrrev_b32 v16, 1, v14
v_lshlrev_b32 v16, 10, v16
v_and_b32 v17, 1, v14
v_mul_u32_u24 v17, 432, v17
v_add3_u32 v16, v16, v17, s84
v_mul_u32_u24 v17, 36, v{vG}
v_and_b32 v18, 1, v{vG}
v_lshl_add_u32 v17, v18, 2, v17
v_lshl_add_u32 v17, v15, 3, v17
v_add_u32 v32, v16, v17
v_add_u32 v34, 144, v32
v_add_u32 v36, 288, v32
v_min_u32 v17, 2, v15
v_mul_u32_u24 v17, 144, v17
v_mul_u32_u24 v18, 72, v18
v_add3_u32 v38, v16, v17, v18
v_add_u32 v38, 32, v38
s_mov_b32 s85, 2048
s_lshr_b32 s86, s77, 2
s_mul_i32 s87, s{sJ1}, 72
s_add_u32 s86, s86, s87
s_mul_i32 s86, s86, 3584
s_add_u32 s86, s86, {WQP}
s_and_b32 s87, s77, 3
v_mul_u32_u24 v16, {18*3584}, v{vG}
v_lshl_add_u32 v16, v{vI}, 4, v16
s_lshl_b32 s79, s87, 8
s_add_u32 s79, s79, s86
v_add_u32 v40, s79, v16
v_add_u32 v41, 1024, v40
v_add_u32 v42, 2048, v40
v_lshrrev_b32 v16, 1, v15
v_lshl_add_u32 v16, v{vG}, 1, v16
v_mul_u32_u24 v16, {18*3584}, v16
v_and_b32 v17, 1, v15
v_lshl_add_u32 v17, v14, 1, v17
v_lshl_add_u32 v16, v17, 4, v16
s_lshl_b32 s79, s87, 7
s_add_u32 s79, s79, s86
s_add_u32 s79, s79, 3072
v_add_u32 v16, s79, v16
v_cmp_gt_u32 vcc, 32, v{vL}
v_cndmask_b32 v43, v13, v16, vcc
s_branch L_r1_join
L_r1_wo:
v_mul_u32_u24 v16, 144, v14
v_add_u32 v16, s84, v16
v_lshrrev_b32 v17, 1, v{vG}
v_lshlrev_b32 v17, 6, v17
v_and_b32 v18, 1, v{vG}
v_lshl_add_u32 v17, v18, 3, v17
v_lshl_add_u32 v17, v15, 4, v17
v_add_u32 v32, v16, v17
v_and_b32 v17, 1, v15
v_lshl_add_u32 v34, v17, 3, v16
v_add_u32 v34, 128, v34
v_add_u32 v36, 2048, v32
v_add_u32 v38, 2048, v34
s_mov_b32 s85, 1024
v_lshlrev_b32 v16, 10, v{vG}
v_lshl_add_u32 v16, v{vI}, 4, v16
v_cmp_gt_u32 vcc, 8, v{vL}
v_cndmask_b32 v17, v13, v{vL16}, vcc
s_sub_u32 s79, s77, 72""")
    for G in range(2):
        if G: P("s_add_u32 s79, s79, 36")
        P(f"""s_lshr_b32 s86, s79, 2
s_mul_i32 s87, s{sJ1}, 18
s_add_u32 s86, s86, s87
s_mul_i32 s86, s86, 4608
s_add_u32 s86, s86, {WOP}
s_cmp_lt_u32 s77, 108
s_cselect_b32 s86, s86, {OOB}
s_and_b32 s87, s79, 3
s_lshl_b32 s76, s87, 8
s_add_u32 s76, s76, s86
v_add_u32 v{40+2*G}, s76, v16
s_lshl_b32 s76, s87, 7
s_add_u32 s76, s76, s86
s_add_u32 s76, s76, 4096
v_add_u32 v{41+2*G}, s76, v17""")
    P("L_r1_join:\ns_nop 1")
    for t in range(4): P(f"v_add_u32 v{33+2*t}, s85, v{32+2*t}")
    mksrd(sW1, 12, 576*9216); mksrd(sW2, 16, 4608*1152); mksrd(sB1, 14, 9216); mksrd(sB2, 18, 1152); mksrd(sOUT, 20, 2048*1152)
    if cfg.dbg: mksrd(sR, 22, 256)
    if cfg.stamps: P("@waitlg_all\ns_mov_b32 s4, s26"); P("s_mov_b32 s5, s38"); nstamp[0] = 2; names.append("start"); names.append("r0 issue")
    P("s_mov_b32 s99, 0x3f803f80\ns_mov_b32 s98, 0xffff0000")
    if cfg.touch:
        P(f"v_lshlrev_b32 v90, 21, v{vL}\nv_min_u32 v90, {0x2800000}, v90")
        P(f"buffer_load_dword v60, v90, {srd(sWS)}, 0 offen", "tch")
        if cfg.touch > 1:
            P(f"buffer_load_dword v61, v90, {srd(sW1)}, 0 offen", "tch")
            P(f"buffer_load_dword v62, v90, {srd(sW2)}, 0 offen", "tch")
            P(f"buffer_load_dword v63, v90, {srd(sOUT)}, 0 offen", "tch")
    UP = {(1, 0): (32, 33, 34), (1, 1): (35, 36, 37), (2, 0): (24, 25, 34), (2, 1): (26, 27, 37)}
    for z in range(2):
        a1, d1, st = UP[(1, z)]; a2, d2, _ = UP[(2, z)]
        P(f"""s_add_u32 s84, s77, {128*z}
s_mul_i32 s85, s84, 7282
s_lshr_b32 s85, s85, 16
s_mul_i32 s86, s85, 9
s_sub_u32 s86, s84, s86
s_lshl_b32 s76, s86, 7
s_mul_i32 s87, s85, {32*9216}
s_add_u32 s87, s87, s76
s_mul_i32 s75, s{sJ1}, 1152
s_add_u32 s{a1}, s87, s75
s_mul_i32 s87, s85, {32*1152}
s_add_u32 s87, s87, s76
s_mul_i32 s75, s{sJ1}, {576*1152}
s_add_u32 s{a2}, s87, s75
s_lshr_b32 s79, s85, 2
s_lshl_b32 s79, s79, 1
s_and_b32 s75, s85, 1
s_add_u32 s79, s79, s75
s_add_u32 s75, s79, 10
s_bitcmp1_b32 s85, 1
s_cselect_b32 s79, s75, s79
s_lshr_b32 s87, s86, 1
s_mul_i32 s87, s87, 162
s_and_b32 s76, s86, 1
s_lshl_b32 s76, s76, 2
s_add_u32 s87, s87, s76
s_cmp_eq_u32 s86, 8
s_cselect_b32 s87, 8, s87
s_cselect_b32 s{st}, 162, 1
s_lshl_b32 s{st}, s{st}, 10
s_mul_i32 s76, s{sJ1}, 648
s_add_u32 s87, s87, s76
s_mul_i32 s75, s85, 9
s_add_u32 s75, s75, s87
s_lshl_b32 s75, s75, 10
s_add_u32 s{d1}, s75, {W1R}
s_mul_i32 s75, s79, 9
s_add_u32 s75, s75, s87
s_lshl_b32 s75, s75, 10
s_add_u32 s{d2}, s75, {W2R}""")
        if z:
            P("s_cmp_lt_u32 s84, 162")
            for r in (a1, d1, a2, d2): P(f"s_cselect_b32 s{r}, s{r}, {OOB}")
    P(f"""v_mul_u32_u24 v92, 9216, v8
v_lshl_add_u32 v92, v9, 4, v92
v_mul_u32_u24 v93, 1152, v8
v_lshl_add_u32 v93, v9, 4, v93
v_lshl_add_u32 v94, v{vG}, 3, v14
v_lshlrev_b32 v94, 7, v94
v_lshl_add_u32 v94, v15, 4, v94
s_lshl_b32 s84, s{sW}, 13
v_add_u32 v94, s84, v94""")
    def unit_dma(mat, z, scr, vs=None):
        a = UP[(mat, z)][0]; st = 9216 if mat == 1 else 1152
        L = [f"s_lshl_b32 s84, s{sW}, 13\ns_add_u32 s84, s84, {scr + 4096*z}\ns_mov_b32 m0, s84"]
        for q in range(4):
            if q: L.append(f"s_add_u32 s{a}, s{a}, {8*st - 1024}")
            L.append((f"buffer_load_dwordx4 v{vs or 91+mat}, {srd(sW1 if mat == 1 else sW2)}, s{a} offen offset:{1024*q}{cfg.rawfl} lds", "wr"))
        return L
    def unit_tr(z, scr, vt):
        return [f"ds_read_b64_tr_b16 {vq(vt+4*t+2*hi,2)}, v94 offset:{scr + 4096*z + 64*(t>>1) + 8*(t&1) + 512*hi}" for t in range(4) for hi in range(2)]
    def unit_st(mat, z, vt):
        _, d, st = UP[(mat, z)]; L = []
        for t in range(4):
            if t: L.append(f"s_add_u32 s{d}, s{d}, s{st}")
            L.append((f"buffer_store_dwordx4 {vq(vt+4*t)}, v{vL16}, {srd(sWS)}, s{d} offen{cfg.wrsfl}", "wrs"))
        return L
    MS, MP, ME, MO = 96, 100, 104, 108
    P(f"""v_mov_b32 v66, {hexf(-1e30)}
v_lshlrev_b32 v64, 2, v{vG}
v_sub_u32 v64, v64, v{vI}
s_cmp_eq_u32 s{sG1}, 0
s_cselect_b32 s84, 100, 0
v_cmp_gt_u32 s[80:81], 2, v{vG}""")
    for r in range(4):
        P(f"""v_add_u32 v65, {r+7}, v64
v_cmp_gt_u32 vcc, 8, v65
v_add_u32 v65, {r}, v64
v_subrev_u32 v67, s84, v65
v_cndmask_b32 v{MS+r}, v66, 0, vcc
v_cmp_lt_i32 vcc, 8, v65
v_cmp_lt_i32 s[82:83], 8, v67
v_cmp_lt_i32 s[86:87], 0, v67
v_cndmask_b32 v{MP+r}, v66, 0, vcc
s_and_b64 s[86:87], s[86:87], s[80:81]
v_cndmask_b32 v{MO+r}, v66, 0, s[82:83]
v_cndmask_b32 v{ME+r}, v66, 0, s[86:87]""")
    P("@waitvm r0")
    stamp("r0 landed")
    for t in range(4):
        P(f"ds_read_b64_tr_b16 {vq(16+4*t,2)}, v{32+2*t}")
        P(f"ds_read_b64_tr_b16 {vq(18+4*t,2)}, v{33+2*t}")
    for t in range(4):
        P(f"buffer_store_dwordx4 {vq(16+4*t)}, v{40+t}, {srd(sWS)}, 0 offen sc1", "r0s")
    stamp("@r0 st")
    xrest = xl[cfg.nx1:] + hl
    P(f"@waitlg_all\ns_add_u32 s{sTAG}, s{sTAG}, 0x9E3779B9")
    P(f"""s_lshl_b32 s84, s{sJ1}, 12
s_add_u32 s84, s84, {F0S}
s_lshl_b32 s85, s{sG1}, 2
s_add_u32 s85, s85, s84
v_mov_b32 v44, s85
v_cmp_eq_u32 vcc, 0, v0
v_cndmask_b32 v44, v13, v44, vcc
v_and_b32 v45, 31, v{vL}
v_lshl_add_u32 v45, v45, 2, s84
s_lshl_b32 s84, s{sJ2}, 12
s_add_u32 s84, s84, {F0S - 128}
v_lshl_add_u32 v5, v{vL}, 2, s84
v_cmp_gt_u32 vcc, 32, v{vL}
v_cndmask_b32 v45, v5, v45, vcc""")
    def stats(groups, acc):
        order = sorted((r, gi, k) for gi, regs in enumerate(groups) for k, r in enumerate(regs))
        L = []
        for r, gi, k in order:
            a = acc + 4*gi + 2*(k & 1)
            c0 = "0" if k < 2 else f"v{a}"; c1 = "0" if k < 2 else f"v{a+1}"
            L.append(f"v_dot2_f32_bf16 v{a}, v{r}, s99, {c0}\nv_dot2_f32_bf16 v{a+1}, v{r}, v{r}, {c1}")
        for gi in range(len(groups)):
            a = acc + 4*gi
            L.append(f"v_add_f32 v{a}, v{a}, v{a+2}\nv_add_f32 v{a+1}, v{a+1}, v{a+3}")
        return L
    def finish_stats(A):
        for t in [f"v_mul_f32 v@0, {hexf(1/576)}, v@0", f"v_mul_f32 v@2, v@0, v@0", f"v_mul_f32 v@1, {hexf(1/576)}, v@1", "v_sub_f32 v@1, v@1, v@2",
                  "v_max_f32 v@1, 0, v@1", f"v_add_f32 v@1, {hexf(1e-5)}, v@1", "v_rsq_f32 v@1, v@1", "v_mul_f32 v@2, v@0, -v@1",
                  "v_mov_b32 v@0, v@1", "v_mov_b32 v@3, v@2"]:
            for a in A: P(t.replace("@0", str(a)).replace("@1", str(a+1)).replace("@2", str(a+2)).replace("@3", str(a+3)))
    def normalize(q, a, t, pk=True):
        L = []
        for d in range(4):
            L.append(f"v_lshlrev_b32 v{t+2*d}, 16, v{q+d}")
            L.append(f"v_and_b32 v{t+2*d+1}, s98, v{q+d}")
        if pk:
            for d in range(4): L.append(f"v_pk_fma_f32 {vq(t+2*d,2)}, {vq(t+2*d,2)}, {vq(a,2)}, {vq(a+2,2)}")
        else:
            for d in range(8): L.append(f"v_fma_f32 v{t+d}, v{t+d}, v{a}, v{a+2}")
        for d in range(4): L.append(f"v_cvt_pk_bf16_f32 v{q+d}, v{t+2*d}, v{t+2*d+1}")
        return L
    ST = 144; NT = 112
    st = stats([[XR + (q*2+hh)*4 + d for q in range(9) for d in range(4)] for hh in range(2)] + [[XH + k for k in range(20)]], ST)
    raw = {1: [], 2: []}
    for z in range(2):
        raw[1] += unit_dma(1, z, W1SCR); raw[2] += unit_dma(2, z, W2SCR0)
    raw[1].append(f"s_mul_i32 s84, s{sJF}, 1152\nv_lshlrev_b32 v5, 7, v{vI}")
    raw[1].append((f"buffer_load_dword v90, v5, {srd(sB1)}, s84 offen", "wr"))
    raw[1].append((f"buffer_load_dword v91, v5, {srd(sB2)}, 0 offen", "wr"))
    k = 0
    for n, l in enumerate(xrest + [None]):
        if n == cfg.nx2:
            stamp("@pre-ack")
            P("@waitvm r0s")
            stamp("@acked")
            P("s_barrier")
            set_flag(44)
            stamp("F0 set")
        if l is None: break
        P(l, "x")
        if cfg.nx1 + n + 1 - k//4 > cfg.lag: P.extend(st[k:k+4]); k += 4
    if cfg.rawat == 0: P.extend(raw[1])
    P.extend(st[k:])
    if cfg.rawat == 1: P.extend(raw[1])
    if cfg.w2at == 4: P.extend(raw[2])
    for mod in ["quad_perm:[1,0,3,2]", "quad_perm:[2,3,0,1]", "row_half_mirror"]:
        for gi in range(3):
            for k in range(2):
                a = ST + 4*gi + k
                P(f"v_add_f32_dpp v{a}, v{a}, v{a} {mod} row_mask:0xf bank_mask:0xf")
    for k in range(2): P(f"v_add_f32_dpp v{ST+8+k}, v{ST+8+k}, v{ST+8+k} row_mirror row_mask:0xf bank_mask:0xf")
    finish_stats([ST, ST+4, ST+8])
    stamp("LN1 stats")
    P(f"""v_lshrrev_b32 v156, 2, v9
v_mul_u32_u24 v156, 5120, v156
v_and_b32 v157, 3, v9
v_lshl_add_u32 v156, v157, 8, v156
v_xor_b32 v157, v8, v9
v_lshl_add_u32 v156, v157, 4, v156
s_lshl_b32 s84, s{sW}, 10
s_add_u32 s84, s84, {XB}
v_add_u32 v156, s84, v156
v_add_u32 v157, {10240*5}, v156
v_lshrrev_b32 v158, 2, v{vI}
v_mul_u32_u24 v158, 5120, v158
v_lshl_add_u32 v158, v15, 8, v158
v_xor_b32 v159, v10, v9
v_lshl_add_u32 v158, v159, 4, v158
v_add_u32 v158, {XB + 4096}, v158
v_add_u32 v159, {20480*3}, v158""")
    ntc = [0]
    def ln1_batch(b):
        L = []
        for q in range(2*b, min(2*b+2, 9)):
            for hh in range(2):
                r = XR + (q*2+hh)*4
                L += normalize(r, ST + 4*hh, NT + 8*(ntc[0] & 1), b < 2); ntc[0] += 1
                L.append(f"ds_write_b128 v{156 if q < 5 else 157}, {vq(r)} offset:{10240*(q % 5) + 128*hh}")
        L += normalize(XH + 4*b, ST + 8, NT + 8*(ntc[0] & 1), b < 2); ntc[0] += 1
        wr = f"ds_write_b128 v{158 if b < 3 else 159}, {vq(XH+4*b)} offset:{20480*(b % 3)}"
        if b == 4: wr = "s_mov_b32 exec_lo, 0x00ff00ff\ns_mov_b32 exec_hi, 0x00ff00ff\n" + wr + "\ns_mov_b64 exec, -1"
        L.append(wr)
        return L
    P.extend(ln1_batch(0))
    P(f"""s_lshl_b32 s74, s{sJ1}, 2
s_add_u32 s74, s74, s{sW}
s_mul_i32 s74, s74, {18*3584}
s_add_u32 s74, s74, {WQP}
s_add_u32 s75, s74, {18*3584}
s_mul_i32 s78, s{sRP}, {2*3584}
s_add_u32 s78, s78, s74
v_lshlrev_b32 v7, 7, v{vG}
v_lshl_add_u32 v7, v{vI}, 4, v7
v_cmp_gt_u32 vcc, 6, v{vI}
v_cndmask_b32 v7, v13, v7, vcc
v_xor_b32 v8, v{vI}, v{vG}
v_lshlrev_b32 v8, 4, v8
v_lshl_add_u32 v8, v{vG}, 8, v8
v_add_u32 v8, {XB}, v8
v_xor_b32 v9, 64, v8
v_add_u32 v10, 46080, v8
v_add_u32 v11, 46080, v9""")
    stamp("@LN1 b0")
    poll(45, 5)
    stamp("F0 seen")
    QA, KA, EA, VA = 16, 32, 52, 72
    WR = 64
    D = cfg.p1depth
    def wq_loads(s):
        b = WR + (s % D)*16
        L = [(f"buffer_load_dwordx4 {aq(b+4*t)}, v{vL16}, {srd(sWS)}, s78 offen offset:{1024*t}{cfg.wsc}", "wq") for t in range(3)]
        L.append((f"buffer_load_dwordx4 {aq(b+12)}, v7, {srd(sWS)}, s78 offen offset:3072{cfg.wsc}", "wq"))
        if s < 17: L.append(wrap(78, 3584, 75, 74))
        return L
    def x_reads(s):
        b = (s % 2)*20
        reg = (8 if s % 2 == 0 else 9) + (2 if s >= 9 else 0)
        return [f"ds_read_b128 {aq(b+4*m)}, v{reg} offset:{((s % 9)*5 + m)*1024}" for m in range(5)]
    for s in range(D-1): P.extend(wq_loads(s))
    if cfg.rawat == 2: P.extend(raw[1])
    P.extend(ln1_batch(1))
    P("@waitlg_all\ns_barrier")
    P.extend(x_reads(0))
    stamp("GEMM1 start")
    def lines(t): return t.split("\n")
    def own_flag(vd, base, sa, sha, sb, shb):
        return [f"s_lshl_b32 s86, s{sa}, {sha}", f"s_lshl_b32 s87, s{sb}, {shb}", "s_add_u32 s86, s86, s87", f"s_add_u32 s86, s86, {base}",
                f"v_mov_b32 v{vd}, s86", f"v_cmp_eq_u32 vcc, 0, v0\nv_cndmask_b32 v{vd}, v13, v{vd}, vcc"]
    def grp_poll_addr(vd, sg, base):
        return lines(f"""s_lshl_b32 s86, s{sg}, 12
s_add_u32 s86, s86, {base}
v_and_b32 v{vd}, 7, v{vL}
v_lshl_add_u32 v{vd}, v{vd}, 4, s86""")
    def set_poll_addr(vd, sj, base):
        return lines(f"""s_lshl_b32 s86, s{sj}, 12
s_add_u32 s86, s86, {base}
v_and_b32 v{vd}, 31, v{vL}
v_lshl_add_u32 v{vd}, v{vd}, 2, s86""")
    def flag_items(vaddr):
        return [f"v_mov_b32 v5, s{sTAG}", (f"buffer_store_dword v5, v{vaddr}, {srd(sWS)}, 0 offen sc1", "flag")]
    def unpack(dst, src, n):
        return sum([[f"v_lshlrev_b32 v{dst+2*k}, 16, v{src+k}", f"v_and_b32 v{dst+2*k+1}, s98, v{src+k}"] for k in range(n)], [])
    QO, KO, VO, XO = 112, 128, 148, 160
    flex = []
    T0 = 128
    for l in ln1_batch(2): flex.append((0, l))
    flex.append((0, "@mark0"))
    flex2 = []
    def join(L):
        out = []; pend = ""
        for x in L:
            if isinstance(x, tuple): out.append((pend + x[0], x[1])); pend = ""
            else: pend += x + "\n"
        return out
    q1, q2, q3, q4 = cfg.gq
    if cfg.rawat == 3:
        for k, l in enumerate(join(raw[1])): flex2.append((int(19*q1) + 2*k, l))
    def repack(mat, scr, g0):
        flex2.append((g0, "@waitvm wr"))
        for z in range(2):
            for l in unit_tr(z, scr, T0): flex2.append((g0 + 24*z, l))
            for k, l in enumerate(join(unit_st(mat, z, T0))): flex2.append((g0 + 24*z + 8 + 4*k, l))
    if cfg.w2at == 3 and q3 < q2:
        for k, l in enumerate(join(raw[2])): flex2.append((int(19*q3) + 2*k, l))
    repack(1, W1SCR, int(19*q2))
    if cfg.w2at >= 3:
        if q3 >= q2 and cfg.w2at == 3:
            for k, l in enumerate(join(raw[2])): flex2.append((int(19*q3) + 2*k, l))
        repack(2, W2SCR0, int(19*q4))
    flex2.append((0, "@markb"))
    for l in ln1_batch(3) + own_flag(95, F1S, sJ1, 12, sG1, 2): flex.append((0, l))
    flex.append((0, "@mark1"))
    for l in ln1_batch(4): flex.append((0, l))
    flex.append((0, "@mark2"))
    pre = lines(f"""s_lshl_b32 s84, s{sW}, 10
s_add_u32 s84, s84, {VXS}
v_lshl_add_u32 v234, v{vI}, 1, s84
v_add_u32 v235, 512, v234
v_cmp_eq_u32 vcc, 1, v{vG}@@v_cndmask_b32 v234, v235, v234, vcc
v_lshl_add_u32 v235, v{vL}, 2, s84
v_min_u32 v236, 2, v{vI}
v_mul_u32_u24 v236, 160, v236
v_lshl_add_u32 v236, v{vG}, 3, v236
v_add_u32 v236, s84, v236
v_mov_b32 v237, s99
s_mul_i32 s84, s{sG1}, 73728
s_add_u32 s84, s84, {OP}
s_lshl_b32 s85, s{sJ1}, 1
s_lshr_b32 s86, s{sW}, 1
s_add_u32 s85, s85, s86
s_lshl_b32 s85, s85, 12
s_and_b32 s86, s{sW}, 1
s_lshl_b32 s86, s86, 9
s_add_u32 s85, s85, s86
s_add_u32 s95, s85, s84
s_lshl_b32 s87, s{sJ1}, 2
s_add_u32 s87, s87, s{sW}
s_lshl_b32 s87, s87, 8
s_add_u32 s87, s87, 65536
s_add_u32 s96, s87, s84
v_and_b32 v232, 1, v{vG}
v_lshlrev_b32 v232, 10, v232
v_lshrrev_b32 v233, 1, v{vG}
v_lshl_add_u32 v232, v233, 8, v232
v_lshl_add_u32 v232, v{vI}, 4, v232
v_lshlrev_b32 v233, 2, v{vL}
s_mul_i32 s79, s{sJ2}, 82944
s_add_u32 s79, s79, {WOP}
s_lshl_b32 s84, s{sW}, 1
s_add_u32 s85, s84, s{sR2}
s_and_b32 s86, s85, 7
s_mul_i32 s86, s86, 9216
s_add_u32 s80, s86, s79
s_add_u32 s85, s85, 1
s_and_b32 s86, s85, 7
s_mul_i32 s86, s86, 9216
s_add_u32 s81, s86, s79
s_lshl_b32 s84, s84, 10
s_add_u32 s84, s84, 73728
s_add_u32 s82, s84, s79
s_mov_b32 s83, s84
s_mul_i32 s76, s{sW}, 18432
s_lshl_b32 s84, s{sG2}, 6
s_and_b32 s85, s{sW}, 1
s_lshl_b32 s85, s85, 5
s_add_u32 s85, s85, s84
s_lshr_b32 s86, s{sW}, 1
s_add_u32 s85, s85, s86
s_mul_i32 s85, s85, 1152
s_mul_i32 s86, s{sJ2}, 144
s_add_u32 s79, s85, s86
v_mul_u32_u24 v238, 7282, v{vL}
v_lshrrev_b32 v238, 16, v238
v_mul_u32_u24 v239, 9, v238
v_sub_u32 v239, v{vL}, v239
v_mul_u32_u24 v238, 2304, v238
v_lshl_add_u32 v238, v239, 4, v238
v_cmp_gt_u32 vcc, 54, v{vL}@@v_cndmask_b32 v238, v13, v238, vcc
s_mul_i32 s77, s{sW}, 3072
s_add_u32 s77, s77, {XRS}
s_mov_b32 s94, {hexf((18 ** -0.5) * 1.4426950408889634)}""") + set_poll_addr(15, sJF, F1S)
    pre += [f"v_mov_b32 v{KO+4*m+3}, 0" for m in range(5)] + [f"v_mov_b32 v{QO+4*m+3}, 0" for m in range(4)]
    for l in pre: flex.append((0, l.replace("@@", "\n")))
    mains = []; fixed = {}
    for s in range(18):
        wb = WR + (s % D)*16; xb = (s % 2)*20
        base = len(mains)
        for m in range(5):
            x = aq(xb + 4*m)
            def acc(a): return (vq(a), "0" if s == 0 else vq(a))
            d, c = acc(KA + 4*m); mains.append(f"{MF} {d}, {aq(wb+4)}, {x}, {c}")
            d, c = acc(VA + 4*m); mains.append(f"{MF} {d}, {x}, {aq(wb+8)}, {c}")
            d, c = acc(EA + 4*m); mains.append(f"{MF} {d}, {aq(wb+12)}, {x}, {c}")
            if m < 4:
                d, c = acc(QA + 4*m); mains.append(f"{MF} {d}, {aq(wb)}, {x}, {c}")
        t_ = stamp_txt(f"@q{s}") if s else None
        if t_: fixed.setdefault(base - 1, []).append(t_)
        if s == 7: fixed.setdefault(base, []).extend(["@flexdone0", "@waitlg_all", "s_barrier"])
        fb_ = ["@flexdoneb", "@waitvm wrs"]
        if s == 11: fixed.setdefault(base, []).extend(["@flexdone1"] + (fb_ if cfg.f1s == 11 else []) + ["@waitlg_all", "s_barrier"] + (flag_items(95) if cfg.f1s == 11 else []))
        if s == 15: fixed.setdefault(base, []).extend(["@flexdone2"] + (fb_ if cfg.f1s == 15 else []) + ["@waitlg_all", "s_barrier"] + (flag_items(95) if cfg.f1s == 15 else []))
        if s + 1 < 18:
            for k, l in enumerate(x_reads(s+1)): fixed.setdefault(base + 1 + 2*k, []).append(l)
            fixed.setdefault(base + 18, []).append(f"@need {aq(WR + ((s+1) % D)*16, 16)} {aq(((s+1) % 2)*20, 20)}")
        if s + D - 1 < 18:
            for k, l in enumerate(wq_loads(s + D - 1)): fixed.setdefault(base + [2, 6, 10, 12, 14][k], []).append(l)
    dma = []
    for seg in range(2):
        for k in range(9):
            it = ""
            if k % 4 == 0:
                it = f"s_add_u32 s84, s76, {seg*9216 + 1024*k}\ns_mov_b32 m0, s84\n"
                if k: it += f"s_add_u32 s{80+seg}, s{80+seg}, 4096\n"
            dma.append((it + f"buffer_load_dwordx4 v{vL16}, {srd(sWS)}, s{80+seg} offen offset:{1024*(k % 4)} sc1 lds", "wo"))
    tail3 = [(("s_mov_b32 m0, s83\n" if k == 0 else "") + f"buffer_load_dwordx4 v{vL16}, {srd(sWS)}, s82 offen offset:{1024*k} sc1 lds", "wo") for k in range(3)]
    xres3 = [(("s_mov_b32 m0, s77\n" if k == 0 else f"s_add_u32 s79, s79, {13824 - 1024}\n") + f"buffer_load_dwordx4 v238, {srd(sX)}, s79 offen offset:{1024*k} lds", "wo") for k in range(3)]
    ne = cfg.wo_early
    for k in range(ne): flex.append((max(19*(18 - (ne*5 + 18)//19) + 5*k, 19*cfg.f1s + 1), dma[k]))
    sched(P, mains, fixed, flex, flex2=flex2)
    stamp("GEMM1 done")
    P("s_barrier")
    A = Prog()
    A(f"s_mov_b32 exec_hi, 0xffff\nds_write_b32 v235, v237 offset:320\ns_mov_b32 exec_hi, -1")
    for m in range(5):
        r = QO + 4*m + 2 if m < 4 else 172
        A(f"v_cvt_pk_bf16_f32 v{r}, v{EA+4*m}, v{EA+4*m+1}")
        A(f"ds_write_b16 v234, v{r} offset:{32*m}\nds_write_b16_d16_hi v234, v{r} offset:{160+32*m}")
    SA = 176
    prev = [4, 0, 4, 2]; pmask = [ME, MP, MO, MP]
    def kop(m): A(f"v_cvt_pk_bf16_f32 v{KO+4*m}, v{KA+4*m}, v{KA+4*m+1}\nv_cvt_pk_bf16_f32 v{KO+4*m+1}, v{KA+4*m+2}, v{KA+4*m+3}\nv_cvt_pk_bf16_f32 v{KO+4*m+2}, v{EA+4*m+2}, v{EA+4*m+3}")
    def qop(m): A(f"v_cvt_pk_bf16_f32 v{QO+4*m}, v{QA+4*m}, v{QA+4*m+1}\nv_cvt_pk_bf16_f32 v{QO+4*m+1}, v{QA+4*m+2}, v{QA+4*m+3}")
    kop(4)
    for m in range(4):
        qop(m); kop(m)
        if m: A(f"{MF} {vq(SA+8*(m-1)+4)}, {vq(KO+4*(m-1))}, {vq(QO+4*(m-1))}, {vq(MS)}")
        A(f"{MF} {vq(SA+8*m)}, {vq(KO+4*prev[m])}, {vq(QO+4*m)}, {vq(pmask[m])}")
    vorder = [4, 0, 1, 4, 2, 3]
    for k, m in enumerate(vorder):
        A(f"v_cvt_pk_bf16_f32 v{VO+2*k}, v{VA+4*m}, v{VA+4*m+1}\nv_cvt_pk_bf16_f32 v{VO+2*k+1}, v{VA+4*m+2}, v{VA+4*m+3}")
        if k == 0: A(f"{MF} {vq(SA+28)}, {vq(KO+12)}, {vq(QO+12)}, {vq(MS)}")
    A("@waitlg_all")
    for k, m in enumerate(vorder): A(f"ds_read_b64 {vq(XO+2*k,2)}, v236 offset:{32*m}")
    MX = 208
    for m in range(4):
        s = SA + 8*m
        A(f"v_max3_f32 v{MX+m}, v{s}, v{s+1}, v{s+2}\nv_max3_f32 v{MX+4+m}, v{s+3}, v{s+4}, v{s+5}")
    for m in range(4):
        s = SA + 8*m
        A(f"v_max3_f32 v{MX+m}, v{MX+m}, v{s+6}, v{s+7}")
    for m in range(4): A(f"v_max_f32 v{MX+m}, v{MX+m}, v{MX+4+m}")
    for sw in ["v_permlane16_swap_b32", "v_permlane32_swap_b32"]:
        for m in range(4): A(f"v_mov_b32 v{MX+4+m}, v{MX+m}")
        for m in range(4): A(f"{sw} v{MX+m}, v{MX+4+m}")
        for m in range(4): A(f"v_max_f32 v{MX+m}, v{MX+m}, v{MX+4+m}")
    for m in range(4): A(f"v_mul_f32 v{MX+m}, s94, v{MX+m}")
    PO = 216; OA = 16; OX = 32
    for m in range(4):
        s = SA + 8*m
        for k in range(8): A(f"v_fma_f32 v{s+k}, v{s+k}, s94, -v{MX+m}")
        if m:
            o = [0, 2, 6, 8][m-1]
            A(f"{MF} {vq(OX+4*(m-1))}, {vq(XO+o)}, {vq(PO+4*(m-1))}, 0")
            A(f"{MF} {vq(OA+4*(m-1))}, {vq(VO+o)}, {vq(PO+4*(m-1))}, 0")
        for k in range(8): A(f"v_exp_f32 v{s+k}, v{s+k}")
        for k in range(4): A(f"v_cvt_pk_bf16_f32 v{PO+4*m+k}, v{s+2*k}, v{s+2*k+1}")
    A(f"v_rcp_f32 v{MX}, v{OX+2}\nv_rcp_f32 v{MX+1}, v{OX+6}")
    A(f"{MF} {vq(OX+12)}, {vq(XO+8)}, {vq(PO+12)}, 0\n{MF} {vq(OA+12)}, {vq(VO+8)}, {vq(PO+12)}, 0")
    OP0 = 112
    for p in range(2):
        if p: A(f"v_rcp_f32 v{MX+2}, v{OX+10}\nv_rcp_f32 v{MX+3}, v{OX+14}")
        for m in (2*p, 2*p+1):
            for r in range(4): A(f"v_mul_f32 v{OA+4*m+r}, v{OA+4*m+r}, v{MX+m}")
            A(f"v_cvt_pk_bf16_f32 v{OP0+2*m}, v{OA+4*m}, v{OA+4*m+1}\nv_cvt_pk_bf16_f32 v{OP0+2*m+1}, v{OA+4*m+2}, v{OA+4*m+3}")
        for m in (2*p, 2*p+1):
            for r in range(2): A(f"v_mul_f32 v{OX+4*m+r}, v{OX+4*m+r}, v{MX+m}")
        b = OP0 + 4*p
        A(f"v_permlane16_swap_b32 v{b}, v{b+2}\nv_permlane16_swap_b32 v{b+1}, v{b+3}")
        A(f"buffer_store_dwordx4 {vq(OP0+4*p)}, v232, {srd(sWS)}, s95 offen offset:{2048*p} sc1", "o")
        for m in (2*p, 2*p+1): A(f"v_cvt_pk_bf16_f32 v{OP0+8+m}, v{OX+4*m}, v{OX+4*m+1}")
    A(f"v_permlane16_swap_b32 v{OP0+8}, v{OP0+9}\nv_permlane16_swap_b32 v{OP0+10}, v{OP0+11}")
    A(f"v_permlane32_swap_b32 v{OP0+8}, v{OP0+10}")
    A(f"buffer_store_dword v{OP0+8}, v233, {srd(sWS)}, s96 offen sc1", "o")
    late = dma[ne:] + tail3 + xres3 + [poll_pre(15, 14)]
    if cfg.w2at == 0:
        w2l = []
        for z in range(2):
            u = unit_dma(2, z, W2SCR)
            w2l.append((u[0] + "\n" + u[1][0], "wr"))
            for q in range(1, 4): w2l.append((u[2*q] + "\n" + u[2*q+1][0], "wr"))
        assert ne in (0, 4, 8, 9, 13)
        late = w2l + late
    k = 0
    for n, ins in enumerate(A.ins):
        P.add(ins)
        if n >= 3 and (n - 3) % cfg.dmagap == 0 and k < len(late): P.add(late[k]); k += 1
    assert k == len(late)
    stamp("attn done")
    NR = 56; AF = 224
    ACA, ACB = 16, 96
    CA, CB = 96, 160
    passes = [("A", [0, 1, 2, 3, 8], ACA, CA), ("B", [4, 5, 6, 7], ACB, CB), ("C", [4, 5, 8], 16, None), ("D", [0, 1], 96, None), ("E", [2, 3], 64, None), ("F", [6, 7], 16, None)]
    steps = [(pi, p) for pi in range(len(passes)) for p in range(18)]
    cons = [(pi, p, t) for pi, p in steps for t in range(len(passes[pi][1]))]
    slot = {f: n % NR for n, f in enumerate(cons)}
    def wload(n):
        pi, p, t = cons[n]; L = []
        if t == 0 and n > 0:
            if pi == 1 and p == 0:
                L.append(f"s_mul_i32 s92, s{sRF}, 9216\ns_add_u32 s92, s92, s90")
            elif pi >= 2 and p in (0, 10):
                beg = 0 if p == 0 else 10*9216; end = (10 if p == 0 else 18)*9216
                L.append(f"s_add_u32 s90, s89, {beg}\ns_add_u32 s91, s89, {end}")
                L.append(f"s_mul_i32 s92, s{93 if p == 0 else 94}, 9216\ns_add_u32 s92, s92, s90")
            else: L.append(wrap(92, 9216, 91, 90))
        tile = passes[pi][1][t]
        L.append((f"buffer_load_dwordx4 {aq(4*(n % NR))}, v{[vL16, 12, 255][tile >> 2]}, {srd(sWS)}, s92 offen offset:{1024*(tile % 4)}{cfg.wsc}", "w"))
        return L
    npf = [0]
    def prefetch(n):
        L = []
        for k in range(n): L += wload(npf[0]); npf[0] += 1
        return L
    P(f"""s_lshl_b32 s88, s{sJF}, 2
s_add_u32 s88, s88, s{sW}
s_mul_i32 s88, s88, {162*1024}
s_add_u32 s89, s88, {W2R}
s_add_u32 s88, s88, {W1R}
s_mul_i32 s92, s{sRF}, 9216
s_add_u32 s92, s92, s88
s_mov_b32 s90, s88
s_add_u32 s91, s88, {162*1024}
v_add_u32 v12, 4096, v{vL16}
v_add_u32 v255, 8192, v{vL16}""")
    P(poll_check(15, 14))
    pa, pb, pc, pd, pe = cfg.pre
    P.extend(prefetch(pa))
    P.extend(own_flag(14, F1G, sG1, 12, sJ1, 4)); P.extend(grp_poll_addr(15, sG2, F1G))
    HA = 16; HQ = 36; OF = 48; WB = 120; NW = 28
    P(f"""v_add_u32 v10, 41472, v{vL16}
v_and_b32 v11, 7, v{vI}
v_lshlrev_b32 v11, 4, v11
v_lshl_add_u32 v11, v{vG}, 7, v11
v_add_u32 v9, 41472, v11
v_mul_u32_u24 v7, 43, v{vI}
v_lshrrev_b32 v7, 8, v7
v_mul_u32_u24 v7, 160, v7
v_mul_u32_u24 v6, 144, v{vI}
v_add3_u32 v6, v6, v7, s77
v_and_b32 v7, 1, v{vG}
v_lshl_add_u32 v7, v7, 3, v6
v_lshl_add_u32 v6, v{vG}, 4, v6""")
    P("@waitvm o\ns_barrier")
    set_flag(14)
    stamp("F1 set")
    if cfg.p1early: P.add(poll_pre(15, 46))
    if cfg.w2at == 1:
        for z in range(2): P.extend(unit_dma(2, z, W2SCR))
    P.extend(prefetch(pb))
    if not cfg.p1early: P.add(poll_pre(15, 46))
    P(f"ds_read_b128 {vq(HQ)}, v6\nds_read_b128 {vq(HQ+4)}, v6 offset:64\nds_read_b64 {vq(HQ+8,2)}, v7 offset:128")
    def wo_reg(n): return vq(WB + 4*(n % NW))
    wor = []
    for s in range(18):
        for t in range(5):
            reg = (vL16 if s < 9 else 10) if t < 4 else (11 if s < 9 else 9)
            wor.append(f"ds_read_b128 {wo_reg(s*5+t)}, v{reg} offset:{WOB + (s % 9)*4608 + 1024*t}")
    P.extend(wor[:NW - 1])
    P(f"""s_mul_i32 s84, s{sG2}, 73728
s_lshl_b32 s85, s{sW}, 10
s_add_u32 s84, s84, s85
s_add_u32 s74, s84, {OP}
s_add_u32 s75, s74, 65536
s_mul_i32 s79, s{sW}, {1024 - 64}
s_sub_u32 s79, s75, s79
v_lshlrev_b32 v232, 10, v{vG}
v_lshl_add_u32 v232, v{vI}, 2, v232
s_lshl_b32 s78, s{sR2}, 13
s_add_u32 s78, s78, s74
s_add_u32 s84, s84, {HP}
s_mul_i32 s85, s{sJ2}, 9
v_add_u32 v6, s85, v{vG}
v_lshrrev_b32 v7, 2, v6
v_lshlrev_b32 v7, 12, v7
v_and_b32 v6, 3, v6
v_lshl_add_u32 v6, v6, 8, v7
v_lshl_add_u32 v6, v{vI}, 4, v6
v_add_u32 v6, s84, v6
s_add_u32 s85, s85, 8
s_lshr_b32 s86, s85, 2
s_lshl_b32 s86, s86, 12
s_and_b32 s85, s85, 3
s_lshl_b32 s85, s85, 8
s_add_u32 s85, s85, s86
s_add_u32 s85, s85, s84
v_lshlrev_b32 v7, 4, v{vI}
v_lshl_add_u32 v7, v{vG}, 3, v7
v_add_u32 v7, s85, v7
v_cmp_gt_u32 s[82:83], 2, v{vG}
v_add_u32 v8, 4096, v6
v_add_u32 v47, {W2SCR}, v94
v_mov_b32 v235, v93
v_cndmask_b32 v7, v13, v7, s[82:83]
s_lshl_b32 s84, s{sG2}, 2
s_add_u32 s84, s84, s{sW}
s_lshl_b32 s84, s84, 3
s_add_u32 s84, s84, s{sJ2}
s_lshl_b32 s84, s84, 7
s_add_u32 s84, s84, {STATS}
v_lshl_add_u32 v233, v{vI}, 3, s84
v_cmp_gt_u32 vcc, 16, v{vL}
v_cndmask_b32 v233, v13, v233, vcc""")
    P.extend(unpack(HA, HQ, 10))
    P(poll_check(15, 46))
    stamp("F1 seen")
    ol = []
    for s in range(16):
        ol.append([(f"buffer_load_dwordx4 {vq(OF+4*s)}, v{vL16}, {srd(sWS)}, s78 offen sc1", "of")] + ([wrap(78, 4096, 75, 74)] if s < 15 else []))
    for s in (16, 17):
        for ww in range(4): ol.append([(f"buffer_load_dword v{OF+4*s+ww}, v232, {srd(sWS)}, s79 offen offset:{256*ww} sc1", "of")] + (["s_add_u32 s79, s79, 4096"] if (s, ww) == (16, 3) else []))
    for L in ol[:cfg.no1]: P.extend(L)
    flex = []
    for l in own_flag(14, F2G, sG2, 12, sJ2, 4) + grp_poll_addr(15, sGF, F2G): flex.append((0, l))
    for l in lines(f"""s_mul_i32 s84, s{sJF}, 1152
s_lshl_b32 s85, s{sW}, 8
s_add_u32 s80, s85, s84
s_lshr_b32 s86, s{sW}, 1
s_lshl_b32 s86, s86, 6
s_and_b32 s87, s{sW}, 1
s_lshl_b32 s87, s87, 3
s_add_u32 s86, s86, s87
s_add_u32 s81, s86, s84
v_lshlrev_b32 v234, 4, v{vG}"""): flex.append((0, l))
    for l in prefetch(pc): flex.append((64, l))
    mains = [f"{MF} {vq(HA+4*t)}, {wo_reg(s*5+t)}, {vq(OF+4*s)}, {vq(HA+4*t)}" for s in range(18) for t in range(5)]
    fixed = {n: [wor[n + NW - 1]] for n in range(90 - NW + 1)}
    for k, L in enumerate(ol[cfg.no1:]):
        g = int(k*cfg.ogap)
        fixed.setdefault(g, []).append(L[0])
        if len(L) > 1: fixed.setdefault(g + 1, []).append(L[1])
    sched(P, mains, fixed, flex)
    for k in range(4): P(f"v_cvt_pk_bf16_f32 v{HQ+k}, v{HA+2*k}, v{HA+2*k+1}")
    P(f"buffer_store_dwordx4 {vq(HQ)}, v6, {srd(sWS)}, 0 offen sc1", "h")
    for k in range(4, 8): P(f"v_cvt_pk_bf16_f32 v{HQ+k}, v{HA+2*k}, v{HA+2*k+1}")
    P(f"buffer_store_dwordx4 {vq(HQ+4)}, v8, {srd(sWS)}, 0 offen sc1", "h")
    for k in range(8, 10): P(f"v_cvt_pk_bf16_f32 v{HQ+k}, v{HA+2*k}, v{HA+2*k+1}")
    P(f"buffer_store_dwordx2 {vq(HQ+8,2)}, v7, {srd(sWS)}, 0 offen sc1", "h")
    P(f"v_cndmask_b32 v16, 0, v{HQ+8}, s[82:83]\nv_cndmask_b32 v17, 0, v{HQ+9}, s[82:83]")
    P.extend(stats([[16, 17] + [HQ + k for k in range(8)]], 20))
    def xsum(a):
        for sw in ["v_permlane16_swap_b32", "v_permlane32_swap_b32"]:
            for k in range(2): P(f"v_mov_b32 v{a+2+k}, v{a+k}")
            for k in range(2): P(f"{sw} v{a+k}, v{a+2+k}")
            for k in range(2): P(f"v_add_f32 v{a+k}, v{a+k}, v{a+2+k}")
    xsum(20)
    P(f"buffer_store_dwordx2 {vq(20,2)}, v233, {srd(sWS)}, 0 offen sc1", "h")
    stamp("proj done")
    B1P = 136; HR = 160; ST = 132; NT = 116; SR = 154
    for p in range(4): P(f"buffer_load_dwordx4 {vq(B1P+4*p)}, v234, {srd(sB1)}, s80 offen offset:{64*p}", "b1")
    P(f"buffer_load_dwordx2 {vq(B1P+16,2)}, v234, {srd(sB1)}, s81 offen offset:1024", "b1")
    P.extend(prefetch(pd))
    P("@waitvm h\n@waitlg_all\ns_barrier")
    set_flag(14)
    stamp("F2 set")
    if cfg.w2at == 2:
        P.add(poll_pre(15, 46))
        for z in range(2): P.extend(unit_dma(2, z, W2SCR, 235))
    if cfg.w2st == 0 and cfg.w2at < 3:
        P("@waitvm wr")
        for z in range(2): P.extend([l.replace("v94", "v47") for l in unit_tr(z, 0, 48 + 16*z)])
        for z in range(2): P.extend(unit_st(2, z, 48 + 16*z))
    P.extend(prefetch(pe))
    if cfg.w2at != 2: P.add(poll_pre(15, 46))
    P.extend(unpack(CA, B1P, 8)); P.extend(unpack(CA+16, B1P+16, 2))
    P(f"""s_mul_i32 s84, s{sGF}, 73728
s_lshl_b32 s85, s{sW}, 10
s_add_u32 s84, s84, s85
s_add_u32 s74, s84, {HP}
s_add_u32 s75, s74, 73728
s_lshl_b32 s77, s{sRF}, 12
s_add_u32 s77, s77, s74
v_add_u32 v6, s85, v{vL16}
v_add_u32 v7, 36864, v6
v_add_u32 v8, 36864, v{vL16}
v_add_u32 v9, {HB}, v{vL16}
v_add_u32 v10, {HB + 36864}, v{vL16}
v_mov_b32 v11, v47
s_and_b32 s93, s{sGF}, 15
s_lshr_b32 s94, s93, 1
s_mul_i32 s93, s93, 5
s_lshr_b32 s93, s93, 3
s_lshl_b32 s84, s{sGF}, 12
s_add_u32 s84, s84, s85
s_add_u32 s84, s84, {STATS}
v_lshlrev_b32 v239, 8, v{vG}
v_lshl_add_u32 v239, v{vI}, 3, v239""")
    if not cfg.rot: P("s_mov_b32 s93, 0\ns_mov_b32 s94, 0")
    P.extend(own_flag(14, F2S, sJ1, 12, sG1, 2))
    vPS, vSS, vF3, vP3, vL4, vL2, vLS, vH4, vH2, vPT, vC4, vC2, vO4, vO2, vOS = range(240, 255)
    P.extend(own_flag(vF3, F3A, sGF, 12, sJF, 4)); P.extend(grp_poll_addr(vP3, sGF, F3A))
    if cfg.wflag:
        P(f"""s_lshl_b32 s87, s{sW}, 7
s_add_u32 s86, s86, s87
v_add_u32 v{vP3}, s87, v{vP3}
s_lshl_b32 s87, s{sJF}, 4
s_add_u32 s86, s86, s87
v_mov_b32 v{vF3}, s86
v_cmp_eq_u32 vcc, 0, v{vL}
v_cndmask_b32 v{vF3}, v13, v{vF3}, vcc""")
    P(f"""s_lshl_b32 s86, s{sGF}, 6
s_add_u32 s86, s86, s{sJF}
s_mul_i32 s86, s86, 9216
s_add_u32 s86, s86, {PART}
v_lshrrev_b32 v{vPS}, 3, v{vI}
v_mul_u32_u24 v{vPS}, {8*9216}, v{vPS}
v_and_b32 v5, 7, v{vI}
v_lshlrev_b32 v5, 3, v5
v_lshl_add_u32 v5, v{vG}, 6, v5
v_add3_u32 v{vSS}, v{vPS}, v5, s86
v_add_u32 v{vPS}, v{vSS}, v5
s_lshl_b32 s85, s{sW}, 8
s_add_u32 s87, s85, 8192
v_add_u32 v{vSS}, s87, v{vSS}
s_lshl_b32 s76, s{sW}, 11
v_add_u32 v{vPS}, s76, v{vPS}
s_lshl_b32 s86, s{sGF}, 3
s_add_u32 s86, s86, s{sJF}
s_mul_i32 s86, s86, {8*9216}
s_add_u32 s86, s86, {PART}
s_add_u32 s76, s76, s86
v_add_u32 v{vL4}, s76, v{vL16}
v_lshl_add_u32 v{vL2}, v{vL}, 3, s76
s_add_u32 s87, s87, s86
v_lshl_add_u32 v{vLS}, v{vL}, 3, s87
v_cmp_gt_u32 vcc, 32, v{vL}
v_lshrrev_b32 v5, 5, v{vL}
v_bfe_u32 v{vC4}, v{vL}, 3, 2
v_cndmask_b32 v{vLS}, v13, v{vLS}, vcc
v_and_b32 v{vO4}, 7, v{vL}
v_lshlrev_b32 v{vH4}, 12, v5
v_lshl_add_u32 v{vH4}, v{vC4}, 8, v{vH4}
v_lshl_add_u32 v{vH4}, v{vO4}, 4, v{vH4}
v_lshlrev_b32 v{vC4}, 4, v{vC4}
v_lshl_add_u32 v{vC4}, v5, 6, v{vC4}
v_bfe_u32 v{vO2}, v{vL}, 1, 3
v_and_b32 v5, 1, v{vL}
v_lshlrev_b32 v5, 3, v5
v_lshl_add_u32 v{vH2}, v{vG}, 8, v5
v_lshl_add_u32 v{vH2}, v{vO2}, 4, v{vH2}
v_lshl_add_u32 v{vC2}, v{vG}, 4, v5
s_lshr_b32 s87, s{sJF}, 1
s_and_b32 s86, s{sJF}, 1
s_lshl_b32 s76, s{sGF}, 6
s_and_b32 s32, s87, 1
s_lshl_b32 s32, s32, 5
s_add_u32 s76, s76, s32
s_lshr_b32 s32, s87, 1
s_add_u32 s76, s76, s32
s_lshl_b32 s32, s86, 4
s_add_u32 s76, s76, s32
s_mul_i32 s76, s76, 1152
v_mul_u32_u24 v{vO4}, 2304, v{vO4}
v_add3_u32 v{vO4}, v{vO4}, v{vC4}, s76
v_mul_u32_u24 v{vO2}, 2304, v{vO2}
v_add3_u32 v{vO2}, v{vO2}, v{vC2}, s76
v_cndmask_b32 v{vOS}, v13, v{vO4}, vcc
s_mul_i32 s76, s{sGF}, 73728
s_lshl_b32 s87, s87, 10
s_add_u32 s76, s76, s87
s_lshl_b32 s86, s86, 7
s_add_u32 s76, s76, s86
s_add_u32 s76, s76, {HP}
s_lshl_b32 s86, s{sW}, 14
s_add_u32 s32, s76, s86
s_add_u32 s33, s32, 8192
s_add_u32 s35, s32, 12288
s_add_u32 s64, s32, 4096
s_lshr_b32 s86, s{sW}, 1
s_and_b32 s87, s{sW}, 1
s_lshl_b32 s87, s87, 3
s_lshl_b32 s36, s86, 12
s_add_u32 s36, s36, s87
s_add_u32 s36, s36, 65536
s_add_u32 s36, s36, s76
s_mov_b32 s38, s85
s_lshl_b32 s39, s86, 6
s_add_u32 s39, s39, s87
s_add_u32 s39, s39, 1024
s_mov_b32 s80, 0
s_mov_b32 s81, {16*9216}
s_mov_b32 s82, {32*9216}
s_mov_b32 s83, {48*9216}
s_mov_b32 s95, 0x00003f80
s_mov_b32 s96, 0x3f800000""")
    P(poll_check(15, 46))
    stamp("F2 seen")
    for k in range(2): P(f"buffer_load_dwordx2 {vq(SR+2*k,2)}, v239, {srd(sWS)}, s84 offen offset:{128*k} sc1", "hf")
    hl = []
    for s in range(18):
        hl.append([(f"buffer_load_dwordx4 {vq(HR+4*s)}, v{vL16}, {srd(sWS)}, s77 offen sc1", "hf")] + ([wrap(77, 4096, 75, 74)] if s < 17 else []))
    for s in range(cfg.nh1): P.extend(hl[s])
    P(f"v_add_f32 v{ST}, v{SR}, v{SR+2}\nv_add_f32 v{ST+1}, v{SR+1}, v{SR+3}")
    xsum(ST)
    finish_stats([ST])
    for s in range(cfg.nh1, cfg.nh2): P.extend(hl[s])
    stamp("LN2 stats")
    def ln2(s):
        return normalize(HR + 4*s, ST, NT + 8*(s & 1), s < 3) + [f"ds_write_b128 v{6 if s < 9 else 7}, {vq(HR+4*s)} offset:{XN + (s % 9)*4096}"]
    for s in range(3): P.extend(ln2(s))
    P("@waitlg_all\ns_barrier")
    def act_reads(i):
        pi, p = steps[i]
        b = AF + (i % 2)*16
        if pi < 2: reg = vL16 if p < 9 else 8
        else: reg = 9 if p < 9 else 10
        return [f"ds_read_b128 {aq(b+4*m)}, v{reg} offset:{((p % 9)*4 + m)*1024}" for m in range(4)]
    P.extend(act_reads(0))
    stamp("FFN start")
    mains = []; fixed = {}; start = []; load = {}
    first_use = {}; last_use = {}
    def put(g, it):
        fixed.setdefault(g, []).append(it); load[g] = load.get(g, 0) + cost(it)
    def place(items, g):
        for it in items:
            c = cost(it)
            while load.get(g, 0) > 0 and load.get(g, 0) + c > cfg.cap + 0.02: g += 1
            put(g, it)
        return g
    bar = {2: "a", 4: "b", 7: "c", 10: "d", 14: "f", 35: "0", 45: "1"}
    if cfg.w2st: bar[17] = "e"
    fl2 = "e" if cfg.w2st else "c"
    if cfg.w2at >= 3: fl2 = None
    for i, (pi, p) in enumerate(steps):
        name, tiles, acc, cin = passes[pi]; nt = len(tiles)
        base = len(mains); start.append(base)
        b = AF + (i % 2)*16
        t_ = stamp_txt(f"@{name}{p}") if i else None
        if t_: fixed.setdefault(base - 1, []).append(t_)
        if i in bar:
            for it in [f"@flexdone{bar[i]}"] + (["@waitvm wrs"] if bar[i] == fl2 else []) + ["@waitlg_all", "s_barrier"]: put(base, it)
            if bar[i] == fl2:
                for it in flag_items(14): put(base, it)
        for t in range(nt):
            w = aq(4*slot[(pi, p, t)])
            first_use[(pi, p, t)] = len(mains); last_use[(pi, p, t)] = len(mains) + 3
            for m in range(4):
                d = vq(acc + (t*4 + m)*4)
                c = d if p > 0 else (vq(cin + 4*t) if cin is not None else "0")
                mains.append(f"{MF} {d}, {w}, {aq(b+4*m)}, {c}")
        if i + 1 < len(steps):
            for k, l in enumerate(act_reads(i+1)): put(base + (2*k if nt > 2 else k) + (1 if i in bar else 0), l)
            pj, pp = steps[i+1]
            nxt = " ".join(aq(4*slot[(pj, pp, t)]) for t in range(len(passes[pj][1])))
            fixed.setdefault(base + 4*nt - 1, []).append(f"@need {nxt} {aq(AF + ((i+1) % 2)*16, 16)}")
            load[base + 4*nt - 1] = load.get(base + 4*nt - 1, 0) + 0.67
    start.append(len(mains))
    S = lambda pi, p: start[pi*18 + p]
    path = {}
    TQ = 176
    tq = [0]
    def epi2(acc, tiles, m, st):
        q = TQ + 4*(tq[0] % 4); tq[0] += 1
        regs = [acc + (t*4 + m)*4 + r for t in tiles for r in range(4)]
        L = [f"v_cvt_pk_bf16_f32 v{q+k}, v{regs[2*k]}, v{regs[2*k+1]}" for k in range(len(regs)//2)]
        L.append(st(q))
        return L
    def pst(m, off, tag): return lambda q: (f"buffer_store_dwordx4 {vq(q)}, v{vPS}, {srd(sWS)}, s{80+m} offen offset:{off} sc1", tag)
    def sst(m, tag): return lambda q: (f"buffer_store_dwordx2 {vq(q,2)}, v{vSS}, {srd(sWS)}, s{80+m} offen sc1", tag)
    RH = [200, 204, 208, 212, 216]; RS = [220, 224, 228, 232, 236]; R0 = [128, 144, 96, 112, 48]
    rl = [(vL2, 1024), (vLS, 0), (vL2, 0), (vL2, 512), (vL2, 1536)]
    FSTEP = 512
    def red_loads(r):
        L = ["s_mov_b32 s84, 0"]
        for j in range(8):
            L.append((f"buffer_load_dwordx2 {vq(R0[r]+2*j,2)}, v{rl[r][0]}, {srd(sWS)}, s84 offen offset:{rl[r][1]} sc1", "rd"))
            if j < 7: L.append("s_add_u32 s84, s84, 9216")
        return L
    def red_sum(r):
        T = RS[r]; L = []
        for j in range(8):
            for d in range(2):
                q = R0[r] + 2*j + d
                L.append(f"v_dot2_f32_bf16 v{T+2*d}, v{q}, s95, v{T+2*d}")
                L.append(f"v_dot2_f32_bf16 v{T+2*d+1}, v{q}, s96, v{T+2*d+1}")
        for d in range(2): L.append(f"v_cvt_pk_bf16_f32 v{T+d}, v{T+2*d}, v{T+2*d+1}")
        return L
    def red_store(r):
        vo, so, oo = [(vO2, 38, 128), (vOS, 39, 0), (vO2, 38, 0), (vO2, 38, 64), (vO2, 38, 192)][r]
        return [(f"buffer_store_dwordx2 {vq(RS[r],2)}, v{vo}, {srd(sOUT)}, s{so} offen offset:{oo}", "out")]
    def add_path(g, c): path[g] = path.get(g, 0) + c
    def signal(tag):
        return [f"@waitvm {tag}"] + ([] if cfg.wflag else ["s_barrier"]) + flag_items(vF3) + [f"v_add_u32 v{vF3}, {FSTEP}, v{vF3}"]
    def check(): return [poll_check(vP3, vPT), f"v_add_u32 v{vP3}, {FSTEP}, v{vP3}"]
    sgap, fC, fD, fE, pC, pD, lead = cfg.tail4
    def stores(pi, acc, off, tag, shared):
        g = S(pi, 0) + 3
        for m in range(4):
            g = place(epi2(acc, [0, 1], m, pst(m, off, tag)), g); add_path(g, cfg.scost); g += sgap
            if shared:
                g = place(epi2(acc, [2], m, sst(m, tag)), g - sgap//2); add_path(g, cfg.scost//2); g += sgap//2
    stores(3, 16, 1024, "p1", True); stores(4, 96, 0, "p2", False); stores(5, 64, 512, "p3", False)
    for g0, tag in [(S(3, 0) + fC, "p1"), (S(4, 0) + fD, "p2"), (S(5, 0) + fE, "p3")]:
        for it in signal(tag): put(g0, it)
    for g0, rounds in [(S(3, 0) + pC, [0, 1]), (S(4, 0) + pD, [2])]:
        if g0 + lead < len(mains) - 40:
            put(g0, poll_pre(vP3, vPT))
            g = place(check(), g0 + lead)
            for r in rounds:
                L = red_loads(r)
                for j in range(8):
                    g = place(L[2*j:2*j+2], g + 2); add_path(g, cfg.lcost if r != 1 else cfg.lcost//2)
            assert g < len(mains) - 2
        else: raise ValueError("late")
    g = 0
    for s in range(cfg.nh2, 18):
        g = place(hl[s], g); add_path(g, 110); g += cfg.hgap
    g = S(2, 11)
    for r, (vh, sh, vb, sb, bo) in enumerate([(vH2, 33, vC2, 38, 128), (vH4, 36, vC4, 39, 0), (vH2, 32, vC2, 38, 0), (vH2, 64, vC2, 38, 64), (vH2, 35, vC2, 38, 192)]):
        g = place([(f"buffer_load_dwordx2 {vq(RH[r],2)}, v{vh}, {srd(sWS)}, s{sh} offen sc1", "rh")], g + 5); add_path(g, 40)
        g = place([(f"buffer_load_dwordx2 {vq(RH[r]+2,2)}, v{vb}, {srd(sB2)}, s{sb} offen offset:{bo}", "rh")], g + 3); add_path(g, 20)
    nl = npf[0]; free = cfg.backlog; g = 0
    while nl < len(cons):
        now = g*cfg.tgap
        if g in path: free = max(free, now) + path.pop(g)
        early = last_use[cons[nl - NR]] + 1 if nl >= NR else 0
        dead = first_use[cons[nl]] - cfg.margin
        if g >= early and (free <= now + cfg.slack or g >= dead):
            L = wload(nl)
            if nl == 162 - cfg.w2lead and fl2: L = [poll_pre(15, vPT)] + L
            if nl == 162 and fl2: L = [poll_check(15, vPT)] + L
            g2 = place(L, g)
            for x in range(g + 1, g2 + 1):
                if x in path: free = max(free, x*cfg.tgap) + path.pop(x)
            assert g2 < first_use[cons[nl]] - 8, (nl, g2, first_use[cons[nl]])
            if VERBOSE and nl % 18 == 0: print(f"   load {nl} at gap {g2}, first use {first_use[cons[nl]]}, backlog {free - g2*cfg.tgap:.0f}")
            g = g2; free = max(free, g*cfg.tgap) + cfg.wcost; nl += 1
        g += 1
    if VERBOSE: print("last weight load at gap", g, "of", len(mains), "pass starts", [S(k, 0) for k in range(6)])
    flex = []
    for lo, hi, mk in [(3, 5, "a"), (5, 8, "b"), (8, 11, "c"), (11, 15, "d"), (15, 18, "f")]:
        for s in range(lo, hi):
            for l in ln2(s): flex.append((0, l))
        flex.append((0, f"@mark{mk}"))
    if cfg.w2st:
        flex.append((0, "@waitvm wr"))
        for z in range(2):
            for l in unit_tr(z, 0, 176): flex.append((0, l.replace("v94", "v11")))
            for l in [f"@need {vq(176,16)}"] + unit_st(2, z, 176): flex.append((0, l))
    for l in set_poll_addr(15, sJF, F2S) + unpack(CB, B1P+8, 8): flex.append((0, l))
    flex.append((0, "@marke"))
    for k, (q, mod, sr, add) in enumerate([(f"s_lshl_b32 s84, s{sW}, 1", 10, 93, 0), (f"s_lshl_b32 s84, s{sW}, 1\ns_add_u32 s84, s84, 1", 10, 93, 0),
                                           (f"s_lshr_b32 s84, s{sW}, 1\ns_add_u32 s84, s84, 8", 10, 93, 0),
                                           (f"s_lshl_b32 s84, s{sW}, 1", 8, 94, 10), (f"s_lshl_b32 s84, s{sW}, 1\ns_add_u32 s84, s84, 1", 8, 94, 10)]):
        flex.append((0, q))
        flex.append((0, f"s_sub_u32 s84, s84, s{sr}\ns_cselect_b32 s85, {mod}, 0"))
        flex.append((0, f"s_add_u32 s84, s84, s85\ns_add_u32 s84, s84, {add}"))
        flex.append((0, "s_lshl_b32 s84, s84, 12"))
        if k == 2: flex.append((0, f"s_and_b32 s85, s{sW}, 1\ns_lshl_b32 s85, s85, 3\ns_add_u32 s84, s84, s85"))
        flex.append((0, f"v_add_u32 v{192+k}, s84, v9"))
    def epi1(acc, pair_tiles, m, wr):
        L = []
        q = TQ + 4*(tq[0] % 4); tq[0] += 1
        regs = [acc + (t*4 + m)*4 + r for t in pair_tiles for r in range(4)]
        for r in regs: L.append(f"v_mul_f32 v{r}, v{r}, |v{r}|")
        for k in range(len(regs)//2): L.append(f"v_cvt_pk_bf16_f32 v{q+k}, v{regs[2*k]}, v{regs[2*k+1]}")
        for k in range(len(regs)//2): L.append(f"v_pk_max_i16 v{q+k}, v{q+k}, 0")
        L.append(wr(q))
        return L
    at = S(1, 0) + 3
    for pr in range(2):
        for m in range(4):
            for l in epi1(ACA, [2*pr, 2*pr+1], m, lambda q: f"ds_write_b128 v{192+pr}, {vq(q)} offset:{m*1024}"): flex.append((at, l))
    for m in range(4):
        for l in epi1(ACA, [4], m, lambda q: f"ds_write_b64 v194, {vq(q,2)} offset:{m*1024}"): flex.append((at, l))
    flex.append((at, "@mark0"))
    at = S(2, 0) + 3
    for pr in range(2):
        for m in range(4):
            for l in epi1(ACB, [2*pr, 2*pr+1], m, lambda q: f"ds_write_b128 v{195+pr}, {vq(q)} offset:{m*1024}"): flex.append((at, l))
    flex.append((at, "@mark1"))
    at = S(3, 6)
    for r in range(5):
        for l in unpack(RS[r], RH[r], 2) + unpack(160, RH[r]+2, 2): flex.append((at, l))
        for d in range(4): flex.append((at, f"v_add_f32 v{RS[r]+d}, v{RS[r]+d}, v{160+d}"))
    if cfg.skip:
        def keep(it):
            t = it[0] if isinstance(it, tuple) else it
            tag = it[1] if isinstance(it, tuple) else None
            if "valu" in cfg.skip and re.match(r"v_lshlrev_b32 v\d+, 16,|v_and_b32 v\d+, s98|v_fma_f32|v_cvt_pk|v_mul_f32|v_pk_max|v_add_f32", t): return False
            if "dsw" in cfg.skip and t.startswith("ds_write"): return False
            if "bar" in cfg.skip and t == "s_barrier": return False
            if "pst" in cfg.skip and tag in ("p1", "p2", "p3"): return False
            if "rd" in cfg.skip and tag in ("rd", "rh"): return False
            if "w" in cfg.skip and tag == "w": return False
            if "chk" in cfg.skip and "L_slow" in t: return False
            return True
        flex = [f for f in flex if keep(f[1])]
        fixed = {g: [x for x in L if keep(x)] for g, L in fixed.items()}
        slow[:] = [x for x in slow if any(x.split(":")[0] in i.text for i in P.ins) or "chk" not in cfg.skip]
    sched(P, mains, fixed, flex, cap=cfg.cap)
    stamp("FFN done")
    for m in range(4): P.extend(epi2(16, [0, 1], m, pst(m, 1536, "p4")))
    P.add(poll_pre(vP3, vPT))
    P.extend(red_sum(0) + red_sum(1))
    P.extend(signal("p4"))
    stamp("F3c set")
    P.extend(check())
    P.extend(red_loads(3))
    P.extend(red_sum(2))
    P.add(poll_pre(vP3, vPT))
    P.extend(red_sum(3))
    P.extend(check())
    stamp("F3c seen")
    P.extend(red_loads(4))
    P.extend(red_store(0) + red_store(1) + red_store(2) + red_store(3))
    P.extend(red_sum(4) + red_store(4))
    P(f"""s_cmp_lg_u32 s2, 0
s_cbranch_scc1 L_noepoch
s_cmp_lg_u32 s{sW}, 0
s_cbranch_scc1 L_noepoch""")
    P(f"v_lshrrev_b32 v6, 5, v{vL}\nv_lshlrev_b32 v6, 12, v6\nv_and_b32 v7, 31, v{vL}\nv_lshl_add_u32 v6, v7, 2, v6\nv_add_u32 v6, {F0S}, v6")
    for k in range(4):
        poll(6, 5)
        P("v_add_u32 v6, 8192, v6")
    P(f"v_mov_b32 v6, 0\nv_mov_b32 v5, s{sTAG}\ns_mov_b64 exec, 1\nbuffer_store_dword v5, v6, {srd(sWS)}, 0 offen\ns_mov_b64 exec, -1\nL_noepoch:")
    if cfg.stamps:
        P("s_waitcnt vmcnt(0)")
        stamp("end")
        P(f"s_lshl_b32 s84, s2, 2\ns_add_u32 s84, s84, s{sW}\ns_lshl_b32 s84, s84, 7\ns_add_u32 s84, s84, {STAMPS}\nv_mov_b32 v6, s84\ns_mov_b64 exec, 1")
        if cfg.diag is not None:
            a, b = cfg.diag
            P(f"s_sub_u32 s84, s{STAMP0+b}, s{STAMP0+a}\ns_lshl_b32 s84, s84, 2\ns_add_u32 s84, s84, 10000\nL_spin:\ns_sleep 8\ns_memrealtime s[100:101]\ns_waitcnt lgkmcnt(0)\ns_sub_u32 s85, s100, s{STAMP0}\ns_cmp_lt_u32 s85, s84\ns_cbranch_scc1 L_spin")
        elif cfg.dbg:
            P(f"v_mov_b32 v6, 0\ns_not_b32 s84, s{STAMP0}\nv_mov_b32 v5, s84\nbuffer_atomic_umax v5, v6, {srd(sR)}, 0 offen")
            for k in range(min(nstamp[0], 15)):
                P(f"v_mov_b32 v{16+k}, s{STAMP0+k}\nbuffer_atomic_umax v{16+k}, v6, {srd(sR)}, 0 offen offset:{4*k+4}")
        else:
          for k in range(nstamp[0]):
            P(f"v_mov_b32 v5, s{STAMP0+k}\nbuffer_store_dword v5, v6, {srd(sWS)}, 0 offen offset:{4*k}")
    P("L_end:\ns_endpgm")
    for x in slow: P(x)
    cfg.names = names
    return P

def cost(it):
    t = it[0] if isinstance(it, tuple) else it
    c = 0
    for l in t.split("\n"):
        if l.startswith("@") or l.endswith(":"): continue
        c += 0.67 if l.startswith("s_") else (2 if l.startswith("ds_write_b128") else 1)
    return c

def sched(P, mains, fixed, flex, cap=2, flex2=None):
    Q = [list(flex2 or []), list(flex)]; K = [0, 0]; marks = set()
    def put(it):
        t = it[0] if isinstance(it, tuple) else it
        if t.startswith("@mark"): marks.add(t[5:]); return 0
        if t.startswith("@flexdone"):
            for q in range(2):
                if any((x[1] if not isinstance(x[1], tuple) else x[1][0]) == "@mark" + t[9:] for x in Q[q]):
                    n0 = K[q]
                    while t[9:] not in marks:
                        it2 = Q[q][K[q]][1]; K[q] += 1; put(it2)
                    if K[q] - n0 > 1 and VERBOSE: print("flush", t, K[q] - n0)
            return 0
        P.add(it)
        return cost(t)
    for n, m in enumerate(mains):
        P.add(m)
        c = 0
        for it in fixed.get(n, []): c += put(it)
        for q in range(2):
            while K[q] < len(Q[q]) and Q[q][K[q]][0] <= n and (c == 0 or c + cost(Q[q][K[q]][1]) <= cap + 0.02):
                it = Q[q][K[q]][1]; K[q] += 1
                c += put(it)
    for q in range(2):
        if K[q] < len(Q[q]) and VERBOSE: print("left", len(Q[q]) - K[q])
        while K[q] < len(Q[q]):
            it = Q[q][K[q]][1]; K[q] += 1
            put(it)
VERBOSE = False

import struct
def hexf(x): return hex(struct.unpack("<I", struct.pack("<f", x))[0])

HEADER = open("cdna_kernels/" + NAME + ".s.ref").read().split("; Override launch geometry")[0]
def build(cfg, verbose=False):
    body = finalize(gen(cfg), verbose)
    k = NAME + "_kernel"
    return (HEADER + f"; @launch grid=(256,1,1) block=(256,1,1) lds={LDS_BYTES}\n"
        + f'.amdgcn_target "amdgcn-amd-amdhsa--gfx950"\n.text\n.globl {k}\n.p2align 8\n.type {k},@function\n{k}:\n' + body
        + f""".section .rodata,"a"
.p2align 6
.amdhsa_kernel {k}
  .amdhsa_next_free_vgpr 512
  .amdhsa_next_free_sgpr 102
  .amdhsa_accum_offset 256
  .amdhsa_group_segment_fixed_size 0
  .amdhsa_kernarg_size 88
  .amdhsa_user_sgpr_count 2
  .amdhsa_user_sgpr_kernarg_segment_ptr 1
  .amdhsa_system_sgpr_workgroup_id_x 1
.end_amdhsa_kernel
""")

if __name__ == "__main__":
    cfg = Cfg(); VERBOSE = True
    out = sys.argv[1]
    for a in sys.argv[2:]:
        k, v = a.split("=")
        setattr(cfg, k, eval(v))
    open(out, "w").write(build(cfg, True))
    if cfg.stamps: open(out + ".names", "w").write("|".join(cfg.names))
```

```python
import sys
from ir import *

NAME = "sequential_preLN__sliding_local_dilated__dense_activation_squared_relu__prompt"

F0S, F1G, F1S, F2G, F2S, F3A, F3B, STATS, F3C = 0x10000, 0x20000, 0x48000, 0x50000, 0x78000, 0x80000, 0xA0000, 0xC0000, 0xE0000
WQP, WOP, OP, HP, W1R, W2R, PART, STAMPS = 0x100000, 0x300000, 0x400000, 0x700000, 0xA00000, 0x1000000, 0x1600000, 0x3000000
WS_BYTES = 0x4000000
OOB = 0x40000000
LDS_BYTES = 163840
XB = 71680
R0SCR = 49152
W1SCR = 0
WOB = 0
W2SCR0 = 32768
W2SCR = 98304
XRS = 131072
VXS = 143360
XN, HB = 0, 73728
sX, sWQ, sWO, sW1, sW2, sB1, sB2, sOUT, sWS, sR = 28, 32, 36, 40, 44, 48, 52, 56, 60, 88
sW, sG2, sJ2, sGF, sJF, sTAG = 68, 69, 70, 71, 72, 73
def srd(n): return f"s[{n}:{n+3}]"
def vq(n, k=4): return f"v[{n}:{n+k-1}]"
def aq(n, k=4): return f"a[{n}:{n+k-1}]"
MF = "v_mfma_f32_16x16x32_bf16"
vL, vI, vG, vL16 = 1, 2, 3, 4

class Cfg:
    stamps = False
    nx1 = 4
    p1depth = 4
    npre = 25
    rot = True
    npre1 = 12
    wospan = 10
    f3 = (10, 14)
    pre = (12, 6, 6, 12, 18)
    wo_early = 8
    dmagap = 10
    touch = 0
    outfl = ''
    no1 = 12
    ogap = 3.5
    nh2 = 18
    hgap = 5
    p1early = False
    wflag = False
    tail4 = (18, 132, 110, 110, 200, 190, 20)
    scost = 130
    lcost = 70
    skip = ()
    lag = 6
    gq = (0, 0, 0, 0)
    f1s = 11
    tail = (14, 13, 232, 44, 5, 11, 18)
    tailord = 0
    backlog = 400
    tgap = 18.5
    slack = 70
    margin = 64
    wcost = 72
    rawfl = ' nt'
    r0fl = ' nt'
    wrsfl = ' sc1'
    rawat = 1
    ilv = True
    w2at = 1
    w2st = 0
    nh1 = 8
    hold = 0
    w2lead = 16
    nleft = 60
    p1z4 = 1
    nx2 = 8
    dbg = False
    diag = None
    wsbase = 0
    only = None
    cap = 2
    wsc = " sc1"
    nwo1 = 40
    stop = None

def gen(cfg):
    P = Prog()
    sG1, sJ1 = (sGF, sJF) if cfg.p1z4 == 1 else ((sG2, sJ2) if cfg.p1z4 == 0 else (65, 66))
    nstamp = [0]
    names = []
    def stamp_txt(name):
        if cfg.stamps and (cfg.only is None or name.replace(" ", "_") in cfg.only or name == "end") and not (cfg.only is None and name.startswith("@")):
            k = nstamp[0]; nstamp[0] += 1; names.append(name); assert k < 20, name
            return f"{'s_memtime' if cfg.stamps == 2 else 's_memrealtime'} s[100:101]\n@waitlg_all\ns_mov_b32 s{STAMP0+k}, s100"
        return None
    def stamp(name):
        t = stamp_txt(name)
        if t: P(t)
    STAMP0 = 4
    npoll = [0]
    def poll(vaddr, vtmp):
        k = npoll[0]; npoll[0] += 1
        P(f"""s_mov_b32 s97, 0
L_poll{k}:
buffer_load_dword v{vtmp}, v{vaddr}, {srd(sWS)}, 0 offen sc1
s_add_u32 s97, s97, 1
s_waitcnt vmcnt(0)
v_cmp_ne_u32 vcc, s{sTAG}, v{vtmp}
s_cmp_gt_u32 s97, 400000
s_cbranch_scc1 L_pdone{k}
s_cbranch_vccnz L_poll{k}
L_pdone{k}:""")
    slow = []
    def poll_pre(vaddr, vtmp):
        return (f"buffer_load_dword v{vtmp}, v{vaddr}, {srd(sWS)}, 0 offen sc1", "pl")
    def poll_check(vaddr, vtmp):
        k = npoll[0]; npoll[0] += 1
        slow.append(f"""L_slow{k}:
s_mov_b32 s97, 0
L_poll{k}:
buffer_load_dword v{vtmp}, v{vaddr}, {srd(sWS)}, 0 offen sc1
s_add_u32 s97, s97, 1
s_waitcnt vmcnt(0)
v_cmp_ne_u32 vcc, s{sTAG}, v{vtmp}
s_cmp_gt_u32 s97, 400000
s_cbranch_scc1 L_back{k}
s_cbranch_vccnz L_poll{k}
s_branch L_back{k}""")
        return f"v_cmp_ne_u32 vcc, s{sTAG}, v{vtmp}\ns_cbranch_vccnz L_slow{k}\nL_back{k}:"
    def wrap(sr, step, send, sbeg):
        return f"s_add_u32 s{sr}, s{sr}, {step}\ns_cmp_eq_u32 s{sr}, s{send}\ns_cselect_b32 s{sr}, s{sbeg}, s{sr}"
    def set_flag(vaddr):
        P(f"v_mov_b32 v5, s{sTAG}")
        P(f"buffer_store_dword v5, v{vaddr}, {srd(sWS)}, 0 offen sc1", "flag")

    P("""s_cmp_ge_u32 s2, 256
s_cbranch_scc1 L_end
s_load_dwordx16 s[4:19], s[0:1], 0
s_load_dwordx4 s[20:23], s[0:1], 64
s_load_dwordx2 s[24:25], s[0:1], 80""")
    if cfg.stamps: P("s_memtime s[26:27]" if cfg.stamps == 2 else "s_memrealtime s[26:27]")
    P(f"""v_lshrrev_b32 v5, 6, v0
v_and_b32 v{vL}, 63, v0
v_readfirstlane_b32 s{sW}, v5
v_and_b32 v{vI}, 15, v0
v_lshrrev_b32 v{vG}, 4, v{vL}
v_lshlrev_b32 v{vL16}, 4, v{vL}
s_and_b32 s74, s2, 7
s_lshr_b32 s75, s2, 3
s_lshl_b32 s{sG2}, s74, 2
s_lshr_b32 s76, s75, 3
s_add_u32 s{sG2}, s{sG2}, s76
s_and_b32 s{sJ2}, s75, 7
s_lshr_b32 s{sGF}, s74, 2
s_lshl_b32 s{sGF}, s{sGF}, 4
s_lshr_b32 s76, s75, 1
s_add_u32 s{sGF}, s{sGF}, s76
s_and_b32 s{sJF}, s74, 3
s_lshl_b32 s{sJF}, s{sJF}, 1
s_and_b32 s76, s75, 1
s_add_u32 s{sJF}, s{sJF}, s76
""")
    if cfg.p1z4 == 2:
        P(f"""s_lshr_b32 s65, s74, 1
s_lshl_b32 s65, s65, 3
s_lshr_b32 s76, s75, 2
s_add_u32 s65, s65, s76
s_and_b32 s66, s74, 1
s_lshl_b32 s66, s66, 2
s_and_b32 s76, s75, 3
s_add_u32 s66, s66, s76""")
    P(f"""s_lshl_b32 s77, s{sW}, 5
s_add_u32 s77, s77, s{sG1}
s_mul_i32 s78, s{sJ1}, 144""")
    sRP, sRF, sR2 = 0, 1, 3
    P(f"""s_cmp_lt_u32 s77, 72
s_cbranch_scc0 L_r0_wo
v_mul_u32_u24 v6, 2428, v{vL}
v_lshrrev_b32 v6, 16, v6
v_mul_u32_u24 v7, 27, v6
v_sub_u32 v7, v{vL}, v7
v_mul_u32_u24 v8, 7282, v7
v_lshrrev_b32 v8, 16, v8
v_mul_u32_u24 v9, 9, v8
v_sub_u32 v9, v7, v9
v_mul_u32_u24 v6, 3456, v6
v_mul_u32_u24 v8, 1152, v8
v_lshlrev_b32 v9, 4, v9
v_add3_u32 v5, v6, v8, v9
v_cmp_gt_u32 vcc, 54, v{vL}
s_mul_i32 s80, s77, {8*3456}
s_add_u32 s80, s80, s78
s_add_u32 s81, s80, {6912-1024}
s_add_u32 s82, s81, {6912-1024}
s_add_u32 s83, s82, {6912-1024}
s_branch L_r0_join
L_r0_wo:
v_mul_u32_u24 v6, 7282, v{vL}
v_lshrrev_b32 v6, 16, v6
v_mul_u32_u24 v7, 9, v6
v_sub_u32 v7, v{vL}, v7
v_mul_u32_u24 v6, 1152, v6
v_lshl_add_u32 v5, v7, 4, v6
v_cmp_gt_u32 vcc, 36, v{vL}
s_sub_u32 s79, s77, 72""")
    for G in range(2):
        if G: P("s_add_u32 s79, s79, 36")
        P(f"""s_lshr_b32 s84, s79, 2
s_mul_i32 s84, s84, 36
s_bfe_u32 s85, s79, 0x10001
s_mul_i32 s85, s85, 20
s_add_u32 s84, s84, s85
s_and_b32 s85, s79, 1
s_lshl_b32 s85, s85, 3
s_add_u32 s84, s84, s85
s_add_u32 s85, s84, 4
s_sub_u32 s86, s79, 64
s_mul_i32 s86, s86, 72
s_add_u32 s86, s86, 16
s_add_u32 s87, s86, 36
s_cmp_lt_u32 s79, 64
s_cselect_b32 s84, s84, s86
s_cselect_b32 s85, s85, s87
s_mul_i32 s84, s84, 1152
s_mul_i32 s85, s85, 1152
s_add_u32 s84, s84, s78
s_add_u32 s85, s85, s78
s_sub_u32 s{80+2*G}, s84, {1024*(2*G)}
s_sub_u32 s{81+2*G}, s85, {1024*(2*G+1)}""")
    P(f"""s_cmp_lt_u32 s77, 108
s_cselect_b32 s80, s80, {OOB}
s_cselect_b32 s81, s81, {OOB}
s_cselect_b32 s82, s82, {OOB}
s_cselect_b32 s83, s83, {OOB}
L_r0_join:
s_nop 1
v_mov_b32 v6, {OOB}
v_cndmask_b32 v5, v6, v5, vcc
s_lshl_b32 s84, s{sW}, 12
s_add_u32 s84, s84, {R0SCR}
s_mov_b32 m0, s84
s_waitcnt lgkmcnt(0)""")
    def mksrd(d, p, n):
        P(f"s_mov_b32 s{d}, s{p}\ns_and_b32 s{d+1}, s{p+1}, 0xffff\ns_mov_b32 s{d+2}, {n}\ns_mov_b32 s{d+3}, 0x00020000")
    P(f"""s_cmp_lt_u32 s77, 72
s_cselect_b32 s{sR}, s6, s8
s_cselect_b32 s{sR+1}, s7, s9
s_mov_b32 s85, {576*1152}
s_cselect_b32 s{sR+2}, {576*3456}, s85
s_and_b32 s{sR+1}, s{sR+1}, 0xffff
s_mov_b32 s{sR+3}, 0x00020000""")
    if cfg.stamps: P(("s_memtime" if cfg.stamps == 2 else "s_memrealtime") + " s[38:39]")
    for q in range(4):
        P(f"buffer_load_dwordx4 v5, {srd(sR)}, s{80+q} offen offset:{1024*q}{cfg.r0fl} lds", "r0")
    mksrd(sX, 4, 2048*1152)
    if cfg.wsbase: P(f"s_add_u32 s24, s24, {cfg.wsbase}\ns_addc_u32 s25, s25, 0")
    P(f"s_load_dword s{sTAG}, s[24:25], 0")
    XR, XH = 160, 232
    P(f"""s_lshl_b32 s84, s{sG1}, 6
s_and_b32 s85, s{sW}, 1
s_lshl_b32 s85, s85, 5
s_add_u32 s85, s85, s84
s_lshr_b32 s86, s{sW}, 1
s_add_u32 s85, s85, s86
s_mul_i32 s85, s85, 1152
v_lshrrev_b32 v8, 3, v{vL}
v_and_b32 v9, 7, v{vL}
v_mul_u32_u24 v6, 2304, v8
v_lshl_add_u32 v6, v9, 4, v6
v_add_u32 v6, s85, v6
v_add_u32 v7, {8*2304}, v6""")
    if cfg.rot:
        P(f"""s_and_b32 s86, s{sG2}, 3
s_mul_i32 s86, s86, 9
s_add_u32 s86, s86, 2
s_lshr_b32 s86, s86, 2
s_add_u32 s86, s86, s{sJ2}
s_sub_u32 s87, s86, 9
s_cmp_ge_u32 s86, 9
s_cselect_b32 s{sRP}, s87, s86
s_lshl_b32 s86, s{sG2}, 1
s_add_u32 s86, s86, s{sJ2}
s_and_b32 s{sR2}, s86, 7
s_and_b32 s86, s{sJF}, 1
s_mul_i32 s86, s86, 9
s_and_b32 s87, s{sGF}, 15
s_add_u32 s86, s86, s87
s_sub_u32 s87, s86, 18
s_cmp_ge_u32 s86, 18
s_cselect_b32 s{sRF}, s87, s86""")
        if cfg.p1z4 == 1: P(f"s_lshr_b32 s{sRP}, s{sRF}, 1")
        if cfg.p1z4 == 2:
            P(f"""s_and_b32 s86, s66, 3
s_mul_i32 s86, s86, 9
s_add_u32 s86, s86, 2
s_lshr_b32 s86, s86, 2
s_and_b32 s87, s65, 7
s_add_u32 s86, s86, s87
s_sub_u32 s87, s86, 9
s_cmp_ge_u32 s86, 9
s_cselect_b32 s{sRP}, s87, s86""")
    else:
        P(f"s_mov_b32 s{sRP}, 0\ns_mov_b32 s{sRF}, 0\ns_mov_b32 s{sR2}, 0")
    P(f"s_lshl_b32 s88, s{sRP}, 7")
    for q in range(1, 9):
        P(f"s_add_u32 s{88+q}, s{87+q}, 128\ns_cmp_eq_u32 s{88+q}, 1152\ns_cselect_b32 s{88+q}, 0, s{88+q}")
    xl = []
    for q in range(9):
        for hh in range(2):
            xl.append(f"buffer_load_dwordx4 {vq(XR + (q*2+hh)*4)}, v{6+hh}, {srd(sX)}, s{88+q} offen")
    for l in xl[:cfg.nx1]: P(l, "x")
    mksrd(sWS, 24, WS_BYTES)
    P(f"""s_lshl_b32 s85, s{sW}, 2
v_add_u32 v10, s85, v{vG}
v_and_b32 v11, 7, v10
v_lshrrev_b32 v12, 3, v10
v_lshl_add_u32 v11, v11, 1, v12
v_add_u32 v11, s84, v11
v_subrev_u32 v11, 16, v11
v_mul_u32_u24 v11, 1152, v11
s_cmp_eq_u32 s{sG1}, 0
s_cselect_b32 s85, {OOB}, 0
s_cselect_b32 s86, 0, -1
v_and_b32 v11, s86, v11
v_or_b32 v11, s85, v11
v_mov_b32 v13, {OOB}
s_lshl_b32 s85, s{sRP}, 3
v_add_u32 v12, s85, v{vI}""")
    for q in range(5):
        P(f"""v_add_u32 v{84+q}, {16*q}, v12
v_subrev_u32 v89, 72, v{84+q}
v_min_u32 v{84+q}, v{84+q}, v89
v_lshl_add_u32 v{84+q}, v{84+q}, 4, v11""")
    P(f"v_cmp_gt_u32 vcc, 8, v{vI}\nv_cndmask_b32 v88, v13, v88, vcc")
    hl = [f"buffer_load_dwordx4 {vq(XH + 4*q)}, v{84+q}, {srd(sX)}, 0 offen" for q in range(5)]
    P(f"""v_bfe_u32 v14, v{vL}, 2, 2
v_and_b32 v15, 3, v{vL}
s_lshl_b32 s84, s{sW}, 12
s_add_u32 s84, s84, {R0SCR}
s_cmp_lt_u32 s77, 72
s_cbranch_scc0 L_r1_wo
v_lshrrev_b32 v16, 1, v14
v_lshlrev_b32 v16, 10, v16
v_and_b32 v17, 1, v14
v_mul_u32_u24 v17, 432, v17
v_add3_u32 v16, v16, v17, s84
v_mul_u32_u24 v17, 36, v{vG}
v_and_b32 v18, 1, v{vG}
v_lshl_add_u32 v17, v18, 2, v17
v_lshl_add_u32 v17, v15, 3, v17
v_add_u32 v32, v16, v17
v_add_u32 v34, 144, v32
v_add_u32 v36, 288, v32
v_min_u32 v17, 2, v15
v_mul_u32_u24 v17, 144, v17
v_mul_u32_u24 v18, 72, v18
v_add3_u32 v38, v16, v17, v18
v_add_u32 v38, 32, v38
s_mov_b32 s85, 2048
s_lshr_b32 s86, s77, 2
s_mul_i32 s87, s{sJ1}, 72
s_add_u32 s86, s86, s87
s_mul_i32 s86, s86, 3584
s_add_u32 s86, s86, {WQP}
s_and_b32 s87, s77, 3
v_mul_u32_u24 v16, {18*3584}, v{vG}
v_lshl_add_u32 v16, v{vI}, 4, v16
s_lshl_b32 s79, s87, 8
s_add_u32 s79, s79, s86
v_add_u32 v40, s79, v16
v_add_u32 v41, 1024, v40
v_add_u32 v42, 2048, v40
v_lshrrev_b32 v16, 1, v15
v_lshl_add_u32 v16, v{vG}, 1, v16
v_mul_u32_u24 v16, {18*3584}, v16
v_and_b32 v17, 1, v15
v_lshl_add_u32 v17, v14, 1, v17
v_lshl_add_u32 v16, v17, 4, v16
s_lshl_b32 s79, s87, 7
s_add_u32 s79, s79, s86
s_add_u32 s79, s79, 3072
v_add_u32 v16, s79, v16
v_cmp_gt_u32 vcc, 32, v{vL}
v_cndmask_b32 v43, v13, v16, vcc
s_branch L_r1_join
L_r1_wo:
v_mul_u32_u24 v16, 144, v14
v_add_u32 v16, s84, v16
v_lshrrev_b32 v17, 1, v{vG}
v_lshlrev_b32 v17, 6, v17
v_and_b32 v18, 1, v{vG}
v_lshl_add_u32 v17, v18, 3, v17
v_lshl_add_u32 v17, v15, 4, v17
v_add_u32 v32, v16, v17
v_and_b32 v17, 1, v15
v_lshl_add_u32 v34, v17, 3, v16
v_add_u32 v34, 128, v34
v_add_u32 v36, 2048, v32
v_add_u32 v38, 2048, v34
s_mov_b32 s85, 1024
v_lshlrev_b32 v16, 10, v{vG}
v_lshl_add_u32 v16, v{vI}, 4, v16
v_cmp_gt_u32 vcc, 8, v{vL}
v_cndmask_b32 v17, v13, v{vL16}, vcc
s_sub_u32 s79, s77, 72""")
    for G in range(2):
        if G: P("s_add_u32 s79, s79, 36")
        P(f"""s_lshr_b32 s86, s79, 2
s_mul_i32 s87, s{sJ1}, 18
s_add_u32 s86, s86, s87
s_mul_i32 s86, s86, 4608
s_add_u32 s86, s86, {WOP}
s_cmp_lt_u32 s77, 108
s_cselect_b32 s86, s86, {OOB}
s_and_b32 s87, s79, 3
s_lshl_b32 s76, s87, 8
s_add_u32 s76, s76, s86
v_add_u32 v{40+2*G}, s76, v16
s_lshl_b32 s76, s87, 7
s_add_u32 s76, s76, s86
s_add_u32 s76, s76, 4096
v_add_u32 v{41+2*G}, s76, v17""")
    P("L_r1_join:\ns_nop 1")
    for t in range(4): P(f"v_add_u32 v{33+2*t}, s85, v{32+2*t}")
    mksrd(sW1, 12, 576*9216); mksrd(sW2, 16, 4608*1152); mksrd(sB1, 14, 9216); mksrd(sB2, 18, 1152); mksrd(sOUT, 20, 2048*1152)
    if cfg.dbg: mksrd(sR, 22, 256)
    if cfg.stamps: P("@waitlg_all\ns_mov_b32 s4, s26"); P("s_mov_b32 s5, s38"); nstamp[0] = 2; names.append("start"); names.append("r0 issue")
    P("s_mov_b32 s99, 0x3f803f80\ns_mov_b32 s98, 0xffff0000")
    if cfg.touch:
        P(f"v_lshlrev_b32 v90, 21, v{vL}\nv_min_u32 v90, {0x2800000}, v90")
        P(f"buffer_load_dword v60, v90, {srd(sWS)}, 0 offen", "tch")
        if cfg.touch > 1:
            P(f"buffer_load_dword v61, v90, {srd(sW1)}, 0 offen", "tch")
            P(f"buffer_load_dword v62, v90, {srd(sW2)}, 0 offen", "tch")
            P(f"buffer_load_dword v63, v90, {srd(sOUT)}, 0 offen", "tch")
    UP = {(1, 0): (32, 33, 34), (1, 1): (35, 36, 37), (2, 0): (24, 25, 34), (2, 1): (26, 27, 37)}
    for z in range(2):
        a1, d1, st = UP[(1, z)]; a2, d2, _ = UP[(2, z)]
        P(f"""s_add_u32 s84, s77, {128*z}
s_mul_i32 s85, s84, 7282
s_lshr_b32 s85, s85, 16
s_mul_i32 s86, s85, 9
s_sub_u32 s86, s84, s86
s_lshl_b32 s76, s86, 7
s_mul_i32 s87, s85, {32*9216}
s_add_u32 s87, s87, s76
s_mul_i32 s75, s{sJ1}, 1152
s_add_u32 s{a1}, s87, s75
s_mul_i32 s87, s85, {32*1152}
s_add_u32 s87, s87, s76
s_mul_i32 s75, s{sJ1}, {576*1152}
s_add_u32 s{a2}, s87, s75
s_lshr_b32 s79, s85, 2
s_lshl_b32 s79, s79, 1
s_and_b32 s75, s85, 1
s_add_u32 s79, s79, s75
s_add_u32 s75, s79, 10
s_bitcmp1_b32 s85, 1
s_cselect_b32 s79, s75, s79
s_lshr_b32 s87, s86, 1
s_mul_i32 s87, s87, 162
s_and_b32 s76, s86, 1
s_lshl_b32 s76, s76, 2
s_add_u32 s87, s87, s76
s_cmp_eq_u32 s86, 8
s_cselect_b32 s87, 8, s87
s_cselect_b32 s{st}, 162, 1
s_lshl_b32 s{st}, s{st}, 10
s_mul_i32 s76, s{sJ1}, 648
s_add_u32 s87, s87, s76
s_mul_i32 s75, s85, 9
s_add_u32 s75, s75, s87
s_lshl_b32 s75, s75, 10
s_add_u32 s{d1}, s75, {W1R}
s_mul_i32 s75, s79, 9
s_add_u32 s75, s75, s87
s_lshl_b32 s75, s75, 10
s_add_u32 s{d2}, s75, {W2R}""")
        if z:
            P("s_cmp_lt_u32 s84, 162")
            for r in (a1, d1, a2, d2): P(f"s_cselect_b32 s{r}, s{r}, {OOB}")
    P(f"""v_mul_u32_u24 v92, 9216, v8
v_lshl_add_u32 v92, v9, 4, v92
v_mul_u32_u24 v93, 1152, v8
v_lshl_add_u32 v93, v9, 4, v93
v_lshl_add_u32 v94, v{vG}, 3, v14
v_lshlrev_b32 v94, 7, v94
v_lshl_add_u32 v94, v15, 4, v94
s_lshl_b32 s84, s{sW}, 13
v_add_u32 v94, s84, v94""")
    def unit_dma(mat, z, scr, vs=None):
        a = UP[(mat, z)][0]; st = 9216 if mat == 1 else 1152
        L = [f"s_lshl_b32 s84, s{sW}, 13\ns_add_u32 s84, s84, {scr + 4096*z}\ns_mov_b32 m0, s84"]
        for q in range(4):
            if q: L.append(f"s_add_u32 s{a}, s{a}, {8*st - 1024}")
            L.append((f"buffer_load_dwordx4 v{vs or 91+mat}, {srd(sW1 if mat == 1 else sW2)}, s{a} offen offset:{1024*q}{cfg.rawfl} lds", "wr"))
        return L
    def unit_tr(z, scr, vt):
        return [f"ds_read_b64_tr_b16 {vq(vt+4*t+2*hi,2)}, v94 offset:{scr + 4096*z + 64*(t>>1) + 8*(t&1) + 512*hi}" for t in range(4) for hi in range(2)]
    def unit_st(mat, z, vt):
        _, d, st = UP[(mat, z)]; L = []
        for t in range(4):
            if t: L.append(f"s_add_u32 s{d}, s{d}, s{st}")
            L.append((f"buffer_store_dwordx4 {vq(vt+4*t)}, v{vL16}, {srd(sWS)}, s{d} offen{cfg.wrsfl}", "wrs"))
        return L
    MS, MP, ME, MO = 96, 100, 104, 108
    P(f"""v_mov_b32 v66, {hexf(-1e30)}
v_lshlrev_b32 v64, 2, v{vG}
v_sub_u32 v64, v64, v{vI}
s_cmp_eq_u32 s{sG1}, 0
s_cselect_b32 s84, 100, 0
v_cmp_gt_u32 s[80:81], 2, v{vG}""")
    for r in range(4):
        P(f"""v_add_u32 v65, {r+7}, v64
v_cmp_gt_u32 vcc, 8, v65
v_add_u32 v65, {r}, v64
v_subrev_u32 v67, s84, v65
v_cndmask_b32 v{MS+r}, v66, 0, vcc
v_cmp_lt_i32 vcc, 8, v65
v_cmp_lt_i32 s[82:83], 8, v67
v_cmp_lt_i32 s[86:87], 0, v67
v_cndmask_b32 v{MP+r}, v66, 0, vcc
s_and_b64 s[86:87], s[86:87], s[80:81]
v_cndmask_b32 v{MO+r}, v66, 0, s[82:83]
v_cndmask_b32 v{ME+r}, v66, 0, s[86:87]""")
    P("@waitvm r0")
    stamp("r0 landed")
    for t in range(4):
        P(f"ds_read_b64_tr_b16 {vq(16+4*t,2)}, v{32+2*t}")
        P(f"ds_read_b64_tr_b16 {vq(18+4*t,2)}, v{33+2*t}")
    for t in range(4):
        P(f"buffer_store_dwordx4 {vq(16+4*t)}, v{40+t}, {srd(sWS)}, 0 offen sc1", "r0s")
    stamp("@r0 st")
    xrest = xl[cfg.nx1:] + hl
    P(f"@waitlg_all\ns_add_u32 s{sTAG}, s{sTAG}, 0x9E3779B9")
    P(f"""s_lshl_b32 s84, s{sJ1}, 12
s_add_u32 s84, s84, {F0S}
s_lshl_b32 s85, s{sG1}, 2
s_add_u32 s85, s85, s84
v_mov_b32 v44, s85
v_cmp_eq_u32 vcc, 0, v0
v_cndmask_b32 v44, v13, v44, vcc
v_and_b32 v45, 31, v{vL}
v_lshl_add_u32 v45, v45, 2, s84
s_lshl_b32 s84, s{sJ2}, 12
s_add_u32 s84, s84, {F0S - 128}
v_lshl_add_u32 v5, v{vL}, 2, s84
v_cmp_gt_u32 vcc, 32, v{vL}
v_cndmask_b32 v45, v5, v45, vcc""")
    def stats(groups, acc):
        order = sorted((r, gi, k) for gi, regs in enumerate(groups) for k, r in enumerate(regs))
        L = []
        for r, gi, k in order:
            a = acc + 4*gi + 2*(k & 1)
            c0 = "0" if k < 2 else f"v{a}"; c1 = "0" if k < 2 else f"v{a+1}"
            L.append(f"v_dot2_f32_bf16 v{a}, v{r}, s99, {c0}\nv_dot2_f32_bf16 v{a+1}, v{r}, v{r}, {c1}")
        for gi in range(len(groups)):
            a = acc + 4*gi
            L.append(f"v_add_f32 v{a}, v{a}, v{a+2}\nv_add_f32 v{a+1}, v{a+1}, v{a+3}")
        return L
    def finish_stats(A):
        for t in [f"v_mul_f32 v@0, {hexf(1/576)}, v@0", f"v_mul_f32 v@2, v@0, v@0", f"v_mul_f32 v@1, {hexf(1/576)}, v@1", "v_sub_f32 v@1, v@1, v@2",
                  "v_max_f32 v@1, 0, v@1", f"v_add_f32 v@1, {hexf(1e-5)}, v@1", "v_rsq_f32 v@1, v@1", "v_mul_f32 v@2, v@0, -v@1",
                  "v_mov_b32 v@0, v@1", "v_mov_b32 v@3, v@2"]:
            for a in A: P(t.replace("@0", str(a)).replace("@1", str(a+1)).replace("@2", str(a+2)).replace("@3", str(a+3)))
    def normalize(q, a, t, pk=True):
        L = []
        for d in range(4):
            L.append(f"v_lshlrev_b32 v{t+2*d}, 16, v{q+d}")
            L.append(f"v_and_b32 v{t+2*d+1}, s98, v{q+d}")
        if pk:
            for d in range(4): L.append(f"v_pk_fma_f32 {vq(t+2*d,2)}, {vq(t+2*d,2)}, {vq(a,2)}, {vq(a+2,2)}")
        else:
            for d in range(8): L.append(f"v_fma_f32 v{t+d}, v{t+d}, v{a}, v{a+2}")
        for d in range(4): L.append(f"v_cvt_pk_bf16_f32 v{q+d}, v{t+2*d}, v{t+2*d+1}")
        return L
    ST = 144; NT = 112
    st = stats([[XR + (q*2+hh)*4 + d for q in range(9) for d in range(4)] for hh in range(2)] + [[XH + k for k in range(20)]], ST)
    raw = {1: [], 2: []}
    for z in range(2):
        raw[1] += unit_dma(1, z, W1SCR); raw[2] += unit_dma(2, z, W2SCR0)
    raw[1].append(f"s_mul_i32 s84, s{sJF}, 1152\nv_lshlrev_b32 v5, 7, v{vI}")
    raw[1].append((f"buffer_load_dword v90, v5, {srd(sB1)}, s84 offen", "wr"))
    raw[1].append((f"buffer_load_dword v91, v5, {srd(sB2)}, 0 offen", "wr"))
    k = 0
    for n, l in enumerate(xrest + [None]):
        if n == cfg.nx2:
            stamp("@pre-ack")
            P("@waitvm r0s")
            stamp("@acked")
            P("s_barrier")
            set_flag(44)
            stamp("F0 set")
        if l is None: break
        P(l, "x")
        if cfg.nx1 + n + 1 - k//4 > cfg.lag: P.extend(st[k:k+4]); k += 4
    if cfg.rawat == 0: P.extend(raw[1])
    P.extend(st[k:])
    if cfg.rawat == 1: P.extend(raw[1])
    if cfg.w2at == 4: P.extend(raw[2])
    for mod in ["quad_perm:[1,0,3,2]", "quad_perm:[2,3,0,1]", "row_half_mirror"]:
        for gi in range(3):
            for k in range(2):
                a = ST + 4*gi + k
                P(f"v_add_f32_dpp v{a}, v{a}, v{a} {mod} row_mask:0xf bank_mask:0xf")
    for k in range(2): P(f"v_add_f32_dpp v{ST+8+k}, v{ST+8+k}, v{ST+8+k} row_mirror row_mask:0xf bank_mask:0xf")
    finish_stats([ST, ST+4, ST+8])
    stamp("LN1 stats")
    P(f"""v_lshrrev_b32 v156, 2, v9
v_mul_u32_u24 v156, 5120, v156
v_and_b32 v157, 3, v9
v_lshl_add_u32 v156, v157, 8, v156
v_xor_b32 v157, v8, v9
v_lshl_add_u32 v156, v157, 4, v156
s_lshl_b32 s84, s{sW}, 10
s_add_u32 s84, s84, {XB}
v_add_u32 v156, s84, v156
v_add_u32 v157, {10240*5}, v156
v_lshrrev_b32 v158, 2, v{vI}
v_mul_u32_u24 v158, 5120, v158
v_lshl_add_u32 v158, v15, 8, v158
v_xor_b32 v159, v10, v9
v_lshl_add_u32 v158, v159, 4, v158
v_add_u32 v158, {XB + 4096}, v158
v_add_u32 v159, {20480*3}, v158""")
    ntc = [0]
    def ln1_batch(b):
        L = []
        for q in range(2*b, min(2*b+2, 9)):
            for hh in range(2):
                r = XR + (q*2+hh)*4
                L += normalize(r, ST + 4*hh, NT + 8*(ntc[0] & 1), b < 2); ntc[0] += 1
                L.append(f"ds_write_b128 v{156 if q < 5 else 157}, {vq(r)} offset:{10240*(q % 5) + 128*hh}")
        L += normalize(XH + 4*b, ST + 8, NT + 8*(ntc[0] & 1), b < 2); ntc[0] += 1
        wr = f"ds_write_b128 v{158 if b < 3 else 159}, {vq(XH+4*b)} offset:{20480*(b % 3)}"
        if b == 4: wr = "s_mov_b32 exec_lo, 0x00ff00ff\ns_mov_b32 exec_hi, 0x00ff00ff\n" + wr + "\ns_mov_b64 exec, -1"
        L.append(wr)
        return L
    P.extend(ln1_batch(0))
    P(f"""s_lshl_b32 s74, s{sJ1}, 2
s_add_u32 s74, s74, s{sW}
s_mul_i32 s74, s74, {18*3584}
s_add_u32 s74, s74, {WQP}
s_add_u32 s75, s74, {18*3584}
s_mul_i32 s78, s{sRP}, {2*3584}
s_add_u32 s78, s78, s74
v_lshlrev_b32 v7, 7, v{vG}
v_lshl_add_u32 v7, v{vI}, 4, v7
v_cmp_gt_u32 vcc, 6, v{vI}
v_cndmask_b32 v7, v13, v7, vcc
v_xor_b32 v8, v{vI}, v{vG}
v_lshlrev_b32 v8, 4, v8
v_lshl_add_u32 v8, v{vG}, 8, v8
v_add_u32 v8, {XB}, v8
v_xor_b32 v9, 64, v8
v_add_u32 v10, 46080, v8
v_add_u32 v11, 46080, v9""")
    stamp("@LN1 b0")
    poll(45, 5)
    stamp("F0 seen")
    QA, KA, EA, VA = 16, 32, 52, 72
    WR = 64
    D = cfg.p1depth
    def wq_loads(s):
        b = WR + (s % D)*16
        L = [(f"buffer_load_dwordx4 {aq(b+4*t)}, v{vL16}, {srd(sWS)}, s78 offen offset:{1024*t}{cfg.wsc}", "wq") for t in range(3)]
        L.append((f"buffer_load_dwordx4 {aq(b+12)}, v7, {srd(sWS)}, s78 offen offset:3072{cfg.wsc}", "wq"))
        if s < 17: L.append(wrap(78, 3584, 75, 74))
        return L
    def x_reads(s):
        b = (s % 2)*20
        reg = (8 if s % 2 == 0 else 9) + (2 if s >= 9 else 0)
        return [f"ds_read_b128 {aq(b+4*m)}, v{reg} offset:{((s % 9)*5 + m)*1024}" for m in range(5)]
    for s in range(D-1): P.extend(wq_loads(s))
    if cfg.rawat == 2: P.extend(raw[1])
    P.extend(ln1_batch(1))
    P("@waitlg_all\ns_barrier")
    P.extend(x_reads(0))
    stamp("GEMM1 start")
    def lines(t): return t.split("\n")
    def own_flag(vd, base, sa, sha, sb, shb):
        return [f"s_lshl_b32 s86, s{sa}, {sha}", f"s_lshl_b32 s87, s{sb}, {shb}", "s_add_u32 s86, s86, s87", f"s_add_u32 s86, s86, {base}",
                f"v_mov_b32 v{vd}, s86", f"v_cmp_eq_u32 vcc, 0, v0\nv_cndmask_b32 v{vd}, v13, v{vd}, vcc"]
    def grp_poll_addr(vd, sg, base):
        return lines(f"""s_lshl_b32 s86, s{sg}, 12
s_add_u32 s86, s86, {base}
v_and_b32 v{vd}, 7, v{vL}
v_lshl_add_u32 v{vd}, v{vd}, 4, s86""")
    def set_poll_addr(vd, sj, base):
        return lines(f"""s_lshl_b32 s86, s{sj}, 12
s_add_u32 s86, s86, {base}
v_and_b32 v{vd}, 31, v{vL}
v_lshl_add_u32 v{vd}, v{vd}, 2, s86""")
    def flag_items(vaddr):
        return [f"v_mov_b32 v5, s{sTAG}", (f"buffer_store_dword v5, v{vaddr}, {srd(sWS)}, 0 offen sc1", "flag")]
    def unpack(dst, src, n):
        return sum([[f"v_lshlrev_b32 v{dst+2*k}, 16, v{src+k}", f"v_and_b32 v{dst+2*k+1}, s98, v{src+k}"] for k in range(n)], [])
    QO, KO, VO, XO = 112, 128, 148, 160
    flex = []
    T0 = 128
    for l in ln1_batch(2): flex.append((0, l))
    flex.append((0, "@mark0"))
    flex2 = []
    def join(L):
        out = []; pend = ""
        for x in L:
            if isinstance(x, tuple): out.append((pend + x[0], x[1])); pend = ""
            else: pend += x + "\n"
        return out
    q1, q2, q3, q4 = cfg.gq
    if cfg.rawat == 3:
        for k, l in enumerate(join(raw[1])): flex2.append((int(19*q1) + 2*k, l))
    def repack(mat, scr, g0):
        flex2.append((g0, "@waitvm wr"))
        for z in range(2):
            for l in unit_tr(z, scr, T0): flex2.append((g0 + 24*z, l))
            for k, l in enumerate(join(unit_st(mat, z, T0))): flex2.append((g0 + 24*z + 8 + 4*k, l))
    if cfg.w2at == 3 and q3 < q2:
        for k, l in enumerate(join(raw[2])): flex2.append((int(19*q3) + 2*k, l))
    repack(1, W1SCR, int(19*q2))
    if cfg.w2at >= 3:
        if q3 >= q2 and cfg.w2at == 3:
            for k, l in enumerate(join(raw[2])): flex2.append((int(19*q3) + 2*k, l))
        repack(2, W2SCR0, int(19*q4))
    flex2.append((0, "@markb"))
    for l in ln1_batch(3) + own_flag(95, F1S, sJ1, 12, sG1, 2): flex.append((0, l))
    flex.append((0, "@mark1"))
    for l in ln1_batch(4): flex.append((0, l))
    flex.append((0, "@mark2"))
    pre = lines(f"""s_lshl_b32 s84, s{sW}, 10
s_add_u32 s84, s84, {VXS}
v_lshl_add_u32 v234, v{vI}, 1, s84
v_add_u32 v235, 512, v234
v_cmp_eq_u32 vcc, 1, v{vG}@@v_cndmask_b32 v234, v235, v234, vcc
v_lshl_add_u32 v235, v{vL}, 2, s84
v_min_u32 v236, 2, v{vI}
v_mul_u32_u24 v236, 160, v236
v_lshl_add_u32 v236, v{vG}, 3, v236
v_add_u32 v236, s84, v236
v_mov_b32 v237, s99
s_mul_i32 s84, s{sG1}, 73728
s_add_u32 s84, s84, {OP}
s_lshl_b32 s85, s{sJ1}, 1
s_lshr_b32 s86, s{sW}, 1
s_add_u32 s85, s85, s86
s_lshl_b32 s85, s85, 12
s_and_b32 s86, s{sW}, 1
s_lshl_b32 s86, s86, 9
s_add_u32 s85, s85, s86
s_add_u32 s95, s85, s84
s_lshl_b32 s87, s{sJ1}, 2
s_add_u32 s87, s87, s{sW}
s_lshl_b32 s87, s87, 8
s_add_u32 s87, s87, 65536
s_add_u32 s96, s87, s84
v_and_b32 v232, 1, v{vG}
v_lshlrev_b32 v232, 10, v232
v_lshrrev_b32 v233, 1, v{vG}
v_lshl_add_u32 v232, v233, 8, v232
v_lshl_add_u32 v232, v{vI}, 4, v232
v_lshlrev_b32 v233, 2, v{vL}
s_mul_i32 s79, s{sJ2}, 82944
s_add_u32 s79, s79, {WOP}
s_lshl_b32 s84, s{sW}, 1
s_add_u32 s85, s84, s{sR2}
s_and_b32 s86, s85, 7
s_mul_i32 s86, s86, 9216
s_add_u32 s80, s86, s79
s_add_u32 s85, s85, 1
s_and_b32 s86, s85, 7
s_mul_i32 s86, s86, 9216
s_add_u32 s81, s86, s79
s_lshl_b32 s84, s84, 10
s_add_u32 s84, s84, 73728
s_add_u32 s82, s84, s79
s_mov_b32 s83, s84
s_mul_i32 s76, s{sW}, 18432
s_lshl_b32 s84, s{sG2}, 6
s_and_b32 s85, s{sW}, 1
s_lshl_b32 s85, s85, 5
s_add_u32 s85, s85, s84
s_lshr_b32 s86, s{sW}, 1
s_add_u32 s85, s85, s86
s_mul_i32 s85, s85, 1152
s_mul_i32 s86, s{sJ2}, 144
s_add_u32 s79, s85, s86
v_mul_u32_u24 v238, 7282, v{vL}
v_lshrrev_b32 v238, 16, v238
v_mul_u32_u24 v239, 9, v238
v_sub_u32 v239, v{vL}, v239
v_mul_u32_u24 v238, 2304, v238
v_lshl_add_u32 v238, v239, 4, v238
v_cmp_gt_u32 vcc, 54, v{vL}@@v_cndmask_b32 v238, v13, v238, vcc
s_mul_i32 s77, s{sW}, 3072
s_add_u32 s77, s77, {XRS}
s_mov_b32 s94, {hexf((18 ** -0.5) * 1.4426950408889634)}""") + set_poll_addr(15, sJF, F1S)
    pre += [f"v_mov_b32 v{KO+4*m+3}, 0" for m in range(5)] + [f"v_mov_b32 v{QO+4*m+3}, 0" for m in range(4)]
    for l in pre: flex.append((0, l.replace("@@", "\n")))
    mains = []; fixed = {}
    for s in range(18):
        wb = WR + (s % D)*16; xb = (s % 2)*20
        base = len(mains)
        for m in range(5):
            x = aq(xb + 4*m)
            def acc(a): return (vq(a), "0" if s == 0 else vq(a))
            d, c = acc(KA + 4*m); mains.append(f"{MF} {d}, {aq(wb+4)}, {x}, {c}")
            d, c = acc(VA + 4*m); mains.append(f"{MF} {d}, {x}, {aq(wb+8)}, {c}")
            d, c = acc(EA + 4*m); mains.append(f"{MF} {d}, {aq(wb+12)}, {x}, {c}")
            if m < 4:
                d, c = acc(QA + 4*m); mains.append(f"{MF} {d}, {aq(wb)}, {x}, {c}")
        t_ = stamp_txt(f"@q{s}") if s else None
        if t_: fixed.setdefault(base - 1, []).append(t_)
        if s == 7: fixed.setdefault(base, []).extend(["@flexdone0", "@waitlg_all", "s_barrier"])
        fb_ = ["@flexdoneb", "@waitvm wrs"]
        if s == 11: fixed.setdefault(base, []).extend(["@flexdone1"] + (fb_ if cfg.f1s == 11 else []) + ["@waitlg_all", "s_barrier"] + (flag_items(95) if cfg.f1s == 11 else []))
        if s == 15: fixed.setdefault(base, []).extend(["@flexdone2"] + (fb_ if cfg.f1s == 15 else []) + ["@waitlg_all", "s_barrier"] + (flag_items(95) if cfg.f1s == 15 else []))
        if s + 1 < 18:
            for k, l in enumerate(x_reads(s+1)): fixed.setdefault(base + 1 + 2*k, []).append(l)
            fixed.setdefault(base + 18, []).append(f"@need {aq(WR + ((s+1) % D)*16, 16)} {aq(((s+1) % 2)*20, 20)}")
        if s + D - 1 < 18:
            for k, l in enumerate(wq_loads(s + D - 1)): fixed.setdefault(base + [2, 6, 10, 12, 14][k], []).append(l)
    dma = []
    for seg in range(2):
        for k in range(9):
            it = ""
            if k % 4 == 0:
                it = f"s_add_u32 s84, s76, {seg*9216 + 1024*k}\ns_mov_b32 m0, s84\n"
                if k: it += f"s_add_u32 s{80+seg}, s{80+seg}, 4096\n"
            dma.append((it + f"buffer_load_dwordx4 v{vL16}, {srd(sWS)}, s{80+seg} offen offset:{1024*(k % 4)} sc1 lds", "wo"))
    tail3 = [(("s_mov_b32 m0, s83\n" if k == 0 else "") + f"buffer_load_dwordx4 v{vL16}, {srd(sWS)}, s82 offen offset:{1024*k} sc1 lds", "wo") for k in range(3)]
    xres3 = [(("s_mov_b32 m0, s77\n" if k == 0 else f"s_add_u32 s79, s79, {13824 - 1024}\n") + f"buffer_load_dwordx4 v238, {srd(sX)}, s79 offen offset:{1024*k} lds", "wo") for k in range(3)]
    ne = cfg.wo_early
    for k in range(ne): flex.append((max(19*(18 - (ne*5 + 18)//19) + 5*k, 19*cfg.f1s + 1), dma[k]))
    sched(P, mains, fixed, flex, flex2=flex2)
    stamp("GEMM1 done")
    P("s_barrier")
    A = Prog()
    A(f"s_mov_b32 exec_hi, 0xffff\nds_write_b32 v235, v237 offset:320\ns_mov_b32 exec_hi, -1")
    for m in range(5):
        r = QO + 4*m + 2 if m < 4 else 172
        A(f"v_cvt_pk_bf16_f32 v{r}, v{EA+4*m}, v{EA+4*m+1}")
        A(f"ds_write_b16 v234, v{r} offset:{32*m}\nds_write_b16_d16_hi v234, v{r} offset:{160+32*m}")
    SA = 176
    prev = [4, 0, 4, 2]; pmask = [ME, MP, MO, MP]
    def kop(m): A(f"v_cvt_pk_bf16_f32 v{KO+4*m}, v{KA+4*m}, v{KA+4*m+1}\nv_cvt_pk_bf16_f32 v{KO+4*m+1}, v{KA+4*m+2}, v{KA+4*m+3}\nv_cvt_pk_bf16_f32 v{KO+4*m+2}, v{EA+4*m+2}, v{EA+4*m+3}")
    def qop(m): A(f"v_cvt_pk_bf16_f32 v{QO+4*m}, v{QA+4*m}, v{QA+4*m+1}\nv_cvt_pk_bf16_f32 v{QO+4*m+1}, v{QA+4*m+2}, v{QA+4*m+3}")
    kop(4)
    for m in range(4):
        qop(m); kop(m)
        if m: A(f"{MF} {vq(SA+8*(m-1)+4)}, {vq(KO+4*(m-1))}, {vq(QO+4*(m-1))}, {vq(MS)}")
        A(f"{MF} {vq(SA+8*m)}, {vq(KO+4*prev[m])}, {vq(QO+4*m)}, {vq(pmask[m])}")
    vorder = [4, 0, 1, 4, 2, 3]
    for k, m in enumerate(vorder):
        A(f"v_cvt_pk_bf16_f32 v{VO+2*k}, v{VA+4*m}, v{VA+4*m+1}\nv_cvt_pk_bf16_f32 v{VO+2*k+1}, v{VA+4*m+2}, v{VA+4*m+3}")
        if k == 0: A(f"{MF} {vq(SA+28)}, {vq(KO+12)}, {vq(QO+12)}, {vq(MS)}")
    A("@waitlg_all")
    for k, m in enumerate(vorder): A(f"ds_read_b64 {vq(XO+2*k,2)}, v236 offset:{32*m}")
    MX = 208
    for m in range(4):
        s = SA + 8*m
        A(f"v_max3_f32 v{MX+m}, v{s}, v{s+1}, v{s+2}\nv_max3_f32 v{MX+4+m}, v{s+3}, v{s+4}, v{s+5}")
    for m in range(4):
        s = SA + 8*m
        A(f"v_max3_f32 v{MX+m}, v{MX+m}, v{s+6}, v{s+7}")
    for m in range(4): A(f"v_max_f32 v{MX+m}, v{MX+m}, v{MX+4+m}")
    for sw in ["v_permlane16_swap_b32", "v_permlane32_swap_b32"]:
        for m in range(4): A(f"v_mov_b32 v{MX+4+m}, v{MX+m}")
        for m in range(4): A(f"{sw} v{MX+m}, v{MX+4+m}")
        for m in range(4): A(f"v_max_f32 v{MX+m}, v{MX+m}, v{MX+4+m}")
    for m in range(4): A(f"v_mul_f32 v{MX+m}, s94, v{MX+m}")
    PO = 216; OA = 16; OX = 32
    for m in range(4):
        s = SA + 8*m
        for k in range(8): A(f"v_fma_f32 v{s+k}, v{s+k}, s94, -v{MX+m}")
        if m:
            o = [0, 2, 6, 8][m-1]
            A(f"{MF} {vq(OX+4*(m-1))}, {vq(XO+o)}, {vq(PO+4*(m-1))}, 0")
            A(f"{MF} {vq(OA+4*(m-1))}, {vq(VO+o)}, {vq(PO+4*(m-1))}, 0")
        for k in range(8): A(f"v_exp_f32 v{s+k}, v{s+k}")
        for k in range(4): A(f"v_cvt_pk_bf16_f32 v{PO+4*m+k}, v{s+2*k}, v{s+2*k+1}")
    A(f"v_rcp_f32 v{MX}, v{OX+2}\nv_rcp_f32 v{MX+1}, v{OX+6}")
    A(f"{MF} {vq(OX+12)}, {vq(XO+8)}, {vq(PO+12)}, 0\n{MF} {vq(OA+12)}, {vq(VO+8)}, {vq(PO+12)}, 0")
    OP0 = 112
    for p in range(2):
        if p: A(f"v_rcp_f32 v{MX+2}, v{OX+10}\nv_rcp_f32 v{MX+3}, v{OX+14}")
        for m in (2*p, 2*p+1):
            for r in range(4): A(f"v_mul_f32 v{OA+4*m+r}, v{OA+4*m+r}, v{MX+m}")
            A(f"v_cvt_pk_bf16_f32 v{OP0+2*m}, v{OA+4*m}, v{OA+4*m+1}\nv_cvt_pk_bf16_f32 v{OP0+2*m+1}, v{OA+4*m+2}, v{OA+4*m+3}")
        for m in (2*p, 2*p+1):
            for r in range(2): A(f"v_mul_f32 v{OX+4*m+r}, v{OX+4*m+r}, v{MX+m}")
        b = OP0 + 4*p
        A(f"v_permlane16_swap_b32 v{b}, v{b+2}\nv_permlane16_swap_b32 v{b+1}, v{b+3}")
        A(f"buffer_store_dwordx4 {vq(OP0+4*p)}, v232, {srd(sWS)}, s95 offen offset:{2048*p} sc1", "o")
        for m in (2*p, 2*p+1): A(f"v_cvt_pk_bf16_f32 v{OP0+8+m}, v{OX+4*m}, v{OX+4*m+1}")
    A(f"v_permlane16_swap_b32 v{OP0+8}, v{OP0+9}\nv_permlane16_swap_b32 v{OP0+10}, v{OP0+11}")
    A(f"v_permlane32_swap_b32 v{OP0+8}, v{OP0+10}")
    A(f"buffer_store_dword v{OP0+8}, v233, {srd(sWS)}, s96 offen sc1", "o")
    late = dma[ne:] + tail3 + xres3 + [poll_pre(15, 14)]
    if cfg.w2at == 0:
        w2l = []
        for z in range(2):
            u = unit_dma(2, z, W2SCR)
            w2l.append((u[0] + "\n" + u[1][0], "wr"))
            for q in range(1, 4): w2l.append((u[2*q] + "\n" + u[2*q+1][0], "wr"))
        assert ne in (0, 4, 8, 9, 13)
        late = w2l + late
    k = 0
    for n, ins in enumerate(A.ins):
        P.add(ins)
        if n >= 3 and (n - 3) % cfg.dmagap == 0 and k < len(late): P.add(late[k]); k += 1
    assert k == len(late)
    stamp("attn done")
    NR = 56; AF = 224
    ACA, ACB = 16, 96
    CA, CB = 96, 160
    passes = [("A", [0, 1, 2, 3, 8], ACA, CA), ("B", [4, 5, 6, 7], ACB, CB), ("C", [4, 5, 8], 16, None), ("D", [0, 1], 96, None), ("E", [2, 3], 64, None), ("F", [6, 7], 16, None)]
    steps = [(pi, p) for pi in range(len(passes)) for p in range(18)]
    cons = [(pi, p, t) for pi, p in steps for t in range(len(passes[pi][1]))]
    slot = {f: n % NR for n, f in enumerate(cons)}
    def wload(n):
        pi, p, t = cons[n]; L = []
        if t == 0 and n > 0:
            if pi == 1 and p == 0:
                L.append(f"s_mul_i32 s92, s{sRF}, 9216\ns_add_u32 s92, s92, s90")
            elif pi >= 2 and p in (0, 10):
                beg = 0 if p == 0 else 10*9216; end = (10 if p == 0 else 18)*9216
                L.append(f"s_add_u32 s90, s89, {beg}\ns_add_u32 s91, s89, {end}")
                L.append(f"s_mul_i32 s92, s{93 if p == 0 else 94}, 9216\ns_add_u32 s92, s92, s90")
            else: L.append(wrap(92, 9216, 91, 90))
        tile = passes[pi][1][t]
        L.append((f"buffer_load_dwordx4 {aq(4*(n % NR))}, v{[vL16, 12, 255][tile >> 2]}, {srd(sWS)}, s92 offen offset:{1024*(tile % 4)}{cfg.wsc}", "w"))
        return L
    npf = [0]
    def prefetch(n):
        L = []
        for k in range(n): L += wload(npf[0]); npf[0] += 1
        return L
    P(f"""s_lshl_b32 s88, s{sJF}, 2
s_add_u32 s88, s88, s{sW}
s_mul_i32 s88, s88, {162*1024}
s_add_u32 s89, s88, {W2R}
s_add_u32 s88, s88, {W1R}
s_mul_i32 s92, s{sRF}, 9216
s_add_u32 s92, s92, s88
s_mov_b32 s90, s88
s_add_u32 s91, s88, {162*1024}
v_add_u32 v12, 4096, v{vL16}
v_add_u32 v255, 8192, v{vL16}""")
    P(poll_check(15, 14))
    pa, pb, pc, pd, pe = cfg.pre
    P.extend(prefetch(pa))
    P.extend(own_flag(14, F1G, sG1, 12, sJ1, 4)); P.extend(grp_poll_addr(15, sG2, F1G))
    HA = 16; HQ = 36; OF = 48; WB = 120; NW = 28
    P(f"""v_add_u32 v10, 41472, v{vL16}
v_and_b32 v11, 7, v{vI}
v_lshlrev_b32 v11, 4, v11
v_lshl_add_u32 v11, v{vG}, 7, v11
v_add_u32 v9, 41472, v11
v_mul_u32_u24 v7, 43, v{vI}
v_lshrrev_b32 v7, 8, v7
v_mul_u32_u24 v7, 160, v7
v_mul_u32_u24 v6, 144, v{vI}
v_add3_u32 v6, v6, v7, s77
v_and_b32 v7, 1, v{vG}
v_lshl_add_u32 v7, v7, 3, v6
v_lshl_add_u32 v6, v{vG}, 4, v6""")
    P("@waitvm o\ns_barrier")
    set_flag(14)
    stamp("F1 set")
    if cfg.p1early: P.add(poll_pre(15, 46))
    if cfg.w2at == 1:
        for z in range(2): P.extend(unit_dma(2, z, W2SCR))
    P.extend(prefetch(pb))
    if not cfg.p1early: P.add(poll_pre(15, 46))
    P(f"ds_read_b128 {vq(HQ)}, v6\nds_read_b128 {vq(HQ+4)}, v6 offset:64\nds_read_b64 {vq(HQ+8,2)}, v7 offset:128")
    def wo_reg(n): return vq(WB + 4*(n % NW))
    wor = []
    for s in range(18):
        for t in range(5):
            reg = (vL16 if s < 9 else 10) if t < 4 else (11 if s < 9 else 9)
            wor.append(f"ds_read_b128 {wo_reg(s*5+t)}, v{reg} offset:{WOB + (s % 9)*4608 + 1024*t}")
    P.extend(wor[:NW - 1])
    P(f"""s_mul_i32 s84, s{sG2}, 73728
s_lshl_b32 s85, s{sW}, 10
s_add_u32 s84, s84, s85
s_add_u32 s74, s84, {OP}
s_add_u32 s75, s74, 65536
s_mul_i32 s79, s{sW}, {1024 - 64}
s_sub_u32 s79, s75, s79
v_lshlrev_b32 v232, 10, v{vG}
v_lshl_add_u32 v232, v{vI}, 2, v232
s_lshl_b32 s78, s{sR2}, 13
s_add_u32 s78, s78, s74
s_add_u32 s84, s84, {HP}
s_mul_i32 s85, s{sJ2}, 9
v_add_u32 v6, s85, v{vG}
v_lshrrev_b32 v7, 2, v6
v_lshlrev_b32 v7, 12, v7
v_and_b32 v6, 3, v6
v_lshl_add_u32 v6, v6, 8, v7
v_lshl_add_u32 v6, v{vI}, 4, v6
v_add_u32 v6, s84, v6
s_add_u32 s85, s85, 8
s_lshr_b32 s86, s85, 2
s_lshl_b32 s86, s86, 12
s_and_b32 s85, s85, 3
s_lshl_b32 s85, s85, 8
s_add_u32 s85, s85, s86
s_add_u32 s85, s85, s84
v_lshlrev_b32 v7, 4, v{vI}
v_lshl_add_u32 v7, v{vG}, 3, v7
v_add_u32 v7, s85, v7
v_cmp_gt_u32 s[82:83], 2, v{vG}
v_add_u32 v8, 4096, v6
v_add_u32 v47, {W2SCR}, v94
v_mov_b32 v235, v93
v_cndmask_b32 v7, v13, v7, s[82:83]
s_lshl_b32 s84, s{sG2}, 2
s_add_u32 s84, s84, s{sW}
s_lshl_b32 s84, s84, 3
s_add_u32 s84, s84, s{sJ2}
s_lshl_b32 s84, s84, 7
s_add_u32 s84, s84, {STATS}
v_lshl_add_u32 v233, v{vI}, 3, s84
v_cmp_gt_u32 vcc, 16, v{vL}
v_cndmask_b32 v233, v13, v233, vcc""")
    P.extend(unpack(HA, HQ, 10))
    P(poll_check(15, 46))
    stamp("F1 seen")
    ol = []
    for s in range(16):
        ol.append([(f"buffer_load_dwordx4 {vq(OF+4*s)}, v{vL16}, {srd(sWS)}, s78 offen sc1", "of")] + ([wrap(78, 4096, 75, 74)] if s < 15 else []))
    for s in (16, 17):
        for ww in range(4): ol.append([(f"buffer_load_dword v{OF+4*s+ww}, v232, {srd(sWS)}, s79 offen offset:{256*ww} sc1", "of")] + (["s_add_u32 s79, s79, 4096"] if (s, ww) == (16, 3) else []))
    for L in ol[:cfg.no1]: P.extend(L)
    flex = []
    for l in own_flag(14, F2G, sG2, 12, sJ2, 4) + grp_poll_addr(15, sGF, F2G): flex.append((0, l))
    for l in lines(f"""s_mul_i32 s84, s{sJF}, 1152
s_lshl_b32 s85, s{sW}, 8
s_add_u32 s80, s85, s84
s_lshr_b32 s86, s{sW}, 1
s_lshl_b32 s86, s86, 6
s_and_b32 s87, s{sW}, 1
s_lshl_b32 s87, s87, 3
s_add_u32 s86, s86, s87
s_add_u32 s81, s86, s84
v_lshlrev_b32 v234, 4, v{vG}"""): flex.append((0, l))
    for l in prefetch(pc): flex.append((64, l))
    mains = [f"{MF} {vq(HA+4*t)}, {wo_reg(s*5+t)}, {vq(OF+4*s)}, {vq(HA+4*t)}" for s in range(18) for t in range(5)]
    fixed = {n: [wor[n + NW - 1]] for n in range(90 - NW + 1)}
    for k, L in enumerate(ol[cfg.no1:]):
        g = int(k*cfg.ogap)
        fixed.setdefault(g, []).append(L[0])
        if len(L) > 1: fixed.setdefault(g + 1, []).append(L[1])
    sched(P, mains, fixed, flex)
    for k in range(4): P(f"v_cvt_pk_bf16_f32 v{HQ+k}, v{HA+2*k}, v{HA+2*k+1}")
    P(f"buffer_store_dwordx4 {vq(HQ)}, v6, {srd(sWS)}, 0 offen sc1", "h")
    for k in range(4, 8): P(f"v_cvt_pk_bf16_f32 v{HQ+k}, v{HA+2*k}, v{HA+2*k+1}")
    P(f"buffer_store_dwordx4 {vq(HQ+4)}, v8, {srd(sWS)}, 0 offen sc1", "h")
    for k in range(8, 10): P(f"v_cvt_pk_bf16_f32 v{HQ+k}, v{HA+2*k}, v{HA+2*k+1}")
    P(f"buffer_store_dwordx2 {vq(HQ+8,2)}, v7, {srd(sWS)}, 0 offen sc1", "h")
    P(f"v_cndmask_b32 v16, 0, v{HQ+8}, s[82:83]\nv_cndmask_b32 v17, 0, v{HQ+9}, s[82:83]")
    P.extend(stats([[16, 17] + [HQ + k for k in range(8)]], 20))
    def xsum(a):
        for sw in ["v_permlane16_swap_b32", "v_permlane32_swap_b32"]:
            for k in range(2): P(f"v_mov_b32 v{a+2+k}, v{a+k}")
            for k in range(2): P(f"{sw} v{a+k}, v{a+2+k}")
            for k in range(2): P(f"v_add_f32 v{a+k}, v{a+k}, v{a+2+k}")
    xsum(20)
    P(f"buffer_store_dwordx2 {vq(20,2)}, v233, {srd(sWS)}, 0 offen sc1", "h")
    stamp("proj done")
    B1P = 136; HR = 160; ST = 132; NT = 116; SR = 154
    for p in range(4): P(f"buffer_load_dwordx4 {vq(B1P+4*p)}, v234, {srd(sB1)}, s80 offen offset:{64*p}", "b1")
    P(f"buffer_load_dwordx2 {vq(B1P+16,2)}, v234, {srd(sB1)}, s81 offen offset:1024", "b1")
    P.extend(prefetch(pd))
    P("@waitvm h\n@waitlg_all\ns_barrier")
    set_flag(14)
    stamp("F2 set")
    if cfg.w2at == 2:
        P.add(poll_pre(15, 46))
        for z in range(2): P.extend(unit_dma(2, z, W2SCR, 235))
    if cfg.w2st == 0 and cfg.w2at < 3:
        P("@waitvm wr")
        for z in range(2): P.extend([l.replace("v94", "v47") for l in unit_tr(z, 0, 48 + 16*z)])
        for z in range(2): P.extend(unit_st(2, z, 48 + 16*z))
    P.extend(prefetch(pe))
    if cfg.w2at != 2: P.add(poll_pre(15, 46))
    P.extend(unpack(CA, B1P, 8)); P.extend(unpack(CA+16, B1P+16, 2))
    P(f"""s_mul_i32 s84, s{sGF}, 73728
s_lshl_b32 s85, s{sW}, 10
s_add_u32 s84, s84, s85
s_add_u32 s74, s84, {HP}
s_add_u32 s75, s74, 73728
s_lshl_b32 s77, s{sRF}, 12
s_add_u32 s77, s77, s74
v_add_u32 v6, s85, v{vL16}
v_add_u32 v7, 36864, v6
v_add_u32 v8, 36864, v{vL16}
v_add_u32 v9, {HB}, v{vL16}
v_add_u32 v10, {HB + 36864}, v{vL16}
v_mov_b32 v11, v47
s_and_b32 s93, s{sGF}, 15
s_lshr_b32 s94, s93, 1
s_mul_i32 s93, s93, 5
s_lshr_b32 s93, s93, 3
s_lshl_b32 s84, s{sGF}, 12
s_add_u32 s84, s84, s85
s_add_u32 s84, s84, {STATS}
v_lshlrev_b32 v239, 8, v{vG}
v_lshl_add_u32 v239, v{vI}, 3, v239""")
    if not cfg.rot: P("s_mov_b32 s93, 0\ns_mov_b32 s94, 0")
    P.extend(own_flag(14, F2S, sJ1, 12, sG1, 2))
    vPS, vSS, vF3, vP3, vL4, vL2, vLS, vH4, vH2, vPT, vC4, vC2, vO4, vO2, vOS = range(240, 255)
    P.extend(own_flag(vF3, F3A, sGF, 12, sJF, 4)); P.extend(grp_poll_addr(vP3, sGF, F3A))
    if cfg.wflag:
        P(f"""s_lshl_b32 s87, s{sW}, 7
s_add_u32 s86, s86, s87
v_add_u32 v{vP3}, s87, v{vP3}
s_lshl_b32 s87, s{sJF}, 4
s_add_u32 s86, s86, s87
v_mov_b32 v{vF3}, s86
v_cmp_eq_u32 vcc, 0, v{vL}
v_cndmask_b32 v{vF3}, v13, v{vF3}, vcc""")
    P(f"""s_lshl_b32 s86, s{sGF}, 6
s_add_u32 s86, s86, s{sJF}
s_mul_i32 s86, s86, 9216
s_add_u32 s86, s86, {PART}
v_lshrrev_b32 v{vPS}, 3, v{vI}
v_mul_u32_u24 v{vPS}, {8*9216}, v{vPS}
v_and_b32 v5, 7, v{vI}
v_lshlrev_b32 v5, 3, v5
v_lshl_add_u32 v5, v{vG}, 6, v5
v_add3_u32 v{vSS}, v{vPS}, v5, s86
v_add_u32 v{vPS}, v{vSS}, v5
s_lshl_b32 s85, s{sW}, 8
s_add_u32 s87, s85, 8192
v_add_u32 v{vSS}, s87, v{vSS}
s_lshl_b32 s76, s{sW}, 11
v_add_u32 v{vPS}, s76, v{vPS}
s_lshl_b32 s86, s{sGF}, 3
s_add_u32 s86, s86, s{sJF}
s_mul_i32 s86, s86, {8*9216}
s_add_u32 s86, s86, {PART}
s_add_u32 s76, s76, s86
v_add_u32 v{vL4}, s76, v{vL16}
v_lshl_add_u32 v{vL2}, v{vL}, 3, s76
s_add_u32 s87, s87, s86
v_lshl_add_u32 v{vLS}, v{vL}, 3, s87
v_cmp_gt_u32 vcc, 32, v{vL}
v_lshrrev_b32 v5, 5, v{vL}
v_bfe_u32 v{vC4}, v{vL}, 3, 2
v_cndmask_b32 v{vLS}, v13, v{vLS}, vcc
v_and_b32 v{vO4}, 7, v{vL}
v_lshlrev_b32 v{vH4}, 12, v5
v_lshl_add_u32 v{vH4}, v{vC4}, 8, v{vH4}
v_lshl_add_u32 v{vH4}, v{vO4}, 4, v{vH4}
v_lshlrev_b32 v{vC4}, 4, v{vC4}
v_lshl_add_u32 v{vC4}, v5, 6, v{vC4}
v_bfe_u32 v{vO2}, v{vL}, 1, 3
v_and_b32 v5, 1, v{vL}
v_lshlrev_b32 v5, 3, v5
v_lshl_add_u32 v{vH2}, v{vG}, 8, v5
v_lshl_add_u32 v{vH2}, v{vO2}, 4, v{vH2}
v_lshl_add_u32 v{vC2}, v{vG}, 4, v5
s_lshr_b32 s87, s{sJF}, 1
s_and_b32 s86, s{sJF}, 1
s_lshl_b32 s76, s{sGF}, 6
s_and_b32 s32, s87, 1
s_lshl_b32 s32, s32, 5
s_add_u32 s76, s76, s32
s_lshr_b32 s32, s87, 1
s_add_u32 s76, s76, s32
s_lshl_b32 s32, s86, 4
s_add_u32 s76, s76, s32
s_mul_i32 s76, s76, 1152
v_mul_u32_u24 v{vO4}, 2304, v{vO4}
v_add3_u32 v{vO4}, v{vO4}, v{vC4}, s76
v_mul_u32_u24 v{vO2}, 2304, v{vO2}
v_add3_u32 v{vO2}, v{vO2}, v{vC2}, s76
v_cndmask_b32 v{vOS}, v13, v{vO4}, vcc
s_mul_i32 s76, s{sGF}, 73728
s_lshl_b32 s87, s87, 10
s_add_u32 s76, s76, s87
s_lshl_b32 s86, s86, 7
s_add_u32 s76, s76, s86
s_add_u32 s76, s76, {HP}
s_lshl_b32 s86, s{sW}, 14
s_add_u32 s32, s76, s86
s_add_u32 s33, s32, 8192
s_add_u32 s35, s32, 12288
s_add_u32 s64, s32, 4096
s_lshr_b32 s86, s{sW}, 1
s_and_b32 s87, s{sW}, 1
s_lshl_b32 s87, s87, 3
s_lshl_b32 s36, s86, 12
s_add_u32 s36, s36, s87
s_add_u32 s36, s36, 65536
s_add_u32 s36, s36, s76
s_mov_b32 s38, s85
s_lshl_b32 s39, s86, 6
s_add_u32 s39, s39, s87
s_add_u32 s39, s39, 1024
s_mov_b32 s80, 0
s_mov_b32 s81, {16*9216}
s_mov_b32 s82, {32*9216}
s_mov_b32 s83, {48*9216}
s_mov_b32 s95, 0x00003f80
s_mov_b32 s96, 0x3f800000""")
    P(poll_check(15, 46))
    stamp("F2 seen")
    for k in range(2): P(f"buffer_load_dwordx2 {vq(SR+2*k,2)}, v239, {srd(sWS)}, s84 offen offset:{128*k} sc1", "hf")
    hl = []
    for s in range(18):
        hl.append([(f"buffer_load_dwordx4 {vq(HR+4*s)}, v{vL16}, {srd(sWS)}, s77 offen sc1", "hf")] + ([wrap(77, 4096, 75, 74)] if s < 17 else []))
    for s in range(cfg.nh1): P.extend(hl[s])
    P(f"v_add_f32 v{ST}, v{SR}, v{SR+2}\nv_add_f32 v{ST+1}, v{SR+1}, v{SR+3}")
    xsum(ST)
    finish_stats([ST])
    for s in range(cfg.nh1, cfg.nh2): P.extend(hl[s])
    stamp("LN2 stats")
    def ln2(s):
        return normalize(HR + 4*s, ST, NT + 8*(s & 1), s < 3) + [f"ds_write_b128 v{6 if s < 9 else 7}, {vq(HR+4*s)} offset:{XN + (s % 9)*4096}"]
    for s in range(3): P.extend(ln2(s))
    P("@waitlg_all\ns_barrier")
    def act_reads(i):
        pi, p = steps[i]
        b = AF + (i % 2)*16
        if pi < 2: reg = vL16 if p < 9 else 8
        else: reg = 9 if p < 9 else 10
        return [f"ds_read_b128 {aq(b+4*m)}, v{reg} offset:{((p % 9)*4 + m)*1024}" for m in range(4)]
    P.extend(act_reads(0))
    stamp("FFN start")
    mains = []; fixed = {}; start = []; load = {}
    first_use = {}; last_use = {}
    def put(g, it):
        fixed.setdefault(g, []).append(it); load[g] = load.get(g, 0) + cost(it)
    def place(items, g):
        for it in items:
            c = cost(it)
            while load.get(g, 0) > 0 and load.get(g, 0) + c > cfg.cap + 0.02: g += 1
            put(g, it)
        return g
    bar = {2: "a", 4: "b", 7: "c", 10: "d", 14: "f", 35: "0", 45: "1"}
    if cfg.w2st: bar[17] = "e"
    fl2 = "e" if cfg.w2st else "c"
    if cfg.w2at >= 3: fl2 = None
    for i, (pi, p) in enumerate(steps):
        name, tiles, acc, cin = passes[pi]; nt = len(tiles)
        base = len(mains); start.append(base)
        b = AF + (i % 2)*16
        t_ = stamp_txt(f"@{name}{p}") if i else None
        if t_: fixed.setdefault(base - 1, []).append(t_)
        if i in bar:
            for it in [f"@flexdone{bar[i]}"] + (["@waitvm wrs"] if bar[i] == fl2 else []) + ["@waitlg_all", "s_barrier"]: put(base, it)
            if bar[i] == fl2:
                for it in flag_items(14): put(base, it)
        for t in range(nt):
            w = aq(4*slot[(pi, p, t)])
            first_use[(pi, p, t)] = len(mains); last_use[(pi, p, t)] = len(mains) + 3
            for m in range(4):
                d = vq(acc + (t*4 + m)*4)
                c = d if p > 0 else (vq(cin + 4*t) if cin is not None else "0")
                mains.append(f"{MF} {d}, {w}, {aq(b+4*m)}, {c}")
        if i + 1 < len(steps):
            for k, l in enumerate(act_reads(i+1)): put(base + (2*k if nt > 2 else k) + (1 if i in bar else 0), l)
            pj, pp = steps[i+1]
            nxt = " ".join(aq(4*slot[(pj, pp, t)]) for t in range(len(passes[pj][1])))
            fixed.setdefault(base + 4*nt - 1, []).append(f"@need {nxt} {aq(AF + ((i+1) % 2)*16, 16)}")
            load[base + 4*nt - 1] = load.get(base + 4*nt - 1, 0) + 0.67
    start.append(len(mains))
    S = lambda pi, p: start[pi*18 + p]
    path = {}
    TQ = 176
    tq = [0]
    def epi2(acc, tiles, m, st):
        q = TQ + 4*(tq[0] % 4); tq[0] += 1
        regs = [acc + (t*4 + m)*4 + r for t in tiles for r in range(4)]
        L = [f"v_cvt_pk_bf16_f32 v{q+k}, v{regs[2*k]}, v{regs[2*k+1]}" for k in range(len(regs)//2)]
        L.append(st(q))
        return L
    def pst(m, off, tag): return lambda q: (f"buffer_store_dwordx4 {vq(q)}, v{vPS}, {srd(sWS)}, s{80+m} offen offset:{off} sc1", tag)
    def sst(m, tag): return lambda q: (f"buffer_store_dwordx2 {vq(q,2)}, v{vSS}, {srd(sWS)}, s{80+m} offen sc1", tag)
    RH = [200, 204, 208, 212, 216]; RS = [220, 224, 228, 232, 236]; R0 = [128, 144, 96, 112, 48]
    rl = [(vL2, 1024), (vLS, 0), (vL2, 0), (vL2, 512), (vL2, 1536)]
    FSTEP = 512
    def red_loads(r):
        L = ["s_mov_b32 s84, 0"]
        for j in range(8):
            L.append((f"buffer_load_dwordx2 {vq(R0[r]+2*j,2)}, v{rl[r][0]}, {srd(sWS)}, s84 offen offset:{rl[r][1]} sc1", "rd"))
            if j < 7: L.append("s_add_u32 s84, s84, 9216")
        return L
    def red_sum(r):
        T = RS[r]; L = []
        for j in range(8):
            for d in range(2):
                q = R0[r] + 2*j + d
                L.append(f"v_dot2_f32_bf16 v{T+2*d}, v{q}, s95, v{T+2*d}")
                L.append(f"v_dot2_f32_bf16 v{T+2*d+1}, v{q}, s96, v{T+2*d+1}")
        for d in range(2): L.append(f"v_cvt_pk_bf16_f32 v{T+d}, v{T+2*d}, v{T+2*d+1}")
        return L
    def red_store(r):
        vo, so, oo = [(vO2, 38, 128), (vOS, 39, 0), (vO2, 38, 0), (vO2, 38, 64), (vO2, 38, 192)][r]
        return [(f"buffer_store_dwordx2 {vq(RS[r],2)}, v{vo}, {srd(sOUT)}, s{so} offen offset:{oo}{cfg.outfl}", "out")]
    def add_path(g, c): path[g] = path.get(g, 0) + c
    def signal(tag):
        return [f"@waitvm {tag}"] + ([] if cfg.wflag else ["s_barrier"]) + flag_items(vF3) + [f"v_add_u32 v{vF3}, {FSTEP}, v{vF3}"]
    def check(): return [poll_check(vP3, vPT), f"v_add_u32 v{vP3}, {FSTEP}, v{vP3}"]
    sgap, fC, fD, fE, pC, pD, lead = cfg.tail4
    def stores(pi, acc, off, tag, shared):
        g = S(pi, 0) + 3
        for m in range(4):
            g = place(epi2(acc, [0, 1], m, pst(m, off, tag)), g); add_path(g, cfg.scost); g += sgap
            if shared:
                g = place(epi2(acc, [2], m, sst(m, tag)), g - sgap//2); add_path(g, cfg.scost//2); g += sgap//2
    stores(3, 16, 1024, "p1", True); stores(4, 96, 0, "p2", False); stores(5, 64, 512, "p3", False)
    for g0, tag in [(S(3, 0) + fC, "p1"), (S(4, 0) + fD, "p2"), (S(5, 0) + fE, "p3")]:
        for it in signal(tag): put(g0, it)
    for g0, rounds in [(S(3, 0) + pC, [0, 1]), (S(4, 0) + pD, [2])]:
        if g0 + lead < len(mains) - 40:
            put(g0, poll_pre(vP3, vPT))
            g = place(check(), g0 + lead)
            for r in rounds:
                L = red_loads(r)
                for j in range(8):
                    g = place(L[2*j:2*j+2], g + 2); add_path(g, cfg.lcost if r != 1 else cfg.lcost//2)
            assert g < len(mains) - 2
        else: raise ValueError("late")
    g = 0
    for s in range(cfg.nh2, 18):
        g = place(hl[s], g); add_path(g, 110); g += cfg.hgap
    g = S(2, 11)
    for r, (vh, sh, vb, sb, bo) in enumerate([(vH2, 33, vC2, 38, 128), (vH4, 36, vC4, 39, 0), (vH2, 32, vC2, 38, 0), (vH2, 64, vC2, 38, 64), (vH2, 35, vC2, 38, 192)]):
        g = place([(f"buffer_load_dwordx2 {vq(RH[r],2)}, v{vh}, {srd(sWS)}, s{sh} offen sc1", "rh")], g + 5); add_path(g, 40)
        g = place([(f"buffer_load_dwordx2 {vq(RH[r]+2,2)}, v{vb}, {srd(sB2)}, s{sb} offen offset:{bo}", "rh")], g + 3); add_path(g, 20)
    nl = npf[0]; free = cfg.backlog; g = 0
    while nl < len(cons):
        now = g*cfg.tgap
        if g in path: free = max(free, now) + path.pop(g)
        early = last_use[cons[nl - NR]] + 1 if nl >= NR else 0
        dead = first_use[cons[nl]] - cfg.margin
        if g >= early and (free <= now + cfg.slack or g >= dead):
            L = wload(nl)
            if nl == 162 - cfg.w2lead and fl2: L = [poll_pre(15, vPT)] + L
            if nl == 162 and fl2: L = [poll_check(15, vPT)] + L
            g2 = place(L, g)
            for x in range(g + 1, g2 + 1):
                if x in path: free = max(free, x*cfg.tgap) + path.pop(x)
            assert g2 < first_use[cons[nl]] - 8, (nl, g2, first_use[cons[nl]])
            if VERBOSE and nl % 18 == 0: print(f"   load {nl} at gap {g2}, first use {first_use[cons[nl]]}, backlog {free - g2*cfg.tgap:.0f}")
            g = g2; free = max(free, g*cfg.tgap) + cfg.wcost; nl += 1
        g += 1
    if VERBOSE: print("last weight load at gap", g, "of", len(mains), "pass starts", [S(k, 0) for k in range(6)])
    flex = []
    for lo, hi, mk in [(3, 5, "a"), (5, 8, "b"), (8, 11, "c"), (11, 15, "d"), (15, 18, "f")]:
        for s in range(lo, hi):
            for l in ln2(s): flex.append((0, l))
        flex.append((0, f"@mark{mk}"))
    if cfg.w2st:
        flex.append((0, "@waitvm wr"))
        for z in range(2):
            for l in unit_tr(z, 0, 176): flex.append((0, l.replace("v94", "v11")))
            for l in [f"@need {vq(176,16)}"] + unit_st(2, z, 176): flex.append((0, l))
    for l in set_poll_addr(15, sJF, F2S) + unpack(CB, B1P+8, 8): flex.append((0, l))
    flex.append((0, "@marke"))
    for k, (q, mod, sr, add) in enumerate([(f"s_lshl_b32 s84, s{sW}, 1", 10, 93, 0), (f"s_lshl_b32 s84, s{sW}, 1\ns_add_u32 s84, s84, 1", 10, 93, 0),
                                           (f"s_lshr_b32 s84, s{sW}, 1\ns_add_u32 s84, s84, 8", 10, 93, 0),
                                           (f"s_lshl_b32 s84, s{sW}, 1", 8, 94, 10), (f"s_lshl_b32 s84, s{sW}, 1\ns_add_u32 s84, s84, 1", 8, 94, 10)]):
        flex.append((0, q))
        flex.append((0, f"s_sub_u32 s84, s84, s{sr}\ns_cselect_b32 s85, {mod}, 0"))
        flex.append((0, f"s_add_u32 s84, s84, s85\ns_add_u32 s84, s84, {add}"))
        flex.append((0, "s_lshl_b32 s84, s84, 12"))
        if k == 2: flex.append((0, f"s_and_b32 s85, s{sW}, 1\ns_lshl_b32 s85, s85, 3\ns_add_u32 s84, s84, s85"))
        flex.append((0, f"v_add_u32 v{192+k}, s84, v9"))
    def epi1(acc, pair_tiles, m, wr):
        L = []
        q = TQ + 4*(tq[0] % 4); tq[0] += 1
        regs = [acc + (t*4 + m)*4 + r for t in pair_tiles for r in range(4)]
        for r in regs: L.append(f"v_mul_f32 v{r}, v{r}, |v{r}|")
        for k in range(len(regs)//2): L.append(f"v_cvt_pk_bf16_f32 v{q+k}, v{regs[2*k]}, v{regs[2*k+1]}")
        for k in range(len(regs)//2): L.append(f"v_pk_max_i16 v{q+k}, v{q+k}, 0")
        L.append(wr(q))
        return L
    at = S(1, 0) + 3
    for pr in range(2):
        for m in range(4):
            for l in epi1(ACA, [2*pr, 2*pr+1], m, lambda q: f"ds_write_b128 v{192+pr}, {vq(q)} offset:{m*1024}"): flex.append((at, l))
    for m in range(4):
        for l in epi1(ACA, [4], m, lambda q: f"ds_write_b64 v194, {vq(q,2)} offset:{m*1024}"): flex.append((at, l))
    flex.append((at, "@mark0"))
    at = S(2, 0) + 3
    for pr in range(2):
        for m in range(4):
            for l in epi1(ACB, [2*pr, 2*pr+1], m, lambda q: f"ds_write_b128 v{195+pr}, {vq(q)} offset:{m*1024}"): flex.append((at, l))
    flex.append((at, "@mark1"))
    at = S(3, 6)
    for r in range(5):
        for l in unpack(RS[r], RH[r], 2) + unpack(160, RH[r]+2, 2): flex.append((at, l))
        for d in range(4): flex.append((at, f"v_add_f32 v{RS[r]+d}, v{RS[r]+d}, v{160+d}"))
    if cfg.skip:
        def keep(it):
            t = it[0] if isinstance(it, tuple) else it
            tag = it[1] if isinstance(it, tuple) else None
            if "valu" in cfg.skip and re.match(r"v_lshlrev_b32 v\d+, 16,|v_and_b32 v\d+, s98|v_fma_f32|v_cvt_pk|v_mul_f32|v_pk_max|v_add_f32", t): return False
            if "dsw" in cfg.skip and t.startswith("ds_write"): return False
            if "bar" in cfg.skip and t == "s_barrier": return False
            if "pst" in cfg.skip and tag in ("p1", "p2", "p3"): return False
            if "rd" in cfg.skip and tag in ("rd", "rh"): return False
            if "w" in cfg.skip and tag == "w": return False
            if "chk" in cfg.skip and "L_slow" in t: return False
            return True
        flex = [f for f in flex if keep(f[1])]
        fixed = {g: [x for x in L if keep(x)] for g, L in fixed.items()}
        slow[:] = [x for x in slow if any(x.split(":")[0] in i.text for i in P.ins) or "chk" not in cfg.skip]
    sched(P, mains, fixed, flex, cap=cfg.cap)
    stamp("FFN done")
    for m in range(4): P.extend(epi2(16, [0, 1], m, pst(m, 1536, "p4")))
    P.add(poll_pre(vP3, vPT))
    P.extend(red_sum(0) + red_sum(1))
    P.extend(signal("p4"))
    stamp("F3c set")
    P.extend(check())
    P.extend(red_loads(3))
    P.extend(red_sum(2))
    P.add(poll_pre(vP3, vPT))
    P.extend(red_sum(3))
    P.extend(check())
    stamp("F3c seen")
    P.extend(red_loads(4))
    P.extend(red_store(0) + red_store(1) + red_store(2) + red_store(3))
    P.extend(red_sum(4) + red_store(4))
    P(f"""s_cmp_lg_u32 s2, 0
s_cbranch_scc1 L_noepoch
s_cmp_lg_u32 s{sW}, 0
s_cbranch_scc1 L_noepoch""")
    P(f"v_lshrrev_b32 v6, 5, v{vL}\nv_lshlrev_b32 v6, 12, v6\nv_and_b32 v7, 31, v{vL}\nv_lshl_add_u32 v6, v7, 2, v6\nv_add_u32 v6, {F0S}, v6")
    for k in range(4):
        poll(6, 5)
        P("v_add_u32 v6, 8192, v6")
    P(f"v_mov_b32 v6, 0\nv_mov_b32 v5, s{sTAG}\ns_mov_b64 exec, 1\nbuffer_store_dword v5, v6, {srd(sWS)}, 0 offen\ns_mov_b64 exec, -1\nL_noepoch:")
    if cfg.stamps:
        P("s_waitcnt vmcnt(0)")
        stamp("end")
        P(f"s_lshl_b32 s84, s2, 2\ns_add_u32 s84, s84, s{sW}\ns_lshl_b32 s84, s84, 7\ns_add_u32 s84, s84, {STAMPS}\nv_mov_b32 v6, s84\ns_mov_b64 exec, 1")
        if cfg.diag is not None:
            a, b = cfg.diag
            P(f"s_sub_u32 s84, s{STAMP0+b}, s{STAMP0+a}\ns_lshl_b32 s84, s84, 2\ns_add_u32 s84, s84, 10000\nL_spin:\ns_sleep 8\ns_memrealtime s[100:101]\ns_waitcnt lgkmcnt(0)\ns_sub_u32 s85, s100, s{STAMP0}\ns_cmp_lt_u32 s85, s84\ns_cbranch_scc1 L_spin")
        elif cfg.dbg:
            P(f"v_mov_b32 v6, 0\ns_not_b32 s84, s{STAMP0}\nv_mov_b32 v5, s84\nbuffer_atomic_umax v5, v6, {srd(sR)}, 0 offen")
            for k in range(min(nstamp[0], 15)):
                P(f"v_mov_b32 v{16+k}, s{STAMP0+k}\nbuffer_atomic_umax v{16+k}, v6, {srd(sR)}, 0 offen offset:{4*k+4}")
        else:
          for k in range(nstamp[0]):
            P(f"v_mov_b32 v5, s{STAMP0+k}\nbuffer_store_dword v5, v6, {srd(sWS)}, 0 offen offset:{4*k}")
    P("L_end:\ns_endpgm")
    for x in slow: P(x)
    cfg.names = names
    return P

def cost(it):
    t = it[0] if isinstance(it, tuple) else it
    c = 0
    for l in t.split("\n"):
        if l.startswith("@") or l.endswith(":"): continue
        c += 0.67 if l.startswith("s_") else (2 if l.startswith("ds_write_b128") else 1)
    return c

def sched(P, mains, fixed, flex, cap=2, flex2=None):
    Q = [list(flex2 or []), list(flex)]; K = [0, 0]; marks = set()
    def put(it):
        t = it[0] if isinstance(it, tuple) else it
        if t.startswith("@mark"): marks.add(t[5:]); return 0
        if t.startswith("@flexdone"):
            for q in range(2):
                if any((x[1] if not isinstance(x[1], tuple) else x[1][0]) == "@mark" + t[9:] for x in Q[q]):
                    n0 = K[q]
                    while t[9:] not in marks:
                        it2 = Q[q][K[q]][1]; K[q] += 1; put(it2)
                    if K[q] - n0 > 1 and VERBOSE: print("flush", t, K[q] - n0)
            return 0
        P.add(it)
        return cost(t)
    for n, m in enumerate(mains):
        P.add(m)
        c = 0
        for it in fixed.get(n, []): c += put(it)
        for q in range(2):
            while K[q] < len(Q[q]) and Q[q][K[q]][0] <= n and (c == 0 or c + cost(Q[q][K[q]][1]) <= cap + 0.02):
                it = Q[q][K[q]][1]; K[q] += 1
                c += put(it)
    for q in range(2):
        if K[q] < len(Q[q]) and VERBOSE: print("left", len(Q[q]) - K[q])
        while K[q] < len(Q[q]):
            it = Q[q][K[q]][1]; K[q] += 1
            put(it)
VERBOSE = False

import struct
def hexf(x): return hex(struct.unpack("<I", struct.pack("<f", x))[0])

HEADER = open("cdna_kernels/" + NAME + ".s.ref").read().split("; Override launch geometry")[0]
def build(cfg, verbose=False):
    body = finalize(gen(cfg), verbose)
    k = NAME + "_kernel"
    return (HEADER + f"; @launch grid=(256,1,1) block=(256,1,1) lds={LDS_BYTES}\n"
        + f'.amdgcn_target "amdgcn-amd-amdhsa--gfx950"\n.text\n.globl {k}\n.p2align 8\n.type {k},@function\n{k}:\n' + body
        + f""".section .rodata,"a"
.p2align 6
.amdhsa_kernel {k}
  .amdhsa_next_free_vgpr 512
  .amdhsa_next_free_sgpr 102
  .amdhsa_accum_offset 256
  .amdhsa_group_segment_fixed_size 0
  .amdhsa_kernarg_size 88
  .amdhsa_user_sgpr_count 2
  .amdhsa_user_sgpr_kernarg_segment_ptr 1
  .amdhsa_system_sgpr_workgroup_id_x 1
.end_amdhsa_kernel
""")

if __name__ == "__main__":
    cfg = Cfg(); VERBOSE = True
    out = sys.argv[1]
    for a in sys.argv[2:]:
        k, v = a.split("=")
        setattr(cfg, k, eval(v))
    open(out, "w").write(build(cfg, True))
    if cfg.stamps: open(out + ".names", "w").write("|".join(cfg.names))
```

```python
import sys
from ir import *

NAME = "sequential_preLN__sliding_local_dilated__dense_activation_squared_relu__prompt"

F0S, F1G, F1S, F2G, F2S, F3A, F3B, STATS, F3C = 0x10000, 0x20000, 0x48000, 0x50000, 0x78000, 0x80000, 0xA0000, 0xC0000, 0xE0000
WQP, WOP, OP, HP, W1R, W2R, PART, STAMPS = 0x100000, 0x300000, 0x400000, 0x700000, 0xA00000, 0x1000000, 0x1600000, 0x3000000
WS_BYTES = 0x4000000
OOB = 0x40000000
LDS_BYTES = 163840
XB = 71680
R0SCR = 49152
W1SCR = 0
WOB = 0
W2SCR0 = 32768
W2SCR = 98304
XRS = 131072
VXS = 143360
XN, HB = 0, 73728
sX, sWQ, sWO, sW1, sW2, sB1, sB2, sOUT, sWS, sR = 28, 32, 36, 40, 44, 48, 52, 56, 60, 88
sW, sG2, sJ2, sGF, sJF, sTAG = 68, 69, 70, 71, 72, 73
def srd(n): return f"s[{n}:{n+3}]"
def vq(n, k=4): return f"v[{n}:{n+k-1}]"
def aq(n, k=4): return f"a[{n}:{n+k-1}]"
MF = "v_mfma_f32_16x16x32_bf16"
vL, vI, vG, vL16 = 1, 2, 3, 4

class Cfg:
    stamps = False
    nx1 = 4
    p1depth = 4
    npre = 25
    rot = True
    npre1 = 12
    wospan = 10
    f3 = (10, 14)
    pre = (12, 6, 6, 12, 18)
    wo_early = 8
    dmagap = 10
    touch = 0
    ctouch = True
    nq1 = 4
    qgap = 8
    poll1 = False
    psleep = 1
    f0both = True
    outfl = ''
    no1 = 12
    ogap = 3.5
    nh2 = 18
    hgap = 5
    p1early = False
    wflag = False
    tail4 = (10, 110, 85, 85, 200, 185, 20)
    scost = 200
    lcost = 80
    skip = ()
    lag = 6
    gq = (0, 0, 0, 0)
    f1s = 11
    tail = (14, 13, 232, 44, 5, 11, 18)
    tailord = 0
    backlog = 0
    tgap = 18.5
    slack = 70
    margin = 48
    wcost = 73
    rawfl = ' nt'
    r0fl = ' nt'
    wrsfl = ' sc1'
    rawat = 1
    ilv = True
    w2at = 1
    w2st = 0
    nh1 = 8
    hold = 0
    w2lead = 16
    nleft = 60
    p1z4 = 1
    nx2 = 8
    dbg = False
    diag = None
    wsbase = 0
    only = None
    cap = 2
    wsc = " sc1"
    nwo1 = 40
    stop = None

def gen(cfg):
    P = Prog()
    sG1, sJ1 = (sGF, sJF) if cfg.p1z4 == 1 else ((sG2, sJ2) if cfg.p1z4 == 0 else (65, 66))
    nstamp = [0]
    names = []
    def stamp_txt(name):
        if cfg.stamps and (cfg.only is None or name.replace(" ", "_") in cfg.only or name == "end") and not (cfg.only is None and name.startswith("@")):
            k = nstamp[0]; nstamp[0] += 1; names.append(name); assert k < 20, name
            return f"{'s_memtime' if cfg.stamps == 2 else 's_memrealtime'} s[100:101]\n@waitlg_all\ns_mov_b32 s{STAMP0+k}, s100"
        return None
    def stamp(name):
        t = stamp_txt(name)
        if t: P(t)
    STAMP0 = 4
    npoll = [0]
    def poll(vaddr, vtmp):
        k = npoll[0]; npoll[0] += 1
        P(f"""s_mov_b32 s97, 0
L_poll{k}:
s_sleep {cfg.psleep}
buffer_load_dword v{vtmp}, v{vaddr}, {srd(sWS)}, 0 offen sc1
s_add_u32 s97, s97, 1
s_waitcnt vmcnt(0)
v_cmp_ne_u32 vcc, s{sTAG}, v{vtmp}
s_cmp_gt_u32 s97, 400000
s_cbranch_scc1 L_pdone{k}
s_cbranch_vccnz L_poll{k}
L_pdone{k}:""")
    slow = []
    def poll_pre(vaddr, vtmp):
        return (f"buffer_load_dword v{vtmp}, v{vaddr}, {srd(sWS)}, 0 offen sc1", "pl")
    def poll_check(vaddr, vtmp):
        k = npoll[0]; npoll[0] += 1
        slow.append(f"""L_slow{k}:
s_mov_b32 s97, 0
L_poll{k}:
buffer_load_dword v{vtmp}, v{vaddr}, {srd(sWS)}, 0 offen sc1
s_add_u32 s97, s97, 1
s_waitcnt vmcnt(0)
v_cmp_ne_u32 vcc, s{sTAG}, v{vtmp}
s_cmp_gt_u32 s97, 400000
s_cbranch_scc1 L_back{k}
s_cbranch_vccnz L_poll{k}
s_branch L_back{k}""")
        return f"v_cmp_ne_u32 vcc, s{sTAG}, v{vtmp}\ns_cbranch_vccnz L_slow{k}\nL_back{k}:"
    def wrap(sr, step, send, sbeg):
        return f"s_add_u32 s{sr}, s{sr}, {step}\ns_cmp_eq_u32 s{sr}, s{send}\ns_cselect_b32 s{sr}, s{sbeg}, s{sr}"
    def set_flag(vaddr):
        P(f"v_mov_b32 v5, s{sTAG}")
        P(f"buffer_store_dword v5, v{vaddr}, {srd(sWS)}, 0 offen sc1", "flag")

    P("""s_cmp_ge_u32 s2, 256
s_cbranch_scc1 L_end
s_load_dwordx16 s[4:19], s[0:1], 0
s_load_dwordx4 s[20:23], s[0:1], 64
s_load_dwordx2 s[24:25], s[0:1], 80""")
    if cfg.stamps: P("s_memtime s[26:27]" if cfg.stamps == 2 else "s_memrealtime s[26:27]")
    P(f"""v_lshrrev_b32 v5, 6, v0
v_and_b32 v{vL}, 63, v0
v_readfirstlane_b32 s{sW}, v5
v_and_b32 v{vI}, 15, v0
v_lshrrev_b32 v{vG}, 4, v{vL}
v_lshlrev_b32 v{vL16}, 4, v{vL}
s_and_b32 s74, s2, 7
s_lshr_b32 s75, s2, 3
s_lshl_b32 s{sG2}, s74, 2
s_lshr_b32 s76, s75, 3
s_add_u32 s{sG2}, s{sG2}, s76
s_and_b32 s{sJ2}, s75, 7
s_lshr_b32 s{sGF}, s74, 2
s_lshl_b32 s{sGF}, s{sGF}, 4
s_lshr_b32 s76, s75, 1
s_add_u32 s{sGF}, s{sGF}, s76
s_and_b32 s{sJF}, s74, 3
s_lshl_b32 s{sJF}, s{sJF}, 1
s_and_b32 s76, s75, 1
s_add_u32 s{sJF}, s{sJF}, s76
""")
    if cfg.p1z4 == 2:
        P(f"""s_lshr_b32 s65, s74, 1
s_lshl_b32 s65, s65, 3
s_lshr_b32 s76, s75, 2
s_add_u32 s65, s65, s76
s_and_b32 s66, s74, 1
s_lshl_b32 s66, s66, 2
s_and_b32 s76, s75, 3
s_add_u32 s66, s66, s76""")
    P(f"""s_lshl_b32 s77, s{sW}, 5
s_add_u32 s77, s77, s{sG1}
s_mul_i32 s78, s{sJ1}, 144""")
    sRP, sRF, sR2 = 0, 1, 3
    P(f"""s_cmp_lt_u32 s77, 72
s_cbranch_scc0 L_r0_wo
v_mul_u32_u24 v6, 2428, v{vL}
v_lshrrev_b32 v6, 16, v6
v_mul_u32_u24 v7, 27, v6
v_sub_u32 v7, v{vL}, v7
v_mul_u32_u24 v8, 7282, v7
v_lshrrev_b32 v8, 16, v8
v_mul_u32_u24 v9, 9, v8
v_sub_u32 v9, v7, v9
v_mul_u32_u24 v6, 3456, v6
v_mul_u32_u24 v8, 1152, v8
v_lshlrev_b32 v9, 4, v9
v_add3_u32 v5, v6, v8, v9
v_cmp_gt_u32 vcc, 54, v{vL}
s_mul_i32 s80, s77, {8*3456}
s_add_u32 s80, s80, s78
s_add_u32 s81, s80, {6912-1024}
s_add_u32 s82, s81, {6912-1024}
s_add_u32 s83, s82, {6912-1024}
s_branch L_r0_join
L_r0_wo:
v_mul_u32_u24 v6, 7282, v{vL}
v_lshrrev_b32 v6, 16, v6
v_mul_u32_u24 v7, 9, v6
v_sub_u32 v7, v{vL}, v7
v_mul_u32_u24 v6, 1152, v6
v_lshl_add_u32 v5, v7, 4, v6
v_cmp_gt_u32 vcc, 36, v{vL}
s_sub_u32 s79, s77, 72""")
    for G in range(2):
        if G: P("s_add_u32 s79, s79, 36")
        P(f"""s_lshr_b32 s84, s79, 2
s_mul_i32 s84, s84, 36
s_bfe_u32 s85, s79, 0x10001
s_mul_i32 s85, s85, 20
s_add_u32 s84, s84, s85
s_and_b32 s85, s79, 1
s_lshl_b32 s85, s85, 3
s_add_u32 s84, s84, s85
s_add_u32 s85, s84, 4
s_sub_u32 s86, s79, 64
s_mul_i32 s86, s86, 72
s_add_u32 s86, s86, 16
s_add_u32 s87, s86, 36
s_cmp_lt_u32 s79, 64
s_cselect_b32 s84, s84, s86
s_cselect_b32 s85, s85, s87
s_mul_i32 s84, s84, 1152
s_mul_i32 s85, s85, 1152
s_add_u32 s84, s84, s78
s_add_u32 s85, s85, s78
s_sub_u32 s{80+2*G}, s84, {1024*(2*G)}
s_sub_u32 s{81+2*G}, s85, {1024*(2*G+1)}""")
    P(f"""s_cmp_lt_u32 s77, 108
s_cselect_b32 s80, s80, {OOB}
s_cselect_b32 s81, s81, {OOB}
s_cselect_b32 s82, s82, {OOB}
s_cselect_b32 s83, s83, {OOB}
L_r0_join:
s_nop 1
v_mov_b32 v6, {OOB}
v_cndmask_b32 v5, v6, v5, vcc
s_lshl_b32 s84, s{sW}, 12
s_add_u32 s84, s84, {R0SCR}
s_mov_b32 m0, s84
s_waitcnt lgkmcnt(0)""")
    def mksrd(d, p, n):
        P(f"s_mov_b32 s{d}, s{p}\ns_and_b32 s{d+1}, s{p+1}, 0xffff\ns_mov_b32 s{d+2}, {n}\ns_mov_b32 s{d+3}, 0x00020000")
    P(f"""s_cmp_lt_u32 s77, 72
s_cselect_b32 s{sR}, s6, s8
s_cselect_b32 s{sR+1}, s7, s9
s_mov_b32 s85, {576*1152}
s_cselect_b32 s{sR+2}, {576*3456}, s85
s_and_b32 s{sR+1}, s{sR+1}, 0xffff
s_mov_b32 s{sR+3}, 0x00020000""")
    if cfg.stamps: P(("s_memtime" if cfg.stamps == 2 else "s_memrealtime") + " s[38:39]")
    for q in range(4):
        P(f"buffer_load_dwordx4 v5, {srd(sR)}, s{80+q} offen offset:{1024*q}{cfg.r0fl} lds", "r0")
    def code_touch(vd, first):
        P(f"""s_getpc_b64 s[{sR}:{sR+1}]
L_pc{first}:
s_and_b32 s{sR+1}, s{sR+1}, 0xffff
s_mov_b32 s{sR+2}, L_code_end - L_pc{first}
s_mov_b32 s{sR+3}, 0x00020000
s_lshr_b32 s84, s2, 3
s_lshl_b32 s84, s84, 2
s_add_u32 s84, s84, s{sW}
v_lshl_add_u32 v{vd}, v{vL}, 7, s84
v_lshlrev_b32 v{vd}, 7, v{vd}""")
        P(f"buffer_load_dword v{vd}, v{vd}, {srd(sR)}, 0 offen", "tch")
    if cfg.ctouch: code_touch(63, 0)
    mksrd(sX, 4, 2048*1152)
    if cfg.wsbase: P(f"s_add_u32 s24, s24, {cfg.wsbase}\ns_addc_u32 s25, s25, 0")
    P(f"s_load_dword s{sTAG}, s[24:25], 0")
    XR, XH = 160, 232
    P(f"""s_lshl_b32 s84, s{sG1}, 6
s_and_b32 s85, s{sW}, 1
s_lshl_b32 s85, s85, 5
s_add_u32 s85, s85, s84
s_lshr_b32 s86, s{sW}, 1
s_add_u32 s85, s85, s86
s_mul_i32 s85, s85, 1152
v_lshrrev_b32 v8, 3, v{vL}
v_and_b32 v9, 7, v{vL}
v_mul_u32_u24 v6, 2304, v8
v_lshl_add_u32 v6, v9, 4, v6
v_add_u32 v6, s85, v6
v_add_u32 v7, {8*2304}, v6""")
    if cfg.rot:
        P(f"""s_and_b32 s86, s{sG2}, 3
s_mul_i32 s86, s86, 9
s_add_u32 s86, s86, 2
s_lshr_b32 s86, s86, 2
s_add_u32 s86, s86, s{sJ2}
s_sub_u32 s87, s86, 9
s_cmp_ge_u32 s86, 9
s_cselect_b32 s{sRP}, s87, s86
s_lshl_b32 s86, s{sG2}, 1
s_add_u32 s86, s86, s{sJ2}
s_and_b32 s{sR2}, s86, 7
s_and_b32 s86, s{sJF}, 1
s_mul_i32 s86, s86, 9
s_and_b32 s87, s{sGF}, 15
s_add_u32 s86, s86, s87
s_sub_u32 s87, s86, 18
s_cmp_ge_u32 s86, 18
s_cselect_b32 s{sRF}, s87, s86""")
        if cfg.p1z4 == 1: P(f"s_lshr_b32 s{sRP}, s{sRF}, 1")
        if cfg.p1z4 == 2:
            P(f"""s_and_b32 s86, s66, 3
s_mul_i32 s86, s86, 9
s_add_u32 s86, s86, 2
s_lshr_b32 s86, s86, 2
s_and_b32 s87, s65, 7
s_add_u32 s86, s86, s87
s_sub_u32 s87, s86, 9
s_cmp_ge_u32 s86, 9
s_cselect_b32 s{sRP}, s87, s86""")
    else:
        P(f"s_mov_b32 s{sRP}, 0\ns_mov_b32 s{sRF}, 0\ns_mov_b32 s{sR2}, 0")
    P(f"s_lshl_b32 s88, s{sRP}, 7")
    for q in range(1, 9):
        P(f"s_add_u32 s{88+q}, s{87+q}, 128\ns_cmp_eq_u32 s{88+q}, 1152\ns_cselect_b32 s{88+q}, 0, s{88+q}")
    xl = []
    for q in range(9):
        for hh in range(2):
            xl.append(f"buffer_load_dwordx4 {vq(XR + (q*2+hh)*4)}, v{6+hh}, {srd(sX)}, s{88+q} offen")
    for l in xl[:cfg.nx1]: P(l, "x")
    mksrd(sWS, 24, WS_BYTES)
    P(f"""s_lshl_b32 s85, s{sW}, 2
v_add_u32 v10, s85, v{vG}
v_and_b32 v11, 7, v10
v_lshrrev_b32 v12, 3, v10
v_lshl_add_u32 v11, v11, 1, v12
v_add_u32 v11, s84, v11
v_subrev_u32 v11, 16, v11
v_mul_u32_u24 v11, 1152, v11
s_cmp_eq_u32 s{sG1}, 0
s_cselect_b32 s85, {OOB}, 0
s_cselect_b32 s86, 0, -1
v_and_b32 v11, s86, v11
v_or_b32 v11, s85, v11
v_mov_b32 v13, {OOB}
s_lshl_b32 s85, s{sRP}, 3
v_add_u32 v12, s85, v{vI}""")
    for q in range(5):
        P(f"""v_add_u32 v{84+q}, {16*q}, v12
v_subrev_u32 v89, 72, v{84+q}
v_min_u32 v{84+q}, v{84+q}, v89
v_lshl_add_u32 v{84+q}, v{84+q}, 4, v11""")
    P(f"v_cmp_gt_u32 vcc, 8, v{vI}\nv_cndmask_b32 v88, v13, v88, vcc")
    hl = [f"buffer_load_dwordx4 {vq(XH + 4*q)}, v{84+q}, {srd(sX)}, 0 offen" for q in range(5)]
    P(f"""v_bfe_u32 v14, v{vL}, 2, 2
v_and_b32 v15, 3, v{vL}
s_lshl_b32 s84, s{sW}, 12
s_add_u32 s84, s84, {R0SCR}
s_cmp_lt_u32 s77, 72
s_cbranch_scc0 L_r1_wo
v_lshrrev_b32 v16, 1, v14
v_lshlrev_b32 v16, 10, v16
v_and_b32 v17, 1, v14
v_mul_u32_u24 v17, 432, v17
v_add3_u32 v16, v16, v17, s84
v_mul_u32_u24 v17, 36, v{vG}
v_and_b32 v18, 1, v{vG}
v_lshl_add_u32 v17, v18, 2, v17
v_lshl_add_u32 v17, v15, 3, v17
v_add_u32 v32, v16, v17
v_add_u32 v34, 144, v32
v_add_u32 v36, 288, v32
v_min_u32 v17, 2, v15
v_mul_u32_u24 v17, 144, v17
v_mul_u32_u24 v18, 72, v18
v_add3_u32 v38, v16, v17, v18
v_add_u32 v38, 32, v38
s_mov_b32 s85, 2048
s_lshr_b32 s86, s77, 2
s_mul_i32 s87, s{sJ1}, 72
s_add_u32 s86, s86, s87
s_mul_i32 s86, s86, 3584
s_add_u32 s86, s86, {WQP}
s_and_b32 s87, s77, 3
v_mul_u32_u24 v16, {18*3584}, v{vG}
v_lshl_add_u32 v16, v{vI}, 4, v16
s_lshl_b32 s79, s87, 8
s_add_u32 s79, s79, s86
v_add_u32 v40, s79, v16
v_add_u32 v41, 1024, v40
v_add_u32 v42, 2048, v40
v_lshrrev_b32 v16, 1, v15
v_lshl_add_u32 v16, v{vG}, 1, v16
v_mul_u32_u24 v16, {18*3584}, v16
v_and_b32 v17, 1, v15
v_lshl_add_u32 v17, v14, 1, v17
v_lshl_add_u32 v16, v17, 4, v16
s_lshl_b32 s79, s87, 7
s_add_u32 s79, s79, s86
s_add_u32 s79, s79, 3072
v_add_u32 v16, s79, v16
v_cmp_gt_u32 vcc, 32, v{vL}
v_cndmask_b32 v43, v13, v16, vcc
s_branch L_r1_join
L_r1_wo:
v_mul_u32_u24 v16, 144, v14
v_add_u32 v16, s84, v16
v_lshrrev_b32 v17, 1, v{vG}
v_lshlrev_b32 v17, 6, v17
v_and_b32 v18, 1, v{vG}
v_lshl_add_u32 v17, v18, 3, v17
v_lshl_add_u32 v17, v15, 4, v17
v_add_u32 v32, v16, v17
v_and_b32 v17, 1, v15
v_lshl_add_u32 v34, v17, 3, v16
v_add_u32 v34, 128, v34
v_add_u32 v36, 2048, v32
v_add_u32 v38, 2048, v34
s_mov_b32 s85, 1024
v_lshlrev_b32 v16, 10, v{vG}
v_lshl_add_u32 v16, v{vI}, 4, v16
v_cmp_gt_u32 vcc, 8, v{vL}
v_cndmask_b32 v17, v13, v{vL16}, vcc
s_sub_u32 s79, s77, 72""")
    for G in range(2):
        if G: P("s_add_u32 s79, s79, 36")
        P(f"""s_lshr_b32 s86, s79, 2
s_mul_i32 s87, s{sJ1}, 18
s_add_u32 s86, s86, s87
s_mul_i32 s86, s86, 4608
s_add_u32 s86, s86, {WOP}
s_cmp_lt_u32 s77, 108
s_cselect_b32 s86, s86, {OOB}
s_and_b32 s87, s79, 3
s_lshl_b32 s76, s87, 8
s_add_u32 s76, s76, s86
v_add_u32 v{40+2*G}, s76, v16
s_lshl_b32 s76, s87, 7
s_add_u32 s76, s76, s86
s_add_u32 s76, s76, 4096
v_add_u32 v{41+2*G}, s76, v17""")
    P("L_r1_join:\ns_nop 1")
    for t in range(4): P(f"v_add_u32 v{33+2*t}, s85, v{32+2*t}")
    mksrd(sW1, 12, 576*9216); mksrd(sW2, 16, 4608*1152); mksrd(sB1, 14, 9216); mksrd(sB2, 18, 1152); mksrd(sOUT, 20, 2048*1152)
    if cfg.dbg: mksrd(sR, 22, 256)
    if cfg.stamps: P("@waitlg_all\ns_mov_b32 s4, s26"); P("s_mov_b32 s5, s38"); nstamp[0] = 2; names.append("start"); names.append("r0 issue")
    P("s_mov_b32 s99, 0x3f803f80\ns_mov_b32 s98, 0xffff0000")
    if cfg.touch:
        P(f"v_lshlrev_b32 v90, 21, v{vL}\nv_min_u32 v90, {0x2800000}, v90")
        P(f"buffer_load_dword v60, v90, {srd(sWS)}, 0 offen", "tch")
        if cfg.touch > 1:
            P(f"buffer_load_dword v61, v90, {srd(sW1)}, 0 offen", "tch")
            P(f"buffer_load_dword v62, v90, {srd(sW2)}, 0 offen", "tch")
            P(f"buffer_load_dword v63, v90, {srd(sOUT)}, 0 offen", "tch")
    UP = {(1, 0): (32, 33, 34), (1, 1): (35, 36, 37), (2, 0): (24, 25, 34), (2, 1): (26, 27, 37)}
    for z in range(2):
        a1, d1, st = UP[(1, z)]; a2, d2, _ = UP[(2, z)]
        P(f"""s_add_u32 s84, s77, {128*z}
s_mul_i32 s85, s84, 7282
s_lshr_b32 s85, s85, 16
s_mul_i32 s86, s85, 9
s_sub_u32 s86, s84, s86
s_lshl_b32 s76, s86, 7
s_mul_i32 s87, s85, {32*9216}
s_add_u32 s87, s87, s76
s_mul_i32 s75, s{sJ1}, 1152
s_add_u32 s{a1}, s87, s75
s_mul_i32 s87, s85, {32*1152}
s_add_u32 s87, s87, s76
s_mul_i32 s75, s{sJ1}, {576*1152}
s_add_u32 s{a2}, s87, s75
s_lshr_b32 s79, s85, 2
s_lshl_b32 s79, s79, 1
s_and_b32 s75, s85, 1
s_add_u32 s79, s79, s75
s_add_u32 s75, s79, 10
s_bitcmp1_b32 s85, 1
s_cselect_b32 s79, s75, s79
s_lshr_b32 s87, s86, 1
s_mul_i32 s87, s87, 162
s_and_b32 s76, s86, 1
s_lshl_b32 s76, s76, 2
s_add_u32 s87, s87, s76
s_cmp_eq_u32 s86, 8
s_cselect_b32 s87, 8, s87
s_cselect_b32 s{st}, 162, 1
s_lshl_b32 s{st}, s{st}, 10
s_mul_i32 s76, s{sJ1}, 648
s_add_u32 s87, s87, s76
s_mul_i32 s75, s85, 9
s_add_u32 s75, s75, s87
s_lshl_b32 s75, s75, 10
s_add_u32 s{d1}, s75, {W1R}
s_mul_i32 s75, s79, 9
s_add_u32 s75, s75, s87
s_lshl_b32 s75, s75, 10
s_add_u32 s{d2}, s75, {W2R}""")
        if z:
            P("s_cmp_lt_u32 s84, 162")
            for r in (a1, d1, a2, d2): P(f"s_cselect_b32 s{r}, s{r}, {OOB}")
    P(f"""v_mul_u32_u24 v92, 9216, v8
v_lshl_add_u32 v92, v9, 4, v92
v_mul_u32_u24 v93, 1152, v8
v_lshl_add_u32 v93, v9, 4, v93
v_lshl_add_u32 v94, v{vG}, 3, v14
v_lshlrev_b32 v94, 7, v94
v_lshl_add_u32 v94, v15, 4, v94
s_lshl_b32 s84, s{sW}, 13
v_add_u32 v94, s84, v94""")
    def unit_dma(mat, z, scr, vs=None):
        a = UP[(mat, z)][0]; st = 9216 if mat == 1 else 1152
        L = [f"s_lshl_b32 s84, s{sW}, 13\ns_add_u32 s84, s84, {scr + 4096*z}\ns_mov_b32 m0, s84"]
        for q in range(4):
            if q: L.append(f"s_add_u32 s{a}, s{a}, {8*st - 1024}")
            L.append((f"buffer_load_dwordx4 v{vs or 91+mat}, {srd(sW1 if mat == 1 else sW2)}, s{a} offen offset:{1024*q}{cfg.rawfl} lds", "wr"))
        return L
    def unit_tr(z, scr, vt):
        return [f"ds_read_b64_tr_b16 {vq(vt+4*t+2*hi,2)}, v94 offset:{scr + 4096*z + 64*(t>>1) + 8*(t&1) + 512*hi}" for t in range(4) for hi in range(2)]
    def unit_st(mat, z, vt):
        _, d, st = UP[(mat, z)]; L = []
        for t in range(4):
            if t: L.append(f"s_add_u32 s{d}, s{d}, s{st}")
            L.append((f"buffer_store_dwordx4 {vq(vt+4*t)}, v{vL16}, {srd(sWS)}, s{d} offen{cfg.wrsfl}", "wrs"))
        return L
    MS, MP, ME, MO = 96, 100, 104, 108
    P(f"""v_mov_b32 v66, {hexf(-1e30)}
v_lshlrev_b32 v64, 2, v{vG}
v_sub_u32 v64, v64, v{vI}
s_cmp_eq_u32 s{sG1}, 0
s_cselect_b32 s84, 100, 0
v_cmp_gt_u32 s[80:81], 2, v{vG}""")
    for r in range(4):
        P(f"""v_add_u32 v65, {r+7}, v64
v_cmp_gt_u32 vcc, 8, v65
v_add_u32 v65, {r}, v64
v_subrev_u32 v67, s84, v65
v_cndmask_b32 v{MS+r}, v66, 0, vcc
v_cmp_lt_i32 vcc, 8, v65
v_cmp_lt_i32 s[82:83], 8, v67
v_cmp_lt_i32 s[86:87], 0, v67
v_cndmask_b32 v{MP+r}, v66, 0, vcc
s_and_b64 s[86:87], s[86:87], s[80:81]
v_cndmask_b32 v{MO+r}, v66, 0, s[82:83]
v_cndmask_b32 v{ME+r}, v66, 0, s[86:87]""")
    P("@waitvm r0")
    stamp("r0 landed")
    for t in range(4):
        P(f"ds_read_b64_tr_b16 {vq(16+4*t,2)}, v{32+2*t}")
        P(f"ds_read_b64_tr_b16 {vq(18+4*t,2)}, v{33+2*t}")
    for t in range(4):
        P(f"buffer_store_dwordx4 {vq(16+4*t)}, v{40+t}, {srd(sWS)}, 0 offen sc1", "r0s")
    stamp("@r0 st")
    xrest = xl[cfg.nx1:] + hl
    P(f"@waitlg_all\ns_add_u32 s{sTAG}, s{sTAG}, 0x9E3779B9")
    P(f"""s_lshl_b32 s84, s{sJ1}, 12
s_add_u32 s84, s84, {F0S}
s_lshl_b32 s85, s{sG1}, 2
s_add_u32 s85, s85, s84
v_mov_b32 v44, s85
v_cmp_eq_u32 vcc, 0, v0
v_cndmask_b32 v44, v13, v44, vcc
v_and_b32 v45, 31, v{vL}
v_lshl_add_u32 v45, v45, 2, s84
s_lshl_b32 s84, s{sJ2 if cfg.f0both else sJ1}, 12
s_add_u32 s84, s84, {F0S - 128}
v_lshl_add_u32 v5, v{vL}, 2, s84
v_cmp_gt_u32 vcc, 32, v{vL}
v_cndmask_b32 v45, v5, v45, vcc""")
    def stats(groups, acc):
        order = sorted((r, gi, k) for gi, regs in enumerate(groups) for k, r in enumerate(regs))
        L = []
        for r, gi, k in order:
            a = acc + 4*gi + 2*(k & 1)
            c0 = "0" if k < 2 else f"v{a}"; c1 = "0" if k < 2 else f"v{a+1}"
            L.append(f"v_dot2_f32_bf16 v{a}, v{r}, s99, {c0}\nv_dot2_f32_bf16 v{a+1}, v{r}, v{r}, {c1}")
        for gi in range(len(groups)):
            a = acc + 4*gi
            L.append(f"v_add_f32 v{a}, v{a}, v{a+2}\nv_add_f32 v{a+1}, v{a+1}, v{a+3}")
        return L
    def finish_stats(A):
        for t in [f"v_mul_f32 v@0, {hexf(1/576)}, v@0", f"v_mul_f32 v@2, v@0, v@0", f"v_mul_f32 v@1, {hexf(1/576)}, v@1", "v_sub_f32 v@1, v@1, v@2",
                  "v_max_f32 v@1, 0, v@1", f"v_add_f32 v@1, {hexf(1e-5)}, v@1", "v_rsq_f32 v@1, v@1", "v_mul_f32 v@2, v@0, -v@1",
                  "v_mov_b32 v@0, v@1", "v_mov_b32 v@3, v@2"]:
            for a in A: P(t.replace("@0", str(a)).replace("@1", str(a+1)).replace("@2", str(a+2)).replace("@3", str(a+3)))
    def normalize(q, a, t, pk=True):
        L = []
        for d in range(4):
            L.append(f"v_lshlrev_b32 v{t+2*d}, 16, v{q+d}")
            L.append(f"v_and_b32 v{t+2*d+1}, s98, v{q+d}")
        if pk:
            for d in range(4): L.append(f"v_pk_fma_f32 {vq(t+2*d,2)}, {vq(t+2*d,2)}, {vq(a,2)}, {vq(a+2,2)}")
        else:
            for d in range(8): L.append(f"v_fma_f32 v{t+d}, v{t+d}, v{a}, v{a+2}")
        for d in range(4): L.append(f"v_cvt_pk_bf16_f32 v{q+d}, v{t+2*d}, v{t+2*d+1}")
        return L
    ST = 144; NT = 112
    st = stats([[XR + (q*2+hh)*4 + d for q in range(9) for d in range(4)] for hh in range(2)] + [[XH + k for k in range(20)]], ST)
    raw = {1: [], 2: []}
    for z in range(2):
        raw[1] += unit_dma(1, z, W1SCR); raw[2] += unit_dma(2, z, W2SCR0)
    raw[1].append(f"s_mul_i32 s84, s{sJF}, 1152\nv_lshlrev_b32 v5, 7, v{vI}")
    raw[1].append((f"buffer_load_dword v252, v5, {srd(sB1)}, s84 offen", "wr"))
    raw[1].append((f"buffer_load_dword v253, v5, {srd(sB2)}, 0 offen", "wr"))
    k = 0
    for n, l in enumerate(xrest + [None]):
        if n == cfg.nx2:
            stamp("@pre-ack")
            P("@waitvm r0s")
            stamp("@acked")
            P("s_barrier")
            set_flag(44)
            stamp("F0 set")
        if l is None: break
        P(l, "x")
        if cfg.nx1 + n + 1 - k//4 > cfg.lag: P.extend(st[k:k+4]); k += 4
    if cfg.rawat == 0: P.extend(raw[1])
    P.extend(st[k:])
    if cfg.rawat == 1: P.extend(raw[1])
    if cfg.w2at == 4: P.extend(raw[2])
    for mod in ["quad_perm:[1,0,3,2]", "quad_perm:[2,3,0,1]", "row_half_mirror"]:
        for gi in range(3):
            for k in range(2):
                a = ST + 4*gi + k
                P(f"v_add_f32_dpp v{a}, v{a}, v{a} {mod} row_mask:0xf bank_mask:0xf")
    for k in range(2): P(f"v_add_f32_dpp v{ST+8+k}, v{ST+8+k}, v{ST+8+k} row_mirror row_mask:0xf bank_mask:0xf")
    finish_stats([ST, ST+4, ST+8])
    stamp("LN1 stats")
    P(f"""v_lshrrev_b32 v156, 2, v9
v_mul_u32_u24 v156, 5120, v156
v_and_b32 v157, 3, v9
v_lshl_add_u32 v156, v157, 8, v156
v_xor_b32 v157, v8, v9
v_lshl_add_u32 v156, v157, 4, v156
s_lshl_b32 s84, s{sW}, 10
s_add_u32 s84, s84, {XB}
v_add_u32 v156, s84, v156
v_add_u32 v157, {10240*5}, v156
v_lshrrev_b32 v158, 2, v{vI}
v_mul_u32_u24 v158, 5120, v158
v_lshl_add_u32 v158, v15, 8, v158
v_xor_b32 v159, v10, v9
v_lshl_add_u32 v158, v159, 4, v158
v_add_u32 v158, {XB + 4096}, v158
v_add_u32 v159, {20480*3}, v158""")
    ntc = [0]
    def ln1_batch(b):
        L = []
        for q in range(2*b, min(2*b+2, 9)):
            for hh in range(2):
                r = XR + (q*2+hh)*4
                L += normalize(r, ST + 4*hh, NT + 8*(ntc[0] & 1), b < 2); ntc[0] += 1
                L.append(f"ds_write_b128 v{156 if q < 5 else 157}, {vq(r)} offset:{10240*(q % 5) + 128*hh}")
        L += normalize(XH + 4*b, ST + 8, NT + 8*(ntc[0] & 1), b < 2); ntc[0] += 1
        wr = f"ds_write_b128 v{158 if b < 3 else 159}, {vq(XH+4*b)} offset:{20480*(b % 3)}"
        if b == 4: wr = "s_mov_b32 exec_lo, 0x00ff00ff\ns_mov_b32 exec_hi, 0x00ff00ff\n" + wr + "\ns_mov_b64 exec, -1"
        L.append(wr)
        return L
    if cfg.rawat != 4: P.extend(ln1_batch(0))
    P(f"""s_lshl_b32 s74, s{sJ1}, 2
s_add_u32 s74, s74, s{sW}
s_mul_i32 s74, s74, {18*3584}
s_add_u32 s74, s74, {WQP}
s_add_u32 s75, s74, {18*3584}
s_mul_i32 s78, s{sRP}, {2*3584}
s_add_u32 s78, s78, s74
v_lshlrev_b32 v7, 7, v{vG}
v_lshl_add_u32 v7, v{vI}, 4, v7
v_cmp_gt_u32 vcc, 6, v{vI}
v_cndmask_b32 v7, v13, v7, vcc
v_xor_b32 v8, v{vI}, v{vG}
v_lshlrev_b32 v8, 4, v8
v_lshl_add_u32 v8, v{vG}, 8, v8
v_add_u32 v8, {XB}, v8
v_xor_b32 v9, 64, v8
v_add_u32 v10, 46080, v8
v_add_u32 v11, 46080, v9""")
    stamp("@LN1 b0")
    if cfg.poll1: P(f"s_waitcnt vmcnt(0)\ns_cmp_lg_u32 s{sW}, 0\ns_cbranch_scc1 L_pdone{npoll[0]}")
    poll(45, 5)
    if cfg.poll1: P("s_barrier")
    stamp("F0 seen")
    QA, KA, EA, VA = 16, 32, 52, 72
    WR = 64
    D = cfg.p1depth
    def wq_loads(s):
        b = WR + (s % D)*16
        L = [(f"buffer_load_dwordx4 {aq(b+4*t)}, v{vL16}, {srd(sWS)}, s78 offen offset:{1024*t}{cfg.wsc}", "wq") for t in range(3)]
        L.append((f"buffer_load_dwordx4 {aq(b+12)}, v7, {srd(sWS)}, s78 offen offset:3072{cfg.wsc}", "wq"))
        if s < 17: L.append(wrap(78, 3584, 75, 74))
        return L
    def x_reads(s):
        b = (s % 2)*20
        reg = (8 if s % 2 == 0 else 9) + (2 if s >= 9 else 0)
        return [f"ds_read_b128 {aq(b+4*m)}, v{reg} offset:{((s % 9)*5 + m)*1024}" for m in range(5)]
    def join(L):
        out = []; pend = ""
        for x in L:
            if isinstance(x, tuple): out.append((pend + x[0], x[1])); pend = ""
            else: pend += x + "\n"
        if pend: out.append(pend.strip())
        return out
    if cfg.rawat == 4:
        mem = join(sum([wq_loads(s) for s in range(D-1)], []))
        tail_ = [mem.pop()] if not isinstance(mem[-1], tuple) else []
        mem += tail_ + join(raw[1]) + (join(raw[2]) if cfg.w2at == 6 else [])
        work = ln1_batch(0) + ln1_batch(1)
        for l in mem[:cfg.nq1]: P.add(l)
        mem = mem[cfg.nq1:]
        for n, l in enumerate(work):
            P.add(l)
            if n % cfg.qgap == cfg.qgap - 1 and mem: P.add(mem.pop(0))
        for l in mem: P.add(l)
    else:
        for s in range(D-1): P.extend(wq_loads(s))
        if cfg.rawat == 2: P.extend(raw[1])
        P.extend(ln1_batch(1))
    P("@waitlg_all\ns_barrier")
    P.extend(x_reads(0))
    stamp("GEMM1 start")
    def lines(t): return t.split("\n")
    def own_flag(vd, base, sa, sha, sb, shb):
        return [f"s_lshl_b32 s86, s{sa}, {sha}", f"s_lshl_b32 s87, s{sb}, {shb}", "s_add_u32 s86, s86, s87", f"s_add_u32 s86, s86, {base}",
                f"v_mov_b32 v{vd}, s86", f"v_cmp_eq_u32 vcc, 0, v0\nv_cndmask_b32 v{vd}, v13, v{vd}, vcc"]
    def grp_poll_addr(vd, sg, base):
        return lines(f"""s_lshl_b32 s86, s{sg}, 12
s_add_u32 s86, s86, {base}
v_and_b32 v{vd}, 7, v{vL}
v_lshl_add_u32 v{vd}, v{vd}, 4, s86""")
    def set_poll_addr(vd, sj, base):
        return lines(f"""s_lshl_b32 s86, s{sj}, 12
s_add_u32 s86, s86, {base}
v_and_b32 v{vd}, 31, v{vL}
v_lshl_add_u32 v{vd}, v{vd}, 2, s86""")
    def flag_items(vaddr):
        return [f"v_mov_b32 v5, s{sTAG}", (f"buffer_store_dword v5, v{vaddr}, {srd(sWS)}, 0 offen sc1", "flag")]
    def unpack(dst, src, n):
        return sum([[f"v_lshlrev_b32 v{dst+2*k}, 16, v{src+k}", f"v_and_b32 v{dst+2*k+1}, s98, v{src+k}"] for k in range(n)], [])
    QO, KO, VO, XO = 112, 128, 148, 160
    flex = []
    T0 = 128
    for l in ln1_batch(2): flex.append((0, l))
    flex.append((0, "@mark0"))
    flex2 = []
    q1, q2, q3, q4 = cfg.gq
    if cfg.rawat == 3:
        for k, l in enumerate(join(raw[1])): flex2.append((int(19*q1) + 2*k, l))
    def repack(mat, scr, g0):
        flex2.append((g0, "@waitvm wr"))
        for z in range(2):
            for l in unit_tr(z, scr, T0): flex2.append((g0 + 24*z, l))
            for k, l in enumerate(join(unit_st(mat, z, T0))): flex2.append((g0 + 24*z + 8 + 4*k, l))
    if cfg.w2at == 3 and q3 < q2:
        for k, l in enumerate(join(raw[2])): flex2.append((int(19*q3) + 2*k, l))
    repack(1, W1SCR, int(19*q2))
    if cfg.w2at >= 3:
        if q3 >= q2 and cfg.w2at == 3:
            for k, l in enumerate(join(raw[2])): flex2.append((int(19*q3) + 2*k, l))
        repack(2, W2SCR0, int(19*q4))
    flex2.append((0, "@markb"))
    for l in ln1_batch(3) + own_flag(95, F1S, sJ1, 12, sG1, 2): flex.append((0, l))
    flex.append((0, "@mark1"))
    for l in ln1_batch(4): flex.append((0, l))
    flex.append((0, "@mark2"))
    pre = lines(f"""s_lshl_b32 s84, s{sW}, 10
s_add_u32 s84, s84, {VXS}
v_lshl_add_u32 v234, v{vI}, 1, s84
v_add_u32 v235, 512, v234
v_cmp_eq_u32 vcc, 1, v{vG}@@v_cndmask_b32 v234, v235, v234, vcc
v_lshl_add_u32 v235, v{vL}, 2, s84
v_min_u32 v236, 2, v{vI}
v_mul_u32_u24 v236, 160, v236
v_lshl_add_u32 v236, v{vG}, 3, v236
v_add_u32 v236, s84, v236
v_mov_b32 v237, s99
s_mul_i32 s84, s{sG1}, 73728
s_add_u32 s84, s84, {OP}
s_lshl_b32 s85, s{sJ1}, 1
s_lshr_b32 s86, s{sW}, 1
s_add_u32 s85, s85, s86
s_lshl_b32 s85, s85, 12
s_and_b32 s86, s{sW}, 1
s_lshl_b32 s86, s86, 9
s_add_u32 s85, s85, s86
s_add_u32 s95, s85, s84
s_lshl_b32 s87, s{sJ1}, 2
s_add_u32 s87, s87, s{sW}
s_lshl_b32 s87, s87, 8
s_add_u32 s87, s87, 65536
s_add_u32 s96, s87, s84
v_and_b32 v232, 1, v{vG}
v_lshlrev_b32 v232, 10, v232
v_lshrrev_b32 v233, 1, v{vG}
v_lshl_add_u32 v232, v233, 8, v232
v_lshl_add_u32 v232, v{vI}, 4, v232
v_lshlrev_b32 v233, 2, v{vL}
s_mul_i32 s79, s{sJ2}, 82944
s_add_u32 s79, s79, {WOP}
s_lshl_b32 s84, s{sW}, 1
s_add_u32 s85, s84, s{sR2}
s_and_b32 s86, s85, 7
s_mul_i32 s86, s86, 9216
s_add_u32 s80, s86, s79
s_add_u32 s85, s85, 1
s_and_b32 s86, s85, 7
s_mul_i32 s86, s86, 9216
s_add_u32 s81, s86, s79
s_lshl_b32 s84, s84, 10
s_add_u32 s84, s84, 73728
s_add_u32 s82, s84, s79
s_mov_b32 s83, s84
s_mul_i32 s76, s{sW}, 18432
s_lshl_b32 s84, s{sG2}, 6
s_and_b32 s85, s{sW}, 1
s_lshl_b32 s85, s85, 5
s_add_u32 s85, s85, s84
s_lshr_b32 s86, s{sW}, 1
s_add_u32 s85, s85, s86
s_mul_i32 s85, s85, 1152
s_mul_i32 s86, s{sJ2}, 144
s_add_u32 s79, s85, s86
v_mul_u32_u24 v238, 7282, v{vL}
v_lshrrev_b32 v238, 16, v238
v_mul_u32_u24 v239, 9, v238
v_sub_u32 v239, v{vL}, v239
v_mul_u32_u24 v238, 2304, v238
v_lshl_add_u32 v238, v239, 4, v238
v_cmp_gt_u32 vcc, 54, v{vL}@@v_cndmask_b32 v238, v13, v238, vcc
s_mul_i32 s77, s{sW}, 3072
s_add_u32 s77, s77, {XRS}
s_mov_b32 s94, {hexf((18 ** -0.5) * 1.4426950408889634)}""") + set_poll_addr(15, sJF, F1S)
    pre += [f"v_mov_b32 v{KO+4*m+3}, 0" for m in range(5)] + [f"v_mov_b32 v{QO+4*m+3}, 0" for m in range(4)]
    for l in pre: flex.append((0, l.replace("@@", "\n")))
    mains = []; fixed = {}
    for s in range(18):
        wb = WR + (s % D)*16; xb = (s % 2)*20
        base = len(mains)
        for m in range(5):
            x = aq(xb + 4*m)
            def acc(a): return (vq(a), "0" if s == 0 else vq(a))
            d, c = acc(KA + 4*m); mains.append(f"{MF} {d}, {aq(wb+4)}, {x}, {c}")
            d, c = acc(VA + 4*m); mains.append(f"{MF} {d}, {x}, {aq(wb+8)}, {c}")
            d, c = acc(EA + 4*m); mains.append(f"{MF} {d}, {aq(wb+12)}, {x}, {c}")
            if m < 4:
                d, c = acc(QA + 4*m); mains.append(f"{MF} {d}, {aq(wb)}, {x}, {c}")
        t_ = stamp_txt(f"@q{s}") if s else None
        if t_: fixed.setdefault(base - 1, []).append(t_)
        if s == 7: fixed.setdefault(base, []).extend(["@flexdone0", "@waitlg_all", "s_barrier"])
        fb_ = ["@flexdoneb", "@waitvm wrs"]
        if s == 11: fixed.setdefault(base, []).extend(["@flexdone1"] + (fb_ if cfg.f1s == 11 else []) + ["@waitlg_all", "s_barrier"] + (flag_items(95) if cfg.f1s == 11 else []))
        if s == 15: fixed.setdefault(base, []).extend(["@flexdone2"] + (fb_ if cfg.f1s == 15 else []) + ["@waitlg_all", "s_barrier"] + (flag_items(95) if cfg.f1s == 15 else []))
        if s + 1 < 18:
            for k, l in enumerate(x_reads(s+1)): fixed.setdefault(base + 1 + 2*k, []).append(l)
            fixed.setdefault(base + 18, []).append(f"@need {aq(WR + ((s+1) % D)*16, 16)} {aq(((s+1) % 2)*20, 20)}")
        if s + D - 1 < 18:
            for k, l in enumerate(wq_loads(s + D - 1)): fixed.setdefault(base + [2, 6, 10, 12, 14][k], []).append(l)
    dma = []
    for seg in range(2):
        for k in range(9):
            it = ""
            if k % 4 == 0:
                it = f"s_add_u32 s84, s76, {seg*9216 + 1024*k}\ns_mov_b32 m0, s84\n"
                if k: it += f"s_add_u32 s{80+seg}, s{80+seg}, 4096\n"
            dma.append((it + f"buffer_load_dwordx4 v{vL16}, {srd(sWS)}, s{80+seg} offen offset:{1024*(k % 4)} sc1 lds", "wo"))
    tail3 = [(("s_mov_b32 m0, s83\n" if k == 0 else "") + f"buffer_load_dwordx4 v{vL16}, {srd(sWS)}, s82 offen offset:{1024*k} sc1 lds", "wo") for k in range(3)]
    xres3 = [(("s_mov_b32 m0, s77\n" if k == 0 else f"s_add_u32 s79, s79, {13824 - 1024}\n") + f"buffer_load_dwordx4 v238, {srd(sX)}, s79 offen offset:{1024*k} lds", "wo") for k in range(3)]
    ne = cfg.wo_early
    if not cfg.f0both:
        for l in set_poll_addr(240, sJ2, F0S): flex.append((0, l))
        flex.append((0, poll_pre(240, 241)))
        flex.append((19*15, poll_check(240, 241)))
    for k in range(ne): flex.append((max(19*(18 - (ne*5 + 18)//19) + 5*k, 19*cfg.f1s + 1), dma[k]))
    sched(P, mains, fixed, flex, flex2=flex2)
    stamp("GEMM1 done")
    P("s_barrier")
    A = Prog()
    A(f"s_mov_b32 exec_hi, 0xffff\nds_write_b32 v235, v237 offset:320\ns_mov_b32 exec_hi, -1")
    for m in range(5):
        r = QO + 4*m + 2 if m < 4 else 172
        A(f"v_cvt_pk_bf16_f32 v{r}, v{EA+4*m}, v{EA+4*m+1}")
        A(f"ds_write_b16 v234, v{r} offset:{32*m}\nds_write_b16_d16_hi v234, v{r} offset:{160+32*m}")
    SA = 176
    prev = [4, 0, 4, 2]; pmask = [ME, MP, MO, MP]
    def kop(m): A(f"v_cvt_pk_bf16_f32 v{KO+4*m}, v{KA+4*m}, v{KA+4*m+1}\nv_cvt_pk_bf16_f32 v{KO+4*m+1}, v{KA+4*m+2}, v{KA+4*m+3}\nv_cvt_pk_bf16_f32 v{KO+4*m+2}, v{EA+4*m+2}, v{EA+4*m+3}")
    def qop(m): A(f"v_cvt_pk_bf16_f32 v{QO+4*m}, v{QA+4*m}, v{QA+4*m+1}\nv_cvt_pk_bf16_f32 v{QO+4*m+1}, v{QA+4*m+2}, v{QA+4*m+3}")
    kop(4)
    for m in range(4):
        qop(m); kop(m)
        if m: A(f"{MF} {vq(SA+8*(m-1)+4)}, {vq(KO+4*(m-1))}, {vq(QO+4*(m-1))}, {vq(MS)}")
        A(f"{MF} {vq(SA+8*m)}, {vq(KO+4*prev[m])}, {vq(QO+4*m)}, {vq(pmask[m])}")
    vorder = [4, 0, 1, 4, 2, 3]
    for k, m in enumerate(vorder):
        A(f"v_cvt_pk_bf16_f32 v{VO+2*k}, v{VA+4*m}, v{VA+4*m+1}\nv_cvt_pk_bf16_f32 v{VO+2*k+1}, v{VA+4*m+2}, v{VA+4*m+3}")
        if k == 0: A(f"{MF} {vq(SA+28)}, {vq(KO+12)}, {vq(QO+12)}, {vq(MS)}")
    A("@waitlg_all")
    for k, m in enumerate(vorder): A(f"ds_read_b64 {vq(XO+2*k,2)}, v236 offset:{32*m}")
    MX = 208
    for m in range(4):
        s = SA + 8*m
        A(f"v_max3_f32 v{MX+m}, v{s}, v{s+1}, v{s+2}\nv_max3_f32 v{MX+4+m}, v{s+3}, v{s+4}, v{s+5}")
    for m in range(4):
        s = SA + 8*m
        A(f"v_max3_f32 v{MX+m}, v{MX+m}, v{s+6}, v{s+7}")
    for m in range(4): A(f"v_max_f32 v{MX+m}, v{MX+m}, v{MX+4+m}")
    for sw in ["v_permlane16_swap_b32", "v_permlane32_swap_b32"]:
        for m in range(4): A(f"v_mov_b32 v{MX+4+m}, v{MX+m}")
        for m in range(4): A(f"{sw} v{MX+m}, v{MX+4+m}")
        for m in range(4): A(f"v_max_f32 v{MX+m}, v{MX+m}, v{MX+4+m}")
    for m in range(4): A(f"v_mul_f32 v{MX+m}, s94, v{MX+m}")
    PO = 216; OA = 16; OX = 32
    for m in range(4):
        s = SA + 8*m
        for k in range(8): A(f"v_fma_f32 v{s+k}, v{s+k}, s94, -v{MX+m}")
        if m:
            o = [0, 2, 6, 8][m-1]
            A(f"{MF} {vq(OX+4*(m-1))}, {vq(XO+o)}, {vq(PO+4*(m-1))}, 0")
            A(f"{MF} {vq(OA+4*(m-1))}, {vq(VO+o)}, {vq(PO+4*(m-1))}, 0")
        for k in range(8): A(f"v_exp_f32 v{s+k}, v{s+k}")
        for k in range(4): A(f"v_cvt_pk_bf16_f32 v{PO+4*m+k}, v{s+2*k}, v{s+2*k+1}")
    A(f"v_rcp_f32 v{MX}, v{OX+2}\nv_rcp_f32 v{MX+1}, v{OX+6}")
    A(f"{MF} {vq(OX+12)}, {vq(XO+8)}, {vq(PO+12)}, 0\n{MF} {vq(OA+12)}, {vq(VO+8)}, {vq(PO+12)}, 0")
    OP0 = 112
    for p in range(2):
        if p: A(f"v_rcp_f32 v{MX+2}, v{OX+10}\nv_rcp_f32 v{MX+3}, v{OX+14}")
        for m in (2*p, 2*p+1):
            for r in range(4): A(f"v_mul_f32 v{OA+4*m+r}, v{OA+4*m+r}, v{MX+m}")
            A(f"v_cvt_pk_bf16_f32 v{OP0+2*m}, v{OA+4*m}, v{OA+4*m+1}\nv_cvt_pk_bf16_f32 v{OP0+2*m+1}, v{OA+4*m+2}, v{OA+4*m+3}")
        for m in (2*p, 2*p+1):
            for r in range(2): A(f"v_mul_f32 v{OX+4*m+r}, v{OX+4*m+r}, v{MX+m}")
        b = OP0 + 4*p
        A(f"v_permlane16_swap_b32 v{b}, v{b+2}\nv_permlane16_swap_b32 v{b+1}, v{b+3}")
        A(f"buffer_store_dwordx4 {vq(OP0+4*p)}, v232, {srd(sWS)}, s95 offen offset:{2048*p} sc1", "o")
        for m in (2*p, 2*p+1): A(f"v_cvt_pk_bf16_f32 v{OP0+8+m}, v{OX+4*m}, v{OX+4*m+1}")
    A(f"v_permlane16_swap_b32 v{OP0+8}, v{OP0+9}\nv_permlane16_swap_b32 v{OP0+10}, v{OP0+11}")
    A(f"v_permlane32_swap_b32 v{OP0+8}, v{OP0+10}")
    A(f"buffer_store_dword v{OP0+8}, v233, {srd(sWS)}, s96 offen sc1", "o")
    late = dma[ne:] + tail3 + xres3 + [poll_pre(15, 14)]
    if cfg.w2at == 0:
        w2l = []
        for z in range(2):
            u = unit_dma(2, z, W2SCR)
            w2l.append((u[0] + "\n" + u[1][0], "wr"))
            for q in range(1, 4): w2l.append((u[2*q] + "\n" + u[2*q+1][0], "wr"))
        assert ne in (0, 4, 8, 9, 13)
        late = w2l + late
    k = 0
    for n, ins in enumerate(A.ins):
        P.add(ins)
        if n >= 3 and (n - 3) % cfg.dmagap == 0 and k < len(late): P.add(late[k]); k += 1
    assert k == len(late)
    stamp("attn done")
    NR = 56; AF = 224
    ACA, ACB = 16, 96
    CA, CB = 96, 160
    passes = [("A", [0, 1, 2, 3, 8], ACA, CA), ("B", [4, 5, 6, 7], ACB, CB), ("C", [4, 5, 8], 16, None), ("D", [0, 1], 96, None), ("E", [2, 3], 64, None), ("F", [6, 7], 16, None)]
    steps = [(pi, p) for pi in range(len(passes)) for p in range(18)]
    cons = [(pi, p, t) for pi, p in steps for t in range(len(passes[pi][1]))]
    slot = {f: n % NR for n, f in enumerate(cons)}
    def wload(n):
        pi, p, t = cons[n]; L = []
        if t == 0 and n > 0:
            if pi == 1 and p == 0:
                L.append(f"s_mul_i32 s92, s{sRF}, 9216\ns_add_u32 s92, s92, s90")
            elif pi >= 2 and p in (0, 10):
                beg = 0 if p == 0 else 10*9216; end = (10 if p == 0 else 18)*9216
                L.append(f"s_add_u32 s90, s89, {beg}\ns_add_u32 s91, s89, {end}")
                L.append(f"s_mul_i32 s92, s{93 if p == 0 else 94}, 9216\ns_add_u32 s92, s92, s90")
            else: L.append(wrap(92, 9216, 91, 90))
        tile = passes[pi][1][t]
        L.append((f"buffer_load_dwordx4 {aq(4*(n % NR))}, v{[vL16, 12, 255][tile >> 2]}, {srd(sWS)}, s92 offen offset:{1024*(tile % 4)}{cfg.wsc}", "w"))
        return L
    npf = [0]
    def prefetch(n):
        L = []
        for k in range(n): L += wload(npf[0]); npf[0] += 1
        return L
    P(f"""s_lshl_b32 s88, s{sJF}, 2
s_add_u32 s88, s88, s{sW}
s_mul_i32 s88, s88, {162*1024}
s_add_u32 s89, s88, {W2R}
s_add_u32 s88, s88, {W1R}
s_mul_i32 s92, s{sRF}, 9216
s_add_u32 s92, s92, s88
s_mov_b32 s90, s88
s_add_u32 s91, s88, {162*1024}
v_add_u32 v12, 4096, v{vL16}
v_add_u32 v255, 8192, v{vL16}""")
    P(poll_check(15, 14))
    pa, pb, pc, pd, pe = cfg.pre
    P.extend(prefetch(pa))
    P.extend(own_flag(14, F1G, sG1, 12, sJ1, 4)); P.extend(grp_poll_addr(15, sG2, F1G))
    HA = 16; HQ = 36; OF = 48; WB = 120; NW = 28
    P(f"""v_add_u32 v10, 41472, v{vL16}
v_and_b32 v11, 7, v{vI}
v_lshlrev_b32 v11, 4, v11
v_lshl_add_u32 v11, v{vG}, 7, v11
v_add_u32 v9, 41472, v11
v_mul_u32_u24 v7, 43, v{vI}
v_lshrrev_b32 v7, 8, v7
v_mul_u32_u24 v7, 160, v7
v_mul_u32_u24 v6, 144, v{vI}
v_add3_u32 v6, v6, v7, s77
v_and_b32 v7, 1, v{vG}
v_lshl_add_u32 v7, v7, 3, v6
v_lshl_add_u32 v6, v{vG}, 4, v6""")
    P("@waitvm o\ns_barrier")
    set_flag(14)
    stamp("F1 set")
    if cfg.p1early: P.add(poll_pre(15, 46))
    if cfg.w2at == 1:
        for z in range(2): P.extend(unit_dma(2, z, W2SCR))
    P.extend(prefetch(pb))
    if not cfg.p1early: P.add(poll_pre(15, 46))
    P(f"ds_read_b128 {vq(HQ)}, v6\nds_read_b128 {vq(HQ+4)}, v6 offset:64\nds_read_b64 {vq(HQ+8,2)}, v7 offset:128")
    def wo_reg(n): return vq(WB + 4*(n % NW))
    wor = []
    for s in range(18):
        for t in range(5):
            reg = (vL16 if s < 9 else 10) if t < 4 else (11 if s < 9 else 9)
            wor.append(f"ds_read_b128 {wo_reg(s*5+t)}, v{reg} offset:{WOB + (s % 9)*4608 + 1024*t}")
    P.extend(wor[:NW - 1])
    P(f"""s_mul_i32 s84, s{sG2}, 73728
s_lshl_b32 s85, s{sW}, 10
s_add_u32 s84, s84, s85
s_add_u32 s74, s84, {OP}
s_add_u32 s75, s74, 65536
s_mul_i32 s79, s{sW}, {1024 - 64}
s_sub_u32 s79, s75, s79
v_lshlrev_b32 v232, 10, v{vG}
v_lshl_add_u32 v232, v{vI}, 2, v232
s_lshl_b32 s78, s{sR2}, 13
s_add_u32 s78, s78, s74
s_add_u32 s84, s84, {HP}
s_mul_i32 s85, s{sJ2}, 9
v_add_u32 v6, s85, v{vG}
v_lshrrev_b32 v7, 2, v6
v_lshlrev_b32 v7, 12, v7
v_and_b32 v6, 3, v6
v_lshl_add_u32 v6, v6, 8, v7
v_lshl_add_u32 v6, v{vI}, 4, v6
v_add_u32 v6, s84, v6
s_add_u32 s85, s85, 8
s_lshr_b32 s86, s85, 2
s_lshl_b32 s86, s86, 12
s_and_b32 s85, s85, 3
s_lshl_b32 s85, s85, 8
s_add_u32 s85, s85, s86
s_add_u32 s85, s85, s84
v_lshlrev_b32 v7, 4, v{vI}
v_lshl_add_u32 v7, v{vG}, 3, v7
v_add_u32 v7, s85, v7
v_cmp_gt_u32 s[82:83], 2, v{vG}
v_add_u32 v8, 4096, v6
v_add_u32 v47, {W2SCR}, v94
v_mov_b32 v235, v93
v_cndmask_b32 v7, v13, v7, s[82:83]
s_lshl_b32 s84, s{sG2}, 2
s_add_u32 s84, s84, s{sW}
s_lshl_b32 s84, s84, 3
s_add_u32 s84, s84, s{sJ2}
s_lshl_b32 s84, s84, 7
s_add_u32 s84, s84, {STATS}
v_lshl_add_u32 v233, v{vI}, 3, s84
v_cmp_gt_u32 vcc, 16, v{vL}
v_cndmask_b32 v233, v13, v233, vcc""")
    P.extend(unpack(HA, HQ, 10))
    P(poll_check(15, 46))
    stamp("F1 seen")
    ol = []
    for s in range(16):
        ol.append([(f"buffer_load_dwordx4 {vq(OF+4*s)}, v{vL16}, {srd(sWS)}, s78 offen sc1", "of")] + ([wrap(78, 4096, 75, 74)] if s < 15 else []))
    for s in (16, 17):
        for ww in range(4): ol.append([(f"buffer_load_dword v{OF+4*s+ww}, v232, {srd(sWS)}, s79 offen offset:{256*ww} sc1", "of")] + (["s_add_u32 s79, s79, 4096"] if (s, ww) == (16, 3) else []))
    for L in ol[:cfg.no1]: P.extend(L)
    flex = []
    for l in own_flag(14, F2G, sG2, 12, sJ2, 4) + grp_poll_addr(15, sGF, F2G): flex.append((0, l))
    for l in lines(f"""s_mul_i32 s84, s{sJF}, 1152
s_lshl_b32 s85, s{sW}, 8
s_add_u32 s80, s85, s84
s_lshr_b32 s86, s{sW}, 1
s_lshl_b32 s86, s86, 6
s_and_b32 s87, s{sW}, 1
s_lshl_b32 s87, s87, 3
s_add_u32 s86, s86, s87
s_add_u32 s81, s86, s84
v_lshlrev_b32 v234, 4, v{vG}"""): flex.append((0, l))
    for l in prefetch(pc): flex.append((64, l))
    mains = [f"{MF} {vq(HA+4*t)}, {wo_reg(s*5+t)}, {vq(OF+4*s)}, {vq(HA+4*t)}" for s in range(18) for t in range(5)]
    fixed = {n: [wor[n + NW - 1]] for n in range(90 - NW + 1)}
    for k, L in enumerate(ol[cfg.no1:]):
        g = int(k*cfg.ogap)
        fixed.setdefault(g, []).append(L[0])
        if len(L) > 1: fixed.setdefault(g + 1, []).append(L[1])
    sched(P, mains, fixed, flex)
    for k in range(4): P(f"v_cvt_pk_bf16_f32 v{HQ+k}, v{HA+2*k}, v{HA+2*k+1}")
    P(f"buffer_store_dwordx4 {vq(HQ)}, v6, {srd(sWS)}, 0 offen sc1", "h")
    for k in range(4, 8): P(f"v_cvt_pk_bf16_f32 v{HQ+k}, v{HA+2*k}, v{HA+2*k+1}")
    P(f"buffer_store_dwordx4 {vq(HQ+4)}, v8, {srd(sWS)}, 0 offen sc1", "h")
    for k in range(8, 10): P(f"v_cvt_pk_bf16_f32 v{HQ+k}, v{HA+2*k}, v{HA+2*k+1}")
    P(f"buffer_store_dwordx2 {vq(HQ+8,2)}, v7, {srd(sWS)}, 0 offen sc1", "h")
    P(f"v_cndmask_b32 v16, 0, v{HQ+8}, s[82:83]\nv_cndmask_b32 v17, 0, v{HQ+9}, s[82:83]")
    P.extend(stats([[16, 17] + [HQ + k for k in range(8)]], 20))
    def xsum(a):
        for sw in ["v_permlane16_swap_b32", "v_permlane32_swap_b32"]:
            for k in range(2): P(f"v_mov_b32 v{a+2+k}, v{a+k}")
            for k in range(2): P(f"{sw} v{a+k}, v{a+2+k}")
            for k in range(2): P(f"v_add_f32 v{a+k}, v{a+k}, v{a+2+k}")
    xsum(20)
    P(f"buffer_store_dwordx2 {vq(20,2)}, v233, {srd(sWS)}, 0 offen sc1", "h")
    stamp("proj done")
    B1P = 136; HR = 160; ST = 132; NT = 116; SR = 154
    for p in range(4): P(f"buffer_load_dwordx4 {vq(B1P+4*p)}, v234, {srd(sB1)}, s80 offen offset:{64*p}", "b1")
    P(f"buffer_load_dwordx2 {vq(B1P+16,2)}, v234, {srd(sB1)}, s81 offen offset:1024", "b1")
    P.extend(prefetch(pd))
    P("@waitvm h\n@waitlg_all\ns_barrier")
    set_flag(14)
    stamp("F2 set")
    if cfg.w2at == 2:
        P.add(poll_pre(15, 46))
        for z in range(2): P.extend(unit_dma(2, z, W2SCR, 235))
    if cfg.w2st == 0 and cfg.w2at < 3:
        P("@waitvm wr")
        for z in range(2): P.extend([l.replace("v94", "v47") for l in unit_tr(z, 0, 48 + 16*z)])
        for z in range(2): P.extend(unit_st(2, z, 48 + 16*z))
    P.extend(prefetch(pe))
    if cfg.w2at != 2: P.add(poll_pre(15, 46))
    P.extend(unpack(CA, B1P, 8)); P.extend(unpack(CA+16, B1P+16, 2))
    P(f"""s_mul_i32 s84, s{sGF}, 73728
s_lshl_b32 s85, s{sW}, 10
s_add_u32 s84, s84, s85
s_add_u32 s74, s84, {HP}
s_add_u32 s75, s74, 73728
s_lshl_b32 s77, s{sRF}, 12
s_add_u32 s77, s77, s74
v_add_u32 v6, s85, v{vL16}
v_add_u32 v7, 36864, v6
v_add_u32 v8, 36864, v{vL16}
v_add_u32 v9, {HB}, v{vL16}
v_add_u32 v10, {HB + 36864}, v{vL16}
v_mov_b32 v11, v47
s_and_b32 s93, s{sGF}, 15
s_lshr_b32 s94, s93, 1
s_mul_i32 s93, s93, 5
s_lshr_b32 s93, s93, 3
s_lshl_b32 s84, s{sGF}, 12
s_add_u32 s84, s84, s85
s_add_u32 s84, s84, {STATS}
v_lshlrev_b32 v239, 8, v{vG}
v_lshl_add_u32 v239, v{vI}, 3, v239""")
    if not cfg.rot: P("s_mov_b32 s93, 0\ns_mov_b32 s94, 0")
    P.extend(own_flag(14, F2S, sJ1, 12, sG1, 2))
    vPS, vSS, vF3, vP3, vL4, vL2, vLS, vH4, vH2, vPT, vC4, vC2, vO4, vO2, vOS = range(240, 255)
    P.extend(own_flag(vF3, F3A, sGF, 12, sJF, 4)); P.extend(grp_poll_addr(vP3, sGF, F3A))
    if cfg.wflag:
        P(f"""s_lshl_b32 s87, s{sW}, 7
s_add_u32 s86, s86, s87
v_add_u32 v{vP3}, s87, v{vP3}
s_lshl_b32 s87, s{sJF}, 4
s_add_u32 s86, s86, s87
v_mov_b32 v{vF3}, s86
v_cmp_eq_u32 vcc, 0, v{vL}
v_cndmask_b32 v{vF3}, v13, v{vF3}, vcc""")
    P(f"""s_lshl_b32 s86, s{sGF}, 6
s_add_u32 s86, s86, s{sJF}
s_mul_i32 s86, s86, 9216
s_add_u32 s86, s86, {PART}
v_lshrrev_b32 v{vPS}, 3, v{vI}
v_mul_u32_u24 v{vPS}, {8*9216}, v{vPS}
v_and_b32 v5, 7, v{vI}
v_lshlrev_b32 v5, 3, v5
v_lshl_add_u32 v5, v{vG}, 6, v5
v_add3_u32 v{vSS}, v{vPS}, v5, s86
v_add_u32 v{vPS}, v{vSS}, v5
s_lshl_b32 s85, s{sW}, 8
s_add_u32 s87, s85, 8192
v_add_u32 v{vSS}, s87, v{vSS}
s_lshl_b32 s76, s{sW}, 11
v_add_u32 v{vPS}, s76, v{vPS}
s_lshl_b32 s86, s{sGF}, 3
s_add_u32 s86, s86, s{sJF}
s_mul_i32 s86, s86, {8*9216}
s_add_u32 s86, s86, {PART}
s_add_u32 s76, s76, s86
v_add_u32 v{vL4}, s76, v{vL16}
v_lshl_add_u32 v{vL2}, v{vL}, 3, s76
s_add_u32 s87, s87, s86
v_lshl_add_u32 v{vLS}, v{vL}, 3, s87
v_cmp_gt_u32 vcc, 32, v{vL}
v_lshrrev_b32 v5, 5, v{vL}
v_bfe_u32 v{vC4}, v{vL}, 3, 2
v_cndmask_b32 v{vLS}, v13, v{vLS}, vcc
v_and_b32 v{vO4}, 7, v{vL}
v_lshlrev_b32 v{vH4}, 12, v5
v_lshl_add_u32 v{vH4}, v{vC4}, 8, v{vH4}
v_lshl_add_u32 v{vH4}, v{vO4}, 4, v{vH4}
v_lshlrev_b32 v{vC4}, 4, v{vC4}
v_lshl_add_u32 v{vC4}, v5, 6, v{vC4}
v_bfe_u32 v{vO2}, v{vL}, 1, 3
v_and_b32 v5, 1, v{vL}
v_lshlrev_b32 v5, 3, v5
v_lshl_add_u32 v{vH2}, v{vG}, 8, v5
v_lshl_add_u32 v{vH2}, v{vO2}, 4, v{vH2}
v_lshl_add_u32 v{vC2}, v{vG}, 4, v5
s_lshr_b32 s87, s{sJF}, 1
s_and_b32 s86, s{sJF}, 1
s_lshl_b32 s76, s{sGF}, 6
s_and_b32 s32, s87, 1
s_lshl_b32 s32, s32, 5
s_add_u32 s76, s76, s32
s_lshr_b32 s32, s87, 1
s_add_u32 s76, s76, s32
s_lshl_b32 s32, s86, 4
s_add_u32 s76, s76, s32
s_mul_i32 s76, s76, 1152
v_mul_u32_u24 v{vO4}, 2304, v{vO4}
v_add3_u32 v{vO4}, v{vO4}, v{vC4}, s76
v_mul_u32_u24 v{vO2}, 2304, v{vO2}
v_add3_u32 v{vO2}, v{vO2}, v{vC2}, s76
v_cndmask_b32 v{vOS}, v13, v{vO4}, vcc
s_mul_i32 s76, s{sGF}, 73728
s_lshl_b32 s87, s87, 10
s_add_u32 s76, s76, s87
s_lshl_b32 s86, s86, 7
s_add_u32 s76, s76, s86
s_add_u32 s76, s76, {HP}
s_lshl_b32 s86, s{sW}, 14
s_add_u32 s32, s76, s86
s_add_u32 s33, s32, 8192
s_add_u32 s35, s32, 12288
s_add_u32 s64, s32, 4096
s_lshr_b32 s86, s{sW}, 1
s_and_b32 s87, s{sW}, 1
s_lshl_b32 s87, s87, 3
s_lshl_b32 s36, s86, 12
s_add_u32 s36, s36, s87
s_add_u32 s36, s36, 65536
s_add_u32 s36, s36, s76
s_mov_b32 s38, s85
s_lshl_b32 s39, s86, 6
s_add_u32 s39, s39, s87
s_add_u32 s39, s39, 1024
s_mov_b32 s80, 0
s_mov_b32 s81, {16*9216}
s_mov_b32 s82, {32*9216}
s_mov_b32 s83, {48*9216}
s_mov_b32 s95, 0x00003f80
s_mov_b32 s96, 0x3f800000""")
    P(poll_check(15, 46))
    stamp("F2 seen")
    for k in range(2): P(f"buffer_load_dwordx2 {vq(SR+2*k,2)}, v239, {srd(sWS)}, s84 offen offset:{128*k} sc1", "hf")
    hl = []
    for s in range(18):
        hl.append([(f"buffer_load_dwordx4 {vq(HR+4*s)}, v{vL16}, {srd(sWS)}, s77 offen sc1", "hf")] + ([wrap(77, 4096, 75, 74)] if s < 17 else []))
    for s in range(cfg.nh1): P.extend(hl[s])
    P(f"v_add_f32 v{ST}, v{SR}, v{SR+2}\nv_add_f32 v{ST+1}, v{SR+1}, v{SR+3}")
    xsum(ST)
    finish_stats([ST])
    for s in range(cfg.nh1, cfg.nh2): P.extend(hl[s])
    stamp("LN2 stats")
    def ln2(s):
        return normalize(HR + 4*s, ST, NT + 8*(s & 1), s < 3) + [f"ds_write_b128 v{6 if s < 9 else 7}, {vq(HR+4*s)} offset:{XN + (s % 9)*4096}"]
    for s in range(3): P.extend(ln2(s))
    P("@waitlg_all\ns_barrier")
    def act_reads(i):
        pi, p = steps[i]
        b = AF + (i % 2)*16
        if pi < 2: reg = vL16 if p < 9 else 8
        else: reg = 9 if p < 9 else 10
        return [f"ds_read_b128 {aq(b+4*m)}, v{reg} offset:{((p % 9)*4 + m)*1024}" for m in range(4)]
    P.extend(act_reads(0))
    stamp("FFN start")
    mains = []; fixed = {}; start = []; load = {}
    first_use = {}; last_use = {}
    def put(g, it):
        fixed.setdefault(g, []).append(it); load[g] = load.get(g, 0) + cost(it)
    def place(items, g):
        for it in items:
            c = cost(it)
            while load.get(g, 0) > 0 and load.get(g, 0) + c > cfg.cap + 0.02: g += 1
            put(g, it)
        return g
    bar = {2: "a", 4: "b", 7: "c", 10: "d", 14: "f", 35: "0", 45: "1"}
    if cfg.w2st: bar[17] = "e"
    fl2 = "e" if cfg.w2st else "c"
    if cfg.w2at >= 3: fl2 = None
    for i, (pi, p) in enumerate(steps):
        name, tiles, acc, cin = passes[pi]; nt = len(tiles)
        base = len(mains); start.append(base)
        b = AF + (i % 2)*16
        t_ = stamp_txt(f"@{name}{p}") if i else None
        if t_: fixed.setdefault(base - 1, []).append(t_)
        if i in bar:
            for it in [f"@flexdone{bar[i]}"] + (["@waitvm wrs"] if bar[i] == fl2 else []) + ["@waitlg_all", "s_barrier"]: put(base, it)
            if bar[i] == fl2:
                for it in flag_items(14): put(base, it)
        for t in range(nt):
            w = aq(4*slot[(pi, p, t)])
            first_use[(pi, p, t)] = len(mains); last_use[(pi, p, t)] = len(mains) + 3
            for m in range(4):
                d = vq(acc + (t*4 + m)*4)
                c = d if p > 0 else (vq(cin + 4*t) if cin is not None else "0")
                mains.append(f"{MF} {d}, {w}, {aq(b+4*m)}, {c}")
        if i + 1 < len(steps):
            for k, l in enumerate(act_reads(i+1)): put(base + (2*k if nt > 2 else k) + (1 if i in bar else 0), l)
            pj, pp = steps[i+1]
            nxt = " ".join(aq(4*slot[(pj, pp, t)]) for t in range(len(passes[pj][1])))
            fixed.setdefault(base + 4*nt - 1, []).append(f"@need {nxt} {aq(AF + ((i+1) % 2)*16, 16)}")
            load[base + 4*nt - 1] = load.get(base + 4*nt - 1, 0) + 0.67
    start.append(len(mains))
    S = lambda pi, p: start[pi*18 + p]
    path = {}
    TQ = 176
    tq = [0]
    def epi2(acc, tiles, m, st):
        q = TQ + 4*(tq[0] % 4); tq[0] += 1
        regs = [acc + (t*4 + m)*4 + r for t in tiles for r in range(4)]
        L = [f"v_cvt_pk_bf16_f32 v{q+k}, v{regs[2*k]}, v{regs[2*k+1]}" for k in range(len(regs)//2)]
        L.append(st(q))
        return L
    def pst(m, off, tag): return lambda q: (f"buffer_store_dwordx4 {vq(q)}, v{vPS}, {srd(sWS)}, s{80+m} offen offset:{off} sc1", tag)
    def sst(m, tag): return lambda q: (f"buffer_store_dwordx2 {vq(q,2)}, v{vSS}, {srd(sWS)}, s{80+m} offen sc1", tag)
    RH = [200, 204, 208, 212, 216]; RS = [220, 224, 228, 232, 236]; R0 = [128, 144, 96, 112, 48]
    rl = [(vL2, 1024), (vLS, 0), (vL2, 0), (vL2, 512), (vL2, 1536)]
    FSTEP = 512
    def red_loads(r):
        L = ["s_mov_b32 s84, 0"]
        for j in range(8):
            L.append((f"buffer_load_dwordx2 {vq(R0[r]+2*j,2)}, v{rl[r][0]}, {srd(sWS)}, s84 offen offset:{rl[r][1]} sc1", "rd"))
            if j < 7: L.append("s_add_u32 s84, s84, 9216")
        return L
    def red_sum(r):
        T = RS[r]; L = []
        for j in range(8):
            for d in range(2):
                q = R0[r] + 2*j + d
                L.append(f"v_dot2_f32_bf16 v{T+2*d}, v{q}, s95, v{T+2*d}")
                L.append(f"v_dot2_f32_bf16 v{T+2*d+1}, v{q}, s96, v{T+2*d+1}")
        for d in range(2): L.append(f"v_cvt_pk_bf16_f32 v{T+d}, v{T+2*d}, v{T+2*d+1}")
        return L
    def red_store(r):
        vo, so, oo = [(vO2, 38, 128), (vOS, 39, 0), (vO2, 38, 0), (vO2, 38, 64), (vO2, 38, 192)][r]
        return [(f"buffer_store_dwordx2 {vq(RS[r],2)}, v{vo}, {srd(sOUT)}, s{so} offen offset:{oo}{cfg.outfl}", "out")]
    def add_path(g, c): path[g] = path.get(g, 0) + c
    def signal(tag):
        return [f"@waitvm {tag}"] + ([] if cfg.wflag else ["s_barrier"]) + flag_items(vF3) + [f"v_add_u32 v{vF3}, {FSTEP}, v{vF3}"]
    def check(): return [poll_check(vP3, vPT), f"v_add_u32 v{vP3}, {FSTEP}, v{vP3}"]
    sgap, fC, fD, fE, pC, pD, lead = cfg.tail4
    def stores(pi, acc, off, tag, shared):
        g = S(pi, 0) + 3
        for m in range(4):
            g = place(epi2(acc, [0, 1], m, pst(m, off, tag)), g); add_path(g, cfg.scost); g += sgap
            if shared:
                g = place(epi2(acc, [2], m, sst(m, tag)), g - sgap//2); add_path(g, cfg.scost//2); g += sgap//2
    stores(3, 16, 1024, "p1", True); stores(4, 96, 0, "p2", False); stores(5, 64, 512, "p3", False)
    for g0, tag in [(S(3, 0) + fC, "p1"), (S(4, 0) + fD, "p2"), (S(5, 0) + fE, "p3")]:
        for it in signal(tag): put(g0, it)
    for g0, rounds in [(S(3, 0) + pC, [0, 1]), (S(4, 0) + pD, [2])]:
        if g0 + lead < len(mains) - 40:
            put(g0, poll_pre(vP3, vPT))
            g = place(check(), g0 + lead)
            for r in rounds:
                L = red_loads(r)
                for j in range(8):
                    g = place(L[2*j:2*j+2], g + 2); add_path(g, cfg.lcost if r != 1 else cfg.lcost//2)
            assert g < len(mains) - 2
        else: raise ValueError("late")
    g = 0
    for s in range(cfg.nh2, 18):
        g = place(hl[s], g); add_path(g, 110); g += cfg.hgap
    g = S(2, 11)
    for r, (vh, sh, vb, sb, bo) in enumerate([(vH2, 33, vC2, 38, 128), (vH4, 36, vC4, 39, 0), (vH2, 32, vC2, 38, 0), (vH2, 64, vC2, 38, 64), (vH2, 35, vC2, 38, 192)]):
        g = place([(f"buffer_load_dwordx2 {vq(RH[r],2)}, v{vh}, {srd(sWS)}, s{sh} offen sc1", "rh")], g + 5); add_path(g, 40)
        g = place([(f"buffer_load_dwordx2 {vq(RH[r]+2,2)}, v{vb}, {srd(sB2)}, s{sb} offen offset:{bo}", "rh")], g + 3); add_path(g, 20)
    nl = npf[0]; free = cfg.backlog; g = 0
    while nl < len(cons):
        now = g*cfg.tgap
        if g in path: free = max(free, now) + path.pop(g)
        early = last_use[cons[nl - NR]] + 1 if nl >= NR else 0
        dead = first_use[cons[nl]] - cfg.margin
        if g >= early and (free <= now + cfg.slack or g >= dead):
            L = wload(nl)
            if nl == 162 - cfg.w2lead and fl2: L = [poll_pre(15, vPT)] + L
            if nl == 162 and fl2: L = [poll_check(15, vPT)] + L
            g2 = place(L, g)
            for x in range(g + 1, g2 + 1):
                if x in path: free = max(free, x*cfg.tgap) + path.pop(x)
            assert g2 < first_use[cons[nl]] - 8, (nl, g2, first_use[cons[nl]])
            if VERBOSE and nl % 18 == 0: print(f"   load {nl} at gap {g2}, first use {first_use[cons[nl]]}, backlog {free - g2*cfg.tgap:.0f}")
            g = g2; free = max(free, g*cfg.tgap) + cfg.wcost; nl += 1
        g += 1
    if VERBOSE: print("last weight load at gap", g, "of", len(mains), "pass starts", [S(k, 0) for k in range(6)])
    flex = []
    for lo, hi, mk in [(3, 5, "a"), (5, 8, "b"), (8, 11, "c"), (11, 15, "d"), (15, 18, "f")]:
        for s in range(lo, hi):
            for l in ln2(s): flex.append((0, l))
        flex.append((0, f"@mark{mk}"))
    if cfg.w2st:
        flex.append((0, "@waitvm wr"))
        for z in range(2):
            for l in unit_tr(z, 0, 176): flex.append((0, l.replace("v94", "v11")))
            for l in [f"@need {vq(176,16)}"] + unit_st(2, z, 176): flex.append((0, l))
    for l in set_poll_addr(15, sJF, F2S) + unpack(CB, B1P+8, 8): flex.append((0, l))
    flex.append((0, "@marke"))
    for k, (q, mod, sr, add) in enumerate([(f"s_lshl_b32 s84, s{sW}, 1", 10, 93, 0), (f"s_lshl_b32 s84, s{sW}, 1\ns_add_u32 s84, s84, 1", 10, 93, 0),
                                           (f"s_lshr_b32 s84, s{sW}, 1\ns_add_u32 s84, s84, 8", 10, 93, 0),
                                           (f"s_lshl_b32 s84, s{sW}, 1", 8, 94, 10), (f"s_lshl_b32 s84, s{sW}, 1\ns_add_u32 s84, s84, 1", 8, 94, 10)]):
        flex.append((0, q))
        flex.append((0, f"s_sub_u32 s84, s84, s{sr}\ns_cselect_b32 s85, {mod}, 0"))
        flex.append((0, f"s_add_u32 s84, s84, s85\ns_add_u32 s84, s84, {add}"))
        flex.append((0, "s_lshl_b32 s84, s84, 12"))
        if k == 2: flex.append((0, f"s_and_b32 s85, s{sW}, 1\ns_lshl_b32 s85, s85, 3\ns_add_u32 s84, s84, s85"))
        flex.append((0, f"v_add_u32 v{192+k}, s84, v9"))
    def epi1(acc, pair_tiles, m, wr):
        L = []
        q = TQ + 4*(tq[0] % 4); tq[0] += 1
        regs = [acc + (t*4 + m)*4 + r for t in pair_tiles for r in range(4)]
        for r in regs: L.append(f"v_mul_f32 v{r}, v{r}, |v{r}|")
        for k in range(len(regs)//2): L.append(f"v_cvt_pk_bf16_f32 v{q+k}, v{regs[2*k]}, v{regs[2*k+1]}")
        for k in range(len(regs)//2): L.append(f"v_pk_max_i16 v{q+k}, v{q+k}, 0")
        L.append(wr(q))
        return L
    at = S(1, 0) + 3
    for pr in range(2):
        for m in range(4):
            for l in epi1(ACA, [2*pr, 2*pr+1], m, lambda q: f"ds_write_b128 v{192+pr}, {vq(q)} offset:{m*1024}"): flex.append((at, l))
    for m in range(4):
        for l in epi1(ACA, [4], m, lambda q: f"ds_write_b64 v194, {vq(q,2)} offset:{m*1024}"): flex.append((at, l))
    flex.append((at, "@mark0"))
    at = S(2, 0) + 3
    for pr in range(2):
        for m in range(4):
            for l in epi1(ACB, [2*pr, 2*pr+1], m, lambda q: f"ds_write_b128 v{195+pr}, {vq(q)} offset:{m*1024}"): flex.append((at, l))
    flex.append((at, "@mark1"))
    at = S(3, 6)
    for r in range(5):
        for l in unpack(RS[r], RH[r], 2) + unpack(160, RH[r]+2, 2): flex.append((at, l))
        for d in range(4): flex.append((at, f"v_add_f32 v{RS[r]+d}, v{RS[r]+d}, v{160+d}"))
    if cfg.skip:
        def keep(it):
            t = it[0] if isinstance(it, tuple) else it
            tag = it[1] if isinstance(it, tuple) else None
            if "valu" in cfg.skip and re.match(r"v_lshlrev_b32 v\d+, 16,|v_and_b32 v\d+, s98|v_fma_f32|v_cvt_pk|v_mul_f32|v_pk_max|v_add_f32", t): return False
            if "dsw" in cfg.skip and t.startswith("ds_write"): return False
            if "bar" in cfg.skip and t == "s_barrier": return False
            if "pst" in cfg.skip and tag in ("p1", "p2", "p3"): return False
            if "rd" in cfg.skip and tag in ("rd", "rh"): return False
            if "w" in cfg.skip and tag == "w": return False
            if "chk" in cfg.skip and "L_slow" in t: return False
            return True
        flex = [f for f in flex if keep(f[1])]
        fixed = {g: [x for x in L if keep(x)] for g, L in fixed.items()}
        slow[:] = [x for x in slow if any(x.split(":")[0] in i.text for i in P.ins) or "chk" not in cfg.skip]
    sched(P, mains, fixed, flex, cap=cfg.cap)
    stamp("FFN done")
    for m in range(4): P.extend(epi2(16, [0, 1], m, pst(m, 1536, "p4")))
    P.add(poll_pre(vP3, vPT))
    P.extend(red_sum(0) + red_sum(1))
    P.extend(signal("p4"))
    stamp("F3c set")
    P.extend(check())
    P.extend(red_loads(3))
    P.extend(red_sum(2))
    P.add(poll_pre(vP3, vPT))
    P.extend(red_sum(3))
    P.extend(check())
    stamp("F3c seen")
    P.extend(red_loads(4))
    P.extend(red_store(0) + red_store(1) + red_store(2) + red_store(3))
    P.extend(red_sum(4) + red_store(4))
    P(f"""s_cmp_lg_u32 s2, 0
s_cbranch_scc1 L_noepoch
s_cmp_lg_u32 s{sW}, 0
s_cbranch_scc1 L_noepoch""")
    P(f"v_lshrrev_b32 v6, 5, v{vL}\nv_lshlrev_b32 v6, 12, v6\nv_and_b32 v7, 31, v{vL}\nv_lshl_add_u32 v6, v7, 2, v6\nv_add_u32 v6, {F0S}, v6")
    for k in range(4):
        poll(6, 5)
        P("v_add_u32 v6, 8192, v6")
    P(f"v_mov_b32 v6, 0\nv_mov_b32 v5, s{sTAG}\ns_mov_b64 exec, 1\nbuffer_store_dword v5, v6, {srd(sWS)}, 0 offen\ns_mov_b64 exec, -1\nL_noepoch:")
    if cfg.stamps:
        P("s_waitcnt vmcnt(0)")
        stamp("end")
        P(f"s_lshl_b32 s84, s2, 2\ns_add_u32 s84, s84, s{sW}\ns_lshl_b32 s84, s84, 7\ns_add_u32 s84, s84, {STAMPS}\nv_mov_b32 v6, s84\ns_mov_b64 exec, 1")
        if cfg.diag is not None:
            a, b = cfg.diag
            P(f"s_sub_u32 s84, s{STAMP0+b}, s{STAMP0+a}\ns_lshl_b32 s84, s84, 2\ns_add_u32 s84, s84, 10000\nL_spin:\ns_sleep 8\ns_memrealtime s[100:101]\ns_waitcnt lgkmcnt(0)\ns_sub_u32 s85, s100, s{STAMP0}\ns_cmp_lt_u32 s85, s84\ns_cbranch_scc1 L_spin")
        elif cfg.dbg:
            P(f"v_mov_b32 v6, 0\ns_not_b32 s84, s{STAMP0}\nv_mov_b32 v5, s84\nbuffer_atomic_umax v5, v6, {srd(sR)}, 0 offen")
            for k in range(min(nstamp[0], 15)):
                P(f"v_mov_b32 v{16+k}, s{STAMP0+k}\nbuffer_atomic_umax v{16+k}, v6, {srd(sR)}, 0 offen offset:{4*k+4}")
        else:
          for k in range(nstamp[0]):
            P(f"v_mov_b32 v5, s{STAMP0+k}\nbuffer_store_dword v5, v6, {srd(sWS)}, 0 offen offset:{4*k}")
    P("L_end:\ns_endpgm")
    for x in slow: P(x)
    P("L_code_end:")
    cfg.names = names
    return P

def cost(it):
    t = it[0] if isinstance(it, tuple) else it
    c = 0
    for l in t.split("\n"):
        if l.startswith("@") or l.endswith(":"): continue
        c += 0.67 if l.startswith("s_") else (2 if l.startswith("ds_write_b128") else 1)
    return c

def sched(P, mains, fixed, flex, cap=2, flex2=None):
    Q = [list(flex2 or []), list(flex)]; K = [0, 0]; marks = set()
    def put(it):
        t = it[0] if isinstance(it, tuple) else it
        if t.startswith("@mark"): marks.add(t[5:]); return 0
        if t.startswith("@flexdone"):
            for q in range(2):
                if any((x[1] if not isinstance(x[1], tuple) else x[1][0]) == "@mark" + t[9:] for x in Q[q]):
                    n0 = K[q]
                    while t[9:] not in marks:
                        it2 = Q[q][K[q]][1]; K[q] += 1; put(it2)
                    if K[q] - n0 > 1 and VERBOSE: print("flush", t, K[q] - n0)
            return 0
        P.add(it)
        return cost(t)
    for n, m in enumerate(mains):
        P.add(m)
        c = 0
        for it in fixed.get(n, []): c += put(it)
        for q in range(2):
            while K[q] < len(Q[q]) and Q[q][K[q]][0] <= n and (c == 0 or c + cost(Q[q][K[q]][1]) <= cap + 0.02):
                it = Q[q][K[q]][1]; K[q] += 1
                c += put(it)
    for q in range(2):
        if K[q] < len(Q[q]) and VERBOSE: print("left", len(Q[q]) - K[q])
        while K[q] < len(Q[q]):
            it = Q[q][K[q]][1]; K[q] += 1
            put(it)
VERBOSE = False

import struct
def hexf(x): return hex(struct.unpack("<I", struct.pack("<f", x))[0])

HEADER = open("cdna_kernels/" + NAME + ".s.ref").read().split("; Override launch geometry")[0]
def build(cfg, verbose=False):
    body = finalize(gen(cfg), verbose)
    k = NAME + "_kernel"
    return (HEADER + f"; @launch grid=(256,1,1) block=(256,1,1) lds={LDS_BYTES}\n"
        + f'.amdgcn_target "amdgcn-amd-amdhsa--gfx950"\n.text\n.globl {k}\n.p2align 8\n.type {k},@function\n{k}:\n' + body
        + f""".section .rodata,"a"
.p2align 6
.amdhsa_kernel {k}
  .amdhsa_next_free_vgpr 512
  .amdhsa_next_free_sgpr 102
  .amdhsa_accum_offset 256
  .amdhsa_group_segment_fixed_size 0
  .amdhsa_kernarg_size 88
  .amdhsa_user_sgpr_count 2
  .amdhsa_user_sgpr_kernarg_segment_ptr 1
  .amdhsa_system_sgpr_workgroup_id_x 1
.end_amdhsa_kernel
""")

if __name__ == "__main__":
    cfg = Cfg(); VERBOSE = True
    out = sys.argv[1]
    for a in sys.argv[2:]:
        k, v = a.split("=")
        setattr(cfg, k, eval(v))
    open(out, "w").write(build(cfg, True))
    if cfg.stamps: open(out + ".names", "w").write("|".join(cfg.names))
```

```python
import sys
from ir import *

NAME = "sequential_preLN__sliding_local_dilated__dense_activation_squared_relu__prompt"

F0S, F1G, F1S, F2G, F2S, F3A, F3B, STATS, F3C = 0x10000, 0x20000, 0x48000, 0x50000, 0x78000, 0x80000, 0xA0000, 0xC0000, 0xE0000
WQP, WOP, OP, HP, W1R, W2R, PART, STAMPS = 0x100000, 0x300000, 0x400000, 0x700000, 0xA00000, 0x1000000, 0x1600000, 0x3000000
WS_BYTES = 0x4000000
OOB = 0x40000000
LDS_BYTES = 163840
XB = 71680
R0SCR = 49152
W1SCR = 0
WOB = 0
W2SCR0 = 32768
W2SCR = 98304
XRS = 131072
VXS = 143360
XN, HB = 0, 73728
sX, sWQ, sWO, sW1, sW2, sB1, sB2, sOUT, sWS, sR = 28, 32, 36, 40, 44, 48, 52, 56, 60, 88
sW, sG2, sJ2, sGF, sJF, sTAG = 68, 69, 70, 71, 72, 73
def srd(n): return f"s[{n}:{n+3}]"
def vq(n, k=4): return f"v[{n}:{n+k-1}]"
def aq(n, k=4): return f"a[{n}:{n+k-1}]"
MF = "v_mfma_f32_16x16x32_bf16"
vL, vI, vG, vL16 = 1, 2, 3, 4

class Cfg:
    stamps = False
    nx1 = 12
    p1depth = 4
    npre = 25
    rot = True
    npre1 = 12
    wospan = 10
    f3 = (10, 14)
    pre = (8, 8, 4, 8, 26)
    wo_early = 8
    dmagap = 10
    touch = 0
    p522 = True
    fl3 = 0
    late = (1076, 10, 5, 30, 0)
    norp = ()
    ctouch = 2
    nq1 = 4
    qgap = 8
    poll1 = False
    psleep = 1
    f0both = True
    outfl = ''
    no1 = 12
    ogap = 3.5
    nh2 = 18
    hgap = 5
    p1early = False
    wflag = False
    tail4 = (10, 110, 85, 85, 200, 185, 20)
    scost = 200
    lcost = 80
    skip = ()
    lag = 6
    gq = (0, 0, 0, 0)
    f1s = 11
    tail = (14, 13, 232, 44, 5, 11, 18)
    tailord = 0
    backlog = 0
    tgap = 18.5
    slack = 70
    margin = 205
    wcost = 60
    rawfl = ' nt'
    r0fl = ' nt'
    wrsfl = ' sc1'
    rawat = 1
    ilv = True
    w2at = 1
    w2st = 0
    nh1 = 4
    hold = 0
    w2lead = 16
    nleft = 60
    p1z4 = 1
    nx2 = 6
    dbg = False
    diag = None
    wsbase = 0
    only = None
    cap = 2
    wsc = " sc1"
    nwo1 = 40
    stop = None

def gen(cfg):
    P = Prog()
    sG1, sJ1 = (sGF, sJF) if cfg.p1z4 == 1 else ((sG2, sJ2) if cfg.p1z4 == 0 else (65, 66))
    nstamp = [0]
    names = []
    def stamp_txt(name):
        if cfg.stamps and (cfg.only is None or name.replace(" ", "_") in cfg.only or name == "end") and not (cfg.only is None and name.startswith("@")):
            k = nstamp[0]; nstamp[0] += 1; names.append(name); assert k < 20, name
            return f"{'s_memtime' if cfg.stamps == 2 else 's_memrealtime'} s[100:101]\n@waitlg_all\ns_mov_b32 s{STAMP0+k}, s100"
        return None
    def stamp(name):
        t = stamp_txt(name)
        if t: P(t)
    STAMP0 = 4
    npoll = [0]
    def poll(vaddr, vtmp):
        k = npoll[0]; npoll[0] += 1
        P(f"""s_mov_b32 s97, 0
L_poll{k}:
s_sleep {cfg.psleep}
buffer_load_dword v{vtmp}, v{vaddr}, {srd(sWS)}, 0 offen sc1
s_add_u32 s97, s97, 1
s_waitcnt vmcnt(0)
v_cmp_ne_u32 vcc, s{sTAG}, v{vtmp}
s_cmp_gt_u32 s97, 400000
s_cbranch_scc1 L_pdone{k}
s_cbranch_vccnz L_poll{k}
L_pdone{k}:""")
    slow = []
    def poll_pre(vaddr, vtmp):
        return (f"buffer_load_dword v{vtmp}, v{vaddr}, {srd(sWS)}, 0 offen sc1", "pl")
    def poll_check(vaddr, vtmp):
        k = npoll[0]; npoll[0] += 1
        slow.append(f"""L_slow{k}:
s_mov_b32 s97, 0
L_poll{k}:
buffer_load_dword v{vtmp}, v{vaddr}, {srd(sWS)}, 0 offen sc1
s_add_u32 s97, s97, 1
s_waitcnt vmcnt(0)
v_cmp_ne_u32 vcc, s{sTAG}, v{vtmp}
s_cmp_gt_u32 s97, 400000
s_cbranch_scc1 L_back{k}
s_cbranch_vccnz L_poll{k}
s_branch L_back{k}""")
        return f"v_cmp_ne_u32 vcc, s{sTAG}, v{vtmp}\ns_cbranch_vccnz L_slow{k}\nL_back{k}:"
    def wrap(sr, step, send, sbeg):
        return f"s_add_u32 s{sr}, s{sr}, {step}\ns_cmp_eq_u32 s{sr}, s{send}\ns_cselect_b32 s{sr}, s{sbeg}, s{sr}"
    def set_flag(vaddr):
        P(f"v_mov_b32 v5, s{sTAG}")
        P(f"buffer_store_dword v5, v{vaddr}, {srd(sWS)}, 0 offen sc1", "flag")

    P("""s_cmp_ge_u32 s2, 256
s_cbranch_scc1 L_end
s_load_dwordx16 s[4:19], s[0:1], 0
s_load_dwordx4 s[20:23], s[0:1], 64
s_load_dwordx2 s[24:25], s[0:1], 80""")
    def code_touch(vd, first):
        P(f"""s_getpc_b64 s[92:93]
L_pc{first}:
s_and_b32 s93, s93, 0xffff
s_mov_b32 s94, L_code_end - L_pc{first}
s_mov_b32 s95, 0x00020000
s_lshr_b32 s84, s2, 3
s_lshl_b32 s84, s84, 2
v_lshrrev_b32 v62, 6, v0
v_and_b32 v{vd}, 63, v0
v_lshlrev_b32 v{vd}, 7, v{vd}
v_add3_u32 v{vd}, v{vd}, v62, s84
v_lshlrev_b32 v{vd}, 7, v{vd}""")
        P(f"buffer_load_dword v{vd}, v{vd}, s[92:95], 0 offen", "tch")
    if cfg.ctouch == 2: code_touch(63, 0)
    if cfg.stamps: P("s_memtime s[26:27]" if cfg.stamps == 2 else "s_memrealtime s[26:27]")
    P(f"""v_lshrrev_b32 v5, 6, v0
v_and_b32 v{vL}, 63, v0
v_readfirstlane_b32 s{sW}, v5
v_and_b32 v{vI}, 15, v0
v_lshrrev_b32 v{vG}, 4, v{vL}
v_lshlrev_b32 v{vL16}, 4, v{vL}
s_and_b32 s74, s2, 7
s_lshr_b32 s75, s2, 3
s_lshl_b32 s{sG2}, s74, 2
s_lshr_b32 s76, s75, 3
s_add_u32 s{sG2}, s{sG2}, s76
s_and_b32 s{sJ2}, s75, 7
s_lshr_b32 s{sGF}, s74, 2
s_lshl_b32 s{sGF}, s{sGF}, 4
s_lshr_b32 s76, s75, 1
s_add_u32 s{sGF}, s{sGF}, s76
s_and_b32 s{sJF}, s74, 3
s_lshl_b32 s{sJF}, s{sJF}, 1
s_and_b32 s76, s75, 1
s_add_u32 s{sJF}, s{sJF}, s76
""")
    if cfg.p1z4 == 2:
        P(f"""s_lshr_b32 s65, s74, 1
s_lshl_b32 s65, s65, 3
s_lshr_b32 s76, s75, 2
s_add_u32 s65, s65, s76
s_and_b32 s66, s74, 1
s_lshl_b32 s66, s66, 2
s_and_b32 s76, s75, 3
s_add_u32 s66, s66, s76""")
    P(f"""s_lshl_b32 s77, s{sW}, 5
s_add_u32 s77, s77, s{sG1}
s_mul_i32 s78, s{sJ1}, 144""")
    sRP, sRF, sR2 = 0, 1, 3
    P(f"""s_cmp_lt_u32 s77, 72
s_cbranch_scc0 L_r0_wo
v_mul_u32_u24 v6, 2428, v{vL}
v_lshrrev_b32 v6, 16, v6
v_mul_u32_u24 v7, 27, v6
v_sub_u32 v7, v{vL}, v7
v_mul_u32_u24 v8, 7282, v7
v_lshrrev_b32 v8, 16, v8
v_mul_u32_u24 v9, 9, v8
v_sub_u32 v9, v7, v9
v_mul_u32_u24 v6, 3456, v6
v_mul_u32_u24 v8, 1152, v8
v_lshlrev_b32 v9, 4, v9
v_add3_u32 v5, v6, v8, v9
v_cmp_gt_u32 vcc, 54, v{vL}
s_mul_i32 s80, s77, {8*3456}
s_add_u32 s80, s80, s78
s_add_u32 s81, s80, {6912-1024}
s_add_u32 s82, s81, {6912-1024}
s_add_u32 s83, s82, {6912-1024}
s_branch L_r0_join
L_r0_wo:
v_mul_u32_u24 v6, 7282, v{vL}
v_lshrrev_b32 v6, 16, v6
v_mul_u32_u24 v7, 9, v6
v_sub_u32 v7, v{vL}, v7
v_mul_u32_u24 v6, 1152, v6
v_lshl_add_u32 v5, v7, 4, v6
v_cmp_gt_u32 vcc, 36, v{vL}
s_sub_u32 s79, s77, 72""")
    for G in range(2):
        if G: P("s_add_u32 s79, s79, 36")
        P(f"""s_lshr_b32 s84, s79, 2
s_mul_i32 s84, s84, 36
s_bfe_u32 s85, s79, 0x10001
s_mul_i32 s85, s85, 20
s_add_u32 s84, s84, s85
s_and_b32 s85, s79, 1
s_lshl_b32 s85, s85, 3
s_add_u32 s84, s84, s85
s_add_u32 s85, s84, 4
s_sub_u32 s86, s79, 64
s_mul_i32 s86, s86, 72
s_add_u32 s86, s86, 16
s_add_u32 s87, s86, 36
s_cmp_lt_u32 s79, 64
s_cselect_b32 s84, s84, s86
s_cselect_b32 s85, s85, s87
s_mul_i32 s84, s84, 1152
s_mul_i32 s85, s85, 1152
s_add_u32 s84, s84, s78
s_add_u32 s85, s85, s78
s_sub_u32 s{80+2*G}, s84, {1024*(2*G)}
s_sub_u32 s{81+2*G}, s85, {1024*(2*G+1)}""")
    P(f"""s_cmp_lt_u32 s77, 108
s_cselect_b32 s80, s80, {OOB}
s_cselect_b32 s81, s81, {OOB}
s_cselect_b32 s82, s82, {OOB}
s_cselect_b32 s83, s83, {OOB}
L_r0_join:
s_nop 1
v_mov_b32 v6, {OOB}
v_cndmask_b32 v5, v6, v5, vcc
s_lshl_b32 s84, s{sW}, 12
s_add_u32 s84, s84, {R0SCR}
s_mov_b32 m0, s84
s_waitcnt lgkmcnt(0)""")
    def mksrd(d, p, n):
        P(f"s_mov_b32 s{d}, s{p}\ns_and_b32 s{d+1}, s{p+1}, 0xffff\ns_mov_b32 s{d+2}, {n}\ns_mov_b32 s{d+3}, 0x00020000")
    P(f"""s_cmp_lt_u32 s77, 72
s_cselect_b32 s{sR}, s6, s8
s_cselect_b32 s{sR+1}, s7, s9
s_mov_b32 s85, {576*1152}
s_cselect_b32 s{sR+2}, {576*3456}, s85
s_and_b32 s{sR+1}, s{sR+1}, 0xffff
s_mov_b32 s{sR+3}, 0x00020000""")
    if cfg.stamps: P(("s_memtime" if cfg.stamps == 2 else "s_memrealtime") + " s[38:39]")
    for q in range(4):
        P(f"buffer_load_dwordx4 v5, {srd(sR)}, s{80+q} offen offset:{1024*q}{cfg.r0fl} lds", "r0")
    if cfg.ctouch == 1: code_touch(63, 0)
    mksrd(sX, 4, 2048*1152)
    if cfg.wsbase: P(f"s_add_u32 s24, s24, {cfg.wsbase}\ns_addc_u32 s25, s25, 0")
    P(f"s_load_dword s{sTAG}, s[24:25], 0")
    XR, XH = 160, 232
    P(f"""s_lshl_b32 s84, s{sG1}, 6
s_and_b32 s85, s{sW}, 1
s_lshl_b32 s85, s85, 5
s_add_u32 s85, s85, s84
s_lshr_b32 s86, s{sW}, 1
s_add_u32 s85, s85, s86
s_mul_i32 s85, s85, 1152
v_lshrrev_b32 v8, 3, v{vL}
v_and_b32 v9, 7, v{vL}
v_mul_u32_u24 v6, 2304, v8
v_lshl_add_u32 v6, v9, 4, v6
v_add_u32 v6, s85, v6
v_add_u32 v7, {8*2304}, v6""")
    if cfg.rot:
        P(f"""s_and_b32 s86, s{sG2}, 3
s_mul_i32 s86, s86, 9
s_add_u32 s86, s86, 2
s_lshr_b32 s86, s86, 2
s_add_u32 s86, s86, s{sJ2}
s_sub_u32 s87, s86, 9
s_cmp_ge_u32 s86, 9
s_cselect_b32 s{sRP}, s87, s86
s_lshl_b32 s86, s{sG2}, 1
s_add_u32 s86, s86, s{sJ2}
s_and_b32 s{sR2}, s86, 7
s_and_b32 s86, s{sJF}, 1
s_mul_i32 s86, s86, 9
s_and_b32 s87, s{sGF}, 15
s_add_u32 s86, s86, s87
s_sub_u32 s87, s86, 18
s_cmp_ge_u32 s86, 18
s_cselect_b32 s{sRF}, s87, s86""")
        if cfg.p1z4 == 1: P(f"s_lshr_b32 s{sRP}, s{sRF}, 1")
        if cfg.p1z4 == 2:
            P(f"""s_and_b32 s86, s66, 3
s_mul_i32 s86, s86, 9
s_add_u32 s86, s86, 2
s_lshr_b32 s86, s86, 2
s_and_b32 s87, s65, 7
s_add_u32 s86, s86, s87
s_sub_u32 s87, s86, 9
s_cmp_ge_u32 s86, 9
s_cselect_b32 s{sRP}, s87, s86""")
    else:
        P(f"s_mov_b32 s{sRP}, 0\ns_mov_b32 s{sRF}, 0\ns_mov_b32 s{sR2}, 0")
    P(f"s_lshl_b32 s88, s{sRP}, 7")
    for q in range(1, 9):
        P(f"s_add_u32 s{88+q}, s{87+q}, 128\ns_cmp_eq_u32 s{88+q}, 1152\ns_cselect_b32 s{88+q}, 0, s{88+q}")
    xl = []
    for q in range(9):
        for hh in range(2):
            xl.append(f"buffer_load_dwordx4 {vq(XR + (q*2+hh)*4)}, v{6+hh}, {srd(sX)}, s{88+q} offen")
    for l in xl[:cfg.nx1]: P(l, "x")
    mksrd(sWS, 24, WS_BYTES)
    P(f"""s_lshl_b32 s85, s{sW}, 2
v_add_u32 v10, s85, v{vG}
v_and_b32 v11, 7, v10
v_lshrrev_b32 v12, 3, v10
v_lshl_add_u32 v11, v11, 1, v12
v_add_u32 v11, s84, v11
v_subrev_u32 v11, 16, v11
v_mul_u32_u24 v11, 1152, v11
s_cmp_eq_u32 s{sG1}, 0
s_cselect_b32 s85, {OOB}, 0
s_cselect_b32 s86, 0, -1
v_and_b32 v11, s86, v11
v_or_b32 v11, s85, v11
v_mov_b32 v13, {OOB}
s_lshl_b32 s85, s{sRP}, 3
v_add_u32 v12, s85, v{vI}""")
    for q in range(5):
        P(f"""v_add_u32 v{84+q}, {16*q}, v12
v_subrev_u32 v89, 72, v{84+q}
v_min_u32 v{84+q}, v{84+q}, v89
v_lshl_add_u32 v{84+q}, v{84+q}, 4, v11""")
    P(f"v_cmp_gt_u32 vcc, 8, v{vI}\nv_cndmask_b32 v88, v13, v88, vcc")
    hl = [f"buffer_load_dwordx4 {vq(XH + 4*q)}, v{84+q}, {srd(sX)}, 0 offen" for q in range(5)]
    P(f"""v_bfe_u32 v14, v{vL}, 2, 2
v_and_b32 v15, 3, v{vL}
s_lshl_b32 s84, s{sW}, 12
s_add_u32 s84, s84, {R0SCR}
s_cmp_lt_u32 s77, 72
s_cbranch_scc0 L_r1_wo
v_lshrrev_b32 v16, 1, v14
v_lshlrev_b32 v16, 10, v16
v_and_b32 v17, 1, v14
v_mul_u32_u24 v17, 432, v17
v_add3_u32 v16, v16, v17, s84
v_mul_u32_u24 v17, 36, v{vG}
v_and_b32 v18, 1, v{vG}
v_lshl_add_u32 v17, v18, 2, v17
v_lshl_add_u32 v17, v15, 3, v17
v_add_u32 v32, v16, v17
v_add_u32 v34, 144, v32
v_add_u32 v36, 288, v32
v_min_u32 v17, 2, v15
v_mul_u32_u24 v17, 144, v17
v_mul_u32_u24 v18, 72, v18
v_add3_u32 v38, v16, v17, v18
v_add_u32 v38, 32, v38
s_mov_b32 s85, 2048
s_lshr_b32 s86, s77, 2
s_mul_i32 s87, s{sJ1}, 72
s_add_u32 s86, s86, s87
s_mul_i32 s86, s86, 3584
s_add_u32 s86, s86, {WQP}
s_and_b32 s87, s77, 3
v_mul_u32_u24 v16, {18*3584}, v{vG}
v_lshl_add_u32 v16, v{vI}, 4, v16
s_lshl_b32 s79, s87, 8
s_add_u32 s79, s79, s86
v_add_u32 v40, s79, v16
v_add_u32 v41, 1024, v40
v_add_u32 v42, 2048, v40
v_lshrrev_b32 v16, 1, v15
v_lshl_add_u32 v16, v{vG}, 1, v16
v_mul_u32_u24 v16, {18*3584}, v16
v_and_b32 v17, 1, v15
v_lshl_add_u32 v17, v14, 1, v17
v_lshl_add_u32 v16, v17, 4, v16
s_lshl_b32 s79, s87, 7
s_add_u32 s79, s79, s86
s_add_u32 s79, s79, 3072
v_add_u32 v16, s79, v16
v_cmp_gt_u32 vcc, 32, v{vL}
v_cndmask_b32 v43, v13, v16, vcc
s_branch L_r1_join
L_r1_wo:
v_mul_u32_u24 v16, 144, v14
v_add_u32 v16, s84, v16
v_lshrrev_b32 v17, 1, v{vG}
v_lshlrev_b32 v17, 6, v17
v_and_b32 v18, 1, v{vG}
v_lshl_add_u32 v17, v18, 3, v17
v_lshl_add_u32 v17, v15, 4, v17
v_add_u32 v32, v16, v17
v_and_b32 v17, 1, v15
v_lshl_add_u32 v34, v17, 3, v16
v_add_u32 v34, 128, v34
v_add_u32 v36, 2048, v32
v_add_u32 v38, 2048, v34
s_mov_b32 s85, 1024
v_lshlrev_b32 v16, 10, v{vG}
v_lshl_add_u32 v16, v{vI}, 4, v16
v_cmp_gt_u32 vcc, 8, v{vL}
v_cndmask_b32 v17, v13, v{vL16}, vcc
s_sub_u32 s79, s77, 72""")
    for G in range(2):
        if G: P("s_add_u32 s79, s79, 36")
        P(f"""s_lshr_b32 s86, s79, 2
s_mul_i32 s87, s{sJ1}, 18
s_add_u32 s86, s86, s87
s_mul_i32 s86, s86, 4608
s_add_u32 s86, s86, {WOP}
s_cmp_lt_u32 s77, 108
s_cselect_b32 s86, s86, {OOB}
s_and_b32 s87, s79, 3
s_lshl_b32 s76, s87, 8
s_add_u32 s76, s76, s86
v_add_u32 v{40+2*G}, s76, v16
s_lshl_b32 s76, s87, 7
s_add_u32 s76, s76, s86
s_add_u32 s76, s76, 4096
v_add_u32 v{41+2*G}, s76, v17""")
    P("L_r1_join:\ns_nop 1")
    for t in range(4): P(f"v_add_u32 v{33+2*t}, s85, v{32+2*t}")
    mksrd(sW1, 12, 576*9216); mksrd(sW2, 16, 4608*1152); mksrd(sB1, 14, 9216); mksrd(sB2, 18, 1152); mksrd(sOUT, 20, 2048*1152)
    if cfg.dbg: mksrd(sR, 22, 256)
    if cfg.stamps: P("@waitlg_all\ns_mov_b32 s4, s26"); P("s_mov_b32 s5, s38"); nstamp[0] = 2; names.append("start"); names.append("r0 issue")
    P("s_mov_b32 s99, 0x3f803f80\ns_mov_b32 s98, 0xffff0000")
    if cfg.touch:
        P(f"v_lshlrev_b32 v90, 21, v{vL}\nv_min_u32 v90, {0x2800000}, v90")
        P(f"buffer_load_dword v60, v90, {srd(sWS)}, 0 offen", "tch")
        if cfg.touch > 1:
            P(f"buffer_load_dword v61, v90, {srd(sW1)}, 0 offen", "tch")
            P(f"buffer_load_dword v62, v90, {srd(sW2)}, 0 offen", "tch")
            P(f"buffer_load_dword v63, v90, {srd(sOUT)}, 0 offen", "tch")
    UP = {(1, 0): (32, 33, 34), (1, 1): (35, 36, 37), (2, 0): (24, 25, 34), (2, 1): (26, 27, 37)}
    for z in range(2):
        a1, d1, st = UP[(1, z)]; a2, d2, _ = UP[(2, z)]
        P(f"""s_add_u32 s84, s77, {128*z}
s_mul_i32 s85, s84, 7282
s_lshr_b32 s85, s85, 16
s_mul_i32 s86, s85, 9
s_sub_u32 s86, s84, s86
s_lshl_b32 s76, s86, 7
s_mul_i32 s87, s85, {32*9216}
s_add_u32 s87, s87, s76
s_mul_i32 s75, s{sJ1}, 1152
s_add_u32 s{a1}, s87, s75
s_mul_i32 s87, s85, {32*1152}
s_add_u32 s87, s87, s76
s_mul_i32 s75, s{sJ1}, {576*1152}
s_add_u32 s{a2}, s87, s75
s_lshr_b32 s79, s85, 2
s_lshl_b32 s79, s79, 1
s_and_b32 s75, s85, 1
s_add_u32 s79, s79, s75
s_add_u32 s75, s79, 10
s_bitcmp1_b32 s85, 1
s_cselect_b32 s79, s75, s79
s_lshr_b32 s87, s86, 1
s_mul_i32 s87, s87, 162
s_and_b32 s76, s86, 1
s_lshl_b32 s76, s76, 2
s_add_u32 s87, s87, s76
s_cmp_eq_u32 s86, 8
s_cselect_b32 s87, 8, s87
s_cselect_b32 s{st}, 162, 1
s_lshl_b32 s{st}, s{st}, 10
s_mul_i32 s76, s{sJ1}, 648
s_add_u32 s87, s87, s76
s_mul_i32 s75, s85, 9
s_add_u32 s75, s75, s87
s_lshl_b32 s75, s75, 10
s_add_u32 s{d1}, s75, {W1R}
s_mul_i32 s75, s79, 9
s_add_u32 s75, s75, s87
s_lshl_b32 s75, s75, 10
s_add_u32 s{d2}, s75, {W2R}""")
        if z:
            P("s_cmp_lt_u32 s84, 162")
            for r in (a1, d1, a2, d2): P(f"s_cselect_b32 s{r}, s{r}, {OOB}")
    P(f"""v_mul_u32_u24 v92, 9216, v8
v_lshl_add_u32 v92, v9, 4, v92
v_mul_u32_u24 v93, 1152, v8
v_lshl_add_u32 v93, v9, 4, v93
v_lshl_add_u32 v94, v{vG}, 3, v14
v_lshlrev_b32 v94, 7, v94
v_lshl_add_u32 v94, v15, 4, v94
s_lshl_b32 s84, s{sW}, 13
v_add_u32 v94, s84, v94""")
    def unit_dma(mat, z, scr, vs=None):
        if mat in cfg.norp: return []
        a = UP[(mat, z)][0]; st = 9216 if mat == 1 else 1152
        L = [f"s_lshl_b32 s84, s{sW}, 13\ns_add_u32 s84, s84, {scr + 4096*z}\ns_mov_b32 m0, s84"]
        for q in range(4):
            if q: L.append(f"s_add_u32 s{a}, s{a}, {8*st - 1024}")
            L.append((f"buffer_load_dwordx4 v{vs or 91+mat}, {srd(sW1 if mat == 1 else sW2)}, s{a} offen offset:{1024*q}{cfg.rawfl} lds", "wr"))
        return L
    def unit_tr(z, scr, vt):
        return [f"ds_read_b64_tr_b16 {vq(vt+4*t+2*hi,2)}, v94 offset:{scr + 4096*z + 64*(t>>1) + 8*(t&1) + 512*hi}" for t in range(4) for hi in range(2)]
    def unit_st(mat, z, vt):
        if mat in cfg.norp: return []
        _, d, st = UP[(mat, z)]; L = []
        for t in range(4):
            if t: L.append(f"s_add_u32 s{d}, s{d}, s{st}")
            L.append((f"buffer_store_dwordx4 {vq(vt+4*t)}, v{vL16}, {srd(sWS)}, s{d} offen{cfg.wrsfl}", "wrs"))
        return L
    MS, MP, ME, MO = 96, 100, 104, 108
    P(f"""v_mov_b32 v66, {hexf(-1e30)}
v_lshlrev_b32 v64, 2, v{vG}
v_sub_u32 v64, v64, v{vI}
s_cmp_eq_u32 s{sG1}, 0
s_cselect_b32 s84, 100, 0
v_cmp_gt_u32 s[80:81], 2, v{vG}""")
    for r in range(4):
        P(f"""v_add_u32 v65, {r+7}, v64
v_cmp_gt_u32 vcc, 8, v65
v_add_u32 v65, {r}, v64
v_subrev_u32 v67, s84, v65
v_cndmask_b32 v{MS+r}, v66, 0, vcc
v_cmp_lt_i32 vcc, 8, v65
v_cmp_lt_i32 s[82:83], 8, v67
v_cmp_lt_i32 s[86:87], 0, v67
v_cndmask_b32 v{MP+r}, v66, 0, vcc
s_and_b64 s[86:87], s[86:87], s[80:81]
v_cndmask_b32 v{MO+r}, v66, 0, s[82:83]
v_cndmask_b32 v{ME+r}, v66, 0, s[86:87]""")
    P("@waitvm r0")
    stamp("r0 landed")
    for t in range(4):
        P(f"ds_read_b64_tr_b16 {vq(16+4*t,2)}, v{32+2*t}")
        P(f"ds_read_b64_tr_b16 {vq(18+4*t,2)}, v{33+2*t}")
    for t in range(4):
        P(f"buffer_store_dwordx4 {vq(16+4*t)}, v{40+t}, {srd(sWS)}, 0 offen sc1", "r0s")
    stamp("@r0 st")
    xrest = xl[cfg.nx1:] + hl
    P(f"@waitlg_all\ns_add_u32 s{sTAG}, s{sTAG}, 0x9E3779B9")
    P(f"""s_lshl_b32 s84, s{sJ1}, 12
s_add_u32 s84, s84, {F0S}
s_lshl_b32 s85, s{sG1}, 2
s_add_u32 s85, s85, s84
v_mov_b32 v44, s85
v_cmp_eq_u32 vcc, 0, v0
v_cndmask_b32 v44, v13, v44, vcc
v_and_b32 v45, 31, v{vL}
v_lshl_add_u32 v45, v45, 2, s84
s_lshl_b32 s84, s{sJ2 if cfg.f0both else sJ1}, 12
s_add_u32 s84, s84, {F0S - 128}
v_lshl_add_u32 v5, v{vL}, 2, s84
v_cmp_gt_u32 vcc, 32, v{vL}
v_cndmask_b32 v45, v5, v45, vcc""")
    def stats(groups, acc):
        order = sorted((r, gi, k) for gi, regs in enumerate(groups) for k, r in enumerate(regs))
        L = []
        for r, gi, k in order:
            a = acc + 4*gi + 2*(k & 1)
            c0 = "0" if k < 2 else f"v{a}"; c1 = "0" if k < 2 else f"v{a+1}"
            L.append(f"v_dot2_f32_bf16 v{a}, v{r}, s99, {c0}\nv_dot2_f32_bf16 v{a+1}, v{r}, v{r}, {c1}")
        for gi in range(len(groups)):
            a = acc + 4*gi
            L.append(f"v_add_f32 v{a}, v{a}, v{a+2}\nv_add_f32 v{a+1}, v{a+1}, v{a+3}")
        return L
    def finish_stats(A):
        for t in [f"v_mul_f32 v@0, {hexf(1/576)}, v@0", f"v_mul_f32 v@2, v@0, v@0", f"v_mul_f32 v@1, {hexf(1/576)}, v@1", "v_sub_f32 v@1, v@1, v@2",
                  "v_max_f32 v@1, 0, v@1", f"v_add_f32 v@1, {hexf(1e-5)}, v@1", "v_rsq_f32 v@1, v@1", "v_mul_f32 v@2, v@0, -v@1",
                  "v_mov_b32 v@0, v@1", "v_mov_b32 v@3, v@2"]:
            for a in A: P(t.replace("@0", str(a)).replace("@1", str(a+1)).replace("@2", str(a+2)).replace("@3", str(a+3)))
    def normalize(q, a, t, pk=True):
        L = []
        for d in range(4):
            L.append(f"v_lshlrev_b32 v{t+2*d}, 16, v{q+d}")
            L.append(f"v_and_b32 v{t+2*d+1}, s98, v{q+d}")
        if pk:
            for d in range(4): L.append(f"v_pk_fma_f32 {vq(t+2*d,2)}, {vq(t+2*d,2)}, {vq(a,2)}, {vq(a+2,2)}")
        else:
            for d in range(8): L.append(f"v_fma_f32 v{t+d}, v{t+d}, v{a}, v{a+2}")
        for d in range(4): L.append(f"v_cvt_pk_bf16_f32 v{q+d}, v{t+2*d}, v{t+2*d+1}")
        return L
    ST = 144; NT = 112
    st = stats([[XR + (q*2+hh)*4 + d for q in range(9) for d in range(4)] for hh in range(2)] + [[XH + k for k in range(20)]], ST)
    raw = {1: [], 2: []}
    for z in range(2):
        raw[1] += unit_dma(1, z, W1SCR); raw[2] += unit_dma(2, z, W2SCR0)
    raw[1].append(f"s_mul_i32 s84, s{sJF}, 1152\nv_lshlrev_b32 v5, 7, v{vI}")
    raw[1].append((f"buffer_load_dword v252, v5, {srd(sB1)}, s84 offen", "wr"))
    raw[1].append((f"buffer_load_dword v253, v5, {srd(sB2)}, 0 offen", "wr"))
    k = 0
    for n, l in enumerate(xrest + [None]):
        if n == cfg.nx2:
            stamp("@pre-ack")
            P("@waitvm r0s")
            stamp("@acked")
            P("s_barrier")
            set_flag(44)
            stamp("F0 set")
        if l is None: break
        P(l, "x")
        if cfg.nx1 + n + 1 - k//4 > cfg.lag: P.extend(st[k:k+4]); k += 4
    if cfg.rawat == 0: P.extend(raw[1])
    P.extend(st[k:])
    if cfg.rawat == 1: P.extend(raw[1])
    if cfg.w2at == 4: P.extend(raw[2])
    for mod in ["quad_perm:[1,0,3,2]", "quad_perm:[2,3,0,1]", "row_half_mirror"]:
        for gi in range(3):
            for k in range(2):
                a = ST + 4*gi + k
                P(f"v_add_f32_dpp v{a}, v{a}, v{a} {mod} row_mask:0xf bank_mask:0xf")
    for k in range(2): P(f"v_add_f32_dpp v{ST+8+k}, v{ST+8+k}, v{ST+8+k} row_mirror row_mask:0xf bank_mask:0xf")
    finish_stats([ST, ST+4, ST+8])
    stamp("LN1 stats")
    P(f"""v_lshrrev_b32 v156, 2, v9
v_mul_u32_u24 v156, 5120, v156
v_and_b32 v157, 3, v9
v_lshl_add_u32 v156, v157, 8, v156
v_xor_b32 v157, v8, v9
v_lshl_add_u32 v156, v157, 4, v156
s_lshl_b32 s84, s{sW}, 10
s_add_u32 s84, s84, {XB}
v_add_u32 v156, s84, v156
v_add_u32 v157, {10240*5}, v156
v_lshrrev_b32 v158, 2, v{vI}
v_mul_u32_u24 v158, 5120, v158
v_lshl_add_u32 v158, v15, 8, v158
v_xor_b32 v159, v10, v9
v_lshl_add_u32 v158, v159, 4, v158
v_add_u32 v158, {XB + 4096}, v158
v_add_u32 v159, {20480*3}, v158""")
    ntc = [0]
    def ln1_batch(b):
        L = []
        for q in range(2*b, min(2*b+2, 9)):
            for hh in range(2):
                r = XR + (q*2+hh)*4
                L += normalize(r, ST + 4*hh, NT + 8*(ntc[0] & 1), b < 2); ntc[0] += 1
                L.append(f"ds_write_b128 v{156 if q < 5 else 157}, {vq(r)} offset:{10240*(q % 5) + 128*hh}")
        L += normalize(XH + 4*b, ST + 8, NT + 8*(ntc[0] & 1), b < 2); ntc[0] += 1
        wr = f"ds_write_b128 v{158 if b < 3 else 159}, {vq(XH+4*b)} offset:{20480*(b % 3)}"
        if b == 4: wr = "s_mov_b32 exec_lo, 0x00ff00ff\ns_mov_b32 exec_hi, 0x00ff00ff\n" + wr + "\ns_mov_b64 exec, -1"
        L.append(wr)
        return L
    if cfg.rawat != 4: P.extend(ln1_batch(0))
    P(f"""s_lshl_b32 s74, s{sJ1}, 2
s_add_u32 s74, s74, s{sW}
s_mul_i32 s74, s74, {18*3584}
s_add_u32 s74, s74, {WQP}
s_add_u32 s75, s74, {18*3584}
s_mul_i32 s78, s{sRP}, {2*3584}
s_add_u32 s78, s78, s74
v_lshlrev_b32 v7, 7, v{vG}
v_lshl_add_u32 v7, v{vI}, 4, v7
v_cmp_gt_u32 vcc, 6, v{vI}
v_cndmask_b32 v7, v13, v7, vcc
v_xor_b32 v8, v{vI}, v{vG}
v_lshlrev_b32 v8, 4, v8
v_lshl_add_u32 v8, v{vG}, 8, v8
v_add_u32 v8, {XB}, v8
v_xor_b32 v9, 64, v8
v_add_u32 v10, 46080, v8
v_add_u32 v11, 46080, v9""")
    stamp("@LN1 b0")
    if cfg.poll1: P(f"s_waitcnt vmcnt(0)\ns_cmp_lg_u32 s{sW}, 0\ns_cbranch_scc1 L_pdone{npoll[0]}")
    poll(45, 5)
    if cfg.poll1: P("s_barrier")
    stamp("F0 seen")
    QA, KA, EA, VA = 16, 32, 52, 72
    WR = 64
    D = cfg.p1depth
    def wq_loads(s):
        b = WR + (s % D)*16
        L = [(f"buffer_load_dwordx4 {aq(b+4*t)}, v{vL16}, {srd(sWS)}, s78 offen offset:{1024*t}{cfg.wsc}", "wq") for t in range(3)]
        L.append((f"buffer_load_dwordx4 {aq(b+12)}, v7, {srd(sWS)}, s78 offen offset:3072{cfg.wsc}", "wq"))
        if s < 17: L.append(wrap(78, 3584, 75, 74))
        return L
    def x_reads(s):
        b = (s % 2)*20
        reg = (8 if s % 2 == 0 else 9) + (2 if s >= 9 else 0)
        return [f"ds_read_b128 {aq(b+4*m)}, v{reg} offset:{((s % 9)*5 + m)*1024}" for m in range(5)]
    def join(L):
        out = []; pend = ""
        for x in L:
            if isinstance(x, tuple): out.append((pend + x[0], x[1])); pend = ""
            else: pend += x + "\n"
        if pend: out.append(pend.strip())
        return out
    if cfg.rawat == 4:
        mem = join(sum([wq_loads(s) for s in range(D-1)], []))
        tail_ = [mem.pop()] if not isinstance(mem[-1], tuple) else []
        mem += tail_ + join(raw[1]) + (join(raw[2]) if cfg.w2at == 6 else [])
        work = ln1_batch(0) + ln1_batch(1)
        for l in mem[:cfg.nq1]: P.add(l)
        mem = mem[cfg.nq1:]
        for n, l in enumerate(work):
            P.add(l)
            if n % cfg.qgap == cfg.qgap - 1 and mem: P.add(mem.pop(0))
        for l in mem: P.add(l)
    else:
        for s in range(D-1): P.extend(wq_loads(s))
        if cfg.rawat == 2: P.extend(raw[1])
        P.extend(ln1_batch(1))
    P("@waitlg_all\ns_barrier")
    P.extend(x_reads(0))
    stamp("GEMM1 start")
    def lines(t): return t.split("\n")
    def own_flag(vd, base, sa, sha, sb, shb):
        return [f"s_lshl_b32 s86, s{sa}, {sha}", f"s_lshl_b32 s87, s{sb}, {shb}", "s_add_u32 s86, s86, s87", f"s_add_u32 s86, s86, {base}",
                f"v_mov_b32 v{vd}, s86", f"v_cmp_eq_u32 vcc, 0, v0\nv_cndmask_b32 v{vd}, v13, v{vd}, vcc"]
    def grp_poll_addr(vd, sg, base):
        return lines(f"""s_lshl_b32 s86, s{sg}, 12
s_add_u32 s86, s86, {base}
v_and_b32 v{vd}, 7, v{vL}
v_lshl_add_u32 v{vd}, v{vd}, 4, s86""")
    def set_poll_addr(vd, sj, base):
        return lines(f"""s_lshl_b32 s86, s{sj}, 12
s_add_u32 s86, s86, {base}
v_and_b32 v{vd}, 31, v{vL}
v_lshl_add_u32 v{vd}, v{vd}, 2, s86""")
    def flag_items(vaddr):
        return [f"v_mov_b32 v5, s{sTAG}", (f"buffer_store_dword v5, v{vaddr}, {srd(sWS)}, 0 offen sc1", "flag")]
    def unpack(dst, src, n):
        return sum([[f"v_lshlrev_b32 v{dst+2*k}, 16, v{src+k}", f"v_and_b32 v{dst+2*k+1}, s98, v{src+k}"] for k in range(n)], [])
    QO, KO, VO, XO = 112, 128, 148, 160
    flex = []
    T0 = 128
    for l in ln1_batch(2): flex.append((0, l))
    flex.append((0, "@mark0"))
    flex2 = []
    q1, q2, q3, q4 = cfg.gq
    if cfg.rawat == 3:
        for k, l in enumerate(join(raw[1])): flex2.append((int(19*q1) + 2*k, l))
    def repack(mat, scr, g0):
        flex2.append((g0, "@waitvm wr"))
        for z in range(2):
            for l in unit_tr(z, scr, T0): flex2.append((g0 + 24*z, l))
            for k, l in enumerate(join(unit_st(mat, z, T0))): flex2.append((g0 + 24*z + 8 + 4*k, l))
    if cfg.w2at == 3 and q3 < q2:
        for k, l in enumerate(join(raw[2])): flex2.append((int(19*q3) + 2*k, l))
    repack(1, W1SCR, int(19*q2))
    if cfg.w2at >= 3:
        if q3 >= q2 and cfg.w2at == 3:
            for k, l in enumerate(join(raw[2])): flex2.append((int(19*q3) + 2*k, l))
        repack(2, W2SCR0, int(19*q4))
    flex2.append((0, "@markb"))
    for l in ln1_batch(3) + own_flag(95, F1S, sJ1, 12, sG1, 2): flex.append((0, l))
    flex.append((0, "@mark1"))
    for l in ln1_batch(4): flex.append((0, l))
    flex.append((0, "@mark2"))
    pre = lines(f"""s_lshl_b32 s84, s{sW}, 10
s_add_u32 s84, s84, {VXS}
v_lshl_add_u32 v234, v{vI}, 1, s84
v_add_u32 v235, 512, v234
v_cmp_eq_u32 vcc, 1, v{vG}@@v_cndmask_b32 v234, v235, v234, vcc
v_lshl_add_u32 v235, v{vL}, 2, s84
v_min_u32 v236, 2, v{vI}
v_mul_u32_u24 v236, 160, v236
v_lshl_add_u32 v236, v{vG}, 3, v236
v_add_u32 v236, s84, v236
v_mov_b32 v237, s99
s_mul_i32 s84, s{sG1}, 73728
s_add_u32 s84, s84, {OP}
s_lshl_b32 s85, s{sJ1}, 1
s_lshr_b32 s86, s{sW}, 1
s_add_u32 s85, s85, s86
s_lshl_b32 s85, s85, 12
s_and_b32 s86, s{sW}, 1
s_lshl_b32 s86, s86, 9
s_add_u32 s85, s85, s86
s_add_u32 s95, s85, s84
s_lshl_b32 s87, s{sJ1}, 2
s_add_u32 s87, s87, s{sW}
s_lshl_b32 s87, s87, 8
s_add_u32 s87, s87, 65536
s_add_u32 s96, s87, s84
v_and_b32 v232, 1, v{vG}
v_lshlrev_b32 v232, 10, v232
v_lshrrev_b32 v233, 1, v{vG}
v_lshl_add_u32 v232, v233, 8, v232
v_lshl_add_u32 v232, v{vI}, 4, v232
v_lshlrev_b32 v233, 2, v{vL}
s_mul_i32 s79, s{sJ2}, 82944
s_add_u32 s79, s79, {WOP}
s_lshl_b32 s84, s{sW}, 1
s_add_u32 s85, s84, s{sR2}
s_and_b32 s86, s85, 7
s_mul_i32 s86, s86, 9216
s_add_u32 s80, s86, s79
s_add_u32 s85, s85, 1
s_and_b32 s86, s85, 7
s_mul_i32 s86, s86, 9216
s_add_u32 s81, s86, s79
s_lshl_b32 s84, s84, 10
s_add_u32 s84, s84, 73728
s_add_u32 s82, s84, s79
s_mov_b32 s83, s84
s_mul_i32 s76, s{sW}, 18432
s_lshl_b32 s84, s{sG2}, 6
s_and_b32 s85, s{sW}, 1
s_lshl_b32 s85, s85, 5
s_add_u32 s85, s85, s84
s_lshr_b32 s86, s{sW}, 1
s_add_u32 s85, s85, s86
s_mul_i32 s85, s85, 1152
s_mul_i32 s86, s{sJ2}, 144
s_add_u32 s79, s85, s86
v_mul_u32_u24 v238, 7282, v{vL}
v_lshrrev_b32 v238, 16, v238
v_mul_u32_u24 v239, 9, v238
v_sub_u32 v239, v{vL}, v239
v_mul_u32_u24 v238, 2304, v238
v_lshl_add_u32 v238, v239, 4, v238
v_cmp_gt_u32 vcc, 54, v{vL}@@v_cndmask_b32 v238, v13, v238, vcc
s_mul_i32 s77, s{sW}, 3072
s_add_u32 s77, s77, {XRS}
s_mov_b32 s94, {hexf((18 ** -0.5) * 1.4426950408889634)}""") + set_poll_addr(15, sJF, F1S)
    pre += [f"v_mov_b32 v{KO+4*m+3}, 0" for m in range(5)] + [f"v_mov_b32 v{QO+4*m+3}, 0" for m in range(4)]
    for l in pre: flex.append((0, l.replace("@@", "\n")))
    mains = []; fixed = {}
    for s in range(18):
        wb = WR + (s % D)*16; xb = (s % 2)*20
        base = len(mains)
        for m in range(5):
            x = aq(xb + 4*m)
            def acc(a): return (vq(a), "0" if s == 0 else vq(a))
            d, c = acc(KA + 4*m); mains.append(f"{MF} {d}, {aq(wb+4)}, {x}, {c}")
            d, c = acc(VA + 4*m); mains.append(f"{MF} {d}, {x}, {aq(wb+8)}, {c}")
            d, c = acc(EA + 4*m); mains.append(f"{MF} {d}, {aq(wb+12)}, {x}, {c}")
            if m < 4:
                d, c = acc(QA + 4*m); mains.append(f"{MF} {d}, {aq(wb)}, {x}, {c}")
        t_ = stamp_txt(f"@q{s}") if s else None
        if t_: fixed.setdefault(base - 1, []).append(t_)
        if s == 7: fixed.setdefault(base, []).extend(["@flexdone0", "@waitlg_all", "s_barrier"])
        fb_ = ["@flexdoneb", "@waitvm wrs"]
        if s == 11: fixed.setdefault(base, []).extend(["@flexdone1"] + (fb_ if cfg.f1s == 11 else []) + ["@waitlg_all", "s_barrier"] + (flag_items(95) if cfg.f1s == 11 else []))
        if s == 15: fixed.setdefault(base, []).extend(["@flexdone2"] + (fb_ if cfg.f1s == 15 else []) + ["@waitlg_all", "s_barrier"] + (flag_items(95) if cfg.f1s == 15 else []))
        if s + 1 < 18:
            for k, l in enumerate(x_reads(s+1)): fixed.setdefault(base + 1 + 2*k, []).append(l)
            fixed.setdefault(base + 18, []).append(f"@need {aq(WR + ((s+1) % D)*16, 16)} {aq(((s+1) % 2)*20, 20)}")
        if s + D - 1 < 18:
            for k, l in enumerate(wq_loads(s + D - 1)): fixed.setdefault(base + [2, 6, 10, 12, 14][k], []).append(l)
    dma = []
    for seg in range(2):
        for k in range(9):
            it = ""
            if k % 4 == 0:
                it = f"s_add_u32 s84, s76, {seg*9216 + 1024*k}\ns_mov_b32 m0, s84\n"
                if k: it += f"s_add_u32 s{80+seg}, s{80+seg}, 4096\n"
            dma.append((it + f"buffer_load_dwordx4 v{vL16}, {srd(sWS)}, s{80+seg} offen offset:{1024*(k % 4)} sc1 lds", "wo"))
    tail3 = [(("s_mov_b32 m0, s83\n" if k == 0 else "") + f"buffer_load_dwordx4 v{vL16}, {srd(sWS)}, s82 offen offset:{1024*k} sc1 lds", "wo") for k in range(3)]
    xres3 = [(("s_mov_b32 m0, s77\n" if k == 0 else f"s_add_u32 s79, s79, {13824 - 1024}\n") + f"buffer_load_dwordx4 v238, {srd(sX)}, s79 offen offset:{1024*k} lds", "wo") for k in range(3)]
    ne = cfg.wo_early
    if not cfg.f0both:
        for l in set_poll_addr(240, sJ2, F0S): flex.append((0, l))
        flex.append((0, poll_pre(240, 241)))
        flex.append((19*15, poll_check(240, 241)))
    for k in range(ne): flex.append((max(19*(18 - (ne*5 + 18)//19) + 5*k, 19*cfg.f1s + 1), dma[k]))
    sched(P, mains, fixed, flex, flex2=flex2)
    stamp("GEMM1 done")
    P("s_barrier")
    A = Prog()
    A(f"s_mov_b32 exec_hi, 0xffff\nds_write_b32 v235, v237 offset:320\ns_mov_b32 exec_hi, -1")
    for m in range(5):
        r = QO + 4*m + 2 if m < 4 else 172
        A(f"v_cvt_pk_bf16_f32 v{r}, v{EA+4*m}, v{EA+4*m+1}")
        A(f"ds_write_b16 v234, v{r} offset:{32*m}\nds_write_b16_d16_hi v234, v{r} offset:{160+32*m}")
    SA = 176
    prev = [4, 0, 4, 2]; pmask = [ME, MP, MO, MP]
    def kop(m): A(f"v_cvt_pk_bf16_f32 v{KO+4*m}, v{KA+4*m}, v{KA+4*m+1}\nv_cvt_pk_bf16_f32 v{KO+4*m+1}, v{KA+4*m+2}, v{KA+4*m+3}\nv_cvt_pk_bf16_f32 v{KO+4*m+2}, v{EA+4*m+2}, v{EA+4*m+3}")
    def qop(m): A(f"v_cvt_pk_bf16_f32 v{QO+4*m}, v{QA+4*m}, v{QA+4*m+1}\nv_cvt_pk_bf16_f32 v{QO+4*m+1}, v{QA+4*m+2}, v{QA+4*m+3}")
    kop(4)
    for m in range(4):
        qop(m); kop(m)
        if m: A(f"{MF} {vq(SA+8*(m-1)+4)}, {vq(KO+4*(m-1))}, {vq(QO+4*(m-1))}, {vq(MS)}")
        A(f"{MF} {vq(SA+8*m)}, {vq(KO+4*prev[m])}, {vq(QO+4*m)}, {vq(pmask[m])}")
    vorder = [4, 0, 1, 4, 2, 3]
    for k, m in enumerate(vorder):
        A(f"v_cvt_pk_bf16_f32 v{VO+2*k}, v{VA+4*m}, v{VA+4*m+1}\nv_cvt_pk_bf16_f32 v{VO+2*k+1}, v{VA+4*m+2}, v{VA+4*m+3}")
        if k == 0: A(f"{MF} {vq(SA+28)}, {vq(KO+12)}, {vq(QO+12)}, {vq(MS)}")
    A("@waitlg_all")
    for k, m in enumerate(vorder): A(f"ds_read_b64 {vq(XO+2*k,2)}, v236 offset:{32*m}")
    MX = 208
    for m in range(4):
        s = SA + 8*m
        A(f"v_max3_f32 v{MX+m}, v{s}, v{s+1}, v{s+2}\nv_max3_f32 v{MX+4+m}, v{s+3}, v{s+4}, v{s+5}")
    for m in range(4):
        s = SA + 8*m
        A(f"v_max3_f32 v{MX+m}, v{MX+m}, v{s+6}, v{s+7}")
    for m in range(4): A(f"v_max_f32 v{MX+m}, v{MX+m}, v{MX+4+m}")
    for sw in ["v_permlane16_swap_b32", "v_permlane32_swap_b32"]:
        for m in range(4): A(f"v_mov_b32 v{MX+4+m}, v{MX+m}")
        for m in range(4): A(f"{sw} v{MX+m}, v{MX+4+m}")
        for m in range(4): A(f"v_max_f32 v{MX+m}, v{MX+m}, v{MX+4+m}")
    for m in range(4): A(f"v_mul_f32 v{MX+m}, s94, v{MX+m}")
    PO = 216; OA = 16; OX = 32
    for m in range(4):
        s = SA + 8*m
        for k in range(8): A(f"v_fma_f32 v{s+k}, v{s+k}, s94, -v{MX+m}")
        if m:
            o = [0, 2, 6, 8][m-1]
            A(f"{MF} {vq(OX+4*(m-1))}, {vq(XO+o)}, {vq(PO+4*(m-1))}, 0")
            A(f"{MF} {vq(OA+4*(m-1))}, {vq(VO+o)}, {vq(PO+4*(m-1))}, 0")
        for k in range(8): A(f"v_exp_f32 v{s+k}, v{s+k}")
        for k in range(4): A(f"v_cvt_pk_bf16_f32 v{PO+4*m+k}, v{s+2*k}, v{s+2*k+1}")
    A(f"v_rcp_f32 v{MX}, v{OX+2}\nv_rcp_f32 v{MX+1}, v{OX+6}")
    A(f"{MF} {vq(OX+12)}, {vq(XO+8)}, {vq(PO+12)}, 0\n{MF} {vq(OA+12)}, {vq(VO+8)}, {vq(PO+12)}, 0")
    OP0 = 112
    for p in range(2):
        if p: A(f"v_rcp_f32 v{MX+2}, v{OX+10}\nv_rcp_f32 v{MX+3}, v{OX+14}")
        for m in (2*p, 2*p+1):
            for r in range(4): A(f"v_mul_f32 v{OA+4*m+r}, v{OA+4*m+r}, v{MX+m}")
            A(f"v_cvt_pk_bf16_f32 v{OP0+2*m}, v{OA+4*m}, v{OA+4*m+1}\nv_cvt_pk_bf16_f32 v{OP0+2*m+1}, v{OA+4*m+2}, v{OA+4*m+3}")
        for m in (2*p, 2*p+1):
            for r in range(2): A(f"v_mul_f32 v{OX+4*m+r}, v{OX+4*m+r}, v{MX+m}")
        b = OP0 + 4*p
        A(f"v_permlane16_swap_b32 v{b}, v{b+2}\nv_permlane16_swap_b32 v{b+1}, v{b+3}")
        A(f"buffer_store_dwordx4 {vq(OP0+4*p)}, v232, {srd(sWS)}, s95 offen offset:{2048*p} sc1", "o")
        for m in (2*p, 2*p+1): A(f"v_cvt_pk_bf16_f32 v{OP0+8+m}, v{OX+4*m}, v{OX+4*m+1}")
    A(f"v_permlane16_swap_b32 v{OP0+8}, v{OP0+9}\nv_permlane16_swap_b32 v{OP0+10}, v{OP0+11}")
    A(f"v_permlane32_swap_b32 v{OP0+8}, v{OP0+10}")
    A(f"buffer_store_dword v{OP0+8}, v233, {srd(sWS)}, s96 offen sc1", "o")
    late = dma[ne:] + tail3 + xres3 + [poll_pre(15, 14)]
    if cfg.w2at == 0:
        w2l = []
        for z in range(2):
            u = unit_dma(2, z, W2SCR)
            w2l.append((u[0] + "\n" + u[1][0], "wr"))
            for q in range(1, 4): w2l.append((u[2*q] + "\n" + u[2*q+1][0], "wr"))
        assert ne in (0, 4, 8, 9, 13)
        late = w2l + late
    k = 0
    for n, ins in enumerate(A.ins):
        P.add(ins)
        if n >= 3 and (n - 3) % cfg.dmagap == 0 and k < len(late): P.add(late[k]); k += 1
    assert k == len(late)
    stamp("attn done")
    NR = 56; AF = 224
    ACA, ACB = 16, 96
    CA, CB = 96, 160
    passes = [("A", [0, 1, 2, 3, 8], ACA, CA), ("B", [4, 5, 6, 7], ACB, CB), ("C", [4, 5, 8], 16, None), ("D", [0, 1], 96, None), ("E", [2, 3], 64, None), ("F", [6, 7], 16, None)]
    if cfg.p522: passes = passes[:2] + [("C", [4, 5, 8, 0, 1], 16, None), ("E", [2, 3], 96, None), ("F", [6, 7], 128, None)]
    steps = [(pi, p) for pi in range(len(passes)) for p in range(18)]
    cons = [(pi, p, t) for pi, p in steps for t in range(len(passes[pi][1]))]
    slot = {f: n % NR for n, f in enumerate(cons)}
    def wload(n):
        pi, p, t = cons[n]; L = []
        if t == 0 and n > 0:
            if pi == 1 and p == 0:
                L.append(f"s_mul_i32 s92, s{sRF}, 9216\ns_add_u32 s92, s92, s90")
            elif pi >= 2 and p in (0, 10):
                beg = 0 if p == 0 else 10*9216; end = (10 if p == 0 else 18)*9216
                L.append(f"s_add_u32 s90, s89, {beg}\ns_add_u32 s91, s89, {end}")
                L.append(f"s_mul_i32 s92, s{93 if p == 0 else 94}, 9216\ns_add_u32 s92, s92, s90")
            else: L.append(wrap(92, 9216, 91, 90))
        tile = passes[pi][1][t]
        L.append((f"buffer_load_dwordx4 {aq(4*(n % NR))}, v{[vL16, 12, 255][tile >> 2]}, {srd(sWS)}, s92 offen offset:{1024*(tile % 4)}{cfg.wsc}", "w"))
        return L
    npf = [0]
    def prefetch(n):
        L = []
        for k in range(n): L += wload(npf[0]); npf[0] += 1
        return L
    P(f"""s_lshl_b32 s88, s{sJF}, 2
s_add_u32 s88, s88, s{sW}
s_mul_i32 s88, s88, {162*1024}
s_add_u32 s89, s88, {W2R}
s_add_u32 s88, s88, {W1R}
s_mul_i32 s92, s{sRF}, 9216
s_add_u32 s92, s92, s88
s_mov_b32 s90, s88
s_add_u32 s91, s88, {162*1024}
v_add_u32 v12, 4096, v{vL16}
v_add_u32 v255, 8192, v{vL16}""")
    P(poll_check(15, 14))
    pa, pb, pc, pd, pe = cfg.pre
    P.extend(prefetch(pa))
    P.extend(own_flag(14, F1G, sG1, 12, sJ1, 4)); P.extend(grp_poll_addr(15, sG2, F1G))
    HA = 16; HQ = 36; OF = 48; WB = 120; NW = 28
    P(f"""v_add_u32 v10, 41472, v{vL16}
v_and_b32 v11, 7, v{vI}
v_lshlrev_b32 v11, 4, v11
v_lshl_add_u32 v11, v{vG}, 7, v11
v_add_u32 v9, 41472, v11
v_mul_u32_u24 v7, 43, v{vI}
v_lshrrev_b32 v7, 8, v7
v_mul_u32_u24 v7, 160, v7
v_mul_u32_u24 v6, 144, v{vI}
v_add3_u32 v6, v6, v7, s77
v_and_b32 v7, 1, v{vG}
v_lshl_add_u32 v7, v7, 3, v6
v_lshl_add_u32 v6, v{vG}, 4, v6""")
    P("@waitvm o\ns_barrier")
    set_flag(14)
    stamp("F1 set")
    if cfg.p1early: P.add(poll_pre(15, 46))
    if cfg.w2at == 1:
        for z in range(2): P.extend(unit_dma(2, z, W2SCR))
    P.extend(prefetch(pb))
    if not cfg.p1early: P.add(poll_pre(15, 46))
    P(f"ds_read_b128 {vq(HQ)}, v6\nds_read_b128 {vq(HQ+4)}, v6 offset:64\nds_read_b64 {vq(HQ+8,2)}, v7 offset:128")
    def wo_reg(n): return vq(WB + 4*(n % NW))
    wor = []
    for s in range(18):
        for t in range(5):
            reg = (vL16 if s < 9 else 10) if t < 4 else (11 if s < 9 else 9)
            wor.append(f"ds_read_b128 {wo_reg(s*5+t)}, v{reg} offset:{WOB + (s % 9)*4608 + 1024*t}")
    P.extend(wor[:NW - 1])
    P(f"""s_mul_i32 s84, s{sG2}, 73728
s_lshl_b32 s85, s{sW}, 10
s_add_u32 s84, s84, s85
s_add_u32 s74, s84, {OP}
s_add_u32 s75, s74, 65536
s_mul_i32 s79, s{sW}, {1024 - 64}
s_sub_u32 s79, s75, s79
v_lshlrev_b32 v232, 10, v{vG}
v_lshl_add_u32 v232, v{vI}, 2, v232
s_lshl_b32 s78, s{sR2}, 13
s_add_u32 s78, s78, s74
s_add_u32 s84, s84, {HP}
s_mul_i32 s85, s{sJ2}, 9
v_add_u32 v6, s85, v{vG}
v_lshrrev_b32 v7, 2, v6
v_lshlrev_b32 v7, 12, v7
v_and_b32 v6, 3, v6
v_lshl_add_u32 v6, v6, 8, v7
v_lshl_add_u32 v6, v{vI}, 4, v6
v_add_u32 v6, s84, v6
s_add_u32 s85, s85, 8
s_lshr_b32 s86, s85, 2
s_lshl_b32 s86, s86, 12
s_and_b32 s85, s85, 3
s_lshl_b32 s85, s85, 8
s_add_u32 s85, s85, s86
s_add_u32 s85, s85, s84
v_lshlrev_b32 v7, 4, v{vI}
v_lshl_add_u32 v7, v{vG}, 3, v7
v_add_u32 v7, s85, v7
v_cmp_gt_u32 s[82:83], 2, v{vG}
v_add_u32 v8, 4096, v6
v_add_u32 v47, {W2SCR}, v94
v_mov_b32 v235, v93
v_cndmask_b32 v7, v13, v7, s[82:83]
s_lshl_b32 s84, s{sG2}, 2
s_add_u32 s84, s84, s{sW}
s_lshl_b32 s84, s84, 3
s_add_u32 s84, s84, s{sJ2}
s_lshl_b32 s84, s84, 7
s_add_u32 s84, s84, {STATS}
v_lshl_add_u32 v233, v{vI}, 3, s84
v_cmp_gt_u32 vcc, 16, v{vL}
v_cndmask_b32 v233, v13, v233, vcc""")
    P.extend(unpack(HA, HQ, 10))
    P(poll_check(15, 46))
    stamp("F1 seen")
    ol = []
    for s in range(16):
        ol.append([(f"buffer_load_dwordx4 {vq(OF+4*s)}, v{vL16}, {srd(sWS)}, s78 offen sc1", "of")] + ([wrap(78, 4096, 75, 74)] if s < 15 else []))
    for s in (16, 17):
        for ww in range(4): ol.append([(f"buffer_load_dword v{OF+4*s+ww}, v232, {srd(sWS)}, s79 offen offset:{256*ww} sc1", "of")] + (["s_add_u32 s79, s79, 4096"] if (s, ww) == (16, 3) else []))
    for L in ol[:cfg.no1]: P.extend(L)
    flex = []
    for l in own_flag(14, F2G, sG2, 12, sJ2, 4) + grp_poll_addr(15, sGF, F2G): flex.append((0, l))
    for l in lines(f"""s_mul_i32 s84, s{sJF}, 1152
s_lshl_b32 s85, s{sW}, 8
s_add_u32 s80, s85, s84
s_lshr_b32 s86, s{sW}, 1
s_lshl_b32 s86, s86, 6
s_and_b32 s87, s{sW}, 1
s_lshl_b32 s87, s87, 3
s_add_u32 s86, s86, s87
s_add_u32 s81, s86, s84
v_lshlrev_b32 v234, 4, v{vG}"""): flex.append((0, l))
    for l in prefetch(pc): flex.append((64, l))
    mains = [f"{MF} {vq(HA+4*t)}, {wo_reg(s*5+t)}, {vq(OF+4*s)}, {vq(HA+4*t)}" for s in range(18) for t in range(5)]
    fixed = {n: [wor[n + NW - 1]] for n in range(90 - NW + 1)}
    for k, L in enumerate(ol[cfg.no1:]):
        g = int(k*cfg.ogap)
        fixed.setdefault(g, []).append(L[0])
        if len(L) > 1: fixed.setdefault(g + 1, []).append(L[1])
    sched(P, mains, fixed, flex)
    for k in range(4): P(f"v_cvt_pk_bf16_f32 v{HQ+k}, v{HA+2*k}, v{HA+2*k+1}")
    P(f"buffer_store_dwordx4 {vq(HQ)}, v6, {srd(sWS)}, 0 offen sc1", "h")
    for k in range(4, 8): P(f"v_cvt_pk_bf16_f32 v{HQ+k}, v{HA+2*k}, v{HA+2*k+1}")
    P(f"buffer_store_dwordx4 {vq(HQ+4)}, v8, {srd(sWS)}, 0 offen sc1", "h")
    for k in range(8, 10): P(f"v_cvt_pk_bf16_f32 v{HQ+k}, v{HA+2*k}, v{HA+2*k+1}")
    P(f"buffer_store_dwordx2 {vq(HQ+8,2)}, v7, {srd(sWS)}, 0 offen sc1", "h")
    P(f"v_cndmask_b32 v16, 0, v{HQ+8}, s[82:83]\nv_cndmask_b32 v17, 0, v{HQ+9}, s[82:83]")
    P.extend(stats([[16, 17] + [HQ + k for k in range(8)]], 20))
    def xsum(a):
        for sw in ["v_permlane16_swap_b32", "v_permlane32_swap_b32"]:
            for k in range(2): P(f"v_mov_b32 v{a+2+k}, v{a+k}")
            for k in range(2): P(f"{sw} v{a+k}, v{a+2+k}")
            for k in range(2): P(f"v_add_f32 v{a+k}, v{a+k}, v{a+2+k}")
    xsum(20)
    P(f"buffer_store_dwordx2 {vq(20,2)}, v233, {srd(sWS)}, 0 offen sc1", "h")
    stamp("proj done")
    B1P = 136; HR = 160; ST = 132; NT = 116; SR = 154
    for p in range(4): P(f"buffer_load_dwordx4 {vq(B1P+4*p)}, v234, {srd(sB1)}, s80 offen offset:{64*p}", "b1")
    P(f"buffer_load_dwordx2 {vq(B1P+16,2)}, v234, {srd(sB1)}, s81 offen offset:1024", "b1")
    P.extend(prefetch(pd))
    P("@waitvm h\n@waitlg_all\ns_barrier")
    set_flag(14)
    stamp("F2 set")
    if cfg.w2at == 2:
        P.add(poll_pre(15, 46))
        for z in range(2): P.extend(unit_dma(2, z, W2SCR, 235))
    if cfg.w2st == 0 and cfg.w2at < 3:
        P("@waitvm wr")
        for z in range(2): P.extend([l.replace("v94", "v47") for l in unit_tr(z, 0, 48 + 16*z)])
        for z in range(2): P.extend(unit_st(2, z, 48 + 16*z))
    P.extend(prefetch(pe))
    if cfg.w2at != 2: P.add(poll_pre(15, 46))
    P.extend(unpack(CA, B1P, 8)); P.extend(unpack(CA+16, B1P+16, 2))
    P(f"""s_mul_i32 s84, s{sGF}, 73728
s_lshl_b32 s85, s{sW}, 10
s_add_u32 s84, s84, s85
s_add_u32 s74, s84, {HP}
s_add_u32 s75, s74, 73728
s_lshl_b32 s77, s{sRF}, 12
s_add_u32 s77, s77, s74
v_add_u32 v6, s85, v{vL16}
v_add_u32 v7, 36864, v6
v_add_u32 v8, 36864, v{vL16}
v_add_u32 v9, {HB}, v{vL16}
v_add_u32 v10, {HB + 36864}, v{vL16}
v_mov_b32 v11, v47
s_and_b32 s93, s{sGF}, 15
s_lshr_b32 s94, s93, 1
s_mul_i32 s93, s93, 5
s_lshr_b32 s93, s93, 3
s_lshl_b32 s84, s{sGF}, 12
s_add_u32 s84, s84, s85
s_add_u32 s84, s84, {STATS}
v_lshlrev_b32 v239, 8, v{vG}
v_lshl_add_u32 v239, v{vI}, 3, v239""")
    if not cfg.rot: P("s_mov_b32 s93, 0\ns_mov_b32 s94, 0")
    P.extend(own_flag(14, F2S, sJ1, 12, sG1, 2))
    vPS, vSS, vF3, vP3, vL4, vL2, vLS, vH4, vH2, vPT, vC4, vC2, vO4, vO2, vOS = range(240, 255)
    P.extend(own_flag(vF3, F3A, sGF, 12, sJF, 4)); P.extend(grp_poll_addr(vP3, sGF, F3A))
    if cfg.wflag:
        P(f"""s_lshl_b32 s87, s{sW}, 7
s_add_u32 s86, s86, s87
v_add_u32 v{vP3}, s87, v{vP3}
s_lshl_b32 s87, s{sJF}, 4
s_add_u32 s86, s86, s87
v_mov_b32 v{vF3}, s86
v_cmp_eq_u32 vcc, 0, v{vL}
v_cndmask_b32 v{vF3}, v13, v{vF3}, vcc""")
    P(f"""s_lshl_b32 s86, s{sGF}, 6
s_add_u32 s86, s86, s{sJF}
s_mul_i32 s86, s86, 9216
s_add_u32 s86, s86, {PART}
v_lshrrev_b32 v{vPS}, 3, v{vI}
v_mul_u32_u24 v{vPS}, {8*9216}, v{vPS}
v_and_b32 v5, 7, v{vI}
v_lshlrev_b32 v5, 3, v5
v_lshl_add_u32 v5, v{vG}, 6, v5
v_add3_u32 v{vSS}, v{vPS}, v5, s86
v_add_u32 v{vPS}, v{vSS}, v5
s_lshl_b32 s85, s{sW}, 8
s_add_u32 s87, s85, 8192
v_add_u32 v{vSS}, s87, v{vSS}
s_lshl_b32 s76, s{sW}, 11
v_add_u32 v{vPS}, s76, v{vPS}
s_lshl_b32 s86, s{sGF}, 3
s_add_u32 s86, s86, s{sJF}
s_mul_i32 s86, s86, {8*9216}
s_add_u32 s86, s86, {PART}
s_add_u32 s76, s76, s86
v_add_u32 v{vL4}, s76, v{vL16}
v_lshl_add_u32 v{vL2}, v{vL}, 3, s76
s_add_u32 s87, s87, s86
v_lshl_add_u32 v{vLS}, v{vL}, 3, s87
v_cmp_gt_u32 vcc, 32, v{vL}
v_lshrrev_b32 v5, 5, v{vL}
v_bfe_u32 v{vC4}, v{vL}, 3, 2
v_cndmask_b32 v{vLS}, v13, v{vLS}, vcc
v_and_b32 v{vO4}, 7, v{vL}
v_lshlrev_b32 v{vH4}, 12, v5
v_lshl_add_u32 v{vH4}, v{vC4}, 8, v{vH4}
v_lshl_add_u32 v{vH4}, v{vO4}, 4, v{vH4}
v_lshlrev_b32 v{vC4}, 4, v{vC4}
v_lshl_add_u32 v{vC4}, v5, 6, v{vC4}
v_bfe_u32 v{vO2}, v{vL}, 1, 3
v_and_b32 v5, 1, v{vL}
v_lshlrev_b32 v5, 3, v5
v_lshl_add_u32 v{vH2}, v{vG}, 8, v5
v_lshl_add_u32 v{vH2}, v{vO2}, 4, v{vH2}
v_lshl_add_u32 v{vC2}, v{vG}, 4, v5
s_lshr_b32 s87, s{sJF}, 1
s_and_b32 s86, s{sJF}, 1
s_lshl_b32 s76, s{sGF}, 6
s_and_b32 s32, s87, 1
s_lshl_b32 s32, s32, 5
s_add_u32 s76, s76, s32
s_lshr_b32 s32, s87, 1
s_add_u32 s76, s76, s32
s_lshl_b32 s32, s86, 4
s_add_u32 s76, s76, s32
s_mul_i32 s76, s76, 1152
v_mul_u32_u24 v{vO4}, 2304, v{vO4}
v_add3_u32 v{vO4}, v{vO4}, v{vC4}, s76
v_mul_u32_u24 v{vO2}, 2304, v{vO2}
v_add3_u32 v{vO2}, v{vO2}, v{vC2}, s76
v_cndmask_b32 v{vOS}, v13, v{vO4}, vcc
s_mul_i32 s76, s{sGF}, 73728
s_lshl_b32 s87, s87, 10
s_add_u32 s76, s76, s87
s_lshl_b32 s86, s86, 7
s_add_u32 s76, s76, s86
s_add_u32 s76, s76, {HP}
s_lshl_b32 s86, s{sW}, 14
s_add_u32 s32, s76, s86
s_add_u32 s33, s32, 8192
s_add_u32 s35, s32, 12288
s_add_u32 s64, s32, 4096
s_lshr_b32 s86, s{sW}, 1
s_and_b32 s87, s{sW}, 1
s_lshl_b32 s87, s87, 3
s_lshl_b32 s36, s86, 12
s_add_u32 s36, s36, s87
s_add_u32 s36, s36, 65536
s_add_u32 s36, s36, s76
s_mov_b32 s38, s85
s_lshl_b32 s39, s86, 6
s_add_u32 s39, s39, s87
s_add_u32 s39, s39, 1024
s_mov_b32 s80, 0
s_mov_b32 s81, {16*9216}
s_mov_b32 s82, {32*9216}
s_mov_b32 s83, {48*9216}
s_mov_b32 s95, 0x00003f80
s_mov_b32 s96, 0x3f800000""")
    P(poll_check(15, 46))
    stamp("F2 seen")
    for k in range(2): P(f"buffer_load_dwordx2 {vq(SR+2*k,2)}, v239, {srd(sWS)}, s84 offen offset:{128*k} sc1", "hf")
    hl = []
    for s in range(18):
        hl.append([(f"buffer_load_dwordx4 {vq(HR+4*s)}, v{vL16}, {srd(sWS)}, s77 offen sc1", "hf")] + ([wrap(77, 4096, 75, 74)] if s < 17 else []))
    for s in range(cfg.nh1): P.extend(hl[s])
    P(f"v_add_f32 v{ST}, v{SR}, v{SR+2}\nv_add_f32 v{ST+1}, v{SR+1}, v{SR+3}")
    xsum(ST)
    finish_stats([ST])
    for s in range(cfg.nh1, cfg.nh2): P.extend(hl[s])
    stamp("LN2 stats")
    def ln2(s):
        return normalize(HR + 4*s, ST, NT + 8*(s & 1), s < 3) + [f"ds_write_b128 v{6 if s < 9 else 7}, {vq(HR+4*s)} offset:{XN + (s % 9)*4096}"]
    for s in range(3): P.extend(ln2(s))
    P("@waitlg_all\ns_barrier")
    def act_reads(i):
        pi, p = steps[i]
        b = AF + (i % 2)*16
        if pi < 2: reg = vL16 if p < 9 else 8
        else: reg = 9 if p < 9 else 10
        return [f"ds_read_b128 {aq(b+4*m)}, v{reg} offset:{((p % 9)*4 + m)*1024}" for m in range(4)]
    P.extend(act_reads(0))
    stamp("FFN start")
    mains = []; fixed = {}; start = []; load = {}
    first_use = {}; last_use = {}
    def put(g, it):
        fixed.setdefault(g, []).append(it); load[g] = load.get(g, 0) + cost(it)
    def place(items, g):
        for it in items:
            c = cost(it)
            while load.get(g, 0) > 0 and load.get(g, 0) + c > cfg.cap + 0.02: g += 1
            put(g, it)
        return g
    bar = {2: "a", 4: "b", 7: "c", 10: "d", 14: "f", 35: "0", 45: "1"}
    if cfg.w2st: bar[17] = "e"
    fl2 = "e" if cfg.w2st else "c"
    if cfg.w2at >= 3: fl2 = None
    for i, (pi, p) in enumerate(steps):
        name, tiles, acc, cin = passes[pi]; nt = len(tiles)
        base = len(mains); start.append(base)
        b = AF + (i % 2)*16
        t_ = stamp_txt(f"@{name}{p}") if i else None
        if t_: fixed.setdefault(base - 1, []).append(t_)
        if i in bar:
            for it in [f"@flexdone{bar[i]}"] + (["@waitvm wrs"] if bar[i] == fl2 else []) + ["@waitlg_all", "s_barrier"]: put(base, it)
            if bar[i] == fl2:
                for it in flag_items(14): put(base, it)
        for t in range(nt):
            w = aq(4*slot[(pi, p, t)])
            first_use[(pi, p, t)] = len(mains); last_use[(pi, p, t)] = len(mains) + 3
            for m in range(4):
                d = vq(acc + (t*4 + m)*4)
                c = d if p > 0 else (vq(cin + 4*t) if cin is not None else "0")
                mains.append(f"{MF} {d}, {w}, {aq(b+4*m)}, {c}")
        if i + 1 < len(steps):
            for k, l in enumerate(act_reads(i+1)): put(base + (2*k if nt > 2 else k) + (1 if i in bar else 0), l)
            pj, pp = steps[i+1]
            nxt = " ".join(aq(4*slot[(pj, pp, t)]) for t in range(len(passes[pj][1])))
            fixed.setdefault(base + 4*nt - 1, []).append(f"@need {nxt} {aq(AF + ((i+1) % 2)*16, 16)}")
            load[base + 4*nt - 1] = load.get(base + 4*nt - 1, 0) + 0.67
    start.append(len(mains))
    S = lambda pi, p: start[pi*18 + p]
    path = {}
    TQ = 176
    tq = [0]
    def epi2(acc, tiles, m, st):
        q = TQ + 4*(tq[0] % 4); tq[0] += 1
        regs = [acc + (t*4 + m)*4 + r for t in tiles for r in range(4)]
        L = [f"v_cvt_pk_bf16_f32 v{q+k}, v{regs[2*k]}, v{regs[2*k+1]}" for k in range(len(regs)//2)]
        L.append(st(q))
        return L
    def pst(m, off, tag): return lambda q: (f"buffer_store_dwordx4 {vq(q)}, v{vPS}, {srd(sWS)}, s{80+m} offen offset:{off} sc1", tag)
    def sst(m, tag): return lambda q: (f"buffer_store_dwordx2 {vq(q,2)}, v{vSS}, {srd(sWS)}, s{80+m} offen sc1", tag)
    RH = [200, 204, 208, 212, 216]; RS = [220, 224, 228, 232, 236]; R0 = [128, 144, 96, 112, 48]
    rl = [(vL2, 1024), (vLS, 0), (vL2, 0), (vL2, 512), (vL2, 1536)]
    FSTEP = 512
    def red_loads(r):
        L = ["s_mov_b32 s84, 0"]
        for j in range(8):
            L.append((f"buffer_load_dwordx2 {vq(R0[r]+2*j,2)}, v{rl[r][0]}, {srd(sWS)}, s84 offen offset:{rl[r][1]} sc1", "rd"))
            if j < 7: L.append("s_add_u32 s84, s84, 9216")
        return L
    def red_sum(r):
        T = RS[r]; L = []
        for j in range(8):
            for d in range(2):
                q = R0[r] + 2*j + d
                L.append(f"v_dot2_f32_bf16 v{T+2*d}, v{q}, s95, v{T+2*d}")
                L.append(f"v_dot2_f32_bf16 v{T+2*d+1}, v{q}, s96, v{T+2*d+1}")
        for d in range(2): L.append(f"v_cvt_pk_bf16_f32 v{T+d}, v{T+2*d}, v{T+2*d+1}")
        return L
    def red_store(r):
        vo, so, oo = [(vO2, 38, 128), (vOS, 39, 0), (vO2, 38, 0), (vO2, 38, 64), (vO2, 38, 192)][r]
        return [(f"buffer_store_dwordx2 {vq(RS[r],2)}, v{vo}, {srd(sOUT)}, s{so} offen offset:{oo}{cfg.outfl}", "out")]
    def add_path(g, c): path[g] = path.get(g, 0) + c
    def signal(tag):
        return [f"@waitvm {tag}"] + ([] if cfg.wflag else ["s_barrier"]) + flag_items(vF3) + [f"v_add_u32 v{vF3}, {FSTEP}, v{vF3}"]
    def check(): return [poll_check(vP3, vPT), f"v_add_u32 v{vP3}, {FSTEP}, v{vP3}"]
    if cfg.late:
        G0, s4, s2, fg, nl0 = cfg.late
        last = len(passes) - 1
        aD, tD, aE, aF = (16, [3, 4], 96, 128) if cfg.p522 else (96, [0, 1], 64, 16)
        if cfg.p522: R0 = [16, 32, 48, 64, 80]
        g = G0
        for m in range(4):
            g = place(epi2(16, [0, 1], m, pst(m, 1024, "p1")), g) + s4
        assert cfg.p522 or g - s4 < S(last, 0)
        for m in range(4): g = place(epi2(16, [2], m, sst(m, "p1")), g) + s2
        for m in range(4): g = place(epi2(aD, tD, m, pst(m, 0, "p1")), g) + s4
        gE = max(g, S(last, 0) + 3)
        for m in range(4): gE = place(epi2(aE, [0, 1], m, pst(m, 512, "p2")), gE) + s4
        assert gE - s4 < len(mains) - 1, gE
        if cfg.fl3 == 0:
            for it in signal("p1"): put(min(g + fg, len(mains) - 2), it)
        else:
            for it in signal("p2"): put(min(gE + fg, len(mains) - 2), it)
        if VERBOSE: print("late stores end", g, gE)
    else:
        sgap, fC, fD, fE, pC, pD, lead = cfg.tail4
        def stores(pi, acc, off, tag, shared):
            g = S(pi, 0) + 3
            for m in range(4):
                g = place(epi2(acc, [0, 1], m, pst(m, off, tag)), g); add_path(g, cfg.scost); g += sgap
                if shared:
                    g = place(epi2(acc, [2], m, sst(m, tag)), g - sgap//2); add_path(g, cfg.scost//2); g += sgap//2
        stores(3, 16, 1024, "p1", True); stores(4, 96, 0, "p2", False); stores(5, 64, 512, "p3", False)
        for g0, tag in [(S(3, 0) + fC, "p1"), (S(4, 0) + fD, "p2"), (S(5, 0) + fE, "p3")]:
            for it in signal(tag): put(g0, it)
        for g0, rounds in [(S(3, 0) + pC, [0, 1]), (S(4, 0) + pD, [2])]:
            if g0 + lead < len(mains) - 40:
                put(g0, poll_pre(vP3, vPT))
                g = place(check(), g0 + lead)
                for r in rounds:
                    L = red_loads(r)
                    for j in range(8):
                        g = place(L[2*j:2*j+2], g + 2); add_path(g, cfg.lcost if r != 1 else cfg.lcost//2)
                assert g < len(mains) - 2
            else: raise ValueError("late")
    g = 0
    for s in range(cfg.nh2, 18):
        g = place(hl[s], g); add_path(g, 110); g += cfg.hgap
    g = S(2, 11)
    for r, (vh, sh, vb, sb, bo) in enumerate([(vH2, 33, vC2, 38, 128), (vH4, 36, vC4, 39, 0), (vH2, 32, vC2, 38, 0), (vH2, 64, vC2, 38, 64), (vH2, 35, vC2, 38, 192)]):
        g = place([(f"buffer_load_dwordx2 {vq(RH[r],2)}, v{vh}, {srd(sWS)}, s{sh} offen sc1", "rh")], g + 5); add_path(g, 40)
        g = place([(f"buffer_load_dwordx2 {vq(RH[r]+2,2)}, v{vb}, {srd(sB2)}, s{sb} offen offset:{bo}", "rh")], g + 3); add_path(g, 20)
    nl = npf[0]; free = cfg.backlog; g = 0
    while nl < len(cons):
        now = g*cfg.tgap
        if g in path: free = max(free, now) + path.pop(g)
        early = last_use[cons[nl - NR]] + 1 if nl >= NR else 0
        dead = first_use[cons[nl]] - cfg.margin
        if g >= early and (free <= now + cfg.slack or g >= dead):
            L = wload(nl)
            if nl == 162 - cfg.w2lead and fl2: L = [poll_pre(15, vPT)] + L
            if nl == 162 and fl2: L = [poll_check(15, vPT)] + L
            g2 = place(L, g)
            for x in range(g + 1, g2 + 1):
                if x in path: free = max(free, x*cfg.tgap) + path.pop(x)
            assert g2 < first_use[cons[nl]] - 8, (nl, g2, first_use[cons[nl]])
            if VERBOSE and nl % 18 == 0: print(f"   load {nl} at gap {g2}, first use {first_use[cons[nl]]}, backlog {free - g2*cfg.tgap:.0f}")
            g = g2; free = max(free, g*cfg.tgap) + cfg.wcost; nl += 1
        g += 1
    if VERBOSE: print("last weight load at gap", g, "of", len(mains), "pass starts", [S(k, 0) for k in range(len(passes))])
    flex = []
    for lo, hi, mk in [(3, 5, "a"), (5, 8, "b"), (8, 11, "c"), (11, 15, "d"), (15, 18, "f")]:
        for s in range(lo, hi):
            for l in ln2(s): flex.append((0, l))
        flex.append((0, f"@mark{mk}"))
    if cfg.w2st:
        flex.append((0, "@waitvm wr"))
        for z in range(2):
            for l in unit_tr(z, 0, 176): flex.append((0, l.replace("v94", "v11")))
            for l in [f"@need {vq(176,16)}"] + unit_st(2, z, 176): flex.append((0, l))
    for l in set_poll_addr(15, sJF, F2S) + unpack(CB, B1P+8, 8): flex.append((0, l))
    flex.append((0, "@marke"))
    for k, (q, mod, sr, add) in enumerate([(f"s_lshl_b32 s84, s{sW}, 1", 10, 93, 0), (f"s_lshl_b32 s84, s{sW}, 1\ns_add_u32 s84, s84, 1", 10, 93, 0),
                                           (f"s_lshr_b32 s84, s{sW}, 1\ns_add_u32 s84, s84, 8", 10, 93, 0),
                                           (f"s_lshl_b32 s84, s{sW}, 1", 8, 94, 10), (f"s_lshl_b32 s84, s{sW}, 1\ns_add_u32 s84, s84, 1", 8, 94, 10)]):
        flex.append((0, q))
        flex.append((0, f"s_sub_u32 s84, s84, s{sr}\ns_cselect_b32 s85, {mod}, 0"))
        flex.append((0, f"s_add_u32 s84, s84, s85\ns_add_u32 s84, s84, {add}"))
        flex.append((0, "s_lshl_b32 s84, s84, 12"))
        if k == 2: flex.append((0, f"s_and_b32 s85, s{sW}, 1\ns_lshl_b32 s85, s85, 3\ns_add_u32 s84, s84, s85"))
        flex.append((0, f"v_add_u32 v{192+k}, s84, v9"))
    def epi1(acc, pair_tiles, m, wr):
        L = []
        q = TQ + 4*(tq[0] % 4); tq[0] += 1
        regs = [acc + (t*4 + m)*4 + r for t in pair_tiles for r in range(4)]
        for r in regs: L.append(f"v_mul_f32 v{r}, v{r}, |v{r}|")
        for k in range(len(regs)//2): L.append(f"v_cvt_pk_bf16_f32 v{q+k}, v{regs[2*k]}, v{regs[2*k+1]}")
        for k in range(len(regs)//2): L.append(f"v_pk_max_i16 v{q+k}, v{q+k}, 0")
        L.append(wr(q))
        return L
    at = S(1, 0) + 3
    for pr in range(2):
        for m in range(4):
            for l in epi1(ACA, [2*pr, 2*pr+1], m, lambda q: f"ds_write_b128 v{192+pr}, {vq(q)} offset:{m*1024}"): flex.append((at, l))
    for m in range(4):
        for l in epi1(ACA, [4], m, lambda q: f"ds_write_b64 v194, {vq(q,2)} offset:{m*1024}"): flex.append((at, l))
    flex.append((at, "@mark0"))
    at = S(2, 0) + 3
    for pr in range(2):
        for m in range(4):
            for l in epi1(ACB, [2*pr, 2*pr+1], m, lambda q: f"ds_write_b128 v{195+pr}, {vq(q)} offset:{m*1024}"): flex.append((at, l))
    flex.append((at, "@mark1"))
    at = S(3, 6)
    for r in range(5):
        for l in unpack(RS[r], RH[r], 2) + unpack(160, RH[r]+2, 2): flex.append((at, l))
        for d in range(4): flex.append((at, f"v_add_f32 v{RS[r]+d}, v{RS[r]+d}, v{160+d}"))
    if cfg.skip:
        def keep(it):
            t = it[0] if isinstance(it, tuple) else it
            tag = it[1] if isinstance(it, tuple) else None
            if "valu" in cfg.skip and re.match(r"v_lshlrev_b32 v\d+, 16,|v_and_b32 v\d+, s98|v_fma_f32|v_cvt_pk|v_mul_f32|v_pk_max|v_add_f32", t): return False
            if "dsw" in cfg.skip and t.startswith("ds_write"): return False
            if "bar" in cfg.skip and t == "s_barrier": return False
            if "pst" in cfg.skip and tag in ("p1", "p2", "p3"): return False
            if "rd" in cfg.skip and tag in ("rd", "rh"): return False
            if "w" in cfg.skip and tag == "w": return False
            if "chk" in cfg.skip and "L_slow" in t: return False
            return True
        flex = [f for f in flex if keep(f[1])]
        fixed = {g: [x for x in L if keep(x)] for g, L in fixed.items()}
        slow[:] = [x for x in slow if any(x.split(":")[0] in i.text for i in P.ins) or "chk" not in cfg.skip]
    sched(P, mains, fixed, flex, cap=cfg.cap)
    stamp("FFN done")
    if cfg.late:
        for m in range(4): P.extend(epi2(aF, [0, 1], m, pst(m, 1536, "p4")))
        P.add(poll_pre(vP3, vPT))
        ne_ = 3 + cfg.fl3
        early = sum([red_loads(r) for r in range(ne_)], [])
        if nl0:
            P.extend(check()); P.extend(early[:2*nl0])
        P.extend(signal("p4"))
        stamp("F3c set")
        if not nl0: P.extend(check())
        P.extend(early[2*nl0:])
        P.add(poll_pre(vP3, vPT))
        for r in range(ne_): P.extend(red_sum(r))
        P.extend(check())
        stamp("F3c seen")
        for r in range(ne_, 5): P.extend(red_loads(r))
        for r in range(ne_): P.extend(red_store(r))
        for r in range(ne_, 5): P.extend(red_sum(r) + red_store(r))
    else:
        for m in range(4): P.extend(epi2(16, [0, 1], m, pst(m, 1536, "p4")))
        P.add(poll_pre(vP3, vPT))
        P.extend(red_sum(0) + red_sum(1))
        P.extend(signal("p4"))
        stamp("F3c set")
        P.extend(check())
        P.extend(red_loads(3))
        P.extend(red_sum(2))
        P.add(poll_pre(vP3, vPT))
        P.extend(red_sum(3))
        P.extend(check())
        stamp("F3c seen")
        P.extend(red_loads(4))
        P.extend(red_store(0) + red_store(1) + red_store(2) + red_store(3))
        P.extend(red_sum(4) + red_store(4))
    P(f"""s_cmp_lg_u32 s2, 0
s_cbranch_scc1 L_noepoch
s_cmp_lg_u32 s{sW}, 0
s_cbranch_scc1 L_noepoch""")
    P(f"v_lshrrev_b32 v6, 5, v{vL}\nv_lshlrev_b32 v6, 12, v6\nv_and_b32 v7, 31, v{vL}\nv_lshl_add_u32 v6, v7, 2, v6\nv_add_u32 v6, {F0S}, v6")
    for k in range(4):
        poll(6, 5)
        P("v_add_u32 v6, 8192, v6")
    P(f"v_mov_b32 v6, 0\nv_mov_b32 v5, s{sTAG}\ns_mov_b64 exec, 1\nbuffer_store_dword v5, v6, {srd(sWS)}, 0 offen\ns_mov_b64 exec, -1\nL_noepoch:")
    if cfg.stamps:
        P("s_waitcnt vmcnt(0)")
        stamp("end")
        P(f"s_lshl_b32 s84, s2, 2\ns_add_u32 s84, s84, s{sW}\ns_lshl_b32 s84, s84, 7\ns_add_u32 s84, s84, {STAMPS}\nv_mov_b32 v6, s84\ns_mov_b64 exec, 1")
        if cfg.diag is not None:
            a, b = cfg.diag
            P(f"s_sub_u32 s84, s{STAMP0+b}, s{STAMP0+a}\ns_lshl_b32 s84, s84, 2\ns_add_u32 s84, s84, 10000\nL_spin:\ns_sleep 8\ns_memrealtime s[100:101]\ns_waitcnt lgkmcnt(0)\ns_sub_u32 s85, s100, s{STAMP0}\ns_cmp_lt_u32 s85, s84\ns_cbranch_scc1 L_spin")
        elif cfg.dbg:
            P(f"v_mov_b32 v6, 0\ns_not_b32 s84, s{STAMP0}\nv_mov_b32 v5, s84\nbuffer_atomic_umax v5, v6, {srd(sR)}, 0 offen")
            for k in range(min(nstamp[0], 15)):
                P(f"v_mov_b32 v{16+k}, s{STAMP0+k}\nbuffer_atomic_umax v{16+k}, v6, {srd(sR)}, 0 offen offset:{4*k+4}")
        else:
          for k in range(nstamp[0]):
            P(f"v_mov_b32 v5, s{STAMP0+k}\nbuffer_store_dword v5, v6, {srd(sWS)}, 0 offen offset:{4*k}")
    P("L_end:\ns_endpgm")
    for x in slow: P(x)
    P("L_code_end:")
    cfg.names = names
    return P

def cost(it):
    t = it[0] if isinstance(it, tuple) else it
    c = 0
    for l in t.split("\n"):
        if l.startswith("@") or l.endswith(":"): continue
        c += 0.67 if l.startswith("s_") else (2 if l.startswith("ds_write_b128") else 1)
    return c

def sched(P, mains, fixed, flex, cap=2, flex2=None):
    Q = [list(flex2 or []), list(flex)]; K = [0, 0]; marks = set()
    def put(it):
        t = it[0] if isinstance(it, tuple) else it
        if t.startswith("@mark"): marks.add(t[5:]); return 0
        if t.startswith("@flexdone"):
            for q in range(2):
                if any((x[1] if not isinstance(x[1], tuple) else x[1][0]) == "@mark" + t[9:] for x in Q[q]):
                    n0 = K[q]
                    while t[9:] not in marks:
                        it2 = Q[q][K[q]][1]; K[q] += 1; put(it2)
                    if K[q] - n0 > 1 and VERBOSE: print("flush", t, K[q] - n0)
            return 0
        P.add(it)
        return cost(t)
    for n, m in enumerate(mains):
        P.add(m)
        c = 0
        for it in fixed.get(n, []): c += put(it)
        for q in range(2):
            while K[q] < len(Q[q]) and Q[q][K[q]][0] <= n and (c == 0 or c + cost(Q[q][K[q]][1]) <= cap + 0.02):
                it = Q[q][K[q]][1]; K[q] += 1
                c += put(it)
    for q in range(2):
        if K[q] < len(Q[q]) and VERBOSE: print("left", len(Q[q]) - K[q])
        while K[q] < len(Q[q]):
            it = Q[q][K[q]][1]; K[q] += 1
            put(it)
VERBOSE = False

import struct
def hexf(x): return hex(struct.unpack("<I", struct.pack("<f", x))[0])

HEADER = open("cdna_kernels/" + NAME + ".s.ref").read().split("; Override launch geometry")[0]
def build(cfg, verbose=False):
    body = finalize(gen(cfg), verbose)
    k = NAME + "_kernel"
    return (HEADER + f"; @launch grid=(256,1,1) block=(256,1,1) lds={LDS_BYTES}\n"
        + f'.amdgcn_target "amdgcn-amd-amdhsa--gfx950"\n.text\n.globl {k}\n.p2align 8\n.type {k},@function\n{k}:\n' + body
        + f""".section .rodata,"a"
.p2align 6
.amdhsa_kernel {k}
  .amdhsa_next_free_vgpr 512
  .amdhsa_next_free_sgpr 102
  .amdhsa_accum_offset 256
  .amdhsa_group_segment_fixed_size 0
  .amdhsa_kernarg_size 88
  .amdhsa_user_sgpr_count 2
  .amdhsa_user_sgpr_kernarg_segment_ptr 1
  .amdhsa_system_sgpr_workgroup_id_x 1
.end_amdhsa_kernel
""")

if __name__ == "__main__":
    cfg = Cfg(); VERBOSE = True
    out = sys.argv[1]
    for a in sys.argv[2:]:
        k, v = a.split("=")
        setattr(cfg, k, eval(v))
    open(out, "w").write(build(cfg, True))
    if cfg.stamps: open(out + ".names", "w").write("|".join(cfg.names))
```

```python
import sys
from ir import *

NAME = "sequential_preLN__sliding_local_dilated__dense_activation_squared_relu__prompt"

F0S, F1G, F1S, F2G, F2S, F3A, F3B, STATS, F3C = 0x10000, 0x20000, 0x48000, 0x50000, 0x78000, 0x80000, 0xA0000, 0xC0000, 0xE0000
WQP, WOP, OP, HP, W1R, W2R, PART, STAMPS = 0x100000, 0x300000, 0x400000, 0x700000, 0xA00000, 0x1000000, 0x1600000, 0x3000000
WS_BYTES = 0x4000000
OOB = 0x40000000
LDS_BYTES = 163840
XB = 71680
R0SCR = 49152
W1SCR = 0
WOB = 0
W2SCR0 = 32768
W2SCR = 98304
XRS = 131072
VXS = 143360
XN, HB = 0, 73728
sX, sWQ, sWO, sW1, sW2, sB1, sB2, sOUT, sWS, sR = 28, 32, 36, 40, 44, 48, 52, 56, 60, 88
sW, sG2, sJ2, sGF, sJF, sTAG = 68, 69, 70, 71, 72, 73
def srd(n): return f"s[{n}:{n+3}]"
def vq(n, k=4): return f"v[{n}:{n+k-1}]"
def aq(n, k=4): return f"a[{n}:{n+k-1}]"
MF = "v_mfma_f32_16x16x32_bf16"
vL, vI, vG, vL16 = 1, 2, 3, 4

class Cfg:
    stamps = False
    nx1 = 12
    p1depth = 4
    npre = 25
    rot = True
    npre1 = 12
    wospan = 10
    f3 = (10, 14)
    pre = (8, 8, 4, 8, 26)
    wo_early = 8
    dmagap = 10
    touch = 0
    nearly = None
    tsleep = 0
    ssleep = 0
    snake = True
    g1ord = 0
    p522 = True
    fl3 = 0
    late = (1076, 10, 5, 30, 0)
    norp = ()
    ctouch = 2
    nq1 = 4
    qgap = 8
    poll1 = False
    psleep = 1
    f0both = True
    outfl = ''
    no1 = 12
    ogap = 3.5
    nh2 = 18
    hgap = 5
    p1early = False
    wflag = False
    tail4 = (10, 110, 85, 85, 200, 185, 20)
    scost = 200
    lcost = 80
    skip = ()
    lag = 6
    gq = (0, 0, 0, 0)
    f1s = 11
    tail = (14, 13, 232, 44, 5, 11, 18)
    tailord = 0
    backlog = 0
    tgap = 18.5
    slack = 70
    margin = 205
    wcost = 60
    rawfl = ' nt'
    r0fl = ' nt'
    wrsfl = ' sc1'
    rawat = 1
    ilv = True
    w2at = 1
    w2st = 0
    nh1 = 4
    hold = 0
    w2lead = 16
    nleft = 60
    p1z4 = 1
    nx2 = 6
    dbg = False
    diag = None
    wsbase = 0
    only = None
    cap = 2
    wsc = " sc1"
    nwo1 = 40
    stop = None

def gen(cfg):
    P = Prog()
    sG1, sJ1 = (sGF, sJF) if cfg.p1z4 == 1 else ((sG2, sJ2) if cfg.p1z4 == 0 else (65, 66))
    nstamp = [0]
    names = []
    def stamp_txt(name):
        if cfg.stamps and (cfg.only is None or name.replace(" ", "_") in cfg.only or name == "end") and not (cfg.only is None and name.startswith("@")):
            k = nstamp[0]; nstamp[0] += 1; names.append(name); assert k < 20, name
            return f"{'s_memtime' if cfg.stamps == 2 else 's_memrealtime'} s[100:101]\n@waitlg_all\ns_mov_b32 s{STAMP0+k}, s100"
        return None
    def stamp(name):
        t = stamp_txt(name)
        if t: P(t)
    STAMP0 = 4
    npoll = [0]
    def poll(vaddr, vtmp):
        k = npoll[0]; npoll[0] += 1
        P(f"""s_mov_b32 s97, 0
L_poll{k}:
s_sleep {cfg.psleep}
buffer_load_dword v{vtmp}, v{vaddr}, {srd(sWS)}, 0 offen sc1
s_add_u32 s97, s97, 1
s_waitcnt vmcnt(0)
v_cmp_ne_u32 vcc, s{sTAG}, v{vtmp}
s_cmp_gt_u32 s97, 400000
s_cbranch_scc1 L_pdone{k}
s_cbranch_vccnz L_poll{k}
L_pdone{k}:""")
    slow = []
    def poll_pre(vaddr, vtmp):
        return (f"buffer_load_dword v{vtmp}, v{vaddr}, {srd(sWS)}, 0 offen sc1", "pl")
    def poll_check(vaddr, vtmp):
        k = npoll[0]; npoll[0] += 1
        slow.append(f"""L_slow{k}:
s_mov_b32 s97, 0
L_poll{k}:
s_sleep {cfg.ssleep}
buffer_load_dword v{vtmp}, v{vaddr}, {srd(sWS)}, 0 offen sc1
s_add_u32 s97, s97, 1
s_waitcnt vmcnt(0)
v_cmp_ne_u32 vcc, s{sTAG}, v{vtmp}
s_cmp_gt_u32 s97, 400000
s_cbranch_scc1 L_back{k}
s_cbranch_vccnz L_poll{k}
s_branch L_back{k}""")
        return f"v_cmp_ne_u32 vcc, s{sTAG}, v{vtmp}\ns_cbranch_vccnz L_slow{k}\nL_back{k}:"
    def wrap(sr, step, send, sbeg):
        return f"s_add_u32 s{sr}, s{sr}, {step}\ns_cmp_eq_u32 s{sr}, s{send}\ns_cselect_b32 s{sr}, s{sbeg}, s{sr}"
    def set_flag(vaddr):
        P(f"v_mov_b32 v5, s{sTAG}")
        P(f"buffer_store_dword v5, v{vaddr}, {srd(sWS)}, 0 offen sc1", "flag")

    P("""s_cmp_ge_u32 s2, 256
s_cbranch_scc1 L_end
s_load_dwordx16 s[4:19], s[0:1], 0
s_load_dwordx4 s[20:23], s[0:1], 64
s_load_dwordx2 s[24:25], s[0:1], 80""")
    def code_touch(vd, first):
        P(f"""s_getpc_b64 s[92:93]
L_pc{first}:
s_and_b32 s93, s93, 0xffff
s_mov_b32 s94, L_code_end - L_pc{first}
s_mov_b32 s95, 0x00020000
s_lshr_b32 s84, s2, 3
s_lshl_b32 s84, s84, 2
v_lshrrev_b32 v62, 6, v0
v_and_b32 v{vd}, 63, v0
v_lshlrev_b32 v{vd}, 7, v{vd}
v_add3_u32 v{vd}, v{vd}, v62, s84
v_lshlrev_b32 v{vd}, 7, v{vd}""")
        P(f"buffer_load_dword v{vd}, v{vd}, s[92:95], 0 offen", "tch")
    if cfg.ctouch == 2: code_touch(63, 0)
    if cfg.stamps: P("s_memtime s[26:27]" if cfg.stamps == 2 else "s_memrealtime s[26:27]")
    P(f"""v_lshrrev_b32 v5, 6, v0
v_and_b32 v{vL}, 63, v0
v_readfirstlane_b32 s{sW}, v5
v_and_b32 v{vI}, 15, v0
v_lshrrev_b32 v{vG}, 4, v{vL}
v_lshlrev_b32 v{vL16}, 4, v{vL}
s_and_b32 s74, s2, 7
s_lshr_b32 s75, s2, 3
s_lshl_b32 s{sG2}, s74, 2
s_lshr_b32 s76, s75, 3
s_add_u32 s{sG2}, s{sG2}, s76
s_and_b32 s{sJ2}, s75, 7
s_lshr_b32 s{sGF}, s74, 2
s_lshl_b32 s{sGF}, s{sGF}, 4
s_lshr_b32 s76, s75, 1
s_add_u32 s{sGF}, s{sGF}, s76
s_and_b32 s{sJF}, s74, 3
s_lshl_b32 s{sJF}, s{sJF}, 1
s_and_b32 s76, s75, 1
s_add_u32 s{sJF}, s{sJF}, s76
""")
    if cfg.p1z4 == 2:
        P(f"""s_lshr_b32 s65, s74, 1
s_lshl_b32 s65, s65, 3
s_lshr_b32 s76, s75, 2
s_add_u32 s65, s65, s76
s_and_b32 s66, s74, 1
s_lshl_b32 s66, s66, 2
s_and_b32 s76, s75, 3
s_add_u32 s66, s66, s76""")
    P(f"""s_lshl_b32 s77, s{sW}, 5
s_add_u32 s77, s77, s{sG1}
s_mul_i32 s78, s{sJ1}, 144""")
    sRP, sRF, sR2 = 0, 1, 3
    P(f"""s_cmp_lt_u32 s77, 72
s_cbranch_scc0 L_r0_wo
v_mul_u32_u24 v6, 2428, v{vL}
v_lshrrev_b32 v6, 16, v6
v_mul_u32_u24 v7, 27, v6
v_sub_u32 v7, v{vL}, v7
v_mul_u32_u24 v8, 7282, v7
v_lshrrev_b32 v8, 16, v8
v_mul_u32_u24 v9, 9, v8
v_sub_u32 v9, v7, v9
v_mul_u32_u24 v6, 3456, v6
v_mul_u32_u24 v8, 1152, v8
v_lshlrev_b32 v9, 4, v9
v_add3_u32 v5, v6, v8, v9
v_cmp_gt_u32 vcc, 54, v{vL}
s_mul_i32 s80, s77, {8*3456}
s_add_u32 s80, s80, s78
s_add_u32 s81, s80, {6912-1024}
s_add_u32 s82, s81, {6912-1024}
s_add_u32 s83, s82, {6912-1024}
s_branch L_r0_join
L_r0_wo:
v_mul_u32_u24 v6, 7282, v{vL}
v_lshrrev_b32 v6, 16, v6
v_mul_u32_u24 v7, 9, v6
v_sub_u32 v7, v{vL}, v7
v_mul_u32_u24 v6, 1152, v6
v_lshl_add_u32 v5, v7, 4, v6
v_cmp_gt_u32 vcc, 36, v{vL}
s_sub_u32 s79, s77, 72""")
    for G in range(2):
        if G: P("s_add_u32 s79, s79, 36")
        P(f"""s_lshr_b32 s84, s79, 2
s_mul_i32 s84, s84, 36
s_bfe_u32 s85, s79, 0x10001
s_mul_i32 s85, s85, 20
s_add_u32 s84, s84, s85
s_and_b32 s85, s79, 1
s_lshl_b32 s85, s85, 3
s_add_u32 s84, s84, s85
s_add_u32 s85, s84, 4
s_sub_u32 s86, s79, 64
s_mul_i32 s86, s86, 72
s_add_u32 s86, s86, 16
s_add_u32 s87, s86, 36
s_cmp_lt_u32 s79, 64
s_cselect_b32 s84, s84, s86
s_cselect_b32 s85, s85, s87
s_mul_i32 s84, s84, 1152
s_mul_i32 s85, s85, 1152
s_add_u32 s84, s84, s78
s_add_u32 s85, s85, s78
s_sub_u32 s{80+2*G}, s84, {1024*(2*G)}
s_sub_u32 s{81+2*G}, s85, {1024*(2*G+1)}""")
    P(f"""s_cmp_lt_u32 s77, 108
s_cselect_b32 s80, s80, {OOB}
s_cselect_b32 s81, s81, {OOB}
s_cselect_b32 s82, s82, {OOB}
s_cselect_b32 s83, s83, {OOB}
L_r0_join:
s_nop 1
v_mov_b32 v6, {OOB}
v_cndmask_b32 v5, v6, v5, vcc
s_lshl_b32 s84, s{sW}, 12
s_add_u32 s84, s84, {R0SCR}
s_mov_b32 m0, s84
s_waitcnt lgkmcnt(0)""")
    def mksrd(d, p, n):
        P(f"s_mov_b32 s{d}, s{p}\ns_and_b32 s{d+1}, s{p+1}, 0xffff\ns_mov_b32 s{d+2}, {n}\ns_mov_b32 s{d+3}, 0x00020000")
    P(f"""s_cmp_lt_u32 s77, 72
s_cselect_b32 s{sR}, s6, s8
s_cselect_b32 s{sR+1}, s7, s9
s_mov_b32 s85, {576*1152}
s_cselect_b32 s{sR+2}, {576*3456}, s85
s_and_b32 s{sR+1}, s{sR+1}, 0xffff
s_mov_b32 s{sR+3}, 0x00020000""")
    if cfg.stamps: P(("s_memtime" if cfg.stamps == 2 else "s_memrealtime") + " s[38:39]")
    for q in range(4):
        P(f"buffer_load_dwordx4 v5, {srd(sR)}, s{80+q} offen offset:{1024*q}{cfg.r0fl} lds", "r0")
    if cfg.ctouch == 1: code_touch(63, 0)
    mksrd(sX, 4, 2048*1152)
    if cfg.wsbase: P(f"s_add_u32 s24, s24, {cfg.wsbase}\ns_addc_u32 s25, s25, 0")
    P(f"s_load_dword s{sTAG}, s[24:25], 0")
    XR, XH = 160, 232
    P(f"""s_lshl_b32 s84, s{sG1}, 6
s_and_b32 s85, s{sW}, 1
s_lshl_b32 s85, s85, 5
s_add_u32 s85, s85, s84
s_lshr_b32 s86, s{sW}, 1
s_add_u32 s85, s85, s86
s_mul_i32 s85, s85, 1152
v_lshrrev_b32 v8, 3, v{vL}
v_and_b32 v9, 7, v{vL}
v_mul_u32_u24 v6, 2304, v8
v_lshl_add_u32 v6, v9, 4, v6
v_add_u32 v6, s85, v6
v_add_u32 v7, {8*2304}, v6""")
    if cfg.rot:
        P(f"""s_and_b32 s86, s{sG2}, 3
s_mul_i32 s86, s86, 9
s_add_u32 s86, s86, 2
s_lshr_b32 s86, s86, 2
s_add_u32 s86, s86, s{sJ2}
s_sub_u32 s87, s86, 9
s_cmp_ge_u32 s86, 9
s_cselect_b32 s{sRP}, s87, s86
s_lshl_b32 s86, s{sG2}, 1
s_add_u32 s86, s86, s{sJ2}
s_and_b32 s{sR2}, s86, 7
s_and_b32 s86, s{sJF}, 1
s_mul_i32 s86, s86, 9
s_and_b32 s87, s{sGF}, 15
s_add_u32 s86, s86, s87
s_sub_u32 s87, s86, 18
s_cmp_ge_u32 s86, 18
s_cselect_b32 s{sRF}, s87, s86""")
        if cfg.p1z4 == 1: P(f"s_lshr_b32 s{sRP}, s{sRF}, 1")
        if cfg.p1z4 == 2:
            P(f"""s_and_b32 s86, s66, 3
s_mul_i32 s86, s86, 9
s_add_u32 s86, s86, 2
s_lshr_b32 s86, s86, 2
s_and_b32 s87, s65, 7
s_add_u32 s86, s86, s87
s_sub_u32 s87, s86, 9
s_cmp_ge_u32 s86, 9
s_cselect_b32 s{sRP}, s87, s86""")
    else:
        P(f"s_mov_b32 s{sRP}, 0\ns_mov_b32 s{sRF}, 0\ns_mov_b32 s{sR2}, 0")
    P(f"s_lshl_b32 s88, s{sRP}, 7")
    for q in range(1, 9):
        P(f"s_add_u32 s{88+q}, s{87+q}, 128\ns_cmp_eq_u32 s{88+q}, 1152\ns_cselect_b32 s{88+q}, 0, s{88+q}")
    xl = []
    for q in range(9):
        for hh in range(2):
            xl.append(f"buffer_load_dwordx4 {vq(XR + (q*2+hh)*4)}, v{6+hh}, {srd(sX)}, s{88+q} offen")
    for l in xl[:cfg.nx1]: P(l, "x")
    mksrd(sWS, 24, WS_BYTES)
    P(f"""s_lshl_b32 s85, s{sW}, 2
v_add_u32 v10, s85, v{vG}
v_and_b32 v11, 7, v10
v_lshrrev_b32 v12, 3, v10
v_lshl_add_u32 v11, v11, 1, v12
v_add_u32 v11, s84, v11
v_subrev_u32 v11, 16, v11
v_mul_u32_u24 v11, 1152, v11
s_cmp_eq_u32 s{sG1}, 0
s_cselect_b32 s85, {OOB}, 0
s_cselect_b32 s86, 0, -1
v_and_b32 v11, s86, v11
v_or_b32 v11, s85, v11
v_mov_b32 v13, {OOB}
s_lshl_b32 s85, s{sRP}, 3
v_add_u32 v12, s85, v{vI}""")
    for q in range(5):
        P(f"""v_add_u32 v{84+q}, {16*q}, v12
v_subrev_u32 v89, 72, v{84+q}
v_min_u32 v{84+q}, v{84+q}, v89
v_lshl_add_u32 v{84+q}, v{84+q}, 4, v11""")
    P(f"v_cmp_gt_u32 vcc, 8, v{vI}\nv_cndmask_b32 v88, v13, v88, vcc")
    hl = [f"buffer_load_dwordx4 {vq(XH + 4*q)}, v{84+q}, {srd(sX)}, 0 offen" for q in range(5)]
    P(f"""v_bfe_u32 v14, v{vL}, 2, 2
v_and_b32 v15, 3, v{vL}
s_lshl_b32 s84, s{sW}, 12
s_add_u32 s84, s84, {R0SCR}
s_cmp_lt_u32 s77, 72
s_cbranch_scc0 L_r1_wo
v_lshrrev_b32 v16, 1, v14
v_lshlrev_b32 v16, 10, v16
v_and_b32 v17, 1, v14
v_mul_u32_u24 v17, 432, v17
v_add3_u32 v16, v16, v17, s84
v_mul_u32_u24 v17, 36, v{vG}
v_and_b32 v18, 1, v{vG}
v_lshl_add_u32 v17, v18, 2, v17
v_lshl_add_u32 v17, v15, 3, v17
v_add_u32 v32, v16, v17
v_add_u32 v34, 144, v32
v_add_u32 v36, 288, v32
v_min_u32 v17, 2, v15
v_mul_u32_u24 v17, 144, v17
v_mul_u32_u24 v18, 72, v18
v_add3_u32 v38, v16, v17, v18
v_add_u32 v38, 32, v38
s_mov_b32 s85, 2048
s_lshr_b32 s86, s77, 2
s_mul_i32 s87, s{sJ1}, 72
s_add_u32 s86, s86, s87
s_mul_i32 s86, s86, 3584
s_add_u32 s86, s86, {WQP}
s_and_b32 s87, s77, 3
v_mul_u32_u24 v16, {18*3584}, v{vG}
v_lshl_add_u32 v16, v{vI}, 4, v16
s_lshl_b32 s79, s87, 8
s_add_u32 s79, s79, s86
v_add_u32 v40, s79, v16
v_add_u32 v41, 1024, v40
v_add_u32 v42, 2048, v40
v_lshrrev_b32 v16, 1, v15
v_lshl_add_u32 v16, v{vG}, 1, v16
v_mul_u32_u24 v16, {18*3584}, v16
v_and_b32 v17, 1, v15
v_lshl_add_u32 v17, v14, 1, v17
v_lshl_add_u32 v16, v17, 4, v16
s_lshl_b32 s79, s87, 7
s_add_u32 s79, s79, s86
s_add_u32 s79, s79, 3072
v_add_u32 v16, s79, v16
v_cmp_gt_u32 vcc, 32, v{vL}
v_cndmask_b32 v43, v13, v16, vcc
s_branch L_r1_join
L_r1_wo:
v_mul_u32_u24 v16, 144, v14
v_add_u32 v16, s84, v16
v_lshrrev_b32 v17, 1, v{vG}
v_lshlrev_b32 v17, 6, v17
v_and_b32 v18, 1, v{vG}
v_lshl_add_u32 v17, v18, 3, v17
v_lshl_add_u32 v17, v15, 4, v17
v_add_u32 v32, v16, v17
v_and_b32 v17, 1, v15
v_lshl_add_u32 v34, v17, 3, v16
v_add_u32 v34, 128, v34
v_add_u32 v36, 2048, v32
v_add_u32 v38, 2048, v34
s_mov_b32 s85, 1024
v_lshlrev_b32 v16, 10, v{vG}
v_lshl_add_u32 v16, v{vI}, 4, v16
v_cmp_gt_u32 vcc, 8, v{vL}
v_cndmask_b32 v17, v13, v{vL16}, vcc
s_sub_u32 s79, s77, 72""")
    for G in range(2):
        if G: P("s_add_u32 s79, s79, 36")
        P(f"""s_lshr_b32 s86, s79, 2
s_mul_i32 s87, s{sJ1}, 18
s_add_u32 s86, s86, s87
s_mul_i32 s86, s86, 4608
s_add_u32 s86, s86, {WOP}
s_cmp_lt_u32 s77, 108
s_cselect_b32 s86, s86, {OOB}
s_and_b32 s87, s79, 3
s_lshl_b32 s76, s87, 8
s_add_u32 s76, s76, s86
v_add_u32 v{40+2*G}, s76, v16
s_lshl_b32 s76, s87, 7
s_add_u32 s76, s76, s86
s_add_u32 s76, s76, 4096
v_add_u32 v{41+2*G}, s76, v17""")
    P("L_r1_join:\ns_nop 1")
    for t in range(4): P(f"v_add_u32 v{33+2*t}, s85, v{32+2*t}")
    mksrd(sW1, 12, 576*9216); mksrd(sW2, 16, 4608*1152); mksrd(sB1, 14, 9216); mksrd(sB2, 18, 1152); mksrd(sOUT, 20, 2048*1152)
    if cfg.dbg: mksrd(sR, 22, 256)
    if cfg.stamps: P("@waitlg_all\ns_mov_b32 s4, s26"); P("s_mov_b32 s5, s38"); nstamp[0] = 2; names.append("start"); names.append("r0 issue")
    P("s_mov_b32 s99, 0x3f803f80\ns_mov_b32 s98, 0xffff0000")
    if cfg.touch:
        P(f"v_lshlrev_b32 v90, 21, v{vL}\nv_min_u32 v90, {0x2800000}, v90")
        P(f"buffer_load_dword v60, v90, {srd(sWS)}, 0 offen", "tch")
        if cfg.touch > 1:
            P(f"buffer_load_dword v61, v90, {srd(sW1)}, 0 offen", "tch")
            P(f"buffer_load_dword v62, v90, {srd(sW2)}, 0 offen", "tch")
            P(f"buffer_load_dword v63, v90, {srd(sOUT)}, 0 offen", "tch")
    UP = {(1, 0): (32, 33, 34), (1, 1): (35, 36, 37), (2, 0): (24, 25, 34), (2, 1): (26, 27, 37)}
    for z in range(2):
        a1, d1, st = UP[(1, z)]; a2, d2, _ = UP[(2, z)]
        P(f"""s_add_u32 s84, s77, {128*z}
s_mul_i32 s85, s84, 7282
s_lshr_b32 s85, s85, 16
s_mul_i32 s86, s85, 9
s_sub_u32 s86, s84, s86
s_lshl_b32 s76, s86, 7
s_mul_i32 s87, s85, {32*9216}
s_add_u32 s87, s87, s76
s_mul_i32 s75, s{sJ1}, 1152
s_add_u32 s{a1}, s87, s75
s_mul_i32 s87, s85, {32*1152}
s_add_u32 s87, s87, s76
s_mul_i32 s75, s{sJ1}, {576*1152}
s_add_u32 s{a2}, s87, s75
s_lshr_b32 s79, s85, 2
s_lshl_b32 s79, s79, 1
s_and_b32 s75, s85, 1
s_add_u32 s79, s79, s75
s_add_u32 s75, s79, 10
s_bitcmp1_b32 s85, 1
s_cselect_b32 s79, s75, s79
s_lshr_b32 s87, s86, 1
s_mul_i32 s87, s87, 162
s_and_b32 s76, s86, 1
s_lshl_b32 s76, s76, 2
s_add_u32 s87, s87, s76
s_cmp_eq_u32 s86, 8
s_cselect_b32 s87, 8, s87
s_cselect_b32 s{st}, 162, 1
s_lshl_b32 s{st}, s{st}, 10
s_mul_i32 s76, s{sJ1}, 648
s_add_u32 s87, s87, s76
s_mul_i32 s75, s85, 9
s_add_u32 s75, s75, s87
s_lshl_b32 s75, s75, 10
s_add_u32 s{d1}, s75, {W1R}
s_mul_i32 s75, s79, 9
s_add_u32 s75, s75, s87
s_lshl_b32 s75, s75, 10
s_add_u32 s{d2}, s75, {W2R}""")
        if z:
            P("s_cmp_lt_u32 s84, 162")
            for r in (a1, d1, a2, d2): P(f"s_cselect_b32 s{r}, s{r}, {OOB}")
    P(f"""v_mul_u32_u24 v92, 9216, v8
v_lshl_add_u32 v92, v9, 4, v92
v_mul_u32_u24 v93, 1152, v8
v_lshl_add_u32 v93, v9, 4, v93
v_lshl_add_u32 v94, v{vG}, 3, v14
v_lshlrev_b32 v94, 7, v94
v_lshl_add_u32 v94, v15, 4, v94
s_lshl_b32 s84, s{sW}, 13
v_add_u32 v94, s84, v94""")
    def unit_dma(mat, z, scr, vs=None):
        if mat in cfg.norp: return []
        a = UP[(mat, z)][0]; st = 9216 if mat == 1 else 1152
        L = [f"s_lshl_b32 s84, s{sW}, 13\ns_add_u32 s84, s84, {scr + 4096*z}\ns_mov_b32 m0, s84"]
        for q in range(4):
            if q: L.append(f"s_add_u32 s{a}, s{a}, {8*st - 1024}")
            L.append((f"buffer_load_dwordx4 v{vs or 91+mat}, {srd(sW1 if mat == 1 else sW2)}, s{a} offen offset:{1024*q}{cfg.rawfl} lds", "wr"))
        return L
    def unit_tr(z, scr, vt):
        return [f"ds_read_b64_tr_b16 {vq(vt+4*t+2*hi,2)}, v94 offset:{scr + 4096*z + 64*(t>>1) + 8*(t&1) + 512*hi}" for t in range(4) for hi in range(2)]
    def unit_st(mat, z, vt):
        if mat in cfg.norp: return []
        _, d, st = UP[(mat, z)]; L = []
        for t in range(4):
            if t: L.append(f"s_add_u32 s{d}, s{d}, s{st}")
            L.append((f"buffer_store_dwordx4 {vq(vt+4*t)}, v{vL16}, {srd(sWS)}, s{d} offen{cfg.wrsfl}", "wrs"))
        return L
    MS, MP, ME, MO = 96, 100, 104, 108
    P(f"""v_mov_b32 v66, {hexf(-1e30)}
v_lshlrev_b32 v64, 2, v{vG}
v_sub_u32 v64, v64, v{vI}
s_cmp_eq_u32 s{sG1}, 0
s_cselect_b32 s84, 100, 0
v_cmp_gt_u32 s[80:81], 2, v{vG}""")
    for r in range(4):
        P(f"""v_add_u32 v65, {r+7}, v64
v_cmp_gt_u32 vcc, 8, v65
v_add_u32 v65, {r}, v64
v_subrev_u32 v67, s84, v65
v_cndmask_b32 v{MS+r}, v66, 0, vcc
v_cmp_lt_i32 vcc, 8, v65
v_cmp_lt_i32 s[82:83], 8, v67
v_cmp_lt_i32 s[86:87], 0, v67
v_cndmask_b32 v{MP+r}, v66, 0, vcc
s_and_b64 s[86:87], s[86:87], s[80:81]
v_cndmask_b32 v{MO+r}, v66, 0, s[82:83]
v_cndmask_b32 v{ME+r}, v66, 0, s[86:87]""")
    P("@waitvm r0")
    stamp("r0 landed")
    for t in range(4):
        P(f"ds_read_b64_tr_b16 {vq(16+4*t,2)}, v{32+2*t}")
        P(f"ds_read_b64_tr_b16 {vq(18+4*t,2)}, v{33+2*t}")
    for t in range(4):
        P(f"buffer_store_dwordx4 {vq(16+4*t)}, v{40+t}, {srd(sWS)}, 0 offen sc1", "r0s")
    stamp("@r0 st")
    xrest = xl[cfg.nx1:] + hl
    P(f"@waitlg_all\ns_add_u32 s{sTAG}, s{sTAG}, 0x9E3779B9")
    P(f"""s_lshl_b32 s84, s{sJ1}, 12
s_add_u32 s84, s84, {F0S}
s_lshl_b32 s85, s{sG1}, 2
s_add_u32 s85, s85, s84
v_mov_b32 v44, s85
v_cmp_eq_u32 vcc, 0, v0
v_cndmask_b32 v44, v13, v44, vcc
v_and_b32 v45, 31, v{vL}
v_lshl_add_u32 v45, v45, 2, s84
s_lshl_b32 s84, s{sJ2 if cfg.f0both else sJ1}, 12
s_add_u32 s84, s84, {F0S - 128}
v_lshl_add_u32 v5, v{vL}, 2, s84
v_cmp_gt_u32 vcc, 32, v{vL}
v_cndmask_b32 v45, v5, v45, vcc""")
    def stats(groups, acc):
        order = sorted((r, gi, k) for gi, regs in enumerate(groups) for k, r in enumerate(regs))
        L = []
        for r, gi, k in order:
            a = acc + 4*gi + 2*(k & 1)
            c0 = "0" if k < 2 else f"v{a}"; c1 = "0" if k < 2 else f"v{a+1}"
            L.append(f"v_dot2_f32_bf16 v{a}, v{r}, s99, {c0}\nv_dot2_f32_bf16 v{a+1}, v{r}, v{r}, {c1}")
        for gi in range(len(groups)):
            a = acc + 4*gi
            L.append(f"v_add_f32 v{a}, v{a}, v{a+2}\nv_add_f32 v{a+1}, v{a+1}, v{a+3}")
        return L
    def finish_stats(A):
        for t in [f"v_mul_f32 v@0, {hexf(1/576)}, v@0", f"v_mul_f32 v@2, v@0, v@0", f"v_mul_f32 v@1, {hexf(1/576)}, v@1", "v_sub_f32 v@1, v@1, v@2",
                  "v_max_f32 v@1, 0, v@1", f"v_add_f32 v@1, {hexf(1e-5)}, v@1", "v_rsq_f32 v@1, v@1", "v_mul_f32 v@2, v@0, -v@1",
                  "v_mov_b32 v@0, v@1", "v_mov_b32 v@3, v@2"]:
            for a in A: P(t.replace("@0", str(a)).replace("@1", str(a+1)).replace("@2", str(a+2)).replace("@3", str(a+3)))
    def normalize(q, a, t, pk=True):
        L = []
        for d in range(4):
            L.append(f"v_lshlrev_b32 v{t+2*d}, 16, v{q+d}")
            L.append(f"v_and_b32 v{t+2*d+1}, s98, v{q+d}")
        if pk:
            for d in range(4): L.append(f"v_pk_fma_f32 {vq(t+2*d,2)}, {vq(t+2*d,2)}, {vq(a,2)}, {vq(a+2,2)}")
        else:
            for d in range(8): L.append(f"v_fma_f32 v{t+d}, v{t+d}, v{a}, v{a+2}")
        for d in range(4): L.append(f"v_cvt_pk_bf16_f32 v{q+d}, v{t+2*d}, v{t+2*d+1}")
        return L
    ST = 144; NT = 112
    st = stats([[XR + (q*2+hh)*4 + d for q in range(9) for d in range(4)] for hh in range(2)] + [[XH + k for k in range(20)]], ST)
    raw = {1: [], 2: []}
    for z in range(2):
        raw[1] += unit_dma(1, z, W1SCR); raw[2] += unit_dma(2, z, W2SCR0)
    raw[1].append(f"s_mul_i32 s84, s{sJF}, 1152\nv_lshlrev_b32 v5, 7, v{vI}")
    raw[1].append((f"buffer_load_dword v252, v5, {srd(sB1)}, s84 offen", "wr"))
    raw[1].append((f"buffer_load_dword v253, v5, {srd(sB2)}, 0 offen", "wr"))
    k = 0
    for n, l in enumerate(xrest + [None]):
        if n == cfg.nx2:
            stamp("@pre-ack")
            P("@waitvm r0s")
            stamp("@acked")
            P("s_barrier")
            set_flag(44)
            stamp("F0 set")
        if l is None: break
        P(l, "x")
        if cfg.nx1 + n + 1 - k//4 > cfg.lag: P.extend(st[k:k+4]); k += 4
    if cfg.rawat == 0: P.extend(raw[1])
    P.extend(st[k:])
    if cfg.rawat == 1: P.extend(raw[1])
    if cfg.w2at == 4: P.extend(raw[2])
    for mod in ["quad_perm:[1,0,3,2]", "quad_perm:[2,3,0,1]", "row_half_mirror"]:
        for gi in range(3):
            for k in range(2):
                a = ST + 4*gi + k
                P(f"v_add_f32_dpp v{a}, v{a}, v{a} {mod} row_mask:0xf bank_mask:0xf")
    for k in range(2): P(f"v_add_f32_dpp v{ST+8+k}, v{ST+8+k}, v{ST+8+k} row_mirror row_mask:0xf bank_mask:0xf")
    finish_stats([ST, ST+4, ST+8])
    stamp("LN1 stats")
    P(f"""v_lshrrev_b32 v156, 2, v9
v_mul_u32_u24 v156, 5120, v156
v_and_b32 v157, 3, v9
v_lshl_add_u32 v156, v157, 8, v156
v_xor_b32 v157, v8, v9
v_lshl_add_u32 v156, v157, 4, v156
s_lshl_b32 s84, s{sW}, 10
s_add_u32 s84, s84, {XB}
v_add_u32 v156, s84, v156
v_add_u32 v157, {10240*5}, v156
v_lshrrev_b32 v158, 2, v{vI}
v_mul_u32_u24 v158, 5120, v158
v_lshl_add_u32 v158, v15, 8, v158
v_xor_b32 v159, v10, v9
v_lshl_add_u32 v158, v159, 4, v158
v_add_u32 v158, {XB + 4096}, v158
v_add_u32 v159, {20480*3}, v158""")
    ntc = [0]
    def ln1_batch(b):
        L = []
        for q in range(2*b, min(2*b+2, 9)):
            for hh in range(2):
                r = XR + (q*2+hh)*4
                L += normalize(r, ST + 4*hh, NT + 8*(ntc[0] & 1), b < 2); ntc[0] += 1
                L.append(f"ds_write_b128 v{156 if q < 5 else 157}, {vq(r)} offset:{10240*(q % 5) + 128*hh}")
        L += normalize(XH + 4*b, ST + 8, NT + 8*(ntc[0] & 1), b < 2); ntc[0] += 1
        wr = f"ds_write_b128 v{158 if b < 3 else 159}, {vq(XH+4*b)} offset:{20480*(b % 3)}"
        if b == 4: wr = "s_mov_b32 exec_lo, 0x00ff00ff\ns_mov_b32 exec_hi, 0x00ff00ff\n" + wr + "\ns_mov_b64 exec, -1"
        L.append(wr)
        return L
    if cfg.rawat != 4: P.extend(ln1_batch(0))
    P(f"""s_lshl_b32 s74, s{sJ1}, 2
s_add_u32 s74, s74, s{sW}
s_mul_i32 s74, s74, {18*3584}
s_add_u32 s74, s74, {WQP}
s_add_u32 s75, s74, {18*3584}
s_mul_i32 s78, s{sRP}, {2*3584}
s_add_u32 s78, s78, s74
v_lshlrev_b32 v7, 7, v{vG}
v_lshl_add_u32 v7, v{vI}, 4, v7
v_cmp_gt_u32 vcc, 6, v{vI}
v_cndmask_b32 v7, v13, v7, vcc
v_xor_b32 v8, v{vI}, v{vG}
v_lshlrev_b32 v8, 4, v8
v_lshl_add_u32 v8, v{vG}, 8, v8
v_add_u32 v8, {XB}, v8
v_xor_b32 v9, 64, v8
v_add_u32 v10, 46080, v8
v_add_u32 v11, 46080, v9""")
    stamp("@LN1 b0")
    if cfg.poll1: P(f"s_waitcnt vmcnt(0)\ns_cmp_lg_u32 s{sW}, 0\ns_cbranch_scc1 L_pdone{npoll[0]}")
    poll(45, 5)
    if cfg.poll1: P("s_barrier")
    stamp("F0 seen")
    QA, KA, EA, VA = 16, 32, 52, 72
    WR = 64
    D = cfg.p1depth
    def wq_loads(s):
        b = WR + (s % D)*16
        L = [(f"buffer_load_dwordx4 {aq(b+4*t)}, v{vL16}, {srd(sWS)}, s78 offen offset:{1024*t}{cfg.wsc}", "wq") for t in range(3)]
        L.append((f"buffer_load_dwordx4 {aq(b+12)}, v7, {srd(sWS)}, s78 offen offset:3072{cfg.wsc}", "wq"))
        if s < 17: L.append(wrap(78, 3584, 75, 74))
        return L
    def x_reads(s):
        b = (s % 2)*20
        reg = (8 if s % 2 == 0 else 9) + (2 if s >= 9 else 0)
        return [f"ds_read_b128 {aq(b+4*m)}, v{reg} offset:{((s % 9)*5 + m)*1024}" for m in range(5)]
    def join(L):
        out = []; pend = ""
        for x in L:
            if isinstance(x, tuple): out.append((pend + x[0], x[1])); pend = ""
            else: pend += x + "\n"
        if pend: out.append(pend.strip())
        return out
    if cfg.rawat == 4:
        mem = join(sum([wq_loads(s) for s in range(D-1)], []))
        tail_ = [mem.pop()] if not isinstance(mem[-1], tuple) else []
        mem += tail_ + join(raw[1]) + (join(raw[2]) if cfg.w2at == 6 else [])
        work = ln1_batch(0) + ln1_batch(1)
        for l in mem[:cfg.nq1]: P.add(l)
        mem = mem[cfg.nq1:]
        for n, l in enumerate(work):
            P.add(l)
            if n % cfg.qgap == cfg.qgap - 1 and mem: P.add(mem.pop(0))
        for l in mem: P.add(l)
    else:
        for s in range(D-1): P.extend(wq_loads(s))
        if cfg.rawat == 2: P.extend(raw[1])
        P.extend(ln1_batch(1))
    P("@waitlg_all\ns_barrier")
    P.extend(x_reads(0))
    stamp("GEMM1 start")
    def lines(t): return t.split("\n")
    def own_flag(vd, base, sa, sha, sb, shb):
        return [f"s_lshl_b32 s86, s{sa}, {sha}", f"s_lshl_b32 s87, s{sb}, {shb}", "s_add_u32 s86, s86, s87", f"s_add_u32 s86, s86, {base}",
                f"v_mov_b32 v{vd}, s86", f"v_cmp_eq_u32 vcc, 0, v0\nv_cndmask_b32 v{vd}, v13, v{vd}, vcc"]
    def grp_poll_addr(vd, sg, base):
        return lines(f"""s_lshl_b32 s86, s{sg}, 12
s_add_u32 s86, s86, {base}
v_and_b32 v{vd}, 7, v{vL}
v_lshl_add_u32 v{vd}, v{vd}, 4, s86""")
    def set_poll_addr(vd, sj, base):
        return lines(f"""s_lshl_b32 s86, s{sj}, 12
s_add_u32 s86, s86, {base}
v_and_b32 v{vd}, 31, v{vL}
v_lshl_add_u32 v{vd}, v{vd}, 2, s86""")
    def flag_items(vaddr):
        return [f"v_mov_b32 v5, s{sTAG}", (f"buffer_store_dword v5, v{vaddr}, {srd(sWS)}, 0 offen sc1", "flag")]
    def unpack(dst, src, n):
        return sum([[f"v_lshlrev_b32 v{dst+2*k}, 16, v{src+k}", f"v_and_b32 v{dst+2*k+1}, s98, v{src+k}"] for k in range(n)], [])
    QO, KO, VO, XO = 112, 128, 148, 160
    flex = []
    T0 = 128
    for l in ln1_batch(2): flex.append((0, l))
    flex.append((0, "@mark0"))
    flex2 = []
    q1, q2, q3, q4 = cfg.gq
    if cfg.rawat == 3:
        for k, l in enumerate(join(raw[1])): flex2.append((int(19*q1) + 2*k, l))
    def repack(mat, scr, g0):
        flex2.append((g0, "@waitvm wr"))
        for z in range(2):
            for l in unit_tr(z, scr, T0): flex2.append((g0 + 24*z, l))
            for k, l in enumerate(join(unit_st(mat, z, T0))): flex2.append((g0 + 24*z + 8 + 4*k, l))
    if cfg.w2at == 3 and q3 < q2:
        for k, l in enumerate(join(raw[2])): flex2.append((int(19*q3) + 2*k, l))
    repack(1, W1SCR, int(19*q2))
    if cfg.w2at >= 3:
        if q3 >= q2 and cfg.w2at == 3:
            for k, l in enumerate(join(raw[2])): flex2.append((int(19*q3) + 2*k, l))
        repack(2, W2SCR0, int(19*q4))
    flex2.append((0, "@markb"))
    for l in ln1_batch(3) + own_flag(95, F1S, sJ1, 12, sG1, 2): flex.append((0, l))
    flex.append((0, "@mark1"))
    for l in ln1_batch(4): flex.append((0, l))
    flex.append((0, "@mark2"))
    pre = lines(f"""s_lshl_b32 s84, s{sW}, 10
s_add_u32 s84, s84, {VXS}
v_lshl_add_u32 v234, v{vI}, 1, s84
v_add_u32 v235, 512, v234
v_cmp_eq_u32 vcc, 1, v{vG}@@v_cndmask_b32 v234, v235, v234, vcc
v_lshl_add_u32 v235, v{vL}, 2, s84
v_min_u32 v236, 2, v{vI}
v_mul_u32_u24 v236, 160, v236
v_lshl_add_u32 v236, v{vG}, 3, v236
v_add_u32 v236, s84, v236
v_mov_b32 v237, s99
s_mul_i32 s84, s{sG1}, 73728
s_add_u32 s84, s84, {OP}
s_lshl_b32 s85, s{sJ1}, 1
s_lshr_b32 s86, s{sW}, 1
s_add_u32 s85, s85, s86
s_lshl_b32 s85, s85, 12
s_and_b32 s86, s{sW}, 1
s_lshl_b32 s86, s86, 9
s_add_u32 s85, s85, s86
s_add_u32 s95, s85, s84
s_lshl_b32 s87, s{sJ1}, 2
s_add_u32 s87, s87, s{sW}
s_lshl_b32 s87, s87, 8
s_add_u32 s87, s87, 65536
s_add_u32 s96, s87, s84
v_and_b32 v232, 1, v{vG}
v_lshlrev_b32 v232, 10, v232
v_lshrrev_b32 v233, 1, v{vG}
v_lshl_add_u32 v232, v233, 8, v232
v_lshl_add_u32 v232, v{vI}, 4, v232
v_lshlrev_b32 v233, 2, v{vL}
s_mul_i32 s79, s{sJ2}, 82944
s_add_u32 s79, s79, {WOP}
s_lshl_b32 s84, s{sW}, 1
s_add_u32 s85, s84, s{sR2}
s_and_b32 s86, s85, 7
s_mul_i32 s86, s86, 9216
s_add_u32 s80, s86, s79
s_add_u32 s85, s85, 1
s_and_b32 s86, s85, 7
s_mul_i32 s86, s86, 9216
s_add_u32 s81, s86, s79
s_lshl_b32 s84, s84, 10
s_add_u32 s84, s84, 73728
s_add_u32 s82, s84, s79
s_mov_b32 s83, s84
s_mul_i32 s76, s{sW}, 18432
s_lshl_b32 s84, s{sG2}, 6
s_and_b32 s85, s{sW}, 1
s_lshl_b32 s85, s85, 5
s_add_u32 s85, s85, s84
s_lshr_b32 s86, s{sW}, 1
s_add_u32 s85, s85, s86
s_mul_i32 s85, s85, 1152
s_mul_i32 s86, s{sJ2}, 144
s_add_u32 s79, s85, s86
v_mul_u32_u24 v238, 7282, v{vL}
v_lshrrev_b32 v238, 16, v238
v_mul_u32_u24 v239, 9, v238
v_sub_u32 v239, v{vL}, v239
v_mul_u32_u24 v238, 2304, v238
v_lshl_add_u32 v238, v239, 4, v238
v_cmp_gt_u32 vcc, 54, v{vL}@@v_cndmask_b32 v238, v13, v238, vcc
s_mul_i32 s77, s{sW}, 3072
s_add_u32 s77, s77, {XRS}
s_mov_b32 s94, {hexf((18 ** -0.5) * 1.4426950408889634)}""") + set_poll_addr(15, sJF, F1S)
    pre += [f"v_mov_b32 v{KO+4*m+3}, 0" for m in range(5)] + [f"v_mov_b32 v{QO+4*m+3}, 0" for m in range(4)]
    for l in pre: flex.append((0, l.replace("@@", "\n")))
    mains = []; fixed = {}
    for s in range(18):
        wb = WR + (s % D)*16; xb = (s % 2)*20
        base = len(mains)
        for m in range(5):
            x = aq(xb + 4*m)
            def acc(a): return (vq(a), "0" if s == 0 else vq(a))
            if cfg.g1ord == 0:
                d, c = acc(KA + 4*m); mains.append(f"{MF} {d}, {aq(wb+4)}, {x}, {c}")
                d, c = acc(VA + 4*m); mains.append(f"{MF} {d}, {x}, {aq(wb+8)}, {c}")
                d, c = acc(EA + 4*m); mains.append(f"{MF} {d}, {aq(wb+12)}, {x}, {c}")
                if m < 4:
                    d, c = acc(QA + 4*m); mains.append(f"{MF} {d}, {aq(wb)}, {x}, {c}")
        if cfg.g1ord == 1:
            def acc(a): return (vq(a), "0" if s == 0 else vq(a))
            for m in range(5):
                d, c = acc(KA + 4*m); mains.append(f"{MF} {d}, {aq(wb+4)}, {aq(xb+4*m)}, {c}")
            for m in range(4, -1, -1):
                d, c = acc(EA + 4*m); mains.append(f"{MF} {d}, {aq(wb+12)}, {aq(xb+4*m)}, {c}")
            for m in range(4):
                d, c = acc(QA + 4*m); mains.append(f"{MF} {d}, {aq(wb)}, {aq(xb+4*m)}, {c}")
            for m in range(5):
                d, c = acc(VA + 4*m); mains.append(f"{MF} {d}, {aq(xb+4*m)}, {aq(wb+8)}, {c}")
        t_ = stamp_txt(f"@q{s}") if s else None
        if t_: fixed.setdefault(base - 1, []).append(t_)
        if s == 7: fixed.setdefault(base, []).extend(["@flexdone0", "@waitlg_all", "s_barrier"])
        fb_ = ["@flexdoneb", "@waitvm wrs"]
        if s == 11: fixed.setdefault(base, []).extend(["@flexdone1"] + (fb_ if cfg.f1s == 11 else []) + ["@waitlg_all", "s_barrier"] + (flag_items(95) if cfg.f1s == 11 else []))
        if s == 15: fixed.setdefault(base, []).extend(["@flexdone2"] + (fb_ if cfg.f1s == 15 else []) + ["@waitlg_all", "s_barrier"] + (flag_items(95) if cfg.f1s == 15 else []))
        if s + 1 < 18:
            for k, l in enumerate(x_reads(s+1)): fixed.setdefault(base + 1 + 2*k, []).append(l)
            fixed.setdefault(base + 18, []).append(f"@need {aq(WR + ((s+1) % D)*16, 16)} {aq(((s+1) % 2)*20, 20)}")
        if s + D - 1 < 18:
            for k, l in enumerate(wq_loads(s + D - 1)): fixed.setdefault(base + [2, 6, 10, 12, 14][k], []).append(l)
    dma = []
    for seg in range(2):
        for k in range(9):
            it = ""
            if k % 4 == 0:
                it = f"s_add_u32 s84, s76, {seg*9216 + 1024*k}\ns_mov_b32 m0, s84\n"
                if k: it += f"s_add_u32 s{80+seg}, s{80+seg}, 4096\n"
            dma.append((it + f"buffer_load_dwordx4 v{vL16}, {srd(sWS)}, s{80+seg} offen offset:{1024*(k % 4)} sc1 lds", "wo"))
    tail3 = [(("s_mov_b32 m0, s83\n" if k == 0 else "") + f"buffer_load_dwordx4 v{vL16}, {srd(sWS)}, s82 offen offset:{1024*k} sc1 lds", "wo") for k in range(3)]
    xres3 = [(("s_mov_b32 m0, s77\n" if k == 0 else f"s_add_u32 s79, s79, {13824 - 1024}\n") + f"buffer_load_dwordx4 v238, {srd(sX)}, s79 offen offset:{1024*k} lds", "wo") for k in range(3)]
    ne = cfg.wo_early
    if not cfg.f0both:
        for l in set_poll_addr(240, sJ2, F0S): flex.append((0, l))
        flex.append((0, poll_pre(240, 241)))
        flex.append((19*15, poll_check(240, 241)))
    for k in range(ne): flex.append((max(19*(18 - (ne*5 + 18)//19) + 5*k, 19*cfg.f1s + 1), dma[k]))
    sched(P, mains, fixed, flex, flex2=flex2)
    stamp("GEMM1 done")
    P("s_barrier")
    A = Prog()
    A(f"s_mov_b32 exec_hi, 0xffff\nds_write_b32 v235, v237 offset:320\ns_mov_b32 exec_hi, -1")
    for m in range(5):
        r = QO + 4*m + 2 if m < 4 else 172
        A(f"v_cvt_pk_bf16_f32 v{r}, v{EA+4*m}, v{EA+4*m+1}")
        A(f"ds_write_b16 v234, v{r} offset:{32*m}\nds_write_b16_d16_hi v234, v{r} offset:{160+32*m}")
    SA = 176
    prev = [4, 0, 4, 2]; pmask = [ME, MP, MO, MP]
    def kop(m): A(f"v_cvt_pk_bf16_f32 v{KO+4*m}, v{KA+4*m}, v{KA+4*m+1}\nv_cvt_pk_bf16_f32 v{KO+4*m+1}, v{KA+4*m+2}, v{KA+4*m+3}\nv_cvt_pk_bf16_f32 v{KO+4*m+2}, v{EA+4*m+2}, v{EA+4*m+3}")
    def qop(m): A(f"v_cvt_pk_bf16_f32 v{QO+4*m}, v{QA+4*m}, v{QA+4*m+1}\nv_cvt_pk_bf16_f32 v{QO+4*m+1}, v{QA+4*m+2}, v{QA+4*m+3}")
    kop(4)
    for m in range(4):
        qop(m); kop(m)
        if m: A(f"{MF} {vq(SA+8*(m-1)+4)}, {vq(KO+4*(m-1))}, {vq(QO+4*(m-1))}, {vq(MS)}")
        A(f"{MF} {vq(SA+8*m)}, {vq(KO+4*prev[m])}, {vq(QO+4*m)}, {vq(pmask[m])}")
    vorder = [4, 0, 1, 4, 2, 3]
    for k, m in enumerate(vorder):
        A(f"v_cvt_pk_bf16_f32 v{VO+2*k}, v{VA+4*m}, v{VA+4*m+1}\nv_cvt_pk_bf16_f32 v{VO+2*k+1}, v{VA+4*m+2}, v{VA+4*m+3}")
        if k == 0: A(f"{MF} {vq(SA+28)}, {vq(KO+12)}, {vq(QO+12)}, {vq(MS)}")
    A("@waitlg_all")
    for k, m in enumerate(vorder): A(f"ds_read_b64 {vq(XO+2*k,2)}, v236 offset:{32*m}")
    MX = 208
    for m in range(4):
        s = SA + 8*m
        A(f"v_max3_f32 v{MX+m}, v{s}, v{s+1}, v{s+2}\nv_max3_f32 v{MX+4+m}, v{s+3}, v{s+4}, v{s+5}")
    for m in range(4):
        s = SA + 8*m
        A(f"v_max3_f32 v{MX+m}, v{MX+m}, v{s+6}, v{s+7}")
    for m in range(4): A(f"v_max_f32 v{MX+m}, v{MX+m}, v{MX+4+m}")
    for sw in ["v_permlane16_swap_b32", "v_permlane32_swap_b32"]:
        for m in range(4): A(f"v_mov_b32 v{MX+4+m}, v{MX+m}")
        for m in range(4): A(f"{sw} v{MX+m}, v{MX+4+m}")
        for m in range(4): A(f"v_max_f32 v{MX+m}, v{MX+m}, v{MX+4+m}")
    for m in range(4): A(f"v_mul_f32 v{MX+m}, s94, v{MX+m}")
    PO = 216; OA = 16; OX = 32
    for m in range(4):
        s = SA + 8*m
        for k in range(8): A(f"v_fma_f32 v{s+k}, v{s+k}, s94, -v{MX+m}")
        if m:
            o = [0, 2, 6, 8][m-1]
            A(f"{MF} {vq(OX+4*(m-1))}, {vq(XO+o)}, {vq(PO+4*(m-1))}, 0")
            A(f"{MF} {vq(OA+4*(m-1))}, {vq(VO+o)}, {vq(PO+4*(m-1))}, 0")
        for k in range(8): A(f"v_exp_f32 v{s+k}, v{s+k}")
        for k in range(4): A(f"v_cvt_pk_bf16_f32 v{PO+4*m+k}, v{s+2*k}, v{s+2*k+1}")
    A(f"v_rcp_f32 v{MX}, v{OX+2}\nv_rcp_f32 v{MX+1}, v{OX+6}")
    A(f"{MF} {vq(OX+12)}, {vq(XO+8)}, {vq(PO+12)}, 0\n{MF} {vq(OA+12)}, {vq(VO+8)}, {vq(PO+12)}, 0")
    OP0 = 112
    for p in range(2):
        if p: A(f"v_rcp_f32 v{MX+2}, v{OX+10}\nv_rcp_f32 v{MX+3}, v{OX+14}")
        for m in (2*p, 2*p+1):
            for r in range(4): A(f"v_mul_f32 v{OA+4*m+r}, v{OA+4*m+r}, v{MX+m}")
            A(f"v_cvt_pk_bf16_f32 v{OP0+2*m}, v{OA+4*m}, v{OA+4*m+1}\nv_cvt_pk_bf16_f32 v{OP0+2*m+1}, v{OA+4*m+2}, v{OA+4*m+3}")
        for m in (2*p, 2*p+1):
            for r in range(2): A(f"v_mul_f32 v{OX+4*m+r}, v{OX+4*m+r}, v{MX+m}")
        b = OP0 + 4*p
        A(f"v_permlane16_swap_b32 v{b}, v{b+2}\nv_permlane16_swap_b32 v{b+1}, v{b+3}")
        A(f"buffer_store_dwordx4 {vq(OP0+4*p)}, v232, {srd(sWS)}, s95 offen offset:{2048*p} sc1", "o")
        for m in (2*p, 2*p+1): A(f"v_cvt_pk_bf16_f32 v{OP0+8+m}, v{OX+4*m}, v{OX+4*m+1}")
    A(f"v_permlane16_swap_b32 v{OP0+8}, v{OP0+9}\nv_permlane16_swap_b32 v{OP0+10}, v{OP0+11}")
    A(f"v_permlane32_swap_b32 v{OP0+8}, v{OP0+10}")
    A(f"buffer_store_dword v{OP0+8}, v233, {srd(sWS)}, s96 offen sc1", "o")
    late = dma[ne:] + tail3 + xres3 + [poll_pre(15, 14)]
    if cfg.w2at == 0:
        w2l = []
        for z in range(2):
            u = unit_dma(2, z, W2SCR)
            w2l.append((u[0] + "\n" + u[1][0], "wr"))
            for q in range(1, 4): w2l.append((u[2*q] + "\n" + u[2*q+1][0], "wr"))
        assert ne in (0, 4, 8, 9, 13)
        late = w2l + late
    k = 0
    for n, ins in enumerate(A.ins):
        P.add(ins)
        if n >= 3 and (n - 3) % cfg.dmagap == 0 and k < len(late): P.add(late[k]); k += 1
    assert k == len(late)
    stamp("attn done")
    NR = 56; AF = 224
    ACA, ACB = 16, 96
    CA, CB = 96, 160
    passes = [("A", [0, 1, 2, 3, 8], ACA, CA), ("B", [4, 5, 6, 7], ACB, CB), ("C", [4, 5, 8], 16, None), ("D", [0, 1], 96, None), ("E", [2, 3], 64, None), ("F", [6, 7], 16, None)]
    if cfg.p522: passes = passes[:2] + [("C", [4, 5, 8, 0, 1], 16, None), ("E", [2, 3], 96, None), ("F", [6, 7], 128, None)]
    steps = [(pi, p) for pi in range(len(passes)) for p in range(18)]
    cons = [(pi, p, t) for pi, p in steps for t in range(len(passes[pi][1]))]
    slot = {f: n % NR for n, f in enumerate(cons)}
    def wload(n):
        pi, p, t = cons[n]; L = []
        if t == 0 and n > 0:
            if pi == 1 and p == 0:
                L.append(f"s_mul_i32 s92, s{sRF}, 9216\ns_add_u32 s92, s92, s90")
            elif pi >= 2 and p in (0, 10):
                beg = 0 if p == 0 else 10*9216; end = (10 if p == 0 else 18)*9216
                L.append(f"s_add_u32 s90, s89, {beg}\ns_add_u32 s91, s89, {end}")
                L.append(f"s_mul_i32 s92, s{93 if p == 0 else 94}, 9216\ns_add_u32 s92, s92, s90")
            else: L.append(wrap(92, 9216, 91, 90))
        tile = passes[pi][1][t]
        L.append((f"buffer_load_dwordx4 {aq(4*(n % NR))}, v{[vL16, 12, 255][tile >> 2]}, {srd(sWS)}, s92 offen offset:{1024*(tile % 4)}{cfg.wsc}", "w"))
        return L
    npf = [0]
    def prefetch(n):
        L = []
        for k in range(n): L += wload(npf[0]); npf[0] += 1
        return L
    P(f"""s_lshl_b32 s88, s{sJF}, 2
s_add_u32 s88, s88, s{sW}
s_mul_i32 s88, s88, {162*1024}
s_add_u32 s89, s88, {W2R}
s_add_u32 s88, s88, {W1R}
s_mul_i32 s92, s{sRF}, 9216
s_add_u32 s92, s92, s88
s_mov_b32 s90, s88
s_add_u32 s91, s88, {162*1024}
v_add_u32 v12, 4096, v{vL16}
v_add_u32 v255, 8192, v{vL16}""")
    P(poll_check(15, 14))
    pa, pb, pc, pd, pe = cfg.pre
    P.extend(prefetch(pa))
    P.extend(own_flag(14, F1G, sG1, 12, sJ1, 4)); P.extend(grp_poll_addr(15, sG2, F1G))
    HA = 16; HQ = 36; OF = 48; WB = 120; NW = 28
    P(f"""v_add_u32 v10, 41472, v{vL16}
v_and_b32 v11, 7, v{vI}
v_lshlrev_b32 v11, 4, v11
v_lshl_add_u32 v11, v{vG}, 7, v11
v_add_u32 v9, 41472, v11
v_mul_u32_u24 v7, 43, v{vI}
v_lshrrev_b32 v7, 8, v7
v_mul_u32_u24 v7, 160, v7
v_mul_u32_u24 v6, 144, v{vI}
v_add3_u32 v6, v6, v7, s77
v_and_b32 v7, 1, v{vG}
v_lshl_add_u32 v7, v7, 3, v6
v_lshl_add_u32 v6, v{vG}, 4, v6""")
    P("@waitvm o\ns_barrier")
    set_flag(14)
    stamp("F1 set")
    if cfg.p1early: P.add(poll_pre(15, 46))
    if cfg.w2at == 1:
        for z in range(2): P.extend(unit_dma(2, z, W2SCR))
    P.extend(prefetch(pb))
    if not cfg.p1early: P.add(poll_pre(15, 46))
    P(f"ds_read_b128 {vq(HQ)}, v6\nds_read_b128 {vq(HQ+4)}, v6 offset:64\nds_read_b64 {vq(HQ+8,2)}, v7 offset:128")
    def wo_reg(n): return vq(WB + 4*(n % NW))
    wor = []
    for s in range(18):
        for t in range(5):
            reg = (vL16 if s < 9 else 10) if t < 4 else (11 if s < 9 else 9)
            wor.append(f"ds_read_b128 {wo_reg(s*5+t)}, v{reg} offset:{WOB + (s % 9)*4608 + 1024*t}")
    P.extend(wor[:NW - 1])
    P(f"""s_mul_i32 s84, s{sG2}, 73728
s_lshl_b32 s85, s{sW}, 10
s_add_u32 s84, s84, s85
s_add_u32 s74, s84, {OP}
s_add_u32 s75, s74, 65536
s_mul_i32 s79, s{sW}, {1024 - 64}
s_sub_u32 s79, s75, s79
v_lshlrev_b32 v232, 10, v{vG}
v_lshl_add_u32 v232, v{vI}, 2, v232
s_lshl_b32 s78, s{sR2}, 13
s_add_u32 s78, s78, s74
s_add_u32 s84, s84, {HP}
s_mul_i32 s85, s{sJ2}, 9
v_add_u32 v6, s85, v{vG}
v_lshrrev_b32 v7, 2, v6
v_lshlrev_b32 v7, 12, v7
v_and_b32 v6, 3, v6
v_lshl_add_u32 v6, v6, 8, v7
v_lshl_add_u32 v6, v{vI}, 4, v6
v_add_u32 v6, s84, v6
s_add_u32 s85, s85, 8
s_lshr_b32 s86, s85, 2
s_lshl_b32 s86, s86, 12
s_and_b32 s85, s85, 3
s_lshl_b32 s85, s85, 8
s_add_u32 s85, s85, s86
s_add_u32 s85, s85, s84
v_lshlrev_b32 v7, 4, v{vI}
v_lshl_add_u32 v7, v{vG}, 3, v7
v_add_u32 v7, s85, v7
v_cmp_gt_u32 s[82:83], 2, v{vG}
v_add_u32 v8, 4096, v6
v_add_u32 v47, {W2SCR}, v94
v_mov_b32 v235, v93
v_cndmask_b32 v7, v13, v7, s[82:83]
s_lshl_b32 s84, s{sG2}, 2
s_add_u32 s84, s84, s{sW}
s_lshl_b32 s84, s84, 3
s_add_u32 s84, s84, s{sJ2}
s_lshl_b32 s84, s84, 7
s_add_u32 s84, s84, {STATS}
v_lshl_add_u32 v233, v{vI}, 3, s84
v_cmp_gt_u32 vcc, 16, v{vL}
v_cndmask_b32 v233, v13, v233, vcc""")
    P.extend(unpack(HA, HQ, 10))
    P(poll_check(15, 46))
    stamp("F1 seen")
    ol = []
    for s in range(16):
        ol.append([(f"buffer_load_dwordx4 {vq(OF+4*s)}, v{vL16}, {srd(sWS)}, s78 offen sc1", "of")] + ([wrap(78, 4096, 75, 74)] if s < 15 else []))
    for s in (16, 17):
        for ww in range(4): ol.append([(f"buffer_load_dword v{OF+4*s+ww}, v232, {srd(sWS)}, s79 offen offset:{256*ww} sc1", "of")] + (["s_add_u32 s79, s79, 4096"] if (s, ww) == (16, 3) else []))
    for L in ol[:cfg.no1]: P.extend(L)
    flex = []
    for l in own_flag(14, F2G, sG2, 12, sJ2, 4) + grp_poll_addr(15, sGF, F2G): flex.append((0, l))
    for l in lines(f"""s_mul_i32 s84, s{sJF}, 1152
s_lshl_b32 s85, s{sW}, 8
s_add_u32 s80, s85, s84
s_lshr_b32 s86, s{sW}, 1
s_lshl_b32 s86, s86, 6
s_and_b32 s87, s{sW}, 1
s_lshl_b32 s87, s87, 3
s_add_u32 s86, s86, s87
s_add_u32 s81, s86, s84
v_lshlrev_b32 v234, 4, v{vG}"""): flex.append((0, l))
    for l in prefetch(pc): flex.append((64, l))
    mains = [f"{MF} {vq(HA+4*t)}, {wo_reg(s*5+t)}, {vq(OF+4*s)}, {vq(HA+4*t)}" for s in range(18) for t in range(5)]
    fixed = {n: [wor[n + NW - 1]] for n in range(90 - NW + 1)}
    for k, L in enumerate(ol[cfg.no1:]):
        g = int(k*cfg.ogap)
        fixed.setdefault(g, []).append(L[0])
        if len(L) > 1: fixed.setdefault(g + 1, []).append(L[1])
    sched(P, mains, fixed, flex)
    for k in range(4): P(f"v_cvt_pk_bf16_f32 v{HQ+k}, v{HA+2*k}, v{HA+2*k+1}")
    P(f"buffer_store_dwordx4 {vq(HQ)}, v6, {srd(sWS)}, 0 offen sc1", "h")
    for k in range(4, 8): P(f"v_cvt_pk_bf16_f32 v{HQ+k}, v{HA+2*k}, v{HA+2*k+1}")
    P(f"buffer_store_dwordx4 {vq(HQ+4)}, v8, {srd(sWS)}, 0 offen sc1", "h")
    for k in range(8, 10): P(f"v_cvt_pk_bf16_f32 v{HQ+k}, v{HA+2*k}, v{HA+2*k+1}")
    P(f"buffer_store_dwordx2 {vq(HQ+8,2)}, v7, {srd(sWS)}, 0 offen sc1", "h")
    P(f"v_cndmask_b32 v16, 0, v{HQ+8}, s[82:83]\nv_cndmask_b32 v17, 0, v{HQ+9}, s[82:83]")
    P.extend(stats([[16, 17] + [HQ + k for k in range(8)]], 20))
    def xsum(a):
        for sw in ["v_permlane16_swap_b32", "v_permlane32_swap_b32"]:
            for k in range(2): P(f"v_mov_b32 v{a+2+k}, v{a+k}")
            for k in range(2): P(f"{sw} v{a+k}, v{a+2+k}")
            for k in range(2): P(f"v_add_f32 v{a+k}, v{a+k}, v{a+2+k}")
    xsum(20)
    P(f"buffer_store_dwordx2 {vq(20,2)}, v233, {srd(sWS)}, 0 offen sc1", "h")
    stamp("proj done")
    B1P = 136; HR = 160; ST = 132; NT = 116; SR = 154
    for p in range(4): P(f"buffer_load_dwordx4 {vq(B1P+4*p)}, v234, {srd(sB1)}, s80 offen offset:{64*p}", "b1")
    P(f"buffer_load_dwordx2 {vq(B1P+16,2)}, v234, {srd(sB1)}, s81 offen offset:1024", "b1")
    P.extend(prefetch(pd))
    P("@waitvm h\n@waitlg_all\ns_barrier")
    set_flag(14)
    stamp("F2 set")
    if cfg.w2at == 2:
        P.add(poll_pre(15, 46))
        for z in range(2): P.extend(unit_dma(2, z, W2SCR, 235))
    if cfg.w2st == 0 and cfg.w2at < 3:
        P("@waitvm wr")
        for z in range(2): P.extend([l.replace("v94", "v47") for l in unit_tr(z, 0, 48 + 16*z)])
        for z in range(2): P.extend(unit_st(2, z, 48 + 16*z))
    P.extend(prefetch(pe))
    if cfg.w2at != 2: P.add(poll_pre(15, 46))
    P.extend(unpack(CA, B1P, 8)); P.extend(unpack(CA+16, B1P+16, 2))
    P(f"""s_mul_i32 s84, s{sGF}, 73728
s_lshl_b32 s85, s{sW}, 10
s_add_u32 s84, s84, s85
s_add_u32 s74, s84, {HP}
s_add_u32 s75, s74, 73728
s_lshl_b32 s77, s{sRF}, 12
s_add_u32 s77, s77, s74
v_add_u32 v6, s85, v{vL16}
v_add_u32 v7, 36864, v6
v_add_u32 v8, 36864, v{vL16}
v_add_u32 v9, {HB}, v{vL16}
v_add_u32 v10, {HB + 36864}, v{vL16}
v_mov_b32 v11, v47
s_and_b32 s93, s{sGF}, 15
s_lshr_b32 s94, s93, 1
s_mul_i32 s93, s93, 5
s_lshr_b32 s93, s93, 3
s_lshl_b32 s84, s{sGF}, 12
s_add_u32 s84, s84, s85
s_add_u32 s84, s84, {STATS}
v_lshlrev_b32 v239, 8, v{vG}
v_lshl_add_u32 v239, v{vI}, 3, v239""")
    if not cfg.rot: P("s_mov_b32 s93, 0\ns_mov_b32 s94, 0")
    P.extend(own_flag(14, F2S, sJ1, 12, sG1, 2))
    vPS, vSS, vF3, vP3, vL4, vL2, vLS, vH4, vH2, vPT, vC4, vC2, vO4, vO2, vOS = range(240, 255)
    P.extend(own_flag(vF3, F3A, sGF, 12, sJF, 4)); P.extend(grp_poll_addr(vP3, sGF, F3A))
    if cfg.wflag:
        P(f"""s_lshl_b32 s87, s{sW}, 7
s_add_u32 s86, s86, s87
v_add_u32 v{vP3}, s87, v{vP3}
s_lshl_b32 s87, s{sJF}, 4
s_add_u32 s86, s86, s87
v_mov_b32 v{vF3}, s86
v_cmp_eq_u32 vcc, 0, v{vL}
v_cndmask_b32 v{vF3}, v13, v{vF3}, vcc""")
    P(f"""s_lshl_b32 s86, s{sGF}, 6
s_add_u32 s86, s86, s{sJF}
s_mul_i32 s86, s86, 9216
s_add_u32 s86, s86, {PART}
v_lshrrev_b32 v{vPS}, 3, v{vI}
v_mul_u32_u24 v{vPS}, {8*9216}, v{vPS}
v_and_b32 v5, 7, v{vI}
v_lshlrev_b32 v5, 3, v5
v_lshl_add_u32 v5, v{vG}, 6, v5
v_add3_u32 v{vSS}, v{vPS}, v5, s86
v_add_u32 v{vPS}, v{vSS}, v5
s_lshl_b32 s85, s{sW}, 8
s_add_u32 s87, s85, 8192
v_add_u32 v{vSS}, s87, v{vSS}
s_lshl_b32 s76, s{sW}, 11
v_add_u32 v{vPS}, s76, v{vPS}
s_lshl_b32 s86, s{sGF}, 3
s_add_u32 s86, s86, s{sJF}
s_mul_i32 s86, s86, {8*9216}
s_add_u32 s86, s86, {PART}
s_add_u32 s76, s76, s86
v_add_u32 v{vL4}, s76, v{vL16}
v_lshl_add_u32 v{vL2}, v{vL}, 3, s76
s_add_u32 s87, s87, s86
v_lshl_add_u32 v{vLS}, v{vL}, 3, s87
v_cmp_gt_u32 vcc, 32, v{vL}
v_lshrrev_b32 v5, 5, v{vL}
v_bfe_u32 v{vC4}, v{vL}, 3, 2
v_cndmask_b32 v{vLS}, v13, v{vLS}, vcc
v_and_b32 v{vO4}, 7, v{vL}
v_lshlrev_b32 v{vH4}, 12, v5
v_lshl_add_u32 v{vH4}, v{vC4}, 8, v{vH4}
v_lshl_add_u32 v{vH4}, v{vO4}, 4, v{vH4}
v_lshlrev_b32 v{vC4}, 4, v{vC4}
v_lshl_add_u32 v{vC4}, v5, 6, v{vC4}
v_bfe_u32 v{vO2}, v{vL}, 1, 3
v_and_b32 v5, 1, v{vL}
v_lshlrev_b32 v5, 3, v5
v_lshl_add_u32 v{vH2}, v{vG}, 8, v5
v_lshl_add_u32 v{vH2}, v{vO2}, 4, v{vH2}
v_lshl_add_u32 v{vC2}, v{vG}, 4, v5
s_lshr_b32 s87, s{sJF}, 1
s_and_b32 s86, s{sJF}, 1
s_lshl_b32 s76, s{sGF}, 6
s_and_b32 s32, s87, 1
s_lshl_b32 s32, s32, 5
s_add_u32 s76, s76, s32
s_lshr_b32 s32, s87, 1
s_add_u32 s76, s76, s32
s_lshl_b32 s32, s86, 4
s_add_u32 s76, s76, s32
s_mul_i32 s76, s76, 1152
v_mul_u32_u24 v{vO4}, 2304, v{vO4}
v_add3_u32 v{vO4}, v{vO4}, v{vC4}, s76
v_mul_u32_u24 v{vO2}, 2304, v{vO2}
v_add3_u32 v{vO2}, v{vO2}, v{vC2}, s76
v_cndmask_b32 v{vOS}, v13, v{vO4}, vcc
s_mul_i32 s76, s{sGF}, 73728
s_lshl_b32 s87, s87, 10
s_add_u32 s76, s76, s87
s_lshl_b32 s86, s86, 7
s_add_u32 s76, s76, s86
s_add_u32 s76, s76, {HP}
s_lshl_b32 s86, s{sW}, 14
s_add_u32 s32, s76, s86
s_add_u32 s33, s32, 8192
s_add_u32 s35, s32, 12288
s_add_u32 s64, s32, 4096
s_lshr_b32 s86, s{sW}, 1
s_and_b32 s87, s{sW}, 1
s_lshl_b32 s87, s87, 3
s_lshl_b32 s36, s86, 12
s_add_u32 s36, s36, s87
s_add_u32 s36, s36, 65536
s_add_u32 s36, s36, s76
s_mov_b32 s38, s85
s_lshl_b32 s39, s86, 6
s_add_u32 s39, s39, s87
s_add_u32 s39, s39, 1024
s_mov_b32 s80, 0
s_mov_b32 s81, {16*9216}
s_mov_b32 s82, {32*9216}
s_mov_b32 s83, {48*9216}
s_mov_b32 s95, 0x00003f80
s_mov_b32 s96, 0x3f800000""")
    P(f"s_or_b32 s86, s2, s{sW}\ns_cbranch_scc0 L_epoch\nL_epoch_back:")
    slow.append(f"""L_epoch:
v_lshrrev_b32 v16, 5, v{vL}
v_lshlrev_b32 v16, 12, v16
v_and_b32 v17, 31, v{vL}
v_lshl_add_u32 v16, v17, 2, v16
v_add_u32 v16, {F0S}, v16
v_add_u32 v17, 8192, v16
v_add_u32 v18, 16384, v16
v_add_u32 v19, 24576, v16
s_mov_b32 s97, 0
L_epoch_poll:
buffer_load_dword v20, v16, {srd(sWS)}, 0 offen sc1
buffer_load_dword v21, v17, {srd(sWS)}, 0 offen sc1
buffer_load_dword v22, v18, {srd(sWS)}, 0 offen sc1
buffer_load_dword v23, v19, {srd(sWS)}, 0 offen sc1
s_add_u32 s97, s97, 1
s_waitcnt vmcnt(0)
v_xor_b32 v20, s{sTAG}, v20
v_xor_b32 v21, s{sTAG}, v21
v_xor_b32 v22, s{sTAG}, v22
v_xor_b32 v23, s{sTAG}, v23
v_or_b32 v20, v20, v21
v_or3_b32 v20, v20, v22, v23
v_cmp_ne_u32 vcc, 0, v20
s_cmp_gt_u32 s97, 400000
s_cbranch_scc1 L_epoch_set
s_cbranch_vccnz L_epoch_poll
L_epoch_set:
v_mov_b32 v16, 0
v_mov_b32 v17, s{sTAG}
s_mov_b64 exec, 1
buffer_store_dword v17, v16, {srd(sWS)}, 0 offen sc1
s_mov_b64 exec, -1
s_waitcnt vmcnt(0)
s_branch L_epoch_back""")
    P(poll_check(15, 46))
    stamp("F2 seen")
    for k in range(2): P(f"buffer_load_dwordx2 {vq(SR+2*k,2)}, v239, {srd(sWS)}, s84 offen offset:{128*k} sc1", "hf")
    hl = []
    for s in range(18):
        hl.append([(f"buffer_load_dwordx4 {vq(HR+4*s)}, v{vL16}, {srd(sWS)}, s77 offen sc1", "hf")] + ([wrap(77, 4096, 75, 74)] if s < 17 else []))
    for s in range(cfg.nh1): P.extend(hl[s])
    P(f"v_add_f32 v{ST}, v{SR}, v{SR+2}\nv_add_f32 v{ST+1}, v{SR+1}, v{SR+3}")
    xsum(ST)
    finish_stats([ST])
    for s in range(cfg.nh1, cfg.nh2): P.extend(hl[s])
    stamp("LN2 stats")
    def ln2(s):
        return normalize(HR + 4*s, ST, NT + 8*(s & 1), s < 3) + [f"ds_write_b128 v{6 if s < 9 else 7}, {vq(HR+4*s)} offset:{XN + (s % 9)*4096}"]
    for s in range(3): P.extend(ln2(s))
    P("@waitlg_all\ns_barrier")
    def act_reads(i):
        pi, p = steps[i]
        b = AF + (i % 2)*16
        if pi < 2: reg = vL16 if p < 9 else 8
        else: reg = 9 if p < 9 else 10
        return [f"ds_read_b128 {aq(b+4*m)}, v{reg} offset:{((p % 9)*4 + m)*1024}" for m in range(4)]
    P.extend(act_reads(0))
    stamp("FFN start")
    mains = []; fixed = {}; start = []; load = {}
    first_use = {}; last_use = {}
    def put(g, it):
        fixed.setdefault(g, []).append(it); load[g] = load.get(g, 0) + cost(it)
    def place(items, g):
        for it in items:
            c = cost(it)
            while load.get(g, 0) > 0 and load.get(g, 0) + c > cfg.cap + 0.02: g += 1
            put(g, it)
        return g
    bar = {2: "a", 4: "b", 7: "c", 10: "d", 14: "f", 35: "0", 45: "1"}
    if cfg.w2st: bar[17] = "e"
    fl2 = "e" if cfg.w2st else "c"
    if cfg.w2at >= 3: fl2 = None
    for i, (pi, p) in enumerate(steps):
        name, tiles, acc, cin = passes[pi]; nt = len(tiles)
        base = len(mains); start.append(base)
        b = AF + (i % 2)*16
        t_ = stamp_txt(f"@{name}{p}") if i else None
        if t_: fixed.setdefault(base - 1, []).append(t_)
        if i in bar:
            for it in [f"@flexdone{bar[i]}"] + (["@waitvm wrs"] if bar[i] == fl2 else []) + ["@waitlg_all", "s_barrier"]: put(base, it)
            if bar[i] == fl2:
                for it in flag_items(14): put(base, it)
        for t in range(nt):
            w = aq(4*slot[(pi, p, t)])
            first_use[(pi, p, t)] = len(mains); last_use[(pi, p, t)] = len(mains) + 3
            for m in (range(4) if not (cfg.snake and t % 2) else range(3, -1, -1)):
                d = vq(acc + (t*4 + m)*4)
                c = d if p > 0 else (vq(cin + 4*t) if cin is not None else "0")
                mains.append(f"{MF} {d}, {w}, {aq(b+4*m)}, {c}")
        if i + 1 < len(steps):
            for k, l in enumerate(act_reads(i+1)): put(base + (2*k if nt > 2 else k) + (1 if i in bar else 0), l)
            pj, pp = steps[i+1]
            nxt = " ".join(aq(4*slot[(pj, pp, t)]) for t in range(len(passes[pj][1])))
            fixed.setdefault(base + 4*nt - 1, []).append(f"@need {nxt} {aq(AF + ((i+1) % 2)*16, 16)}")
            load[base + 4*nt - 1] = load.get(base + 4*nt - 1, 0) + 0.67
    start.append(len(mains))
    S = lambda pi, p: start[pi*18 + p]
    path = {}
    TQ = 176
    tq = [0]
    def epi2(acc, tiles, m, st):
        q = TQ + 4*(tq[0] % 4); tq[0] += 1
        regs = [acc + (t*4 + m)*4 + r for t in tiles for r in range(4)]
        L = [f"v_cvt_pk_bf16_f32 v{q+k}, v{regs[2*k]}, v{regs[2*k+1]}" for k in range(len(regs)//2)]
        L.append(st(q))
        return L
    def pst(m, off, tag): return lambda q: (f"buffer_store_dwordx4 {vq(q)}, v{vPS}, {srd(sWS)}, s{80+m} offen offset:{off} sc1", tag)
    def sst(m, tag): return lambda q: (f"buffer_store_dwordx2 {vq(q,2)}, v{vSS}, {srd(sWS)}, s{80+m} offen sc1", tag)
    RH = [200, 204, 208, 212, 216]; RS = [220, 224, 228, 232, 236]; R0 = [128, 144, 96, 112, 48]
    rl = [(vL2, 1024), (vLS, 0), (vL2, 0), (vL2, 512), (vL2, 1536)]
    FSTEP = 512
    def red_loads(r):
        L = ["s_mov_b32 s84, 0"]
        for j in range(8):
            L.append((f"buffer_load_dwordx2 {vq(R0[r]+2*j,2)}, v{rl[r][0]}, {srd(sWS)}, s84 offen offset:{rl[r][1]} sc1", "rd"))
            if j < 7: L.append("s_add_u32 s84, s84, 9216")
        return L
    def red_sum(r):
        T = RS[r]; L = []
        for j in range(8):
            for d in range(2):
                q = R0[r] + 2*j + d
                L.append(f"v_dot2_f32_bf16 v{T+2*d}, v{q}, s95, v{T+2*d}")
                L.append(f"v_dot2_f32_bf16 v{T+2*d+1}, v{q}, s96, v{T+2*d+1}")
        for d in range(2): L.append(f"v_cvt_pk_bf16_f32 v{T+d}, v{T+2*d}, v{T+2*d+1}")
        return L
    def red_store(r):
        vo, so, oo = [(vO2, 38, 128), (vOS, 39, 0), (vO2, 38, 0), (vO2, 38, 64), (vO2, 38, 192)][r]
        return [(f"buffer_store_dwordx2 {vq(RS[r],2)}, v{vo}, {srd(sOUT)}, s{so} offen offset:{oo}{cfg.outfl}", "out")]
    def add_path(g, c): path[g] = path.get(g, 0) + c
    def signal(tag):
        return [f"@waitvm {tag}"] + ([] if cfg.wflag else ["s_barrier"]) + flag_items(vF3) + [f"v_add_u32 v{vF3}, {FSTEP}, v{vF3}"]
    def check(): return [poll_check(vP3, vPT), f"v_add_u32 v{vP3}, {FSTEP}, v{vP3}"]
    if cfg.late:
        G0, s4, s2, fg, nl0 = cfg.late
        last = len(passes) - 1
        aD, tD, aE, aF = (16, [3, 4], 96, 128) if cfg.p522 else (96, [0, 1], 64, 16)
        if cfg.p522: R0 = [16, 32, 48, 64, 80]
        g = G0
        for m in range(4):
            g = place(epi2(16, [0, 1], m, pst(m, 1024, "p1")), g) + s4
        assert cfg.p522 or g - s4 < S(last, 0)
        for m in range(4): g = place(epi2(16, [2], m, sst(m, "p1")), g) + s2
        for m in range(4): g = place(epi2(aD, tD, m, pst(m, 0, "p1")), g) + s4
        gE = max(g, S(last, 0) + 3)
        for m in range(4): gE = place(epi2(aE, [0, 1], m, pst(m, 512, "p2")), gE) + s4
        assert gE - s4 < len(mains) - 1, gE
        if cfg.fl3 < 0: pass
        elif cfg.fl3 == 0:
            for it in signal("p1"): put(min(g + fg, len(mains) - 2), it)
        else:
            for it in signal("p2"): put(min(gE + fg, len(mains) - 2), it)
        if VERBOSE: print("late stores end", g, gE)
    else:
        sgap, fC, fD, fE, pC, pD, lead = cfg.tail4
        def stores(pi, acc, off, tag, shared):
            g = S(pi, 0) + 3
            for m in range(4):
                g = place(epi2(acc, [0, 1], m, pst(m, off, tag)), g); add_path(g, cfg.scost); g += sgap
                if shared:
                    g = place(epi2(acc, [2], m, sst(m, tag)), g - sgap//2); add_path(g, cfg.scost//2); g += sgap//2
        stores(3, 16, 1024, "p1", True); stores(4, 96, 0, "p2", False); stores(5, 64, 512, "p3", False)
        for g0, tag in [(S(3, 0) + fC, "p1"), (S(4, 0) + fD, "p2"), (S(5, 0) + fE, "p3")]:
            for it in signal(tag): put(g0, it)
        for g0, rounds in [(S(3, 0) + pC, [0, 1]), (S(4, 0) + pD, [2])]:
            if g0 + lead < len(mains) - 40:
                put(g0, poll_pre(vP3, vPT))
                g = place(check(), g0 + lead)
                for r in rounds:
                    L = red_loads(r)
                    for j in range(8):
                        g = place(L[2*j:2*j+2], g + 2); add_path(g, cfg.lcost if r != 1 else cfg.lcost//2)
                assert g < len(mains) - 2
            else: raise ValueError("late")
    g = 0
    for s in range(cfg.nh2, 18):
        g = place(hl[s], g); add_path(g, 110); g += cfg.hgap
    g = S(2, 11)
    for r, (vh, sh, vb, sb, bo) in enumerate([(vH2, 33, vC2, 38, 128), (vH4, 36, vC4, 39, 0), (vH2, 32, vC2, 38, 0), (vH2, 64, vC2, 38, 64), (vH2, 35, vC2, 38, 192)]):
        g = place([(f"buffer_load_dwordx2 {vq(RH[r],2)}, v{vh}, {srd(sWS)}, s{sh} offen sc1", "rh")], g + 5); add_path(g, 40)
        g = place([(f"buffer_load_dwordx2 {vq(RH[r]+2,2)}, v{vb}, {srd(sB2)}, s{sb} offen offset:{bo}", "rh")], g + 3); add_path(g, 20)
    nl = npf[0]; free = cfg.backlog; g = 0
    while nl < len(cons):
        now = g*cfg.tgap
        if g in path: free = max(free, now) + path.pop(g)
        early = last_use[cons[nl - NR]] + 1 if nl >= NR else 0
        dead = first_use[cons[nl]] - cfg.margin
        if g >= early and (free <= now + cfg.slack or g >= dead):
            L = wload(nl)
            if nl == 162 - cfg.w2lead and fl2: L = [poll_pre(15, vPT)] + L
            if nl == 162 and fl2: L = [poll_check(15, vPT)] + L
            g2 = place(L, g)
            for x in range(g + 1, g2 + 1):
                if x in path: free = max(free, x*cfg.tgap) + path.pop(x)
            assert g2 < first_use[cons[nl]] - 8, (nl, g2, first_use[cons[nl]])
            if VERBOSE and nl % 18 == 0: print(f"   load {nl} at gap {g2}, first use {first_use[cons[nl]]}, backlog {free - g2*cfg.tgap:.0f}")
            g = g2; free = max(free, g*cfg.tgap) + cfg.wcost; nl += 1
        g += 1
    if VERBOSE: print("last weight load at gap", g, "of", len(mains), "pass starts", [S(k, 0) for k in range(len(passes))])
    flex = []
    for lo, hi, mk in [(3, 5, "a"), (5, 8, "b"), (8, 11, "c"), (11, 15, "d"), (15, 18, "f")]:
        for s in range(lo, hi):
            for l in ln2(s): flex.append((0, l))
        flex.append((0, f"@mark{mk}"))
    if cfg.w2st:
        flex.append((0, "@waitvm wr"))
        for z in range(2):
            for l in unit_tr(z, 0, 176): flex.append((0, l.replace("v94", "v11")))
            for l in [f"@need {vq(176,16)}"] + unit_st(2, z, 176): flex.append((0, l))
    for l in set_poll_addr(15, sJF, F2S) + unpack(CB, B1P+8, 8): flex.append((0, l))
    flex.append((0, "@marke"))
    for k, (q, mod, sr, add) in enumerate([(f"s_lshl_b32 s84, s{sW}, 1", 10, 93, 0), (f"s_lshl_b32 s84, s{sW}, 1\ns_add_u32 s84, s84, 1", 10, 93, 0),
                                           (f"s_lshr_b32 s84, s{sW}, 1\ns_add_u32 s84, s84, 8", 10, 93, 0),
                                           (f"s_lshl_b32 s84, s{sW}, 1", 8, 94, 10), (f"s_lshl_b32 s84, s{sW}, 1\ns_add_u32 s84, s84, 1", 8, 94, 10)]):
        flex.append((0, q))
        flex.append((0, f"s_sub_u32 s84, s84, s{sr}\ns_cselect_b32 s85, {mod}, 0"))
        flex.append((0, f"s_add_u32 s84, s84, s85\ns_add_u32 s84, s84, {add}"))
        flex.append((0, "s_lshl_b32 s84, s84, 12"))
        if k == 2: flex.append((0, f"s_and_b32 s85, s{sW}, 1\ns_lshl_b32 s85, s85, 3\ns_add_u32 s84, s84, s85"))
        flex.append((0, f"v_add_u32 v{192+k}, s84, v9"))
    def epi1(acc, pair_tiles, m, wr):
        L = []
        q = TQ + 4*(tq[0] % 4); tq[0] += 1
        regs = [acc + (t*4 + m)*4 + r for t in pair_tiles for r in range(4)]
        for r in regs: L.append(f"v_mul_f32 v{r}, v{r}, |v{r}|")
        for k in range(len(regs)//2): L.append(f"v_cvt_pk_bf16_f32 v{q+k}, v{regs[2*k]}, v{regs[2*k+1]}")
        for k in range(len(regs)//2): L.append(f"v_pk_max_i16 v{q+k}, v{q+k}, 0")
        L.append(wr(q))
        return L
    at = S(1, 0) + 3
    for pr in range(2):
        for m in range(4):
            for l in epi1(ACA, [2*pr, 2*pr+1], m, lambda q: f"ds_write_b128 v{192+pr}, {vq(q)} offset:{m*1024}"): flex.append((at, l))
    for m in range(4):
        for l in epi1(ACA, [4], m, lambda q: f"ds_write_b64 v194, {vq(q,2)} offset:{m*1024}"): flex.append((at, l))
    flex.append((at, "@mark0"))
    at = S(2, 0) + 3
    for pr in range(2):
        for m in range(4):
            for l in epi1(ACB, [2*pr, 2*pr+1], m, lambda q: f"ds_write_b128 v{195+pr}, {vq(q)} offset:{m*1024}"): flex.append((at, l))
    flex.append((at, "@mark1"))
    at = S(3, 6)
    for r in range(5):
        for l in unpack(RS[r], RH[r], 2) + unpack(160, RH[r]+2, 2): flex.append((at, l))
        for d in range(4): flex.append((at, f"v_add_f32 v{RS[r]+d}, v{RS[r]+d}, v{160+d}"))
    if cfg.skip:
        def keep(it):
            t = it[0] if isinstance(it, tuple) else it
            tag = it[1] if isinstance(it, tuple) else None
            if "valu" in cfg.skip and re.match(r"v_lshlrev_b32 v\d+, 16,|v_and_b32 v\d+, s98|v_fma_f32|v_cvt_pk|v_mul_f32|v_pk_max|v_add_f32", t): return False
            if "dsw" in cfg.skip and t.startswith("ds_write"): return False
            if "bar" in cfg.skip and t == "s_barrier": return False
            if "pst" in cfg.skip and tag in ("p1", "p2", "p3"): return False
            if "rd" in cfg.skip and tag in ("rd", "rh"): return False
            if "w" in cfg.skip and tag == "w": return False
            if "chk" in cfg.skip and "L_slow" in t: return False
            return True
        flex = [f for f in flex if keep(f[1])]
        fixed = {g: [x for x in L if keep(x)] for g, L in fixed.items()}
        slow[:] = [x for x in slow if any(x.split(":")[0] in i.text for i in P.ins) or "chk" not in cfg.skip]
    sched(P, mains, fixed, flex, cap=cfg.cap)
    stamp("FFN done")
    if cfg.late:
        for m in range(4): P.extend(epi2(aF, [0, 1], m, pst(m, 1536, "p4")))
        ne_ = 3 + cfg.fl3 if cfg.fl3 >= 0 else 0
        if cfg.nearly is not None: ne_ = cfg.nearly
        if cfg.fl3 >= 0: P.add(poll_pre(vP3, vPT))
        early = sum([red_loads(r) for r in range(ne_)], [])
        if nl0:
            P.extend(check()); P.extend(early[:2*nl0])
        P.extend(signal("p4"))
        stamp("F3c set")
        if not nl0 and cfg.fl3 >= 0: P.extend(check())
        if cfg.tsleep: P(f"s_sleep {cfg.tsleep}")
        P.extend(early[2*nl0:])
        P.add(poll_pre(vP3, vPT))
        for r in range(ne_): P.extend(red_sum(r))
        P.extend(check())
        stamp("F3c seen")
        for r in range(ne_, 5): P.extend(red_loads(r))
        for r in range(ne_): P.extend(red_store(r))
        for r in range(ne_, 5): P.extend(red_sum(r) + red_store(r))
    else:
        for m in range(4): P.extend(epi2(16, [0, 1], m, pst(m, 1536, "p4")))
        P.add(poll_pre(vP3, vPT))
        P.extend(red_sum(0) + red_sum(1))
        P.extend(signal("p4"))
        stamp("F3c set")
        P.extend(check())
        P.extend(red_loads(3))
        P.extend(red_sum(2))
        P.add(poll_pre(vP3, vPT))
        P.extend(red_sum(3))
        P.extend(check())
        stamp("F3c seen")
        P.extend(red_loads(4))
        P.extend(red_store(0) + red_store(1) + red_store(2) + red_store(3))
        P.extend(red_sum(4) + red_store(4))
    if cfg.stamps:
        P("s_waitcnt vmcnt(0)")
        stamp("end")
        P(f"s_lshl_b32 s84, s2, 2\ns_add_u32 s84, s84, s{sW}\ns_lshl_b32 s84, s84, 7\ns_add_u32 s84, s84, {STAMPS}\nv_mov_b32 v6, s84\ns_mov_b64 exec, 1")
        if cfg.diag is not None:
            a, b = cfg.diag
            P(f"s_sub_u32 s84, s{STAMP0+b}, s{STAMP0+a}\ns_lshl_b32 s84, s84, 2\ns_add_u32 s84, s84, 10000\nL_spin:\ns_sleep 8\ns_memrealtime s[100:101]\ns_waitcnt lgkmcnt(0)\ns_sub_u32 s85, s100, s{STAMP0}\ns_cmp_lt_u32 s85, s84\ns_cbranch_scc1 L_spin")
        elif cfg.dbg:
            P(f"v_mov_b32 v6, 0\ns_not_b32 s84, s{STAMP0}\nv_mov_b32 v5, s84\nbuffer_atomic_umax v5, v6, {srd(sR)}, 0 offen")
            for k in range(min(nstamp[0], 15)):
                P(f"v_mov_b32 v{16+k}, s{STAMP0+k}\nbuffer_atomic_umax v{16+k}, v6, {srd(sR)}, 0 offen offset:{4*k+4}")
        else:
          for k in range(nstamp[0]):
            P(f"v_mov_b32 v5, s{STAMP0+k}\nbuffer_store_dword v5, v6, {srd(sWS)}, 0 offen offset:{4*k}")
    P("L_end:\ns_endpgm")
    for x in slow: P(x)
    P("L_code_end:")
    cfg.names = names
    return P

def cost(it):
    t = it[0] if isinstance(it, tuple) else it
    c = 0
    for l in t.split("\n"):
        if l.startswith("@") or l.endswith(":"): continue
        c += 0.67 if l.startswith("s_") else (2 if l.startswith("ds_write_b128") else 1)
    return c

def sched(P, mains, fixed, flex, cap=2, flex2=None):
    Q = [list(flex2 or []), list(flex)]; K = [0, 0]; marks = set()
    def put(it):
        t = it[0] if isinstance(it, tuple) else it
        if t.startswith("@mark"): marks.add(t[5:]); return 0
        if t.startswith("@flexdone"):
            for q in range(2):
                if any((x[1] if not isinstance(x[1], tuple) else x[1][0]) == "@mark" + t[9:] for x in Q[q]):
                    n0 = K[q]
                    while t[9:] not in marks:
                        it2 = Q[q][K[q]][1]; K[q] += 1; put(it2)
                    if K[q] - n0 > 1 and VERBOSE: print("flush", t, K[q] - n0)
            return 0
        P.add(it)
        return cost(t)
    for n, m in enumerate(mains):
        P.add(m)
        c = 0
        for it in fixed.get(n, []): c += put(it)
        for q in range(2):
            while K[q] < len(Q[q]) and Q[q][K[q]][0] <= n and (c == 0 or c + cost(Q[q][K[q]][1]) <= cap + 0.02):
                it = Q[q][K[q]][1]; K[q] += 1
                c += put(it)
    for q in range(2):
        if K[q] < len(Q[q]) and VERBOSE: print("left", len(Q[q]) - K[q])
        while K[q] < len(Q[q]):
            it = Q[q][K[q]][1]; K[q] += 1
            put(it)
VERBOSE = False

import struct
def hexf(x): return hex(struct.unpack("<I", struct.pack("<f", x))[0])

HEADER = open("cdna_kernels/" + NAME + ".s.ref").read().split("; Override launch geometry")[0]
def build(cfg, verbose=False):
    body = finalize(gen(cfg), verbose)
    k = NAME + "_kernel"
    return (HEADER + f"; @launch grid=(256,1,1) block=(256,1,1) lds={LDS_BYTES}\n"
        + f'.amdgcn_target "amdgcn-amd-amdhsa--gfx950"\n.text\n.globl {k}\n.p2align 8\n.type {k},@function\n{k}:\n' + body
        + f""".section .rodata,"a"
.p2align 6
.amdhsa_kernel {k}
  .amdhsa_next_free_vgpr 512
  .amdhsa_next_free_sgpr 102
  .amdhsa_accum_offset 256
  .amdhsa_group_segment_fixed_size 0
  .amdhsa_kernarg_size 88
  .amdhsa_user_sgpr_count 2
  .amdhsa_user_sgpr_kernarg_segment_ptr 1
  .amdhsa_system_sgpr_workgroup_id_x 1
.end_amdhsa_kernel
""")

if __name__ == "__main__":
    cfg = Cfg(); VERBOSE = True
    out = sys.argv[1]
    for a in sys.argv[2:]:
        k, v = a.split("=")
        setattr(cfg, k, eval(v))
    open(out, "w").write(build(cfg, True))
    if cfg.stamps: open(out + ".names", "w").write("|".join(cfg.names))
```

```python
import sys
from ir import *

NAME = "sequential_preLN__sliding_local_dilated__dense_activation_squared_relu__prompt"

F0S, F1G, F1S, F2G, F2S, F3A, F3B, STATS, F3C = 0x10000, 0x20000, 0x48000, 0x50000, 0x78000, 0x80000, 0xA0000, 0xC0000, 0xE0000
WQP, WOP, OP, HP, W1R, W2R, PART, STAMPS = 0x100000, 0x300000, 0x400000, 0x700000, 0xA00000, 0x1000000, 0x1600000, 0x3000000
WS_BYTES = 0x4000000
OOB = 0x40000000
LDS_BYTES = 163840
XB = 71680
R0SCR = 49152
W1SCR = 0
WOB = 0
W2SCR0 = 32768
W2SCR = 98304
XRS = 131072
VXS = 143360
XN, HB = 0, 73728
sX, sWQ, sWO, sW1, sW2, sB1, sB2, sOUT, sWS, sR = 28, 32, 36, 40, 44, 48, 52, 56, 60, 88
sW, sG2, sJ2, sGF, sJF, sTAG = 68, 69, 70, 71, 72, 73
def srd(n): return f"s[{n}:{n+3}]"
def vq(n, k=4): return f"v[{n}:{n+k-1}]"
def aq(n, k=4): return f"a[{n}:{n+k-1}]"
MF = "v_mfma_f32_16x16x32_bf16"
vL, vI, vG, vL16 = 1, 2, 3, 4

class Cfg:
    stamps = False
    nx1 = 12
    p1depth = 4
    npre = 25
    rot = True
    npre1 = 12
    wospan = 10
    f3 = (10, 14)
    pre = (8, 8, 4, 8, 26)
    wo_early = 8
    dmagap = 9
    touch = 0
    xfl = ''
    xrfl = ''
    rdfl = ' sc1'
    noself = True
    two = None
    etest = 0
    dtest = 0
    pfast = ()
    pfn = 4
    pfs = 2
    nb = (1, 1)
    nearly = None
    tsleep = 0
    ssleep = 0
    snake = True
    g1ord = 0
    p522 = True
    fl3 = 0
    late = (1012, 8, 4)
    rord = (0, 1, 2)
    norp = ()
    ctouch = 2
    nq1 = 4
    qgap = 8
    poll1 = False
    psleep = 1
    f0both = True
    outfl = ''
    no1 = 12
    ogap = 3.5
    nh2 = 18
    hgap = 5
    p1early = False
    wflag = False
    tail4 = (10, 110, 85, 85, 200, 185, 20)
    scost = 200
    lcost = 80
    skip = ()
    lag = 6
    gq = (0, 0, 0, 0)
    f1s = 11
    tail = (14, 13, 232, 44, 5, 11, 18)
    tailord = 0
    backlog = 0
    tgap = 18.5
    slack = 70
    margin = 205
    wcost = 60
    rawfl = ' nt'
    r0fl = ' nt'
    wrsfl = ' sc1'
    rawat = 1
    ilv = True
    w2at = 1
    w2st = 0
    nh1 = 4
    hold = 0
    w2lead = 16
    nleft = 60
    p1z4 = 1
    nx2 = 6
    dbg = False
    diag = None
    wsbase = 0
    only = None
    cap = 2
    wsc = " sc1"
    nwo1 = 40
    stop = None

def gen(cfg):
    P = Prog()
    sG1, sJ1 = (sGF, sJF) if cfg.p1z4 == 1 else ((sG2, sJ2) if cfg.p1z4 == 0 else (65, 66))
    nstamp = [0]
    names = []
    def stamp_txt(name):
        if cfg.stamps and (cfg.only is None or name.replace(" ", "_") in cfg.only or name == "end") and not (cfg.only is None and name.startswith("@")):
            k = nstamp[0]; nstamp[0] += 1; names.append(name); assert k < 20, name
            return f"{'s_memtime' if cfg.stamps == 2 else 's_memrealtime'} s[100:101]\n@waitlg_all\ns_mov_b32 s{STAMP0+k}, s100"
        return None
    def stamp(name):
        t = stamp_txt(name)
        if t: P(t)
    STAMP0 = 4
    npoll = [0]
    def poll(vaddr, vtmp):
        k = npoll[0]; npoll[0] += 1
        P(f"""s_mov_b32 s97, 0
L_poll{k}:
s_sleep {cfg.psleep}
buffer_load_dword v{vtmp}, v{vaddr}, {srd(sWS)}, 0 offen sc1
s_add_u32 s97, s97, 1
s_waitcnt vmcnt(0)
v_cmp_ne_u32 vcc, s{sTAG}, v{vtmp}
s_cmp_gt_u32 s97, 400000
s_cbranch_scc1 L_pdone{k}
s_cbranch_vccnz L_poll{k}
L_pdone{k}:""")
    slow = []
    def poll_pre(vaddr, vtmp):
        return (f"buffer_load_dword v{vtmp}, v{vaddr}, {srd(sWS)}, 0 offen sc1", "pl")
    def poll_check(vaddr, vtmp):
        k = npoll[0]; npoll[0] += 1
        slow.append(f"""L_slow{k}:
s_mov_b32 s97, 0
L_poll{k}:
s_sleep {cfg.ssleep}
buffer_load_dword v{vtmp}, v{vaddr}, {srd(sWS)}, 0 offen sc1
s_add_u32 s97, s97, 1
s_waitcnt vmcnt(0)
v_cmp_ne_u32 vcc, s{sTAG}, v{vtmp}
s_cmp_gt_u32 s97, 400000
s_cbranch_scc1 L_back{k}
s_cbranch_vccnz L_poll{k}
s_branch L_back{k}""")
        return f"v_cmp_ne_u32 vcc, s{sTAG}, v{vtmp}\ns_cbranch_vccnz L_slow{k}\nL_back{k}:"
    def poll_fast(vaddr, vt):
        k = npoll[0]; npoll[0] += 1
        n = cfg.pfn
        ld = lambda q: f"buffer_load_dword v{vt+q}, v{vaddr}, {srd(sWS)}, 0 offen sc1"
        t = f"L_slow{k}:\ns_mov_b32 s97, 0\n"
        for q in range(n - 1): t += ld(q) + f"\ns_sleep {cfg.pfs}\n"
        t += f"L_poll{k}:\n"
        for q in range(n):
            t += ld((q + n - 1) % n) + f"\ns_waitcnt vmcnt({n-1})\nv_cmp_ne_u32 vcc, s{sTAG}, v{vt+q}\ns_cbranch_vccz L_back{k}\ns_sleep {cfg.pfs}\n"
        t += f"s_add_u32 s97, s97, 1\ns_cmp_gt_u32 s97, 200000\ns_cbranch_scc0 L_poll{k}\ns_branch L_back{k}"
        slow.append(t)
        return f"s_cmp_eq_u32 s{sW}, 0\ns_cbranch_scc1 L_slow{k}\nL_back{k}:\ns_barrier"
    def wrap(sr, step, send, sbeg):
        return f"s_add_u32 s{sr}, s{sr}, {step}\ns_cmp_eq_u32 s{sr}, s{send}\ns_cselect_b32 s{sr}, s{sbeg}, s{sr}"
    def set_flag(vaddr):
        P(f"v_mov_b32 v5, s{sTAG}")
        P(f"buffer_store_dword v5, v{vaddr}, {srd(sWS)}, 0 offen sc1", "flag")

    P("""s_cmp_ge_u32 s2, 256
s_cbranch_scc1 L_end
s_load_dwordx16 s[4:19], s[0:1], 0
s_load_dwordx4 s[20:23], s[0:1], 64
s_load_dwordx2 s[24:25], s[0:1], 80""")
    def code_touch(vd, first):
        P(f"""s_getpc_b64 s[92:93]
L_pc{first}:
s_and_b32 s93, s93, 0xffff
s_mov_b32 s94, L_code_end - L_pc{first}
s_mov_b32 s95, 0x00020000
s_lshr_b32 s84, s2, 3
s_lshl_b32 s84, s84, 2
v_lshrrev_b32 v62, 6, v0
v_and_b32 v{vd}, 63, v0
v_lshlrev_b32 v{vd}, 7, v{vd}
v_add3_u32 v{vd}, v{vd}, v62, s84
v_lshlrev_b32 v{vd}, 7, v{vd}""")
        P(f"buffer_load_dword v{vd}, v{vd}, s[92:95], 0 offen", "tch")
    if cfg.ctouch == 2: code_touch(63, 0)
    if cfg.stamps: P("s_memtime s[26:27]" if cfg.stamps == 2 else "s_memrealtime s[26:27]")
    P(f"""v_lshrrev_b32 v5, 6, v0
v_and_b32 v{vL}, 63, v0
v_readfirstlane_b32 s{sW}, v5
v_and_b32 v{vI}, 15, v0
v_lshrrev_b32 v{vG}, 4, v{vL}
v_lshlrev_b32 v{vL16}, 4, v{vL}
s_and_b32 s74, s2, 7
s_lshr_b32 s75, s2, 3
s_lshl_b32 s{sG2}, s74, 2
s_lshr_b32 s76, s75, 3
s_add_u32 s{sG2}, s{sG2}, s76
s_and_b32 s{sJ2}, s75, 7
s_lshr_b32 s{sGF}, s74, 2
s_lshl_b32 s{sGF}, s{sGF}, 4
s_lshr_b32 s76, s75, 1
s_add_u32 s{sGF}, s{sGF}, s76
s_and_b32 s{sJF}, s74, 3
s_lshl_b32 s{sJF}, s{sJF}, 1
s_and_b32 s76, s75, 1
s_add_u32 s{sJF}, s{sJF}, s76
""")
    if cfg.p1z4 == 2:
        P(f"""s_lshr_b32 s65, s74, 1
s_lshl_b32 s65, s65, 3
s_lshr_b32 s76, s75, 2
s_add_u32 s65, s65, s76
s_and_b32 s66, s74, 1
s_lshl_b32 s66, s66, 2
s_and_b32 s76, s75, 3
s_add_u32 s66, s66, s76""")
    P(f"""s_lshl_b32 s77, s{sW}, 5
s_add_u32 s77, s77, s{sG1}
s_mul_i32 s78, s{sJ1}, 144""")
    sRP, sRF, sR2 = 0, 1, 3
    P(f"""s_cmp_lt_u32 s77, 72
s_cbranch_scc0 L_r0_wo
v_mul_u32_u24 v6, 2428, v{vL}
v_lshrrev_b32 v6, 16, v6
v_mul_u32_u24 v7, 27, v6
v_sub_u32 v7, v{vL}, v7
v_mul_u32_u24 v8, 7282, v7
v_lshrrev_b32 v8, 16, v8
v_mul_u32_u24 v9, 9, v8
v_sub_u32 v9, v7, v9
v_mul_u32_u24 v6, 3456, v6
v_mul_u32_u24 v8, 1152, v8
v_lshlrev_b32 v9, 4, v9
v_add3_u32 v5, v6, v8, v9
v_cmp_gt_u32 vcc, 54, v{vL}
s_mul_i32 s80, s77, {8*3456}
s_add_u32 s80, s80, s78
s_add_u32 s81, s80, {6912-1024}
s_add_u32 s82, s81, {6912-1024}
s_add_u32 s83, s82, {6912-1024}
s_branch L_r0_join
L_r0_wo:
v_mul_u32_u24 v6, 7282, v{vL}
v_lshrrev_b32 v6, 16, v6
v_mul_u32_u24 v7, 9, v6
v_sub_u32 v7, v{vL}, v7
v_mul_u32_u24 v6, 1152, v6
v_lshl_add_u32 v5, v7, 4, v6
v_cmp_gt_u32 vcc, 36, v{vL}
s_sub_u32 s79, s77, 72""")
    for G in range(2):
        if G: P("s_add_u32 s79, s79, 36")
        P(f"""s_lshr_b32 s84, s79, 2
s_mul_i32 s84, s84, 36
s_bfe_u32 s85, s79, 0x10001
s_mul_i32 s85, s85, 20
s_add_u32 s84, s84, s85
s_and_b32 s85, s79, 1
s_lshl_b32 s85, s85, 3
s_add_u32 s84, s84, s85
s_add_u32 s85, s84, 4
s_sub_u32 s86, s79, 64
s_mul_i32 s86, s86, 72
s_add_u32 s86, s86, 16
s_add_u32 s87, s86, 36
s_cmp_lt_u32 s79, 64
s_cselect_b32 s84, s84, s86
s_cselect_b32 s85, s85, s87
s_mul_i32 s84, s84, 1152
s_mul_i32 s85, s85, 1152
s_add_u32 s84, s84, s78
s_add_u32 s85, s85, s78
s_sub_u32 s{80+2*G}, s84, {1024*(2*G)}
s_sub_u32 s{81+2*G}, s85, {1024*(2*G+1)}""")
    P(f"""s_cmp_lt_u32 s77, 108
s_cselect_b32 s80, s80, {OOB}
s_cselect_b32 s81, s81, {OOB}
s_cselect_b32 s82, s82, {OOB}
s_cselect_b32 s83, s83, {OOB}
L_r0_join:
s_nop 1
v_mov_b32 v6, {OOB}
v_cndmask_b32 v5, v6, v5, vcc
s_lshl_b32 s84, s{sW}, 12
s_add_u32 s84, s84, {R0SCR}
s_mov_b32 m0, s84
s_waitcnt lgkmcnt(0)""")
    def mksrd(d, p, n):
        P(f"s_mov_b32 s{d}, s{p}\ns_and_b32 s{d+1}, s{p+1}, 0xffff\ns_mov_b32 s{d+2}, {n}\ns_mov_b32 s{d+3}, 0x00020000")
    P(f"""s_cmp_lt_u32 s77, 72
s_cselect_b32 s{sR}, s6, s8
s_cselect_b32 s{sR+1}, s7, s9
s_mov_b32 s85, {576*1152}
s_cselect_b32 s{sR+2}, {576*3456}, s85
s_and_b32 s{sR+1}, s{sR+1}, 0xffff
s_mov_b32 s{sR+3}, 0x00020000""")
    if cfg.stamps: P(("s_memtime" if cfg.stamps == 2 else "s_memrealtime") + " s[38:39]")
    for q in range(4):
        P(f"buffer_load_dwordx4 v5, {srd(sR)}, s{80+q} offen offset:{1024*q}{cfg.r0fl} lds", "r0")
    if cfg.ctouch == 1: code_touch(63, 0)
    mksrd(sX, 4, 2048*1152)
    if cfg.wsbase: P(f"s_add_u32 s24, s24, {cfg.wsbase}\ns_addc_u32 s25, s25, 0")
    P(f"s_load_dword s{sTAG}, s[24:25], 0")
    XR, XH = 160, 232
    P(f"""s_lshl_b32 s84, s{sG1}, 6
s_and_b32 s85, s{sW}, 1
s_lshl_b32 s85, s85, 5
s_add_u32 s85, s85, s84
s_lshr_b32 s86, s{sW}, 1
s_add_u32 s85, s85, s86
s_mul_i32 s85, s85, 1152
v_lshrrev_b32 v8, 3, v{vL}
v_and_b32 v9, 7, v{vL}
v_mul_u32_u24 v6, 2304, v8
v_lshl_add_u32 v6, v9, 4, v6
v_add_u32 v6, s85, v6
v_add_u32 v7, {8*2304}, v6""")
    if cfg.rot:
        P(f"""s_and_b32 s86, s{sG2}, 3
s_mul_i32 s86, s86, 9
s_add_u32 s86, s86, 2
s_lshr_b32 s86, s86, 2
s_add_u32 s86, s86, s{sJ2}
s_sub_u32 s87, s86, 9
s_cmp_ge_u32 s86, 9
s_cselect_b32 s{sRP}, s87, s86
s_lshl_b32 s86, s{sG2}, 1
s_add_u32 s86, s86, s{sJ2}
s_and_b32 s{sR2}, s86, 7
s_and_b32 s86, s{sJF}, 1
s_mul_i32 s86, s86, 9
s_and_b32 s87, s{sGF}, 15
s_add_u32 s86, s86, s87
s_sub_u32 s87, s86, 18
s_cmp_ge_u32 s86, 18
s_cselect_b32 s{sRF}, s87, s86""")
        if cfg.p1z4 == 1: P(f"s_lshr_b32 s{sRP}, s{sRF}, 1")
        if cfg.p1z4 == 2:
            P(f"""s_and_b32 s86, s66, 3
s_mul_i32 s86, s86, 9
s_add_u32 s86, s86, 2
s_lshr_b32 s86, s86, 2
s_and_b32 s87, s65, 7
s_add_u32 s86, s86, s87
s_sub_u32 s87, s86, 9
s_cmp_ge_u32 s86, 9
s_cselect_b32 s{sRP}, s87, s86""")
    else:
        P(f"s_mov_b32 s{sRP}, 0\ns_mov_b32 s{sRF}, 0\ns_mov_b32 s{sR2}, 0")
    P(f"s_lshl_b32 s88, s{sRP}, 7")
    for q in range(1, 9):
        P(f"s_add_u32 s{88+q}, s{87+q}, 128\ns_cmp_eq_u32 s{88+q}, 1152\ns_cselect_b32 s{88+q}, 0, s{88+q}")
    xl = []
    for q in range(9):
        for hh in range(2):
            xl.append(f"buffer_load_dwordx4 {vq(XR + (q*2+hh)*4)}, v{6+hh}, {srd(sX)}, s{88+q} offen{cfg.xfl}")
    for l in xl[:cfg.nx1]: P(l, "x")
    mksrd(sWS, 24, WS_BYTES)
    P(f"""s_lshl_b32 s85, s{sW}, 2
v_add_u32 v10, s85, v{vG}
v_and_b32 v11, 7, v10
v_lshrrev_b32 v12, 3, v10
v_lshl_add_u32 v11, v11, 1, v12
v_add_u32 v11, s84, v11
v_subrev_u32 v11, 16, v11
v_mul_u32_u24 v11, 1152, v11
s_cmp_eq_u32 s{sG1}, 0
s_cselect_b32 s85, {OOB}, 0
s_cselect_b32 s86, 0, -1
v_and_b32 v11, s86, v11
v_or_b32 v11, s85, v11
v_mov_b32 v13, {OOB}
s_lshl_b32 s85, s{sRP}, 3
v_add_u32 v12, s85, v{vI}""")
    for q in range(5):
        P(f"""v_add_u32 v{84+q}, {16*q}, v12
v_subrev_u32 v89, 72, v{84+q}
v_min_u32 v{84+q}, v{84+q}, v89
v_lshl_add_u32 v{84+q}, v{84+q}, 4, v11""")
    P(f"v_cmp_gt_u32 vcc, 8, v{vI}\nv_cndmask_b32 v88, v13, v88, vcc")
    hl = [f"buffer_load_dwordx4 {vq(XH + 4*q)}, v{84+q}, {srd(sX)}, 0 offen{cfg.xfl}" for q in range(5)]
    P(f"""v_bfe_u32 v14, v{vL}, 2, 2
v_and_b32 v15, 3, v{vL}
s_lshl_b32 s84, s{sW}, 12
s_add_u32 s84, s84, {R0SCR}
s_cmp_lt_u32 s77, 72
s_cbranch_scc0 L_r1_wo
v_lshrrev_b32 v16, 1, v14
v_lshlrev_b32 v16, 10, v16
v_and_b32 v17, 1, v14
v_mul_u32_u24 v17, 432, v17
v_add3_u32 v16, v16, v17, s84
v_mul_u32_u24 v17, 36, v{vG}
v_and_b32 v18, 1, v{vG}
v_lshl_add_u32 v17, v18, 2, v17
v_lshl_add_u32 v17, v15, 3, v17
v_add_u32 v32, v16, v17
v_add_u32 v34, 144, v32
v_add_u32 v36, 288, v32
v_min_u32 v17, 2, v15
v_mul_u32_u24 v17, 144, v17
v_mul_u32_u24 v18, 72, v18
v_add3_u32 v38, v16, v17, v18
v_add_u32 v38, 32, v38
s_mov_b32 s85, 2048
s_lshr_b32 s86, s77, 2
s_mul_i32 s87, s{sJ1}, 72
s_add_u32 s86, s86, s87
s_mul_i32 s86, s86, 3584
s_add_u32 s86, s86, {WQP}
s_and_b32 s87, s77, 3
v_mul_u32_u24 v16, {18*3584}, v{vG}
v_lshl_add_u32 v16, v{vI}, 4, v16
s_lshl_b32 s79, s87, 8
s_add_u32 s79, s79, s86
v_add_u32 v40, s79, v16
v_add_u32 v41, 1024, v40
v_add_u32 v42, 2048, v40
v_lshrrev_b32 v16, 1, v15
v_lshl_add_u32 v16, v{vG}, 1, v16
v_mul_u32_u24 v16, {18*3584}, v16
v_and_b32 v17, 1, v15
v_lshl_add_u32 v17, v14, 1, v17
v_lshl_add_u32 v16, v17, 4, v16
s_lshl_b32 s79, s87, 7
s_add_u32 s79, s79, s86
s_add_u32 s79, s79, 3072
v_add_u32 v16, s79, v16
v_cmp_gt_u32 vcc, 32, v{vL}
v_cndmask_b32 v43, v13, v16, vcc
s_branch L_r1_join
L_r1_wo:
v_mul_u32_u24 v16, 144, v14
v_add_u32 v16, s84, v16
v_lshrrev_b32 v17, 1, v{vG}
v_lshlrev_b32 v17, 6, v17
v_and_b32 v18, 1, v{vG}
v_lshl_add_u32 v17, v18, 3, v17
v_lshl_add_u32 v17, v15, 4, v17
v_add_u32 v32, v16, v17
v_and_b32 v17, 1, v15
v_lshl_add_u32 v34, v17, 3, v16
v_add_u32 v34, 128, v34
v_add_u32 v36, 2048, v32
v_add_u32 v38, 2048, v34
s_mov_b32 s85, 1024
v_lshlrev_b32 v16, 10, v{vG}
v_lshl_add_u32 v16, v{vI}, 4, v16
v_cmp_gt_u32 vcc, 8, v{vL}
v_cndmask_b32 v17, v13, v{vL16}, vcc
s_sub_u32 s79, s77, 72""")
    for G in range(2):
        if G: P("s_add_u32 s79, s79, 36")
        P(f"""s_lshr_b32 s86, s79, 2
s_mul_i32 s87, s{sJ1}, 18
s_add_u32 s86, s86, s87
s_mul_i32 s86, s86, 4608
s_add_u32 s86, s86, {WOP}
s_cmp_lt_u32 s77, 108
s_cselect_b32 s86, s86, {OOB}
s_and_b32 s87, s79, 3
s_lshl_b32 s76, s87, 8
s_add_u32 s76, s76, s86
v_add_u32 v{40+2*G}, s76, v16
s_lshl_b32 s76, s87, 7
s_add_u32 s76, s76, s86
s_add_u32 s76, s76, 4096
v_add_u32 v{41+2*G}, s76, v17""")
    P("L_r1_join:\ns_nop 1")
    for t in range(4): P(f"v_add_u32 v{33+2*t}, s85, v{32+2*t}")
    mksrd(sW1, 12, 576*9216); mksrd(sW2, 16, 4608*1152); mksrd(sB1, 14, 9216); mksrd(sB2, 18, 1152); mksrd(sOUT, 20, 2048*1152)
    if cfg.dbg: mksrd(sR, 22, 256)
    if cfg.stamps: P("@waitlg_all\ns_mov_b32 s4, s26"); P("s_mov_b32 s5, s38"); nstamp[0] = 2; names.append("start"); names.append("r0 issue")
    P("s_mov_b32 s99, 0x3f803f80\ns_mov_b32 s98, 0xffff0000")
    if cfg.touch:
        P(f"v_lshlrev_b32 v90, 21, v{vL}\nv_min_u32 v90, {0x2800000}, v90")
        P(f"buffer_load_dword v60, v90, {srd(sWS)}, 0 offen", "tch")
        if cfg.touch > 1:
            P(f"buffer_load_dword v61, v90, {srd(sW1)}, 0 offen", "tch")
            P(f"buffer_load_dword v62, v90, {srd(sW2)}, 0 offen", "tch")
            P(f"buffer_load_dword v63, v90, {srd(sOUT)}, 0 offen", "tch")
    UP = {(1, 0): (32, 33, 34), (1, 1): (35, 36, 37), (2, 0): (24, 25, 34), (2, 1): (26, 27, 37)}
    for z in range(2):
        a1, d1, st = UP[(1, z)]; a2, d2, _ = UP[(2, z)]
        P(f"""s_add_u32 s84, s77, {128*z}
s_mul_i32 s85, s84, 7282
s_lshr_b32 s85, s85, 16
s_mul_i32 s86, s85, 9
s_sub_u32 s86, s84, s86
s_lshl_b32 s76, s86, 7
s_mul_i32 s87, s85, {32*9216}
s_add_u32 s87, s87, s76
s_mul_i32 s75, s{sJ1}, 1152
s_add_u32 s{a1}, s87, s75
s_mul_i32 s87, s85, {32*1152}
s_add_u32 s87, s87, s76
s_mul_i32 s75, s{sJ1}, {576*1152}
s_add_u32 s{a2}, s87, s75
s_lshr_b32 s79, s85, 2
s_lshl_b32 s79, s79, 1
s_and_b32 s75, s85, 1
s_add_u32 s79, s79, s75
s_add_u32 s75, s79, 10
s_bitcmp1_b32 s85, 1
s_cselect_b32 s79, s75, s79
s_lshr_b32 s87, s86, 1
s_mul_i32 s87, s87, 162
s_and_b32 s76, s86, 1
s_lshl_b32 s76, s76, 2
s_add_u32 s87, s87, s76
s_cmp_eq_u32 s86, 8
s_cselect_b32 s87, 8, s87
s_cselect_b32 s{st}, 162, 1
s_lshl_b32 s{st}, s{st}, 10
s_mul_i32 s76, s{sJ1}, 648
s_add_u32 s87, s87, s76
s_mul_i32 s75, s85, 9
s_add_u32 s75, s75, s87
s_lshl_b32 s75, s75, 10
s_add_u32 s{d1}, s75, {W1R}
s_mul_i32 s75, s79, 9
s_add_u32 s75, s75, s87
s_lshl_b32 s75, s75, 10
s_add_u32 s{d2}, s75, {W2R}""")
        if z:
            P("s_cmp_lt_u32 s84, 162")
            for r in (a1, d1, a2, d2): P(f"s_cselect_b32 s{r}, s{r}, {OOB}")
    P(f"""v_mul_u32_u24 v92, 9216, v8
v_lshl_add_u32 v92, v9, 4, v92
v_mul_u32_u24 v93, 1152, v8
v_lshl_add_u32 v93, v9, 4, v93
v_lshl_add_u32 v94, v{vG}, 3, v14
v_lshlrev_b32 v94, 7, v94
v_lshl_add_u32 v94, v15, 4, v94
s_lshl_b32 s84, s{sW}, 13
v_add_u32 v94, s84, v94""")
    def unit_dma(mat, z, scr, vs=None):
        if mat in cfg.norp: return []
        a = UP[(mat, z)][0]; st = 9216 if mat == 1 else 1152
        L = [f"s_lshl_b32 s84, s{sW}, 13\ns_add_u32 s84, s84, {scr + 4096*z}\ns_mov_b32 m0, s84"]
        for q in range(4):
            if q: L.append(f"s_add_u32 s{a}, s{a}, {8*st - 1024}")
            L.append((f"buffer_load_dwordx4 v{vs or 91+mat}, {srd(sW1 if mat == 1 else sW2)}, s{a} offen offset:{1024*q}{cfg.rawfl} lds", "wr"))
        return L
    def unit_tr(z, scr, vt):
        return [f"ds_read_b64_tr_b16 {vq(vt+4*t+2*hi,2)}, v94 offset:{scr + 4096*z + 64*(t>>1) + 8*(t&1) + 512*hi}" for t in range(4) for hi in range(2)]
    def unit_st(mat, z, vt):
        if mat in cfg.norp: return []
        _, d, st = UP[(mat, z)]; L = []
        for t in range(4):
            if t: L.append(f"s_add_u32 s{d}, s{d}, s{st}")
            L.append((f"buffer_store_dwordx4 {vq(vt+4*t)}, v{vL16}, {srd(sWS)}, s{d} offen{cfg.wrsfl}", "wrs"))
        return L
    MS, MP, ME, MO = 96, 100, 104, 108
    P(f"""v_mov_b32 v66, {hexf(-1e30)}
v_lshlrev_b32 v64, 2, v{vG}
v_sub_u32 v64, v64, v{vI}
s_cmp_eq_u32 s{sG1}, 0
s_cselect_b32 s84, 100, 0
v_cmp_gt_u32 s[80:81], 2, v{vG}""")
    for r in range(4):
        P(f"""v_add_u32 v65, {r+7}, v64
v_cmp_gt_u32 vcc, 8, v65
v_add_u32 v65, {r}, v64
v_subrev_u32 v67, s84, v65
v_cndmask_b32 v{MS+r}, v66, 0, vcc
v_cmp_lt_i32 vcc, 8, v65
v_cmp_lt_i32 s[82:83], 8, v67
v_cmp_lt_i32 s[86:87], 0, v67
v_cndmask_b32 v{MP+r}, v66, 0, vcc
s_and_b64 s[86:87], s[86:87], s[80:81]
v_cndmask_b32 v{MO+r}, v66, 0, s[82:83]
v_cndmask_b32 v{ME+r}, v66, 0, s[86:87]""")
    P("@waitvm r0")
    stamp("r0 landed")
    for t in range(4):
        P(f"ds_read_b64_tr_b16 {vq(16+4*t,2)}, v{32+2*t}")
        P(f"ds_read_b64_tr_b16 {vq(18+4*t,2)}, v{33+2*t}")
    for t in range(4):
        P(f"buffer_store_dwordx4 {vq(16+4*t)}, v{40+t}, {srd(sWS)}, 0 offen sc1", "r0s")
    stamp("@r0 st")
    xrest = xl[cfg.nx1:] + hl
    P(f"@waitlg_all\ns_add_u32 s{sTAG}, s{sTAG}, 0x9E3779B9")
    P(f"""s_lshl_b32 s84, s{sJ1}, 12
s_add_u32 s84, s84, {F0S}
s_lshl_b32 s85, s{sG1}, 2
s_add_u32 s85, s85, s84
v_mov_b32 v44, s85
v_cmp_eq_u32 vcc, 0, v0
v_cndmask_b32 v44, v13, v44, vcc
v_and_b32 v45, 31, v{vL}
v_lshl_add_u32 v45, v45, 2, s84
s_lshl_b32 s84, s{sJ2 if cfg.f0both else sJ1}, 12
s_add_u32 s84, s84, {F0S - 128}
v_lshl_add_u32 v5, v{vL}, 2, s84
v_cmp_gt_u32 vcc, 32, v{vL}
v_cndmask_b32 v45, v5, v45, vcc""")
    def stats(groups, acc):
        order = sorted((r, gi, k) for gi, regs in enumerate(groups) for k, r in enumerate(regs))
        L = []
        for r, gi, k in order:
            a = acc + 4*gi + 2*(k & 1)
            c0 = "0" if k < 2 else f"v{a}"; c1 = "0" if k < 2 else f"v{a+1}"
            L.append(f"v_dot2_f32_bf16 v{a}, v{r}, s99, {c0}\nv_dot2_f32_bf16 v{a+1}, v{r}, v{r}, {c1}")
        for gi in range(len(groups)):
            a = acc + 4*gi
            L.append(f"v_add_f32 v{a}, v{a}, v{a+2}\nv_add_f32 v{a+1}, v{a+1}, v{a+3}")
        return L
    def finish_stats(A):
        for t in [f"v_mul_f32 v@0, {hexf(1/576)}, v@0", f"v_mul_f32 v@2, v@0, v@0", f"v_mul_f32 v@1, {hexf(1/576)}, v@1", "v_sub_f32 v@1, v@1, v@2",
                  "v_max_f32 v@1, 0, v@1", f"v_add_f32 v@1, {hexf(1e-5)}, v@1", "v_rsq_f32 v@1, v@1", "v_mul_f32 v@2, v@0, -v@1",
                  "v_mov_b32 v@0, v@1", "v_mov_b32 v@3, v@2"]:
            for a in A: P(t.replace("@0", str(a)).replace("@1", str(a+1)).replace("@2", str(a+2)).replace("@3", str(a+3)))
    def normalize(q, a, t, pk=True):
        L = []
        for d in range(4):
            L.append(f"v_lshlrev_b32 v{t+2*d}, 16, v{q+d}")
            L.append(f"v_and_b32 v{t+2*d+1}, s98, v{q+d}")
        if pk:
            for d in range(4): L.append(f"v_pk_fma_f32 {vq(t+2*d,2)}, {vq(t+2*d,2)}, {vq(a,2)}, {vq(a+2,2)}")
        else:
            for d in range(8): L.append(f"v_fma_f32 v{t+d}, v{t+d}, v{a}, v{a+2}")
        for d in range(4): L.append(f"v_cvt_pk_bf16_f32 v{q+d}, v{t+2*d}, v{t+2*d+1}")
        return L
    ST = 144; NT = 112
    st = stats([[XR + (q*2+hh)*4 + d for q in range(9) for d in range(4)] for hh in range(2)] + [[XH + k for k in range(20)]], ST)
    raw = {1: [], 2: []}
    for z in range(2):
        raw[1] += unit_dma(1, z, W1SCR); raw[2] += unit_dma(2, z, W2SCR0)
    raw[1].append(f"s_mul_i32 s84, s{sJF}, 1152\nv_lshlrev_b32 v5, 7, v{vI}")
    raw[1].append((f"buffer_load_dword v252, v5, {srd(sB1)}, s84 offen", "wr"))
    raw[1].append((f"buffer_load_dword v253, v5, {srd(sB2)}, 0 offen", "wr"))
    k = 0
    for n, l in enumerate(xrest + [None]):
        if n == cfg.nx2:
            stamp("@pre-ack")
            P("@waitvm r0s")
            stamp("@acked")
            P("s_barrier")
            set_flag(44)
            stamp("F0 set")
        if l is None: break
        P(l, "x")
        if cfg.nx1 + n + 1 - k//4 > cfg.lag: P.extend(st[k:k+4]); k += 4
    if cfg.rawat == 0: P.extend(raw[1])
    P.extend(st[k:])
    if cfg.rawat == 1: P.extend(raw[1])
    if cfg.w2at == 4: P.extend(raw[2])
    for mod in ["quad_perm:[1,0,3,2]", "quad_perm:[2,3,0,1]", "row_half_mirror"]:
        for gi in range(3):
            for k in range(2):
                a = ST + 4*gi + k
                P(f"v_add_f32_dpp v{a}, v{a}, v{a} {mod} row_mask:0xf bank_mask:0xf")
    for k in range(2): P(f"v_add_f32_dpp v{ST+8+k}, v{ST+8+k}, v{ST+8+k} row_mirror row_mask:0xf bank_mask:0xf")
    finish_stats([ST, ST+4, ST+8])
    stamp("LN1 stats")
    P(f"""v_lshrrev_b32 v156, 2, v9
v_mul_u32_u24 v156, 5120, v156
v_and_b32 v157, 3, v9
v_lshl_add_u32 v156, v157, 8, v156
v_xor_b32 v157, v8, v9
v_lshl_add_u32 v156, v157, 4, v156
s_lshl_b32 s84, s{sW}, 10
s_add_u32 s84, s84, {XB}
v_add_u32 v156, s84, v156
v_add_u32 v157, {10240*5}, v156
v_lshrrev_b32 v158, 2, v{vI}
v_mul_u32_u24 v158, 5120, v158
v_lshl_add_u32 v158, v15, 8, v158
v_xor_b32 v159, v10, v9
v_lshl_add_u32 v158, v159, 4, v158
v_add_u32 v158, {XB + 4096}, v158
v_add_u32 v159, {20480*3}, v158""")
    ntc = [0]; NB = cfg.nb[0] + cfg.nb[1]
    def ln1_batch(b):
        L = []
        for q in range(2*b, min(2*b+2, 9)):
            for hh in range(2):
                r = XR + (q*2+hh)*4
                if not cfg.dtest: L += normalize(r, ST + 4*hh, NT + 8*(ntc[0] & 1), b < NB); ntc[0] += 1
                L.append(f"ds_write_b128 v{156 if q < 5 else 157}, {vq(r)} offset:{10240*(q % 5) + 128*hh}")
        if not cfg.dtest: L += normalize(XH + 4*b, ST + 8, NT + 8*(ntc[0] & 1), b < NB); ntc[0] += 1
        wr = f"ds_write_b128 v{158 if b < 3 else 159}, {vq(XH+4*b)} offset:{20480*(b % 3)}"
        if b == 4: wr = "s_mov_b32 exec_lo, 0x00ff00ff\ns_mov_b32 exec_hi, 0x00ff00ff\n" + wr + "\ns_mov_b64 exec, -1"
        L.append(wr)
        return L
    if cfg.rawat != 4:
        for b_ in range(cfg.nb[0]): P.extend(ln1_batch(b_))
    P(f"""s_lshl_b32 s74, s{sJ1}, 2
s_add_u32 s74, s74, s{sW}
s_mul_i32 s74, s74, {18*3584}
s_add_u32 s74, s74, {WQP}
s_add_u32 s75, s74, {18*3584}
s_mul_i32 s78, s{sRP}, {2*3584}
s_add_u32 s78, s78, s74
v_lshlrev_b32 v7, 7, v{vG}
v_lshl_add_u32 v7, v{vI}, 4, v7
v_cmp_gt_u32 vcc, 6, v{vI}
v_cndmask_b32 v7, v13, v7, vcc
v_xor_b32 v8, v{vI}, v{vG}
v_lshlrev_b32 v8, 4, v8
v_lshl_add_u32 v8, v{vG}, 8, v8
v_add_u32 v8, {XB}, v8
v_xor_b32 v9, 64, v8
v_add_u32 v10, 46080, v8
v_add_u32 v11, 46080, v9""")
    stamp("@LN1 b0")
    if cfg.poll1: P(f"s_waitcnt vmcnt(0)\ns_cmp_lg_u32 s{sW}, 0\ns_cbranch_scc1 L_pdone{npoll[0]}")
    poll(45, 5)
    if cfg.poll1: P("s_barrier")
    stamp("F0 seen")
    QA, KA, EA, VA = 16, 32, 52, 72
    WR = 64
    D = cfg.p1depth
    def wq_loads(s):
        b = WR + (s % D)*16
        L = [(f"buffer_load_dwordx4 {aq(b+4*t)}, v{vL16}, {srd(sWS)}, s78 offen offset:{1024*t}{cfg.wsc}", "wq") for t in range(3)]
        L.append((f"buffer_load_dwordx4 {aq(b+12)}, v7, {srd(sWS)}, s78 offen offset:3072{cfg.wsc}", "wq"))
        if s < 17: L.append(wrap(78, 3584, 75, 74))
        return L
    def x_reads(s):
        b = (s % 2)*20
        reg = (8 if s % 2 == 0 else 9) + (2 if s >= 9 else 0)
        return [f"ds_read_b128 {aq(b+4*m)}, v{reg} offset:{((s % 9)*5 + m)*1024}" for m in range(5)]
    def join(L):
        out = []; pend = ""
        for x in L:
            if isinstance(x, tuple): out.append((pend + x[0], x[1])); pend = ""
            else: pend += x + "\n"
        if pend: out.append(pend.strip())
        return out
    if cfg.rawat == 4:
        mem = join(sum([wq_loads(s) for s in range(D-1)], []))
        tail_ = [mem.pop()] if not isinstance(mem[-1], tuple) else []
        mem += tail_ + join(raw[1]) + (join(raw[2]) if cfg.w2at == 6 else [])
        work = ln1_batch(0) + ln1_batch(1)
        for l in mem[:cfg.nq1]: P.add(l)
        mem = mem[cfg.nq1:]
        for n, l in enumerate(work):
            P.add(l)
            if n % cfg.qgap == cfg.qgap - 1 and mem: P.add(mem.pop(0))
        for l in mem: P.add(l)
    else:
        for s in range(D-1): P.extend(wq_loads(s))
        if cfg.rawat == 2: P.extend(raw[1])
        for b_ in range(cfg.nb[0], NB): P.extend(ln1_batch(b_))
    P("@waitlg_all\ns_barrier")
    P.extend(x_reads(0))
    stamp("GEMM1 start")
    def lines(t): return t.split("\n")
    def own_flag(vd, base, sa, sha, sb, shb):
        return [f"s_lshl_b32 s86, s{sa}, {sha}", f"s_lshl_b32 s87, s{sb}, {shb}", "s_add_u32 s86, s86, s87", f"s_add_u32 s86, s86, {base}",
                f"v_mov_b32 v{vd}, s86", f"v_cmp_eq_u32 vcc, 0, v0\nv_cndmask_b32 v{vd}, v13, v{vd}, vcc"]
    def grp_poll_addr(vd, sg, base):
        return lines(f"""s_lshl_b32 s86, s{sg}, 12
s_add_u32 s86, s86, {base}
v_and_b32 v{vd}, 7, v{vL}
v_lshl_add_u32 v{vd}, v{vd}, 4, s86""")
    def set_poll_addr(vd, sj, base):
        return lines(f"""s_lshl_b32 s86, s{sj}, 12
s_add_u32 s86, s86, {base}
v_and_b32 v{vd}, 31, v{vL}
v_lshl_add_u32 v{vd}, v{vd}, 2, s86""")
    def flag_items(vaddr):
        return [f"v_mov_b32 v5, s{sTAG}", (f"buffer_store_dword v5, v{vaddr}, {srd(sWS)}, 0 offen sc1", "flag")]
    def unpack(dst, src, n):
        return sum([[f"v_lshlrev_b32 v{dst+2*k}, 16, v{src+k}", f"v_and_b32 v{dst+2*k+1}, s98, v{src+k}"] for k in range(n)], [])
    QO, KO, VO, XO = 112, 128, 148, 160
    flex = []
    T0 = 128
    if NB <= 2:
        for l in ln1_batch(2): flex.append((0, l))
    flex.append((0, "@mark0"))
    flex2 = []
    q1, q2, q3, q4 = cfg.gq
    if cfg.rawat == 3:
        for k, l in enumerate(join(raw[1])): flex2.append((int(19*q1) + 2*k, l))
    def repack(mat, scr, g0):
        flex2.append((g0, "@waitvm wr"))
        for z in range(2):
            for l in unit_tr(z, scr, T0): flex2.append((g0 + 24*z, l))
            for k, l in enumerate(join(unit_st(mat, z, T0))): flex2.append((g0 + 24*z + 8 + 4*k, l))
    if cfg.w2at == 3 and q3 < q2:
        for k, l in enumerate(join(raw[2])): flex2.append((int(19*q3) + 2*k, l))
    repack(1, W1SCR, int(19*q2))
    if cfg.w2at >= 3:
        if q3 >= q2 and cfg.w2at == 3:
            for k, l in enumerate(join(raw[2])): flex2.append((int(19*q3) + 2*k, l))
        repack(2, W2SCR0, int(19*q4))
    flex2.append((0, "@markb"))
    for l in (ln1_batch(3) if NB <= 3 else []) + own_flag(95, F1S, sJ1, 12, sG1, 2): flex.append((0, l))
    flex.append((0, "@mark1"))
    if NB <= 4:
        for l in ln1_batch(4): flex.append((0, l))
    flex.append((0, "@mark2"))
    pre = lines(f"""s_lshl_b32 s84, s{sW}, 10
s_add_u32 s84, s84, {VXS}
v_lshl_add_u32 v234, v{vI}, 1, s84
v_add_u32 v235, 512, v234
v_cmp_eq_u32 vcc, 1, v{vG}@@v_cndmask_b32 v234, v235, v234, vcc
v_lshl_add_u32 v235, v{vL}, 2, s84
v_min_u32 v236, 2, v{vI}
v_mul_u32_u24 v236, 160, v236
v_lshl_add_u32 v236, v{vG}, 3, v236
v_add_u32 v236, s84, v236
v_mov_b32 v237, s99
s_mul_i32 s84, s{sG1}, 73728
s_add_u32 s84, s84, {OP}
s_lshl_b32 s85, s{sJ1}, 1
s_lshr_b32 s86, s{sW}, 1
s_add_u32 s85, s85, s86
s_lshl_b32 s85, s85, 12
s_and_b32 s86, s{sW}, 1
s_lshl_b32 s86, s86, 9
s_add_u32 s85, s85, s86
s_add_u32 s95, s85, s84
s_lshl_b32 s87, s{sJ1}, 2
s_add_u32 s87, s87, s{sW}
s_lshl_b32 s87, s87, 8
s_add_u32 s87, s87, 65536
s_add_u32 s96, s87, s84
v_and_b32 v232, 1, v{vG}
v_lshlrev_b32 v232, 10, v232
v_lshrrev_b32 v233, 1, v{vG}
v_lshl_add_u32 v232, v233, 8, v232
v_lshl_add_u32 v232, v{vI}, 4, v232
v_lshlrev_b32 v233, 2, v{vL}
s_mul_i32 s79, s{sJ2}, 82944
s_add_u32 s79, s79, {WOP}
s_lshl_b32 s84, s{sW}, 1
s_add_u32 s85, s84, s{sR2}
s_and_b32 s86, s85, 7
s_mul_i32 s86, s86, 9216
s_add_u32 s80, s86, s79
s_add_u32 s85, s85, 1
s_and_b32 s86, s85, 7
s_mul_i32 s86, s86, 9216
s_add_u32 s81, s86, s79
s_lshl_b32 s84, s84, 10
s_add_u32 s84, s84, 73728
s_add_u32 s82, s84, s79
s_mov_b32 s83, s84
s_mul_i32 s76, s{sW}, 18432
s_lshl_b32 s84, s{sG2}, 6
s_and_b32 s85, s{sW}, 1
s_lshl_b32 s85, s85, 5
s_add_u32 s85, s85, s84
s_lshr_b32 s86, s{sW}, 1
s_add_u32 s85, s85, s86
s_mul_i32 s85, s85, 1152
s_mul_i32 s86, s{sJ2}, 144
s_add_u32 s79, s85, s86
v_mul_u32_u24 v238, 7282, v{vL}
v_lshrrev_b32 v238, 16, v238
v_mul_u32_u24 v239, 9, v238
v_sub_u32 v239, v{vL}, v239
v_mul_u32_u24 v238, 2304, v238
v_lshl_add_u32 v238, v239, 4, v238
v_cmp_gt_u32 vcc, 54, v{vL}@@v_cndmask_b32 v238, v13, v238, vcc
s_mul_i32 s77, s{sW}, 3072
s_add_u32 s77, s77, {XRS}
s_mov_b32 s94, {hexf((18 ** -0.5) * 1.4426950408889634)}""") + set_poll_addr(15, sJF, F1S)
    pre += [f"v_mov_b32 v{KO+4*m+3}, 0" for m in range(5)] + [f"v_mov_b32 v{QO+4*m+3}, 0" for m in range(4)]
    for l in pre: flex.append((19*cfg.f1s + 1, l.replace("@@", "\n")))
    mains = []; fixed = {}
    for s in range(18):
        wb = WR + (s % D)*16; xb = (s % 2)*20
        base = len(mains)
        for m in range(5):
            x = aq(xb + 4*m)
            def acc(a): return (vq(a), "0" if s == 0 else vq(a))
            if cfg.g1ord == 0:
                d, c = acc(KA + 4*m); mains.append(f"{MF} {d}, {aq(wb+4)}, {x}, {c}")
                d, c = acc(VA + 4*m); mains.append(f"{MF} {d}, {x}, {aq(wb+8)}, {c}")
                d, c = acc(EA + 4*m); mains.append(f"{MF} {d}, {aq(wb+12)}, {x}, {c}" if not (cfg.etest and m in (1, 3) and s) else "s_nop 0")
                if m < 4:
                    d, c = acc(QA + 4*m); mains.append(f"{MF} {d}, {aq(wb)}, {x}, {c}")
                elif cfg.dtest == 2: fixed.setdefault(len(mains) - 1, []).append(f"{MF} v[244:247], {aq(wb)}, {x}, 0")
        if cfg.g1ord == 1:
            def acc(a): return (vq(a), "0" if s == 0 else vq(a))
            for m in range(5):
                d, c = acc(KA + 4*m); mains.append(f"{MF} {d}, {aq(wb+4)}, {aq(xb+4*m)}, {c}")
            for m in range(4, -1, -1):
                d, c = acc(EA + 4*m); mains.append(f"{MF} {d}, {aq(wb+12)}, {aq(xb+4*m)}, {c}")
            for m in range(4):
                d, c = acc(QA + 4*m); mains.append(f"{MF} {d}, {aq(wb)}, {aq(xb+4*m)}, {c}")
            for m in range(5):
                d, c = acc(VA + 4*m); mains.append(f"{MF} {d}, {aq(xb+4*m)}, {aq(wb+8)}, {c}")
        t_ = stamp_txt(f"@q{s}") if s else None
        if t_: fixed.setdefault(base - 1, []).append(t_)
        if s == 7 and NB <= 2: fixed.setdefault(base, []).extend(["@flexdone0", "@waitlg_all", "s_barrier"])
        fb_ = ["@flexdoneb", "@waitvm wrs"]
        if s == 11: fixed.setdefault(base, []).extend(["@flexdone1"] + (fb_ if cfg.f1s == 11 else []) + ["@waitlg_all", "s_barrier"] + (flag_items(95) if cfg.f1s == 11 else []))
        if s == 15: fixed.setdefault(base, []).extend(["@flexdone2"] + (fb_ if cfg.f1s == 15 else []) + ["@waitlg_all", "s_barrier"] + (flag_items(95) if cfg.f1s == 15 else []))
        if s + 1 < 18:
            for k, l in enumerate(x_reads(s+1)): fixed.setdefault(base + 1 + 2*k, []).append(l)
            fixed.setdefault(base + 18, []).append(f"@need {aq(WR + ((s+1) % D)*16, 16)} {aq(((s+1) % 2)*20, 20)}")
        if s + D - 1 < 18:
            for k, l in enumerate(wq_loads(s + D - 1)): fixed.setdefault(base + [2, 6, 10, 12, 14][k], []).append(l)
    dma = []
    for seg in range(2):
        for k in range(9):
            it = ""
            if k % 4 == 0:
                it = f"s_add_u32 s84, s76, {seg*9216 + 1024*k}\ns_mov_b32 m0, s84\n"
                if k: it += f"s_add_u32 s{80+seg}, s{80+seg}, 4096\n"
            dma.append((it + f"buffer_load_dwordx4 v{vL16}, {srd(sWS)}, s{80+seg} offen offset:{1024*(k % 4)} sc1 lds", "wo"))
    tail3 = [(("s_mov_b32 m0, s83\n" if k == 0 else "") + f"buffer_load_dwordx4 v{vL16}, {srd(sWS)}, s82 offen offset:{1024*k} sc1 lds", "wo") for k in range(3)]
    xres3 = [(("s_mov_b32 m0, s77\n" if k == 0 else f"s_add_u32 s79, s79, {13824 - 1024}\n") + f"buffer_load_dwordx4 v238, {srd(sX)}, s79 offen offset:{1024*k}{cfg.xrfl} lds", "wo") for k in range(3)]
    ne = cfg.wo_early
    if not cfg.f0both:
        for l in set_poll_addr(240, sJ2, F0S): flex.append((0, l))
        flex.append((0, poll_pre(240, 241)))
        flex.append((19*15, poll_check(240, 241)))
    for k in range(ne): flex.append((max(19*(18 - (ne*5 + 18)//19) + 5*k, 19*cfg.f1s + 1), dma[k]))
    sched(P, mains, fixed, flex, flex2=flex2)
    stamp("GEMM1 done")
    P("s_barrier")
    A = Prog()
    A(f"s_mov_b32 exec_hi, 0xffff\nds_write_b32 v235, v237 offset:320\ns_mov_b32 exec_hi, -1")
    if cfg.dtest == 2:
        for k in range(150): A(f"v_mul_f32 v{KA + k % 20}, 1.0, v{KA + k % 20}")
    for m in range(5):
        r = QO + 4*m + 2 if m < 4 else 172
        A(f"v_cvt_pk_bf16_f32 v{r}, v{EA+4*m}, v{EA+4*m+1}")
        A(f"ds_write_b16 v234, v{r} offset:{32*m}\nds_write_b16_d16_hi v234, v{r} offset:{160+32*m}")
    SA = 176
    prev = [4, 0, 4, 2]; pmask = [ME, MP, MO, MP]
    def kop(m): A(f"v_cvt_pk_bf16_f32 v{KO+4*m}, v{KA+4*m}, v{KA+4*m+1}\nv_cvt_pk_bf16_f32 v{KO+4*m+1}, v{KA+4*m+2}, v{KA+4*m+3}\nv_cvt_pk_bf16_f32 v{KO+4*m+2}, v{EA+4*m+2}, v{EA+4*m+3}")
    def qop(m): A(f"v_cvt_pk_bf16_f32 v{QO+4*m}, v{QA+4*m}, v{QA+4*m+1}\nv_cvt_pk_bf16_f32 v{QO+4*m+1}, v{QA+4*m+2}, v{QA+4*m+3}")
    kop(4)
    for m in range(4):
        qop(m); kop(m)
        if m: A(f"{MF} {vq(SA+8*(m-1)+4)}, {vq(KO+4*(m-1))}, {vq(QO+4*(m-1))}, {vq(MS)}")
        A(f"{MF} {vq(SA+8*m)}, {vq(KO+4*prev[m])}, {vq(QO+4*m)}, {vq(pmask[m])}")
    vorder = [4, 0, 1, 4, 2, 3]
    for k, m in enumerate(vorder):
        A(f"v_cvt_pk_bf16_f32 v{VO+2*k}, v{VA+4*m}, v{VA+4*m+1}\nv_cvt_pk_bf16_f32 v{VO+2*k+1}, v{VA+4*m+2}, v{VA+4*m+3}")
        if k == 0: A(f"{MF} {vq(SA+28)}, {vq(KO+12)}, {vq(QO+12)}, {vq(MS)}")
    A("@waitlg_all")
    for k, m in enumerate(vorder): A(f"ds_read_b64 {vq(XO+2*k,2)}, v236 offset:{32*m}")
    MX = 208
    for m in range(4):
        s = SA + 8*m
        A(f"v_max3_f32 v{MX+m}, v{s}, v{s+1}, v{s+2}\nv_max3_f32 v{MX+4+m}, v{s+3}, v{s+4}, v{s+5}")
    for m in range(4):
        s = SA + 8*m
        A(f"v_max3_f32 v{MX+m}, v{MX+m}, v{s+6}, v{s+7}")
    for m in range(4): A(f"v_max_f32 v{MX+m}, v{MX+m}, v{MX+4+m}")
    A(f"""v_permlane16_swap_b32 v{MX}, v{MX+1}
v_permlane16_swap_b32 v{MX+2}, v{MX+3}
v_max_f32 v{MX}, v{MX}, v{MX+1}
v_max_f32 v{MX+2}, v{MX+2}, v{MX+3}
v_permlane32_swap_b32 v{MX}, v{MX+2}
v_max_f32 v{MX}, v{MX}, v{MX+2}
v_mul_f32 v{MX}, s94, v{MX}
v_mov_b32 v{MX+2}, v{MX}
v_permlane32_swap_b32 v{MX}, v{MX+2}
v_mov_b32 v{MX+1}, v{MX}
v_mov_b32 v{MX+3}, v{MX+2}
v_permlane16_swap_b32 v{MX}, v{MX+1}
v_permlane16_swap_b32 v{MX+2}, v{MX+3}""")
    PO = 216; OA = 16; OX = 32
    for m in range(4):
        s = SA + 8*m
        h = m & 1
        for k in range(4): A(f"v_pk_fma_f32 {vq(s+2*k,2)}, {vq(s+2*k,2)}, s[94:95], {vq(MX+(m&2),2)} op_sel:[0,0,{h}] op_sel_hi:[1,0,{h}] neg_lo:[0,0,1] neg_hi:[0,0,1]")
        if m:
            o = [0, 2, 6, 8][m-1]
            A(f"{MF} {vq(OX+4*(m-1))}, {vq(XO+o)}, {vq(PO+4*(m-1))}, 0")
            A(f"{MF} {vq(OA+4*(m-1))}, {vq(VO+o)}, {vq(PO+4*(m-1))}, 0")
        for k in range(8): A(f"v_exp_f32 v{s+k}, v{s+k}")
        for k in range(4): A(f"v_cvt_pk_bf16_f32 v{PO+4*m+k}, v{s+2*k}, v{s+2*k+1}")
    A(f"v_rcp_f32 v{MX}, v{OX+2}\nv_rcp_f32 v{MX+1}, v{OX+6}")
    A(f"{MF} {vq(OX+12)}, {vq(XO+8)}, {vq(PO+12)}, 0\n{MF} {vq(OA+12)}, {vq(VO+8)}, {vq(PO+12)}, 0")
    OP0 = 112
    for p in range(2):
        if p: A(f"v_rcp_f32 v{MX+2}, v{OX+10}\nv_rcp_f32 v{MX+3}, v{OX+14}")
        for m in (2*p, 2*p+1):
            for r in range(2): A(f"v_pk_mul_f32 {vq(OA+4*m+2*r,2)}, {vq(OA+4*m+2*r,2)}, {vq(MX+(m&2),2)} op_sel:[0,{m&1}] op_sel_hi:[1,{m&1}]")
            A(f"v_cvt_pk_bf16_f32 v{OP0+2*m}, v{OA+4*m}, v{OA+4*m+1}\nv_cvt_pk_bf16_f32 v{OP0+2*m+1}, v{OA+4*m+2}, v{OA+4*m+3}")
        for m in (2*p, 2*p+1):
            A(f"v_pk_mul_f32 {vq(OX+4*m,2)}, {vq(OX+4*m,2)}, {vq(MX+(m&2),2)} op_sel:[0,{m&1}] op_sel_hi:[1,{m&1}]")
        b = OP0 + 4*p
        A(f"v_permlane16_swap_b32 v{b}, v{b+2}\nv_permlane16_swap_b32 v{b+1}, v{b+3}")
        A(f"buffer_store_dwordx4 {vq(OP0+4*p)}, v232, {srd(sWS)}, s95 offen offset:{2048*p} sc1", "o")
        for m in (2*p, 2*p+1): A(f"v_cvt_pk_bf16_f32 v{OP0+8+m}, v{OX+4*m}, v{OX+4*m+1}")
    A(f"v_permlane16_swap_b32 v{OP0+8}, v{OP0+9}\nv_permlane16_swap_b32 v{OP0+10}, v{OP0+11}")
    A(f"v_permlane32_swap_b32 v{OP0+8}, v{OP0+10}")
    A(f"buffer_store_dword v{OP0+8}, v233, {srd(sWS)}, s96 offen sc1", "o")
    late = dma[ne:] + tail3 + xres3 + [poll_pre(15, 14)]
    if cfg.w2at == 0:
        w2l = []
        for z in range(2):
            u = unit_dma(2, z, W2SCR)
            w2l.append((u[0] + "\n" + u[1][0], "wr"))
            for q in range(1, 4): w2l.append((u[2*q] + "\n" + u[2*q+1][0], "wr"))
        assert ne in (0, 4, 8, 9, 13)
        late = w2l + late
    k = 0
    for n, ins in enumerate(A.ins):
        P.add(ins)
        if n >= 3 and (n - 3) % cfg.dmagap == 0 and k < len(late): P.add(late[k]); k += 1
    assert k == len(late)
    stamp("attn done")
    NR = 56; AF = 224
    ACA, ACB = 16, 96
    CA, CB = 96, 160
    passes = [("A", [0, 1, 2, 3, 8], ACA, CA), ("B", [4, 5, 6, 7], ACB, CB), ("C", [4, 5, 8], 16, None), ("D", [0, 1], 96, None), ("E", [2, 3], 64, None), ("F", [6, 7], 16, None)]
    if cfg.p522: passes = passes[:2] + [("C", [0, 1, 2, 3, 8], 16, None), ("E", [4, 5], 96, None), ("F", [6, 7], 128, None)]
    steps = [(pi, p) for pi in range(len(passes)) for p in range(18)]
    cons = [(pi, p, t) for pi, p in steps for t in range(len(passes[pi][1]))]
    slot = {f: n % NR for n, f in enumerate(cons)}
    def wload(n):
        pi, p, t = cons[n]; L = []
        if t == 0 and n > 0:
            if pi == 1 and p == 0:
                L.append(f"s_mul_i32 s92, s{sRF}, 9216\ns_add_u32 s92, s92, s90")
            elif pi >= 2 and p in (0, 10):
                beg = 0 if p == 0 else 10*9216; end = (10 if p == 0 else 18)*9216
                L.append(f"s_add_u32 s90, s89, {beg}\ns_add_u32 s91, s89, {end}")
                L.append(f"s_mul_i32 s92, s{93 if p == 0 else 94}, 9216\ns_add_u32 s92, s92, s90")
            else: L.append(wrap(92, 9216, 91, 90))
        tile = passes[pi][1][t]
        L.append((f"buffer_load_dwordx4 {aq(4*(n % NR))}, v{[vL16, 12, 255][tile >> 2]}, {srd(sWS)}, s92 offen offset:{1024*(tile % 4)}{cfg.wsc}", "w"))
        return L
    npf = [0]
    def prefetch(n):
        L = []
        for k in range(n): L += wload(npf[0]); npf[0] += 1
        return L
    P(f"""s_lshl_b32 s88, s{sJF}, 2
s_add_u32 s88, s88, s{sW}
s_mul_i32 s88, s88, {162*1024}
s_add_u32 s89, s88, {W2R}
s_add_u32 s88, s88, {W1R}
s_mul_i32 s92, s{sRF}, 9216
s_add_u32 s92, s92, s88
s_mov_b32 s90, s88
s_add_u32 s91, s88, {162*1024}
v_add_u32 v12, 4096, v{vL16}
v_add_u32 v255, 8192, v{vL16}""")
    P(poll_check(15, 14))
    pa, pb, pc, pd, pe = cfg.pre
    P.extend(prefetch(pa))
    P.extend(own_flag(14, F1G, sG1, 12, sJ1, 4)); P.extend(grp_poll_addr(15, sG2, F1G))
    HA = 16; HQ = 36; OF = 48; WB = 120; NW = 28
    P(f"""v_add_u32 v10, 41472, v{vL16}
v_and_b32 v11, 7, v{vI}
v_lshlrev_b32 v11, 4, v11
v_lshl_add_u32 v11, v{vG}, 7, v11
v_add_u32 v9, 41472, v11
v_mul_u32_u24 v7, 43, v{vI}
v_lshrrev_b32 v7, 8, v7
v_mul_u32_u24 v7, 160, v7
v_mul_u32_u24 v6, 144, v{vI}
v_add3_u32 v6, v6, v7, s77
v_and_b32 v7, 1, v{vG}
v_lshl_add_u32 v7, v7, 3, v6
v_lshl_add_u32 v6, v{vG}, 4, v6""")
    P("@waitvm o\ns_barrier")
    set_flag(14)
    stamp("F1 set")
    if cfg.p1early: P.add(poll_pre(15, 46))
    if cfg.w2at == 1:
        for z in range(2): P.extend(unit_dma(2, z, W2SCR))
    P.extend(prefetch(pb))
    if not cfg.p1early and 1 not in cfg.pfast: P.add(poll_pre(15, 46))
    P(f"ds_read_b128 {vq(HQ)}, v6\nds_read_b128 {vq(HQ+4)}, v6 offset:64\nds_read_b64 {vq(HQ+8,2)}, v7 offset:128")
    def wo_reg(n): return vq(WB + 4*(n % NW))
    wor = []
    for s in range(18):
        for t in range(5):
            reg = (vL16 if s < 9 else 10) if t < 4 else (11 if s < 9 else 9)
            wor.append(f"ds_read_b128 {wo_reg(s*5+t)}, v{reg} offset:{WOB + (s % 9)*4608 + 1024*t}")
    P.extend(wor[:NW - 1])
    P(f"""s_mul_i32 s84, s{sG2}, 73728
s_lshl_b32 s85, s{sW}, 10
s_add_u32 s84, s84, s85
s_add_u32 s74, s84, {OP}
s_add_u32 s75, s74, 65536
s_mul_i32 s79, s{sW}, {1024 - 64}
s_sub_u32 s79, s75, s79
v_lshlrev_b32 v232, 10, v{vG}
v_lshl_add_u32 v232, v{vI}, 2, v232
s_lshl_b32 s78, s{sR2}, 13
s_add_u32 s78, s78, s74
s_add_u32 s84, s84, {HP}
s_mul_i32 s85, s{sJ2}, 9
v_add_u32 v6, s85, v{vG}
v_lshrrev_b32 v7, 2, v6
v_lshlrev_b32 v7, 12, v7
v_and_b32 v6, 3, v6
v_lshl_add_u32 v6, v6, 8, v7
v_lshl_add_u32 v6, v{vI}, 4, v6
v_add_u32 v6, s84, v6
s_add_u32 s85, s85, 8
s_lshr_b32 s86, s85, 2
s_lshl_b32 s86, s86, 12
s_and_b32 s85, s85, 3
s_lshl_b32 s85, s85, 8
s_add_u32 s85, s85, s86
s_add_u32 s85, s85, s84
v_lshlrev_b32 v7, 4, v{vI}
v_lshl_add_u32 v7, v{vG}, 3, v7
v_add_u32 v7, s85, v7
v_cmp_gt_u32 s[82:83], 2, v{vG}
v_add_u32 v8, 4096, v6
v_add_u32 v47, {W2SCR}, v94
v_mov_b32 v235, v93
v_cndmask_b32 v7, v13, v7, s[82:83]
s_lshl_b32 s84, s{sG2}, 2
s_add_u32 s84, s84, s{sW}
s_lshl_b32 s84, s84, 3
s_add_u32 s84, s84, s{sJ2}
s_lshl_b32 s84, s84, 7
s_add_u32 s84, s84, {STATS}
v_lshl_add_u32 v233, v{vI}, 3, s84
v_cmp_gt_u32 vcc, 16, v{vL}
v_cndmask_b32 v233, v13, v233, vcc""")
    P.extend(unpack(HA, HQ, 10))
    P(poll_fast(15, 236) if 1 in cfg.pfast else poll_check(15, 46))
    stamp("F1 seen")
    ol = []
    for s in range(16):
        ol.append([(f"buffer_load_dwordx4 {vq(OF+4*s)}, v{vL16}, {srd(sWS)}, s78 offen sc1", "of")] + ([wrap(78, 4096, 75, 74)] if s < 15 else []))
    for s in (16, 17):
        for ww in range(4): ol.append([(f"buffer_load_dword v{OF+4*s+ww}, v232, {srd(sWS)}, s79 offen offset:{256*ww} sc1", "of")] + (["s_add_u32 s79, s79, 4096"] if (s, ww) == (16, 3) else []))
    for L in ol[:cfg.no1]: P.extend(L)
    flex = []
    for l in own_flag(14, F2G, sG2, 12, sJ2, 4) + grp_poll_addr(15, sGF, F2G): flex.append((0, l))
    for l in lines(f"""s_mul_i32 s84, s{sJF}, 1152
s_lshl_b32 s85, s{sW}, 8
s_add_u32 s80, s85, s84
s_lshr_b32 s86, s{sW}, 1
s_lshl_b32 s86, s86, 6
s_and_b32 s87, s{sW}, 1
s_lshl_b32 s87, s87, 3
s_add_u32 s86, s86, s87
s_add_u32 s81, s86, s84
v_lshlrev_b32 v234, 4, v{vG}"""): flex.append((0, l))
    for l in prefetch(pc): flex.append((64, l))
    mains = [f"{MF} {vq(HA+4*t)}, {wo_reg(s*5+t)}, {vq(OF+4*s)}, {vq(HA+4*t)}" for s in range(18) for t in range(5)]
    fixed = {n: [wor[n + NW - 1]] for n in range(90 - NW + 1)}
    for k, L in enumerate(ol[cfg.no1:]):
        g = int(k*cfg.ogap)
        fixed.setdefault(g, []).append(L[0])
        if len(L) > 1: fixed.setdefault(g + 1, []).append(L[1])
    sched(P, mains, fixed, flex)
    for k in range(4): P(f"v_cvt_pk_bf16_f32 v{HQ+k}, v{HA+2*k}, v{HA+2*k+1}")
    P(f"buffer_store_dwordx4 {vq(HQ)}, v6, {srd(sWS)}, 0 offen sc1", "h")
    for k in range(4, 8): P(f"v_cvt_pk_bf16_f32 v{HQ+k}, v{HA+2*k}, v{HA+2*k+1}")
    P(f"buffer_store_dwordx4 {vq(HQ+4)}, v8, {srd(sWS)}, 0 offen sc1", "h")
    for k in range(8, 10): P(f"v_cvt_pk_bf16_f32 v{HQ+k}, v{HA+2*k}, v{HA+2*k+1}")
    P(f"buffer_store_dwordx2 {vq(HQ+8,2)}, v7, {srd(sWS)}, 0 offen sc1", "h")
    P(f"v_cndmask_b32 v16, 0, v{HQ+8}, s[82:83]\nv_cndmask_b32 v17, 0, v{HQ+9}, s[82:83]")
    P.extend(stats([[16, 17] + [HQ + k for k in range(8)]], 20))
    def xsum(a):
        for sw in ["v_permlane16_swap_b32", "v_permlane32_swap_b32"]:
            for k in range(2): P(f"v_mov_b32 v{a+2+k}, v{a+k}")
            for k in range(2): P(f"{sw} v{a+k}, v{a+2+k}")
            for k in range(2): P(f"v_add_f32 v{a+k}, v{a+k}, v{a+2+k}")
    xsum(20)
    P(f"buffer_store_dwordx2 {vq(20,2)}, v233, {srd(sWS)}, 0 offen sc1", "h")
    stamp("proj done")
    B1P = 136; HR = 160; ST = 132; NT = 116; SR = 154
    for p in range(4): P(f"buffer_load_dwordx4 {vq(B1P+4*p)}, v234, {srd(sB1)}, s80 offen offset:{64*p}", "b1")
    P(f"buffer_load_dwordx2 {vq(B1P+16,2)}, v234, {srd(sB1)}, s81 offen offset:1024", "b1")
    P.extend(prefetch(pd))
    P("@waitvm h\n@waitlg_all\ns_barrier")
    set_flag(14)
    stamp("F2 set")
    if cfg.w2at == 2:
        P.add(poll_pre(15, 46))
        for z in range(2): P.extend(unit_dma(2, z, W2SCR, 235))
    if cfg.w2st == 0 and cfg.w2at < 3:
        P("@waitvm wr")
        for z in range(2): P.extend([l.replace("v94", "v47") for l in unit_tr(z, 0, 48 + 16*z)])
        for z in range(2): P.extend(unit_st(2, z, 48 + 16*z))
    P.extend(prefetch(pe))
    if cfg.w2at != 2 and 2 not in cfg.pfast: P.add(poll_pre(15, 46))
    P.extend(unpack(CA, B1P, 8)); P.extend(unpack(CA+16, B1P+16, 2))
    P(f"""s_mul_i32 s84, s{sGF}, 73728
s_lshl_b32 s85, s{sW}, 10
s_add_u32 s84, s84, s85
s_add_u32 s74, s84, {HP}
s_add_u32 s75, s74, 73728
s_lshl_b32 s77, s{sRF}, 12
s_add_u32 s77, s77, s74
v_add_u32 v6, s85, v{vL16}
v_add_u32 v7, 36864, v6
v_add_u32 v8, 36864, v{vL16}
v_add_u32 v9, {HB}, v{vL16}
v_add_u32 v10, {HB + 36864}, v{vL16}
v_mov_b32 v11, v47
s_and_b32 s93, s{sGF}, 15
s_lshr_b32 s94, s93, 1
s_mul_i32 s93, s93, 5
s_lshr_b32 s93, s93, 3
s_lshl_b32 s84, s{sGF}, 12
s_add_u32 s84, s84, s85
s_add_u32 s84, s84, {STATS}
v_lshlrev_b32 v239, 8, v{vG}
v_lshl_add_u32 v239, v{vI}, 3, v239""")
    if not cfg.rot: P("s_mov_b32 s93, 0\ns_mov_b32 s94, 0")
    P.extend(own_flag(14, F2S, sJ1, 12, sG1, 2))
    vPS, vSS, vF3, vP3, vL4, vL2, vLS, vH4, vH2, vPT, vC4, vC2, vO4, vO2, vOS = range(240, 255)
    P.extend(own_flag(vF3, F3A, sGF, 12, sJF, 4)); P.extend(grp_poll_addr(vP3, sGF, F3A))
    if cfg.wflag:
        P(f"""s_lshl_b32 s87, s{sW}, 7
s_add_u32 s86, s86, s87
v_add_u32 v{vP3}, s87, v{vP3}
s_lshl_b32 s87, s{sJF}, 4
s_add_u32 s86, s86, s87
v_mov_b32 v{vF3}, s86
v_cmp_eq_u32 vcc, 0, v{vL}
v_cndmask_b32 v{vF3}, v13, v{vF3}, vcc""")
    P(f"""s_lshl_b32 s86, s{sGF}, 6
s_add_u32 s86, s86, s{sJF}
s_mul_i32 s86, s86, 9216
s_add_u32 s86, s86, {PART}
v_lshrrev_b32 v{vPS}, 3, v{vI}
v_mul_u32_u24 v{vPS}, {8*9216}, v{vPS}
v_and_b32 v5, 7, v{vI}
v_lshlrev_b32 v5, 3, v5
v_lshl_add_u32 v5, v{vG}, 6, v5
v_add3_u32 v{vSS}, v{vPS}, v5, s86
v_add_u32 v{vPS}, v{vSS}, v5
s_lshl_b32 s85, s{sW}, 8
s_add_u32 s87, s85, 8192
v_add_u32 v{vSS}, s87, v{vSS}
s_lshl_b32 s76, s{sW}, 11
v_add_u32 v{vPS}, s76, v{vPS}
s_lshl_b32 s86, s{sGF}, 3
s_add_u32 s86, s86, s{sJF}
s_mul_i32 s86, s86, {8*9216}
s_add_u32 s86, s86, {PART}
s_add_u32 s76, s76, s86
v_add_u32 v{vL4}, s76, v{vL16}
s_add_u32 s87, s87, s86
v_lshl_add_u32 v{vLS}, v{vL}, 3, s87
v_cmp_gt_u32 vcc, 32, v{vL}
v_lshrrev_b32 v5, 5, v{vL}
v_bfe_u32 v{vC4}, v{vL}, 3, 2
v_cndmask_b32 v{vLS}, v13, v{vLS}, vcc
v_and_b32 v{vO4}, 7, v{vL}
v_lshlrev_b32 v{vH4}, 12, v5
v_lshl_add_u32 v{vH4}, v{vC4}, 8, v{vH4}
v_lshl_add_u32 v{vH4}, v{vO4}, 4, v{vH4}
v_lshlrev_b32 v{vC4}, 4, v{vC4}
v_lshl_add_u32 v{vC4}, v5, 6, v{vC4}
s_lshr_b32 s87, s{sJF}, 1
s_and_b32 s86, s{sJF}, 1
s_lshl_b32 s76, s{sGF}, 6
s_and_b32 s32, s87, 1
s_lshl_b32 s32, s32, 5
s_add_u32 s76, s76, s32
s_lshr_b32 s32, s87, 1
s_add_u32 s76, s76, s32
s_lshl_b32 s32, s86, 4
s_add_u32 s76, s76, s32
s_mul_i32 s76, s76, 1152
v_mul_u32_u24 v{vO4}, 2304, v{vO4}
v_add3_u32 v{vO4}, v{vO4}, v{vC4}, s76
v_cndmask_b32 v{vOS}, v13, v{vO4}, vcc
s_mul_i32 s76, s{sGF}, 73728
s_lshl_b32 s87, s87, 10
s_add_u32 s76, s76, s87
s_lshl_b32 s86, s86, 7
s_add_u32 s76, s76, s86
s_add_u32 s76, s76, {HP}
s_lshl_b32 s86, s{sW}, 14
s_add_u32 s32, s76, s86
s_add_u32 s33, s32, 8192
s_lshr_b32 s86, s{sW}, 1
s_and_b32 s87, s{sW}, 1
s_lshl_b32 s87, s87, 3
s_lshl_b32 s36, s86, 12
s_add_u32 s36, s36, s87
s_add_u32 s36, s36, 65536
s_add_u32 s36, s36, s76
s_mov_b32 s38, s85
s_lshl_b32 s39, s86, 6
s_add_u32 s39, s39, s87
s_add_u32 s39, s39, 1024
s_mov_b32 s80, 0
s_mov_b32 s81, {16*9216}
s_mov_b32 s82, {32*9216}
s_mov_b32 s83, {48*9216}
s_mov_b32 s95, 0x00003f80
s_mov_b32 s96, 0x3f800000""")
    P(f"s_or_b32 s86, s2, s{sW}\ns_cbranch_scc0 L_epoch\nL_epoch_back:")
    slow.append(f"""L_epoch:
v_lshrrev_b32 v16, 5, v{vL}
v_lshlrev_b32 v16, 12, v16
v_and_b32 v17, 31, v{vL}
v_lshl_add_u32 v16, v17, 2, v16
v_add_u32 v16, {F0S}, v16
v_add_u32 v17, 8192, v16
v_add_u32 v18, 16384, v16
v_add_u32 v19, 24576, v16
s_mov_b32 s97, 0
L_epoch_poll:
buffer_load_dword v20, v16, {srd(sWS)}, 0 offen sc1
buffer_load_dword v21, v17, {srd(sWS)}, 0 offen sc1
buffer_load_dword v22, v18, {srd(sWS)}, 0 offen sc1
buffer_load_dword v23, v19, {srd(sWS)}, 0 offen sc1
s_add_u32 s97, s97, 1
s_waitcnt vmcnt(0)
v_xor_b32 v20, s{sTAG}, v20
v_xor_b32 v21, s{sTAG}, v21
v_xor_b32 v22, s{sTAG}, v22
v_xor_b32 v23, s{sTAG}, v23
v_or_b32 v20, v20, v21
v_or3_b32 v20, v20, v22, v23
v_cmp_ne_u32 vcc, 0, v20
s_cmp_gt_u32 s97, 400000
s_cbranch_scc1 L_epoch_set
s_cbranch_vccnz L_epoch_poll
L_epoch_set:
v_mov_b32 v16, 0
v_mov_b32 v17, s{sTAG}
s_mov_b64 exec, 1
buffer_store_dword v17, v16, {srd(sWS)}, 0 offen sc1
s_mov_b64 exec, -1
s_waitcnt vmcnt(0)
s_branch L_epoch_back""")
    P(poll_fast(15, 232) if 2 in cfg.pfast else poll_check(15, 46))
    stamp("F2 seen")
    for k in range(2): P(f"buffer_load_dwordx2 {vq(SR+2*k,2)}, v239, {srd(sWS)}, s84 offen offset:{128*k} sc1", "hf")
    hl = []
    for s in range(18):
        hl.append([(f"buffer_load_dwordx4 {vq(HR+4*s)}, v{vL16}, {srd(sWS)}, s77 offen sc1", "hf")] + ([wrap(77, 4096, 75, 74)] if s < 17 else []))
    for s in range(cfg.nh1): P.extend(hl[s])
    P(f"v_add_f32 v{ST}, v{SR}, v{SR+2}\nv_add_f32 v{ST+1}, v{SR+1}, v{SR+3}")
    xsum(ST)
    finish_stats([ST])
    for s in range(cfg.nh1, cfg.nh2): P.extend(hl[s])
    stamp("LN2 stats")
    def ln2(s):
        return normalize(HR + 4*s, ST, NT + 8*(s & 1), s < 3) + [f"ds_write_b128 v{6 if s < 9 else 7}, {vq(HR+4*s)} offset:{XN + (s % 9)*4096}"]
    for s in range(3): P.extend(ln2(s))
    P("@waitlg_all\ns_barrier")
    def act_reads(i):
        pi, p = steps[i]
        b = AF + (i % 2)*16
        if pi < 2: reg = vL16 if p < 9 else 8
        else: reg = 9 if p < 9 else 10
        return [f"ds_read_b128 {aq(b+4*m)}, v{reg} offset:{((p % 9)*4 + m)*1024}" for m in range(4)]
    P.extend(act_reads(0))
    stamp("FFN start")
    mains = []; fixed = {}; start = []; load = {}
    first_use = {}; last_use = {}
    def put(g, it):
        fixed.setdefault(g, []).append(it); load[g] = load.get(g, 0) + cost(it)
    def place(items, g):
        for it in items:
            c = cost(it)
            while load.get(g, 0) > 0 and load.get(g, 0) + c > cfg.cap + 0.02: g += 1
            put(g, it)
        return g
    bar = {2: "a", 4: "b", 7: "c", 10: "d", 14: "f", 35: "0", 45: "1"}
    if cfg.w2st: bar[17] = "e"
    fl2 = "e" if cfg.w2st else "c"
    if cfg.w2at >= 3: fl2 = None
    for i, (pi, p) in enumerate(steps):
        name, tiles, acc, cin = passes[pi]; nt = len(tiles)
        base = len(mains); start.append(base)
        b = AF + (i % 2)*16
        t_ = stamp_txt(f"@{name}{p}") if i else None
        if t_: fixed.setdefault(base - 1, []).append(t_)
        if i in bar:
            for it in [f"@flexdone{bar[i]}"] + (["@waitvm wrs"] if bar[i] == fl2 else []) + ["@waitlg_all", "s_barrier"]: put(base, it)
            if bar[i] == fl2:
                for it in flag_items(14): put(base, it)
        for t in range(nt):
            w = aq(4*slot[(pi, p, t)])
            first_use[(pi, p, t)] = len(mains); last_use[(pi, p, t)] = len(mains) + 3
            for m in (range(4) if not (cfg.snake and t % 2) else range(3, -1, -1)):
                d = vq(acc + (t*4 + m)*4)
                c = d if p > 0 else (vq(cin + 4*t) if cin is not None else "0")
                mains.append(f"{MF} {d}, {w}, {aq(b+4*m)}, {c}")
        if i + 1 < len(steps):
            for k, l in enumerate(act_reads(i+1)): put(base + (2*k if nt > 2 else k) + (1 if i in bar else 0), l)
            pj, pp = steps[i+1]
            nxt = " ".join(aq(4*slot[(pj, pp, t)]) for t in range(len(passes[pj][1])))
            fixed.setdefault(base + 4*nt - 1, []).append(f"@need {nxt} {aq(AF + ((i+1) % 2)*16, 16)}")
            load[base + 4*nt - 1] = load.get(base + 4*nt - 1, 0) + 0.67
    start.append(len(mains))
    S = lambda pi, p: start[pi*18 + p]
    path = {}
    TQ = 176
    tq = [0]
    def epi2(acc, tiles, m, st):
        q = TQ + 4*(tq[0] % 4); tq[0] += 1
        regs = [acc + (t*4 + m)*4 + r for t in tiles for r in range(4)]
        L = [f"v_cvt_pk_bf16_f32 v{q+k}, v{regs[2*k]}, v{regs[2*k+1]}" for k in range(len(regs)//2)]
        L += st(q)
        return L
    if cfg.noself:
        def pst(m, off, tag): return lambda q: [(f"buffer_store_dwordx4 {vq(q)}, v{160+m}, {srd(sWS)}, s{80+m} offen offset:{off} sc1", tag), f"ds_write_b128 v{168+m}, {vq(q)} offset:{off}"]
        def sst(m, tag): return lambda q: [(f"buffer_store_dwordx2 {vq(q,2)}, v{164+m}, {srd(sWS)}, s{80+m} offen sc1", tag), f"ds_write_b64 v{172+m}, {vq(q,2)} offset:2048"]
    else:
        def pst(m, off, tag): return lambda q: [(f"buffer_store_dwordx4 {vq(q)}, v{vPS}, {srd(sWS)}, s{80+m} offen offset:{off} sc1", tag)]
        def sst(m, tag): return lambda q: [(f"buffer_store_dwordx2 {vq(q,2)}, v{vSS}, {srd(sWS)}, s{80+m} offen sc1", tag)]
    RW = [4, 4, 2]; RH = [200, 208, 216]; RS = [220, 228, 236]; R0 = [16, 48, 80]
    rl = [(vL4, 0), (vL4, 1024), (vLS, 0)]
    SRC = [24, 25, 26, 27, 34, 35, 37]
    def red_loads(r):
        if cfg.noself:
            L = [(f"buffer_load_dwordx{RW[r]} {vq(R0[r]+RW[r]*j,RW[r])}, v{rl[r][0]}, {srd(sWS)}, s{SRC[j]} offen offset:{rl[r][1]}{cfg.rdfl}", "rd") for j in range(7)]
            return L
        L = ["s_mov_b32 s84, 0"]
        for j in range(8):
            L.append((f"buffer_load_dwordx{RW[r]} {vq(R0[r]+RW[r]*j,RW[r])}, v{rl[r][0]}, {srd(sWS)}, s84 offen offset:{rl[r][1]} sc1", "rd"))
            if j < 7: L.append("s_add_u32 s84, s84, 9216")
        return L
    def red_sum(r):
        T = RS[r]; L = []
        for j in ([7] + list(range(7)) if cfg.noself else range(8)):
            for d in range(RW[r]):
                q = R0[r] + RW[r]*j + d
                L.append(f"v_dot2_f32_bf16 v{T+2*d}, v{q}, s95, v{T+2*d}")
                L.append(f"v_dot2_f32_bf16 v{T+2*d+1}, v{q}, s96, v{T+2*d+1}")
        for d in range(RW[r]): L.append(f"v_cvt_pk_bf16_f32 v{T+d}, v{T+2*d}, v{T+2*d+1}")
        return L
    def red_store(r):
        vo, so, oo = [(vO4, 38, 0), (vO4, 38, 128), (vOS, 39, 0)][r]
        return [(f"buffer_store_dwordx{RW[r]} {vq(RS[r],RW[r])}, v{vo}, {srd(sOUT)}, s{so} offen offset:{oo}{cfg.outfl}", "out")]
    def add_path(g, c): path[g] = path.get(g, 0) + c
    G0, s4, s2 = cfg.late
    last = len(passes) - 1
    g = G0
    for m in range(4):
        for pr in range(2): g = place(epi2(16, [2*pr, 2*pr+1], m, pst(m, 512*pr, "p1")), g) + s4
    for m in range(4): g = place(epi2(16, [4], m, sst(m, "p1")), g) + s2
    two = cfg.two
    if two:
        gs = g + two[0]
        for it in ["@waitvm p1", "s_barrier"] + flag_items(vF3) + [f"v_add_u32 v{vF3}, 512, v{vF3}"]: put(gs, it)
    gE = max(g, S(last, 0) + 3)
    for m in range(4): gE = place(epi2(96, [0, 1], m, pst(m, 1024, "p2")), gE) + s4
    assert gE - s4 < len(mains) - 1, gE
    nin = 0
    if two:
        erl = red_loads(0) + red_loads(2)
        gp = gs + two[1]
        if gp + two[2] < len(mains) - 4:
            put(gp, poll_pre(vP3, vPT))
            gq_ = place([poll_check(vP3, vPT), f"v_add_u32 v{vP3}, 512, v{vP3}"], gp + two[2])
            while nin < 16 and gq_ + two[3] < len(mains) - 3:
                gq_ = place(erl[2*nin:2*nin+2], gq_ + two[3]); nin += 1
        else: raise ValueError("late poll")
        if VERBOSE: print("two-phase: stores end", g, "flag", gs, "E stores end", gE, "in-loop loads", nin)
    g = 0
    for s in range(cfg.nh2, 18):
        g = place(hl[s], g); add_path(g, 110); g += cfg.hgap
    g = S(2, 11)
    for r, (sh, sb, bo) in enumerate([(32, 38, 0), (33, 38, 128), (36, 39, 0)]):
        g = place([(f"buffer_load_dwordx{RW[r]} {vq(RH[r],RW[r])}, v{vH4}, {srd(sWS)}, s{sh} offen sc1", "rh")], g + 5); add_path(g, 70)
        g = place([(f"buffer_load_dwordx{RW[r]} {vq(RH[r]+RW[r],RW[r])}, v{vC4}, {srd(sB2)}, s{sb} offen offset:{bo}", "rh")], g + 3); add_path(g, 20)
    nl = npf[0]; free = cfg.backlog; g = 0
    while nl < len(cons):
        now = g*cfg.tgap
        if g in path: free = max(free, now) + path.pop(g)
        early = last_use[cons[nl - NR]] + 1 if nl >= NR else 0
        dead = first_use[cons[nl]] - cfg.margin
        if g >= early and (free <= now + cfg.slack or g >= dead):
            L = wload(nl)
            if nl == 162 - cfg.w2lead and fl2: L = [poll_pre(15, vPT)] + L
            if nl == 162 and fl2: L = [poll_check(15, vPT)] + L
            g2 = place(L, g)
            for x in range(g + 1, g2 + 1):
                if x in path: free = max(free, x*cfg.tgap) + path.pop(x)
            assert g2 < first_use[cons[nl]] - 8, (nl, g2, first_use[cons[nl]])
            if VERBOSE and nl % 18 == 0: print(f"   load {nl} at gap {g2}, first use {first_use[cons[nl]]}, backlog {free - g2*cfg.tgap:.0f}")
            g = g2; free = max(free, g*cfg.tgap) + cfg.wcost; nl += 1
        g += 1
    if VERBOSE: print("last weight load at gap", g, "of", len(mains), "pass starts", [S(k, 0) for k in range(len(passes))])
    flex = []
    for lo, hi, mk in [(3, 5, "a"), (5, 8, "b"), (8, 11, "c"), (11, 15, "d"), (15, 18, "f")]:
        for s in range(lo, hi):
            for l in ln2(s): flex.append((0, l))
        flex.append((0, f"@mark{mk}"))
    if cfg.w2st:
        flex.append((0, "@waitvm wr"))
        for z in range(2):
            for l in unit_tr(z, 0, 176): flex.append((0, l.replace("v94", "v11")))
            for l in [f"@need {vq(176,16)}"] + unit_st(2, z, 176): flex.append((0, l))
    for l in set_poll_addr(15, sJF, F2S) + unpack(CB, B1P+8, 8): flex.append((0, l))
    flex.append((0, "@marke"))
    for k, (q, mod, sr, add) in enumerate([(f"s_lshl_b32 s84, s{sW}, 1", 10, 93, 0), (f"s_lshl_b32 s84, s{sW}, 1\ns_add_u32 s84, s84, 1", 10, 93, 0),
                                           (f"s_lshr_b32 s84, s{sW}, 1\ns_add_u32 s84, s84, 8", 10, 93, 0),
                                           (f"s_lshl_b32 s84, s{sW}, 1", 8, 94, 10), (f"s_lshl_b32 s84, s{sW}, 1\ns_add_u32 s84, s84, 1", 8, 94, 10)]):
        flex.append((0, q))
        flex.append((0, f"s_sub_u32 s84, s84, s{sr}\ns_cselect_b32 s85, {mod}, 0"))
        flex.append((0, f"s_add_u32 s84, s84, s85\ns_add_u32 s84, s84, {add}"))
        flex.append((0, "s_lshl_b32 s84, s84, 12"))
        if k == 2: flex.append((0, f"s_and_b32 s85, s{sW}, 1\ns_lshl_b32 s85, s85, 3\ns_add_u32 s84, s84, s85"))
        flex.append((0, f"v_add_u32 v{192+k}, s84, v9"))
    def epi1(acc, pair_tiles, m, wr):
        L = []
        q = TQ + 4*(tq[0] % 4); tq[0] += 1
        regs = [acc + (t*4 + m)*4 + r for t in pair_tiles for r in range(4)]
        for r in regs: L.append(f"v_mul_f32 v{r}, v{r}, |v{r}|")
        for k in range(len(regs)//2): L.append(f"v_cvt_pk_bf16_f32 v{q+k}, v{regs[2*k]}, v{regs[2*k+1]}")
        for k in range(len(regs)//2): L.append(f"v_pk_max_i16 v{q+k}, v{q+k}, 0")
        L.append(wr(q))
        return L
    at = S(1, 0) + 3
    for pr in range(2):
        for m in range(4):
            for l in epi1(ACA, [2*pr, 2*pr+1], m, lambda q: f"ds_write_b128 v{192+pr}, {vq(q)} offset:{m*1024}"): flex.append((at, l))
    for m in range(4):
        for l in epi1(ACA, [4], m, lambda q: f"ds_write_b64 v194, {vq(q,2)} offset:{m*1024}"): flex.append((at, l))
    flex.append((at, "@mark0"))
    at = S(2, 0) + 3
    for pr in range(2):
        for m in range(4):
            for l in epi1(ACB, [2*pr, 2*pr+1], m, lambda q: f"ds_write_b128 v{195+pr}, {vq(q)} offset:{m*1024}"): flex.append((at, l))
    flex.append((at, "@mark1"))
    if cfg.noself:
        assert cfg.p1z4 != 2 and cfg.w2st == 0 and not cfg.two
        at = S(2, 10)
        L = lines(f"""s_and_b32 s85, s{sJF}, 1
v_lshrrev_b32 v6, 3, v{vI}
v_cmp_eq_u32 s[64:65], s85, v6
s_mul_i32 s85, s{sW}, 2560
v_and_b32 v6, 7, v{vI}
v_lshl_add_u32 v6, v{vG}, 3, v6
v_lshl_add_u32 v7, v6, 3, s85
v_lshl_add_u32 v6, v6, 4, s85
v_add_u32 v8, s85, v{vL16}
v_lshl_add_u32 v11, v{vL}, 3, s85
v_add_u32 v14, 16384, v{vL16}
s_lshr_b32 s85, s{sJF}, 1""")
        for m in range(4):
            L.append(f"s_cmp_eq_u32 s85, {m}\ns_cselect_b64 s[66:67], s[64:65], 0")
            L += [f"v_cndmask_b32 v{160+m}, v{vPS}, v13, s[66:67]", f"v_cndmask_b32 v{164+m}, v{vSS}, v13, s[66:67]",
                  f"v_cndmask_b32 v{168+m}, v14, v6, s[66:67]", f"v_cndmask_b32 v{172+m}, v14, v7, s[66:67]"]
        for k in range(7): L.append(f"s_add_u32 s86, s{sJF}, {k+1}\ns_and_b32 s86, s86, 7\ns_mul_i32 s{SRC[k]}, s86, 9216")
        for l in L: flex.append((at, l))
        flex.append((at, "@marks"))
        put(S(3, 0), "@flexdones")
    at = S(3, 0)
    UT = 192
    for r in range(3):
        for l in unpack(RS[r], RH[r], RW[r]) + unpack(UT, RH[r]+RW[r], RW[r]): flex.append((at, l))
        for d in range(2*RW[r]): flex.append((at, f"v_add_f32 v{RS[r]+d}, v{RS[r]+d}, v{UT+d}"))
    if cfg.skip:
        def keep(it):
            t = it[0] if isinstance(it, tuple) else it
            tag = it[1] if isinstance(it, tuple) else None
            if "valu" in cfg.skip and re.match(r"v_lshlrev_b32 v\d+, 16,|v_and_b32 v\d+, s98|v_fma_f32|v_cvt_pk|v_mul_f32|v_pk_max|v_add_f32", t): return False
            if "dsw" in cfg.skip and t.startswith("ds_write"): return False
            if "bar" in cfg.skip and t == "s_barrier": return False
            if "pst" in cfg.skip and tag in ("p1", "p2", "p3"): return False
            if "rd" in cfg.skip and tag in ("rd", "rh"): return False
            if "w" in cfg.skip and tag == "w": return False
            if "chk" in cfg.skip and "L_slow" in t: return False
            return True
        flex = [f for f in flex if keep(f[1])]
        fixed = {g: [x for x in L if keep(x)] for g, L in fixed.items()}
        slow[:] = [x for x in slow if any(x.split(":")[0] in i.text for i in P.ins) or "chk" not in cfg.skip]
    sched(P, mains, fixed, flex, cap=cfg.cap)
    stamp("FFN done")
    for m in range(4): P.extend(epi2(128, [0, 1], m, pst(m, 1536, "p2")))
    if two and two[4] == 0: P.extend(erl[2*nin:])
    P("@waitvm p2\ns_barrier")
    set_flag(vF3)
    stamp("F3c set")
    if two:
        if two[4] == 1: P.extend(erl[2*nin:])
        P.add(poll_pre(vP3, vPT))
        P.extend(red_sum(0) + red_sum(2))
        P(poll_check(vP3, vPT))
        stamp("F3c seen")
        P.extend(red_loads(1))
        P.extend(red_store(0) + red_store(2))
        P.extend(red_sum(1) + red_store(1))
    else:
        P.add(poll_pre(vP3, vPT))
        if cfg.noself:
            P(f"@waitlg_all\nds_read_b128 {vq(R0[0]+28)}, v8\nds_read_b128 {vq(R0[1]+28)}, v8 offset:1024\nds_read_b64 {vq(R0[2]+14,2)}, v11 offset:2048")
        P(poll_check(vP3, vPT))
        stamp("F3c seen")
        for r in cfg.rord: P.extend(red_loads(r))
        for r in cfg.rord: P.extend(red_sum(r) + red_store(r))
    if cfg.stamps:
        P("s_waitcnt vmcnt(0)")
        stamp("end")
        P(f"s_lshl_b32 s84, s2, 2\ns_add_u32 s84, s84, s{sW}\ns_lshl_b32 s84, s84, 7\ns_add_u32 s84, s84, {STAMPS}\nv_mov_b32 v6, s84\ns_mov_b64 exec, 1")
        if cfg.diag is not None:
            a, b = cfg.diag
            P(f"s_sub_u32 s84, s{STAMP0+b}, s{STAMP0+a}\ns_lshl_b32 s84, s84, 2\ns_add_u32 s84, s84, 10000\nL_spin:\ns_sleep 8\ns_memrealtime s[100:101]\ns_waitcnt lgkmcnt(0)\ns_sub_u32 s85, s100, s{STAMP0}\ns_cmp_lt_u32 s85, s84\ns_cbranch_scc1 L_spin")
        elif cfg.dbg:
            P(f"v_mov_b32 v6, 0\ns_not_b32 s84, s{STAMP0}\nv_mov_b32 v5, s84\nbuffer_atomic_umax v5, v6, {srd(sR)}, 0 offen")
            for k in range(min(nstamp[0], 15)):
                P(f"v_mov_b32 v{16+k}, s{STAMP0+k}\nbuffer_atomic_umax v{16+k}, v6, {srd(sR)}, 0 offen offset:{4*k+4}")
        else:
          for k in range(nstamp[0]):
            P(f"v_mov_b32 v5, s{STAMP0+k}\nbuffer_store_dword v5, v6, {srd(sWS)}, 0 offen offset:{4*k}")
    P("L_end:\ns_endpgm")
    for x in slow: P(x)
    P("L_code_end:")
    cfg.names = names
    return P

def cost(it):
    t = it[0] if isinstance(it, tuple) else it
    c = 0
    for l in t.split("\n"):
        if l.startswith("@") or l.endswith(":"): continue
        c += 0.67 if l.startswith("s_") else (2 if l.startswith("ds_write_b128") else 1)
    return c

def sched(P, mains, fixed, flex, cap=2, flex2=None):
    Q = [list(flex2 or []), list(flex)]; K = [0, 0]; marks = set()
    def put(it):
        t = it[0] if isinstance(it, tuple) else it
        if t.startswith("@mark"): marks.add(t[5:]); return 0
        if t.startswith("@flexdone"):
            for q in range(2):
                if any((x[1] if not isinstance(x[1], tuple) else x[1][0]) == "@mark" + t[9:] for x in Q[q]):
                    n0 = K[q]
                    while t[9:] not in marks:
                        it2 = Q[q][K[q]][1]; K[q] += 1; put(it2)
                    if K[q] - n0 > 1 and VERBOSE: print("flush", t, K[q] - n0)
            return 0
        P.add(it)
        return cost(t)
    for n, m in enumerate(mains):
        P.add(m)
        c = 0
        for it in fixed.get(n, []): c += put(it)
        for q in range(2):
            while K[q] < len(Q[q]) and Q[q][K[q]][0] <= n and (c == 0 or c + cost(Q[q][K[q]][1]) <= cap + 0.02):
                it = Q[q][K[q]][1]; K[q] += 1
                c += put(it)
    for q in range(2):
        if K[q] < len(Q[q]) and VERBOSE: print("left", len(Q[q]) - K[q])
        while K[q] < len(Q[q]):
            it = Q[q][K[q]][1]; K[q] += 1
            put(it)
VERBOSE = False

import struct
def hexf(x): return hex(struct.unpack("<I", struct.pack("<f", x))[0])

HEADER = open("cdna_kernels/" + NAME + ".s.ref").read().split("; Override launch geometry")[0]
def build(cfg, verbose=False):
    body = finalize(gen(cfg), verbose)
    k = NAME + "_kernel"
    return (HEADER + f"; @launch grid=(256,1,1) block=(256,1,1) lds={LDS_BYTES}\n"
        + f'.amdgcn_target "amdgcn-amd-amdhsa--gfx950"\n.text\n.globl {k}\n.p2align 8\n.type {k},@function\n{k}:\n' + body
        + f""".section .rodata,"a"
.p2align 6
.amdhsa_kernel {k}
  .amdhsa_next_free_vgpr 512
  .amdhsa_next_free_sgpr 102
  .amdhsa_accum_offset 256
  .amdhsa_group_segment_fixed_size 0
  .amdhsa_kernarg_size 88
  .amdhsa_user_sgpr_count 2
  .amdhsa_user_sgpr_kernarg_segment_ptr 1
  .amdhsa_system_sgpr_workgroup_id_x 1
.end_amdhsa_kernel
""")

if __name__ == "__main__":
    cfg = Cfg(); VERBOSE = True
    out = sys.argv[1]
    for a in sys.argv[2:]:
        k, v = a.split("=")
        setattr(cfg, k, eval(v))
    open(out, "w").write(build(cfg, True))
    if cfg.stamps: open(out + ".names", "w").write("|".join(cfg.names))
```

```python
import sys
from ir import *

NAME = "sequential_preLN__sliding_local_dilated__dense_activation_squared_relu__prompt"

F0S, F1G, F1S, F2G, F2S, F3A, F3B, STATS, F3C = 0x10000, 0x20000, 0x48000, 0x50000, 0x78000, 0x80000, 0xA0000, 0xC0000, 0xE0000
WQP, WOP, OP, HP, W1R, W2R, PART, STAMPS = 0x100000, 0x300000, 0x400000, 0x700000, 0xA00000, 0x1000000, 0x1600000, 0x3000000
WS_BYTES = 0x4000000
OOB = 0x40000000
LDS_BYTES = 163840
XB = 71680
R0SCR = 49152
W1SCR = 0
WOB = 0
W2SCR0 = 32768
W2SCR = 98304
XRS = 131072
VXS = 143360
XN, HB = 0, 73728
sX, sWQ, sWO, sW1, sW2, sB1, sB2, sOUT, sWS, sR = 28, 32, 36, 40, 44, 48, 52, 56, 60, 88
sW, sG2, sJ2, sGF, sJF, sTAG = 68, 69, 70, 71, 72, 73
def srd(n): return f"s[{n}:{n+3}]"
def vq(n, k=4): return f"v[{n}:{n+k-1}]"
def aq(n, k=4): return f"a[{n}:{n+k-1}]"
MF = "v_mfma_f32_16x16x32_bf16"
vL, vI, vG, vL16 = 1, 2, 3, 4

class Cfg:
    stamps = False
    nx1 = 12
    p1depth = 4
    npre = 25
    rot = True
    npre1 = 12
    wospan = 10
    f3 = (10, 14)
    pre = (8, 8, 4, 8, 26)
    wo_early = 13
    dmagap = 9
    touch = 0
    xfl = ''
    xrfl = ''
    rdfl = ' sc1'
    noself = True
    two = (50, 300, 24, 5, 1)
    etest = 0
    dtest = 0
    pfast = ()
    pfn = 4
    pfs = 2
    nb = (1, 1)
    nearly = None
    tsleep = 0
    ssleep = 0
    snake = True
    g1ord = 0
    p522 = True
    fl3 = 0
    late = (1012, 8, 4)
    rord = (0, 1, 2)
    norp = ()
    ctouch = 2
    nq1 = 4
    qgap = 8
    poll1 = False
    psleep = 1
    f0both = True
    outfl = ''
    no1 = 8
    ogap = 3.5
    nh2 = 18
    hgap = 5
    p1early = False
    wflag = False
    tail4 = (10, 110, 85, 85, 200, 185, 20)
    scost = 200
    lcost = 80
    skip = ()
    lag = 6
    gq = (0, 0, 0, 0)
    f1s = 11
    tail = (14, 13, 232, 44, 5, 11, 18)
    tailord = 0
    backlog = 0
    tgap = 18.5
    slack = 70
    margin = 205
    wcost = 60
    rawfl = ' nt'
    r0fl = ' nt'
    wrsfl = ' sc1'
    rawat = 1
    ilv = True
    w2at = 1
    w2st = 0
    nh1 = 4
    hold = 0
    w2lead = 16
    nleft = 60
    p1z4 = 1
    nx2 = 6
    dbg = False
    diag = None
    wsbase = 0
    only = None
    cap = 2
    wsc = " sc1"
    nwo1 = 40
    stop = None

def gen(cfg):
    P = Prog()
    sG1, sJ1 = (sGF, sJF) if cfg.p1z4 == 1 else ((sG2, sJ2) if cfg.p1z4 == 0 else (65, 66))
    nstamp = [0]
    names = []
    def stamp_txt(name):
        if cfg.stamps and (cfg.only is None or name.replace(" ", "_") in cfg.only or name == "end") and not (cfg.only is None and name.startswith("@")):
            k = nstamp[0]; nstamp[0] += 1; names.append(name); assert k < 20, name
            return f"{'s_memtime' if cfg.stamps == 2 else 's_memrealtime'} s[100:101]\n@waitlg_all\ns_mov_b32 s{STAMP0+k}, s100"
        return None
    def stamp(name):
        t = stamp_txt(name)
        if t: P(t)
    STAMP0 = 4
    npoll = [0]
    def poll(vaddr, vtmp):
        k = npoll[0]; npoll[0] += 1
        P(f"""s_mov_b32 s97, 0
L_poll{k}:
s_sleep {cfg.psleep}
buffer_load_dword v{vtmp}, v{vaddr}, {srd(sWS)}, 0 offen sc1
s_add_u32 s97, s97, 1
s_waitcnt vmcnt(0)
v_cmp_ne_u32 vcc, s{sTAG}, v{vtmp}
s_cmp_gt_u32 s97, 400000
s_cbranch_scc1 L_pdone{k}
s_cbranch_vccnz L_poll{k}
L_pdone{k}:""")
    slow = []
    def poll_pre(vaddr, vtmp):
        return (f"buffer_load_dword v{vtmp}, v{vaddr}, {srd(sWS)}, 0 offen sc1", "pl")
    def poll_check(vaddr, vtmp):
        k = npoll[0]; npoll[0] += 1
        slow.append(f"""L_slow{k}:
s_mov_b32 s97, 0
L_poll{k}:
s_sleep {cfg.ssleep}
buffer_load_dword v{vtmp}, v{vaddr}, {srd(sWS)}, 0 offen sc1
s_add_u32 s97, s97, 1
s_waitcnt vmcnt(0)
v_cmp_ne_u32 vcc, s{sTAG}, v{vtmp}
s_cmp_gt_u32 s97, 400000
s_cbranch_scc1 L_back{k}
s_cbranch_vccnz L_poll{k}
s_branch L_back{k}""")
        return f"v_cmp_ne_u32 vcc, s{sTAG}, v{vtmp}\ns_cbranch_vccnz L_slow{k}\nL_back{k}:"
    def poll_fast(vaddr, vt):
        k = npoll[0]; npoll[0] += 1
        n = cfg.pfn
        ld = lambda q: f"buffer_load_dword v{vt+q}, v{vaddr}, {srd(sWS)}, 0 offen sc1"
        t = f"L_slow{k}:\ns_mov_b32 s97, 0\n"
        for q in range(n - 1): t += ld(q) + f"\ns_sleep {cfg.pfs}\n"
        t += f"L_poll{k}:\n"
        for q in range(n):
            t += ld((q + n - 1) % n) + f"\ns_waitcnt vmcnt({n-1})\nv_cmp_ne_u32 vcc, s{sTAG}, v{vt+q}\ns_cbranch_vccz L_back{k}\ns_sleep {cfg.pfs}\n"
        t += f"s_add_u32 s97, s97, 1\ns_cmp_gt_u32 s97, 200000\ns_cbranch_scc0 L_poll{k}\ns_branch L_back{k}"
        slow.append(t)
        return f"s_cmp_eq_u32 s{sW}, 0\ns_cbranch_scc1 L_slow{k}\nL_back{k}:\ns_barrier"
    def wrap(sr, step, send, sbeg):
        return f"s_add_u32 s{sr}, s{sr}, {step}\ns_cmp_eq_u32 s{sr}, s{send}\ns_cselect_b32 s{sr}, s{sbeg}, s{sr}"
    def set_flag(vaddr):
        P(f"v_mov_b32 v5, s{sTAG}")
        P(f"buffer_store_dword v5, v{vaddr}, {srd(sWS)}, 0 offen sc1", "flag")

    P("""s_cmp_ge_u32 s2, 256
s_cbranch_scc1 L_end
s_load_dwordx16 s[4:19], s[0:1], 0
s_load_dwordx4 s[20:23], s[0:1], 64
s_load_dwordx2 s[24:25], s[0:1], 80""")
    def code_touch(vd, first):
        P(f"""s_getpc_b64 s[92:93]
L_pc{first}:
s_and_b32 s93, s93, 0xffff
s_mov_b32 s94, L_code_end - L_pc{first}
s_mov_b32 s95, 0x00020000
s_lshr_b32 s84, s2, 3
s_lshl_b32 s84, s84, 2
v_lshrrev_b32 v62, 6, v0
v_and_b32 v{vd}, 63, v0
v_lshlrev_b32 v{vd}, 7, v{vd}
v_add3_u32 v{vd}, v{vd}, v62, s84
v_lshlrev_b32 v{vd}, 7, v{vd}""")
        P(f"buffer_load_dword v{vd}, v{vd}, s[92:95], 0 offen", "tch")
    if cfg.ctouch == 2: code_touch(63, 0)
    if cfg.stamps: P("s_memtime s[26:27]" if cfg.stamps == 2 else "s_memrealtime s[26:27]")
    P(f"""v_lshrrev_b32 v5, 6, v0
v_and_b32 v{vL}, 63, v0
v_readfirstlane_b32 s{sW}, v5
v_and_b32 v{vI}, 15, v0
v_lshrrev_b32 v{vG}, 4, v{vL}
v_lshlrev_b32 v{vL16}, 4, v{vL}
s_and_b32 s74, s2, 7
s_lshr_b32 s75, s2, 3
s_lshl_b32 s{sG2}, s74, 2
s_lshr_b32 s76, s75, 3
s_add_u32 s{sG2}, s{sG2}, s76
s_and_b32 s{sJ2}, s75, 7
s_lshr_b32 s{sGF}, s74, 2
s_lshl_b32 s{sGF}, s{sGF}, 4
s_lshr_b32 s76, s75, 1
s_add_u32 s{sGF}, s{sGF}, s76
s_and_b32 s{sJF}, s74, 3
s_lshl_b32 s{sJF}, s{sJF}, 1
s_and_b32 s76, s75, 1
s_add_u32 s{sJF}, s{sJF}, s76
""")
    if cfg.p1z4 == 2:
        P(f"""s_lshr_b32 s65, s74, 1
s_lshl_b32 s65, s65, 3
s_lshr_b32 s76, s75, 2
s_add_u32 s65, s65, s76
s_and_b32 s66, s74, 1
s_lshl_b32 s66, s66, 2
s_and_b32 s76, s75, 3
s_add_u32 s66, s66, s76""")
    P(f"""s_lshl_b32 s77, s{sW}, 5
s_add_u32 s77, s77, s{sG1}
s_mul_i32 s78, s{sJ1}, 144""")
    sRP, sRF, sR2 = 0, 1, 3
    P(f"""s_cmp_lt_u32 s77, 72
s_cbranch_scc0 L_r0_wo
v_mul_u32_u24 v6, 2428, v{vL}
v_lshrrev_b32 v6, 16, v6
v_mul_u32_u24 v7, 27, v6
v_sub_u32 v7, v{vL}, v7
v_mul_u32_u24 v8, 7282, v7
v_lshrrev_b32 v8, 16, v8
v_mul_u32_u24 v9, 9, v8
v_sub_u32 v9, v7, v9
v_mul_u32_u24 v6, 3456, v6
v_mul_u32_u24 v8, 1152, v8
v_lshlrev_b32 v9, 4, v9
v_add3_u32 v5, v6, v8, v9
v_cmp_gt_u32 vcc, 54, v{vL}
s_mul_i32 s80, s77, {8*3456}
s_add_u32 s80, s80, s78
s_add_u32 s81, s80, {6912-1024}
s_add_u32 s82, s81, {6912-1024}
s_add_u32 s83, s82, {6912-1024}
s_branch L_r0_join
L_r0_wo:
v_mul_u32_u24 v6, 7282, v{vL}
v_lshrrev_b32 v6, 16, v6
v_mul_u32_u24 v7, 9, v6
v_sub_u32 v7, v{vL}, v7
v_mul_u32_u24 v6, 1152, v6
v_lshl_add_u32 v5, v7, 4, v6
v_cmp_gt_u32 vcc, 36, v{vL}
s_sub_u32 s79, s77, 72""")
    for G in range(2):
        if G: P("s_add_u32 s79, s79, 36")
        P(f"""s_lshr_b32 s84, s79, 2
s_mul_i32 s84, s84, 36
s_bfe_u32 s85, s79, 0x10001
s_mul_i32 s85, s85, 20
s_add_u32 s84, s84, s85
s_and_b32 s85, s79, 1
s_lshl_b32 s85, s85, 3
s_add_u32 s84, s84, s85
s_add_u32 s85, s84, 4
s_sub_u32 s86, s79, 64
s_mul_i32 s86, s86, 72
s_add_u32 s86, s86, 16
s_add_u32 s87, s86, 36
s_cmp_lt_u32 s79, 64
s_cselect_b32 s84, s84, s86
s_cselect_b32 s85, s85, s87
s_mul_i32 s84, s84, 1152
s_mul_i32 s85, s85, 1152
s_add_u32 s84, s84, s78
s_add_u32 s85, s85, s78
s_sub_u32 s{80+2*G}, s84, {1024*(2*G)}
s_sub_u32 s{81+2*G}, s85, {1024*(2*G+1)}""")
    P(f"""s_cmp_lt_u32 s77, 108
s_cselect_b32 s80, s80, {OOB}
s_cselect_b32 s81, s81, {OOB}
s_cselect_b32 s82, s82, {OOB}
s_cselect_b32 s83, s83, {OOB}
L_r0_join:
s_nop 1
v_mov_b32 v6, {OOB}
v_cndmask_b32 v5, v6, v5, vcc
s_lshl_b32 s84, s{sW}, 12
s_add_u32 s84, s84, {R0SCR}
s_mov_b32 m0, s84
s_waitcnt lgkmcnt(0)""")
    def mksrd(d, p, n):
        P(f"s_mov_b32 s{d}, s{p}\ns_and_b32 s{d+1}, s{p+1}, 0xffff\ns_mov_b32 s{d+2}, {n}\ns_mov_b32 s{d+3}, 0x00020000")
    P(f"""s_cmp_lt_u32 s77, 72
s_cselect_b32 s{sR}, s6, s8
s_cselect_b32 s{sR+1}, s7, s9
s_mov_b32 s85, {576*1152}
s_cselect_b32 s{sR+2}, {576*3456}, s85
s_and_b32 s{sR+1}, s{sR+1}, 0xffff
s_mov_b32 s{sR+3}, 0x00020000""")
    if cfg.stamps: P(("s_memtime" if cfg.stamps == 2 else "s_memrealtime") + " s[38:39]")
    for q in range(4):
        P(f"buffer_load_dwordx4 v5, {srd(sR)}, s{80+q} offen offset:{1024*q}{cfg.r0fl} lds", "r0")
    if cfg.ctouch == 1: code_touch(63, 0)
    mksrd(sX, 4, 2048*1152)
    if cfg.wsbase: P(f"s_add_u32 s24, s24, {cfg.wsbase}\ns_addc_u32 s25, s25, 0")
    P(f"s_load_dword s{sTAG}, s[24:25], 0")
    XR, XH = 160, 232
    P(f"""s_lshl_b32 s84, s{sG1}, 6
s_and_b32 s85, s{sW}, 1
s_lshl_b32 s85, s85, 5
s_add_u32 s85, s85, s84
s_lshr_b32 s86, s{sW}, 1
s_add_u32 s85, s85, s86
s_mul_i32 s85, s85, 1152
v_lshrrev_b32 v8, 3, v{vL}
v_and_b32 v9, 7, v{vL}
v_mul_u32_u24 v6, 2304, v8
v_lshl_add_u32 v6, v9, 4, v6
v_add_u32 v6, s85, v6
v_add_u32 v7, {8*2304}, v6""")
    if cfg.rot:
        P(f"""s_and_b32 s86, s{sG2}, 3
s_mul_i32 s86, s86, 9
s_add_u32 s86, s86, 2
s_lshr_b32 s86, s86, 2
s_add_u32 s86, s86, s{sJ2}
s_sub_u32 s87, s86, 9
s_cmp_ge_u32 s86, 9
s_cselect_b32 s{sRP}, s87, s86
s_lshl_b32 s86, s{sG2}, 1
s_add_u32 s86, s86, s{sJ2}
s_and_b32 s{sR2}, s86, 7
s_and_b32 s86, s{sJF}, 1
s_mul_i32 s86, s86, 9
s_and_b32 s87, s{sGF}, 15
s_add_u32 s86, s86, s87
s_sub_u32 s87, s86, 18
s_cmp_ge_u32 s86, 18
s_cselect_b32 s{sRF}, s87, s86""")
        if cfg.p1z4 == 1: P(f"s_lshr_b32 s{sRP}, s{sRF}, 1")
        if cfg.p1z4 == 2:
            P(f"""s_and_b32 s86, s66, 3
s_mul_i32 s86, s86, 9
s_add_u32 s86, s86, 2
s_lshr_b32 s86, s86, 2
s_and_b32 s87, s65, 7
s_add_u32 s86, s86, s87
s_sub_u32 s87, s86, 9
s_cmp_ge_u32 s86, 9
s_cselect_b32 s{sRP}, s87, s86""")
    else:
        P(f"s_mov_b32 s{sRP}, 0\ns_mov_b32 s{sRF}, 0\ns_mov_b32 s{sR2}, 0")
    P(f"s_lshl_b32 s88, s{sRP}, 7")
    for q in range(1, 9):
        P(f"s_add_u32 s{88+q}, s{87+q}, 128\ns_cmp_eq_u32 s{88+q}, 1152\ns_cselect_b32 s{88+q}, 0, s{88+q}")
    xl = []
    for q in range(9):
        for hh in range(2):
            xl.append(f"buffer_load_dwordx4 {vq(XR + (q*2+hh)*4)}, v{6+hh}, {srd(sX)}, s{88+q} offen{cfg.xfl}")
    for l in xl[:cfg.nx1]: P(l, "x")
    mksrd(sWS, 24, WS_BYTES)
    P(f"""s_lshl_b32 s85, s{sW}, 2
v_add_u32 v10, s85, v{vG}
v_and_b32 v11, 7, v10
v_lshrrev_b32 v12, 3, v10
v_lshl_add_u32 v11, v11, 1, v12
v_add_u32 v11, s84, v11
v_subrev_u32 v11, 16, v11
v_mul_u32_u24 v11, 1152, v11
s_cmp_eq_u32 s{sG1}, 0
s_cselect_b32 s85, {OOB}, 0
s_cselect_b32 s86, 0, -1
v_and_b32 v11, s86, v11
v_or_b32 v11, s85, v11
v_mov_b32 v13, {OOB}
s_lshl_b32 s85, s{sRP}, 3
v_add_u32 v12, s85, v{vI}""")
    for q in range(5):
        P(f"""v_add_u32 v{84+q}, {16*q}, v12
v_subrev_u32 v89, 72, v{84+q}
v_min_u32 v{84+q}, v{84+q}, v89
v_lshl_add_u32 v{84+q}, v{84+q}, 4, v11""")
    P(f"v_cmp_gt_u32 vcc, 8, v{vI}\nv_cndmask_b32 v88, v13, v88, vcc")
    hl = [f"buffer_load_dwordx4 {vq(XH + 4*q)}, v{84+q}, {srd(sX)}, 0 offen{cfg.xfl}" for q in range(5)]
    P(f"""v_bfe_u32 v14, v{vL}, 2, 2
v_and_b32 v15, 3, v{vL}
s_lshl_b32 s84, s{sW}, 12
s_add_u32 s84, s84, {R0SCR}
s_cmp_lt_u32 s77, 72
s_cbranch_scc0 L_r1_wo
v_lshrrev_b32 v16, 1, v14
v_lshlrev_b32 v16, 10, v16
v_and_b32 v17, 1, v14
v_mul_u32_u24 v17, 432, v17
v_add3_u32 v16, v16, v17, s84
v_mul_u32_u24 v17, 36, v{vG}
v_and_b32 v18, 1, v{vG}
v_lshl_add_u32 v17, v18, 2, v17
v_lshl_add_u32 v17, v15, 3, v17
v_add_u32 v32, v16, v17
v_add_u32 v34, 144, v32
v_add_u32 v36, 288, v32
v_min_u32 v17, 2, v15
v_mul_u32_u24 v17, 144, v17
v_mul_u32_u24 v18, 72, v18
v_add3_u32 v38, v16, v17, v18
v_add_u32 v38, 32, v38
s_mov_b32 s85, 2048
s_lshr_b32 s86, s77, 2
s_mul_i32 s87, s{sJ1}, 72
s_add_u32 s86, s86, s87
s_mul_i32 s86, s86, 3584
s_add_u32 s86, s86, {WQP}
s_and_b32 s87, s77, 3
v_mul_u32_u24 v16, {18*3584}, v{vG}
v_lshl_add_u32 v16, v{vI}, 4, v16
s_lshl_b32 s79, s87, 8
s_add_u32 s79, s79, s86
v_add_u32 v40, s79, v16
v_add_u32 v41, 1024, v40
v_add_u32 v42, 2048, v40
v_lshrrev_b32 v16, 1, v15
v_lshl_add_u32 v16, v{vG}, 1, v16
v_mul_u32_u24 v16, {18*3584}, v16
v_and_b32 v17, 1, v15
v_lshl_add_u32 v17, v14, 1, v17
v_lshl_add_u32 v16, v17, 4, v16
s_lshl_b32 s79, s87, 7
s_add_u32 s79, s79, s86
s_add_u32 s79, s79, 3072
v_add_u32 v16, s79, v16
v_cmp_gt_u32 vcc, 32, v{vL}
v_cndmask_b32 v43, v13, v16, vcc
s_branch L_r1_join
L_r1_wo:
v_mul_u32_u24 v16, 144, v14
v_add_u32 v16, s84, v16
v_lshrrev_b32 v17, 1, v{vG}
v_lshlrev_b32 v17, 6, v17
v_and_b32 v18, 1, v{vG}
v_lshl_add_u32 v17, v18, 3, v17
v_lshl_add_u32 v17, v15, 4, v17
v_add_u32 v32, v16, v17
v_and_b32 v17, 1, v15
v_lshl_add_u32 v34, v17, 3, v16
v_add_u32 v34, 128, v34
v_add_u32 v36, 2048, v32
v_add_u32 v38, 2048, v34
s_mov_b32 s85, 1024
v_lshlrev_b32 v16, 10, v{vG}
v_lshl_add_u32 v16, v{vI}, 4, v16
v_cmp_gt_u32 vcc, 8, v{vL}
v_cndmask_b32 v17, v13, v{vL16}, vcc
s_sub_u32 s79, s77, 72""")
    for G in range(2):
        if G: P("s_add_u32 s79, s79, 36")
        P(f"""s_lshr_b32 s86, s79, 2
s_mul_i32 s87, s{sJ1}, 18
s_add_u32 s86, s86, s87
s_mul_i32 s86, s86, 4608
s_add_u32 s86, s86, {WOP}
s_cmp_lt_u32 s77, 108
s_cselect_b32 s86, s86, {OOB}
s_and_b32 s87, s79, 3
s_lshl_b32 s76, s87, 8
s_add_u32 s76, s76, s86
v_add_u32 v{40+2*G}, s76, v16
s_lshl_b32 s76, s87, 7
s_add_u32 s76, s76, s86
s_add_u32 s76, s76, 4096
v_add_u32 v{41+2*G}, s76, v17""")
    P("L_r1_join:\ns_nop 1")
    for t in range(4): P(f"v_add_u32 v{33+2*t}, s85, v{32+2*t}")
    mksrd(sW1, 12, 576*9216); mksrd(sW2, 16, 4608*1152); mksrd(sB1, 14, 9216); mksrd(sB2, 18, 1152); mksrd(sOUT, 20, 2048*1152)
    if cfg.dbg: mksrd(sR, 22, 256)
    if cfg.stamps: P("@waitlg_all\ns_mov_b32 s4, s26"); P("s_mov_b32 s5, s38"); nstamp[0] = 2; names.append("start"); names.append("r0 issue")
    P("s_mov_b32 s99, 0x3f803f80\ns_mov_b32 s98, 0xffff0000")
    if cfg.touch:
        P(f"v_lshlrev_b32 v90, 21, v{vL}\nv_min_u32 v90, {0x2800000}, v90")
        P(f"buffer_load_dword v60, v90, {srd(sWS)}, 0 offen", "tch")
        if cfg.touch > 1:
            P(f"buffer_load_dword v61, v90, {srd(sW1)}, 0 offen", "tch")
            P(f"buffer_load_dword v62, v90, {srd(sW2)}, 0 offen", "tch")
            P(f"buffer_load_dword v63, v90, {srd(sOUT)}, 0 offen", "tch")
    UP = {(1, 0): (32, 33, 34), (1, 1): (35, 36, 37), (2, 0): (24, 25, 34), (2, 1): (26, 27, 37)}
    for z in range(2):
        a1, d1, st = UP[(1, z)]; a2, d2, _ = UP[(2, z)]
        P(f"""s_add_u32 s84, s77, {128*z}
s_mul_i32 s85, s84, 7282
s_lshr_b32 s85, s85, 16
s_mul_i32 s86, s85, 9
s_sub_u32 s86, s84, s86
s_lshl_b32 s76, s86, 7
s_mul_i32 s87, s85, {32*9216}
s_add_u32 s87, s87, s76
s_mul_i32 s75, s{sJ1}, 1152
s_add_u32 s{a1}, s87, s75
s_mul_i32 s87, s85, {32*1152}
s_add_u32 s87, s87, s76
s_mul_i32 s75, s{sJ1}, {576*1152}
s_add_u32 s{a2}, s87, s75
s_lshr_b32 s79, s85, 2
s_lshl_b32 s79, s79, 1
s_and_b32 s75, s85, 1
s_add_u32 s79, s79, s75
s_add_u32 s75, s79, 10
s_bitcmp1_b32 s85, 1
s_cselect_b32 s79, s75, s79
s_lshr_b32 s87, s86, 1
s_mul_i32 s87, s87, 162
s_and_b32 s76, s86, 1
s_lshl_b32 s76, s76, 2
s_add_u32 s87, s87, s76
s_cmp_eq_u32 s86, 8
s_cselect_b32 s87, 8, s87
s_cselect_b32 s{st}, 162, 1
s_lshl_b32 s{st}, s{st}, 10
s_mul_i32 s76, s{sJ1}, 648
s_add_u32 s87, s87, s76
s_mul_i32 s75, s85, 9
s_add_u32 s75, s75, s87
s_lshl_b32 s75, s75, 10
s_add_u32 s{d1}, s75, {W1R}
s_mul_i32 s75, s79, 9
s_add_u32 s75, s75, s87
s_lshl_b32 s75, s75, 10
s_add_u32 s{d2}, s75, {W2R}""")
        if z:
            P("s_cmp_lt_u32 s84, 162")
            for r in (a1, d1, a2, d2): P(f"s_cselect_b32 s{r}, s{r}, {OOB}")
    P(f"""v_mul_u32_u24 v92, 9216, v8
v_lshl_add_u32 v92, v9, 4, v92
v_mul_u32_u24 v93, 1152, v8
v_lshl_add_u32 v93, v9, 4, v93
v_lshl_add_u32 v94, v{vG}, 3, v14
v_lshlrev_b32 v94, 7, v94
v_lshl_add_u32 v94, v15, 4, v94
s_lshl_b32 s84, s{sW}, 13
v_add_u32 v94, s84, v94""")
    def unit_dma(mat, z, scr, vs=None):
        if mat in cfg.norp: return []
        a = UP[(mat, z)][0]; st = 9216 if mat == 1 else 1152
        L = [f"s_lshl_b32 s84, s{sW}, 13\ns_add_u32 s84, s84, {scr + 4096*z}\ns_mov_b32 m0, s84"]
        for q in range(4):
            if q: L.append(f"s_add_u32 s{a}, s{a}, {8*st - 1024}")
            L.append((f"buffer_load_dwordx4 v{vs or 91+mat}, {srd(sW1 if mat == 1 else sW2)}, s{a} offen offset:{1024*q}{cfg.rawfl} lds", "wr"))
        return L
    def unit_tr(z, scr, vt):
        return [f"ds_read_b64_tr_b16 {vq(vt+4*t+2*hi,2)}, v94 offset:{scr + 4096*z + 64*(t>>1) + 8*(t&1) + 512*hi}" for t in range(4) for hi in range(2)]
    def unit_st(mat, z, vt):
        if mat in cfg.norp: return []
        _, d, st = UP[(mat, z)]; L = []
        for t in range(4):
            if t: L.append(f"s_add_u32 s{d}, s{d}, s{st}")
            L.append((f"buffer_store_dwordx4 {vq(vt+4*t)}, v{vL16}, {srd(sWS)}, s{d} offen{cfg.wrsfl}", "wrs"))
        return L
    MS, MP, ME, MO = 96, 100, 104, 108
    P(f"""v_mov_b32 v66, {hexf(-1e30)}
v_lshlrev_b32 v64, 2, v{vG}
v_sub_u32 v64, v64, v{vI}
s_cmp_eq_u32 s{sG1}, 0
s_cselect_b32 s84, 100, 0
v_cmp_gt_u32 s[80:81], 2, v{vG}""")
    for r in range(4):
        P(f"""v_add_u32 v65, {r+7}, v64
v_cmp_gt_u32 vcc, 8, v65
v_add_u32 v65, {r}, v64
v_subrev_u32 v67, s84, v65
v_cndmask_b32 v{MS+r}, v66, 0, vcc
v_cmp_lt_i32 vcc, 8, v65
v_cmp_lt_i32 s[82:83], 8, v67
v_cmp_lt_i32 s[86:87], 0, v67
v_cndmask_b32 v{MP+r}, v66, 0, vcc
s_and_b64 s[86:87], s[86:87], s[80:81]
v_cndmask_b32 v{MO+r}, v66, 0, s[82:83]
v_cndmask_b32 v{ME+r}, v66, 0, s[86:87]""")
    P("@waitvm r0")
    stamp("r0 landed")
    for t in range(4):
        P(f"ds_read_b64_tr_b16 {vq(16+4*t,2)}, v{32+2*t}")
        P(f"ds_read_b64_tr_b16 {vq(18+4*t,2)}, v{33+2*t}")
    for t in range(4):
        P(f"buffer_store_dwordx4 {vq(16+4*t)}, v{40+t}, {srd(sWS)}, 0 offen sc1", "r0s")
    stamp("@r0 st")
    xrest = xl[cfg.nx1:] + hl
    P(f"@waitlg_all\ns_add_u32 s{sTAG}, s{sTAG}, 0x9E3779B9")
    P(f"""s_lshl_b32 s84, s{sJ1}, 12
s_add_u32 s84, s84, {F0S}
s_lshl_b32 s85, s{sG1}, 2
s_add_u32 s85, s85, s84
v_mov_b32 v44, s85
v_cmp_eq_u32 vcc, 0, v0
v_cndmask_b32 v44, v13, v44, vcc
v_and_b32 v45, 31, v{vL}
v_lshl_add_u32 v45, v45, 2, s84
s_lshl_b32 s84, s{sJ2 if cfg.f0both else sJ1}, 12
s_add_u32 s84, s84, {F0S - 128}
v_lshl_add_u32 v5, v{vL}, 2, s84
v_cmp_gt_u32 vcc, 32, v{vL}
v_cndmask_b32 v45, v5, v45, vcc""")
    def stats(groups, acc):
        order = sorted((r, gi, k) for gi, regs in enumerate(groups) for k, r in enumerate(regs))
        L = []
        for r, gi, k in order:
            a = acc + 4*gi + 2*(k & 1)
            c0 = "0" if k < 2 else f"v{a}"; c1 = "0" if k < 2 else f"v{a+1}"
            L.append(f"v_dot2_f32_bf16 v{a}, v{r}, s99, {c0}\nv_dot2_f32_bf16 v{a+1}, v{r}, v{r}, {c1}")
        for gi in range(len(groups)):
            a = acc + 4*gi
            L.append(f"v_add_f32 v{a}, v{a}, v{a+2}\nv_add_f32 v{a+1}, v{a+1}, v{a+3}")
        return L
    def finish_stats(A):
        for t in [f"v_mul_f32 v@0, {hexf(1/576)}, v@0", f"v_mul_f32 v@2, v@0, v@0", f"v_mul_f32 v@1, {hexf(1/576)}, v@1", "v_sub_f32 v@1, v@1, v@2",
                  "v_max_f32 v@1, 0, v@1", f"v_add_f32 v@1, {hexf(1e-5)}, v@1", "v_rsq_f32 v@1, v@1", "v_mul_f32 v@2, v@0, -v@1",
                  "v_mov_b32 v@0, v@1", "v_mov_b32 v@3, v@2"]:
            for a in A: P(t.replace("@0", str(a)).replace("@1", str(a+1)).replace("@2", str(a+2)).replace("@3", str(a+3)))
    def normalize(q, a, t, pk=True):
        L = []
        for d in range(4):
            L.append(f"v_lshlrev_b32 v{t+2*d}, 16, v{q+d}")
            L.append(f"v_and_b32 v{t+2*d+1}, s98, v{q+d}")
        if pk:
            for d in range(4): L.append(f"v_pk_fma_f32 {vq(t+2*d,2)}, {vq(t+2*d,2)}, {vq(a,2)}, {vq(a+2,2)}")
        else:
            for d in range(8): L.append(f"v_fma_f32 v{t+d}, v{t+d}, v{a}, v{a+2}")
        for d in range(4): L.append(f"v_cvt_pk_bf16_f32 v{q+d}, v{t+2*d}, v{t+2*d+1}")
        return L
    ST = 144; NT = 112
    st = stats([[XR + (q*2+hh)*4 + d for q in range(9) for d in range(4)] for hh in range(2)] + [[XH + k for k in range(20)]], ST)
    raw = {1: [], 2: []}
    for z in range(2):
        raw[1] += unit_dma(1, z, W1SCR); raw[2] += unit_dma(2, z, W2SCR0)
    raw[1].append(f"s_mul_i32 s84, s{sJF}, 1152\nv_lshlrev_b32 v5, 7, v{vI}")
    raw[1].append((f"buffer_load_dword v252, v5, {srd(sB1)}, s84 offen", "wr"))
    raw[1].append((f"buffer_load_dword v253, v5, {srd(sB2)}, 0 offen", "wr"))
    k = 0
    for n, l in enumerate(xrest + [None]):
        if n == cfg.nx2:
            stamp("@pre-ack")
            P("@waitvm r0s")
            stamp("@acked")
            P("s_barrier")
            set_flag(44)
            stamp("F0 set")
        if l is None: break
        P(l, "x")
        if cfg.nx1 + n + 1 - k//4 > cfg.lag: P.extend(st[k:k+4]); k += 4
    if cfg.rawat == 0: P.extend(raw[1])
    P.extend(st[k:])
    if cfg.rawat == 1: P.extend(raw[1])
    if cfg.w2at == 4: P.extend(raw[2])
    for mod in ["quad_perm:[1,0,3,2]", "quad_perm:[2,3,0,1]", "row_half_mirror"]:
        for gi in range(3):
            for k in range(2):
                a = ST + 4*gi + k
                P(f"v_add_f32_dpp v{a}, v{a}, v{a} {mod} row_mask:0xf bank_mask:0xf")
    for k in range(2): P(f"v_add_f32_dpp v{ST+8+k}, v{ST+8+k}, v{ST+8+k} row_mirror row_mask:0xf bank_mask:0xf")
    finish_stats([ST, ST+4, ST+8])
    stamp("LN1 stats")
    P(f"""v_lshrrev_b32 v156, 2, v9
v_mul_u32_u24 v156, 5120, v156
v_and_b32 v157, 3, v9
v_lshl_add_u32 v156, v157, 8, v156
v_xor_b32 v157, v8, v9
v_lshl_add_u32 v156, v157, 4, v156
s_lshl_b32 s84, s{sW}, 10
s_add_u32 s84, s84, {XB}
v_add_u32 v156, s84, v156
v_add_u32 v157, {10240*5}, v156
v_lshrrev_b32 v158, 2, v{vI}
v_mul_u32_u24 v158, 5120, v158
v_lshl_add_u32 v158, v15, 8, v158
v_xor_b32 v159, v10, v9
v_lshl_add_u32 v158, v159, 4, v158
v_add_u32 v158, {XB + 4096}, v158
v_add_u32 v159, {20480*3}, v158""")
    ntc = [0]; NB = cfg.nb[0] + cfg.nb[1]
    def ln1_batch(b):
        L = []
        for q in range(2*b, min(2*b+2, 9)):
            for hh in range(2):
                r = XR + (q*2+hh)*4
                if not cfg.dtest: L += normalize(r, ST + 4*hh, NT + 8*(ntc[0] & 1), b < NB); ntc[0] += 1
                L.append(f"ds_write_b128 v{156 if q < 5 else 157}, {vq(r)} offset:{10240*(q % 5) + 128*hh}")
        if not cfg.dtest: L += normalize(XH + 4*b, ST + 8, NT + 8*(ntc[0] & 1), b < NB); ntc[0] += 1
        wr = f"ds_write_b128 v{158 if b < 3 else 159}, {vq(XH+4*b)} offset:{20480*(b % 3)}"
        if b == 4: wr = "s_mov_b32 exec_lo, 0x00ff00ff\ns_mov_b32 exec_hi, 0x00ff00ff\n" + wr + "\ns_mov_b64 exec, -1"
        L.append(wr)
        return L
    if cfg.rawat != 4:
        for b_ in range(cfg.nb[0]): P.extend(ln1_batch(b_))
    P(f"""s_lshl_b32 s74, s{sJ1}, 2
s_add_u32 s74, s74, s{sW}
s_mul_i32 s74, s74, {18*3584}
s_add_u32 s74, s74, {WQP}
s_add_u32 s75, s74, {18*3584}
s_mul_i32 s78, s{sRP}, {2*3584}
s_add_u32 s78, s78, s74
v_lshlrev_b32 v7, 7, v{vG}
v_lshl_add_u32 v7, v{vI}, 4, v7
v_cmp_gt_u32 vcc, 6, v{vI}
v_cndmask_b32 v7, v13, v7, vcc
v_xor_b32 v8, v{vI}, v{vG}
v_lshlrev_b32 v8, 4, v8
v_lshl_add_u32 v8, v{vG}, 8, v8
v_add_u32 v8, {XB}, v8
v_xor_b32 v9, 64, v8
v_add_u32 v10, 46080, v8
v_add_u32 v11, 46080, v9""")
    stamp("@LN1 b0")
    if cfg.poll1: P(f"s_waitcnt vmcnt(0)\ns_cmp_lg_u32 s{sW}, 0\ns_cbranch_scc1 L_pdone{npoll[0]}")
    poll(45, 5)
    if cfg.poll1: P("s_barrier")
    stamp("F0 seen")
    QA, KA, EA, VA = 16, 32, 52, 72
    WR = 64
    D = cfg.p1depth
    def wq_loads(s):
        b = WR + (s % D)*16
        L = [(f"buffer_load_dwordx4 {aq(b+4*t)}, v{vL16}, {srd(sWS)}, s78 offen offset:{1024*t}{cfg.wsc}", "wq") for t in range(3)]
        L.append((f"buffer_load_dwordx4 {aq(b+12)}, v7, {srd(sWS)}, s78 offen offset:3072{cfg.wsc}", "wq"))
        if s < 17: L.append(wrap(78, 3584, 75, 74))
        return L
    def x_reads(s):
        b = (s % 2)*20
        reg = (8 if s % 2 == 0 else 9) + (2 if s >= 9 else 0)
        return [f"ds_read_b128 {aq(b+4*m)}, v{reg} offset:{((s % 9)*5 + m)*1024}" for m in range(5)]
    def join(L):
        out = []; pend = ""
        for x in L:
            if isinstance(x, tuple): out.append((pend + x[0], x[1])); pend = ""
            else: pend += x + "\n"
        if pend: out.append(pend.strip())
        return out
    if cfg.rawat == 4:
        mem = join(sum([wq_loads(s) for s in range(D-1)], []))
        tail_ = [mem.pop()] if not isinstance(mem[-1], tuple) else []
        mem += tail_ + join(raw[1]) + (join(raw[2]) if cfg.w2at == 6 else [])
        work = ln1_batch(0) + ln1_batch(1)
        for l in mem[:cfg.nq1]: P.add(l)
        mem = mem[cfg.nq1:]
        for n, l in enumerate(work):
            P.add(l)
            if n % cfg.qgap == cfg.qgap - 1 and mem: P.add(mem.pop(0))
        for l in mem: P.add(l)
    else:
        for s in range(D-1): P.extend(wq_loads(s))
        if cfg.rawat == 2: P.extend(raw[1])
        for b_ in range(cfg.nb[0], NB): P.extend(ln1_batch(b_))
    P("@waitlg_all\ns_barrier")
    P.extend(x_reads(0))
    stamp("GEMM1 start")
    def lines(t): return t.split("\n")
    def own_flag(vd, base, sa, sha, sb, shb):
        return [f"s_lshl_b32 s86, s{sa}, {sha}", f"s_lshl_b32 s87, s{sb}, {shb}", "s_add_u32 s86, s86, s87", f"s_add_u32 s86, s86, {base}",
                f"v_mov_b32 v{vd}, s86", f"v_cmp_eq_u32 vcc, 0, v0\nv_cndmask_b32 v{vd}, v13, v{vd}, vcc"]
    def grp_poll_addr(vd, sg, base):
        return lines(f"""s_lshl_b32 s86, s{sg}, 12
s_add_u32 s86, s86, {base}
v_and_b32 v{vd}, 7, v{vL}
v_lshl_add_u32 v{vd}, v{vd}, 4, s86""")
    def set_poll_addr(vd, sj, base):
        return lines(f"""s_lshl_b32 s86, s{sj}, 12
s_add_u32 s86, s86, {base}
v_and_b32 v{vd}, 31, v{vL}
v_lshl_add_u32 v{vd}, v{vd}, 2, s86""")
    def flag_items(vaddr):
        return [f"v_mov_b32 v5, s{sTAG}", (f"buffer_store_dword v5, v{vaddr}, {srd(sWS)}, 0 offen sc1", "flag")]
    def unpack(dst, src, n):
        return sum([[f"v_lshlrev_b32 v{dst+2*k}, 16, v{src+k}", f"v_and_b32 v{dst+2*k+1}, s98, v{src+k}"] for k in range(n)], [])
    QO, KO, VO, XO = 112, 128, 148, 160
    flex = []
    T0 = 128
    if NB <= 2:
        for l in ln1_batch(2): flex.append((0, l))
    flex.append((0, "@mark0"))
    flex2 = []
    q1, q2, q3, q4 = cfg.gq
    if cfg.rawat == 3:
        for k, l in enumerate(join(raw[1])): flex2.append((int(19*q1) + 2*k, l))
    def repack(mat, scr, g0):
        flex2.append((g0, "@waitvm wr"))
        for z in range(2):
            for l in unit_tr(z, scr, T0): flex2.append((g0 + 24*z, l))
            for k, l in enumerate(join(unit_st(mat, z, T0))): flex2.append((g0 + 24*z + 8 + 4*k, l))
    if cfg.w2at == 3 and q3 < q2:
        for k, l in enumerate(join(raw[2])): flex2.append((int(19*q3) + 2*k, l))
    repack(1, W1SCR, int(19*q2))
    if cfg.w2at >= 3:
        if q3 >= q2 and cfg.w2at == 3:
            for k, l in enumerate(join(raw[2])): flex2.append((int(19*q3) + 2*k, l))
        repack(2, W2SCR0, int(19*q4))
    flex2.append((0, "@markb"))
    for l in (ln1_batch(3) if NB <= 3 else []) + own_flag(95, F1S, sJ1, 12, sG1, 2): flex.append((0, l))
    flex.append((0, "@mark1"))
    if NB <= 4:
        for l in ln1_batch(4): flex.append((0, l))
    flex.append((0, "@mark2"))
    pre = lines(f"""s_lshl_b32 s84, s{sW}, 10
s_add_u32 s84, s84, {VXS}
v_lshl_add_u32 v234, v{vI}, 1, s84
v_add_u32 v235, 512, v234
v_cmp_eq_u32 vcc, 1, v{vG}@@v_cndmask_b32 v234, v235, v234, vcc
v_lshl_add_u32 v235, v{vL}, 2, s84
v_min_u32 v236, 2, v{vI}
v_mul_u32_u24 v236, 160, v236
v_lshl_add_u32 v236, v{vG}, 3, v236
v_add_u32 v236, s84, v236
v_mov_b32 v237, s99
s_mul_i32 s84, s{sG1}, 73728
s_add_u32 s84, s84, {OP}
s_lshl_b32 s85, s{sJ1}, 1
s_lshr_b32 s86, s{sW}, 1
s_add_u32 s85, s85, s86
s_lshl_b32 s85, s85, 12
s_and_b32 s86, s{sW}, 1
s_lshl_b32 s86, s86, 9
s_add_u32 s85, s85, s86
s_add_u32 s95, s85, s84
s_lshl_b32 s87, s{sJ1}, 2
s_add_u32 s87, s87, s{sW}
s_lshl_b32 s87, s87, 8
s_add_u32 s87, s87, 65536
s_add_u32 s96, s87, s84
v_and_b32 v232, 1, v{vG}
v_lshlrev_b32 v232, 10, v232
v_lshrrev_b32 v233, 1, v{vG}
v_lshl_add_u32 v232, v233, 8, v232
v_lshl_add_u32 v232, v{vI}, 4, v232
v_lshlrev_b32 v233, 2, v{vL}
s_mul_i32 s79, s{sJ2}, 82944
s_add_u32 s79, s79, {WOP}
s_lshl_b32 s84, s{sW}, 1
s_add_u32 s85, s84, s{sR2}
s_and_b32 s86, s85, 7
s_mul_i32 s86, s86, 9216
s_add_u32 s80, s86, s79
s_add_u32 s85, s85, 1
s_and_b32 s86, s85, 7
s_mul_i32 s86, s86, 9216
s_add_u32 s81, s86, s79
s_lshl_b32 s84, s84, 10
s_add_u32 s84, s84, 73728
s_add_u32 s82, s84, s79
s_mov_b32 s83, s84
s_mul_i32 s76, s{sW}, 18432
s_lshl_b32 s84, s{sG2}, 6
s_and_b32 s85, s{sW}, 1
s_lshl_b32 s85, s85, 5
s_add_u32 s85, s85, s84
s_lshr_b32 s86, s{sW}, 1
s_add_u32 s85, s85, s86
s_mul_i32 s85, s85, 1152
s_mul_i32 s86, s{sJ2}, 144
s_add_u32 s79, s85, s86
v_mul_u32_u24 v238, 7282, v{vL}
v_lshrrev_b32 v238, 16, v238
v_mul_u32_u24 v239, 9, v238
v_sub_u32 v239, v{vL}, v239
v_mul_u32_u24 v238, 2304, v238
v_lshl_add_u32 v238, v239, 4, v238
v_cmp_gt_u32 vcc, 54, v{vL}@@v_cndmask_b32 v238, v13, v238, vcc
s_mul_i32 s77, s{sW}, 3072
s_add_u32 s77, s77, {XRS}
s_mov_b32 s94, {hexf((18 ** -0.5) * 1.4426950408889634)}""") + set_poll_addr(15, sJF, F1S)
    pre += [f"v_mov_b32 v{KO+4*m+3}, 0" for m in range(5)] + [f"v_mov_b32 v{QO+4*m+3}, 0" for m in range(4)]
    for l in pre: flex.append((19*cfg.f1s + 1, l.replace("@@", "\n")))
    mains = []; fixed = {}
    for s in range(18):
        wb = WR + (s % D)*16; xb = (s % 2)*20
        base = len(mains)
        for m in range(5):
            x = aq(xb + 4*m)
            def acc(a): return (vq(a), "0" if s == 0 else vq(a))
            if cfg.g1ord == 0:
                d, c = acc(KA + 4*m); mains.append(f"{MF} {d}, {aq(wb+4)}, {x}, {c}")
                d, c = acc(VA + 4*m); mains.append(f"{MF} {d}, {x}, {aq(wb+8)}, {c}")
                d, c = acc(EA + 4*m); mains.append(f"{MF} {d}, {aq(wb+12)}, {x}, {c}" if not (cfg.etest and m in (1, 3) and s) else "s_nop 0")
                if m < 4:
                    d, c = acc(QA + 4*m); mains.append(f"{MF} {d}, {aq(wb)}, {x}, {c}")
                elif cfg.dtest == 2: fixed.setdefault(len(mains) - 1, []).append(f"{MF} v[244:247], {aq(wb)}, {x}, 0")
        if cfg.g1ord == 1:
            def acc(a): return (vq(a), "0" if s == 0 else vq(a))
            for m in range(5):
                d, c = acc(KA + 4*m); mains.append(f"{MF} {d}, {aq(wb+4)}, {aq(xb+4*m)}, {c}")
            for m in range(4, -1, -1):
                d, c = acc(EA + 4*m); mains.append(f"{MF} {d}, {aq(wb+12)}, {aq(xb+4*m)}, {c}")
            for m in range(4):
                d, c = acc(QA + 4*m); mains.append(f"{MF} {d}, {aq(wb)}, {aq(xb+4*m)}, {c}")
            for m in range(5):
                d, c = acc(VA + 4*m); mains.append(f"{MF} {d}, {aq(xb+4*m)}, {aq(wb+8)}, {c}")
        t_ = stamp_txt(f"@q{s}") if s else None
        if t_: fixed.setdefault(base - 1, []).append(t_)
        if s == 7 and NB <= 2: fixed.setdefault(base, []).extend(["@flexdone0", "@waitlg_all", "s_barrier"])
        fb_ = ["@flexdoneb", "@waitvm wrs"]
        if s == 11: fixed.setdefault(base, []).extend(["@flexdone1"] + (fb_ if cfg.f1s == 11 else []) + ["@waitlg_all", "s_barrier"] + (flag_items(95) if cfg.f1s == 11 else []))
        if s == 15: fixed.setdefault(base, []).extend(["@flexdone2"] + (fb_ if cfg.f1s == 15 else []) + ["@waitlg_all", "s_barrier"] + (flag_items(95) if cfg.f1s == 15 else []))
        if s + 1 < 18:
            for k, l in enumerate(x_reads(s+1)): fixed.setdefault(base + 1 + 2*k, []).append(l)
            fixed.setdefault(base + 18, []).append(f"@need {aq(WR + ((s+1) % D)*16, 16)} {aq(((s+1) % 2)*20, 20)}")
        if s + D - 1 < 18:
            for k, l in enumerate(wq_loads(s + D - 1)): fixed.setdefault(base + [2, 6, 10, 12, 14][k], []).append(l)
    dma = []
    for seg in range(2):
        for k in range(9):
            it = ""
            if k % 4 == 0:
                it = f"s_add_u32 s84, s76, {seg*9216 + 1024*k}\ns_mov_b32 m0, s84\n"
                if k: it += f"s_add_u32 s{80+seg}, s{80+seg}, 4096\n"
            dma.append((it + f"buffer_load_dwordx4 v{vL16}, {srd(sWS)}, s{80+seg} offen offset:{1024*(k % 4)} sc1 lds", "wo"))
    tail3 = [(("s_mov_b32 m0, s83\n" if k == 0 else "") + f"buffer_load_dwordx4 v{vL16}, {srd(sWS)}, s82 offen offset:{1024*k} sc1 lds", "wo") for k in range(3)]
    xres3 = [(("s_mov_b32 m0, s77\n" if k == 0 else f"s_add_u32 s79, s79, {13824 - 1024}\n") + f"buffer_load_dwordx4 v238, {srd(sX)}, s79 offen offset:{1024*k}{cfg.xrfl} lds", "wo") for k in range(3)]
    ne = cfg.wo_early
    if not cfg.f0both:
        for l in set_poll_addr(240, sJ2, F0S): flex.append((0, l))
        flex.append((0, poll_pre(240, 241)))
        flex.append((19*15, poll_check(240, 241)))
    for k in range(ne): flex.append((max(19*(18 - (ne*5 + 18)//19) + 5*k, 19*cfg.f1s + 1), dma[k]))
    sched(P, mains, fixed, flex, flex2=flex2)
    stamp("GEMM1 done")
    P("s_barrier")
    A = Prog()
    A(f"s_mov_b32 exec_hi, 0xffff\nds_write_b32 v235, v237 offset:320\ns_mov_b32 exec_hi, -1")
    if cfg.dtest == 2:
        for k in range(150): A(f"v_mul_f32 v{KA + k % 20}, 1.0, v{KA + k % 20}")
    for m in range(5):
        r = QO + 4*m + 2 if m < 4 else 172
        A(f"v_cvt_pk_bf16_f32 v{r}, v{EA+4*m}, v{EA+4*m+1}")
        A(f"ds_write_b16 v234, v{r} offset:{32*m}\nds_write_b16_d16_hi v234, v{r} offset:{160+32*m}")
    SA = 176
    prev = [4, 0, 4, 2]; pmask = [ME, MP, MO, MP]
    def kop(m): A(f"v_cvt_pk_bf16_f32 v{KO+4*m}, v{KA+4*m}, v{KA+4*m+1}\nv_cvt_pk_bf16_f32 v{KO+4*m+1}, v{KA+4*m+2}, v{KA+4*m+3}\nv_cvt_pk_bf16_f32 v{KO+4*m+2}, v{EA+4*m+2}, v{EA+4*m+3}")
    def qop(m): A(f"v_cvt_pk_bf16_f32 v{QO+4*m}, v{QA+4*m}, v{QA+4*m+1}\nv_cvt_pk_bf16_f32 v{QO+4*m+1}, v{QA+4*m+2}, v{QA+4*m+3}")
    kop(4)
    for m in range(4):
        qop(m); kop(m)
        if m: A(f"{MF} {vq(SA+8*(m-1)+4)}, {vq(KO+4*(m-1))}, {vq(QO+4*(m-1))}, {vq(MS)}")
        A(f"{MF} {vq(SA+8*m)}, {vq(KO+4*prev[m])}, {vq(QO+4*m)}, {vq(pmask[m])}")
    vorder = [4, 0, 1, 4, 2, 3]
    for k, m in enumerate(vorder):
        A(f"v_cvt_pk_bf16_f32 v{VO+2*k}, v{VA+4*m}, v{VA+4*m+1}\nv_cvt_pk_bf16_f32 v{VO+2*k+1}, v{VA+4*m+2}, v{VA+4*m+3}")
        if k == 0: A(f"{MF} {vq(SA+28)}, {vq(KO+12)}, {vq(QO+12)}, {vq(MS)}")
    A("@waitlg_all")
    for k, m in enumerate(vorder): A(f"ds_read_b64 {vq(XO+2*k,2)}, v236 offset:{32*m}")
    MX = 208
    for m in range(4):
        s = SA + 8*m
        A(f"v_max3_f32 v{MX+m}, v{s}, v{s+1}, v{s+2}\nv_max3_f32 v{MX+4+m}, v{s+3}, v{s+4}, v{s+5}")
    for m in range(4):
        s = SA + 8*m
        A(f"v_max3_f32 v{MX+m}, v{MX+m}, v{s+6}, v{s+7}")
    for m in range(4): A(f"v_max_f32 v{MX+m}, v{MX+m}, v{MX+4+m}")
    A(f"""v_permlane16_swap_b32 v{MX}, v{MX+1}
v_permlane16_swap_b32 v{MX+2}, v{MX+3}
v_max_f32 v{MX}, v{MX}, v{MX+1}
v_max_f32 v{MX+2}, v{MX+2}, v{MX+3}
v_permlane32_swap_b32 v{MX}, v{MX+2}
v_max_f32 v{MX}, v{MX}, v{MX+2}
v_mul_f32 v{MX}, s94, v{MX}
v_mov_b32 v{MX+2}, v{MX}
v_permlane32_swap_b32 v{MX}, v{MX+2}
v_mov_b32 v{MX+1}, v{MX}
v_mov_b32 v{MX+3}, v{MX+2}
v_permlane16_swap_b32 v{MX}, v{MX+1}
v_permlane16_swap_b32 v{MX+2}, v{MX+3}""")
    PO = 216; OA = 16; OX = 32
    for m in range(4):
        s = SA + 8*m
        h = m & 1
        for k in range(4): A(f"v_pk_fma_f32 {vq(s+2*k,2)}, {vq(s+2*k,2)}, s[94:95], {vq(MX+(m&2),2)} op_sel:[0,0,{h}] op_sel_hi:[1,0,{h}] neg_lo:[0,0,1] neg_hi:[0,0,1]")
        if m:
            o = [0, 2, 6, 8][m-1]
            A(f"{MF} {vq(OX+4*(m-1))}, {vq(XO+o)}, {vq(PO+4*(m-1))}, 0")
            A(f"{MF} {vq(OA+4*(m-1))}, {vq(VO+o)}, {vq(PO+4*(m-1))}, 0")
        for k in range(8): A(f"v_exp_f32 v{s+k}, v{s+k}")
        for k in range(4): A(f"v_cvt_pk_bf16_f32 v{PO+4*m+k}, v{s+2*k}, v{s+2*k+1}")
    A(f"v_rcp_f32 v{MX}, v{OX+2}\nv_rcp_f32 v{MX+1}, v{OX+6}")
    A(f"{MF} {vq(OX+12)}, {vq(XO+8)}, {vq(PO+12)}, 0\n{MF} {vq(OA+12)}, {vq(VO+8)}, {vq(PO+12)}, 0")
    OP0 = 112
    for p in range(2):
        if p: A(f"v_rcp_f32 v{MX+2}, v{OX+10}\nv_rcp_f32 v{MX+3}, v{OX+14}")
        for m in (2*p, 2*p+1):
            for r in range(2): A(f"v_pk_mul_f32 {vq(OA+4*m+2*r,2)}, {vq(OA+4*m+2*r,2)}, {vq(MX+(m&2),2)} op_sel:[0,{m&1}] op_sel_hi:[1,{m&1}]")
            A(f"v_cvt_pk_bf16_f32 v{OP0+2*m}, v{OA+4*m}, v{OA+4*m+1}\nv_cvt_pk_bf16_f32 v{OP0+2*m+1}, v{OA+4*m+2}, v{OA+4*m+3}")
        for m in (2*p, 2*p+1):
            A(f"v_pk_mul_f32 {vq(OX+4*m,2)}, {vq(OX+4*m,2)}, {vq(MX+(m&2),2)} op_sel:[0,{m&1}] op_sel_hi:[1,{m&1}]")
        b = OP0 + 4*p
        A(f"v_permlane16_swap_b32 v{b}, v{b+2}\nv_permlane16_swap_b32 v{b+1}, v{b+3}")
        A(f"buffer_store_dwordx4 {vq(OP0+4*p)}, v232, {srd(sWS)}, s95 offen offset:{2048*p} sc1", "o")
        for m in (2*p, 2*p+1): A(f"v_cvt_pk_bf16_f32 v{OP0+8+m}, v{OX+4*m}, v{OX+4*m+1}")
    A(f"v_permlane16_swap_b32 v{OP0+8}, v{OP0+9}\nv_permlane16_swap_b32 v{OP0+10}, v{OP0+11}")
    A(f"v_permlane32_swap_b32 v{OP0+8}, v{OP0+10}")
    A(f"buffer_store_dword v{OP0+8}, v233, {srd(sWS)}, s96 offen sc1", "o")
    late = dma[ne:] + tail3 + xres3 + [poll_pre(15, 14)]
    if cfg.w2at == 0:
        w2l = []
        for z in range(2):
            u = unit_dma(2, z, W2SCR)
            w2l.append((u[0] + "\n" + u[1][0], "wr"))
            for q in range(1, 4): w2l.append((u[2*q] + "\n" + u[2*q+1][0], "wr"))
        assert ne in (0, 4, 8, 9, 13)
        late = w2l + late
    k = 0
    for n, ins in enumerate(A.ins):
        P.add(ins)
        if n >= 3 and (n - 3) % cfg.dmagap == 0 and k < len(late): P.add(late[k]); k += 1
    assert k == len(late)
    stamp("attn done")
    NR = 56; AF = 224
    ACA, ACB = 16, 96
    CA, CB = 96, 160
    passes = [("A", [0, 1, 2, 3, 8], ACA, CA), ("B", [4, 5, 6, 7], ACB, CB), ("C", [4, 5, 8], 16, None), ("D", [0, 1], 96, None), ("E", [2, 3], 64, None), ("F", [6, 7], 16, None)]
    if cfg.p522: passes = passes[:2] + [("C", [0, 1, 2, 3, 8], 16, None), ("E", [4, 5], 96, None), ("F", [6, 7], 128, None)]
    steps = [(pi, p) for pi in range(len(passes)) for p in range(18)]
    cons = [(pi, p, t) for pi, p in steps for t in range(len(passes[pi][1]))]
    slot = {f: n % NR for n, f in enumerate(cons)}
    def wload(n):
        pi, p, t = cons[n]; L = []
        if t == 0 and n > 0:
            if pi == 1 and p == 0:
                L.append(f"s_mul_i32 s92, s{sRF}, 9216\ns_add_u32 s92, s92, s90")
            elif pi >= 2 and p in (0, 10):
                beg = 0 if p == 0 else 10*9216; end = (10 if p == 0 else 18)*9216
                L.append(f"s_add_u32 s90, s89, {beg}\ns_add_u32 s91, s89, {end}")
                L.append(f"s_mul_i32 s92, s{93 if p == 0 else 94}, 9216\ns_add_u32 s92, s92, s90")
            else: L.append(wrap(92, 9216, 91, 90))
        tile = passes[pi][1][t]
        L.append((f"buffer_load_dwordx4 {aq(4*(n % NR))}, v{[vL16, 12, 255][tile >> 2]}, {srd(sWS)}, s92 offen offset:{1024*(tile % 4)}{cfg.wsc}", "w"))
        return L
    npf = [0]
    def prefetch(n):
        L = []
        for k in range(n): L += wload(npf[0]); npf[0] += 1
        return L
    P(f"""s_lshl_b32 s88, s{sJF}, 2
s_add_u32 s88, s88, s{sW}
s_mul_i32 s88, s88, {162*1024}
s_add_u32 s89, s88, {W2R}
s_add_u32 s88, s88, {W1R}
s_mul_i32 s92, s{sRF}, 9216
s_add_u32 s92, s92, s88
s_mov_b32 s90, s88
s_add_u32 s91, s88, {162*1024}
v_add_u32 v12, 4096, v{vL16}
v_add_u32 v255, 8192, v{vL16}""")
    P(poll_check(15, 14))
    pa, pb, pc, pd, pe = cfg.pre
    P.extend(prefetch(pa))
    P.extend(own_flag(14, F1G, sG1, 12, sJ1, 4)); P.extend(grp_poll_addr(15, sG2, F1G))
    HA = 16; HQ = 36; OF = 48; WB = 120; NW = 28
    P(f"""v_add_u32 v10, 41472, v{vL16}
v_and_b32 v11, 7, v{vI}
v_lshlrev_b32 v11, 4, v11
v_lshl_add_u32 v11, v{vG}, 7, v11
v_add_u32 v9, 41472, v11
v_mul_u32_u24 v7, 43, v{vI}
v_lshrrev_b32 v7, 8, v7
v_mul_u32_u24 v7, 160, v7
v_mul_u32_u24 v6, 144, v{vI}
v_add3_u32 v6, v6, v7, s77
v_and_b32 v7, 1, v{vG}
v_lshl_add_u32 v7, v7, 3, v6
v_lshl_add_u32 v6, v{vG}, 4, v6""")
    P("@waitvm o\ns_barrier")
    set_flag(14)
    stamp("F1 set")
    if cfg.p1early: P.add(poll_pre(15, 46))
    if cfg.w2at == 1:
        for z in range(2): P.extend(unit_dma(2, z, W2SCR))
    P.extend(prefetch(pb))
    if not cfg.p1early and 1 not in cfg.pfast: P.add(poll_pre(15, 46))
    P(f"ds_read_b128 {vq(HQ)}, v6\nds_read_b128 {vq(HQ+4)}, v6 offset:64\nds_read_b64 {vq(HQ+8,2)}, v7 offset:128")
    def wo_reg(n): return vq(WB + 4*(n % NW))
    wor = []
    for s in range(18):
        for t in range(5):
            reg = (vL16 if s < 9 else 10) if t < 4 else (11 if s < 9 else 9)
            wor.append(f"ds_read_b128 {wo_reg(s*5+t)}, v{reg} offset:{WOB + (s % 9)*4608 + 1024*t}")
    P.extend(wor[:NW - 1])
    P(f"""s_mul_i32 s84, s{sG2}, 73728
s_lshl_b32 s85, s{sW}, 10
s_add_u32 s84, s84, s85
s_add_u32 s74, s84, {OP}
s_add_u32 s75, s74, 65536
s_mul_i32 s79, s{sW}, {1024 - 64}
s_sub_u32 s79, s75, s79
v_lshlrev_b32 v232, 10, v{vG}
v_lshl_add_u32 v232, v{vI}, 2, v232
s_lshl_b32 s78, s{sR2}, 13
s_add_u32 s78, s78, s74
s_add_u32 s84, s84, {HP}
s_mul_i32 s85, s{sJ2}, 9
v_add_u32 v6, s85, v{vG}
v_lshrrev_b32 v7, 2, v6
v_lshlrev_b32 v7, 12, v7
v_and_b32 v6, 3, v6
v_lshl_add_u32 v6, v6, 8, v7
v_lshl_add_u32 v6, v{vI}, 4, v6
v_add_u32 v6, s84, v6
s_add_u32 s85, s85, 8
s_lshr_b32 s86, s85, 2
s_lshl_b32 s86, s86, 12
s_and_b32 s85, s85, 3
s_lshl_b32 s85, s85, 8
s_add_u32 s85, s85, s86
s_add_u32 s85, s85, s84
v_lshlrev_b32 v7, 4, v{vI}
v_lshl_add_u32 v7, v{vG}, 3, v7
v_add_u32 v7, s85, v7
v_cmp_gt_u32 s[82:83], 2, v{vG}
v_add_u32 v8, 4096, v6
v_add_u32 v47, {W2SCR}, v94
v_mov_b32 v235, v93
v_cndmask_b32 v7, v13, v7, s[82:83]
s_lshl_b32 s84, s{sG2}, 2
s_add_u32 s84, s84, s{sW}
s_lshl_b32 s84, s84, 3
s_add_u32 s84, s84, s{sJ2}
s_lshl_b32 s84, s84, 7
s_add_u32 s84, s84, {STATS}
v_lshl_add_u32 v233, v{vI}, 3, s84
v_cmp_gt_u32 vcc, 16, v{vL}
v_cndmask_b32 v233, v13, v233, vcc""")
    P.extend(unpack(HA, HQ, 10))
    P(poll_fast(15, 236) if 1 in cfg.pfast else poll_check(15, 46))
    stamp("F1 seen")
    ol = []
    for s in range(16):
        ol.append([(f"buffer_load_dwordx4 {vq(OF+4*s)}, v{vL16}, {srd(sWS)}, s78 offen sc1", "of")] + ([wrap(78, 4096, 75, 74)] if s < 15 else []))
    for s in (16, 17):
        for ww in range(4): ol.append([(f"buffer_load_dword v{OF+4*s+ww}, v232, {srd(sWS)}, s79 offen offset:{256*ww} sc1", "of")] + (["s_add_u32 s79, s79, 4096"] if (s, ww) == (16, 3) else []))
    for L in ol[:cfg.no1]: P.extend(L)
    flex = []
    for l in own_flag(14, F2G, sG2, 12, sJ2, 4) + grp_poll_addr(15, sGF, F2G): flex.append((0, l))
    for l in lines(f"""s_mul_i32 s84, s{sJF}, 1152
s_lshl_b32 s85, s{sW}, 8
s_add_u32 s80, s85, s84
s_lshr_b32 s86, s{sW}, 1
s_lshl_b32 s86, s86, 6
s_and_b32 s87, s{sW}, 1
s_lshl_b32 s87, s87, 3
s_add_u32 s86, s86, s87
s_add_u32 s81, s86, s84
v_lshlrev_b32 v234, 4, v{vG}"""): flex.append((0, l))
    for l in prefetch(pc): flex.append((64, l))
    mains = [f"{MF} {vq(HA+4*t)}, {wo_reg(s*5+t)}, {vq(OF+4*s)}, {vq(HA+4*t)}" for s in range(18) for t in range(5)]
    fixed = {n: [wor[n + NW - 1]] for n in range(90 - NW + 1)}
    for k, L in enumerate(ol[cfg.no1:]):
        g = int(k*cfg.ogap)
        fixed.setdefault(g, []).append(L[0])
        if len(L) > 1: fixed.setdefault(g + 1, []).append(L[1])
    sched(P, mains, fixed, flex)
    for k in range(4): P(f"v_cvt_pk_bf16_f32 v{HQ+k}, v{HA+2*k}, v{HA+2*k+1}")
    P(f"buffer_store_dwordx4 {vq(HQ)}, v6, {srd(sWS)}, 0 offen sc1", "h")
    for k in range(4, 8): P(f"v_cvt_pk_bf16_f32 v{HQ+k}, v{HA+2*k}, v{HA+2*k+1}")
    P(f"buffer_store_dwordx4 {vq(HQ+4)}, v8, {srd(sWS)}, 0 offen sc1", "h")
    for k in range(8, 10): P(f"v_cvt_pk_bf16_f32 v{HQ+k}, v{HA+2*k}, v{HA+2*k+1}")
    P(f"buffer_store_dwordx2 {vq(HQ+8,2)}, v7, {srd(sWS)}, 0 offen sc1", "h")
    P(f"v_cndmask_b32 v16, 0, v{HQ+8}, s[82:83]\nv_cndmask_b32 v17, 0, v{HQ+9}, s[82:83]")
    P.extend(stats([[16, 17] + [HQ + k for k in range(8)]], 20))
    def xsum(a):
        for sw in ["v_permlane16_swap_b32", "v_permlane32_swap_b32"]:
            for k in range(2): P(f"v_mov_b32 v{a+2+k}, v{a+k}")
            for k in range(2): P(f"{sw} v{a+k}, v{a+2+k}")
            for k in range(2): P(f"v_add_f32 v{a+k}, v{a+k}, v{a+2+k}")
    xsum(20)
    P(f"buffer_store_dwordx2 {vq(20,2)}, v233, {srd(sWS)}, 0 offen sc1", "h")
    stamp("proj done")
    B1P = 136; HR = 160; ST = 132; NT = 116; SR = 154
    for p in range(4): P(f"buffer_load_dwordx4 {vq(B1P+4*p)}, v234, {srd(sB1)}, s80 offen offset:{64*p}", "b1")
    P(f"buffer_load_dwordx2 {vq(B1P+16,2)}, v234, {srd(sB1)}, s81 offen offset:1024", "b1")
    P.extend(prefetch(pd))
    P("@waitvm h\n@waitlg_all\ns_barrier")
    set_flag(14)
    stamp("F2 set")
    if cfg.w2at == 2:
        P.add(poll_pre(15, 46))
        for z in range(2): P.extend(unit_dma(2, z, W2SCR, 235))
    if cfg.w2st == 0 and cfg.w2at < 3:
        P("@waitvm wr")
        for z in range(2): P.extend([l.replace("v94", "v47") for l in unit_tr(z, 0, 48 + 16*z)])
        for z in range(2): P.extend(unit_st(2, z, 48 + 16*z))
    P.extend(prefetch(pe))
    if cfg.w2at != 2 and 2 not in cfg.pfast: P.add(poll_pre(15, 46))
    P.extend(unpack(CA, B1P, 8)); P.extend(unpack(CA+16, B1P+16, 2))
    P(f"""s_mul_i32 s84, s{sGF}, 73728
s_lshl_b32 s85, s{sW}, 10
s_add_u32 s84, s84, s85
s_add_u32 s74, s84, {HP}
s_add_u32 s75, s74, 73728
s_lshl_b32 s77, s{sRF}, 12
s_add_u32 s77, s77, s74
v_add_u32 v6, s85, v{vL16}
v_add_u32 v7, 36864, v6
v_add_u32 v8, 36864, v{vL16}
v_add_u32 v9, {HB}, v{vL16}
v_add_u32 v10, {HB + 36864}, v{vL16}
v_mov_b32 v11, v47
s_and_b32 s93, s{sGF}, 15
s_lshr_b32 s94, s93, 1
s_mul_i32 s93, s93, 5
s_lshr_b32 s93, s93, 3
s_lshl_b32 s84, s{sGF}, 12
s_add_u32 s84, s84, s85
s_add_u32 s84, s84, {STATS}
v_lshlrev_b32 v239, 8, v{vG}
v_lshl_add_u32 v239, v{vI}, 3, v239""")
    if not cfg.rot: P("s_mov_b32 s93, 0\ns_mov_b32 s94, 0")
    P.extend(own_flag(14, F2S, sJ1, 12, sG1, 2))
    vPS, vSS, vF3, vP3, vL4, vL2, vLS, vH4, vH2, vPT, vC4, vC2, vO4, vO2, vOS = range(240, 255)
    P.extend(own_flag(vF3, F3A, sGF, 12, sJF, 4)); P.extend(grp_poll_addr(vP3, sGF, F3A))
    if cfg.wflag:
        P(f"""s_lshl_b32 s87, s{sW}, 7
s_add_u32 s86, s86, s87
v_add_u32 v{vP3}, s87, v{vP3}
s_lshl_b32 s87, s{sJF}, 4
s_add_u32 s86, s86, s87
v_mov_b32 v{vF3}, s86
v_cmp_eq_u32 vcc, 0, v{vL}
v_cndmask_b32 v{vF3}, v13, v{vF3}, vcc""")
    P(f"""s_lshl_b32 s86, s{sGF}, 6
s_add_u32 s86, s86, s{sJF}
s_mul_i32 s86, s86, 9216
s_add_u32 s86, s86, {PART}
v_lshrrev_b32 v{vPS}, 3, v{vI}
v_mul_u32_u24 v{vPS}, {8*9216}, v{vPS}
v_and_b32 v5, 7, v{vI}
v_lshlrev_b32 v5, 3, v5
v_lshl_add_u32 v5, v{vG}, 6, v5
v_add3_u32 v{vSS}, v{vPS}, v5, s86
v_add_u32 v{vPS}, v{vSS}, v5
s_lshl_b32 s85, s{sW}, 8
s_add_u32 s87, s85, 8192
v_add_u32 v{vSS}, s87, v{vSS}
s_lshl_b32 s76, s{sW}, 11
v_add_u32 v{vPS}, s76, v{vPS}
s_lshl_b32 s86, s{sGF}, 3
s_add_u32 s86, s86, s{sJF}
s_mul_i32 s86, s86, {8*9216}
s_add_u32 s86, s86, {PART}
s_add_u32 s76, s76, s86
v_add_u32 v{vL4}, s76, v{vL16}
s_add_u32 s87, s87, s86
v_lshl_add_u32 v{vLS}, v{vL}, 3, s87
v_cmp_gt_u32 vcc, 32, v{vL}
v_lshrrev_b32 v5, 5, v{vL}
v_bfe_u32 v{vC4}, v{vL}, 3, 2
v_cndmask_b32 v{vLS}, v13, v{vLS}, vcc
v_and_b32 v{vO4}, 7, v{vL}
v_lshlrev_b32 v{vH4}, 12, v5
v_lshl_add_u32 v{vH4}, v{vC4}, 8, v{vH4}
v_lshl_add_u32 v{vH4}, v{vO4}, 4, v{vH4}
v_lshlrev_b32 v{vC4}, 4, v{vC4}
v_lshl_add_u32 v{vC4}, v5, 6, v{vC4}
s_lshr_b32 s87, s{sJF}, 1
s_and_b32 s86, s{sJF}, 1
s_lshl_b32 s76, s{sGF}, 6
s_and_b32 s32, s87, 1
s_lshl_b32 s32, s32, 5
s_add_u32 s76, s76, s32
s_lshr_b32 s32, s87, 1
s_add_u32 s76, s76, s32
s_lshl_b32 s32, s86, 4
s_add_u32 s76, s76, s32
s_mul_i32 s76, s76, 1152
v_mul_u32_u24 v{vO4}, 2304, v{vO4}
v_add3_u32 v{vO4}, v{vO4}, v{vC4}, s76
v_cndmask_b32 v{vOS}, v13, v{vO4}, vcc
s_mul_i32 s76, s{sGF}, 73728
s_lshl_b32 s87, s87, 10
s_add_u32 s76, s76, s87
s_lshl_b32 s86, s86, 7
s_add_u32 s76, s76, s86
s_add_u32 s76, s76, {HP}
s_lshl_b32 s86, s{sW}, 14
s_add_u32 s32, s76, s86
s_add_u32 s33, s32, 8192
s_lshr_b32 s86, s{sW}, 1
s_and_b32 s87, s{sW}, 1
s_lshl_b32 s87, s87, 3
s_lshl_b32 s36, s86, 12
s_add_u32 s36, s36, s87
s_add_u32 s36, s36, 65536
s_add_u32 s36, s36, s76
s_mov_b32 s38, s85
s_lshl_b32 s39, s86, 6
s_add_u32 s39, s39, s87
s_add_u32 s39, s39, 1024
s_mov_b32 s80, 0
s_mov_b32 s81, {16*9216}
s_mov_b32 s82, {32*9216}
s_mov_b32 s83, {48*9216}
s_mov_b32 s95, 0x00003f80
s_mov_b32 s96, 0x3f800000""")
    P(f"s_or_b32 s86, s2, s{sW}\ns_cbranch_scc0 L_epoch\nL_epoch_back:")
    slow.append(f"""L_epoch:
v_lshrrev_b32 v16, 5, v{vL}
v_lshlrev_b32 v16, 12, v16
v_and_b32 v17, 31, v{vL}
v_lshl_add_u32 v16, v17, 2, v16
v_add_u32 v16, {F0S}, v16
v_add_u32 v17, 8192, v16
v_add_u32 v18, 16384, v16
v_add_u32 v19, 24576, v16
s_mov_b32 s97, 0
L_epoch_poll:
buffer_load_dword v20, v16, {srd(sWS)}, 0 offen sc1
buffer_load_dword v21, v17, {srd(sWS)}, 0 offen sc1
buffer_load_dword v22, v18, {srd(sWS)}, 0 offen sc1
buffer_load_dword v23, v19, {srd(sWS)}, 0 offen sc1
s_add_u32 s97, s97, 1
s_waitcnt vmcnt(0)
v_xor_b32 v20, s{sTAG}, v20
v_xor_b32 v21, s{sTAG}, v21
v_xor_b32 v22, s{sTAG}, v22
v_xor_b32 v23, s{sTAG}, v23
v_or_b32 v20, v20, v21
v_or3_b32 v20, v20, v22, v23
v_cmp_ne_u32 vcc, 0, v20
s_cmp_gt_u32 s97, 400000
s_cbranch_scc1 L_epoch_set
s_cbranch_vccnz L_epoch_poll
L_epoch_set:
v_mov_b32 v16, 0
v_mov_b32 v17, s{sTAG}
s_mov_b64 exec, 1
buffer_store_dword v17, v16, {srd(sWS)}, 0 offen sc1
s_mov_b64 exec, -1
s_waitcnt vmcnt(0)
s_branch L_epoch_back""")
    P(poll_fast(15, 232) if 2 in cfg.pfast else poll_check(15, 46))
    stamp("F2 seen")
    for k in range(2): P(f"buffer_load_dwordx2 {vq(SR+2*k,2)}, v239, {srd(sWS)}, s84 offen offset:{128*k} sc1", "hf")
    hl = []
    for s in range(18):
        hl.append([(f"buffer_load_dwordx4 {vq(HR+4*s)}, v{vL16}, {srd(sWS)}, s77 offen sc1", "hf")] + ([wrap(77, 4096, 75, 74)] if s < 17 else []))
    for s in range(cfg.nh1): P.extend(hl[s])
    P(f"v_add_f32 v{ST}, v{SR}, v{SR+2}\nv_add_f32 v{ST+1}, v{SR+1}, v{SR+3}")
    xsum(ST)
    finish_stats([ST])
    for s in range(cfg.nh1, cfg.nh2): P.extend(hl[s])
    stamp("LN2 stats")
    def ln2(s):
        return normalize(HR + 4*s, ST, NT + 8*(s & 1), s < 3) + [f"ds_write_b128 v{6 if s < 9 else 7}, {vq(HR+4*s)} offset:{XN + (s % 9)*4096}"]
    for s in range(3): P.extend(ln2(s))
    P("@waitlg_all\ns_barrier")
    def act_reads(i):
        pi, p = steps[i]
        b = AF + (i % 2)*16
        if pi < 2: reg = vL16 if p < 9 else 8
        else: reg = 9 if p < 9 else 10
        return [f"ds_read_b128 {aq(b+4*m)}, v{reg} offset:{((p % 9)*4 + m)*1024}" for m in range(4)]
    P.extend(act_reads(0))
    stamp("FFN start")
    mains = []; fixed = {}; start = []; load = {}
    first_use = {}; last_use = {}
    def put(g, it):
        fixed.setdefault(g, []).append(it); load[g] = load.get(g, 0) + cost(it)
    def place(items, g):
        for it in items:
            c = cost(it)
            while load.get(g, 0) > 0 and load.get(g, 0) + c > cfg.cap + 0.02: g += 1
            put(g, it)
        return g
    bar = {2: "a", 4: "b", 7: "c", 10: "d", 14: "f", 35: "0", 45: "1"}
    if cfg.w2st: bar[17] = "e"
    fl2 = "e" if cfg.w2st else "c"
    if cfg.w2at >= 3: fl2 = None
    for i, (pi, p) in enumerate(steps):
        name, tiles, acc, cin = passes[pi]; nt = len(tiles)
        base = len(mains); start.append(base)
        b = AF + (i % 2)*16
        t_ = stamp_txt(f"@{name}{p}") if i else None
        if t_: fixed.setdefault(base - 1, []).append(t_)
        if i in bar:
            for it in [f"@flexdone{bar[i]}"] + (["@waitvm wrs"] if bar[i] == fl2 else []) + ["@waitlg_all", "s_barrier"]: put(base, it)
            if bar[i] == fl2:
                for it in flag_items(14): put(base, it)
        for t in range(nt):
            w = aq(4*slot[(pi, p, t)])
            first_use[(pi, p, t)] = len(mains); last_use[(pi, p, t)] = len(mains) + 3
            for m in (range(4) if not (cfg.snake and t % 2) else range(3, -1, -1)):
                d = vq(acc + (t*4 + m)*4)
                c = d if p > 0 else (vq(cin + 4*t) if cin is not None else "0")
                mains.append(f"{MF} {d}, {w}, {aq(b+4*m)}, {c}")
        if i + 1 < len(steps):
            for k, l in enumerate(act_reads(i+1)): put(base + (2*k if nt > 2 else k) + (1 if i in bar else 0), l)
            pj, pp = steps[i+1]
            nxt = " ".join(aq(4*slot[(pj, pp, t)]) for t in range(len(passes[pj][1])))
            fixed.setdefault(base + 4*nt - 1, []).append(f"@need {nxt} {aq(AF + ((i+1) % 2)*16, 16)}")
            load[base + 4*nt - 1] = load.get(base + 4*nt - 1, 0) + 0.67
    start.append(len(mains))
    S = lambda pi, p: start[pi*18 + p]
    path = {}
    TQ = 176
    tq = [0]
    def epi2(acc, tiles, m, st):
        q = TQ + 4*(tq[0] % 4); tq[0] += 1
        regs = [acc + (t*4 + m)*4 + r for t in tiles for r in range(4)]
        L = [f"v_cvt_pk_bf16_f32 v{q+k}, v{regs[2*k]}, v{regs[2*k+1]}" for k in range(len(regs)//2)]
        L += st(q)
        return L
    if cfg.noself:
        def pst(m, off, tag): return lambda q: [(f"buffer_store_dwordx4 {vq(q)}, v{160+m}, {srd(sWS)}, s{80+m} offen offset:{off} sc1", tag), f"ds_write_b128 v{168+m}, {vq(q)} offset:{off}"]
        def sst(m, tag): return lambda q: [(f"buffer_store_dwordx2 {vq(q,2)}, v{164+m}, {srd(sWS)}, s{80+m} offen sc1", tag), f"ds_write_b64 v{172+m}, {vq(q,2)} offset:2048"]
    else:
        def pst(m, off, tag): return lambda q: [(f"buffer_store_dwordx4 {vq(q)}, v{vPS}, {srd(sWS)}, s{80+m} offen offset:{off} sc1", tag)]
        def sst(m, tag): return lambda q: [(f"buffer_store_dwordx2 {vq(q,2)}, v{vSS}, {srd(sWS)}, s{80+m} offen sc1", tag)]
    RW = [4, 4, 2]; RH = [200, 208, 216]; RS = [220, 228, 236]; R0 = [16, 48, 80]
    rl = [(vL4, 0), (vL4, 1024), (vLS, 0)]
    SRC = [24, 25, 26, 27, 34, 35, 37]
    def red_loads(r):
        if cfg.noself:
            L = [(f"buffer_load_dwordx{RW[r]} {vq(R0[r]+RW[r]*j,RW[r])}, v{rl[r][0]}, {srd(sWS)}, s{SRC[j]} offen offset:{rl[r][1]}{cfg.rdfl}", "rd") for j in range(7)]
            return L
        L = ["s_mov_b32 s84, 0"]
        for j in range(8):
            L.append((f"buffer_load_dwordx{RW[r]} {vq(R0[r]+RW[r]*j,RW[r])}, v{rl[r][0]}, {srd(sWS)}, s84 offen offset:{rl[r][1]} sc1", "rd"))
            if j < 7: L.append("s_add_u32 s84, s84, 9216")
        return L
    def red_sum(r):
        T = RS[r]; L = []
        for j in ([7] + list(range(7)) if cfg.noself else range(8)):
            for d in range(RW[r]):
                q = R0[r] + RW[r]*j + d
                L.append(f"v_dot2_f32_bf16 v{T+2*d}, v{q}, s95, v{T+2*d}")
                L.append(f"v_dot2_f32_bf16 v{T+2*d+1}, v{q}, s96, v{T+2*d+1}")
        for d in range(RW[r]): L.append(f"v_cvt_pk_bf16_f32 v{T+d}, v{T+2*d}, v{T+2*d+1}")
        return L
    def red_store(r):
        vo, so, oo = [(vO4, 38, 0), (vO4, 38, 128), (vOS, 39, 0)][r]
        return [(f"buffer_store_dwordx{RW[r]} {vq(RS[r],RW[r])}, v{vo}, {srd(sOUT)}, s{so} offen offset:{oo}{cfg.outfl}", "out")]
    def add_path(g, c): path[g] = path.get(g, 0) + c
    G0, s4, s2 = cfg.late
    last = len(passes) - 1
    g = G0
    for m in range(4):
        for pr in range(2): g = place(epi2(16, [2*pr, 2*pr+1], m, pst(m, 512*pr, "p1")), g) + s4
    for m in range(4): g = place(epi2(16, [4], m, sst(m, "p1")), g) + s2
    two = cfg.two
    if two:
        gs = g + two[0]
        for it in ["@waitvm p1", "s_barrier"] + flag_items(vF3) + [f"v_add_u32 v{vF3}, 512, v{vF3}"]: put(gs, it)
    gE = max(g, S(last, 0) + 3)
    for m in range(4): gE = place(epi2(96, [0, 1], m, pst(m, 1024, "p2")), gE) + s4
    assert gE - s4 < len(mains) - 1, gE
    nin = 0
    if two:
        erl = red_loads(0) + red_loads(2)
        gp = gs + two[1]
        if gp + two[2] < len(mains) - 4:
            put(gp, poll_pre(vP3, vPT))
            gq_ = place([poll_check(vP3, vPT), f"v_add_u32 v{vP3}, 512, v{vP3}"], gp + two[2])
            while nin < len(erl) and gq_ + two[3] < len(mains) - 3:
                gq_ = place(erl[nin:nin+1], gq_ + two[3]); nin += 1
            inloop = True
        else: inloop = False
        if VERBOSE: print("two-phase: stores end", g, "flag", gs, "E stores end", gE, "in-loop loads", nin)
    g = 0
    for s in range(cfg.nh2, 18):
        g = place(hl[s], g); add_path(g, 110); g += cfg.hgap
    g = S(2, 11)
    for r, (sh, sb, bo) in enumerate([(32, 38, 0), (33, 38, 128), (36, 39, 0)]):
        g = place([(f"buffer_load_dwordx{RW[r]} {vq(RH[r],RW[r])}, v{vH4}, {srd(sWS)}, s{sh} offen sc1", "rh")], g + 5); add_path(g, 70)
        g = place([(f"buffer_load_dwordx{RW[r]} {vq(RH[r]+RW[r],RW[r])}, v{vC4}, {srd(sB2)}, s{sb} offen offset:{bo}", "rh")], g + 3); add_path(g, 20)
    nl = npf[0]; free = cfg.backlog; g = 0
    while nl < len(cons):
        now = g*cfg.tgap
        if g in path: free = max(free, now) + path.pop(g)
        early = last_use[cons[nl - NR]] + 1 if nl >= NR else 0
        dead = first_use[cons[nl]] - cfg.margin
        if g >= early and (free <= now + cfg.slack or g >= dead):
            L = wload(nl)
            if nl == 162 - cfg.w2lead and fl2: L = [poll_pre(15, vPT)] + L
            if nl == 162 and fl2: L = [poll_check(15, vPT)] + L
            g2 = place(L, g)
            for x in range(g + 1, g2 + 1):
                if x in path: free = max(free, x*cfg.tgap) + path.pop(x)
            assert g2 < first_use[cons[nl]] - 8, (nl, g2, first_use[cons[nl]])
            if VERBOSE and nl % 18 == 0: print(f"   load {nl} at gap {g2}, first use {first_use[cons[nl]]}, backlog {free - g2*cfg.tgap:.0f}")
            g = g2; free = max(free, g*cfg.tgap) + cfg.wcost; nl += 1
        g += 1
    if VERBOSE: print("last weight load at gap", g, "of", len(mains), "pass starts", [S(k, 0) for k in range(len(passes))])
    flex = []
    for lo, hi, mk in [(3, 5, "a"), (5, 8, "b"), (8, 11, "c"), (11, 15, "d"), (15, 18, "f")]:
        for s in range(lo, hi):
            for l in ln2(s): flex.append((0, l))
        flex.append((0, f"@mark{mk}"))
    if cfg.w2st:
        flex.append((0, "@waitvm wr"))
        for z in range(2):
            for l in unit_tr(z, 0, 176): flex.append((0, l.replace("v94", "v11")))
            for l in [f"@need {vq(176,16)}"] + unit_st(2, z, 176): flex.append((0, l))
    for l in set_poll_addr(15, sJF, F2S) + unpack(CB, B1P+8, 8): flex.append((0, l))
    flex.append((0, "@marke"))
    for k, (q, mod, sr, add) in enumerate([(f"s_lshl_b32 s84, s{sW}, 1", 10, 93, 0), (f"s_lshl_b32 s84, s{sW}, 1\ns_add_u32 s84, s84, 1", 10, 93, 0),
                                           (f"s_lshr_b32 s84, s{sW}, 1\ns_add_u32 s84, s84, 8", 10, 93, 0),
                                           (f"s_lshl_b32 s84, s{sW}, 1", 8, 94, 10), (f"s_lshl_b32 s84, s{sW}, 1\ns_add_u32 s84, s84, 1", 8, 94, 10)]):
        flex.append((0, q))
        flex.append((0, f"s_sub_u32 s84, s84, s{sr}\ns_cselect_b32 s85, {mod}, 0"))
        flex.append((0, f"s_add_u32 s84, s84, s85\ns_add_u32 s84, s84, {add}"))
        flex.append((0, "s_lshl_b32 s84, s84, 12"))
        if k == 2: flex.append((0, f"s_and_b32 s85, s{sW}, 1\ns_lshl_b32 s85, s85, 3\ns_add_u32 s84, s84, s85"))
        flex.append((0, f"v_add_u32 v{192+k}, s84, v9"))
    def epi1(acc, pair_tiles, m, wr):
        L = []
        q = TQ + 4*(tq[0] % 4); tq[0] += 1
        regs = [acc + (t*4 + m)*4 + r for t in pair_tiles for r in range(4)]
        for r in regs: L.append(f"v_mul_f32 v{r}, v{r}, |v{r}|")
        for k in range(len(regs)//2): L.append(f"v_cvt_pk_bf16_f32 v{q+k}, v{regs[2*k]}, v{regs[2*k+1]}")
        for k in range(len(regs)//2): L.append(f"v_pk_max_i16 v{q+k}, v{q+k}, 0")
        L.append(wr(q))
        return L
    at = S(1, 0) + 3
    for pr in range(2):
        for m in range(4):
            for l in epi1(ACA, [2*pr, 2*pr+1], m, lambda q: f"ds_write_b128 v{192+pr}, {vq(q)} offset:{m*1024}"): flex.append((at, l))
    for m in range(4):
        for l in epi1(ACA, [4], m, lambda q: f"ds_write_b64 v194, {vq(q,2)} offset:{m*1024}"): flex.append((at, l))
    flex.append((at, "@mark0"))
    at = S(2, 0) + 3
    for pr in range(2):
        for m in range(4):
            for l in epi1(ACB, [2*pr, 2*pr+1], m, lambda q: f"ds_write_b128 v{195+pr}, {vq(q)} offset:{m*1024}"): flex.append((at, l))
    flex.append((at, "@mark1"))
    if cfg.noself:
        assert cfg.p1z4 != 2 and cfg.w2st == 0
        at = S(2, 10)
        L = lines(f"""s_and_b32 s85, s{sJF}, 1
v_lshrrev_b32 v6, 3, v{vI}
v_cmp_eq_u32 s[64:65], s85, v6
s_mul_i32 s85, s{sW}, 2560
v_and_b32 v6, 7, v{vI}
v_lshl_add_u32 v6, v{vG}, 3, v6
v_lshl_add_u32 v7, v6, 3, s85
v_lshl_add_u32 v6, v6, 4, s85
v_add_u32 v8, s85, v{vL16}
v_lshl_add_u32 v11, v{vL}, 3, s85
v_add_u32 v14, 16384, v{vL16}
s_lshr_b32 s85, s{sJF}, 1""")
        for m in range(4):
            L.append(f"s_cmp_eq_u32 s85, {m}\ns_cselect_b64 s[66:67], s[64:65], 0")
            L += [f"v_cndmask_b32 v{160+m}, v{vPS}, v13, s[66:67]", f"v_cndmask_b32 v{164+m}, v{vSS}, v13, s[66:67]",
                  f"v_cndmask_b32 v{168+m}, v14, v6, s[66:67]", f"v_cndmask_b32 v{172+m}, v14, v7, s[66:67]"]
        for k in range(7): L.append(f"s_add_u32 s86, s{sJF}, {k+1}\ns_and_b32 s86, s86, 7\ns_mul_i32 s{SRC[k]}, s86, 9216")
        for l in L: flex.append((at, l))
        flex.append((at, "@marks"))
        put(S(3, 0), "@flexdones")
    at = S(3, 0)
    UT = 192
    for r in range(3):
        for l in unpack(RS[r], RH[r], RW[r]) + unpack(UT, RH[r]+RW[r], RW[r]): flex.append((at, l))
        for d in range(2*RW[r]): flex.append((at, f"v_add_f32 v{RS[r]+d}, v{RS[r]+d}, v{UT+d}"))
    if cfg.skip:
        def keep(it):
            t = it[0] if isinstance(it, tuple) else it
            tag = it[1] if isinstance(it, tuple) else None
            if "valu" in cfg.skip and re.match(r"v_lshlrev_b32 v\d+, 16,|v_and_b32 v\d+, s98|v_fma_f32|v_cvt_pk|v_mul_f32|v_pk_max|v_add_f32", t): return False
            if "dsw" in cfg.skip and t.startswith("ds_write"): return False
            if "bar" in cfg.skip and t == "s_barrier": return False
            if "pst" in cfg.skip and tag in ("p1", "p2", "p3"): return False
            if "rd" in cfg.skip and tag in ("rd", "rh"): return False
            if "w" in cfg.skip and tag == "w": return False
            if "chk" in cfg.skip and "L_slow" in t: return False
            return True
        flex = [f for f in flex if keep(f[1])]
        fixed = {g: [x for x in L if keep(x)] for g, L in fixed.items()}
        slow[:] = [x for x in slow if any(x.split(":")[0] in i.text for i in P.ins) or "chk" not in cfg.skip]
    sched(P, mains, fixed, flex, cap=cfg.cap)
    stamp("FFN done")
    for m in range(4): P.extend(epi2(128, [0, 1], m, pst(m, 1536, "p2")))
    if two and not inloop: P.add(poll_pre(vP3, vPT))
    P("@waitvm p2\ns_barrier")
    set_flag(vF3)
    stamp("F3c set")
    if two:
        if not inloop: P(poll_check(vP3, vPT) + f"\nv_add_u32 v{vP3}, 512, v{vP3}")
        P.extend(erl[nin:])
        P.add(poll_pre(vP3, vPT))
        P(f"@waitlg_all\nds_read_b128 {vq(R0[0]+28)}, v8\nds_read_b128 {vq(R0[1]+28)}, v8 offset:1024\nds_read_b64 {vq(R0[2]+14,2)}, v11 offset:2048")
        P.extend(red_sum(0) + red_sum(2))
        P(poll_check(vP3, vPT))
        stamp("F3c seen")
        P.extend(red_loads(1))
        P.extend(red_store(0) + red_store(2))
        P.extend(red_sum(1) + red_store(1))
    else:
        P.add(poll_pre(vP3, vPT))
        if cfg.noself:
            P(f"@waitlg_all\nds_read_b128 {vq(R0[0]+28)}, v8\nds_read_b128 {vq(R0[1]+28)}, v8 offset:1024\nds_read_b64 {vq(R0[2]+14,2)}, v11 offset:2048")
        P(poll_check(vP3, vPT))
        stamp("F3c seen")
        for r in cfg.rord: P.extend(red_loads(r))
        for r in cfg.rord: P.extend(red_sum(r) + red_store(r))
    if cfg.stamps:
        P("s_waitcnt vmcnt(0)")
        stamp("end")
        P(f"s_lshl_b32 s84, s2, 2\ns_add_u32 s84, s84, s{sW}\ns_lshl_b32 s84, s84, 7\ns_add_u32 s84, s84, {STAMPS}\nv_mov_b32 v6, s84\ns_mov_b64 exec, 1")
        if cfg.diag is not None:
            a, b = cfg.diag
            P(f"s_sub_u32 s84, s{STAMP0+b}, s{STAMP0+a}\ns_lshl_b32 s84, s84, 2\ns_add_u32 s84, s84, 10000\nL_spin:\ns_sleep 8\ns_memrealtime s[100:101]\ns_waitcnt lgkmcnt(0)\ns_sub_u32 s85, s100, s{STAMP0}\ns_cmp_lt_u32 s85, s84\ns_cbranch_scc1 L_spin")
        elif cfg.dbg:
            P(f"v_mov_b32 v6, 0\ns_not_b32 s84, s{STAMP0}\nv_mov_b32 v5, s84\nbuffer_atomic_umax v5, v6, {srd(sR)}, 0 offen")
            for k in range(min(nstamp[0], 15)):
                P(f"v_mov_b32 v{16+k}, s{STAMP0+k}\nbuffer_atomic_umax v{16+k}, v6, {srd(sR)}, 0 offen offset:{4*k+4}")
        else:
          for k in range(nstamp[0]):
            P(f"v_mov_b32 v5, s{STAMP0+k}\nbuffer_store_dword v5, v6, {srd(sWS)}, 0 offen offset:{4*k}")
    P("L_end:\ns_endpgm")
    for x in slow: P(x)
    P("L_code_end:")
    cfg.names = names
    return P

def cost(it):
    t = it[0] if isinstance(it, tuple) else it
    c = 0
    for l in t.split("\n"):
        if l.startswith("@") or l.endswith(":"): continue
        c += 0.67 if l.startswith("s_") else (2 if l.startswith("ds_write_b128") else 1)
    return c

def sched(P, mains, fixed, flex, cap=2, flex2=None):
    Q = [list(flex2 or []), list(flex)]; K = [0, 0]; marks = set()
    def put(it):
        t = it[0] if isinstance(it, tuple) else it
        if t.startswith("@mark"): marks.add(t[5:]); return 0
        if t.startswith("@flexdone"):
            for q in range(2):
                if any((x[1] if not isinstance(x[1], tuple) else x[1][0]) == "@mark" + t[9:] for x in Q[q]):
                    n0 = K[q]
                    while t[9:] not in marks:
                        it2 = Q[q][K[q]][1]; K[q] += 1; put(it2)
                    if K[q] - n0 > 1 and VERBOSE: print("flush", t, K[q] - n0)
            return 0
        P.add(it)
        return cost(t)
    for n, m in enumerate(mains):
        P.add(m)
        c = 0
        for it in fixed.get(n, []): c += put(it)
        for q in range(2):
            while K[q] < len(Q[q]) and Q[q][K[q]][0] <= n and (c == 0 or c + cost(Q[q][K[q]][1]) <= cap + 0.02):
                it = Q[q][K[q]][1]; K[q] += 1
                c += put(it)
    for q in range(2):
        if K[q] < len(Q[q]) and VERBOSE: print("left", len(Q[q]) - K[q])
        while K[q] < len(Q[q]):
            it = Q[q][K[q]][1]; K[q] += 1
            put(it)
VERBOSE = False

import struct
def hexf(x): return hex(struct.unpack("<I", struct.pack("<f", x))[0])

HEADER = open("cdna_kernels/" + NAME + ".s.ref").read().split("; Override launch geometry")[0]
def build(cfg, verbose=False):
    body = finalize(gen(cfg), verbose)
    k = NAME + "_kernel"
    return (HEADER + f"; @launch grid=(256,1,1) block=(256,1,1) lds={LDS_BYTES}\n"
        + f'.amdgcn_target "amdgcn-amd-amdhsa--gfx950"\n.text\n.globl {k}\n.p2align 8\n.type {k},@function\n{k}:\n' + body
        + f""".section .rodata,"a"
.p2align 6
.amdhsa_kernel {k}
  .amdhsa_next_free_vgpr 512
  .amdhsa_next_free_sgpr 102
  .amdhsa_accum_offset 256
  .amdhsa_group_segment_fixed_size 0
  .amdhsa_kernarg_size 88
  .amdhsa_user_sgpr_count 2
  .amdhsa_user_sgpr_kernarg_segment_ptr 1
  .amdhsa_system_sgpr_workgroup_id_x 1
.end_amdhsa_kernel
""")

if __name__ == "__main__":
    cfg = Cfg(); VERBOSE = True
    out = sys.argv[1]
    for a in sys.argv[2:]:
        k, v = a.split("=")
        setattr(cfg, k, eval(v))
    open(out, "w").write(build(cfg, True))
    if cfg.stamps: open(out + ".names", "w").write("|".join(cfg.names))
```

```python
import sys
from ir import *

NAME = "sequential_preLN__sliding_local_dilated__dense_activation_squared_relu__prompt"

F0S, F1G, F1S, F2G, F2S, F3A, F3B, STATS, F3C = 0x10000, 0x20000, 0x48000, 0x50000, 0x78000, 0x80000, 0xA0000, 0xC0000, 0xE0000
WQP, WOP, OP, HP, W1R, W2R, PART, STAMPS = 0x100000, 0x300000, 0x400000, 0x700000, 0xA00000, 0x1000000, 0x1600000, 0x3000000
WS_BYTES = 0x4000000
OOB = 0x40000000
LDS_BYTES = 163840
XB = 71680
R0SCR = 49152
W1SCR = 0
WOB = 0
W2SCR0 = 32768
W2SCR = 98304
XRS = 131072
VXS = 143360
XN, HB = 0, 73728
sX, sWQ, sWO, sW1, sW2, sB1, sB2, sOUT, sWS, sR = 28, 32, 36, 40, 44, 48, 52, 56, 60, 88
sW, sG2, sJ2, sGF, sJF, sTAG = 68, 69, 70, 71, 72, 73
def srd(n): return f"s[{n}:{n+3}]"
def vq(n, k=4): return f"v[{n}:{n+k-1}]"
def aq(n, k=4): return f"a[{n}:{n+k-1}]"
MF = "v_mfma_f32_16x16x32_bf16"
vL, vI, vG, vL16 = 1, 2, 3, 4

class Cfg:
    stamps = False
    nx1 = 12
    p1depth = 4
    npre = 25
    rot = True
    npre1 = 12
    wospan = 10
    f3 = (10, 14)
    pre = (8, 8, 4, 8, 26)
    wo_early = 13
    dmagap = 9
    touch = 0
    latemask = 0
    stfill = True
    isl = 0
    ct2 = 1
    w2bar = 'd'
    w2g = 30
    w2gap = 8
    w2h1 = 0
    xfl = ''
    xrfl = ''
    rdfl = ' sc1'
    noself = True
    two = (50, 300, 24, 5, 1)
    etest = 0
    dtest = 0
    pfast = ()
    pfn = 4
    pfs = 2
    nb = (1, 1)
    nearly = None
    tsleep = 0
    ssleep = 0
    snake = True
    g1ord = 0
    p522 = True
    fl3 = 0
    late = (1012, 8, 4)
    rord = (0, 1, 2)
    norp = ()
    ctouch = 2
    nq1 = 4
    qgap = 8
    poll1 = False
    psleep = 0
    f0both = True
    outfl = ''
    no1 = 8
    ogap = 3.5
    nh2 = 18
    hgap = 5
    p1early = False
    wflag = False
    tail4 = (10, 110, 85, 85, 200, 185, 20)
    scost = 200
    lcost = 80
    skip = ()
    lag = 20
    gq = (0, 0, 0, 0)
    f1s = 11
    tail = (14, 13, 232, 44, 5, 11, 18)
    tailord = 0
    backlog = 0
    tgap = 18.5
    slack = 70
    margin = 205
    wcost = 60
    rawfl = ' nt'
    r0fl = ' nt'
    wrsfl = ' sc1'
    rawat = 0
    ilv = True
    w2at = 1
    w2st = 0
    nh1 = 4
    hold = 0
    w2lead = 16
    nleft = 60
    p1z4 = 1
    nx2 = 11
    dbg = False
    diag = None
    wsbase = 0
    only = None
    cap = 2
    wsc = " sc1"
    nwo1 = 40
    stop = None

def gen(cfg):
    P = Prog()
    sG1, sJ1 = (sGF, sJF) if cfg.p1z4 == 1 else ((sG2, sJ2) if cfg.p1z4 == 0 else (65, 66))
    nstamp = [0]
    names = []
    def stamp_txt(name):
        if cfg.stamps and (cfg.only is None or name.replace(" ", "_") in cfg.only or name == "end") and not (cfg.only is None and name.startswith("@")):
            k = nstamp[0]; nstamp[0] += 1; names.append(name); assert k < 20, name
            return f"{'s_memtime' if cfg.stamps == 2 else 's_memrealtime'} s[100:101]\n@waitlg_all\ns_mov_b32 s{STAMP0+k}, s100"
        return None
    def stamp(name):
        t = stamp_txt(name)
        if t: P(t)
    STAMP0 = 4
    npoll = [0]
    def poll(vaddr, vtmp):
        k = npoll[0]; npoll[0] += 1
        P(f"""s_mov_b32 s97, 0
L_poll{k}:
s_sleep {cfg.psleep}
buffer_load_dword v{vtmp}, v{vaddr}, {srd(sWS)}, 0 offen sc1
s_add_u32 s97, s97, 1
s_waitcnt vmcnt(0)
v_cmp_ne_u32 vcc, s{sTAG}, v{vtmp}
s_cmp_gt_u32 s97, 400000
s_cbranch_scc1 L_pdone{k}
s_cbranch_vccnz L_poll{k}
L_pdone{k}:""")
    slow = []
    def poll_pre(vaddr, vtmp):
        return (f"buffer_load_dword v{vtmp}, v{vaddr}, {srd(sWS)}, 0 offen sc1", "pl")
    def poll_check(vaddr, vtmp):
        k = npoll[0]; npoll[0] += 1
        slow.append(f"""L_slow{k}:
s_mov_b32 s97, 0
L_poll{k}:
s_sleep {cfg.ssleep}
buffer_load_dword v{vtmp}, v{vaddr}, {srd(sWS)}, 0 offen sc1
s_add_u32 s97, s97, 1
s_waitcnt vmcnt(0)
v_cmp_ne_u32 vcc, s{sTAG}, v{vtmp}
s_cmp_gt_u32 s97, 400000
s_cbranch_scc1 L_back{k}
s_cbranch_vccnz L_poll{k}
s_branch L_back{k}""")
        return f"v_cmp_ne_u32 vcc, s{sTAG}, v{vtmp}\ns_cbranch_vccnz L_slow{k}\nL_back{k}:"
    def poll_fast(vaddr, vt):
        k = npoll[0]; npoll[0] += 1
        n = cfg.pfn
        ld = lambda q: f"buffer_load_dword v{vt+q}, v{vaddr}, {srd(sWS)}, 0 offen sc1"
        t = f"L_slow{k}:\ns_mov_b32 s97, 0\n"
        for q in range(n - 1): t += ld(q) + f"\ns_sleep {cfg.pfs}\n"
        t += f"L_poll{k}:\n"
        for q in range(n):
            t += ld((q + n - 1) % n) + f"\ns_waitcnt vmcnt({n-1})\nv_cmp_ne_u32 vcc, s{sTAG}, v{vt+q}\ns_cbranch_vccz L_back{k}\ns_sleep {cfg.pfs}\n"
        t += f"s_add_u32 s97, s97, 1\ns_cmp_gt_u32 s97, 200000\ns_cbranch_scc0 L_poll{k}\ns_branch L_back{k}"
        slow.append(t)
        return f"s_cmp_eq_u32 s{sW}, 0\ns_cbranch_scc1 L_slow{k}\nL_back{k}:\ns_barrier"
    def wrap(sr, step, send, sbeg):
        return f"s_add_u32 s{sr}, s{sr}, {step}\ns_cmp_eq_u32 s{sr}, s{send}\ns_cselect_b32 s{sr}, s{sbeg}, s{sr}"
    def set_flag(vaddr):
        P(f"v_mov_b32 v5, s{sTAG}")
        P(f"buffer_store_dword v5, v{vaddr}, {srd(sWS)}, 0 offen sc1", "flag")

    P("""s_cmp_ge_u32 s2, 256
s_cbranch_scc1 L_end
s_load_dwordx16 s[4:19], s[0:1], 0
s_load_dwordx4 s[20:23], s[0:1], 64
s_load_dwordx2 s[24:25], s[0:1], 80""")
    def code_touch(vd, first, sb=92, vt=62):
        P(f"""s_getpc_b64 s[{sb}:{sb+1}]
L_pc{first}:
s_and_b32 s{sb+1}, s{sb+1}, 0xffff
s_mov_b32 s{sb+2}, L_code_end - L_pc{first}
s_mov_b32 s{sb+3}, 0x00020000
s_lshr_b32 s84, s2, 3
s_lshl_b32 s84, s84, 2
v_lshrrev_b32 v{vt}, 6, v0
v_and_b32 v{vd}, 63, v0
v_lshlrev_b32 v{vd}, 7, v{vd}
v_add3_u32 v{vd}, v{vd}, v{vt}, s84
v_lshlrev_b32 v{vd}, 7, v{vd}""")
        P(f"buffer_load_dword v{vd}, v{vd}, s[{sb}:{sb+3}], 0 offen", "tch")
    if cfg.ctouch == 2: code_touch(63, 0)
    if cfg.stamps: P("s_memtime s[26:27]" if cfg.stamps == 2 else "s_memrealtime s[26:27]")
    P(f"""v_lshrrev_b32 v5, 6, v0
v_and_b32 v{vL}, 63, v0
v_readfirstlane_b32 s{sW}, v5
v_and_b32 v{vI}, 15, v0
v_lshrrev_b32 v{vG}, 4, v{vL}
v_lshlrev_b32 v{vL16}, 4, v{vL}
s_and_b32 s74, s2, 7
s_lshr_b32 s75, s2, 3
s_lshl_b32 s{sG2}, s74, 2
s_lshr_b32 s76, s75, 3
s_add_u32 s{sG2}, s{sG2}, s76
s_and_b32 s{sJ2}, s75, 7
s_lshr_b32 s{sGF}, s74, 2
s_lshl_b32 s{sGF}, s{sGF}, 4
s_lshr_b32 s76, s75, 1
s_add_u32 s{sGF}, s{sGF}, s76
s_and_b32 s{sJF}, s74, 3
s_lshl_b32 s{sJF}, s{sJF}, 1
s_and_b32 s76, s75, 1
s_add_u32 s{sJF}, s{sJF}, s76
""")
    if cfg.p1z4 == 2:
        P(f"""s_lshr_b32 s65, s74, 1
s_lshl_b32 s65, s65, 3
s_lshr_b32 s76, s75, 2
s_add_u32 s65, s65, s76
s_and_b32 s66, s74, 1
s_lshl_b32 s66, s66, 2
s_and_b32 s76, s75, 3
s_add_u32 s66, s66, s76""")
    P(f"""s_lshl_b32 s77, s{sW}, 5
s_add_u32 s77, s77, s{sG1}
s_mul_i32 s78, s{sJ1}, 144""")
    sRP, sRF, sR2 = 0, 1, 3
    P(f"""s_cmp_lt_u32 s77, 72
s_cbranch_scc0 L_r0_wo
v_mul_u32_u24 v6, 2428, v{vL}
v_lshrrev_b32 v6, 16, v6
v_mul_u32_u24 v7, 27, v6
v_sub_u32 v7, v{vL}, v7
v_mul_u32_u24 v8, 7282, v7
v_lshrrev_b32 v8, 16, v8
v_mul_u32_u24 v9, 9, v8
v_sub_u32 v9, v7, v9
v_mul_u32_u24 v6, 3456, v6
v_mul_u32_u24 v8, 1152, v8
v_lshlrev_b32 v9, 4, v9
v_add3_u32 v5, v6, v8, v9
v_cmp_gt_u32 vcc, 54, v{vL}
s_mul_i32 s80, s77, {8*3456}
s_add_u32 s80, s80, s78
s_add_u32 s81, s80, {6912-1024}
s_add_u32 s82, s81, {6912-1024}
s_add_u32 s83, s82, {6912-1024}
s_branch L_r0_join
L_r0_wo:
v_mul_u32_u24 v6, 7282, v{vL}
v_lshrrev_b32 v6, 16, v6
v_mul_u32_u24 v7, 9, v6
v_sub_u32 v7, v{vL}, v7
v_mul_u32_u24 v6, 1152, v6
v_lshl_add_u32 v5, v7, 4, v6
v_cmp_gt_u32 vcc, 36, v{vL}
s_sub_u32 s79, s77, 72""")
    for G in range(2):
        if G: P("s_add_u32 s79, s79, 36")
        P(f"""s_lshr_b32 s84, s79, 2
s_mul_i32 s84, s84, 36
s_bfe_u32 s85, s79, 0x10001
s_mul_i32 s85, s85, 20
s_add_u32 s84, s84, s85
s_and_b32 s85, s79, 1
s_lshl_b32 s85, s85, 3
s_add_u32 s84, s84, s85
s_add_u32 s85, s84, 4
s_sub_u32 s86, s79, 64
s_mul_i32 s86, s86, 72
s_add_u32 s86, s86, 16
s_add_u32 s87, s86, 36
s_cmp_lt_u32 s79, 64
s_cselect_b32 s84, s84, s86
s_cselect_b32 s85, s85, s87
s_mul_i32 s84, s84, 1152
s_mul_i32 s85, s85, 1152
s_add_u32 s84, s84, s78
s_add_u32 s85, s85, s78
s_sub_u32 s{80+2*G}, s84, {1024*(2*G)}
s_sub_u32 s{81+2*G}, s85, {1024*(2*G+1)}""")
    P(f"""s_cmp_lt_u32 s77, 108
s_cselect_b32 s80, s80, {OOB}
s_cselect_b32 s81, s81, {OOB}
s_cselect_b32 s82, s82, {OOB}
s_cselect_b32 s83, s83, {OOB}
L_r0_join:
s_nop 1
v_mov_b32 v6, {OOB}
v_cndmask_b32 v5, v6, v5, vcc
s_lshl_b32 s84, s{sW}, 12
s_add_u32 s84, s84, {R0SCR}
s_mov_b32 m0, s84
s_waitcnt lgkmcnt(0)""")
    def mksrd(d, p, n):
        P(f"s_mov_b32 s{d}, s{p}\ns_and_b32 s{d+1}, s{p+1}, 0xffff\ns_mov_b32 s{d+2}, {n}\ns_mov_b32 s{d+3}, 0x00020000")
    P(f"""s_cmp_lt_u32 s77, 72
s_cselect_b32 s{sR}, s6, s8
s_cselect_b32 s{sR+1}, s7, s9
s_mov_b32 s85, {576*1152}
s_cselect_b32 s{sR+2}, {576*3456}, s85
s_and_b32 s{sR+1}, s{sR+1}, 0xffff
s_mov_b32 s{sR+3}, 0x00020000""")
    if cfg.stamps: P(("s_memtime" if cfg.stamps == 2 else "s_memrealtime") + " s[38:39]")
    for q in range(4):
        P(f"buffer_load_dwordx4 v5, {srd(sR)}, s{80+q} offen offset:{1024*q}{cfg.r0fl} lds", "r0")
    if cfg.ctouch == 1: code_touch(63, 0)
    mksrd(sX, 4, 2048*1152)
    if cfg.wsbase: P(f"s_add_u32 s24, s24, {cfg.wsbase}\ns_addc_u32 s25, s25, 0")
    P(f"s_load_dword s{sTAG}, s[24:25], 0")
    XR, XH = 160, 232
    P(f"""s_lshl_b32 s84, s{sG1}, 6
s_and_b32 s85, s{sW}, 1
s_lshl_b32 s85, s85, 5
s_add_u32 s85, s85, s84
s_lshr_b32 s86, s{sW}, 1
s_add_u32 s85, s85, s86
s_mul_i32 s85, s85, 1152
v_lshrrev_b32 v8, 3, v{vL}
v_and_b32 v9, 7, v{vL}
v_mul_u32_u24 v6, 2304, v8
v_lshl_add_u32 v6, v9, 4, v6
v_add_u32 v6, s85, v6
v_add_u32 v7, {8*2304}, v6""")
    if cfg.rot:
        P(f"""s_and_b32 s86, s{sG2}, 3
s_mul_i32 s86, s86, 9
s_add_u32 s86, s86, 2
s_lshr_b32 s86, s86, 2
s_add_u32 s86, s86, s{sJ2}
s_sub_u32 s87, s86, 9
s_cmp_ge_u32 s86, 9
s_cselect_b32 s{sRP}, s87, s86
s_lshl_b32 s86, s{sG2}, 1
s_add_u32 s86, s86, s{sJ2}
s_and_b32 s{sR2}, s86, 7
s_and_b32 s86, s{sJF}, 1
s_mul_i32 s86, s86, 9
s_and_b32 s87, s{sGF}, 15
s_add_u32 s86, s86, s87
s_sub_u32 s87, s86, 18
s_cmp_ge_u32 s86, 18
s_cselect_b32 s{sRF}, s87, s86""")
        if cfg.p1z4 == 1: P(f"s_lshr_b32 s{sRP}, s{sRF}, 1")
        if cfg.p1z4 == 2:
            P(f"""s_and_b32 s86, s66, 3
s_mul_i32 s86, s86, 9
s_add_u32 s86, s86, 2
s_lshr_b32 s86, s86, 2
s_and_b32 s87, s65, 7
s_add_u32 s86, s86, s87
s_sub_u32 s87, s86, 9
s_cmp_ge_u32 s86, 9
s_cselect_b32 s{sRP}, s87, s86""")
    else:
        P(f"s_mov_b32 s{sRP}, 0\ns_mov_b32 s{sRF}, 0\ns_mov_b32 s{sR2}, 0")
    P(f"s_lshl_b32 s88, s{sRP}, 7")
    for q in range(1, 9):
        P(f"s_add_u32 s{88+q}, s{87+q}, 128\ns_cmp_eq_u32 s{88+q}, 1152\ns_cselect_b32 s{88+q}, 0, s{88+q}")
    xl = []
    for q in range(9):
        for hh in range(2):
            xl.append(f"buffer_load_dwordx4 {vq(XR + (q*2+hh)*4)}, v{6+hh}, {srd(sX)}, s{88+q} offen{cfg.xfl}")
    for l in xl[:cfg.nx1]: P(l, "x")
    mksrd(sWS, 24, WS_BYTES)
    if cfg.isl: P("s_branch L_aligned\nL_aligned:")
    P(f"""s_lshl_b32 s85, s{sW}, 2
v_add_u32 v10, s85, v{vG}
v_and_b32 v11, 7, v10
v_lshrrev_b32 v12, 3, v10
v_lshl_add_u32 v11, v11, 1, v12
v_add_u32 v11, s84, v11
v_subrev_u32 v11, 16, v11
v_mul_u32_u24 v11, 1152, v11
s_cmp_eq_u32 s{sG1}, 0
s_cselect_b32 s85, {OOB}, 0
s_cselect_b32 s86, 0, -1
v_and_b32 v11, s86, v11
v_or_b32 v11, s85, v11
v_mov_b32 v13, {OOB}
s_lshl_b32 s85, s{sRP}, 3
v_add_u32 v12, s85, v{vI}""")
    for q in range(5):
        P(f"""v_add_u32 v{84+q}, {16*q}, v12
v_subrev_u32 v89, 72, v{84+q}
v_min_u32 v{84+q}, v{84+q}, v89
v_lshl_add_u32 v{84+q}, v{84+q}, 4, v11""")
    P(f"v_cmp_gt_u32 vcc, 8, v{vI}\nv_cndmask_b32 v88, v13, v88, vcc")
    hl = [f"buffer_load_dwordx4 {vq(XH + 4*q)}, v{84+q}, {srd(sX)}, 0 offen{cfg.xfl}" for q in range(5)]
    P(f"""v_bfe_u32 v14, v{vL}, 2, 2
v_and_b32 v15, 3, v{vL}
s_lshl_b32 s84, s{sW}, 12
s_add_u32 s84, s84, {R0SCR}
s_cmp_lt_u32 s77, 72
s_cbranch_scc0 L_r1_wo
v_lshrrev_b32 v16, 1, v14
v_lshlrev_b32 v16, 10, v16
v_and_b32 v17, 1, v14
v_mul_u32_u24 v17, 432, v17
v_add3_u32 v16, v16, v17, s84
v_mul_u32_u24 v17, 36, v{vG}
v_and_b32 v18, 1, v{vG}
v_lshl_add_u32 v17, v18, 2, v17
v_lshl_add_u32 v17, v15, 3, v17
v_add_u32 v32, v16, v17
v_add_u32 v34, 144, v32
v_add_u32 v36, 288, v32
v_min_u32 v17, 2, v15
v_mul_u32_u24 v17, 144, v17
v_mul_u32_u24 v18, 72, v18
v_add3_u32 v38, v16, v17, v18
v_add_u32 v38, 32, v38
s_mov_b32 s85, 2048
s_lshr_b32 s86, s77, 2
s_mul_i32 s87, s{sJ1}, 72
s_add_u32 s86, s86, s87
s_mul_i32 s86, s86, 3584
s_add_u32 s86, s86, {WQP}
s_and_b32 s87, s77, 3
v_mul_u32_u24 v16, {18*3584}, v{vG}
v_lshl_add_u32 v16, v{vI}, 4, v16
s_lshl_b32 s79, s87, 8
s_add_u32 s79, s79, s86
v_add_u32 v40, s79, v16
v_add_u32 v41, 1024, v40
v_add_u32 v42, 2048, v40
v_lshrrev_b32 v16, 1, v15
v_lshl_add_u32 v16, v{vG}, 1, v16
v_mul_u32_u24 v16, {18*3584}, v16
v_and_b32 v17, 1, v15
v_lshl_add_u32 v17, v14, 1, v17
v_lshl_add_u32 v16, v17, 4, v16
s_lshl_b32 s79, s87, 7
s_add_u32 s79, s79, s86
s_add_u32 s79, s79, 3072
v_add_u32 v16, s79, v16
v_cmp_gt_u32 vcc, 32, v{vL}
v_cndmask_b32 v43, v13, v16, vcc
s_branch L_r1_join
L_r1_wo:
v_mul_u32_u24 v16, 144, v14
v_add_u32 v16, s84, v16
v_lshrrev_b32 v17, 1, v{vG}
v_lshlrev_b32 v17, 6, v17
v_and_b32 v18, 1, v{vG}
v_lshl_add_u32 v17, v18, 3, v17
v_lshl_add_u32 v17, v15, 4, v17
v_add_u32 v32, v16, v17
v_and_b32 v17, 1, v15
v_lshl_add_u32 v34, v17, 3, v16
v_add_u32 v34, 128, v34
v_add_u32 v36, 2048, v32
v_add_u32 v38, 2048, v34
s_mov_b32 s85, 1024
v_lshlrev_b32 v16, 10, v{vG}
v_lshl_add_u32 v16, v{vI}, 4, v16
v_cmp_gt_u32 vcc, 8, v{vL}
v_cndmask_b32 v17, v13, v{vL16}, vcc
s_sub_u32 s79, s77, 72""")
    for G in range(2):
        if G: P("s_add_u32 s79, s79, 36")
        P(f"""s_lshr_b32 s86, s79, 2
s_mul_i32 s87, s{sJ1}, 18
s_add_u32 s86, s86, s87
s_mul_i32 s86, s86, 4608
s_add_u32 s86, s86, {WOP}
s_cmp_lt_u32 s77, 108
s_cselect_b32 s86, s86, {OOB}
s_and_b32 s87, s79, 3
s_lshl_b32 s76, s87, 8
s_add_u32 s76, s76, s86
v_add_u32 v{40+2*G}, s76, v16
s_lshl_b32 s76, s87, 7
s_add_u32 s76, s76, s86
s_add_u32 s76, s76, 4096
v_add_u32 v{41+2*G}, s76, v17""")
    P("L_r1_join:\ns_nop 1")
    for t in range(4): P(f"v_add_u32 v{33+2*t}, s85, v{32+2*t}")
    mksrd(sW1, 12, 576*9216); mksrd(sW2, 16, 4608*1152); mksrd(sB1, 14, 9216); mksrd(sB2, 18, 1152); mksrd(sOUT, 20, 2048*1152)
    if cfg.dbg: mksrd(sR, 22, 256)
    if cfg.stamps: P("@waitlg_all\ns_mov_b32 s4, s26"); P("s_mov_b32 s5, s38"); nstamp[0] = 2; names.append("start"); names.append("r0 issue")
    P("s_mov_b32 s99, 0x3f803f80\ns_mov_b32 s98, 0xffff0000")
    if cfg.touch:
        P(f"v_lshlrev_b32 v90, 21, v{vL}\nv_min_u32 v90, {0x2800000}, v90")
        P(f"buffer_load_dword v60, v90, {srd(sWS)}, 0 offen", "tch")
        if cfg.touch > 1:
            P(f"buffer_load_dword v61, v90, {srd(sW1)}, 0 offen", "tch")
            P(f"buffer_load_dword v62, v90, {srd(sW2)}, 0 offen", "tch")
            P(f"buffer_load_dword v63, v90, {srd(sOUT)}, 0 offen", "tch")
    UP = {(1, 0): (32, 33, 34), (1, 1): (35, 36, 37), (2, 0): (24, 25, 34), (2, 1): (26, 27, 37)}
    for z in range(2):
        a1, d1, st = UP[(1, z)]; a2, d2, _ = UP[(2, z)]
        P(f"""s_add_u32 s84, s77, {128*z}
s_mul_i32 s85, s84, 7282
s_lshr_b32 s85, s85, 16
s_mul_i32 s86, s85, 9
s_sub_u32 s86, s84, s86
s_lshl_b32 s76, s86, 7
s_mul_i32 s87, s85, {32*9216}
s_add_u32 s87, s87, s76
s_mul_i32 s75, s{sJ1}, 1152
s_add_u32 s{a1}, s87, s75
s_mul_i32 s87, s85, {32*1152}
s_add_u32 s87, s87, s76
s_mul_i32 s75, s{sJ1}, {576*1152}
s_add_u32 s{a2}, s87, s75
s_lshr_b32 s79, s85, 2
s_lshl_b32 s79, s79, 1
s_and_b32 s75, s85, 1
s_add_u32 s79, s79, s75
s_add_u32 s75, s79, 10
s_bitcmp1_b32 s85, 1
s_cselect_b32 s79, s75, s79
s_lshr_b32 s87, s86, 1
s_mul_i32 s87, s87, 162
s_and_b32 s76, s86, 1
s_lshl_b32 s76, s76, 2
s_add_u32 s87, s87, s76
s_cmp_eq_u32 s86, 8
s_cselect_b32 s87, 8, s87
s_cselect_b32 s{st}, 162, 1
s_lshl_b32 s{st}, s{st}, 10
s_mul_i32 s76, s{sJ1}, 648
s_add_u32 s87, s87, s76
s_mul_i32 s75, s85, 9
s_add_u32 s75, s75, s87
s_lshl_b32 s75, s75, 10
s_add_u32 s{d1}, s75, {W1R}
s_mul_i32 s75, s79, 9
s_add_u32 s75, s75, s87
s_lshl_b32 s75, s75, 10
s_add_u32 s{d2}, s75, {W2R}""")
        if z:
            P("s_cmp_lt_u32 s84, 162")
            for r in (a1, d1, a2, d2): P(f"s_cselect_b32 s{r}, s{r}, {OOB}")
    P(f"""v_mul_u32_u24 v92, 9216, v8
v_lshl_add_u32 v92, v9, 4, v92
v_mul_u32_u24 v93, 1152, v8
v_lshl_add_u32 v93, v9, 4, v93
v_lshl_add_u32 v94, v{vG}, 3, v14
v_lshlrev_b32 v94, 7, v94
v_lshl_add_u32 v94, v15, 4, v94
s_lshl_b32 s84, s{sW}, 13
v_add_u32 v94, s84, v94""")
    def unit_dma(mat, z, scr, vs=None):
        if mat in cfg.norp: return []
        a = UP[(mat, z)][0]; st = 9216 if mat == 1 else 1152
        L = [f"s_lshl_b32 s84, s{sW}, 13\ns_add_u32 s84, s84, {scr + 4096*z}\ns_mov_b32 m0, s84"]
        for q in range(4):
            if q: L.append(f"s_add_u32 s{a}, s{a}, {8*st - 1024}")
            L.append((f"buffer_load_dwordx4 v{vs or 91+mat}, {srd(sW1 if mat == 1 else sW2)}, s{a} offen offset:{1024*q}{cfg.rawfl} lds", "wr"))
        return L
    def unit_tr(z, scr, vt):
        return [f"ds_read_b64_tr_b16 {vq(vt+4*t+2*hi,2)}, v94 offset:{scr + 4096*z + 64*(t>>1) + 8*(t&1) + 512*hi}" for t in range(4) for hi in range(2)]
    def unit_st(mat, z, vt):
        if mat in cfg.norp: return []
        _, d, st = UP[(mat, z)]; L = []
        for t in range(4):
            if t: L.append(f"s_add_u32 s{d}, s{d}, s{st}")
            L.append((f"buffer_store_dwordx4 {vq(vt+4*t)}, v{vL16}, {srd(sWS)}, s{d} offen{cfg.wrsfl}", "wrs"))
        return L
    MS, MP, ME, MO = 96, 100, 104, 108
    def emit_masks():
        P(f"""v_mov_b32 v66, {hexf(-1e30)}
v_lshlrev_b32 v64, 2, v{vG}
v_sub_u32 v64, v64, v{vI}
s_cmp_eq_u32 s{sG1}, 0
s_cselect_b32 s84, 100, 0
v_cmp_gt_u32 s[80:81], 2, v{vG}""")
        for r in range(4):
            P(f"""v_add_u32 v65, {r+7}, v64
v_cmp_gt_u32 vcc, 8, v65
v_add_u32 v65, {r}, v64
v_subrev_u32 v67, s84, v65
v_cndmask_b32 v{MS+r}, v66, 0, vcc
v_cmp_lt_i32 vcc, 8, v65
v_cmp_lt_i32 s[82:83], 8, v67
v_cmp_lt_i32 s[86:87], 0, v67
v_cndmask_b32 v{MP+r}, v66, 0, vcc
s_and_b64 s[86:87], s[86:87], s[80:81]
v_cndmask_b32 v{MO+r}, v66, 0, s[82:83]
v_cndmask_b32 v{ME+r}, v66, 0, s[86:87]""")
    if not cfg.latemask: emit_masks()
    P("@waitvm r0")
    stamp("r0 landed")
    for t in range(4):
        P(f"ds_read_b64_tr_b16 {vq(16+4*t,2)}, v{32+2*t}")
        P(f"ds_read_b64_tr_b16 {vq(18+4*t,2)}, v{33+2*t}")
    for t in range(4):
        P(f"buffer_store_dwordx4 {vq(16+4*t)}, v{40+t}, {srd(sWS)}, 0 offen sc1", "r0s")
    stamp("@r0 st")
    xrest = xl[cfg.nx1:] + hl
    P(f"@waitlg_all\ns_add_u32 s{sTAG}, s{sTAG}, 0x9E3779B9")
    P(f"""s_lshl_b32 s84, s{sJ1}, 12
s_add_u32 s84, s84, {F0S}
s_lshl_b32 s85, s{sG1}, 2
s_add_u32 s85, s85, s84
v_mov_b32 v44, s85
v_cmp_eq_u32 vcc, 0, v0
v_cndmask_b32 v44, v13, v44, vcc
v_and_b32 v45, 31, v{vL}
v_lshl_add_u32 v45, v45, 2, s84
s_lshl_b32 s84, s{sJ2 if cfg.f0both else sJ1}, 12
s_add_u32 s84, s84, {F0S - 128}
v_lshl_add_u32 v5, v{vL}, 2, s84
v_cmp_gt_u32 vcc, 32, v{vL}
v_cndmask_b32 v45, v5, v45, vcc""")
    def stats(groups, acc):
        order = sorted((r, gi, k) for gi, regs in enumerate(groups) for k, r in enumerate(regs))
        L = []
        for r, gi, k in order:
            a = acc + 4*gi + 2*(k & 1)
            c0 = "0" if k < 2 else f"v{a}"; c1 = "0" if k < 2 else f"v{a+1}"
            L.append(f"v_dot2_f32_bf16 v{a}, v{r}, s99, {c0}\nv_dot2_f32_bf16 v{a+1}, v{r}, v{r}, {c1}")
        for gi in range(len(groups)):
            a = acc + 4*gi
            L.append(f"v_add_f32 v{a}, v{a}, v{a+2}\nv_add_f32 v{a+1}, v{a+1}, v{a+3}")
        return L
    def finish_stats(A):
        for t in [f"v_mul_f32 v@0, {hexf(1/576)}, v@0", f"v_mul_f32 v@2, v@0, v@0", f"v_mul_f32 v@1, {hexf(1/576)}, v@1", "v_sub_f32 v@1, v@1, v@2",
                  "v_max_f32 v@1, 0, v@1", f"v_add_f32 v@1, {hexf(1e-5)}, v@1", "v_rsq_f32 v@1, v@1", "v_mul_f32 v@2, v@0, -v@1",
                  "v_mov_b32 v@0, v@1", "v_mov_b32 v@3, v@2"]:
            for a in A: P(t.replace("@0", str(a)).replace("@1", str(a+1)).replace("@2", str(a+2)).replace("@3", str(a+3)))
    def normalize(q, a, t, pk=True):
        L = []
        for d in range(4):
            L.append(f"v_lshlrev_b32 v{t+2*d}, 16, v{q+d}")
            L.append(f"v_and_b32 v{t+2*d+1}, s98, v{q+d}")
        if pk:
            for d in range(4): L.append(f"v_pk_fma_f32 {vq(t+2*d,2)}, {vq(t+2*d,2)}, {vq(a,2)}, {vq(a+2,2)}")
        else:
            for d in range(8): L.append(f"v_fma_f32 v{t+d}, v{t+d}, v{a}, v{a+2}")
        for d in range(4): L.append(f"v_cvt_pk_bf16_f32 v{q+d}, v{t+2*d}, v{t+2*d+1}")
        return L
    ST = 144; NT = 112
    st = stats([[XR + (q*2+hh)*4 + d for q in range(9) for d in range(4)] for hh in range(2)] + [[XH + k for k in range(20)]], ST)
    raw = {1: [], 2: []}
    for z in range(2):
        raw[1] += unit_dma(1, z, W1SCR); raw[2] += unit_dma(2, z, W2SCR0)
    raw[1].append(f"s_mul_i32 s84, s{sJF}, 1152\nv_lshlrev_b32 v5, 7, v{vI}")
    raw[1].append((f"buffer_load_dword v252, v5, {srd(sB1)}, s84 offen", "wr"))
    raw[1].append((f"buffer_load_dword v253, v5, {srd(sB2)}, 0 offen", "wr"))
    k = 0
    for n, l in enumerate(xrest + [None]):
        if n == cfg.nx2:
            if cfg.latemask == 1: emit_masks()
            if cfg.stfill and k < 4*cfg.nx1: P.extend(st[k:4*cfg.nx1]); k = 4*cfg.nx1
            stamp("@pre-ack")
            P("@waitvm r0s")
            stamp("@acked")
            P("s_barrier")
            set_flag(44)
            stamp("F0 set")
        if l is None: break
        P(l, "x")
        if cfg.nx1 + n + 1 - k//4 > cfg.lag: P.extend(st[k:k+4]); k += 4
    if cfg.rawat == 0: P.extend(raw[1])
    P.extend(st[k:])
    if cfg.rawat == 1: P.extend(raw[1])
    if cfg.w2at == 4: P.extend(raw[2])
    for mod in ["quad_perm:[1,0,3,2]", "quad_perm:[2,3,0,1]", "row_half_mirror"]:
        for gi in range(3):
            for k in range(2):
                a = ST + 4*gi + k
                P(f"v_add_f32_dpp v{a}, v{a}, v{a} {mod} row_mask:0xf bank_mask:0xf")
    for k in range(2): P(f"v_add_f32_dpp v{ST+8+k}, v{ST+8+k}, v{ST+8+k} row_mirror row_mask:0xf bank_mask:0xf")
    finish_stats([ST, ST+4, ST+8])
    stamp("LN1 stats")
    P(f"""v_lshrrev_b32 v156, 2, v9
v_mul_u32_u24 v156, 5120, v156
v_and_b32 v157, 3, v9
v_lshl_add_u32 v156, v157, 8, v156
v_xor_b32 v157, v8, v9
v_lshl_add_u32 v156, v157, 4, v156
s_lshl_b32 s84, s{sW}, 10
s_add_u32 s84, s84, {XB}
v_add_u32 v156, s84, v156
v_add_u32 v157, {10240*5}, v156
v_lshrrev_b32 v158, 2, v{vI}
v_mul_u32_u24 v158, 5120, v158
v_lshl_add_u32 v158, v15, 8, v158
v_xor_b32 v159, v10, v9
v_lshl_add_u32 v158, v159, 4, v158
v_add_u32 v158, {XB + 4096}, v158
v_add_u32 v159, {20480*3}, v158""")
    ntc = [0]; NB = cfg.nb[0] + cfg.nb[1]
    def ln1_batch(b):
        L = []
        for q in range(2*b, min(2*b+2, 9)):
            for hh in range(2):
                r = XR + (q*2+hh)*4
                if not cfg.dtest: L += normalize(r, ST + 4*hh, NT + 8*(ntc[0] & 1), b < NB); ntc[0] += 1
                L.append(f"ds_write_b128 v{156 if q < 5 else 157}, {vq(r)} offset:{10240*(q % 5) + 128*hh}")
        if not cfg.dtest: L += normalize(XH + 4*b, ST + 8, NT + 8*(ntc[0] & 1), b < NB); ntc[0] += 1
        wr = f"ds_write_b128 v{158 if b < 3 else 159}, {vq(XH+4*b)} offset:{20480*(b % 3)}"
        if b == 4: wr = "s_mov_b32 exec_lo, 0x00ff00ff\ns_mov_b32 exec_hi, 0x00ff00ff\n" + wr + "\ns_mov_b64 exec, -1"
        L.append(wr)
        return L
    if cfg.rawat != 4:
        for b_ in range(cfg.nb[0]): P.extend(ln1_batch(b_))
    P(f"""s_lshl_b32 s74, s{sJ1}, 2
s_add_u32 s74, s74, s{sW}
s_mul_i32 s74, s74, {18*3584}
s_add_u32 s74, s74, {WQP}
s_add_u32 s75, s74, {18*3584}
s_mul_i32 s78, s{sRP}, {2*3584}
s_add_u32 s78, s78, s74
v_lshlrev_b32 v7, 7, v{vG}
v_lshl_add_u32 v7, v{vI}, 4, v7
v_cmp_gt_u32 vcc, 6, v{vI}
v_cndmask_b32 v7, v13, v7, vcc
v_xor_b32 v8, v{vI}, v{vG}
v_lshlrev_b32 v8, 4, v8
v_lshl_add_u32 v8, v{vG}, 8, v8
v_add_u32 v8, {XB}, v8
v_xor_b32 v9, 64, v8
v_add_u32 v10, 46080, v8
v_add_u32 v11, 46080, v9""")
    def warm(k):
        if cfg.isl: P(f"s_mov_b64 exec, 0\ns_branch L_chain{k}\nL_chainend{k}:\ns_mov_b64 exec, -1")
    warm(0)
    if cfg.latemask == 2: emit_masks()
    stamp("@LN1 b0")
    if cfg.poll1: P(f"s_waitcnt vmcnt(0)\ns_cmp_lg_u32 s{sW}, 0\ns_cbranch_scc1 L_pdone{npoll[0]}")
    poll(45, 5)
    if cfg.poll1: P("s_barrier")
    stamp("F0 seen")
    QA, KA, EA, VA = 16, 32, 52, 72
    WR = 64
    D = cfg.p1depth
    def wq_loads(s):
        b = WR + (s % D)*16
        L = [(f"buffer_load_dwordx4 {aq(b+4*t)}, v{vL16}, {srd(sWS)}, s78 offen offset:{1024*t}{cfg.wsc}", "wq") for t in range(3)]
        L.append((f"buffer_load_dwordx4 {aq(b+12)}, v7, {srd(sWS)}, s78 offen offset:3072{cfg.wsc}", "wq"))
        if s < 17: L.append(wrap(78, 3584, 75, 74))
        return L
    def x_reads(s):
        b = (s % 2)*20
        reg = (8 if s % 2 == 0 else 9) + (2 if s >= 9 else 0)
        return [f"ds_read_b128 {aq(b+4*m)}, v{reg} offset:{((s % 9)*5 + m)*1024}" for m in range(5)]
    def join(L):
        out = []; pend = ""
        for x in L:
            if isinstance(x, tuple): out.append((pend + x[0], x[1])); pend = ""
            else: pend += x + "\n"
        if pend: out.append(pend.strip())
        return out
    if cfg.rawat == 4:
        mem = join(sum([wq_loads(s) for s in range(D-1)], []))
        tail_ = [mem.pop()] if not isinstance(mem[-1], tuple) else []
        mem += tail_ + join(raw[1]) + (join(raw[2]) if cfg.w2at == 6 else [])
        work = ln1_batch(0) + ln1_batch(1)
        for l in mem[:cfg.nq1]: P.add(l)
        mem = mem[cfg.nq1:]
        for n, l in enumerate(work):
            P.add(l)
            if n % cfg.qgap == cfg.qgap - 1 and mem: P.add(mem.pop(0))
        for l in mem: P.add(l)
    else:
        for s in range(D-1): P.extend(wq_loads(s))
        if cfg.rawat == 2: P.extend(raw[1])
        for b_ in range(cfg.nb[0], NB): P.extend(ln1_batch(b_))
    P("@waitlg_all\ns_barrier")
    P.extend(x_reads(0))
    stamp("GEMM1 start")
    P("L_markA:")
    def lines(t): return t.split("\n")
    def own_flag(vd, base, sa, sha, sb, shb):
        return [f"s_lshl_b32 s86, s{sa}, {sha}", f"s_lshl_b32 s87, s{sb}, {shb}", "s_add_u32 s86, s86, s87", f"s_add_u32 s86, s86, {base}",
                f"v_mov_b32 v{vd}, s86", f"v_cmp_eq_u32 vcc, 0, v0\nv_cndmask_b32 v{vd}, v13, v{vd}, vcc"]
    def grp_poll_addr(vd, sg, base):
        return lines(f"""s_lshl_b32 s86, s{sg}, 12
s_add_u32 s86, s86, {base}
v_and_b32 v{vd}, 7, v{vL}
v_lshl_add_u32 v{vd}, v{vd}, 4, s86""")
    def set_poll_addr(vd, sj, base):
        return lines(f"""s_lshl_b32 s86, s{sj}, 12
s_add_u32 s86, s86, {base}
v_and_b32 v{vd}, 31, v{vL}
v_lshl_add_u32 v{vd}, v{vd}, 2, s86""")
    def flag_items(vaddr):
        return [f"v_mov_b32 v5, s{sTAG}", (f"buffer_store_dword v5, v{vaddr}, {srd(sWS)}, 0 offen sc1", "flag")]
    def unpack(dst, src, n):
        return sum([[f"v_lshlrev_b32 v{dst+2*k}, 16, v{src+k}", f"v_and_b32 v{dst+2*k+1}, s98, v{src+k}"] for k in range(n)], [])
    QO, KO, VO, XO = 112, 128, 148, 160
    flex = []
    T0 = 128
    if NB <= 2:
        for l in ln1_batch(2): flex.append((0, l))
    flex.append((0, "@mark0"))
    flex2 = []
    q1, q2, q3, q4 = cfg.gq
    if cfg.rawat == 3:
        for k, l in enumerate(join(raw[1])): flex2.append((int(19*q1) + 2*k, l))
    def repack(mat, scr, g0):
        flex2.append((g0, "@waitvm wr"))
        for z in range(2):
            for l in unit_tr(z, scr, T0): flex2.append((g0 + 24*z, l))
            for k, l in enumerate(join(unit_st(mat, z, T0))): flex2.append((g0 + 24*z + 8 + 4*k, l))
    if cfg.w2at == 3 and q3 < q2:
        for k, l in enumerate(join(raw[2])): flex2.append((int(19*q3) + 2*k, l))
    repack(1, W1SCR, int(19*q2))
    if cfg.w2at >= 3:
        if q3 >= q2 and cfg.w2at == 3:
            for k, l in enumerate(join(raw[2])): flex2.append((int(19*q3) + 2*k, l))
        repack(2, W2SCR0, int(19*q4))
    flex2.append((0, "@markb"))
    for l in (ln1_batch(3) if NB <= 3 else []) + own_flag(95, F1S, sJ1, 12, sG1, 2): flex.append((0, l))
    flex.append((0, "@mark1"))
    if NB <= 4:
        for l in ln1_batch(4): flex.append((0, l))
    flex.append((0, "@mark2"))
    pre = lines(f"""s_lshl_b32 s84, s{sW}, 10
s_add_u32 s84, s84, {VXS}
v_lshl_add_u32 v234, v{vI}, 1, s84
v_add_u32 v235, 512, v234
v_cmp_eq_u32 vcc, 1, v{vG}@@v_cndmask_b32 v234, v235, v234, vcc
v_lshl_add_u32 v235, v{vL}, 2, s84
v_min_u32 v236, 2, v{vI}
v_mul_u32_u24 v236, 160, v236
v_lshl_add_u32 v236, v{vG}, 3, v236
v_add_u32 v236, s84, v236
v_mov_b32 v237, s99
s_mul_i32 s84, s{sG1}, 73728
s_add_u32 s84, s84, {OP}
s_lshl_b32 s85, s{sJ1}, 1
s_lshr_b32 s86, s{sW}, 1
s_add_u32 s85, s85, s86
s_lshl_b32 s85, s85, 12
s_and_b32 s86, s{sW}, 1
s_lshl_b32 s86, s86, 9
s_add_u32 s85, s85, s86
s_add_u32 s95, s85, s84
s_lshl_b32 s87, s{sJ1}, 2
s_add_u32 s87, s87, s{sW}
s_lshl_b32 s87, s87, 8
s_add_u32 s87, s87, 65536
s_add_u32 s96, s87, s84
v_and_b32 v232, 1, v{vG}
v_lshlrev_b32 v232, 10, v232
v_lshrrev_b32 v233, 1, v{vG}
v_lshl_add_u32 v232, v233, 8, v232
v_lshl_add_u32 v232, v{vI}, 4, v232
v_lshlrev_b32 v233, 2, v{vL}
s_mul_i32 s79, s{sJ2}, 82944
s_add_u32 s79, s79, {WOP}
s_lshl_b32 s84, s{sW}, 1
s_add_u32 s85, s84, s{sR2}
s_and_b32 s86, s85, 7
s_mul_i32 s86, s86, 9216
s_add_u32 s80, s86, s79
s_add_u32 s85, s85, 1
s_and_b32 s86, s85, 7
s_mul_i32 s86, s86, 9216
s_add_u32 s81, s86, s79
s_lshl_b32 s84, s84, 10
s_add_u32 s84, s84, 73728
s_add_u32 s82, s84, s79
s_mov_b32 s83, s84
s_mul_i32 s76, s{sW}, 18432
s_lshl_b32 s84, s{sG2}, 6
s_and_b32 s85, s{sW}, 1
s_lshl_b32 s85, s85, 5
s_add_u32 s85, s85, s84
s_lshr_b32 s86, s{sW}, 1
s_add_u32 s85, s85, s86
s_mul_i32 s85, s85, 1152
s_mul_i32 s86, s{sJ2}, 144
s_add_u32 s79, s85, s86
v_mul_u32_u24 v238, 7282, v{vL}
v_lshrrev_b32 v238, 16, v238
v_mul_u32_u24 v239, 9, v238
v_sub_u32 v239, v{vL}, v239
v_mul_u32_u24 v238, 2304, v238
v_lshl_add_u32 v238, v239, 4, v238
v_cmp_gt_u32 vcc, 54, v{vL}@@v_cndmask_b32 v238, v13, v238, vcc
s_mul_i32 s77, s{sW}, 3072
s_add_u32 s77, s77, {XRS}
s_mov_b32 s94, {hexf((18 ** -0.5) * 1.4426950408889634)}""") + set_poll_addr(15, sJF, F1S)
    pre += [f"v_mov_b32 v{KO+4*m+3}, 0" for m in range(5)] + [f"v_mov_b32 v{QO+4*m+3}, 0" for m in range(4)]
    for l in pre: flex.append((19*cfg.f1s + 1, l.replace("@@", "\n")))
    mains = []; fixed = {}
    for s in range(18):
        wb = WR + (s % D)*16; xb = (s % 2)*20
        base = len(mains)
        for m in range(5):
            x = aq(xb + 4*m)
            def acc(a): return (vq(a), "0" if s == 0 else vq(a))
            if cfg.g1ord == 0:
                d, c = acc(KA + 4*m); mains.append(f"{MF} {d}, {aq(wb+4)}, {x}, {c}")
                d, c = acc(VA + 4*m); mains.append(f"{MF} {d}, {x}, {aq(wb+8)}, {c}")
                d, c = acc(EA + 4*m); mains.append(f"{MF} {d}, {aq(wb+12)}, {x}, {c}" if not (cfg.etest and m in (1, 3) and s) else "s_nop 0")
                if m < 4:
                    d, c = acc(QA + 4*m); mains.append(f"{MF} {d}, {aq(wb)}, {x}, {c}")
                elif cfg.dtest == 2: fixed.setdefault(len(mains) - 1, []).append(f"{MF} v[244:247], {aq(wb)}, {x}, 0")
        if cfg.g1ord == 1:
            def acc(a): return (vq(a), "0" if s == 0 else vq(a))
            for m in range(5):
                d, c = acc(KA + 4*m); mains.append(f"{MF} {d}, {aq(wb+4)}, {aq(xb+4*m)}, {c}")
            for m in range(4, -1, -1):
                d, c = acc(EA + 4*m); mains.append(f"{MF} {d}, {aq(wb+12)}, {aq(xb+4*m)}, {c}")
            for m in range(4):
                d, c = acc(QA + 4*m); mains.append(f"{MF} {d}, {aq(wb)}, {aq(xb+4*m)}, {c}")
            for m in range(5):
                d, c = acc(VA + 4*m); mains.append(f"{MF} {d}, {aq(xb+4*m)}, {aq(wb+8)}, {c}")
        t_ = stamp_txt(f"@q{s}") if s else None
        if t_: fixed.setdefault(base - 1, []).append(t_)
        if s == 7 and NB <= 2: fixed.setdefault(base, []).extend(["@flexdone0", "@waitlg_all", "s_barrier"])
        fb_ = ["@flexdoneb", "@waitvm wrs"]
        if s == 11: fixed.setdefault(base, []).extend(["@flexdone1"] + (fb_ if cfg.f1s == 11 else []) + ["@waitlg_all", "s_barrier"] + (flag_items(95) if cfg.f1s == 11 else []))
        if s == 15: fixed.setdefault(base, []).extend(["@flexdone2"] + (fb_ if cfg.f1s == 15 else []) + ["@waitlg_all", "s_barrier"] + (flag_items(95) if cfg.f1s == 15 else []))
        if s + 1 < 18:
            for k, l in enumerate(x_reads(s+1)): fixed.setdefault(base + 1 + 2*k, []).append(l)
            fixed.setdefault(base + 18, []).append(f"@need {aq(WR + ((s+1) % D)*16, 16)} {aq(((s+1) % 2)*20, 20)}")
        if s + D - 1 < 18:
            for k, l in enumerate(wq_loads(s + D - 1)): fixed.setdefault(base + [2, 6, 10, 12, 14][k], []).append(l)
    dma = []
    for seg in range(2):
        for k in range(9):
            it = ""
            if k % 4 == 0:
                it = f"s_add_u32 s84, s76, {seg*9216 + 1024*k}\ns_mov_b32 m0, s84\n"
                if k: it += f"s_add_u32 s{80+seg}, s{80+seg}, 4096\n"
            dma.append((it + f"buffer_load_dwordx4 v{vL16}, {srd(sWS)}, s{80+seg} offen offset:{1024*(k % 4)} sc1 lds", "wo"))
    tail3 = [(("s_mov_b32 m0, s83\n" if k == 0 else "") + f"buffer_load_dwordx4 v{vL16}, {srd(sWS)}, s82 offen offset:{1024*k} sc1 lds", "wo") for k in range(3)]
    xres3 = [(("s_mov_b32 m0, s77\n" if k == 0 else f"s_add_u32 s79, s79, {13824 - 1024}\n") + f"buffer_load_dwordx4 v238, {srd(sX)}, s79 offen offset:{1024*k}{cfg.xrfl} lds", "wo") for k in range(3)]
    ne = cfg.wo_early
    if not cfg.f0both:
        for l in set_poll_addr(240, sJ2, F0S): flex.append((0, l))
        flex.append((0, poll_pre(240, 241)))
        flex.append((19*15, poll_check(240, 241)))
    for k in range(ne): flex.append((max(19*(18 - (ne*5 + 18)//19) + 5*k, 19*cfg.f1s + 1), dma[k]))
    sched(P, mains, fixed, flex, flex2=flex2)
    stamp("GEMM1 done")
    P("s_barrier")
    A = Prog()
    A(f"s_mov_b32 exec_hi, 0xffff\nds_write_b32 v235, v237 offset:320\ns_mov_b32 exec_hi, -1")
    if cfg.dtest == 2:
        for k in range(150): A(f"v_mul_f32 v{KA + k % 20}, 1.0, v{KA + k % 20}")
    for m in range(5):
        r = QO + 4*m + 2 if m < 4 else 172
        A(f"v_cvt_pk_bf16_f32 v{r}, v{EA+4*m}, v{EA+4*m+1}")
        A(f"ds_write_b16 v234, v{r} offset:{32*m}\nds_write_b16_d16_hi v234, v{r} offset:{160+32*m}")
    SA = 176
    prev = [4, 0, 4, 2]; pmask = [ME, MP, MO, MP]
    def kop(m): A(f"v_cvt_pk_bf16_f32 v{KO+4*m}, v{KA+4*m}, v{KA+4*m+1}\nv_cvt_pk_bf16_f32 v{KO+4*m+1}, v{KA+4*m+2}, v{KA+4*m+3}\nv_cvt_pk_bf16_f32 v{KO+4*m+2}, v{EA+4*m+2}, v{EA+4*m+3}")
    def qop(m): A(f"v_cvt_pk_bf16_f32 v{QO+4*m}, v{QA+4*m}, v{QA+4*m+1}\nv_cvt_pk_bf16_f32 v{QO+4*m+1}, v{QA+4*m+2}, v{QA+4*m+3}")
    kop(4)
    for m in range(4):
        qop(m); kop(m)
        if m: A(f"{MF} {vq(SA+8*(m-1)+4)}, {vq(KO+4*(m-1))}, {vq(QO+4*(m-1))}, {vq(MS)}")
        A(f"{MF} {vq(SA+8*m)}, {vq(KO+4*prev[m])}, {vq(QO+4*m)}, {vq(pmask[m])}")
    vorder = [4, 0, 1, 4, 2, 3]
    for k, m in enumerate(vorder):
        A(f"v_cvt_pk_bf16_f32 v{VO+2*k}, v{VA+4*m}, v{VA+4*m+1}\nv_cvt_pk_bf16_f32 v{VO+2*k+1}, v{VA+4*m+2}, v{VA+4*m+3}")
        if k == 0: A(f"{MF} {vq(SA+28)}, {vq(KO+12)}, {vq(QO+12)}, {vq(MS)}")
    A("@waitlg_all")
    for k, m in enumerate(vorder): A(f"ds_read_b64 {vq(XO+2*k,2)}, v236 offset:{32*m}")
    MX = 208
    for m in range(4):
        s = SA + 8*m
        A(f"v_max3_f32 v{MX+m}, v{s}, v{s+1}, v{s+2}\nv_max3_f32 v{MX+4+m}, v{s+3}, v{s+4}, v{s+5}")
    for m in range(4):
        s = SA + 8*m
        A(f"v_max3_f32 v{MX+m}, v{MX+m}, v{s+6}, v{s+7}")
    for m in range(4): A(f"v_max_f32 v{MX+m}, v{MX+m}, v{MX+4+m}")
    A(f"""v_permlane16_swap_b32 v{MX}, v{MX+1}
v_permlane16_swap_b32 v{MX+2}, v{MX+3}
v_max_f32 v{MX}, v{MX}, v{MX+1}
v_max_f32 v{MX+2}, v{MX+2}, v{MX+3}
v_permlane32_swap_b32 v{MX}, v{MX+2}
v_max_f32 v{MX}, v{MX}, v{MX+2}
v_mul_f32 v{MX}, s94, v{MX}
v_mov_b32 v{MX+2}, v{MX}
v_permlane32_swap_b32 v{MX}, v{MX+2}
v_mov_b32 v{MX+1}, v{MX}
v_mov_b32 v{MX+3}, v{MX+2}
v_permlane16_swap_b32 v{MX}, v{MX+1}
v_permlane16_swap_b32 v{MX+2}, v{MX+3}""")
    PO = 216; OA = 16; OX = 32
    for m in range(4):
        s = SA + 8*m
        h = m & 1
        for k in range(4): A(f"v_pk_fma_f32 {vq(s+2*k,2)}, {vq(s+2*k,2)}, s[94:95], {vq(MX+(m&2),2)} op_sel:[0,0,{h}] op_sel_hi:[1,0,{h}] neg_lo:[0,0,1] neg_hi:[0,0,1]")
        if m:
            o = [0, 2, 6, 8][m-1]
            A(f"{MF} {vq(OX+4*(m-1))}, {vq(XO+o)}, {vq(PO+4*(m-1))}, 0")
            A(f"{MF} {vq(OA+4*(m-1))}, {vq(VO+o)}, {vq(PO+4*(m-1))}, 0")
        for k in range(8): A(f"v_exp_f32 v{s+k}, v{s+k}")
        for k in range(4): A(f"v_cvt_pk_bf16_f32 v{PO+4*m+k}, v{s+2*k}, v{s+2*k+1}")
    A(f"v_rcp_f32 v{MX}, v{OX+2}\nv_rcp_f32 v{MX+1}, v{OX+6}")
    A(f"{MF} {vq(OX+12)}, {vq(XO+8)}, {vq(PO+12)}, 0\n{MF} {vq(OA+12)}, {vq(VO+8)}, {vq(PO+12)}, 0")
    OP0 = 112
    for p in range(2):
        if p: A(f"v_rcp_f32 v{MX+2}, v{OX+10}\nv_rcp_f32 v{MX+3}, v{OX+14}")
        for m in (2*p, 2*p+1):
            for r in range(2): A(f"v_pk_mul_f32 {vq(OA+4*m+2*r,2)}, {vq(OA+4*m+2*r,2)}, {vq(MX+(m&2),2)} op_sel:[0,{m&1}] op_sel_hi:[1,{m&1}]")
            A(f"v_cvt_pk_bf16_f32 v{OP0+2*m}, v{OA+4*m}, v{OA+4*m+1}\nv_cvt_pk_bf16_f32 v{OP0+2*m+1}, v{OA+4*m+2}, v{OA+4*m+3}")
        for m in (2*p, 2*p+1):
            A(f"v_pk_mul_f32 {vq(OX+4*m,2)}, {vq(OX+4*m,2)}, {vq(MX+(m&2),2)} op_sel:[0,{m&1}] op_sel_hi:[1,{m&1}]")
        b = OP0 + 4*p
        A(f"v_permlane16_swap_b32 v{b}, v{b+2}\nv_permlane16_swap_b32 v{b+1}, v{b+3}")
        A(f"buffer_store_dwordx4 {vq(OP0+4*p)}, v232, {srd(sWS)}, s95 offen offset:{2048*p} sc1", "o")
        for m in (2*p, 2*p+1): A(f"v_cvt_pk_bf16_f32 v{OP0+8+m}, v{OX+4*m}, v{OX+4*m+1}")
    A(f"v_permlane16_swap_b32 v{OP0+8}, v{OP0+9}\nv_permlane16_swap_b32 v{OP0+10}, v{OP0+11}")
    A(f"v_permlane32_swap_b32 v{OP0+8}, v{OP0+10}")
    A(f"buffer_store_dword v{OP0+8}, v233, {srd(sWS)}, s96 offen sc1", "o")
    late = dma[ne:] + tail3 + xres3 + [poll_pre(15, 14)]
    if cfg.w2at == 0:
        w2l = []
        for z in range(2):
            u = unit_dma(2, z, W2SCR)
            w2l.append((u[0] + "\n" + u[1][0], "wr"))
            for q in range(1, 4): w2l.append((u[2*q] + "\n" + u[2*q+1][0], "wr"))
        assert ne in (0, 4, 8, 9, 13)
        late = w2l + late
    k = 0
    for n, ins in enumerate(A.ins):
        P.add(ins)
        if n >= 3 and (n - 3) % cfg.dmagap == 0 and k < len(late): P.add(late[k]); k += 1
    assert k == len(late)
    stamp("attn done")
    NR = 56; AF = 224
    ACA, ACB = 16, 96
    CA, CB = 96, 160
    passes = [("A", [0, 1, 2, 3, 8], ACA, CA), ("B", [4, 5, 6, 7], ACB, CB), ("C", [4, 5, 8], 16, None), ("D", [0, 1], 96, None), ("E", [2, 3], 64, None), ("F", [6, 7], 16, None)]
    if cfg.p522: passes = passes[:2] + [("C", [0, 1, 2, 3, 8], 16, None), ("E", [4, 5], 96, None), ("F", [6, 7], 128, None)]
    steps = [(pi, p) for pi in range(len(passes)) for p in range(18)]
    cons = [(pi, p, t) for pi, p in steps for t in range(len(passes[pi][1]))]
    slot = {f: n % NR for n, f in enumerate(cons)}
    def wload(n):
        pi, p, t = cons[n]; L = []
        if t == 0 and n > 0:
            if pi == 1 and p == 0:
                L.append(f"s_mul_i32 s92, s{sRF}, 9216\ns_add_u32 s92, s92, s90")
            elif pi >= 2 and p in (0, 10):
                beg = 0 if p == 0 else 10*9216; end = (10 if p == 0 else 18)*9216
                L.append(f"s_add_u32 s90, s89, {beg}\ns_add_u32 s91, s89, {end}")
                L.append(f"s_mul_i32 s92, s{93 if p == 0 else 94}, 9216\ns_add_u32 s92, s92, s90")
            else: L.append(wrap(92, 9216, 91, 90))
        tile = passes[pi][1][t]
        L.append((f"buffer_load_dwordx4 {aq(4*(n % NR))}, v{[vL16, 12, 255][tile >> 2]}, {srd(sWS)}, s92 offen offset:{1024*(tile % 4)}{cfg.wsc}", "w"))
        return L
    npf = [0]
    def prefetch(n):
        L = []
        for k in range(n): L += wload(npf[0]); npf[0] += 1
        return L
    P(f"""s_lshl_b32 s88, s{sJF}, 2
s_add_u32 s88, s88, s{sW}
s_mul_i32 s88, s88, {162*1024}
s_add_u32 s89, s88, {W2R}
s_add_u32 s88, s88, {W1R}
s_mul_i32 s92, s{sRF}, 9216
s_add_u32 s92, s92, s88
s_mov_b32 s90, s88
s_add_u32 s91, s88, {162*1024}
v_add_u32 v12, 4096, v{vL16}
v_add_u32 v255, 8192, v{vL16}""")
    P(poll_check(15, 14))
    pa, pb, pc, pd, pe = cfg.pre
    P.extend(prefetch(pa))
    P.extend(own_flag(14, F1G, sG1, 12, sJ1, 4)); P.extend(grp_poll_addr(15, sG2, F1G))
    HA = 16; HQ = 36; OF = 48; WB = 120; NW = 28
    P(f"""v_add_u32 v10, 41472, v{vL16}
v_and_b32 v11, 7, v{vI}
v_lshlrev_b32 v11, 4, v11
v_lshl_add_u32 v11, v{vG}, 7, v11
v_add_u32 v9, 41472, v11
v_mul_u32_u24 v7, 43, v{vI}
v_lshrrev_b32 v7, 8, v7
v_mul_u32_u24 v7, 160, v7
v_mul_u32_u24 v6, 144, v{vI}
v_add3_u32 v6, v6, v7, s77
v_and_b32 v7, 1, v{vG}
v_lshl_add_u32 v7, v7, 3, v6
v_lshl_add_u32 v6, v{vG}, 4, v6""")
    P("@waitvm o\ns_barrier")
    set_flag(14)
    stamp("F1 set")
    if cfg.p1early: P.add(poll_pre(15, 46))
    if cfg.w2at == 1:
        for z in range(2): P.extend(unit_dma(2, z, W2SCR))
    if cfg.ct2 == 2: code_touch(48, 1, 64, 49)
    P.extend(prefetch(pb))
    if cfg.w2h1:
        P(f"v_add_u32 v47, {W2SCR}, v94\n@waitvm wr")
        for z in range(cfg.w2h1): P.extend([l.replace("v94", "v47") for l in unit_tr(z, 0, 48 + 16*z)])
        for z in range(cfg.w2h1): P.extend(unit_st(2, z, 48 + 16*z))
    if not cfg.p1early and 1 not in cfg.pfast: P.add(poll_pre(15, 46))
    P(f"ds_read_b128 {vq(HQ)}, v6\nds_read_b128 {vq(HQ+4)}, v6 offset:64\nds_read_b64 {vq(HQ+8,2)}, v7 offset:128")
    def wo_reg(n): return vq(WB + 4*(n % NW))
    wor = []
    for s in range(18):
        for t in range(5):
            reg = (vL16 if s < 9 else 10) if t < 4 else (11 if s < 9 else 9)
            wor.append(f"ds_read_b128 {wo_reg(s*5+t)}, v{reg} offset:{WOB + (s % 9)*4608 + 1024*t}")
    P.extend(wor[:NW - 1])
    P(f"""s_mul_i32 s84, s{sG2}, 73728
s_lshl_b32 s85, s{sW}, 10
s_add_u32 s84, s84, s85
s_add_u32 s74, s84, {OP}
s_add_u32 s75, s74, 65536
s_mul_i32 s79, s{sW}, {1024 - 64}
s_sub_u32 s79, s75, s79
v_lshlrev_b32 v232, 10, v{vG}
v_lshl_add_u32 v232, v{vI}, 2, v232
s_lshl_b32 s78, s{sR2}, 13
s_add_u32 s78, s78, s74
s_add_u32 s84, s84, {HP}
s_mul_i32 s85, s{sJ2}, 9
v_add_u32 v6, s85, v{vG}
v_lshrrev_b32 v7, 2, v6
v_lshlrev_b32 v7, 12, v7
v_and_b32 v6, 3, v6
v_lshl_add_u32 v6, v6, 8, v7
v_lshl_add_u32 v6, v{vI}, 4, v6
v_add_u32 v6, s84, v6
s_add_u32 s85, s85, 8
s_lshr_b32 s86, s85, 2
s_lshl_b32 s86, s86, 12
s_and_b32 s85, s85, 3
s_lshl_b32 s85, s85, 8
s_add_u32 s85, s85, s86
s_add_u32 s85, s85, s84
v_lshlrev_b32 v7, 4, v{vI}
v_lshl_add_u32 v7, v{vG}, 3, v7
v_add_u32 v7, s85, v7
v_cmp_gt_u32 s[82:83], 2, v{vG}
v_add_u32 v8, 4096, v6
v_add_u32 v47, {W2SCR}, v94
v_mov_b32 v235, v93
v_cndmask_b32 v7, v13, v7, s[82:83]
s_lshl_b32 s84, s{sG2}, 2
s_add_u32 s84, s84, s{sW}
s_lshl_b32 s84, s84, 3
s_add_u32 s84, s84, s{sJ2}
s_lshl_b32 s84, s84, 7
s_add_u32 s84, s84, {STATS}
v_lshl_add_u32 v233, v{vI}, 3, s84
v_cmp_gt_u32 vcc, 16, v{vL}
v_cndmask_b32 v233, v13, v233, vcc""")
    P.extend(unpack(HA, HQ, 10))
    if cfg.isl == 1: warm(1)
    P(poll_fast(15, 236) if 1 in cfg.pfast else poll_check(15, 46))
    stamp("F1 seen")
    ol = []
    for s in range(16):
        ol.append([(f"buffer_load_dwordx4 {vq(OF+4*s)}, v{vL16}, {srd(sWS)}, s78 offen sc1", "of")] + ([wrap(78, 4096, 75, 74)] if s < 15 else []))
    for s in (16, 17):
        for ww in range(4): ol.append([(f"buffer_load_dword v{OF+4*s+ww}, v232, {srd(sWS)}, s79 offen offset:{256*ww} sc1", "of")] + (["s_add_u32 s79, s79, 4096"] if (s, ww) == (16, 3) else []))
    for L in ol[:cfg.no1]: P.extend(L)
    flex = []
    for l in own_flag(14, F2G, sG2, 12, sJ2, 4) + grp_poll_addr(15, sGF, F2G): flex.append((0, l))
    for l in lines(f"""s_mul_i32 s84, s{sJF}, 1152
s_lshl_b32 s85, s{sW}, 8
s_add_u32 s80, s85, s84
s_lshr_b32 s86, s{sW}, 1
s_lshl_b32 s86, s86, 6
s_and_b32 s87, s{sW}, 1
s_lshl_b32 s87, s87, 3
s_add_u32 s86, s86, s87
s_add_u32 s81, s86, s84
v_lshlrev_b32 v234, 4, v{vG}"""): flex.append((0, l))
    for l in prefetch(pc): flex.append((64, l))
    mains = [f"{MF} {vq(HA+4*t)}, {wo_reg(s*5+t)}, {vq(OF+4*s)}, {vq(HA+4*t)}" for s in range(18) for t in range(5)]
    fixed = {n: [wor[n + NW - 1]] for n in range(90 - NW + 1)}
    for k, L in enumerate(ol[cfg.no1:]):
        g = int(k*cfg.ogap)
        fixed.setdefault(g, []).append(L[0])
        if len(L) > 1: fixed.setdefault(g + 1, []).append(L[1])
    sched(P, mains, fixed, flex)
    for k in range(4): P(f"v_cvt_pk_bf16_f32 v{HQ+k}, v{HA+2*k}, v{HA+2*k+1}")
    P(f"buffer_store_dwordx4 {vq(HQ)}, v6, {srd(sWS)}, 0 offen sc1", "h")
    for k in range(4, 8): P(f"v_cvt_pk_bf16_f32 v{HQ+k}, v{HA+2*k}, v{HA+2*k+1}")
    P(f"buffer_store_dwordx4 {vq(HQ+4)}, v8, {srd(sWS)}, 0 offen sc1", "h")
    for k in range(8, 10): P(f"v_cvt_pk_bf16_f32 v{HQ+k}, v{HA+2*k}, v{HA+2*k+1}")
    P(f"buffer_store_dwordx2 {vq(HQ+8,2)}, v7, {srd(sWS)}, 0 offen sc1", "h")
    P(f"v_cndmask_b32 v16, 0, v{HQ+8}, s[82:83]\nv_cndmask_b32 v17, 0, v{HQ+9}, s[82:83]")
    P.extend(stats([[16, 17] + [HQ + k for k in range(8)]], 20))
    def xsum(a):
        for sw in ["v_permlane16_swap_b32", "v_permlane32_swap_b32"]:
            for k in range(2): P(f"v_mov_b32 v{a+2+k}, v{a+k}")
            for k in range(2): P(f"{sw} v{a+k}, v{a+2+k}")
            for k in range(2): P(f"v_add_f32 v{a+k}, v{a+k}, v{a+2+k}")
    xsum(20)
    P(f"buffer_store_dwordx2 {vq(20,2)}, v233, {srd(sWS)}, 0 offen sc1", "h")
    stamp("proj done")
    B1P = 136; HR = 160; ST = 132; NT = 116; SR = 154
    for p in range(4): P(f"buffer_load_dwordx4 {vq(B1P+4*p)}, v234, {srd(sB1)}, s80 offen offset:{64*p}", "b1")
    P(f"buffer_load_dwordx2 {vq(B1P+16,2)}, v234, {srd(sB1)}, s81 offen offset:1024", "b1")
    P.extend(prefetch(pd))
    P("@waitvm h\n@waitlg_all\ns_barrier")
    set_flag(14)
    stamp("F2 set")
    P("L_markB:")
    if cfg.w2at == 2:
        P.add(poll_pre(15, 46))
        for z in range(2): P.extend(unit_dma(2, z, W2SCR, 235))
    if cfg.w2st == 0 and cfg.w2at < 3:
        P("@waitvm wr")
        for z in range(cfg.w2h1, 2): P.extend([l.replace("v94", "v47") for l in unit_tr(z, 0, 48 + 16*z)])
        for z in range(cfg.w2h1, 2): P.extend(unit_st(2, z, 48 + 16*z))
    if cfg.ct2 == 1: code_touch(16, 1, 64, 17)
    P.extend(prefetch(pe))
    if cfg.w2at != 2 and 2 not in cfg.pfast: P.add(poll_pre(15, 46))
    P.extend(unpack(CA, B1P, 8)); P.extend(unpack(CA+16, B1P+16, 2))
    P(f"""s_mul_i32 s84, s{sGF}, 73728
s_lshl_b32 s85, s{sW}, 10
s_add_u32 s84, s84, s85
s_add_u32 s74, s84, {HP}
s_add_u32 s75, s74, 73728
s_lshl_b32 s77, s{sRF}, 12
s_add_u32 s77, s77, s74
v_add_u32 v6, s85, v{vL16}
v_add_u32 v7, 36864, v6
v_add_u32 v8, 36864, v{vL16}
v_add_u32 v9, {HB}, v{vL16}
v_add_u32 v10, {HB + 36864}, v{vL16}
v_mov_b32 v11, v47
s_and_b32 s93, s{sGF}, 15
s_lshr_b32 s94, s93, 1
s_mul_i32 s93, s93, 5
s_lshr_b32 s93, s93, 3
s_lshl_b32 s84, s{sGF}, 12
s_add_u32 s84, s84, s85
s_add_u32 s84, s84, {STATS}
v_lshlrev_b32 v239, 8, v{vG}
v_lshl_add_u32 v239, v{vI}, 3, v239""")
    if not cfg.rot: P("s_mov_b32 s93, 0\ns_mov_b32 s94, 0")
    P.extend(own_flag(14, F2S, sJ1, 12, sG1, 2))
    vPS, vSS, vF3, vP3, vL4, vL2, vLS, vH4, vH2, vPT, vC4, vC2, vO4, vO2, vOS = range(240, 255)
    P.extend(own_flag(vF3, F3A, sGF, 12, sJF, 4)); P.extend(grp_poll_addr(vP3, sGF, F3A))
    if cfg.wflag:
        P(f"""s_lshl_b32 s87, s{sW}, 7
s_add_u32 s86, s86, s87
v_add_u32 v{vP3}, s87, v{vP3}
s_lshl_b32 s87, s{sJF}, 4
s_add_u32 s86, s86, s87
v_mov_b32 v{vF3}, s86
v_cmp_eq_u32 vcc, 0, v{vL}
v_cndmask_b32 v{vF3}, v13, v{vF3}, vcc""")
    P(f"""s_lshl_b32 s86, s{sGF}, 6
s_add_u32 s86, s86, s{sJF}
s_mul_i32 s86, s86, 9216
s_add_u32 s86, s86, {PART}
v_lshrrev_b32 v{vPS}, 3, v{vI}
v_mul_u32_u24 v{vPS}, {8*9216}, v{vPS}
v_and_b32 v5, 7, v{vI}
v_lshlrev_b32 v5, 3, v5
v_lshl_add_u32 v5, v{vG}, 6, v5
v_add3_u32 v{vSS}, v{vPS}, v5, s86
v_add_u32 v{vPS}, v{vSS}, v5
s_lshl_b32 s85, s{sW}, 8
s_add_u32 s87, s85, 8192
v_add_u32 v{vSS}, s87, v{vSS}
s_lshl_b32 s76, s{sW}, 11
v_add_u32 v{vPS}, s76, v{vPS}
s_lshl_b32 s86, s{sGF}, 3
s_add_u32 s86, s86, s{sJF}
s_mul_i32 s86, s86, {8*9216}
s_add_u32 s86, s86, {PART}
s_add_u32 s76, s76, s86
v_add_u32 v{vL4}, s76, v{vL16}
s_add_u32 s87, s87, s86
v_lshl_add_u32 v{vLS}, v{vL}, 3, s87
v_cmp_gt_u32 vcc, 32, v{vL}
v_lshrrev_b32 v5, 5, v{vL}
v_bfe_u32 v{vC4}, v{vL}, 3, 2
v_cndmask_b32 v{vLS}, v13, v{vLS}, vcc
v_and_b32 v{vO4}, 7, v{vL}
v_lshlrev_b32 v{vH4}, 12, v5
v_lshl_add_u32 v{vH4}, v{vC4}, 8, v{vH4}
v_lshl_add_u32 v{vH4}, v{vO4}, 4, v{vH4}
v_lshlrev_b32 v{vC4}, 4, v{vC4}
v_lshl_add_u32 v{vC4}, v5, 6, v{vC4}
s_lshr_b32 s87, s{sJF}, 1
s_and_b32 s86, s{sJF}, 1
s_lshl_b32 s76, s{sGF}, 6
s_and_b32 s32, s87, 1
s_lshl_b32 s32, s32, 5
s_add_u32 s76, s76, s32
s_lshr_b32 s32, s87, 1
s_add_u32 s76, s76, s32
s_lshl_b32 s32, s86, 4
s_add_u32 s76, s76, s32
s_mul_i32 s76, s76, 1152
v_mul_u32_u24 v{vO4}, 2304, v{vO4}
v_add3_u32 v{vO4}, v{vO4}, v{vC4}, s76
v_cndmask_b32 v{vOS}, v13, v{vO4}, vcc
s_mul_i32 s76, s{sGF}, 73728
s_lshl_b32 s87, s87, 10
s_add_u32 s76, s76, s87
s_lshl_b32 s86, s86, 7
s_add_u32 s76, s76, s86
s_add_u32 s76, s76, {HP}
s_lshl_b32 s86, s{sW}, 14
s_add_u32 s32, s76, s86
s_add_u32 s33, s32, 8192
s_lshr_b32 s86, s{sW}, 1
s_and_b32 s87, s{sW}, 1
s_lshl_b32 s87, s87, 3
s_lshl_b32 s36, s86, 12
s_add_u32 s36, s36, s87
s_add_u32 s36, s36, 65536
s_add_u32 s36, s36, s76
s_mov_b32 s38, s85
s_lshl_b32 s39, s86, 6
s_add_u32 s39, s39, s87
s_add_u32 s39, s39, 1024
s_mov_b32 s80, 0
s_mov_b32 s81, {16*9216}
s_mov_b32 s82, {32*9216}
s_mov_b32 s83, {48*9216}
s_mov_b32 s95, 0x00003f80
s_mov_b32 s96, 0x3f800000""")
    if cfg.isl == 2: warm(1)
    P("L_markC:")
    P(f"s_or_b32 s86, s2, s{sW}\ns_cbranch_scc0 L_epoch\nL_epoch_back:")
    slow.append(f"""L_epoch:
s_waitcnt vmcnt(0)
v_lshrrev_b32 v16, 5, v{vL}
v_lshlrev_b32 v16, 12, v16
v_and_b32 v17, 31, v{vL}
v_lshl_add_u32 v16, v17, 2, v16
v_add_u32 v16, {F0S}, v16
v_add_u32 v17, 8192, v16
v_add_u32 v18, 16384, v16
v_add_u32 v19, 24576, v16
s_mov_b32 s97, 0
L_epoch_poll:
buffer_load_dword v20, v16, {srd(sWS)}, 0 offen sc1
buffer_load_dword v21, v17, {srd(sWS)}, 0 offen sc1
buffer_load_dword v22, v18, {srd(sWS)}, 0 offen sc1
buffer_load_dword v23, v19, {srd(sWS)}, 0 offen sc1
s_add_u32 s97, s97, 1
s_waitcnt vmcnt(0)
v_xor_b32 v20, s{sTAG}, v20
v_xor_b32 v21, s{sTAG}, v21
v_xor_b32 v22, s{sTAG}, v22
v_xor_b32 v23, s{sTAG}, v23
v_or_b32 v20, v20, v21
v_or3_b32 v20, v20, v22, v23
v_cmp_ne_u32 vcc, 0, v20
s_cmp_gt_u32 s97, 400000
s_cbranch_scc1 L_epoch_set
s_cbranch_vccnz L_epoch_poll
L_epoch_set:
v_mov_b32 v16, 0
v_mov_b32 v17, s{sTAG}
s_mov_b64 exec, 1
buffer_store_dword v17, v16, {srd(sWS)}, 0 offen sc1
s_mov_b64 exec, -1
s_waitcnt vmcnt(0)
s_branch L_epoch_back""")
    P(poll_fast(15, 232) if 2 in cfg.pfast else poll_check(15, 46))
    stamp("F2 seen")
    for k in range(2): P(f"buffer_load_dwordx2 {vq(SR+2*k,2)}, v239, {srd(sWS)}, s84 offen offset:{128*k} sc1", "hf")
    hl = []
    for s in range(18):
        hl.append([(f"buffer_load_dwordx4 {vq(HR+4*s)}, v{vL16}, {srd(sWS)}, s77 offen sc1", "hf")] + ([wrap(77, 4096, 75, 74)] if s < 17 else []))
    for s in range(cfg.nh1): P.extend(hl[s])
    P(f"v_add_f32 v{ST}, v{SR}, v{SR+2}\nv_add_f32 v{ST+1}, v{SR+1}, v{SR+3}")
    xsum(ST)
    finish_stats([ST])
    for s in range(cfg.nh1, cfg.nh2): P.extend(hl[s])
    stamp("LN2 stats")
    def ln2(s):
        return normalize(HR + 4*s, ST, NT + 8*(s & 1), s < 3) + [f"ds_write_b128 v{6 if s < 9 else 7}, {vq(HR+4*s)} offset:{XN + (s % 9)*4096}"]
    for s in range(3): P.extend(ln2(s))
    P("@waitlg_all\ns_barrier")
    def act_reads(i):
        pi, p = steps[i]
        b = AF + (i % 2)*16
        if pi < 2: reg = vL16 if p < 9 else 8
        else: reg = 9 if p < 9 else 10
        return [f"ds_read_b128 {aq(b+4*m)}, v{reg} offset:{((p % 9)*4 + m)*1024}" for m in range(4)]
    P.extend(act_reads(0))
    stamp("FFN start")
    mains = []; fixed = {}; start = []; load = {}
    first_use = {}; last_use = {}
    def put(g, it):
        fixed.setdefault(g, []).append(it); load[g] = load.get(g, 0) + cost(it)
    def place(items, g):
        for it in items:
            c = cost(it)
            while load.get(g, 0) > 0 and load.get(g, 0) + c > cfg.cap + 0.02: g += 1
            put(g, it)
        return g
    bar = {2: "a", 4: "b", 7: "c", 10: "d", 14: "f", 35: "0", 45: "1"}
    if cfg.w2st == 1: bar[17] = "e"
    fl2 = {0: "c", 1: "e", 2: cfg.w2bar}[cfg.w2st]
    if cfg.w2at >= 3: fl2 = None
    for i, (pi, p) in enumerate(steps):
        name, tiles, acc, cin = passes[pi]; nt = len(tiles)
        base = len(mains); start.append(base)
        b = AF + (i % 2)*16
        t_ = stamp_txt(f"@{name}{p}") if i else None
        if t_: fixed.setdefault(base - 1, []).append(t_)
        if i in bar:
            for it in [f"@flexdone{bar[i]}"] + (["@waitvm wrs"] if bar[i] == fl2 else []) + ["@waitlg_all", "s_barrier"]: put(base, it)
            if bar[i] == fl2:
                for it in flag_items(14): put(base, it)
        for t in range(nt):
            w = aq(4*slot[(pi, p, t)])
            first_use[(pi, p, t)] = len(mains); last_use[(pi, p, t)] = len(mains) + 3
            for m in (range(4) if not (cfg.snake and t % 2) else range(3, -1, -1)):
                d = vq(acc + (t*4 + m)*4)
                c = d if p > 0 else (vq(cin + 4*t) if cin is not None else "0")
                mains.append(f"{MF} {d}, {w}, {aq(b+4*m)}, {c}")
        if i + 1 < len(steps):
            for k, l in enumerate(act_reads(i+1)): put(base + (2*k if nt > 2 else k) + (1 if i in bar else 0), l)
            pj, pp = steps[i+1]
            nxt = " ".join(aq(4*slot[(pj, pp, t)]) for t in range(len(passes[pj][1])))
            fixed.setdefault(base + 4*nt - 1, []).append(f"@need {nxt} {aq(AF + ((i+1) % 2)*16, 16)}")
            load[base + 4*nt - 1] = load.get(base + 4*nt - 1, 0) + 0.67
    start.append(len(mains))
    S = lambda pi, p: start[pi*18 + p]
    path = {}
    TQ = 176
    tq = [0]
    def epi2(acc, tiles, m, st):
        q = TQ + 4*(tq[0] % 4); tq[0] += 1
        regs = [acc + (t*4 + m)*4 + r for t in tiles for r in range(4)]
        L = [f"v_cvt_pk_bf16_f32 v{q+k}, v{regs[2*k]}, v{regs[2*k+1]}" for k in range(len(regs)//2)]
        L += st(q)
        return L
    if cfg.noself:
        def pst(m, off, tag): return lambda q: [(f"buffer_store_dwordx4 {vq(q)}, v{160+m}, {srd(sWS)}, s{80+m} offen offset:{off} sc1", tag), f"ds_write_b128 v{168+m}, {vq(q)} offset:{off}"]
        def sst(m, tag): return lambda q: [(f"buffer_store_dwordx2 {vq(q,2)}, v{164+m}, {srd(sWS)}, s{80+m} offen sc1", tag), f"ds_write_b64 v{172+m}, {vq(q,2)} offset:2048"]
    else:
        def pst(m, off, tag): return lambda q: [(f"buffer_store_dwordx4 {vq(q)}, v{vPS}, {srd(sWS)}, s{80+m} offen offset:{off} sc1", tag)]
        def sst(m, tag): return lambda q: [(f"buffer_store_dwordx2 {vq(q,2)}, v{vSS}, {srd(sWS)}, s{80+m} offen sc1", tag)]
    RW = [4, 4, 2]; RH = [200, 208, 216]; RS = [220, 228, 236]; R0 = [16, 48, 80]
    rl = [(vL4, 0), (vL4, 1024), (vLS, 0)]
    SRC = [24, 25, 26, 27, 34, 35, 37]
    def red_loads(r):
        if cfg.noself:
            L = [(f"buffer_load_dwordx{RW[r]} {vq(R0[r]+RW[r]*j,RW[r])}, v{rl[r][0]}, {srd(sWS)}, s{SRC[j]} offen offset:{rl[r][1]}{cfg.rdfl}", "rd") for j in range(7)]
            return L
        L = ["s_mov_b32 s84, 0"]
        for j in range(8):
            L.append((f"buffer_load_dwordx{RW[r]} {vq(R0[r]+RW[r]*j,RW[r])}, v{rl[r][0]}, {srd(sWS)}, s84 offen offset:{rl[r][1]} sc1", "rd"))
            if j < 7: L.append("s_add_u32 s84, s84, 9216")
        return L
    def red_sum(r):
        T = RS[r]; L = []
        for j in ([7] + list(range(7)) if cfg.noself else range(8)):
            for d in range(RW[r]):
                q = R0[r] + RW[r]*j + d
                L.append(f"v_dot2_f32_bf16 v{T+2*d}, v{q}, s95, v{T+2*d}")
                L.append(f"v_dot2_f32_bf16 v{T+2*d+1}, v{q}, s96, v{T+2*d+1}")
        for d in range(RW[r]): L.append(f"v_cvt_pk_bf16_f32 v{T+d}, v{T+2*d}, v{T+2*d+1}")
        return L
    def red_store(r):
        vo, so, oo = [(vO4, 38, 0), (vO4, 38, 128), (vOS, 39, 0)][r]
        return [(f"buffer_store_dwordx{RW[r]} {vq(RS[r],RW[r])}, v{vo}, {srd(sOUT)}, s{so} offen offset:{oo}{cfg.outfl}", "out")]
    def add_path(g, c): path[g] = path.get(g, 0) + c
    G0, s4, s2 = cfg.late
    last = len(passes) - 1
    g = G0
    for m in range(4):
        for pr in range(2): g = place(epi2(16, [2*pr, 2*pr+1], m, pst(m, 512*pr, "p1")), g) + s4
    for m in range(4): g = place(epi2(16, [4], m, sst(m, "p1")), g) + s2
    two = cfg.two
    if two:
        gs = g + two[0]
        for it in ["@waitvm p1", "s_barrier"] + flag_items(vF3) + [f"v_add_u32 v{vF3}, 512, v{vF3}"]: put(gs, it)
    gE = max(g, S(last, 0) + 3)
    for m in range(4): gE = place(epi2(96, [0, 1], m, pst(m, 1024, "p2")), gE) + s4
    assert gE - s4 < len(mains) - 1, gE
    nin = 0
    if two:
        erl = red_loads(0) + red_loads(2)
        gp = gs + two[1]
        if gp + two[2] < len(mains) - 4:
            put(gp, poll_pre(vP3, vPT))
            gq_ = place([poll_check(vP3, vPT), f"v_add_u32 v{vP3}, 512, v{vP3}"], gp + two[2])
            while nin < len(erl) and gq_ + two[3] < len(mains) - 3:
                gq_ = place(erl[nin:nin+1], gq_ + two[3]); nin += 1
            inloop = True
        else: inloop = False
        if VERBOSE: print("two-phase: stores end", g, "flag", gs, "E stores end", gE, "in-loop loads", nin)
    g = 0
    for s in range(cfg.nh2, 18):
        g = place(hl[s], g); add_path(g, 110); g += cfg.hgap
    if cfg.w2st == 2:
        g = cfg.w2g
        for z in range(2):
            g = place([l.replace("v94", "v11") for l in unit_tr(z, 0, 96)], g) + 6
            for l in join(unit_st(2, z, 96)):
                g = place([l], g); add_path(g, cfg.scost if z == 0 else cfg.scost//4); g += cfg.w2gap
    g = S(2, 11)
    for r, (sh, sb, bo) in enumerate([(32, 38, 0), (33, 38, 128), (36, 39, 0)]):
        g = place([(f"buffer_load_dwordx{RW[r]} {vq(RH[r],RW[r])}, v{vH4}, {srd(sWS)}, s{sh} offen sc1", "rh")], g + 5); add_path(g, 70)
        g = place([(f"buffer_load_dwordx{RW[r]} {vq(RH[r]+RW[r],RW[r])}, v{vC4}, {srd(sB2)}, s{sb} offen offset:{bo}", "rh")], g + 3); add_path(g, 20)
    nl = npf[0]; free = cfg.backlog; g = 0
    while nl < len(cons):
        now = g*cfg.tgap
        if g in path: free = max(free, now) + path.pop(g)
        early = last_use[cons[nl - NR]] + 1 if nl >= NR else 0
        dead = first_use[cons[nl]] - cfg.margin
        if g >= early and (free <= now + cfg.slack or g >= dead):
            L = wload(nl)
            if nl == 162 - cfg.w2lead and fl2: L = [poll_pre(15, vPT)] + L
            if nl == 162 and fl2: L = [poll_check(15, vPT)] + L
            g2 = place(L, g)
            for x in range(g + 1, g2 + 1):
                if x in path: free = max(free, x*cfg.tgap) + path.pop(x)
            assert g2 < first_use[cons[nl]] - 8, (nl, g2, first_use[cons[nl]])
            if VERBOSE and nl % 18 == 0: print(f"   load {nl} at gap {g2}, first use {first_use[cons[nl]]}, backlog {free - g2*cfg.tgap:.0f}")
            g = g2; free = max(free, g*cfg.tgap) + cfg.wcost; nl += 1
        g += 1
    if VERBOSE: print("last weight load at gap", g, "of", len(mains), "pass starts", [S(k, 0) for k in range(len(passes))])
    flex = []
    for lo, hi, mk in [(3, 5, "a"), (5, 8, "b"), (8, 11, "c"), (11, 15, "d"), (15, 18, "f")]:
        for s in range(lo, hi):
            for l in ln2(s): flex.append((0, l))
        flex.append((0, f"@mark{mk}"))
    if cfg.w2st == 1:
        flex.append((0, "@waitvm wr"))
        for z in range(2):
            for l in unit_tr(z, 0, 176): flex.append((0, l.replace("v94", "v11")))
            for l in [f"@need {vq(176,16)}"] + unit_st(2, z, 176): flex.append((0, l))
    for l in set_poll_addr(15, sJF, F2S) + unpack(CB, B1P+8, 8): flex.append((0, l))
    flex.append((0, "@marke"))
    for k, (q, mod, sr, add) in enumerate([(f"s_lshl_b32 s84, s{sW}, 1", 10, 93, 0), (f"s_lshl_b32 s84, s{sW}, 1\ns_add_u32 s84, s84, 1", 10, 93, 0),
                                           (f"s_lshr_b32 s84, s{sW}, 1\ns_add_u32 s84, s84, 8", 10, 93, 0),
                                           (f"s_lshl_b32 s84, s{sW}, 1", 8, 94, 10), (f"s_lshl_b32 s84, s{sW}, 1\ns_add_u32 s84, s84, 1", 8, 94, 10)]):
        flex.append((0, q))
        flex.append((0, f"s_sub_u32 s84, s84, s{sr}\ns_cselect_b32 s85, {mod}, 0"))
        flex.append((0, f"s_add_u32 s84, s84, s85\ns_add_u32 s84, s84, {add}"))
        flex.append((0, "s_lshl_b32 s84, s84, 12"))
        if k == 2: flex.append((0, f"s_and_b32 s85, s{sW}, 1\ns_lshl_b32 s85, s85, 3\ns_add_u32 s84, s84, s85"))
        flex.append((0, f"v_add_u32 v{192+k}, s84, v9"))
    def epi1(acc, pair_tiles, m, wr):
        L = []
        q = TQ + 4*(tq[0] % 4); tq[0] += 1
        regs = [acc + (t*4 + m)*4 + r for t in pair_tiles for r in range(4)]
        for r in regs: L.append(f"v_mul_f32 v{r}, v{r}, |v{r}|")
        for k in range(len(regs)//2): L.append(f"v_cvt_pk_bf16_f32 v{q+k}, v{regs[2*k]}, v{regs[2*k+1]}")
        for k in range(len(regs)//2): L.append(f"v_pk_max_i16 v{q+k}, v{q+k}, 0")
        L.append(wr(q))
        return L
    at = S(1, 0) + 3
    for pr in range(2):
        for m in range(4):
            for l in epi1(ACA, [2*pr, 2*pr+1], m, lambda q: f"ds_write_b128 v{192+pr}, {vq(q)} offset:{m*1024}"): flex.append((at, l))
    for m in range(4):
        for l in epi1(ACA, [4], m, lambda q: f"ds_write_b64 v194, {vq(q,2)} offset:{m*1024}"): flex.append((at, l))
    flex.append((at, "@mark0"))
    at = S(2, 0) + 3
    for pr in range(2):
        for m in range(4):
            for l in epi1(ACB, [2*pr, 2*pr+1], m, lambda q: f"ds_write_b128 v{195+pr}, {vq(q)} offset:{m*1024}"): flex.append((at, l))
    flex.append((at, "@mark1"))
    if cfg.noself:
        assert cfg.p1z4 != 2
        at = S(2, 10)
        L = lines(f"""s_and_b32 s85, s{sJF}, 1
v_lshrrev_b32 v6, 3, v{vI}
v_cmp_eq_u32 s[64:65], s85, v6
s_mul_i32 s85, s{sW}, 2560
v_and_b32 v6, 7, v{vI}
v_lshl_add_u32 v6, v{vG}, 3, v6
v_lshl_add_u32 v7, v6, 3, s85
v_lshl_add_u32 v6, v6, 4, s85
v_add_u32 v8, s85, v{vL16}
v_lshl_add_u32 v11, v{vL}, 3, s85
v_add_u32 v14, 16384, v{vL16}
s_lshr_b32 s85, s{sJF}, 1""")
        for m in range(4):
            L.append(f"s_cmp_eq_u32 s85, {m}\ns_cselect_b64 s[66:67], s[64:65], 0")
            L += [f"v_cndmask_b32 v{160+m}, v{vPS}, v13, s[66:67]", f"v_cndmask_b32 v{164+m}, v{vSS}, v13, s[66:67]",
                  f"v_cndmask_b32 v{168+m}, v14, v6, s[66:67]", f"v_cndmask_b32 v{172+m}, v14, v7, s[66:67]"]
        for k in range(7): L.append(f"s_add_u32 s86, s{sJF}, {k+1}\ns_and_b32 s86, s86, 7\ns_mul_i32 s{SRC[k]}, s86, 9216")
        for l in L: flex.append((at, l))
        flex.append((at, "@marks"))
        put(S(3, 0), "@flexdones")
    at = S(3, 0)
    UT = 192
    for r in range(3):
        for l in unpack(RS[r], RH[r], RW[r]) + unpack(UT, RH[r]+RW[r], RW[r]): flex.append((at, l))
        for d in range(2*RW[r]): flex.append((at, f"v_add_f32 v{RS[r]+d}, v{RS[r]+d}, v{UT+d}"))
    if cfg.skip:
        def keep(it):
            t = it[0] if isinstance(it, tuple) else it
            tag = it[1] if isinstance(it, tuple) else None
            if "valu" in cfg.skip and re.match(r"v_lshlrev_b32 v\d+, 16,|v_and_b32 v\d+, s98|v_fma_f32|v_cvt_pk|v_mul_f32|v_pk_max|v_add_f32", t): return False
            if "dsw" in cfg.skip and t.startswith("ds_write"): return False
            if "bar" in cfg.skip and t == "s_barrier": return False
            if "pst" in cfg.skip and tag in ("p1", "p2", "p3"): return False
            if "rd" in cfg.skip and tag in ("rd", "rh"): return False
            if "w" in cfg.skip and tag == "w": return False
            if "chk" in cfg.skip and "L_slow" in t: return False
            return True
        flex = [f for f in flex if keep(f[1])]
        fixed = {g: [x for x in L if keep(x)] for g, L in fixed.items()}
        slow[:] = [x for x in slow if any(x.split(":")[0] in i.text for i in P.ins) or "chk" not in cfg.skip]
    sched(P, mains, fixed, flex, cap=cfg.cap)
    stamp("FFN done")
    for m in range(4): P.extend(epi2(128, [0, 1], m, pst(m, 1536, "p2")))
    if two and not inloop: P.add(poll_pre(vP3, vPT))
    P("@waitvm p2\ns_barrier")
    set_flag(vF3)
    stamp("F3c set")
    if two:
        if not inloop: P(poll_check(vP3, vPT) + f"\nv_add_u32 v{vP3}, 512, v{vP3}")
        P.extend(erl[nin:])
        P.add(poll_pre(vP3, vPT))
        P(f"@waitlg_all\nds_read_b128 {vq(R0[0]+28)}, v8\nds_read_b128 {vq(R0[1]+28)}, v8 offset:1024\nds_read_b64 {vq(R0[2]+14,2)}, v11 offset:2048")
        P.extend(red_sum(0) + red_sum(2))
        P(poll_check(vP3, vPT))
        stamp("F3c seen")
        P.extend(red_loads(1))
        P.extend(red_store(0) + red_store(2))
        P.extend(red_sum(1) + red_store(1))
    else:
        P.add(poll_pre(vP3, vPT))
        if cfg.noself:
            P(f"@waitlg_all\nds_read_b128 {vq(R0[0]+28)}, v8\nds_read_b128 {vq(R0[1]+28)}, v8 offset:1024\nds_read_b64 {vq(R0[2]+14,2)}, v11 offset:2048")
        P(poll_check(vP3, vPT))
        stamp("F3c seen")
        for r in cfg.rord: P.extend(red_loads(r))
        for r in cfg.rord: P.extend(red_sum(r) + red_store(r))
    if cfg.stamps:
        P("s_waitcnt vmcnt(0)")
        stamp("end")
        P(f"s_lshl_b32 s84, s2, 2\ns_add_u32 s84, s84, s{sW}\ns_lshl_b32 s84, s84, 7\ns_add_u32 s84, s84, {STAMPS}\nv_mov_b32 v6, s84\ns_mov_b64 exec, 1")
        if cfg.diag is not None:
            a, b = cfg.diag
            P(f"s_sub_u32 s84, s{STAMP0+b}, s{STAMP0+a}\ns_lshl_b32 s84, s84, 2\ns_add_u32 s84, s84, 10000\nL_spin:\ns_sleep 8\ns_memrealtime s[100:101]\ns_waitcnt lgkmcnt(0)\ns_sub_u32 s85, s100, s{STAMP0}\ns_cmp_lt_u32 s85, s84\ns_cbranch_scc1 L_spin")
        elif cfg.dbg:
            P(f"v_mov_b32 v6, 0\ns_not_b32 s84, s{STAMP0}\nv_mov_b32 v5, s84\nbuffer_atomic_umax v5, v6, {srd(sR)}, 0 offen")
            for k in range(min(nstamp[0], 15)):
                P(f"v_mov_b32 v{16+k}, s{STAMP0+k}\nbuffer_atomic_umax v{16+k}, v6, {srd(sR)}, 0 offen offset:{4*k+4}")
        else:
          for k in range(nstamp[0]):
            P(f"v_mov_b32 v5, s{STAMP0+k}\nbuffer_store_dword v5, v6, {srd(sWS)}, 0 offen offset:{4*k}")
    P("L_end:\ns_endpgm")
    for x in slow: P(x)
    P("L_code_end:")
    cfg.names = names
    return P

def cost(it):
    t = it[0] if isinstance(it, tuple) else it
    c = 0
    for l in t.split("\n"):
        if l.startswith("@") or l.endswith(":"): continue
        c += 0.67 if l.startswith("s_") else (2 if l.startswith("ds_write_b128") else 1)
    return c

def sched(P, mains, fixed, flex, cap=2, flex2=None):
    Q = [list(flex2 or []), list(flex)]; K = [0, 0]; marks = set()
    def put(it):
        t = it[0] if isinstance(it, tuple) else it
        if t.startswith("@mark"): marks.add(t[5:]); return 0
        if t.startswith("@flexdone"):
            for q in range(2):
                if any((x[1] if not isinstance(x[1], tuple) else x[1][0]) == "@mark" + t[9:] for x in Q[q]):
                    n0 = K[q]
                    while t[9:] not in marks:
                        it2 = Q[q][K[q]][1]; K[q] += 1; put(it2)
                    if K[q] - n0 > 1 and VERBOSE: print("flush", t, K[q] - n0)
            return 0
        P.add(it)
        return cost(t)
    for n, m in enumerate(mains):
        P.add(m)
        c = 0
        for it in fixed.get(n, []): c += put(it)
        for q in range(2):
            while K[q] < len(Q[q]) and Q[q][K[q]][0] <= n and (c == 0 or c + cost(Q[q][K[q]][1]) <= cap + 0.02):
                it = Q[q][K[q]][1]; K[q] += 1
                c += put(it)
    for q in range(2):
        if K[q] < len(Q[q]) and VERBOSE: print("left", len(Q[q]) - K[q])
        while K[q] < len(Q[q]):
            it = Q[q][K[q]][1]; K[q] += 1
            put(it)
VERBOSE = False

import struct
def hexf(x): return hex(struct.unpack("<I", struct.pack("<f", x))[0])

HEADER = open("cdna_kernels/" + NAME + ".s.ref").read().split("; Override launch geometry")[0]
NOTES = """;
; 32 row groups of 64 tokens x 8 column slices; rows of a group are kept in parity order (even tokens, odd tokens).
;  0. start-up : every workgroup transposes a share of wqkv / wo / w1 / w2 into MFMA fragment order in d_ws
; Hand-offs between workgroups: sc1 (write-through) stores, s_waitcnt, barrier, then a flag word holding a per-launch tag
; (word 0 of d_ws + constant, advanced once per launch); consumers poll with sc1 loads and read with sc1 loads, so any
"""

def add_islands(body):
    import subprocess, tempfile, os
    lines = body.rstrip("\n").split("\n")
    probe = []
    for n, l in enumerate(lines):
        probe.append(f"L_probe{n}:")
        probe.append(l)
    probe.append(f"L_probe{len(lines)}:\nL_chain0:\nL_chain1:")
    with tempfile.TemporaryDirectory() as d:
        open(d + "/p.s", "w").write('.amdgcn_target "amdgcn-amd-amdhsa--gfx950"\n.text\n' + "\n".join(probe) + "\n")
        subprocess.run(["clang", "-x", "assembler", "-target", "amdgcn-amd-amdhsa", "-mcpu=gfx950", "-c", d + "/p.s", "-o", d + "/p.o"], check=True)
        sym = subprocess.run(["llvm-readelf", "-s", "-W", d + "/p.o"], capture_output=True, text=True, check=True).stdout
    addr = {}
    for l in sym.split("\n"):
        f = l.split()
        if len(f) >= 8 and f[7].startswith("L_probe"): addr[int(f[7][7:])] = int(f[1], 16)
    size = [addr[n+1] - addr[n] for n in range(len(lines))]
    a0 = lines.index("L_aligned:"); end = lines.index("L_end:")
    mA = lines.index("L_chainend0:"); mB = max(lines.index("L_markB:"), lines.index("L_chainend1:"))
    out = lines[:a0] + [".p2align 12", lines[a0]]
    off = 0; nxt = 4096; isl = []
    for n in range(a0 + 1, len(lines)):
        if off >= nxt and n < end and size[n] > 0:
            if n > mA:
                isl.append((len(out), 0 if n < mB else 1)); out.append(None); off += 4
            nxt += 4096
        out.append(lines[n]); off += size[n]
    for c in range(2):
        L = [p for p, cc in isl if cc == c]
        for k, p in enumerate(L):
            tgt = f"L_isl{c}_{k+1}" if k + 1 < len(L) else f"L_chainend{c}"
            out[p] = (f"L_chain{c}:\n" if k == 0 else "") + f"L_isl{c}_{k}:\n  s_cbranch_execz {tgt}"
    return "\n".join(out) + "\n"

def build(cfg, verbose=False):
    body = finalize(gen(cfg), verbose)
    body = body.replace("  s_sleep 0\n", "")
    if cfg.isl: body = add_islands(body)
    k = NAME + "_kernel"
    return (HEADER + f"; @launch grid=(256,1,1) block=(256,1,1) lds={LDS_BYTES}\n" + NOTES
        + f'.amdgcn_target "amdgcn-amd-amdhsa--gfx950"\n.text\n.globl {k}\n.p2align 8\n.type {k},@function\n{k}:\n' + body
        + f""".section .rodata,"a"
.p2align 6
.amdhsa_kernel {k}
  .amdhsa_next_free_vgpr 512
  .amdhsa_next_free_sgpr 102
  .amdhsa_accum_offset 256
  .amdhsa_group_segment_fixed_size 0
  .amdhsa_kernarg_size 88
  .amdhsa_user_sgpr_count 2
  .amdhsa_user_sgpr_kernarg_segment_ptr 1
  .amdhsa_system_sgpr_workgroup_id_x 1
.end_amdhsa_kernel
""")

if __name__ == "__main__":
    cfg = Cfg(); VERBOSE = True
    out = sys.argv[1]
    for a in sys.argv[2:]:
        k, v = a.split("=")
        setattr(cfg, k, eval(v))
    open(out, "w").write(build(cfg, True))
    if cfg.stamps: open(out + ".names", "w").write("|".join(cfg.names))
```

```python
import re

TRANS = ("v_exp_f32", "v_log_f32", "v_rcp_f32", "v_rsq_f32", "v_sqrt_f32", "v_sin_f32", "v_cos_f32")
RMW = ("v_fmac_f32", "v_dot2c_f32_bf16", "v_pk_fmac")

_reg_re = re.compile(r"^-?\|?([vas])(\d+)\|?$")
_rng_re = re.compile(r"^-?\|?([vas])\[(\d+):(\d+)\]\|?$")

def regs_of(op):
    op = op.strip()
    m = _reg_re.match(op)
    if m: return [(m.group(1), int(m.group(2)))]
    m = _rng_re.match(op)
    if m: return [(m.group(1), k) for k in range(int(m.group(2)), int(m.group(3)) + 1)]
    if op == "vcc": return [("x", "vcc")]
    if op in ("exec", "exec_lo", "exec_hi"): return [("x", "exec")]
    if op == "m0": return [("x", "m0")]
    return []

def split_ops(s):
    out, depth, cur = [], 0, ""
    for ch in s:
        if ch in "[(": depth += 1
        if ch in "])": depth -= 1
        if ch == "," and depth == 0:
            out.append(cur.strip()); cur = ""
        else: cur += ch
    if cur.strip(): out.append(cur.strip())
    return out

class Ins:
    __slots__ = ("text", "kind", "rd", "wr", "tag", "mn", "srcc", "srcab", "width", "arg", "region")
    def __init__(self, text, tag=None):
        self.region = 0; self.text = text; self.tag = tag; self.rd = set(); self.wr = set(); self.srcc = set(); self.srcab = set(); self.width = 0; self.arg = None
        t = text.split(";")[0].strip()
        if t.endswith(":"):
            self.kind = "label"; self.mn = "label"; return
        if t.startswith("@"):
            p = t.split()
            self.kind = "pseudo"; self.mn = p[0]; self.arg = p[1:] ; return
        p = t.split(None, 1)
        mn = p[0]; self.mn = mn
        rest = p[1] if len(p) > 1 else ""
        ops = split_ops(rest)
        mods = ""
        if ops:
            q = ops[-1].split(None, 1)
            if len(q) > 1 and not ops[-1].startswith("hwreg"):
                ops[-1] = q[0]; mods = q[1]
        R = lambda i: set(regs_of(ops[i])) if i < len(ops) else set()
        allr = lambda a: set().union(*[R(i) for i in range(a, len(ops))]) if a < len(ops) else set()
        EX = {("x", "exec")}
        if mn.startswith("v_mfma"):
            self.kind = "mfma"; self.wr = R(0); self.srcab = R(1) | R(2); self.srcc = R(3); self.rd = self.srcab | self.srcc | EX
        elif mn.startswith("buffer_load"):
            if " lds" in (" " + mods):
                self.kind = "dma"; self.rd = allr(0) | {("x", "m0")} | EX
            else:
                self.kind = "vld"; self.wr = R(0); self.rd = allr(1) | EX
                if "d16" in mn: self.rd |= R(0)
        elif mn.startswith("buffer_store"):
            self.kind = "vst"; self.rd = allr(0) | EX; self.width = len(R(0)); self.srcab = R(0)
        elif mn.startswith("buffer_atomic"):
            self.kind = "vst"; self.rd = allr(0) | EX
        elif mn.startswith("ds_read") or mn.startswith("ds_bpermute") or mn.startswith("ds_swizzle"):
            self.kind = "dsr"; self.wr = R(0); self.rd = allr(1) | EX
        elif mn.startswith("ds_write"):
            self.kind = "dsw"; self.rd = allr(0) | EX
        elif mn.startswith("s_load") or mn in ("s_memtime", "s_memrealtime"):
            self.kind = "smem"; self.wr = R(0); self.rd = allr(1)
        elif mn == "s_waitcnt": self.kind = "wait"
        elif mn == "s_nop": self.kind = "nop"; self.arg = int(ops[0])
        elif mn == "s_barrier": self.kind = "barrier"
        elif mn in ("s_endpgm", "s_branch") or mn.startswith("s_cbranch"):
            self.kind = "branch"
            if "vcc" in mn: self.rd = {("x", "vcc")}
            if "scc" in mn: self.rd = {("x", "scc")}
            if "exec" in mn: self.rd = EX
        elif mn in ("s_sleep", "s_setprio"): self.kind = "salu"
        elif mn.startswith("s_cmp") or mn.startswith("s_bitcmp"):
            self.kind = "salu"; self.rd = allr(0); self.wr = {("x", "scc")}
        elif mn.startswith("s_"):
            self.kind = "salu"; self.wr = R(0); self.rd = allr(1)
            if "saveexec" in mn: self.wr |= EX; self.rd |= EX
            if mn.startswith("s_cselect") or mn.startswith("s_addc") or mn.startswith("s_subb"): self.rd |= {("x", "scc")}
            if not (mn.startswith("s_mov") or mn.startswith("s_cselect") or mn.startswith("s_mul") or mn.startswith("s_getreg") or mn.startswith("s_getpc")): self.wr |= {("x", "scc")}
        elif mn.startswith("v_"):
            self.kind = "trans" if mn.startswith(TRANS) else "valu"
            self.wr = R(0); self.rd = allr(1) | EX
            if mn.startswith("v_permlane") : self.wr = R(0) | R(1); self.rd = R(0) | R(1) | EX
            if mn.startswith(RMW): self.rd |= R(0)
            if "_co_" in mn: self.wr |= R(1); self.rd = allr(2) | EX
            if "_dpp" in mn or "row_" in mods or "quad_perm" in mods:
                self.arg = "dpp"
                self.rd |= R(0)
            if "sdwa" in mn or "op_sel" in mods: self.arg = "sdwa" if "sdwa" in mn else self.arg
            if mn.startswith("v_cndmask") and len(ops) == 3: self.rd |= {("x", "vcc")}
        else:
            raise ValueError("unknown instr: " + text)

class Prog:
    def __init__(self):
        self.ins = []
    def __call__(self, s, tag=None):
        for l in s.split("\n"):
            l = l.strip()
            if l and not l.startswith(";"): self.ins.append(Ins(l, tag))
    def add(self, i):
        if isinstance(i, str): self(i)
        elif isinstance(i, tuple): self(i[0], i[1])
        else: self.ins.append(i)
    def extend(self, L):
        for i in L: self.add(i)

def insert_waits(ins, verbose=False):
    out = []; vm = []; lg = []; smem_pending = set(); maxvm = 0; opt = False; nreg = [0]
    def younger(q, k): return sum(1 for e in q[k+1:] if not e[2])
    def retire(q, n):
        k = len(q) - 1
        while k >= 0 and younger(q, k) < n: k -= 1
        del q[:k+1]
    def emit(kv, kl, force_l0=False):
        parts = []
        if kv is not None:
            nv = min(younger(vm, kv), 63); parts.append(f"vmcnt({nv})"); retire(vm, nv)
        if kl is not None or force_l0:
            nl = 0 if (force_l0 or smem_pending) else min(younger(lg, kl), 15)
            parts.append(f"lgkmcnt({nl})"); retire(lg, nl)
            if nl == 0: smem_pending.clear()
        if parts: out.append(Ins("s_waitcnt " + " ".join(parts)))
    def last(q, touch):
        for k in range(len(q) - 1, -1, -1):
            if q[k][1] & touch: return k
        return None
    for i in ins:
        if i.kind == "pseudo":
            if i.mn == "@waitvm":
                idx = [k for k, e in enumerate(vm) if e[0] in i.arg]
                if idx: emit(idx[-1], None)
            elif i.mn == "@waitvm_all":
                if vm: emit(len(vm) - 1, None)
            elif i.mn == "@waitlg_all":
                if lg or smem_pending: emit(None, None, True)
            elif i.mn == "@wait_all":
                emit(len(vm) - 1 if vm else None, None, bool(lg or smem_pending))
            elif i.mn == "@need":
                touch = set()
                for o in i.arg: touch |= set(regs_of(o))
                emit(last(vm, touch), last(lg, touch))
            elif i.mn == "@opt_begin": opt = True; nreg[0] += 1
            elif i.mn == "@opt_end": opt = False
            else: raise ValueError(i.mn)
            continue
        if i.kind == "wait":
            assert not opt
            m = re.search(r"vmcnt\((\d+)\)", i.text)
            if m: retire(vm, int(m.group(1)))
            m = re.search(r"lgkmcnt\((\d+)\)", i.text)
            if m:
                n = int(m.group(1))
                if n == 0: lg.clear(); smem_pending.clear()
                elif not smem_pending: retire(lg, n)
            out.append(i); continue
        touch = i.rd | i.wr
        kv = last(vm, touch); kl = last(lg, touch)
        if i.kind in ("vld", "vst", "dma") and len(vm) >= 63 and kv is None: kv = len(vm) - 63
        n0 = len(out)
        if opt:
            sv, sl, sp = list(vm), list(lg), set(smem_pending)
            emit(kv, kl, bool(smem_pending & touch))
            vm[:] = sv; lg[:] = sl; smem_pending.clear(); smem_pending.update(sp)
        else: emit(kv, kl, bool(smem_pending & touch))
        out.append(i)
        if opt:
            for x in out[n0:]: x.region = nreg[0]
        if i.kind in ("vld", "vst", "dma"):
            vm.append((i.tag, set(i.wr), opt)); maxvm = max(maxvm, len(vm))
        elif i.kind in ("dsr", "dsw"): lg.append((i.tag, set(i.wr), opt))
        elif i.kind == "smem": smem_pending |= i.wr
    if verbose: print("max vm outstanding", maxvm)
    return out

def isv(r): return r[0] in ("v", "a")
def iss(r): return r[0] == "s" or r == ("x", "vcc")

def need(p, c):
    n = 0
    pv = p.kind in ("valu", "trans")
    cv = c.kind in ("valu", "trans")
    vm = c.kind in ("vld", "vst", "dma")
    if p.kind == "mfma":
        passes = 8 if "32x32" in p.mn else 4
        d = p.wr
        if c.kind == "mfma":
            if d & c.srcab: n = max(n, {4: 8, 8: 12}[passes])
            if d & c.srcc and not (d == c.srcc): n = max(n, {4: 6, 8: 10}[passes])
            if d & c.wr and not (d & c.srcc): n = max(n, {4: 6, 8: 10}[passes])
        elif (cv or vm or c.kind in ("dsr", "dsw")) and d & (c.rd | c.wr): n = max(n, {4: 8, 8: 12}[passes])
        if (cv or c.kind in ("vld", "dsr")) and p.srcc & c.wr: n = max(n, {4: 3, 8: 7}[passes])
    if pv:
        w = p.wr
        wv = {r for r in w if isv(r)}; ws = {r for r in w if iss(r)}
        if c.kind == "mfma" and wv & c.rd: n = max(n, 2)
        if cv and c.arg == "dpp" and wv & c.rd: n = max(n, 2)
        if cv and c.mn.startswith("v_permlane") and wv & c.rd: n = max(n, 2)
        if c.mn.startswith(("v_readlane", "v_readfirstlane")) and wv & c.rd: n = max(n, 1)
        if vm and ws & c.rd: n = max(n, 5)
        if cv and ws & c.rd: n = max(n, 2)
        if c.kind == "salu" and ws & c.rd: n = max(n, 1)
        if p.kind == "trans" and c.kind in ("valu",) and wv & c.rd: n = max(n, 1)
        if p.kind == "trans" and c.kind in ("dsw", "vst") and wv & c.rd: n = max(n, 1)
        if p.arg == "sdwa" and cv and wv & (c.rd | c.wr): n = max(n, 1)
        if p.mn.startswith("v_dot2") and (c.kind != "valu" or c.mn != p.mn or (wv & (c.rd - c.wr))) and wv & (c.rd | c.wr): n = max(n, 3)
        if ("x", "exec") in w: n = max(n, 5)
    if p.kind == "vst" and p.width >= 3 and (cv or c.kind in ("vld", "dsr", "mfma")) and p.srcab & c.wr: n = max(n, 2)
    if p.kind == "salu" and ("x", "m0") in p.wr and c.kind == "dma": n = max(n, 1)
    if p.kind == "salu" and ("x", "exec") in p.wr and cv and c.arg == "dpp": n = max(n, 0)
    return n

def insert_nops(ins):
    out = []; added = 0
    for c in ins:
        if c.kind not in ("label", "wait", "nop", "barrier"):
            req = 0
            for skip in (False, True):
                dist = 0
                for p in reversed(out):
                    if p.kind == "label": continue
                    if skip and p.region and p.region != c.region: continue
                    n = need(p, c)
                    if n > dist: req = max(req, n - dist)
                    dist += (p.arg + 1) if p.kind == "nop" else 1
                    if dist >= 12: break
            if req:
                x = Ins(f"s_nop {req - 1}"); x.region = c.region
                out.append(x); added += req
        out.append(c)
    return out, added

def finalize(prog, verbose=False):
    a = insert_waits(prog.ins, verbose)
    a, added = insert_nops(a)
    if verbose:
        from collections import Counter
        print("instrs", len(a), "nop states added", added, Counter(i.kind for i in a))
    return "\n".join(("" if i.kind == "label" else "  ") + i.text for i in a) + "\n"

def interleave(P, mains, fillers, per_gap=2):
    k = 0
    for n, m in enumerate(mains):
        P.add(m)
        c = 0
        while k < len(fillers) and c < per_gap and fillers[k][0] <= n:
            P.add(fillers[k][1])
            t = fillers[k][1][0] if isinstance(fillers[k][1], tuple) else fillers[k][1]
            if not t.startswith("@"): c += 1
            k += 1
    while k < len(fillers):
        P.add(fillers[k][1]); k += 1
```

```python
import sys
from ir import *

NAME = "sequential_preLN__sliding_local_dilated__dense_activation_squared_relu__prompt"

F0S, F1G, F1S, F2G, F2S, F3A, F3B, STATS, F3C = 0x10000, 0x20000, 0x48000, 0x50000, 0x78000, 0x80000, 0xA0000, 0xC0000, 0xE0000
WQP, WOP, OP, HP, W1R, W2R, PART, STAMPS = 0x100000, 0x300000, 0x400000, 0x700000, 0xA00000, 0x1000000, 0x1600000, 0x3000000
WS_BYTES = 0x4000000
OOB = 0x40000000
LDS_BYTES = 163840
XB = 71680
R0SCR = 49152
W1SCR = 0
WOB = 0
W2SCR0 = 32768
W2SCR = 98304
XRS = 131072
VXS = 143360
XN, HB = 0, 73728
sX, sWQ, sWO, sW1, sW2, sB1, sB2, sOUT, sWS, sR = 28, 32, 36, 40, 44, 48, 52, 56, 60, 88
sW, sG2, sJ2, sGF, sJF, sTAG = 68, 69, 70, 71, 72, 73
def srd(n): return f"s[{n}:{n+3}]"
def vq(n, k=4): return f"v[{n}:{n+k-1}]"
def aq(n, k=4): return f"a[{n}:{n+k-1}]"
MF = "v_mfma_f32_16x16x32_bf16"
vL, vI, vG, vL16 = 1, 2, 3, 4

class Cfg:
    stamps = False
    nx1 = 12
    p1depth = 4
    npre = 25
    rot = True
    npre1 = 12
    wospan = 10
    f3 = (10, 14)
    pre = (8, 8, 4, 8, 26)
    wo_early = 13
    dmagap = 9
    touch = 0
    hilv = 0
    lateds = True
    optz = False
    w2tr = 6
    latemask = 0
    stfill = True
    isl = 0
    ct2 = 1
    w2bar = 'd'
    w2g = 30
    w2gap = 8
    w2h1 = 0
    xfl = ''
    xrfl = ''
    rdfl = ' sc1'
    noself = True
    two = (50, 300, 24, 5, 1)
    etest = 0
    dtest = 0
    pfast = ()
    pfn = 4
    pfs = 2
    nb = (1, 1)
    nearly = None
    tsleep = 0
    ssleep = 0
    snake = True
    g1ord = 0
    p522 = True
    fl3 = 0
    late = (1012, 8, 4)
    rord = (0, 1, 2)
    norp = ()
    ctouch = 2
    nq1 = 4
    qgap = 8
    poll1 = False
    psleep = 0
    f0both = True
    outfl = ''
    no1 = 8
    ogap = 3.5
    nh2 = 18
    hgap = 5
    p1early = False
    wflag = False
    tail4 = (10, 110, 85, 85, 200, 185, 20)
    scost = 200
    lcost = 80
    skip = ()
    lag = 20
    gq = (0, 0, 0, 0)
    f1s = 11
    tail = (14, 13, 232, 44, 5, 11, 18)
    tailord = 0
    backlog = 0
    tgap = 18.5
    slack = 70
    margin = 205
    wcost = 60
    rawfl = ' nt'
    r0fl = ' nt'
    wrsfl = ' sc1'
    rawat = 0
    ilv = True
    w2at = 1
    w2st = 0
    nh1 = 4
    hold = 0
    w2lead = 16
    nleft = 60
    p1z4 = 1
    nx2 = 11
    dbg = False
    diag = None
    wsbase = 0
    only = None
    cap = 2
    wsc = " sc1"
    nwo1 = 40
    stop = None

def gen(cfg):
    P = Prog()
    sG1, sJ1 = (sGF, sJF) if cfg.p1z4 == 1 else ((sG2, sJ2) if cfg.p1z4 == 0 else (22, 23))
    nstamp = [0]
    names = []
    def stamp_txt(name):
        if cfg.stamps and (cfg.only is None or name.replace(" ", "_") in cfg.only or name == "end") and not (cfg.only is None and name.startswith("@")):
            k = nstamp[0]; nstamp[0] += 1; names.append(name); assert k < (18 if cfg.p1z4 == 2 else 20), name
            return f"{'s_memtime' if cfg.stamps == 2 else 's_memrealtime'} s[100:101]\n@waitlg_all\ns_mov_b32 s{STAMP0+k}, s100"
        return None
    def stamp(name):
        t = stamp_txt(name)
        if t: P(t)
    STAMP0 = 4
    npoll = [0]
    def poll(vaddr, vtmp):
        k = npoll[0]; npoll[0] += 1
        P(f"""s_mov_b32 s97, 0
L_poll{k}:
s_sleep {cfg.psleep}
buffer_load_dword v{vtmp}, v{vaddr}, {srd(sWS)}, 0 offen sc1
s_add_u32 s97, s97, 1
s_waitcnt vmcnt(0)
v_cmp_ne_u32 vcc, s{sTAG}, v{vtmp}
s_cmp_gt_u32 s97, 400000
s_cbranch_scc1 L_pdone{k}
s_cbranch_vccnz L_poll{k}
L_pdone{k}:""")
    slow = []
    def poll_pre(vaddr, vtmp):
        return (f"buffer_load_dword v{vtmp}, v{vaddr}, {srd(sWS)}, 0 offen sc1", "pl")
    def poll_check(vaddr, vtmp):
        k = npoll[0]; npoll[0] += 1
        slow.append(f"""L_slow{k}:
s_mov_b32 s97, 0
L_poll{k}:
s_sleep {cfg.ssleep}
buffer_load_dword v{vtmp}, v{vaddr}, {srd(sWS)}, 0 offen sc1
s_add_u32 s97, s97, 1
s_waitcnt vmcnt(0)
v_cmp_ne_u32 vcc, s{sTAG}, v{vtmp}
s_cmp_gt_u32 s97, 400000
s_cbranch_scc1 L_back{k}
s_cbranch_vccnz L_poll{k}
s_branch L_back{k}""")
        return f"v_cmp_ne_u32 vcc, s{sTAG}, v{vtmp}\ns_cbranch_vccnz L_slow{k}\nL_back{k}:"
    def poll_fast(vaddr, vt):
        k = npoll[0]; npoll[0] += 1
        n = cfg.pfn
        ld = lambda q: f"buffer_load_dword v{vt+q}, v{vaddr}, {srd(sWS)}, 0 offen sc1"
        t = f"L_slow{k}:\ns_mov_b32 s97, 0\n"
        for q in range(n - 1): t += ld(q) + f"\ns_sleep {cfg.pfs}\n"
        t += f"L_poll{k}:\n"
        for q in range(n):
            t += ld((q + n - 1) % n) + f"\ns_waitcnt vmcnt({n-1})\nv_cmp_ne_u32 vcc, s{sTAG}, v{vt+q}\ns_cbranch_vccz L_back{k}\ns_sleep {cfg.pfs}\n"
        t += f"s_add_u32 s97, s97, 1\ns_cmp_gt_u32 s97, 200000\ns_cbranch_scc0 L_poll{k}\ns_branch L_back{k}"
        slow.append(t)
        return f"s_cmp_eq_u32 s{sW}, 0\ns_cbranch_scc1 L_slow{k}\nL_back{k}:\ns_barrier"
    def wrap(sr, step, send, sbeg):
        return f"s_add_u32 s{sr}, s{sr}, {step}\ns_cmp_eq_u32 s{sr}, s{send}\ns_cselect_b32 s{sr}, s{sbeg}, s{sr}"
    def set_flag(vaddr):
        P(f"v_mov_b32 v5, s{sTAG}")
        P(f"buffer_store_dword v5, v{vaddr}, {srd(sWS)}, 0 offen sc1", "flag")

    P("""s_cmp_ge_u32 s2, 256
s_cbranch_scc1 L_end
s_load_dwordx16 s[4:19], s[0:1], 0
s_load_dwordx2 s[20:21], s[0:1], 64
s_load_dwordx2 s[24:25], s[0:1], 80""")
    def code_touch(vd, first, sb=92, vt=62):
        P(f"""s_getpc_b64 s[{sb}:{sb+1}]
L_pc{first}:
s_and_b32 s{sb+1}, s{sb+1}, 0xffff
s_mov_b32 s{sb+2}, L_code_end - L_pc{first}
s_mov_b32 s{sb+3}, 0x00020000
s_lshr_b32 s84, s2, 3
s_lshl_b32 s84, s84, 2
v_lshrrev_b32 v{vt}, 6, v0
v_and_b32 v{vd}, 63, v0
v_lshlrev_b32 v{vd}, 7, v{vd}
v_add3_u32 v{vd}, v{vd}, v{vt}, s84
v_lshlrev_b32 v{vd}, 7, v{vd}""")
        P(f"buffer_load_dword v{vd}, v{vd}, s[{sb}:{sb+3}], 0 offen", "tch")
    if cfg.ctouch == 2: code_touch(63, 0)
    if cfg.stamps: P("s_memtime s[26:27]" if cfg.stamps == 2 else "s_memrealtime s[26:27]")
    P(f"""v_lshrrev_b32 v5, 6, v0
v_and_b32 v{vL}, 63, v0
v_readfirstlane_b32 s{sW}, v5
v_and_b32 v{vI}, 15, v0
v_lshrrev_b32 v{vG}, 4, v{vL}
v_lshlrev_b32 v{vL16}, 4, v{vL}
s_and_b32 s74, s2, 7
s_lshr_b32 s75, s2, 3
s_lshl_b32 s{sG2}, s74, 2
s_lshr_b32 s76, s75, 3
s_add_u32 s{sG2}, s{sG2}, s76
s_and_b32 s{sJ2}, s75, 7
s_lshr_b32 s{sGF}, s74, 2
s_lshl_b32 s{sGF}, s{sGF}, 4
s_lshr_b32 s76, s75, 1
s_add_u32 s{sGF}, s{sGF}, s76
s_and_b32 s{sJF}, s74, 3
s_lshl_b32 s{sJF}, s{sJF}, 1
s_and_b32 s76, s75, 1
s_add_u32 s{sJF}, s{sJF}, s76
""")
    if cfg.p1z4 == 2:
        P(f"""s_lshr_b32 s22, s74, 1
s_lshl_b32 s22, s22, 3
s_lshr_b32 s76, s75, 2
s_add_u32 s22, s22, s76
s_and_b32 s23, s74, 1
s_lshl_b32 s23, s23, 2
s_and_b32 s76, s75, 3
s_add_u32 s23, s23, s76""")
    P(f"""s_lshl_b32 s77, s{sW}, 5
s_add_u32 s77, s77, s{sG1}
s_mul_i32 s78, s{sJ1}, 144""")
    sRP, sRF, sR2 = 0, 1, 3
    P(f"""s_cmp_lt_u32 s77, 72
s_cbranch_scc0 L_r0_wo
v_mul_u32_u24 v6, 2428, v{vL}
v_lshrrev_b32 v6, 16, v6
v_mul_u32_u24 v7, 27, v6
v_sub_u32 v7, v{vL}, v7
v_mul_u32_u24 v8, 7282, v7
v_lshrrev_b32 v8, 16, v8
v_mul_u32_u24 v9, 9, v8
v_sub_u32 v9, v7, v9
v_mul_u32_u24 v6, 3456, v6
v_mul_u32_u24 v8, 1152, v8
v_lshlrev_b32 v9, 4, v9
v_add3_u32 v5, v6, v8, v9
v_cmp_gt_u32 vcc, 54, v{vL}
s_mul_i32 s80, s77, {8*3456}
s_add_u32 s80, s80, s78
s_add_u32 s81, s80, {6912-1024}
s_add_u32 s82, s81, {6912-1024}
s_add_u32 s83, s82, {6912-1024}
s_branch L_r0_join
L_r0_wo:
v_mul_u32_u24 v6, 7282, v{vL}
v_lshrrev_b32 v6, 16, v6
v_mul_u32_u24 v7, 9, v6
v_sub_u32 v7, v{vL}, v7
v_mul_u32_u24 v6, 1152, v6
v_lshl_add_u32 v5, v7, 4, v6
v_cmp_gt_u32 vcc, 36, v{vL}
s_sub_u32 s79, s77, 72""")
    for G in range(2):
        if G: P("s_add_u32 s79, s79, 36")
        P(f"""s_lshr_b32 s84, s79, 2
s_mul_i32 s84, s84, 36
s_bfe_u32 s85, s79, 0x10001
s_mul_i32 s85, s85, 20
s_add_u32 s84, s84, s85
s_and_b32 s85, s79, 1
s_lshl_b32 s85, s85, 3
s_add_u32 s84, s84, s85
s_add_u32 s85, s84, 4
s_sub_u32 s86, s79, 64
s_mul_i32 s86, s86, 72
s_add_u32 s86, s86, 16
s_add_u32 s87, s86, 36
s_cmp_lt_u32 s79, 64
s_cselect_b32 s84, s84, s86
s_cselect_b32 s85, s85, s87
s_mul_i32 s84, s84, 1152
s_mul_i32 s85, s85, 1152
s_add_u32 s84, s84, s78
s_add_u32 s85, s85, s78
s_sub_u32 s{80+2*G}, s84, {1024*(2*G)}
s_sub_u32 s{81+2*G}, s85, {1024*(2*G+1)}""")
    P(f"""s_cmp_lt_u32 s77, 108
s_cselect_b32 s80, s80, {OOB}
s_cselect_b32 s81, s81, {OOB}
s_cselect_b32 s82, s82, {OOB}
s_cselect_b32 s83, s83, {OOB}
L_r0_join:
s_nop 1
v_mov_b32 v6, {OOB}
v_cndmask_b32 v5, v6, v5, vcc
s_lshl_b32 s84, s{sW}, 12
s_add_u32 s84, s84, {R0SCR}
s_mov_b32 m0, s84
s_waitcnt lgkmcnt(0)""")
    def mksrd(d, p, n):
        P(f"s_mov_b32 s{d}, s{p}\ns_and_b32 s{d+1}, s{p+1}, 0xffff\ns_mov_b32 s{d+2}, {n}\ns_mov_b32 s{d+3}, 0x00020000")
    P(f"""s_cmp_lt_u32 s77, 72
s_cselect_b32 s{sR}, s6, s8
s_cselect_b32 s{sR+1}, s7, s9
s_mov_b32 s85, {576*1152}
s_cselect_b32 s{sR+2}, {576*3456}, s85
s_and_b32 s{sR+1}, s{sR+1}, 0xffff
s_mov_b32 s{sR+3}, 0x00020000""")
    if cfg.stamps: P(("s_memtime" if cfg.stamps == 2 else "s_memrealtime") + " s[38:39]")
    for q in range(4):
        P(f"buffer_load_dwordx4 v5, {srd(sR)}, s{80+q} offen offset:{1024*q}{cfg.r0fl} lds", "r0")
    if cfg.ctouch == 1: code_touch(63, 0)
    mksrd(sX, 4, 2048*1152)
    if cfg.wsbase: P(f"s_add_u32 s24, s24, {cfg.wsbase}\ns_addc_u32 s25, s25, 0")
    P(f"s_load_dword s{sTAG}, s[24:25], 0")
    XR, XH = 160, 232
    P(f"""s_lshl_b32 s84, s{sG1}, 6
s_and_b32 s85, s{sW}, 1
s_lshl_b32 s85, s85, 5
s_add_u32 s85, s85, s84
s_lshr_b32 s86, s{sW}, 1
s_add_u32 s85, s85, s86
s_mul_i32 s85, s85, 1152
v_lshrrev_b32 v8, 3, v{vL}
v_and_b32 v9, 7, v{vL}
v_mul_u32_u24 v6, 2304, v8
v_lshl_add_u32 v6, v9, 4, v6
v_add_u32 v6, s85, v6
v_add_u32 v7, {8*2304}, v6""")
    if cfg.rot:
        P(f"""s_and_b32 s86, s{sG2}, 3
s_mul_i32 s86, s86, 9
s_add_u32 s86, s86, 2
s_lshr_b32 s86, s86, 2
s_add_u32 s86, s86, s{sJ2}
s_sub_u32 s87, s86, 9
s_cmp_ge_u32 s86, 9
s_cselect_b32 s{sRP}, s87, s86
s_lshl_b32 s86, s{sG2}, 1
s_add_u32 s86, s86, s{sJ2}
s_and_b32 s{sR2}, s86, 7
s_and_b32 s86, s{sJF}, 1
s_mul_i32 s86, s86, 9
s_and_b32 s87, s{sGF}, 15
s_add_u32 s86, s86, s87
s_sub_u32 s87, s86, 18
s_cmp_ge_u32 s86, 18
s_cselect_b32 s{sRF}, s87, s86""")
        if cfg.p1z4 == 1: P(f"s_lshr_b32 s{sRP}, s{sRF}, 1")
        if cfg.p1z4 == 2:
            P(f"""s_and_b32 s86, s23, 3
s_mul_i32 s86, s86, 9
s_add_u32 s86, s86, 2
s_lshr_b32 s86, s86, 2
s_and_b32 s87, s22, 7
s_add_u32 s86, s86, s87
s_sub_u32 s87, s86, 9
s_cmp_ge_u32 s86, 9
s_cselect_b32 s{sRP}, s87, s86""")
    else:
        P(f"s_mov_b32 s{sRP}, 0\ns_mov_b32 s{sRF}, 0\ns_mov_b32 s{sR2}, 0")
    P(f"s_lshl_b32 s88, s{sRP}, 7")
    for q in range(1, 9):
        P(f"s_add_u32 s{88+q}, s{87+q}, 128\ns_cmp_eq_u32 s{88+q}, 1152\ns_cselect_b32 s{88+q}, 0, s{88+q}")
    xl = []
    for q in range(9):
        for hh in range(2):
            xl.append(f"buffer_load_dwordx4 {vq(XR + (q*2+hh)*4)}, v{6+hh}, {srd(sX)}, s{88+q} offen{cfg.xfl}")
    for l in xl[:cfg.nx1]: P(l, "x")
    mksrd(sWS, 24, WS_BYTES)
    if cfg.isl: P("s_branch L_aligned\nL_aligned:")
    P(f"""s_lshl_b32 s85, s{sW}, 2
v_add_u32 v10, s85, v{vG}
v_and_b32 v11, 7, v10
v_lshrrev_b32 v12, 3, v10
v_lshl_add_u32 v11, v11, 1, v12
v_add_u32 v11, s84, v11
v_subrev_u32 v11, 16, v11
v_mul_u32_u24 v11, 1152, v11
s_cmp_eq_u32 s{sG1}, 0
s_cselect_b32 s85, {OOB}, 0
s_cselect_b32 s86, 0, -1
v_and_b32 v11, s86, v11
v_or_b32 v11, s85, v11
v_mov_b32 v13, {OOB}
s_lshl_b32 s85, s{sRP}, 3
v_add_u32 v12, s85, v{vI}""")
    for q in range(5):
        P(f"""v_add_u32 v{84+q}, {16*q}, v12
v_subrev_u32 v89, 72, v{84+q}
v_min_u32 v{84+q}, v{84+q}, v89
v_lshl_add_u32 v{84+q}, v{84+q}, 4, v11""")
    P(f"v_cmp_gt_u32 vcc, 8, v{vI}\nv_cndmask_b32 v88, v13, v88, vcc")
    hl = [f"buffer_load_dwordx4 {vq(XH + 4*q)}, v{84+q}, {srd(sX)}, 0 offen{cfg.xfl}" for q in range(5)]
    P(f"""v_bfe_u32 v14, v{vL}, 2, 2
v_and_b32 v15, 3, v{vL}
s_lshl_b32 s84, s{sW}, 12
s_add_u32 s84, s84, {R0SCR}
s_cmp_lt_u32 s77, 72
s_cbranch_scc0 L_r1_wo
v_lshrrev_b32 v16, 1, v14
v_lshlrev_b32 v16, 10, v16
v_and_b32 v17, 1, v14
v_mul_u32_u24 v17, 432, v17
v_add3_u32 v16, v16, v17, s84
v_mul_u32_u24 v17, 36, v{vG}
v_and_b32 v18, 1, v{vG}
v_lshl_add_u32 v17, v18, 2, v17
v_lshl_add_u32 v17, v15, 3, v17
v_add_u32 v32, v16, v17
v_add_u32 v34, 144, v32
v_add_u32 v36, 288, v32
v_min_u32 v17, 2, v15
v_mul_u32_u24 v17, 144, v17
v_mul_u32_u24 v18, 72, v18
v_add3_u32 v38, v16, v17, v18
v_add_u32 v38, 32, v38
s_mov_b32 s85, 2048
s_lshr_b32 s86, s77, 2
s_mul_i32 s87, s{sJ1}, 72
s_add_u32 s86, s86, s87
s_mul_i32 s86, s86, 3584
s_add_u32 s86, s86, {WQP}
s_and_b32 s87, s77, 3
v_mul_u32_u24 v16, {18*3584}, v{vG}
v_lshl_add_u32 v16, v{vI}, 4, v16
s_lshl_b32 s79, s87, 8
s_add_u32 s79, s79, s86
v_add_u32 v40, s79, v16
v_add_u32 v41, 1024, v40
v_add_u32 v42, 2048, v40
v_lshrrev_b32 v16, 1, v15
v_lshl_add_u32 v16, v{vG}, 1, v16
v_mul_u32_u24 v16, {18*3584}, v16
v_and_b32 v17, 1, v15
v_lshl_add_u32 v17, v14, 1, v17
v_lshl_add_u32 v16, v17, 4, v16
s_lshl_b32 s79, s87, 7
s_add_u32 s79, s79, s86
s_add_u32 s79, s79, 3072
v_add_u32 v16, s79, v16
v_cmp_gt_u32 vcc, 32, v{vL}
v_cndmask_b32 v43, v13, v16, vcc
s_branch L_r1_join
L_r1_wo:
v_mul_u32_u24 v16, 144, v14
v_add_u32 v16, s84, v16
v_lshrrev_b32 v17, 1, v{vG}
v_lshlrev_b32 v17, 6, v17
v_and_b32 v18, 1, v{vG}
v_lshl_add_u32 v17, v18, 3, v17
v_lshl_add_u32 v17, v15, 4, v17
v_add_u32 v32, v16, v17
v_and_b32 v17, 1, v15
v_lshl_add_u32 v34, v17, 3, v16
v_add_u32 v34, 128, v34
v_add_u32 v36, 2048, v32
v_add_u32 v38, 2048, v34
s_mov_b32 s85, 1024
v_lshlrev_b32 v16, 10, v{vG}
v_lshl_add_u32 v16, v{vI}, 4, v16
v_cmp_gt_u32 vcc, 8, v{vL}
v_cndmask_b32 v17, v13, v{vL16}, vcc
s_sub_u32 s79, s77, 72""")
    for G in range(2):
        if G: P("s_add_u32 s79, s79, 36")
        P(f"""s_lshr_b32 s86, s79, 2
s_mul_i32 s87, s{sJ1}, 18
s_add_u32 s86, s86, s87
s_mul_i32 s86, s86, 4608
s_add_u32 s86, s86, {WOP}
s_cmp_lt_u32 s77, 108
s_cselect_b32 s86, s86, {OOB}
s_and_b32 s87, s79, 3
s_lshl_b32 s76, s87, 8
s_add_u32 s76, s76, s86
v_add_u32 v{40+2*G}, s76, v16
s_lshl_b32 s76, s87, 7
s_add_u32 s76, s76, s86
s_add_u32 s76, s76, 4096
v_add_u32 v{41+2*G}, s76, v17""")
    P("L_r1_join:\ns_nop 1")
    for t in range(4): P(f"v_add_u32 v{33+2*t}, s85, v{32+2*t}")
    mksrd(sW1, 12, 576*9216); mksrd(sW2, 16, 4608*1152); mksrd(sB1, 14, 9216); mksrd(sB2, 18, 1152); mksrd(sOUT, 20, 2048*1152)
    if cfg.dbg: mksrd(sR, 22, 256)
    if cfg.stamps: P("@waitlg_all\ns_mov_b32 s4, s26"); P("s_mov_b32 s5, s38"); nstamp[0] = 2; names.append("start"); names.append("r0 issue")
    P("s_mov_b32 s99, 0x3f803f80\ns_mov_b32 s98, 0xffff0000")
    if cfg.touch:
        P(f"v_lshlrev_b32 v90, 21, v{vL}\nv_min_u32 v90, {0x2800000}, v90")
        P(f"buffer_load_dword v60, v90, {srd(sWS)}, 0 offen", "tch")
        if cfg.touch > 1:
            P(f"buffer_load_dword v61, v90, {srd(sW1)}, 0 offen", "tch")
            P(f"buffer_load_dword v62, v90, {srd(sW2)}, 0 offen", "tch")
            P(f"buffer_load_dword v63, v90, {srd(sOUT)}, 0 offen", "tch")
    UP = {(1, 0): (32, 33, 34), (1, 1): (35, 36, 37), (2, 0): (24, 25, 34), (2, 1): (26, 27, 37)}
    for z in range(2):
        a1, d1, st = UP[(1, z)]; a2, d2, _ = UP[(2, z)]
        P(f"""s_add_u32 s84, s77, {128*z}
s_mul_i32 s85, s84, 7282
s_lshr_b32 s85, s85, 16
s_mul_i32 s86, s85, 9
s_sub_u32 s86, s84, s86
s_lshl_b32 s76, s86, 7
s_mul_i32 s87, s85, {32*9216}
s_add_u32 s87, s87, s76
s_mul_i32 s75, s{sJ1}, 1152
s_add_u32 s{a1}, s87, s75
s_mul_i32 s87, s85, {32*1152}
s_add_u32 s87, s87, s76
s_mul_i32 s75, s{sJ1}, {576*1152}
s_add_u32 s{a2}, s87, s75
s_lshr_b32 s79, s85, 2
s_lshl_b32 s79, s79, 1
s_and_b32 s75, s85, 1
s_add_u32 s79, s79, s75
s_add_u32 s75, s79, 10
s_bitcmp1_b32 s85, 1
s_cselect_b32 s79, s75, s79
s_lshr_b32 s87, s86, 1
s_mul_i32 s87, s87, 162
s_and_b32 s76, s86, 1
s_lshl_b32 s76, s76, 2
s_add_u32 s87, s87, s76
s_cmp_eq_u32 s86, 8
s_cselect_b32 s87, 8, s87
s_cselect_b32 s{st}, 162, 1
s_lshl_b32 s{st}, s{st}, 10
s_mul_i32 s76, s{sJ1}, 648
s_add_u32 s87, s87, s76
s_mul_i32 s75, s85, 9
s_add_u32 s75, s75, s87
s_lshl_b32 s75, s75, 10
s_add_u32 s{d1}, s75, {W1R}
s_mul_i32 s75, s79, 9
s_add_u32 s75, s75, s87
s_lshl_b32 s75, s75, 10
s_add_u32 s{d2}, s75, {W2R}""")
        if z:
            P("s_cmp_lt_u32 s84, 162")
            for r in (a1, d1, a2, d2): P(f"s_cselect_b32 s{r}, s{r}, {OOB}")
    P(f"""v_mul_u32_u24 v92, 9216, v8
v_lshl_add_u32 v92, v9, 4, v92
v_mul_u32_u24 v93, 1152, v8
v_lshl_add_u32 v93, v9, 4, v93
v_lshl_add_u32 v94, v{vG}, 3, v14
v_lshlrev_b32 v94, 7, v94
v_lshl_add_u32 v94, v15, 4, v94
s_lshl_b32 s84, s{sW}, 13
v_add_u32 v94, s84, v94""")
    nopt = [0]
    def optional(L, sreg, tag):
        k = nopt[0]; nopt[0] += 1
        body = "\n".join(x[0] if isinstance(x, tuple) else x for x in L)
        return [(f"s_cmp_ge_u32 s{sreg}, {OOB}\ns_cbranch_scc1 L_opt{k}\n@opt_begin\n{body}\n@opt_end\nL_opt{k}:", tag)]
    def unit_dma(mat, z, scr, vs=None):
        L = unit_dma_(mat, z, scr, vs)
        return optional(L, UP[(mat, z)][0], "wr") if (z and cfg.optz and L) else L
    def unit_tr(z, scr, vt, mat=None):
        L = unit_tr_(z, scr, vt)
        return optional(L, UP[(mat, z)][1], None) if (z and cfg.optz and mat) else L
    def unit_st(mat, z, vt):
        L = unit_st_(mat, z, vt)
        return optional(L, UP[(mat, z)][1], "wrs") if (z and cfg.optz and L) else L
    def unit_dma_(mat, z, scr, vs=None):
        if mat in cfg.norp: return []
        a = UP[(mat, z)][0]; st = 9216 if mat == 1 else 1152
        L = [f"s_lshl_b32 s84, s{sW}, 13\ns_add_u32 s84, s84, {scr + 4096*z}\ns_mov_b32 m0, s84"]
        for q in range(4):
            if q: L.append(f"s_add_u32 s{a}, s{a}, {8*st - 1024}")
            L.append((f"buffer_load_dwordx4 v{vs or 91+mat}, {srd(sW1 if mat == 1 else sW2)}, s{a} offen offset:{1024*q}{cfg.rawfl} lds", "wr"))
        return L
    def unit_tr_(z, scr, vt):
        return [f"ds_read_b64_tr_b16 {vq(vt+4*t+2*hi,2)}, v94 offset:{scr + 4096*z + 64*(t>>1) + 8*(t&1) + 512*hi}" for t in range(4) for hi in range(2)]
    def unit_st_(mat, z, vt):
        if mat in cfg.norp: return []
        _, d, st = UP[(mat, z)]; L = []
        for t in range(4):
            if t: L.append(f"s_add_u32 s{d}, s{d}, s{st}")
            L.append((f"buffer_store_dwordx4 {vq(vt+4*t)}, v{vL16}, {srd(sWS)}, s{d} offen{cfg.wrsfl}", "wrs"))
        return L
    MS, MP, ME, MO = 96, 100, 104, 108
    def emit_masks():
        P(f"""v_mov_b32 v66, {hexf(-1e30)}
v_lshlrev_b32 v64, 2, v{vG}
v_sub_u32 v64, v64, v{vI}
s_cmp_eq_u32 s{sG1}, 0
s_cselect_b32 s84, 100, 0
v_cmp_gt_u32 s[80:81], 2, v{vG}""")
        for r in range(4):
            P(f"""v_add_u32 v65, {r+7}, v64
v_cmp_gt_u32 vcc, 8, v65
v_add_u32 v65, {r}, v64
v_subrev_u32 v67, s84, v65
v_cndmask_b32 v{MS+r}, v66, 0, vcc
v_cmp_lt_i32 vcc, 8, v65
v_cmp_lt_i32 s[82:83], 8, v67
v_cmp_lt_i32 s[86:87], 0, v67
v_cndmask_b32 v{MP+r}, v66, 0, vcc
s_and_b64 s[86:87], s[86:87], s[80:81]
v_cndmask_b32 v{MO+r}, v66, 0, s[82:83]
v_cndmask_b32 v{ME+r}, v66, 0, s[86:87]""")
    if not cfg.latemask: emit_masks()
    P("@waitvm r0")
    stamp("r0 landed")
    for t in range(4):
        P(f"ds_read_b64_tr_b16 {vq(16+4*t,2)}, v{32+2*t}")
        P(f"ds_read_b64_tr_b16 {vq(18+4*t,2)}, v{33+2*t}")
    for t in range(4):
        P(f"buffer_store_dwordx4 {vq(16+4*t)}, v{40+t}, {srd(sWS)}, 0 offen sc1", "r0s")
    stamp("@r0 st")
    xrest = xl[cfg.nx1:] + hl
    P(f"@waitlg_all\ns_add_u32 s{sTAG}, s{sTAG}, 0x9E3779B9")
    P(f"""s_lshl_b32 s84, s{sJ1}, 12
s_add_u32 s84, s84, {F0S}
s_lshl_b32 s85, s{sG1}, 2
s_add_u32 s85, s85, s84
v_mov_b32 v44, s85
v_cmp_eq_u32 vcc, 0, v0
v_cndmask_b32 v44, v13, v44, vcc
v_and_b32 v45, 31, v{vL}
v_lshl_add_u32 v45, v45, 2, s84
s_lshl_b32 s84, s{sJ2 if cfg.f0both else sJ1}, 12
s_add_u32 s84, s84, {F0S - 128}
v_lshl_add_u32 v5, v{vL}, 2, s84
v_cmp_gt_u32 vcc, 32, v{vL}
v_cndmask_b32 v45, v5, v45, vcc""")
    def stats(groups, acc):
        order = sorted((r, gi, k) for gi, regs in enumerate(groups) for k, r in enumerate(regs))
        L = []
        for r, gi, k in order:
            a = acc + 4*gi + 2*(k & 1)
            c0 = "0" if k < 2 else f"v{a}"; c1 = "0" if k < 2 else f"v{a+1}"
            L.append(f"v_dot2_f32_bf16 v{a}, v{r}, s99, {c0}\nv_dot2_f32_bf16 v{a+1}, v{r}, v{r}, {c1}")
        for gi in range(len(groups)):
            a = acc + 4*gi
            L.append(f"v_add_f32 v{a}, v{a}, v{a+2}\nv_add_f32 v{a+1}, v{a+1}, v{a+3}")
        return L
    def finish_stats(A):
        for t in [f"v_mul_f32 v@0, {hexf(1/576)}, v@0", f"v_mul_f32 v@2, v@0, v@0", f"v_mul_f32 v@1, {hexf(1/576)}, v@1", "v_sub_f32 v@1, v@1, v@2",
                  "v_max_f32 v@1, 0, v@1", f"v_add_f32 v@1, {hexf(1e-5)}, v@1", "v_rsq_f32 v@1, v@1", "v_mul_f32 v@2, v@0, -v@1",
                  "v_mov_b32 v@0, v@1", "v_mov_b32 v@3, v@2"]:
            for a in A: P(t.replace("@0", str(a)).replace("@1", str(a+1)).replace("@2", str(a+2)).replace("@3", str(a+3)))
    def normalize(q, a, t, pk=True):
        L = []
        for d in range(4):
            L.append(f"v_lshlrev_b32 v{t+2*d}, 16, v{q+d}")
            L.append(f"v_and_b32 v{t+2*d+1}, s98, v{q+d}")
        if pk:
            for d in range(4): L.append(f"v_pk_fma_f32 {vq(t+2*d,2)}, {vq(t+2*d,2)}, {vq(a,2)}, {vq(a+2,2)}")
        else:
            for d in range(8): L.append(f"v_fma_f32 v{t+d}, v{t+d}, v{a}, v{a+2}")
        for d in range(4): L.append(f"v_cvt_pk_bf16_f32 v{q+d}, v{t+2*d}, v{t+2*d+1}")
        return L
    ST = 144; NT = 112
    st = stats([[XR + (q*2+hh)*4 + d for q in range(9) for d in range(4)] for hh in range(2)] + [[XH + k for k in range(20)]], ST)
    raw = {1: [], 2: []}
    for z in range(2):
        raw[1] += unit_dma(1, z, W1SCR); raw[2] += unit_dma(2, z, W2SCR0)
    raw[1].append(f"s_mul_i32 s84, s{sJF}, 1152\nv_lshlrev_b32 v5, 7, v{vI}")
    raw[1].append((f"buffer_load_dword v252, v5, {srd(sB1)}, s84 offen", "wr"))
    raw[1].append((f"buffer_load_dword v253, v5, {srd(sB2)}, 0 offen", "wr"))
    k = 0
    for n, l in enumerate(xrest + [None]):
        if n == cfg.nx2:
            if cfg.latemask == 1: emit_masks()
            if cfg.stfill and k < 4*cfg.nx1: P.extend(st[k:4*cfg.nx1]); k = 4*cfg.nx1
            stamp("@pre-ack")
            P("@waitvm r0s")
            stamp("@acked")
            P("s_barrier")
            set_flag(44)
            stamp("F0 set")
        if l is None: break
        P(l, "x")
        if cfg.nx1 + n + 1 - k//4 > cfg.lag: P.extend(st[k:k+4]); k += 4
    if cfg.rawat == 0: P.extend(raw[1])
    if cfg.w2at == -1: P.extend(raw[2])
    P.extend(st[k:])
    if cfg.rawat == 1: P.extend(raw[1])
    if cfg.w2at in (4, -2): P.extend(raw[2])
    for mod in ["quad_perm:[1,0,3,2]", "quad_perm:[2,3,0,1]", "row_half_mirror"]:
        for gi in range(3):
            for k in range(2):
                a = ST + 4*gi + k
                P(f"v_add_f32_dpp v{a}, v{a}, v{a} {mod} row_mask:0xf bank_mask:0xf")
    for k in range(2): P(f"v_add_f32_dpp v{ST+8+k}, v{ST+8+k}, v{ST+8+k} row_mirror row_mask:0xf bank_mask:0xf")
    finish_stats([ST, ST+4, ST+8])
    stamp("LN1 stats")
    P(f"""v_lshrrev_b32 v156, 2, v9
v_mul_u32_u24 v156, 5120, v156
v_and_b32 v157, 3, v9
v_lshl_add_u32 v156, v157, 8, v156
v_xor_b32 v157, v8, v9
v_lshl_add_u32 v156, v157, 4, v156
s_lshl_b32 s84, s{sW}, 10
s_add_u32 s84, s84, {XB}
v_add_u32 v156, s84, v156
v_add_u32 v157, {10240*5}, v156
v_lshrrev_b32 v158, 2, v{vI}
v_mul_u32_u24 v158, 5120, v158
v_lshl_add_u32 v158, v15, 8, v158
v_xor_b32 v159, v10, v9
v_lshl_add_u32 v158, v159, 4, v158
v_add_u32 v158, {XB + 4096}, v158
v_add_u32 v159, {20480*3}, v158""")
    ntc = [0]; NB = cfg.nb[0] + cfg.nb[1]
    def ln1_batch(b):
        L = []
        for q in range(2*b, min(2*b+2, 9)):
            for hh in range(2):
                r = XR + (q*2+hh)*4
                if not cfg.dtest: L += normalize(r, ST + 4*hh, NT + 8*(ntc[0] & 1), b < NB); ntc[0] += 1
                L.append(f"ds_write_b128 v{156 if q < 5 else 157}, {vq(r)} offset:{10240*(q % 5) + 128*hh}")
        if not cfg.dtest: L += normalize(XH + 4*b, ST + 8, NT + 8*(ntc[0] & 1), b < NB); ntc[0] += 1
        wr = f"ds_write_b128 v{158 if b < 3 else 159}, {vq(XH+4*b)} offset:{20480*(b % 3)}"
        if b == 4: wr = "s_mov_b32 exec_lo, 0x00ff00ff\ns_mov_b32 exec_hi, 0x00ff00ff\n" + wr + "\ns_mov_b64 exec, -1"
        L.append(wr)
        return L
    if cfg.rawat != 4:
        for b_ in range(cfg.nb[0]): P.extend(ln1_batch(b_))
    P(f"""s_lshl_b32 s74, s{sJ1}, 2
s_add_u32 s74, s74, s{sW}
s_mul_i32 s74, s74, {18*3584}
s_add_u32 s74, s74, {WQP}
s_add_u32 s75, s74, {18*3584}
s_mul_i32 s78, s{sRP}, {2*3584}
s_add_u32 s78, s78, s74
v_lshlrev_b32 v7, 7, v{vG}
v_lshl_add_u32 v7, v{vI}, 4, v7
v_cmp_gt_u32 vcc, 6, v{vI}
v_cndmask_b32 v7, v13, v7, vcc
v_xor_b32 v8, v{vI}, v{vG}
v_lshlrev_b32 v8, 4, v8
v_lshl_add_u32 v8, v{vG}, 8, v8
v_add_u32 v8, {XB}, v8
v_xor_b32 v9, 64, v8
v_add_u32 v10, 46080, v8
v_add_u32 v11, 46080, v9""")
    def warm(k):
        if cfg.isl: P(f"s_mov_b64 exec, 0\ns_branch L_chain{k}\nL_chainend{k}:\ns_mov_b64 exec, -1")
    warm(0)
    if cfg.latemask == 2: emit_masks()
    stamp("@LN1 b0")
    if cfg.poll1: P(f"s_waitcnt vmcnt(0)\ns_cmp_lg_u32 s{sW}, 0\ns_cbranch_scc1 L_pdone{npoll[0]}")
    poll(45, 5)
    if cfg.poll1: P("s_barrier")
    stamp("F0 seen")
    QA, KA, EA, VA = 16, 32, 52, 72
    WR = 64
    D = cfg.p1depth
    def wq_loads(s):
        b = WR + (s % D)*16
        L = [(f"buffer_load_dwordx4 {aq(b+4*t)}, v{vL16}, {srd(sWS)}, s78 offen offset:{1024*t}{cfg.wsc}", "wq") for t in range(3)]
        L.append((f"buffer_load_dwordx4 {aq(b+12)}, v7, {srd(sWS)}, s78 offen offset:3072{cfg.wsc}", "wq"))
        if s < 17: L.append(wrap(78, 3584, 75, 74))
        return L
    def x_reads(s):
        b = (s % 2)*20
        reg = (8 if s % 2 == 0 else 9) + (2 if s >= 9 else 0)
        return [f"ds_read_b128 {aq(b+4*m)}, v{reg} offset:{((s % 9)*5 + m)*1024}" for m in range(5)]
    def join(L):
        out = []; pend = ""
        for x in L:
            if isinstance(x, tuple): out.append((pend + x[0], x[1])); pend = ""
            else: pend += x + "\n"
        if pend: out.append(pend.strip())
        return out
    if cfg.rawat == 4:
        mem = join(sum([wq_loads(s) for s in range(D-1)], []))
        tail_ = [mem.pop()] if not isinstance(mem[-1], tuple) else []
        mem += tail_ + join(raw[1]) + (join(raw[2]) if cfg.w2at == 6 else [])
        work = ln1_batch(0) + ln1_batch(1)
        for l in mem[:cfg.nq1]: P.add(l)
        mem = mem[cfg.nq1:]
        for n, l in enumerate(work):
            P.add(l)
            if n % cfg.qgap == cfg.qgap - 1 and mem: P.add(mem.pop(0))
        for l in mem: P.add(l)
    else:
        for s in range(D-1): P.extend(wq_loads(s))
        if cfg.rawat == 2: P.extend(raw[1])
        if cfg.w2at == -3: P.extend(raw[2])
        for b_ in range(cfg.nb[0], NB): P.extend(ln1_batch(b_))
    P("@waitlg_all\ns_barrier")
    P.extend(x_reads(0))
    stamp("GEMM1 start")
    P("L_markA:")
    def lines(t): return t.split("\n")
    def own_flag(vd, base, sa, sha, sb, shb):
        return [f"s_lshl_b32 s86, s{sa}, {sha}", f"s_lshl_b32 s87, s{sb}, {shb}", "s_add_u32 s86, s86, s87", f"s_add_u32 s86, s86, {base}",
                f"v_mov_b32 v{vd}, s86", f"v_cmp_eq_u32 vcc, 0, v0\nv_cndmask_b32 v{vd}, v13, v{vd}, vcc"]
    def grp_poll_addr(vd, sg, base):
        return lines(f"""s_lshl_b32 s86, s{sg}, 12
s_add_u32 s86, s86, {base}
v_and_b32 v{vd}, 7, v{vL}
v_lshl_add_u32 v{vd}, v{vd}, 4, s86""")
    def set_poll_addr(vd, sj, base):
        return lines(f"""s_lshl_b32 s86, s{sj}, 12
s_add_u32 s86, s86, {base}
v_and_b32 v{vd}, 31, v{vL}
v_lshl_add_u32 v{vd}, v{vd}, 2, s86""")
    def flag_items(vaddr):
        return [f"v_mov_b32 v5, s{sTAG}", (f"buffer_store_dword v5, v{vaddr}, {srd(sWS)}, 0 offen sc1", "flag")]
    def unpack(dst, src, n):
        return sum([[f"v_lshlrev_b32 v{dst+2*k}, 16, v{src+k}", f"v_and_b32 v{dst+2*k+1}, s98, v{src+k}"] for k in range(n)], [])
    QO, KO, VO, XO = 112, 128, 148, 160
    flex = []
    T0 = 128
    if NB <= 2:
        for l in ln1_batch(2): flex.append((0, l))
    flex.append((0, "@mark0"))
    flex2 = []
    q1, q2, q3, q4 = cfg.gq
    if cfg.rawat == 3:
        for k, l in enumerate(join(raw[1])): flex2.append((int(19*q1) + 2*k, l))
    def repack(mat, scr, g0):
        flex2.append((g0, "@waitvm wr"))
        for z in range(2):
            for l in unit_tr(z, scr, T0, mat): flex2.append((g0 + 24*z, l))
            for k, l in enumerate(join(unit_st(mat, z, T0))): flex2.append((g0 + 24*z + 8 + 4*k, l))
    if cfg.w2at == 3 and q3 < q2:
        for k, l in enumerate(join(raw[2])): flex2.append((int(19*q3) + 2*k, l))
    repack(1, W1SCR, int(19*q2))
    if cfg.w2at >= 3:
        if q3 >= q2 and cfg.w2at == 3:
            for k, l in enumerate(join(raw[2])): flex2.append((int(19*q3) + 2*k, l))
        repack(2, W2SCR0, int(19*q4))
    if cfg.w2at < 0:
        flex2.append((19*cfg.w2tr, "@waitvm wr"))
        for z in range(2):
            for l in unit_tr(z, W2SCR0, 224 + 16*z): flex2.append((19*cfg.w2tr, l.replace("b16 v[", "b16 a[")))
    flex2.append((0, "@markb"))
    for l in (ln1_batch(3) if NB <= 3 else []) + own_flag(95, F1S, sJ1, 12, sG1, 2): flex.append((0, l))
    flex.append((0, "@mark1"))
    if NB <= 4:
        for l in ln1_batch(4): flex.append((0, l))
    flex.append((0, "@mark2"))
    pre = lines(f"""s_lshl_b32 s84, s{sW}, 10
s_add_u32 s84, s84, {VXS}
v_lshl_add_u32 v234, v{vI}, 1, s84
v_add_u32 v235, 512, v234
v_cmp_eq_u32 vcc, 1, v{vG}@@v_cndmask_b32 v234, v235, v234, vcc
v_lshl_add_u32 v235, v{vL}, 2, s84
v_min_u32 v236, 2, v{vI}
v_mul_u32_u24 v236, 160, v236
v_lshl_add_u32 v236, v{vG}, 3, v236
v_add_u32 v236, s84, v236
v_mov_b32 v237, s99
s_mul_i32 s84, s{sG1}, 73728
s_add_u32 s84, s84, {OP}
s_lshl_b32 s85, s{sJ1}, 1
s_lshr_b32 s86, s{sW}, 1
s_add_u32 s85, s85, s86
s_lshl_b32 s85, s85, 12
s_and_b32 s86, s{sW}, 1
s_lshl_b32 s86, s86, 9
s_add_u32 s85, s85, s86
s_add_u32 s95, s85, s84
s_lshl_b32 s87, s{sJ1}, 2
s_add_u32 s87, s87, s{sW}
s_lshl_b32 s87, s87, 8
s_add_u32 s87, s87, 65536
s_add_u32 s96, s87, s84
v_and_b32 v232, 1, v{vG}
v_lshlrev_b32 v232, 10, v232
v_lshrrev_b32 v233, 1, v{vG}
v_lshl_add_u32 v232, v233, 8, v232
v_lshl_add_u32 v232, v{vI}, 4, v232
v_lshlrev_b32 v233, 2, v{vL}
s_mul_i32 s79, s{sJ2}, 82944
s_add_u32 s79, s79, {WOP}
s_lshl_b32 s84, s{sW}, 1
s_add_u32 s85, s84, s{sR2}
s_and_b32 s86, s85, 7
s_mul_i32 s86, s86, 9216
s_add_u32 s80, s86, s79
s_add_u32 s85, s85, 1
s_and_b32 s86, s85, 7
s_mul_i32 s86, s86, 9216
s_add_u32 s81, s86, s79
s_lshl_b32 s84, s84, 10
s_add_u32 s84, s84, 73728
s_add_u32 s82, s84, s79
s_mov_b32 s83, s84
s_mul_i32 s76, s{sW}, 18432
s_lshl_b32 s84, s{sG2}, 6
s_and_b32 s85, s{sW}, 1
s_lshl_b32 s85, s85, 5
s_add_u32 s85, s85, s84
s_lshr_b32 s86, s{sW}, 1
s_add_u32 s85, s85, s86
s_mul_i32 s85, s85, 1152
s_mul_i32 s86, s{sJ2}, 144
s_add_u32 s79, s85, s86
v_mul_u32_u24 v238, 7282, v{vL}
v_lshrrev_b32 v238, 16, v238
v_mul_u32_u24 v239, 9, v238
v_sub_u32 v239, v{vL}, v239
v_mul_u32_u24 v238, 2304, v238
v_lshl_add_u32 v238, v239, 4, v238
v_cmp_gt_u32 vcc, 54, v{vL}@@v_cndmask_b32 v238, v13, v238, vcc
s_mul_i32 s77, s{sW}, 3072
s_add_u32 s77, s77, {XRS}
s_mov_b32 s94, {hexf((18 ** -0.5) * 1.4426950408889634)}""") + set_poll_addr(15, sJF, F1S)
    pre += [f"v_mov_b32 v{KO+4*m+3}, 0" for m in range(5)] + [f"v_mov_b32 v{QO+4*m+3}, 0" for m in range(4)]
    for l in pre: flex.append((19*cfg.f1s + 1, l.replace("@@", "\n")))
    mains = []; fixed = {}
    for s in range(18):
        wb = WR + (s % D)*16; xb = (s % 2)*20
        base = len(mains)
        for m in range(5):
            x = aq(xb + 4*m)
            def acc(a): return (vq(a), "0" if s == 0 else vq(a))
            if cfg.g1ord == 0:
                d, c = acc(KA + 4*m); mains.append(f"{MF} {d}, {aq(wb+4)}, {x}, {c}")
                d, c = acc(VA + 4*m); mains.append(f"{MF} {d}, {x}, {aq(wb+8)}, {c}")
                d, c = acc(EA + 4*m); mains.append(f"{MF} {d}, {aq(wb+12)}, {x}, {c}" if not (cfg.etest and m in (1, 3) and s) else "s_nop 0")
                if m < 4:
                    d, c = acc(QA + 4*m); mains.append(f"{MF} {d}, {aq(wb)}, {x}, {c}")
                elif cfg.dtest == 2: fixed.setdefault(len(mains) - 1, []).append(f"{MF} v[244:247], {aq(wb)}, {x}, 0")
        if cfg.g1ord == 1:
            def acc(a): return (vq(a), "0" if s == 0 else vq(a))
            for m in range(5):
                d, c = acc(KA + 4*m); mains.append(f"{MF} {d}, {aq(wb+4)}, {aq(xb+4*m)}, {c}")
            for m in range(4, -1, -1):
                d, c = acc(EA + 4*m); mains.append(f"{MF} {d}, {aq(wb+12)}, {aq(xb+4*m)}, {c}")
            for m in range(4):
                d, c = acc(QA + 4*m); mains.append(f"{MF} {d}, {aq(wb)}, {aq(xb+4*m)}, {c}")
            for m in range(5):
                d, c = acc(VA + 4*m); mains.append(f"{MF} {d}, {aq(xb+4*m)}, {aq(wb+8)}, {c}")
        t_ = stamp_txt(f"@q{s}") if s else None
        if t_: fixed.setdefault(base - 1, []).append(t_)
        if s == 7 and NB <= 2: fixed.setdefault(base, []).extend(["@flexdone0", "@waitlg_all", "s_barrier"])
        fb_ = ["@flexdoneb", "@waitvm wrs"]
        if s == 11: fixed.setdefault(base, []).extend(["@flexdone1"] + (fb_ if cfg.f1s == 11 else []) + ["@waitlg_all", "s_barrier"] + (flag_items(95) if cfg.f1s == 11 else []))
        if s == 15: fixed.setdefault(base, []).extend(["@flexdone2"] + (fb_ if cfg.f1s == 15 else []) + ["@waitlg_all", "s_barrier"] + (flag_items(95) if cfg.f1s == 15 else []))
        if s + 1 < 18:
            for k, l in enumerate(x_reads(s+1)): fixed.setdefault(base + 1 + 2*k, []).append(l)
            fixed.setdefault(base + 18, []).append(f"@need {aq(WR + ((s+1) % D)*16, 16)} {aq(((s+1) % 2)*20, 20)}")
        if s + D - 1 < 18:
            for k, l in enumerate(wq_loads(s + D - 1)): fixed.setdefault(base + [2, 6, 10, 12, 14][k], []).append(l)
    dma = []
    for seg in range(2):
        for k in range(9):
            it = ""
            if k % 4 == 0:
                it = f"s_add_u32 s84, s76, {seg*9216 + 1024*k}\ns_mov_b32 m0, s84\n"
                if k: it += f"s_add_u32 s{80+seg}, s{80+seg}, 4096\n"
            dma.append((it + f"buffer_load_dwordx4 v{vL16}, {srd(sWS)}, s{80+seg} offen offset:{1024*(k % 4)} sc1 lds", "wo"))
    tail3 = [(("s_mov_b32 m0, s83\n" if k == 0 else "") + f"buffer_load_dwordx4 v{vL16}, {srd(sWS)}, s82 offen offset:{1024*k} sc1 lds", "wo") for k in range(3)]
    xres3 = [(("s_mov_b32 m0, s77\n" if k == 0 else f"s_add_u32 s79, s79, {13824 - 1024}\n") + f"buffer_load_dwordx4 v238, {srd(sX)}, s79 offen offset:{1024*k}{cfg.xrfl} lds", "wo") for k in range(3)]
    ne = cfg.wo_early
    if not cfg.f0both:
        for l in set_poll_addr(240, sJ2, F0S): flex.append((0, l))
        flex.append((0, poll_pre(240, 241)))
        flex.append((19*15, poll_check(240, 241)))
    for k in range(ne): flex.append((max(19*(18 - (ne*5 + 18)//19) + 5*k, 19*cfg.f1s + 1), dma[k]))
    sched(P, mains, fixed, flex, flex2=flex2)
    stamp("GEMM1 done")
    P("s_barrier")
    A = Prog()
    A(f"s_mov_b32 exec_hi, 0xffff\nds_write_b32 v235, v237 offset:320\ns_mov_b32 exec_hi, -1")
    if cfg.dtest == 2:
        for k in range(150): A(f"v_mul_f32 v{KA + k % 20}, 1.0, v{KA + k % 20}")
    for m in range(5):
        r = QO + 4*m + 2 if m < 4 else 172
        A(f"v_cvt_pk_bf16_f32 v{r}, v{EA+4*m}, v{EA+4*m+1}")
        A(f"ds_write_b16 v234, v{r} offset:{32*m}\nds_write_b16_d16_hi v234, v{r} offset:{160+32*m}")
    SA = 176
    prev = [4, 0, 4, 2]; pmask = [ME, MP, MO, MP]
    def kop(m): A(f"v_cvt_pk_bf16_f32 v{KO+4*m}, v{KA+4*m}, v{KA+4*m+1}\nv_cvt_pk_bf16_f32 v{KO+4*m+1}, v{KA+4*m+2}, v{KA+4*m+3}\nv_cvt_pk_bf16_f32 v{KO+4*m+2}, v{EA+4*m+2}, v{EA+4*m+3}")
    def qop(m): A(f"v_cvt_pk_bf16_f32 v{QO+4*m}, v{QA+4*m}, v{QA+4*m+1}\nv_cvt_pk_bf16_f32 v{QO+4*m+1}, v{QA+4*m+2}, v{QA+4*m+3}")
    kop(4)
    for m in range(4):
        qop(m); kop(m)
        if m: A(f"{MF} {vq(SA+8*(m-1)+4)}, {vq(KO+4*(m-1))}, {vq(QO+4*(m-1))}, {vq(MS)}")
        A(f"{MF} {vq(SA+8*m)}, {vq(KO+4*prev[m])}, {vq(QO+4*m)}, {vq(pmask[m])}")
    vorder = [4, 0, 1, 4, 2, 3]
    for k, m in enumerate(vorder):
        A(f"v_cvt_pk_bf16_f32 v{VO+2*k}, v{VA+4*m}, v{VA+4*m+1}\nv_cvt_pk_bf16_f32 v{VO+2*k+1}, v{VA+4*m+2}, v{VA+4*m+3}")
        if k == 0: A(f"{MF} {vq(SA+28)}, {vq(KO+12)}, {vq(QO+12)}, {vq(MS)}")
    A("@waitlg_all")
    for k, m in enumerate(vorder): A(f"ds_read_b64 {vq(XO+2*k,2)}, v236 offset:{32*m}")
    MX = 208
    for m in range(4):
        s = SA + 8*m
        A(f"v_max3_f32 v{MX+m}, v{s}, v{s+1}, v{s+2}\nv_max3_f32 v{MX+4+m}, v{s+3}, v{s+4}, v{s+5}")
    for m in range(4):
        s = SA + 8*m
        A(f"v_max3_f32 v{MX+m}, v{MX+m}, v{s+6}, v{s+7}")
    for m in range(4): A(f"v_max_f32 v{MX+m}, v{MX+m}, v{MX+4+m}")
    A(f"""v_permlane16_swap_b32 v{MX}, v{MX+1}
v_permlane16_swap_b32 v{MX+2}, v{MX+3}
v_max_f32 v{MX}, v{MX}, v{MX+1}
v_max_f32 v{MX+2}, v{MX+2}, v{MX+3}
v_permlane32_swap_b32 v{MX}, v{MX+2}
v_max_f32 v{MX}, v{MX}, v{MX+2}
v_mul_f32 v{MX}, s94, v{MX}
v_mov_b32 v{MX+2}, v{MX}
v_permlane32_swap_b32 v{MX}, v{MX+2}
v_mov_b32 v{MX+1}, v{MX}
v_mov_b32 v{MX+3}, v{MX+2}
v_permlane16_swap_b32 v{MX}, v{MX+1}
v_permlane16_swap_b32 v{MX+2}, v{MX+3}""")
    PO = 216; OA = 16; OX = 32
    for m in range(4):
        s = SA + 8*m
        h = m & 1
        for k in range(4): A(f"v_pk_fma_f32 {vq(s+2*k,2)}, {vq(s+2*k,2)}, s[94:95], {vq(MX+(m&2),2)} op_sel:[0,0,{h}] op_sel_hi:[1,0,{h}] neg_lo:[0,0,1] neg_hi:[0,0,1]")
        if m:
            o = [0, 2, 6, 8][m-1]
            A(f"{MF} {vq(OX+4*(m-1))}, {vq(XO+o)}, {vq(PO+4*(m-1))}, 0")
            A(f"{MF} {vq(OA+4*(m-1))}, {vq(VO+o)}, {vq(PO+4*(m-1))}, 0")
        for k in range(8): A(f"v_exp_f32 v{s+k}, v{s+k}")
        for k in range(4): A(f"v_cvt_pk_bf16_f32 v{PO+4*m+k}, v{s+2*k}, v{s+2*k+1}")
    A(f"v_rcp_f32 v{MX}, v{OX+2}\nv_rcp_f32 v{MX+1}, v{OX+6}")
    A(f"{MF} {vq(OX+12)}, {vq(XO+8)}, {vq(PO+12)}, 0\n{MF} {vq(OA+12)}, {vq(VO+8)}, {vq(PO+12)}, 0")
    OP0 = 112
    for p in range(2):
        if p: A(f"v_rcp_f32 v{MX+2}, v{OX+10}\nv_rcp_f32 v{MX+3}, v{OX+14}")
        for m in (2*p, 2*p+1):
            for r in range(2): A(f"v_pk_mul_f32 {vq(OA+4*m+2*r,2)}, {vq(OA+4*m+2*r,2)}, {vq(MX+(m&2),2)} op_sel:[0,{m&1}] op_sel_hi:[1,{m&1}]")
            A(f"v_cvt_pk_bf16_f32 v{OP0+2*m}, v{OA+4*m}, v{OA+4*m+1}\nv_cvt_pk_bf16_f32 v{OP0+2*m+1}, v{OA+4*m+2}, v{OA+4*m+3}")
        for m in (2*p, 2*p+1):
            A(f"v_pk_mul_f32 {vq(OX+4*m,2)}, {vq(OX+4*m,2)}, {vq(MX+(m&2),2)} op_sel:[0,{m&1}] op_sel_hi:[1,{m&1}]")
        b = OP0 + 4*p
        A(f"v_permlane16_swap_b32 v{b}, v{b+2}\nv_permlane16_swap_b32 v{b+1}, v{b+3}")
        A(f"buffer_store_dwordx4 {vq(OP0+4*p)}, v232, {srd(sWS)}, s95 offen offset:{2048*p} sc1", "o")
        for m in (2*p, 2*p+1): A(f"v_cvt_pk_bf16_f32 v{OP0+8+m}, v{OX+4*m}, v{OX+4*m+1}")
    A(f"v_permlane16_swap_b32 v{OP0+8}, v{OP0+9}\nv_permlane16_swap_b32 v{OP0+10}, v{OP0+11}")
    A(f"v_permlane32_swap_b32 v{OP0+8}, v{OP0+10}")
    A(f"buffer_store_dword v{OP0+8}, v233, {srd(sWS)}, s96 offen sc1", "o")
    late = dma[ne:] + tail3 + xres3 + [poll_pre(15, 14)]
    if cfg.w2at == 0:
        w2l = []
        for z in range(2):
            u = unit_dma(2, z, W2SCR)
            w2l.append((u[0] + "\n" + u[1][0], "wr"))
            for q in range(1, 4): w2l.append((u[2*q] + "\n" + u[2*q+1][0], "wr"))
        assert ne in (0, 4, 8, 9, 13)
        late = w2l + late
    k = 0
    for n, ins in enumerate(A.ins):
        P.add(ins)
        if n >= 3 and (n - 3) % cfg.dmagap == 0 and k < len(late): P.add(late[k]); k += 1
    assert k == len(late)
    stamp("attn done")
    NR = 56; AF = 224
    ACA, ACB = 16, 96
    CA, CB = 96, 160
    passes = [("A", [0, 1, 2, 3, 8], ACA, CA), ("B", [4, 5, 6, 7], ACB, CB), ("C", [4, 5, 8], 16, None), ("D", [0, 1], 96, None), ("E", [2, 3], 64, None), ("F", [6, 7], 16, None)]
    if cfg.p522: passes = passes[:2] + [("C", [0, 1, 2, 3, 8], 16, None), ("E", [4, 5], 96, None), ("F", [6, 7], 128, None)]
    steps = [(pi, p) for pi in range(len(passes)) for p in range(18)]
    cons = [(pi, p, t) for pi, p in steps for t in range(len(passes[pi][1]))]
    slot = {f: n % NR for n, f in enumerate(cons)}
    def wload(n):
        pi, p, t = cons[n]; L = []
        if t == 0 and n > 0:
            if pi == 1 and p == 0:
                L.append(f"s_mul_i32 s92, s{sRF}, 9216\ns_add_u32 s92, s92, s90")
            elif pi >= 2 and p in (0, 10):
                beg = 0 if p == 0 else 10*9216; end = (10 if p == 0 else 18)*9216
                L.append(f"s_add_u32 s90, s89, {beg}\ns_add_u32 s91, s89, {end}")
                L.append(f"s_mul_i32 s92, s{93 if p == 0 else 94}, 9216\ns_add_u32 s92, s92, s90")
            else: L.append(wrap(92, 9216, 91, 90))
        tile = passes[pi][1][t]
        L.append((f"buffer_load_dwordx4 {aq(4*(n % NR))}, v{[vL16, 12, 255][tile >> 2]}, {srd(sWS)}, s92 offen offset:{1024*(tile % 4)}{cfg.wsc}", "w"))
        return L
    npf = [0]
    def prefetch(n):
        L = []
        for k in range(n): L += wload(npf[0]); npf[0] += 1
        return L
    P(f"""s_lshl_b32 s88, s{sJF}, 2
s_add_u32 s88, s88, s{sW}
s_mul_i32 s88, s88, {162*1024}
s_add_u32 s89, s88, {W2R}
s_add_u32 s88, s88, {W1R}
s_mul_i32 s92, s{sRF}, 9216
s_add_u32 s92, s92, s88
s_mov_b32 s90, s88
s_add_u32 s91, s88, {162*1024}
v_add_u32 v12, 4096, v{vL16}
v_add_u32 v255, 8192, v{vL16}""")
    P(poll_check(15, 14))
    pa, pb, pc, pd, pe = cfg.pre
    P.extend(prefetch(pa))
    P.extend(own_flag(14, F1G, sG1, 12, sJ1, 4)); P.extend(grp_poll_addr(15, sG2, F1G))
    HA = 16; HQ = 36; OF = 48; WB = 120; NW = 28
    P(f"""v_add_u32 v10, 41472, v{vL16}
v_and_b32 v11, 7, v{vI}
v_lshlrev_b32 v11, 4, v11
v_lshl_add_u32 v11, v{vG}, 7, v11
v_add_u32 v9, 41472, v11
v_mul_u32_u24 v7, 43, v{vI}
v_lshrrev_b32 v7, 8, v7
v_mul_u32_u24 v7, 160, v7
v_mul_u32_u24 v6, 144, v{vI}
v_add3_u32 v6, v6, v7, s77
v_and_b32 v7, 1, v{vG}
v_lshl_add_u32 v7, v7, 3, v6
v_lshl_add_u32 v6, v{vG}, 4, v6""")
    P("@waitvm o\ns_barrier")
    set_flag(14)
    stamp("F1 set")
    if cfg.p1early: P.add(poll_pre(15, 46))
    if cfg.w2at == 1:
        for z in range(2): P.extend(unit_dma(2, z, W2SCR))
    if cfg.ct2 == 2: code_touch(48, 1, 64, 49)
    P.extend(prefetch(pb))
    if cfg.w2h1:
        P(f"v_add_u32 v47, {W2SCR}, v94\n@waitvm wr")
        for z in range(cfg.w2h1): P.extend([l.replace("v94", "v47") for l in unit_tr(z, 0, 48 + 16*z)])
        for z in range(cfg.w2h1): P.extend(unit_st(2, z, 48 + 16*z))
    if not cfg.p1early and 1 not in cfg.pfast: P.add(poll_pre(15, 46))
    P(f"ds_read_b128 {vq(HQ)}, v6\nds_read_b128 {vq(HQ+4)}, v6 offset:64\nds_read_b64 {vq(HQ+8,2)}, v7 offset:128")
    def wo_reg(n): return vq(WB + 4*(n % NW))
    wor = []
    for s in range(18):
        for t in range(5):
            reg = (vL16 if s < 9 else 10) if t < 4 else (11 if s < 9 else 9)
            wor.append(f"ds_read_b128 {wo_reg(s*5+t)}, v{reg} offset:{WOB + (s % 9)*4608 + 1024*t}")
    P.extend(wor[:NW - 1])
    P(f"""s_mul_i32 s84, s{sG2}, 73728
s_lshl_b32 s85, s{sW}, 10
s_add_u32 s84, s84, s85
s_add_u32 s74, s84, {OP}
s_add_u32 s75, s74, 65536
s_mul_i32 s79, s{sW}, {1024 - 64}
s_sub_u32 s79, s75, s79
v_lshlrev_b32 v232, 10, v{vG}
v_lshl_add_u32 v232, v{vI}, 2, v232
s_lshl_b32 s78, s{sR2}, 13
s_add_u32 s78, s78, s74
s_add_u32 s84, s84, {HP}
s_mul_i32 s85, s{sJ2}, 9
v_add_u32 v6, s85, v{vG}
v_lshrrev_b32 v7, 2, v6
v_lshlrev_b32 v7, 12, v7
v_and_b32 v6, 3, v6
v_lshl_add_u32 v6, v6, 8, v7
v_lshl_add_u32 v6, v{vI}, 4, v6
v_add_u32 v6, s84, v6
s_add_u32 s85, s85, 8
s_lshr_b32 s86, s85, 2
s_lshl_b32 s86, s86, 12
s_and_b32 s85, s85, 3
s_lshl_b32 s85, s85, 8
s_add_u32 s85, s85, s86
s_add_u32 s85, s85, s84
v_lshlrev_b32 v7, 4, v{vI}
v_lshl_add_u32 v7, v{vG}, 3, v7
v_add_u32 v7, s85, v7
v_cmp_gt_u32 s[82:83], 2, v{vG}
v_add_u32 v8, 4096, v6
v_add_u32 v47, {W2SCR}, v94
v_mov_b32 v235, v93
v_cndmask_b32 v7, v13, v7, s[82:83]
s_lshl_b32 s84, s{sG2}, 2
s_add_u32 s84, s84, s{sW}
s_lshl_b32 s84, s84, 3
s_add_u32 s84, s84, s{sJ2}
s_lshl_b32 s84, s84, 7
s_add_u32 s84, s84, {STATS}
v_lshl_add_u32 v233, v{vI}, 3, s84
v_cmp_gt_u32 vcc, 16, v{vL}
v_cndmask_b32 v233, v13, v233, vcc""")
    P.extend(unpack(HA, HQ, 10))
    if cfg.isl == 1: warm(1)
    P(poll_fast(15, 236) if 1 in cfg.pfast else poll_check(15, 46))
    stamp("F1 seen")
    ol = []
    for s in range(16):
        ol.append([(f"buffer_load_dwordx4 {vq(OF+4*s)}, v{vL16}, {srd(sWS)}, s78 offen sc1", "of")] + ([wrap(78, 4096, 75, 74)] if s < 15 else []))
    for s in (16, 17):
        for ww in range(4): ol.append([(f"buffer_load_dword v{OF+4*s+ww}, v232, {srd(sWS)}, s79 offen offset:{256*ww} sc1", "of")] + (["s_add_u32 s79, s79, 4096"] if (s, ww) == (16, 3) else []))
    for L in ol[:cfg.no1]: P.extend(L)
    flex = []
    for l in own_flag(14, F2G, sG2, 12, sJ2, 4) + grp_poll_addr(15, sGF, F2G): flex.append((0, l))
    for l in lines(f"""s_mul_i32 s84, s{sJF}, 1152
s_lshl_b32 s85, s{sW}, 8
s_add_u32 s80, s85, s84
s_lshr_b32 s86, s{sW}, 1
s_lshl_b32 s86, s86, 6
s_and_b32 s87, s{sW}, 1
s_lshl_b32 s87, s87, 3
s_add_u32 s86, s86, s87
s_add_u32 s81, s86, s84
v_lshlrev_b32 v234, 4, v{vG}"""): flex.append((0, l))
    for l in prefetch(pc): flex.append((64, l))
    mains = [f"{MF} {vq(HA+4*t)}, {wo_reg(s*5+t)}, {vq(OF+4*s)}, {vq(HA+4*t)}" for s in range(18) for t in range(5)]
    fixed = {n: [wor[n + NW - 1]] for n in range(90 - NW + 1)}
    for k, L in enumerate(ol[cfg.no1:]):
        g = int(k*cfg.ogap)
        fixed.setdefault(g, []).append(L[0])
        if len(L) > 1: fixed.setdefault(g + 1, []).append(L[1])
    sched(P, mains, fixed, flex)
    for k in range(4): P(f"v_cvt_pk_bf16_f32 v{HQ+k}, v{HA+2*k}, v{HA+2*k+1}")
    P(f"buffer_store_dwordx4 {vq(HQ)}, v6, {srd(sWS)}, 0 offen sc1", "h")
    for k in range(4, 8): P(f"v_cvt_pk_bf16_f32 v{HQ+k}, v{HA+2*k}, v{HA+2*k+1}")
    P(f"buffer_store_dwordx4 {vq(HQ+4)}, v8, {srd(sWS)}, 0 offen sc1", "h")
    for k in range(8, 10): P(f"v_cvt_pk_bf16_f32 v{HQ+k}, v{HA+2*k}, v{HA+2*k+1}")
    P(f"buffer_store_dwordx2 {vq(HQ+8,2)}, v7, {srd(sWS)}, 0 offen sc1", "h")
    P(f"v_cndmask_b32 v16, 0, v{HQ+8}, s[82:83]\nv_cndmask_b32 v17, 0, v{HQ+9}, s[82:83]")
    P.extend(stats([[16, 17] + [HQ + k for k in range(8)]], 20))
    def xsum(a):
        for sw in ["v_permlane16_swap_b32", "v_permlane32_swap_b32"]:
            for k in range(2): P(f"v_mov_b32 v{a+2+k}, v{a+k}")
            for k in range(2): P(f"{sw} v{a+k}, v{a+2+k}")
            for k in range(2): P(f"v_add_f32 v{a+k}, v{a+k}, v{a+2+k}")
    xsum(20)
    P(f"buffer_store_dwordx2 {vq(20,2)}, v233, {srd(sWS)}, 0 offen sc1", "h")
    stamp("proj done")
    B1P = 136; HR = 160; ST = 132; NT = 116; SR = 154
    for p in range(4): P(f"buffer_load_dwordx4 {vq(B1P+4*p)}, v234, {srd(sB1)}, s80 offen offset:{64*p}", "b1")
    P(f"buffer_load_dwordx2 {vq(B1P+16,2)}, v234, {srd(sB1)}, s81 offen offset:1024", "b1")
    P.extend(prefetch(pd))
    P("@waitvm h\n@waitlg_all\ns_barrier")
    set_flag(14)
    stamp("F2 set")
    P("L_markB:")
    if cfg.w2at == 2:
        P.add(poll_pre(15, 46))
        for z in range(2): P.extend(unit_dma(2, z, W2SCR, 235))
    if cfg.w2at < 0:
        for z in range(2): P.extend([(l[0].replace("dwordx4 v[", "dwordx4 a["), l[1]) if isinstance(l, tuple) else l for l in unit_st(2, z, 224 + 16*z)])
    elif cfg.w2st == 0 and cfg.w2at < 3:
        P("@waitvm wr")
        for z in range(cfg.w2h1, 2): P.extend([(l[0].replace("v94", "v47"), l[1]) if isinstance(l, tuple) else l.replace("v94", "v47") for l in unit_tr(z, 0, 48 + 16*z, 2)])
        for z in range(cfg.w2h1, 2): P.extend(unit_st(2, z, 48 + 16*z))
    if cfg.ct2 == 1: code_touch(16, 1, 64, 17)
    P.extend(prefetch(pe))
    if cfg.w2at != 2 and 2 not in cfg.pfast: P.add(poll_pre(15, 46))
    P.extend(unpack(CA, B1P, 8)); P.extend(unpack(CA+16, B1P+16, 2))
    P(f"""s_mul_i32 s84, s{sGF}, 73728
s_lshl_b32 s85, s{sW}, 10
s_add_u32 s84, s84, s85
s_add_u32 s74, s84, {HP}
s_add_u32 s75, s74, 73728
s_lshl_b32 s77, s{sRF}, 12
s_add_u32 s77, s77, s74
v_add_u32 v6, s85, v{vL16}
v_add_u32 v7, 36864, v6
v_add_u32 v8, 36864, v{vL16}
v_add_u32 v9, {HB}, v{vL16}
v_add_u32 v10, {HB + 36864}, v{vL16}
v_mov_b32 v11, v47
s_and_b32 s93, s{sGF}, 15
s_lshr_b32 s94, s93, 1
s_mul_i32 s93, s93, 5
s_lshr_b32 s93, s93, 3
s_lshl_b32 s84, s{sGF}, 12
s_add_u32 s84, s84, s85
s_add_u32 s84, s84, {STATS}
v_lshlrev_b32 v239, 8, v{vG}
v_lshl_add_u32 v239, v{vI}, 3, v239""")
    if not cfg.rot: P("s_mov_b32 s93, 0\ns_mov_b32 s94, 0")
    P.extend(own_flag(14, F2S, sJ1, 12, sG1, 2))
    vPS, vSS, vF3, vP3, vL4, vL2, vLS, vH4, vH2, vPT, vC4, vC2, vO4, vO2, vOS = range(240, 255)
    P.extend(own_flag(vF3, F3A, sGF, 12, sJF, 4)); P.extend(grp_poll_addr(vP3, sGF, F3A))
    if cfg.wflag:
        P(f"""s_lshl_b32 s87, s{sW}, 7
s_add_u32 s86, s86, s87
v_add_u32 v{vP3}, s87, v{vP3}
s_lshl_b32 s87, s{sJF}, 4
s_add_u32 s86, s86, s87
v_mov_b32 v{vF3}, s86
v_cmp_eq_u32 vcc, 0, v{vL}
v_cndmask_b32 v{vF3}, v13, v{vF3}, vcc""")
    P(f"""s_lshl_b32 s86, s{sGF}, 6
s_add_u32 s86, s86, s{sJF}
s_mul_i32 s86, s86, 9216
s_add_u32 s86, s86, {PART}
v_lshrrev_b32 v{vPS}, 3, v{vI}
v_mul_u32_u24 v{vPS}, {8*9216}, v{vPS}
v_and_b32 v5, 7, v{vI}
v_lshlrev_b32 v5, 3, v5
v_lshl_add_u32 v5, v{vG}, 6, v5
v_add3_u32 v{vSS}, v{vPS}, v5, s86
v_add_u32 v{vPS}, v{vSS}, v5
s_lshl_b32 s85, s{sW}, 8
s_add_u32 s87, s85, 8192
v_add_u32 v{vSS}, s87, v{vSS}
s_lshl_b32 s76, s{sW}, 11
v_add_u32 v{vPS}, s76, v{vPS}
s_lshl_b32 s86, s{sGF}, 3
s_add_u32 s86, s86, s{sJF}
s_mul_i32 s86, s86, {8*9216}
s_add_u32 s86, s86, {PART}
s_add_u32 s76, s76, s86
v_add_u32 v{vL4}, s76, v{vL16}
s_add_u32 s87, s87, s86
v_lshl_add_u32 v{vLS}, v{vL}, 3, s87
v_cmp_gt_u32 vcc, 32, v{vL}
v_lshrrev_b32 v5, 5, v{vL}
v_bfe_u32 v{vC4}, v{vL}, 3, 2
v_cndmask_b32 v{vLS}, v13, v{vLS}, vcc
v_and_b32 v{vO4}, 7, v{vL}
v_lshlrev_b32 v{vH4}, 12, v5
v_lshl_add_u32 v{vH4}, v{vC4}, 8, v{vH4}
v_lshl_add_u32 v{vH4}, v{vO4}, 4, v{vH4}
v_lshlrev_b32 v{vC4}, 4, v{vC4}
v_lshl_add_u32 v{vC4}, v5, 6, v{vC4}
s_lshr_b32 s87, s{sJF}, 1
s_and_b32 s86, s{sJF}, 1
s_lshl_b32 s76, s{sGF}, 6
s_and_b32 s32, s87, 1
s_lshl_b32 s32, s32, 5
s_add_u32 s76, s76, s32
s_lshr_b32 s32, s87, 1
s_add_u32 s76, s76, s32
s_lshl_b32 s32, s86, 4
s_add_u32 s76, s76, s32
s_mul_i32 s76, s76, 1152
v_mul_u32_u24 v{vO4}, 2304, v{vO4}
v_add3_u32 v{vO4}, v{vO4}, v{vC4}, s76
v_cndmask_b32 v{vOS}, v13, v{vO4}, vcc
s_mul_i32 s76, s{sGF}, 73728
s_lshl_b32 s87, s87, 10
s_add_u32 s76, s76, s87
s_lshl_b32 s86, s86, 7
s_add_u32 s76, s76, s86
s_add_u32 s76, s76, {HP}
s_lshl_b32 s86, s{sW}, 14
s_add_u32 s32, s76, s86
s_add_u32 s33, s32, 8192
s_lshr_b32 s86, s{sW}, 1
s_and_b32 s87, s{sW}, 1
s_lshl_b32 s87, s87, 3
s_lshl_b32 s36, s86, 12
s_add_u32 s36, s36, s87
s_add_u32 s36, s36, 65536
s_add_u32 s36, s36, s76
s_mov_b32 s38, s85
s_lshl_b32 s39, s86, 6
s_add_u32 s39, s39, s87
s_add_u32 s39, s39, 1024
s_mov_b32 s80, 0
s_mov_b32 s81, {16*9216}
s_mov_b32 s82, {32*9216}
s_mov_b32 s83, {48*9216}
s_mov_b32 s95, 0x00003f80
s_mov_b32 s96, 0x3f800000""")
    if cfg.isl == 2: warm(1)
    P("L_markC:")
    P(f"s_or_b32 s86, s2, s{sW}\ns_cbranch_scc0 L_epoch\nL_epoch_back:")
    slow.append(f"""L_epoch:
s_waitcnt vmcnt(0)
v_lshrrev_b32 v16, 5, v{vL}
v_lshlrev_b32 v16, 12, v16
v_and_b32 v17, 31, v{vL}
v_lshl_add_u32 v16, v17, 2, v16
v_add_u32 v16, {F0S}, v16
v_add_u32 v17, 8192, v16
v_add_u32 v18, 16384, v16
v_add_u32 v19, 24576, v16
s_mov_b32 s97, 0
L_epoch_poll:
buffer_load_dword v20, v16, {srd(sWS)}, 0 offen sc1
buffer_load_dword v21, v17, {srd(sWS)}, 0 offen sc1
buffer_load_dword v22, v18, {srd(sWS)}, 0 offen sc1
buffer_load_dword v23, v19, {srd(sWS)}, 0 offen sc1
s_add_u32 s97, s97, 1
s_waitcnt vmcnt(0)
v_xor_b32 v20, s{sTAG}, v20
v_xor_b32 v21, s{sTAG}, v21
v_xor_b32 v22, s{sTAG}, v22
v_xor_b32 v23, s{sTAG}, v23
v_or_b32 v20, v20, v21
v_or3_b32 v20, v20, v22, v23
v_cmp_ne_u32 vcc, 0, v20
s_cmp_gt_u32 s97, 400000
s_cbranch_scc1 L_epoch_set
s_cbranch_vccnz L_epoch_poll
L_epoch_set:
v_mov_b32 v16, 0
v_mov_b32 v17, s{sTAG}
s_mov_b64 exec, 1
buffer_store_dword v17, v16, {srd(sWS)}, 0 offen sc1
s_mov_b64 exec, -1
s_waitcnt vmcnt(0)
s_branch L_epoch_back""")
    P(poll_fast(15, 232) if 2 in cfg.pfast else poll_check(15, 46))
    stamp("F2 seen")
    for k in range(2): P(f"buffer_load_dwordx2 {vq(SR+2*k,2)}, v239, {srd(sWS)}, s84 offen offset:{128*k} sc1", "hf")
    hl = []
    for s in range(18):
        hl.append([(f"buffer_load_dwordx4 {vq(HR+4*s)}, v{vL16}, {srd(sWS)}, s77 offen sc1", "hf")] + ([wrap(77, 4096, 75, 74)] if s < 17 else []))
    for s in range(cfg.nh1): P.extend(hl[s])
    P(f"v_add_f32 v{ST}, v{SR}, v{SR+2}\nv_add_f32 v{ST+1}, v{SR+1}, v{SR+3}")
    xsum(ST)
    finish_stats([ST])
    if not cfg.hilv:
        for s in range(cfg.nh1, cfg.nh2): P.extend(hl[s])
    stamp("LN2 stats")
    def ln2(s):
        return normalize(HR + 4*s, ST, NT + 8*(s & 1), s < 3) + [f"ds_write_b128 v{6 if s < 9 else 7}, {vq(HR+4*s)} offset:{XN + (s % 9)*4096}"]
    work = ln2(0) + ln2(1) + ln2(2)
    rest = [hl[s] for s in range(cfg.nh1, cfg.nh2)] if cfg.hilv else []
    for n, l in enumerate(work):
        P.add(l)
        if rest and n % cfg.hilv == cfg.hilv - 1: P.extend(rest.pop(0))
    for L in rest: P.extend(L)
    P("@waitlg_all\ns_barrier")
    def act_reads(i):
        pi, p = steps[i]
        b = AF + (i % 2)*16
        if pi < 2: reg = vL16 if p < 9 else 8
        else: reg = 9 if p < 9 else 10
        return [f"ds_read_b128 {aq(b+4*m)}, v{reg} offset:{((p % 9)*4 + m)*1024}" for m in range(4)]
    P.extend(act_reads(0))
    stamp("FFN start")
    mains = []; fixed = {}; start = []; load = {}
    first_use = {}; last_use = {}
    def put(g, it):
        fixed.setdefault(g, []).append(it); load[g] = load.get(g, 0) + cost(it)
    def place(items, g):
        for it in items:
            c = cost(it)
            while load.get(g, 0) > 0 and load.get(g, 0) + c > cfg.cap + 0.02: g += 1
            put(g, it)
        return g
    bar = {2: "a", 4: "b", 7: "c", 10: "d", 14: "f", 35: "0", 45: "1"}
    if cfg.w2st == 1: bar[17] = "e"
    fl2 = {0: "c", 1: "e", 2: cfg.w2bar}[cfg.w2st]
    if cfg.w2at >= 3: fl2 = None
    for i, (pi, p) in enumerate(steps):
        name, tiles, acc, cin = passes[pi]; nt = len(tiles)
        base = len(mains); start.append(base)
        b = AF + (i % 2)*16
        t_ = stamp_txt(f"@{name}{p}") if i else None
        if t_: fixed.setdefault(base - 1, []).append(t_)
        if i in bar:
            for it in [f"@flexdone{bar[i]}"] + (["@waitvm wrs"] if bar[i] == fl2 else []) + ["@waitlg_all", "s_barrier"]: put(base, it)
            if bar[i] == fl2:
                for it in flag_items(14): put(base, it)
        for t in range(nt):
            w = aq(4*slot[(pi, p, t)])
            first_use[(pi, p, t)] = len(mains); last_use[(pi, p, t)] = len(mains) + 3
            for m in (range(4) if not (cfg.snake and t % 2) else range(3, -1, -1)):
                d = vq(acc + (t*4 + m)*4)
                c = d if p > 0 else (vq(cin + 4*t) if cin is not None else "0")
                mains.append(f"{MF} {d}, {w}, {aq(b+4*m)}, {c}")
        if i + 1 < len(steps):
            for k, l in enumerate(act_reads(i+1)): put(base + (2*k if nt > 2 else k) + (1 if i in bar else 0), l)
            pj, pp = steps[i+1]
            nxt = " ".join(aq(4*slot[(pj, pp, t)]) for t in range(len(passes[pj][1])))
            fixed.setdefault(base + 4*nt - 1, []).append(f"@need {nxt} {aq(AF + ((i+1) % 2)*16, 16)}")
            load[base + 4*nt - 1] = load.get(base + 4*nt - 1, 0) + 0.67
    start.append(len(mains))
    S = lambda pi, p: start[pi*18 + p]
    path = {}
    TQ = 176
    tq = [0]
    def epi2(acc, tiles, m, st):
        q = TQ + 4*(tq[0] % 4); tq[0] += 1
        regs = [acc + (t*4 + m)*4 + r for t in tiles for r in range(4)]
        L = [f"v_cvt_pk_bf16_f32 v{q+k}, v{regs[2*k]}, v{regs[2*k+1]}" for k in range(len(regs)//2)]
        L += st(q)
        return L
    if cfg.noself:
        def pst(m, off, tag): return lambda q: [(f"buffer_store_dwordx4 {vq(q)}, v{160+m}, {srd(sWS)}, s{80+m} offen offset:{off} sc1", tag), f"ds_write_b128 v{168+m}, {vq(q)} offset:{off}"]
        def sst(m, tag): return lambda q: [(f"buffer_store_dwordx2 {vq(q,2)}, v{164+m}, {srd(sWS)}, s{80+m} offen sc1", tag), f"ds_write_b64 v{172+m}, {vq(q,2)} offset:2048"]
    else:
        def pst(m, off, tag): return lambda q: [(f"buffer_store_dwordx4 {vq(q)}, v{vPS}, {srd(sWS)}, s{80+m} offen offset:{off} sc1", tag)]
        def sst(m, tag): return lambda q: [(f"buffer_store_dwordx2 {vq(q,2)}, v{vSS}, {srd(sWS)}, s{80+m} offen sc1", tag)]
    RW = [4, 4, 2]; RH = [200, 208, 216]; RS = [220, 228, 236]; R0 = [16, 48, 80]
    rl = [(vL4, 0), (vL4, 1024), (vLS, 0)]
    SRC = [24, 25, 26, 27, 34, 35, 37]
    def red_loads(r):
        if cfg.noself:
            L = [(f"buffer_load_dwordx{RW[r]} {vq(R0[r]+RW[r]*j,RW[r])}, v{rl[r][0]}, {srd(sWS)}, s{SRC[j]} offen offset:{rl[r][1]}{cfg.rdfl}", "rd") for j in range(7)]
            return L
        L = ["s_mov_b32 s84, 0"]
        for j in range(8):
            L.append((f"buffer_load_dwordx{RW[r]} {vq(R0[r]+RW[r]*j,RW[r])}, v{rl[r][0]}, {srd(sWS)}, s84 offen offset:{rl[r][1]} sc1", "rd"))
            if j < 7: L.append("s_add_u32 s84, s84, 9216")
        return L
    def red_sum(r):
        T = RS[r]; L = []
        for j in ([7] + list(range(7)) if cfg.noself else range(8)):
            for d in range(RW[r]):
                q = R0[r] + RW[r]*j + d
                L.append(f"v_dot2_f32_bf16 v{T+2*d}, v{q}, s95, v{T+2*d}")
                L.append(f"v_dot2_f32_bf16 v{T+2*d+1}, v{q}, s96, v{T+2*d+1}")
        for d in range(RW[r]): L.append(f"v_cvt_pk_bf16_f32 v{T+d}, v{T+2*d}, v{T+2*d+1}")
        return L
    def red_store(r):
        vo, so, oo = [(vO4, 38, 0), (vO4, 38, 128), (vOS, 39, 0)][r]
        return [(f"buffer_store_dwordx{RW[r]} {vq(RS[r],RW[r])}, v{vo}, {srd(sOUT)}, s{so} offen offset:{oo}{cfg.outfl}", "out")]
    def add_path(g, c): path[g] = path.get(g, 0) + c
    G0, s4, s2 = cfg.late
    last = len(passes) - 1
    g = G0
    for m in range(4):
        for pr in range(2): g = place(epi2(16, [2*pr, 2*pr+1], m, pst(m, 512*pr, "p1")), g) + s4
    for m in range(4): g = place(epi2(16, [4], m, sst(m, "p1")), g) + s2
    two = cfg.two
    if two:
        gs = g + two[0]
        for it in ["@waitvm p1", "s_barrier"] + flag_items(vF3) + [f"v_add_u32 v{vF3}, 512, v{vF3}"]: put(gs, it)
    gE = max(g, S(last, 0) + 3)
    for m in range(4): gE = place(epi2(96, [0, 1], m, pst(m, 1024, "p2")), gE) + s4
    assert gE - s4 < len(mains) - 1, gE
    nin = 0
    if two:
        erl = red_loads(0) + red_loads(2)
        gp = gs + two[1]
        if gp + two[2] < len(mains) - 4:
            put(gp, poll_pre(vP3, vPT))
            gq_ = place([poll_check(vP3, vPT), f"v_add_u32 v{vP3}, 512, v{vP3}"], gp + two[2])
            while nin < len(erl) and gq_ + two[3] < len(mains) - 3:
                gq_ = place(erl[nin:nin+1], gq_ + two[3]); nin += 1
            inloop = True
        else: inloop = False
        if VERBOSE: print("two-phase: stores end", g, "flag", gs, "E stores end", gE, "in-loop loads", nin)
    g = 0
    for s in range(cfg.nh2, 18):
        g = place(hl[s], g); add_path(g, 110); g += cfg.hgap
    if cfg.w2st == 2:
        g = cfg.w2g
        for z in range(2):
            g = place([l.replace("v94", "v11") for l in unit_tr(z, 0, 96)], g) + 6
            for l in join(unit_st(2, z, 96)):
                g = place([l], g); add_path(g, cfg.scost if z == 0 else cfg.scost//4); g += cfg.w2gap
    g = S(2, 11)
    for r, (sh, sb, bo) in enumerate([(32, 38, 0), (33, 38, 128), (36, 39, 0)]):
        g = place([(f"buffer_load_dwordx{RW[r]} {vq(RH[r],RW[r])}, v{vH4}, {srd(sWS)}, s{sh} offen sc1", "rh")], g + 5); add_path(g, 70)
        g = place([(f"buffer_load_dwordx{RW[r]} {vq(RH[r]+RW[r],RW[r])}, v{vC4}, {srd(sB2)}, s{sb} offen offset:{bo}", "rh")], g + 3); add_path(g, 20)
    nl = npf[0]; free = cfg.backlog; g = 0
    while nl < len(cons):
        now = g*cfg.tgap
        if g in path: free = max(free, now) + path.pop(g)
        early = last_use[cons[nl - NR]] + 1 if nl >= NR else 0
        dead = first_use[cons[nl]] - cfg.margin
        if g >= early and (free <= now + cfg.slack or g >= dead):
            L = wload(nl)
            if nl == 162 - cfg.w2lead and fl2: L = [poll_pre(15, vPT)] + L
            if nl == 162 and fl2: L = [poll_check(15, vPT)] + L
            g2 = place(L, g)
            for x in range(g + 1, g2 + 1):
                if x in path: free = max(free, x*cfg.tgap) + path.pop(x)
            assert g2 < first_use[cons[nl]] - 8, (nl, g2, first_use[cons[nl]])
            if VERBOSE and nl % 18 == 0: print(f"   load {nl} at gap {g2}, first use {first_use[cons[nl]]}, backlog {free - g2*cfg.tgap:.0f}")
            g = g2; free = max(free, g*cfg.tgap) + cfg.wcost; nl += 1
        g += 1
    if VERBOSE: print("last weight load at gap", g, "of", len(mains), "pass starts", [S(k, 0) for k in range(len(passes))])
    flex = []
    for lo, hi, mk in [(3, 5, "a"), (5, 8, "b"), (8, 11, "c"), (11, 15, "d"), (15, 18, "f")]:
        for s in range(lo, hi):
            for l in ln2(s): flex.append((0, l))
        flex.append((0, f"@mark{mk}"))
    if cfg.w2st == 1:
        flex.append((0, "@waitvm wr"))
        for z in range(2):
            for l in unit_tr(z, 0, 176): flex.append((0, l.replace("v94", "v11")))
            for l in [f"@need {vq(176,16)}"] + unit_st(2, z, 176): flex.append((0, l))
    for l in set_poll_addr(15, sJF, F2S) + unpack(CB, B1P+8, 8): flex.append((0, l))
    flex.append((0, "@marke"))
    for k, (q, mod, sr, add) in enumerate([(f"s_lshl_b32 s84, s{sW}, 1", 10, 93, 0), (f"s_lshl_b32 s84, s{sW}, 1\ns_add_u32 s84, s84, 1", 10, 93, 0),
                                           (f"s_lshr_b32 s84, s{sW}, 1\ns_add_u32 s84, s84, 8", 10, 93, 0),
                                           (f"s_lshl_b32 s84, s{sW}, 1", 8, 94, 10), (f"s_lshl_b32 s84, s{sW}, 1\ns_add_u32 s84, s84, 1", 8, 94, 10)]):
        flex.append((0, q))
        flex.append((0, f"s_sub_u32 s84, s84, s{sr}\ns_cselect_b32 s85, {mod}, 0"))
        flex.append((0, f"s_add_u32 s84, s84, s85\ns_add_u32 s84, s84, {add}"))
        flex.append((0, "s_lshl_b32 s84, s84, 12"))
        if k == 2: flex.append((0, f"s_and_b32 s85, s{sW}, 1\ns_lshl_b32 s85, s85, 3\ns_add_u32 s84, s84, s85"))
        flex.append((0, f"v_add_u32 v{192+k}, s84, v9"))
    def epi1(acc, pair_tiles, m, wr):
        L = []
        q = TQ + 4*(tq[0] % 4); tq[0] += 1
        regs = [acc + (t*4 + m)*4 + r for t in pair_tiles for r in range(4)]
        for r in regs: L.append(f"v_mul_f32 v{r}, v{r}, |v{r}|")
        for k in range(len(regs)//2): L.append(f"v_cvt_pk_bf16_f32 v{q+k}, v{regs[2*k]}, v{regs[2*k+1]}")
        for k in range(len(regs)//2): L.append(f"v_pk_max_i16 v{q+k}, v{q+k}, 0")
        L.append(wr(q))
        return L
    at = S(1, 0) + 3
    for pr in range(2):
        for m in range(4):
            for l in epi1(ACA, [2*pr, 2*pr+1], m, lambda q: f"ds_write_b128 v{192+pr}, {vq(q)} offset:{m*1024}"): flex.append((at, l))
    for m in range(4):
        for l in epi1(ACA, [4], m, lambda q: f"ds_write_b64 v194, {vq(q,2)} offset:{m*1024}"): flex.append((at, l))
    flex.append((at, "@mark0"))
    at = S(2, 0) + 3
    for pr in range(2):
        for m in range(4):
            for l in epi1(ACB, [2*pr, 2*pr+1], m, lambda q: f"ds_write_b128 v{195+pr}, {vq(q)} offset:{m*1024}"): flex.append((at, l))
    flex.append((at, "@mark1"))
    if cfg.noself:
        at = S(2, 10)
        L = lines(f"""s_and_b32 s85, s{sJF}, 1
v_lshrrev_b32 v6, 3, v{vI}
v_cmp_eq_u32 s[64:65], s85, v6
s_mul_i32 s85, s{sW}, 2560
v_and_b32 v6, 7, v{vI}
v_lshl_add_u32 v6, v{vG}, 3, v6
v_lshl_add_u32 v7, v6, 3, s85
v_lshl_add_u32 v6, v6, 4, s85
v_add_u32 v8, s85, v{vL16}
v_lshl_add_u32 v11, v{vL}, 3, s85
v_add_u32 v14, 16384, v{vL16}
s_lshr_b32 s85, s{sJF}, 1""")
        for m in range(4):
            L.append(f"s_cmp_eq_u32 s85, {m}\ns_cselect_b64 s[66:67], s[64:65], 0")
            L += [f"v_cndmask_b32 v{160+m}, v{vPS}, v13, s[66:67]", f"v_cndmask_b32 v{164+m}, v{vSS}, v13, s[66:67]",
                  f"v_cndmask_b32 v{168+m}, v14, v6, s[66:67]", f"v_cndmask_b32 v{172+m}, v14, v7, s[66:67]"]
        for k in range(7): L.append(f"s_add_u32 s86, s{sJF}, {k+1}\ns_and_b32 s86, s86, 7\ns_mul_i32 s{SRC[k]}, s86, 9216")
        for l in L: flex.append((at, l))
        flex.append((at, "@marks"))
        put(S(3, 0), "@flexdones")
    at = S(3, 0)
    UT = 192
    for r in range(3):
        for l in unpack(RS[r], RH[r], RW[r]) + unpack(UT, RH[r]+RW[r], RW[r]): flex.append((at, l))
        for d in range(2*RW[r]): flex.append((at, f"v_add_f32 v{RS[r]+d}, v{RS[r]+d}, v{UT+d}"))
    if cfg.skip:
        def keep(it):
            t = it[0] if isinstance(it, tuple) else it
            tag = it[1] if isinstance(it, tuple) else None
            if "valu" in cfg.skip and re.match(r"v_lshlrev_b32 v\d+, 16,|v_and_b32 v\d+, s98|v_fma_f32|v_cvt_pk|v_mul_f32|v_pk_max|v_add_f32", t): return False
            if "dsw" in cfg.skip and t.startswith("ds_write"): return False
            if "bar" in cfg.skip and t == "s_barrier": return False
            if "pst" in cfg.skip and tag in ("p1", "p2", "p3"): return False
            if "rd" in cfg.skip and tag in ("rd", "rh"): return False
            if "w" in cfg.skip and tag == "w": return False
            if "chk" in cfg.skip and "L_slow" in t: return False
            return True
        flex = [f for f in flex if keep(f[1])]
        fixed = {g: [x for x in L if keep(x)] for g, L in fixed.items()}
        slow[:] = [x for x in slow if any(x.split(":")[0] in i.text for i in P.ins) or "chk" not in cfg.skip]
    sched(P, mains, fixed, flex, cap=cfg.cap)
    stamp("FFN done")
    lateds = []
    for m in ((3, 2, 1, 0) if cfg.snake else range(4)):
        L = epi2(128, [0, 1], m, pst(m, 1536, "p2"))
        if cfg.noself and cfg.lateds: lateds.append(L.pop())
        P.extend(L)
    P.extend(lateds)
    if two and not inloop: P.add(poll_pre(vP3, vPT))
    P("@waitvm p2\ns_barrier")
    set_flag(vF3)
    stamp("F3c set")
    if two:
        if not inloop: P(poll_check(vP3, vPT) + f"\nv_add_u32 v{vP3}, 512, v{vP3}")
        P.extend(erl[nin:])
        P.add(poll_pre(vP3, vPT))
        P(f"@waitlg_all\nds_read_b128 {vq(R0[0]+28)}, v8\nds_read_b128 {vq(R0[1]+28)}, v8 offset:1024\nds_read_b64 {vq(R0[2]+14,2)}, v11 offset:2048")
        P.extend(red_sum(0) + red_sum(2))
        P(poll_check(vP3, vPT))
        stamp("F3c seen")
        P.extend(red_loads(1))
        P.extend(red_store(0) + red_store(2))
        P.extend(red_sum(1) + red_store(1))
    else:
        P.add(poll_pre(vP3, vPT))
        if cfg.noself:
            P(f"@waitlg_all\nds_read_b128 {vq(R0[0]+28)}, v8\nds_read_b128 {vq(R0[1]+28)}, v8 offset:1024\nds_read_b64 {vq(R0[2]+14,2)}, v11 offset:2048")
        P(poll_check(vP3, vPT))
        stamp("F3c seen")
        for r in cfg.rord: P.extend(red_loads(r))
        for r in cfg.rord: P.extend(red_sum(r) + red_store(r))
    if cfg.stamps:
        P("s_waitcnt vmcnt(0)")
        stamp("end")
        P(f"s_lshl_b32 s84, s2, 2\ns_add_u32 s84, s84, s{sW}\ns_lshl_b32 s84, s84, 7\ns_add_u32 s84, s84, {STAMPS}\nv_mov_b32 v6, s84\ns_mov_b64 exec, 1")
        if cfg.diag is not None:
            a, b = cfg.diag
            P(f"s_sub_u32 s84, s{STAMP0+b}, s{STAMP0+a}\ns_lshl_b32 s84, s84, 2\ns_add_u32 s84, s84, 10000\nL_spin:\ns_sleep 8\ns_memrealtime s[100:101]\ns_waitcnt lgkmcnt(0)\ns_sub_u32 s85, s100, s{STAMP0}\ns_cmp_lt_u32 s85, s84\ns_cbranch_scc1 L_spin")
        elif cfg.dbg:
            P(f"v_mov_b32 v6, 0\ns_not_b32 s84, s{STAMP0}\nv_mov_b32 v5, s84\nbuffer_atomic_umax v5, v6, {srd(sR)}, 0 offen")
            for k in range(min(nstamp[0], 15)):
                P(f"v_mov_b32 v{16+k}, s{STAMP0+k}\nbuffer_atomic_umax v{16+k}, v6, {srd(sR)}, 0 offen offset:{4*k+4}")
        else:
          for k in range(nstamp[0]):
            P(f"v_mov_b32 v5, s{STAMP0+k}\nbuffer_store_dword v5, v6, {srd(sWS)}, 0 offen offset:{4*k}")
    P("L_end:\ns_endpgm")
    for x in slow: P(x)
    P("L_code_end:")
    cfg.names = names
    return P

def cost(it):
    t = it[0] if isinstance(it, tuple) else it
    c = 0
    for l in t.split("\n"):
        if l.startswith("@") or l.endswith(":"): continue
        c += 0.67 if l.startswith("s_") else (2 if l.startswith("ds_write_b128") else 1)
    return c

def sched(P, mains, fixed, flex, cap=2, flex2=None):
    Q = [list(flex2 or []), list(flex)]; K = [0, 0]; marks = set()
    def put(it):
        t = it[0] if isinstance(it, tuple) else it
        if t.startswith("@mark"): marks.add(t[5:]); return 0
        if t.startswith("@flexdone"):
            for q in range(2):
                if any((x[1] if not isinstance(x[1], tuple) else x[1][0]) == "@mark" + t[9:] for x in Q[q]):
                    n0 = K[q]
                    while t[9:] not in marks:
                        it2 = Q[q][K[q]][1]; K[q] += 1; put(it2)
                    if K[q] - n0 > 1 and VERBOSE: print("flush", t, K[q] - n0)
            return 0
        P.add(it)
        return cost(t)
    for n, m in enumerate(mains):
        P.add(m)
        c = 0
        for it in fixed.get(n, []): c += put(it)
        for q in range(2):
            while K[q] < len(Q[q]) and Q[q][K[q]][0] <= n and (c == 0 or c + cost(Q[q][K[q]][1]) <= cap + 0.02):
                it = Q[q][K[q]][1]; K[q] += 1
                c += put(it)
    for q in range(2):
        if K[q] < len(Q[q]) and VERBOSE: print("left", len(Q[q]) - K[q])
        while K[q] < len(Q[q]):
            it = Q[q][K[q]][1]; K[q] += 1
            put(it)
VERBOSE = False

import struct
def hexf(x): return hex(struct.unpack("<I", struct.pack("<f", x))[0])

HEADER = open("cdna_kernels/" + NAME + ".s.ref").read().split("; Override launch geometry")[0]
NOTES = """;
; 32 row groups of 64 tokens x 8 column slices; rows of a group are kept in parity order (even tokens, odd tokens).
;  0. start-up : every workgroup transposes a share of wqkv / wo / w1 / w2 into MFMA fragment order in d_ws
; Hand-offs between workgroups: sc1 (write-through) stores, s_waitcnt, barrier, then a flag word holding a per-launch tag
; (word 0 of d_ws + constant, advanced once per launch); consumers poll with sc1 loads and read with sc1 loads, so any
"""

def add_islands(body):
    import subprocess, tempfile, os
    lines = body.rstrip("\n").split("\n")
    probe = []
    for n, l in enumerate(lines):
        probe.append(f"L_probe{n}:")
        probe.append(l)
    probe.append(f"L_probe{len(lines)}:\nL_chain0:\nL_chain1:")
    with tempfile.TemporaryDirectory() as d:
        open(d + "/p.s", "w").write('.amdgcn_target "amdgcn-amd-amdhsa--gfx950"\n.text\n' + "\n".join(probe) + "\n")
        subprocess.run(["clang", "-x", "assembler", "-target", "amdgcn-amd-amdhsa", "-mcpu=gfx950", "-c", d + "/p.s", "-o", d + "/p.o"], check=True)
        sym = subprocess.run(["llvm-readelf", "-s", "-W", d + "/p.o"], capture_output=True, text=True, check=True).stdout
    addr = {}
    for l in sym.split("\n"):
        f = l.split()
        if len(f) >= 8 and f[7].startswith("L_probe"): addr[int(f[7][7:])] = int(f[1], 16)
    size = [addr[n+1] - addr[n] for n in range(len(lines))]
    a0 = lines.index("L_aligned:"); end = lines.index("L_end:")
    mA = lines.index("L_chainend0:"); mB = max(lines.index("L_markB:"), lines.index("L_chainend1:"))
    out = lines[:a0] + [".p2align 12", lines[a0]]
    off = 0; nxt = 4096; isl = []
    for n in range(a0 + 1, len(lines)):
        if off >= nxt and n < end and size[n] > 0:
            if n > mA:
                isl.append((len(out), 0 if n < mB else 1)); out.append(None); off += 4
            nxt += 4096
        out.append(lines[n]); off += size[n]
    for c in range(2):
        L = [p for p, cc in isl if cc == c]
        for k, p in enumerate(L):
            tgt = f"L_isl{c}_{k+1}" if k + 1 < len(L) else f"L_chainend{c}"
            out[p] = (f"L_chain{c}:\n" if k == 0 else "") + f"L_isl{c}_{k}:\n  s_cbranch_execz {tgt}"
    return "\n".join(out) + "\n"

def build(cfg, verbose=False):
    body = finalize(gen(cfg), verbose)
    body = body.replace("  s_sleep 0\n", "")
    if cfg.isl: body = add_islands(body)
    k = NAME + "_kernel"
    return (HEADER + f"; @launch grid=(256,1,1) block=(256,1,1) lds={LDS_BYTES}\n" + NOTES
        + f'.amdgcn_target "amdgcn-amd-amdhsa--gfx950"\n.text\n.globl {k}\n.p2align 8\n.type {k},@function\n{k}:\n' + body
        + f""".section .rodata,"a"
.p2align 6
.amdhsa_kernel {k}
  .amdhsa_next_free_vgpr 512
  .amdhsa_next_free_sgpr 102
  .amdhsa_accum_offset 256
  .amdhsa_group_segment_fixed_size 0
  .amdhsa_kernarg_size 88
  .amdhsa_user_sgpr_count 2
  .amdhsa_user_sgpr_kernarg_segment_ptr 1
  .amdhsa_system_sgpr_workgroup_id_x 1
.end_amdhsa_kernel
""")

if __name__ == "__main__":
    cfg = Cfg(); VERBOSE = True
    out = sys.argv[1]
    for a in sys.argv[2:]:
        k, v = a.split("=")
        setattr(cfg, k, eval(v))
    open(out, "w").write(build(cfg, True))
    if cfg.stamps: open(out + ".names", "w").write("|".join(cfg.names))
```

```python
import sys
from ir import *

NAME = "sequential_preLN__sliding_local_dilated__dense_activation_squared_relu__prompt"

F0S, F1G, F1S, F2G, F2S, F3A, F3B, STATS, F3C = 0x10000, 0x20000, 0x48000, 0x50000, 0x78000, 0x80000, 0xA0000, 0xC0000, 0xE0000
WQP, WOP, OP, HP, W1R, W2R, PART, STAMPS = 0x100000, 0x300000, 0x400000, 0x700000, 0xA00000, 0x1000000, 0x1600000, 0x3000000
WS_BYTES = 0x4000000
OOB = 0x40000000
LDS_BYTES = 163840
XB = 71680
R0SCR = 49152
W1SCR = 0
WOB = 0
W2SCR0 = 32768
W2SCR = 98304
XRS = 131072
VXS = 143360
XN, HB = 0, 73728
sX, sWQ, sWO, sW1, sW2, sB1, sB2, sOUT, sWS, sR = 28, 32, 36, 40, 44, 48, 52, 56, 60, 88
sW, sG2, sJ2, sGF, sJF, sTAG = 68, 69, 70, 71, 72, 73
def srd(n): return f"s[{n}:{n+3}]"
def vq(n, k=4): return f"v[{n}:{n+k-1}]"
def aq(n, k=4): return f"a[{n}:{n+k-1}]"
MF = "v_mfma_f32_16x16x32_bf16"
vL, vI, vG, vL16 = 1, 2, 3, 4

class Cfg:
    stamps = False
    nx1 = 8
    p1depth = 4
    npre = 25
    rot = True
    npre1 = 12
    wospan = 10
    f3 = (10, 14)
    pre = (8, 8, 4, 8, 26)
    wo_early = 13
    dmagap = 9
    touch = 0
    r0bar = False
    fullsec = False
    fsh = 2
    gsh = 4
    fz = 4
    hilv = 0
    lateds = True
    optz = False
    w2tr = 6
    latemask = 0
    stfill = True
    isl = 0
    ct2 = 1
    w2bar = 'd'
    w2g = 30
    w2gap = 8
    w2h1 = 0
    xfl = ''
    xrfl = ''
    rdfl = ' sc1'
    noself = True
    two = (50, 300, 24, 5, 1)
    etest = 0
    dtest = 0
    pfast = ()
    pfn = 4
    pfs = 2
    nb = (1, 1)
    nearly = None
    tsleep = 0
    ssleep = 0
    snake = True
    g1ord = 0
    p522 = True
    fl3 = 0
    late = (1012, 8, 4)
    rord = (0, 1, 2)
    norp = ()
    ctouch = 2
    nq1 = 4
    qgap = 8
    poll1 = False
    psleep = 0
    f0both = True
    outfl = ''
    no1 = 8
    ogap = 3.5
    nh2 = 18
    hgap = 5
    p1early = False
    wflag = False
    tail4 = (10, 110, 85, 85, 200, 185, 20)
    scost = 200
    lcost = 80
    skip = ()
    lag = 20
    gq = (0, 3, 0, 0)
    f1s = 11
    tail = (14, 13, 232, 44, 5, 11, 18)
    tailord = 0
    backlog = 0
    tgap = 18.5
    slack = 70
    margin = 205
    wcost = 60
    rawfl = ' nt'
    r0fl = ' nt'
    wrsfl = ' sc1'
    rawat = 0
    ilv = True
    w2at = 1
    w2st = 0
    nh1 = 4
    hold = 0
    w2lead = 16
    nleft = 60
    p1z4 = 2
    p2same = False
    nx2 = 15
    dbg = False
    diag = None
    wsbase = 0
    only = None
    cap = 2
    wsc = " sc1"
    nwo1 = 40
    stop = None

def gen(cfg):
    P = Prog()
    sG1, sJ1 = (sGF, sJF) if cfg.p1z4 == 1 else ((sG2, sJ2) if cfg.p1z4 == 0 else (22, 23))
    nstamp = [0]
    names = []
    def stamp_txt(name):
        if cfg.stamps and (cfg.only is None or name.replace(" ", "_") in cfg.only or name == "end") and not (cfg.only is None and name.startswith("@")):
            k = nstamp[0]; nstamp[0] += 1; names.append(name); assert k < (18 if cfg.p1z4 == 2 else 20), name
            return f"{'s_memtime' if cfg.stamps == 2 else 's_memrealtime'} s[100:101]\n@waitlg_all\ns_mov_b32 s{STAMP0+k}, s100"
        return None
    def stamp(name):
        t = stamp_txt(name)
        if t: P(t)
    STAMP0 = 4
    npoll = [0]
    def poll(vaddr, vtmp):
        k = npoll[0]; npoll[0] += 1
        P(f"""s_mov_b32 s97, 0
L_poll{k}:
s_sleep {cfg.psleep}
buffer_load_dword v{vtmp}, v{vaddr}, {srd(sWS)}, 0 offen sc1
s_add_u32 s97, s97, 1
s_waitcnt vmcnt(0)
v_cmp_ne_u32 vcc, s{sTAG}, v{vtmp}
s_cmp_gt_u32 s97, 400000
s_cbranch_scc1 L_pdone{k}
s_cbranch_vccnz L_poll{k}
L_pdone{k}:""")
    slow = []
    def poll_pre(vaddr, vtmp):
        return (f"buffer_load_dword v{vtmp}, v{vaddr}, {srd(sWS)}, 0 offen sc1", "pl")
    def poll_check(vaddr, vtmp):
        k = npoll[0]; npoll[0] += 1
        slow.append(f"""L_slow{k}:
s_mov_b32 s97, 0
L_poll{k}:
s_sleep {cfg.ssleep}
buffer_load_dword v{vtmp}, v{vaddr}, {srd(sWS)}, 0 offen sc1
s_add_u32 s97, s97, 1
s_waitcnt vmcnt(0)
v_cmp_ne_u32 vcc, s{sTAG}, v{vtmp}
s_cmp_gt_u32 s97, 400000
s_cbranch_scc1 L_back{k}
s_cbranch_vccnz L_poll{k}
s_branch L_back{k}""")
        return f"v_cmp_ne_u32 vcc, s{sTAG}, v{vtmp}\ns_cbranch_vccnz L_slow{k}\nL_back{k}:"
    def poll_fast(vaddr, vt):
        k = npoll[0]; npoll[0] += 1
        n = cfg.pfn
        ld = lambda q: f"buffer_load_dword v{vt+q}, v{vaddr}, {srd(sWS)}, 0 offen sc1"
        t = f"L_slow{k}:\ns_mov_b32 s97, 0\n"
        for q in range(n - 1): t += ld(q) + f"\ns_sleep {cfg.pfs}\n"
        t += f"L_poll{k}:\n"
        for q in range(n):
            t += ld((q + n - 1) % n) + f"\ns_waitcnt vmcnt({n-1})\nv_cmp_ne_u32 vcc, s{sTAG}, v{vt+q}\ns_cbranch_vccz L_back{k}\ns_sleep {cfg.pfs}\n"
        t += f"s_add_u32 s97, s97, 1\ns_cmp_gt_u32 s97, 200000\ns_cbranch_scc0 L_poll{k}\ns_branch L_back{k}"
        slow.append(t)
        return f"s_cmp_eq_u32 s{sW}, 0\ns_cbranch_scc1 L_slow{k}\nL_back{k}:\ns_barrier"
    def wrap(sr, step, send, sbeg):
        return f"s_add_u32 s{sr}, s{sr}, {step}\ns_cmp_eq_u32 s{sr}, s{send}\ns_cselect_b32 s{sr}, s{sbeg}, s{sr}"
    def set_flag(vaddr):
        P(f"v_mov_b32 v5, s{sTAG}")
        P(f"buffer_store_dword v5, v{vaddr}, {srd(sWS)}, 0 offen sc1", "flag")

    P("""s_cmp_ge_u32 s2, 256
s_cbranch_scc1 L_end
s_load_dwordx16 s[4:19], s[0:1], 0
s_load_dwordx2 s[20:21], s[0:1], 64
s_load_dwordx2 s[24:25], s[0:1], 80""")
    def code_touch(vd, first, sb=92, vt=62):
        P(f"""s_getpc_b64 s[{sb}:{sb+1}]
L_pc{first}:
s_and_b32 s{sb+1}, s{sb+1}, 0xffff
s_mov_b32 s{sb+2}, L_code_end - L_pc{first}
s_mov_b32 s{sb+3}, 0x00020000
s_lshr_b32 s84, s2, 3
s_lshl_b32 s84, s84, 2
v_lshrrev_b32 v{vt}, 6, v0
v_and_b32 v{vd}, 63, v0
v_lshlrev_b32 v{vd}, 7, v{vd}
v_add3_u32 v{vd}, v{vd}, v{vt}, s84
v_lshlrev_b32 v{vd}, 7, v{vd}""")
        P(f"buffer_load_dword v{vd}, v{vd}, s[{sb}:{sb+3}], 0 offen", "tch")
    if cfg.ctouch == 2: code_touch(63, 0)
    if cfg.stamps: P("s_memtime s[26:27]" if cfg.stamps == 2 else "s_memrealtime s[26:27]")
    P(f"""v_lshrrev_b32 v5, 6, v0
v_and_b32 v{vL}, 63, v0
v_readfirstlane_b32 s{sW}, v5
v_and_b32 v{vI}, 15, v0
v_lshrrev_b32 v{vG}, 4, v{vL}
v_lshlrev_b32 v{vL16}, 4, v{vL}
s_and_b32 s74, s2, 7
s_lshr_b32 s75, s2, 3
s_lshl_b32 s{sG2}, s74, 2
s_lshr_b32 s76, s75, 3
s_add_u32 s{sG2}, s{sG2}, s76
s_and_b32 s{sJ2}, s75, 7
s_lshr_b32 s{sGF}, s74, 2
s_lshl_b32 s{sGF}, s{sGF}, 4
s_lshr_b32 s76, s75, 1
s_add_u32 s{sGF}, s{sGF}, s76
s_and_b32 s{sJF}, s74, 3
s_lshl_b32 s{sJF}, s{sJF}, 1
s_and_b32 s76, s75, 1
s_add_u32 s{sJF}, s{sJF}, s76
""")
    if cfg.p1z4 == 2:
        P(f"""s_lshr_b32 s22, s74, 1
s_lshl_b32 s22, s22, 3
s_lshr_b32 s76, s75, 2
s_add_u32 s22, s22, s76
s_and_b32 s23, s74, 1
s_lshl_b32 s23, s23, 2
s_and_b32 s76, s75, 3
s_add_u32 s23, s23, s76""")
    if cfg.fz == 8: P(f"s_mov_b32 s{sJF}, s74\ns_mov_b32 s{sGF}, s75")
    if cfg.fz == 2: P(f"s_mov_b32 s{sJF}, s23\ns_mov_b32 s{sGF}, s22")
    if cfg.p2same: P(f"s_mov_b32 s{sG2}, s{sG1}\ns_mov_b32 s{sJ2}, s{sJ1}")
    P(f"""s_lshl_b32 s77, s{sW}, 5
s_add_u32 s77, s77, s{sG1}
s_mul_i32 s78, s{sJ1}, 144""")
    sRP, sRF, sR2 = 0, 1, 3
    P(f"""s_cmp_lt_u32 s77, 72
s_cbranch_scc0 L_r0_wo
v_mul_u32_u24 v6, 2428, v{vL}
v_lshrrev_b32 v6, 16, v6
v_mul_u32_u24 v7, 27, v6
v_sub_u32 v7, v{vL}, v7
v_mul_u32_u24 v8, 7282, v7
v_lshrrev_b32 v8, 16, v8
v_mul_u32_u24 v9, 9, v8
v_sub_u32 v9, v7, v9
v_mul_u32_u24 v6, 3456, v6
v_mul_u32_u24 v8, 1152, v8
v_lshlrev_b32 v9, 4, v9
v_add3_u32 v5, v6, v8, v9
v_cmp_gt_u32 vcc, 54, v{vL}
s_mul_i32 s80, s77, {8*3456}
s_add_u32 s80, s80, s78
s_add_u32 s81, s80, {6912-1024}
s_add_u32 s82, s81, {6912-1024}
s_add_u32 s83, s82, {6912-1024}
s_branch L_r0_join
L_r0_wo:
v_mul_u32_u24 v6, 7282, v{vL}
v_lshrrev_b32 v6, 16, v6
v_mul_u32_u24 v7, 9, v6
v_sub_u32 v7, v{vL}, v7
v_mul_u32_u24 v6, 1152, v6
v_lshl_add_u32 v5, v7, 4, v6
v_cmp_gt_u32 vcc, 36, v{vL}
s_sub_u32 s79, s77, 72""")
    for G in range(2):
        if G: P("s_add_u32 s79, s79, 36")
        P(f"""s_lshr_b32 s84, s79, 2
s_mul_i32 s84, s84, 36
s_bfe_u32 s85, s79, 0x10001
s_mul_i32 s85, s85, 20
s_add_u32 s84, s84, s85
s_and_b32 s85, s79, 1
s_lshl_b32 s85, s85, 3
s_add_u32 s84, s84, s85
s_add_u32 s85, s84, 4
s_sub_u32 s86, s79, 64
s_mul_i32 s86, s86, 72
s_add_u32 s86, s86, 16
s_add_u32 s87, s86, 36
s_cmp_lt_u32 s79, 64
s_cselect_b32 s84, s84, s86
s_cselect_b32 s85, s85, s87
s_mul_i32 s84, s84, 1152
s_mul_i32 s85, s85, 1152
s_add_u32 s84, s84, s78
s_add_u32 s85, s85, s78
s_sub_u32 s{80+2*G}, s84, {1024*(2*G)}
s_sub_u32 s{81+2*G}, s85, {1024*(2*G+1)}""")
    P(f"""s_cmp_lt_u32 s77, 108
s_cselect_b32 s80, s80, {OOB}
s_cselect_b32 s81, s81, {OOB}
s_cselect_b32 s82, s82, {OOB}
s_cselect_b32 s83, s83, {OOB}
L_r0_join:
s_nop 1
v_mov_b32 v6, {OOB}
v_cndmask_b32 v5, v6, v5, vcc
s_lshl_b32 s84, s{sW}, 12
s_add_u32 s84, s84, {R0SCR}
s_mov_b32 m0, s84
s_waitcnt lgkmcnt(0)""")
    def mksrd(d, p, n):
        P(f"s_mov_b32 s{d}, s{p}\ns_and_b32 s{d+1}, s{p+1}, 0xffff\ns_mov_b32 s{d+2}, {n}\ns_mov_b32 s{d+3}, 0x00020000")
    P(f"""s_cmp_lt_u32 s77, 72
s_cselect_b32 s{sR}, s6, s8
s_cselect_b32 s{sR+1}, s7, s9
s_mov_b32 s85, {576*1152}
s_cselect_b32 s{sR+2}, {576*3456}, s85
s_and_b32 s{sR+1}, s{sR+1}, 0xffff
s_mov_b32 s{sR+3}, 0x00020000""")
    if cfg.stamps: P(("s_memtime" if cfg.stamps == 2 else "s_memrealtime") + " s[38:39]")
    for q in range(4):
        P(f"buffer_load_dwordx4 v5, {srd(sR)}, s{80+q} offen offset:{1024*q}{cfg.r0fl} lds", "r0")
    if cfg.ctouch == 1: code_touch(63, 0)
    mksrd(sX, 4, 2048*1152)
    if cfg.wsbase: P(f"s_add_u32 s24, s24, {cfg.wsbase}\ns_addc_u32 s25, s25, 0")
    P(f"s_load_dword s{sTAG}, s[24:25], 0")
    XR, XH = 160, 232
    P(f"""s_lshl_b32 s84, s{sG1}, 6
s_and_b32 s85, s{sW}, 1
s_lshl_b32 s85, s85, 5
s_add_u32 s85, s85, s84
s_lshr_b32 s86, s{sW}, 1
s_add_u32 s85, s85, s86
s_mul_i32 s85, s85, 1152
v_lshrrev_b32 v8, 3, v{vL}
v_and_b32 v9, 7, v{vL}
v_mul_u32_u24 v6, 2304, v8
v_lshl_add_u32 v6, v9, 4, v6
v_add_u32 v6, s85, v6
v_add_u32 v7, {8*2304}, v6""")
    if cfg.rot:
        P(f"""s_and_b32 s86, s{sG2}, 3
s_mul_i32 s86, s86, 9
s_add_u32 s86, s86, 2
s_lshr_b32 s86, s86, 2
s_add_u32 s86, s86, s{sJ2}
s_sub_u32 s87, s86, 9
s_cmp_ge_u32 s86, 9
s_cselect_b32 s{sRP}, s87, s86
s_lshl_b32 s86, s{sJ2 if cfg.p2same else sG2}, 1
s_add_u32 s86, s86, s{sG2 if cfg.p2same else sJ2}
s_and_b32 s{sR2}, s86, 7
s_and_b32 s86, s{sJF}, 1
s_mul_i32 s86, s86, 9
s_and_b32 s87, s{sGF}, 15
s_add_u32 s86, s86, s87
s_sub_u32 s87, s86, 18
s_cmp_ge_u32 s86, 18
s_cselect_b32 s{sRF}, s87, s86""")
        if cfg.fz == 8: P(f"s_mul_i32 s86, s{sGF}, 9\ns_lshr_b32 s{sRF}, s86, 4")
        if cfg.fz == 2: P(f"""s_and_b32 s86, s{sJF}, 3
s_mul_i32 s86, s86, 9
s_lshr_b32 s86, s86, 1
s_and_b32 s87, s{sGF}, 7
s_lshl_b32 s87, s87, 1
s_add_u32 s86, s86, s87
s_sub_u32 s87, s86, 18
s_cmp_ge_u32 s86, 18
s_cselect_b32 s{sRF}, s87, s86""")
        if cfg.p1z4 == 1: P(f"s_lshr_b32 s{sRP}, s{sRF}, 1")
        if cfg.p1z4 == 2:
            P(f"""s_and_b32 s86, s23, 3
s_mul_i32 s86, s86, 9
s_add_u32 s86, s86, 2
s_lshr_b32 s86, s86, 2
s_and_b32 s87, s22, 7
s_add_u32 s86, s86, s87
s_sub_u32 s87, s86, 9
s_cmp_ge_u32 s86, 9
s_cselect_b32 s{sRP}, s87, s86""")
    else:
        P(f"s_mov_b32 s{sRP}, 0\ns_mov_b32 s{sRF}, 0\ns_mov_b32 s{sR2}, 0")
    P(f"s_lshl_b32 s88, s{sRP}, 7")
    for q in range(1, 9):
        P(f"s_add_u32 s{88+q}, s{87+q}, 128\ns_cmp_eq_u32 s{88+q}, 1152\ns_cselect_b32 s{88+q}, 0, s{88+q}")
    xl = []
    for q in range(9):
        for hh in range(2):
            xl.append(f"buffer_load_dwordx4 {vq(XR + (q*2+hh)*4)}, v{6+hh}, {srd(sX)}, s{88+q} offen{cfg.xfl}")
    if cfg.r0bar: P("s_barrier")
    for l in xl[:cfg.nx1]: P(l, "x")
    mksrd(sWS, 24, WS_BYTES)
    if cfg.isl: P("s_branch L_aligned\nL_aligned:")
    P(f"""s_lshl_b32 s85, s{sW}, 2
v_add_u32 v10, s85, v{vG}
v_and_b32 v11, 7, v10
v_lshrrev_b32 v12, 3, v10
v_lshl_add_u32 v11, v11, 1, v12
v_add_u32 v11, s84, v11
v_subrev_u32 v11, 16, v11
v_mul_u32_u24 v11, 1152, v11
s_cmp_eq_u32 s{sG1}, 0
s_cselect_b32 s85, {OOB}, 0
s_cselect_b32 s86, 0, -1
v_and_b32 v11, s86, v11
v_or_b32 v11, s85, v11
v_mov_b32 v13, {OOB}
s_lshl_b32 s85, s{sRP}, 3
v_add_u32 v12, s85, v{vI}""")
    for q in range(5):
        P(f"""v_add_u32 v{84+q}, {16*q}, v12
v_subrev_u32 v89, 72, v{84+q}
v_min_u32 v{84+q}, v{84+q}, v89
v_lshl_add_u32 v{84+q}, v{84+q}, 4, v11""")
    P(f"v_cmp_gt_u32 vcc, 8, v{vI}\nv_cndmask_b32 v88, v13, v88, vcc")
    hl = [f"buffer_load_dwordx4 {vq(XH + 4*q)}, v{84+q}, {srd(sX)}, 0 offen{cfg.xfl}" for q in range(5)]
    P(f"""v_bfe_u32 v14, v{vL}, 2, 2
v_and_b32 v15, 3, v{vL}
s_lshl_b32 s84, s{sW}, 12
s_add_u32 s84, s84, {R0SCR}
s_cmp_lt_u32 s77, 72
s_cbranch_scc0 L_r1_wo
v_lshrrev_b32 v16, 1, v14
v_lshlrev_b32 v16, 10, v16
v_and_b32 v17, 1, v14
v_mul_u32_u24 v17, 432, v17
v_add3_u32 v16, v16, v17, s84
v_mul_u32_u24 v17, 36, v{vG}
v_and_b32 v18, 1, v{vG}
v_lshl_add_u32 v17, v18, 2, v17
v_lshl_add_u32 v17, v15, 3, v17
v_add_u32 v32, v16, v17
v_add_u32 v34, 144, v32
v_add_u32 v36, 288, v32
v_min_u32 v17, 2, v15
v_mul_u32_u24 v17, 144, v17
v_mul_u32_u24 v18, 72, v18
v_add3_u32 v38, v16, v17, v18
v_add_u32 v38, 32, v38
s_mov_b32 s85, 2048
s_lshr_b32 s86, s77, 2
s_mul_i32 s87, s{sJ1}, 72
s_add_u32 s86, s86, s87
s_mul_i32 s86, s86, 3584
s_add_u32 s86, s86, {WQP}
s_and_b32 s87, s77, 3
v_mul_u32_u24 v16, {18*3584}, v{vG}
v_lshl_add_u32 v16, v{vI}, 4, v16
s_lshl_b32 s79, s87, 8
s_add_u32 s79, s79, s86
v_add_u32 v40, s79, v16
v_add_u32 v41, 1024, v40
v_add_u32 v42, 2048, v40
v_lshrrev_b32 v16, 1, v15
v_lshl_add_u32 v16, v{vG}, 1, v16
v_mul_u32_u24 v16, {18*3584}, v16
v_and_b32 v17, 1, v15
v_lshl_add_u32 v17, v14, 1, v17
v_lshl_add_u32 v16, v17, 4, v16
s_lshl_b32 s79, s87, 7
s_add_u32 s79, s79, s86
s_add_u32 s79, s79, 3072
v_add_u32 v16, s79, v16
v_cmp_gt_u32 vcc, 32, v{vL}
v_cndmask_b32 v43, v13, v16, vcc
s_branch L_r1_join
L_r1_wo:
v_mul_u32_u24 v16, 144, v14
v_add_u32 v16, s84, v16
v_lshrrev_b32 v17, 1, v{vG}
v_lshlrev_b32 v17, 6, v17
v_and_b32 v18, 1, v{vG}
v_lshl_add_u32 v17, v18, 3, v17
v_lshl_add_u32 v17, v15, 4, v17
v_add_u32 v32, v16, v17
v_and_b32 v17, 1, v15
v_lshl_add_u32 v34, v17, 3, v16
v_add_u32 v34, 128, v34
v_add_u32 v36, 2048, v32
v_add_u32 v38, 2048, v34
s_mov_b32 s85, 1024
v_lshlrev_b32 v16, 10, v{vG}
v_lshl_add_u32 v16, v{vI}, 4, v16
v_cmp_gt_u32 vcc, 8, v{vL}
v_cndmask_b32 v17, v13, v{vL16}, vcc
s_sub_u32 s79, s77, 72""")
    for G in range(2):
        if G: P("s_add_u32 s79, s79, 36")
        P(f"""s_lshr_b32 s86, s79, 2
s_mul_i32 s87, s{sJ1}, 18
s_add_u32 s86, s86, s87
s_mul_i32 s86, s86, 4608
s_add_u32 s86, s86, {WOP}
s_cmp_lt_u32 s77, 108
s_cselect_b32 s86, s86, {OOB}
s_and_b32 s87, s79, 3
s_lshl_b32 s76, s87, 8
s_add_u32 s76, s76, s86
v_add_u32 v{40+2*G}, s76, v16
s_lshl_b32 s76, s87, 7
s_add_u32 s76, s76, s86
s_add_u32 s76, s76, 4096
v_add_u32 v{41+2*G}, s76, v17""")
    P("L_r1_join:\ns_nop 1")
    for t in range(4): P(f"v_add_u32 v{33+2*t}, s85, v{32+2*t}")
    mksrd(sW1, 12, 576*9216); mksrd(sW2, 16, 4608*1152); mksrd(sB1, 14, 9216); mksrd(sB2, 18, 1152); mksrd(sOUT, 20, 2048*1152)
    if cfg.dbg: mksrd(sR, 22, 256)
    if cfg.stamps: P("@waitlg_all\ns_mov_b32 s4, s26"); P("s_mov_b32 s5, s38"); nstamp[0] = 2; names.append("start"); names.append("r0 issue")
    P("s_mov_b32 s99, 0x3f803f80\ns_mov_b32 s98, 0xffff0000")
    if cfg.touch:
        P(f"v_lshlrev_b32 v90, 21, v{vL}\nv_min_u32 v90, {0x2800000}, v90")
        P(f"buffer_load_dword v60, v90, {srd(sWS)}, 0 offen", "tch")
        if cfg.touch > 1:
            P(f"buffer_load_dword v61, v90, {srd(sW1)}, 0 offen", "tch")
            P(f"buffer_load_dword v62, v90, {srd(sW2)}, 0 offen", "tch")
            P(f"buffer_load_dword v63, v90, {srd(sOUT)}, 0 offen", "tch")
    UP = {(1, 0): (32, 33, 34), (1, 1): (35, 36, 37), (2, 0): (24, 25, 34), (2, 1): (26, 27, 37)}
    for z in range(2):
        a1, d1, st = UP[(1, z)]; a2, d2, _ = UP[(2, z)]
        P(f"""s_add_u32 s84, s77, {128*z}
s_mul_i32 s85, s84, 7282
s_lshr_b32 s85, s85, 16
s_mul_i32 s86, s85, 9
s_sub_u32 s86, s84, s86
s_lshl_b32 s76, s86, 7
s_mul_i32 s87, s85, {32*9216}
s_add_u32 s87, s87, s76
s_mul_i32 s75, s{sJ1}, 1152
s_add_u32 s{a1}, s87, s75
s_mul_i32 s87, s85, {32*1152}
s_add_u32 s87, s87, s76
s_mul_i32 s75, s{sJ1}, {576*1152}
s_add_u32 s{a2}, s87, s75
s_lshr_b32 s79, s85, 2
s_lshl_b32 s79, s79, 1
s_and_b32 s75, s85, 1
s_add_u32 s79, s79, s75
s_add_u32 s75, s79, 10
s_bitcmp1_b32 s85, 1
s_cselect_b32 s79, s75, s79
s_lshr_b32 s87, s86, 1
s_mul_i32 s87, s87, 162
s_and_b32 s76, s86, 1
s_lshl_b32 s76, s76, 2
s_add_u32 s87, s87, s76
s_cmp_eq_u32 s86, 8
s_cselect_b32 s87, 8, s87
s_cselect_b32 s{st}, 162, 1
s_lshl_b32 s{st}, s{st}, 10
s_mul_i32 s76, s{sJ1}, 648
s_add_u32 s87, s87, s76
s_mul_i32 s75, s85, 9
s_add_u32 s75, s75, s87
s_lshl_b32 s75, s75, 10
s_add_u32 s{d1}, s75, {W1R}
s_mul_i32 s75, s79, 9
s_add_u32 s75, s75, s87
s_lshl_b32 s75, s75, 10
s_add_u32 s{d2}, s75, {W2R}""")
        if z:
            P("s_cmp_lt_u32 s84, 162")
            for r in (a1, d1, a2, d2): P(f"s_cselect_b32 s{r}, s{r}, {OOB}")
    P(f"""v_mul_u32_u24 v92, 9216, v8
v_lshl_add_u32 v92, v9, 4, v92
v_mul_u32_u24 v93, 1152, v8
v_lshl_add_u32 v93, v9, 4, v93
v_lshl_add_u32 v94, v{vG}, 3, v14
v_lshlrev_b32 v94, 7, v94
v_lshl_add_u32 v94, v15, 4, v94
s_lshl_b32 s84, s{sW}, 13
v_add_u32 v94, s84, v94""")
    nopt = [0]
    def optional(L, sreg, tag):
        k = nopt[0]; nopt[0] += 1
        body = "\n".join(x[0] if isinstance(x, tuple) else x for x in L)
        return [(f"s_cmp_ge_u32 s{sreg}, {OOB}\ns_cbranch_scc1 L_opt{k}\n@opt_begin\n{body}\n@opt_end\nL_opt{k}:", tag)]
    def unit_dma(mat, z, scr, vs=None):
        L = unit_dma_(mat, z, scr, vs)
        return optional(L, UP[(mat, z)][0], "wr") if (z and cfg.optz and L) else L
    def unit_tr(z, scr, vt, mat=None):
        L = unit_tr_(z, scr, vt)
        return optional(L, UP[(mat, z)][1], None) if (z and cfg.optz and mat) else L
    def unit_st(mat, z, vt):
        L = unit_st_(mat, z, vt)
        return optional(L, UP[(mat, z)][1], "wrs") if (z and cfg.optz and L) else L
    def unit_dma_(mat, z, scr, vs=None):
        if mat in cfg.norp: return []
        a = UP[(mat, z)][0]; st = 9216 if mat == 1 else 1152
        L = [f"s_lshl_b32 s84, s{sW}, 13\ns_add_u32 s84, s84, {scr + 4096*z}\ns_mov_b32 m0, s84"]
        for q in range(4):
            if q: L.append(f"s_add_u32 s{a}, s{a}, {8*st - 1024}")
            L.append((f"buffer_load_dwordx4 v{vs or 91+mat}, {srd(sW1 if mat == 1 else sW2)}, s{a} offen offset:{1024*q}{cfg.rawfl} lds", "wr"))
        return L
    def unit_tr_(z, scr, vt):
        return [f"ds_read_b64_tr_b16 {vq(vt+4*t+2*hi,2)}, v94 offset:{scr + 4096*z + 64*(t>>1) + 8*(t&1) + 512*hi}" for t in range(4) for hi in range(2)]
    def unit_st_(mat, z, vt):
        if mat in cfg.norp: return []
        _, d, st = UP[(mat, z)]; L = []
        for t in range(4):
            if t: L.append(f"s_add_u32 s{d}, s{d}, s{st}")
            L.append((f"buffer_store_dwordx4 {vq(vt+4*t)}, v{vL16}, {srd(sWS)}, s{d} offen{cfg.wrsfl}", "wrs"))
        return L
    MS, MP, ME, MO = 96, 100, 104, 108
    def emit_masks():
        P(f"""v_mov_b32 v66, {hexf(-1e30)}
v_lshlrev_b32 v64, 2, v{vG}
v_sub_u32 v64, v64, v{vI}
s_cmp_eq_u32 s{sG1}, 0
s_cselect_b32 s84, 100, 0
v_cmp_gt_u32 s[80:81], 2, v{vG}""")
        for r in range(4):
            P(f"""v_add_u32 v65, {r+7}, v64
v_cmp_gt_u32 vcc, 8, v65
v_add_u32 v65, {r}, v64
v_subrev_u32 v67, s84, v65
v_cndmask_b32 v{MS+r}, v66, 0, vcc
v_cmp_lt_i32 vcc, 8, v65
v_cmp_lt_i32 s[82:83], 8, v67
v_cmp_lt_i32 s[86:87], 0, v67
v_cndmask_b32 v{MP+r}, v66, 0, vcc
s_and_b64 s[86:87], s[86:87], s[80:81]
v_cndmask_b32 v{MO+r}, v66, 0, s[82:83]
v_cndmask_b32 v{ME+r}, v66, 0, s[86:87]""")
    if not cfg.latemask: emit_masks()
    P("@waitvm r0")
    stamp("r0 landed")
    for t in range(4):
        P(f"ds_read_b64_tr_b16 {vq(16+4*t,2)}, v{32+2*t}")
        P(f"ds_read_b64_tr_b16 {vq(18+4*t,2)}, v{33+2*t}")
    for t in range(4):
        P(f"buffer_store_dwordx4 {vq(16+4*t)}, v{40+t}, {srd(sWS)}, 0 offen sc1", "r0s")
    stamp("@r0 st")
    xrest = xl[cfg.nx1:] + hl
    P(f"@waitlg_all\ns_add_u32 s{sTAG}, s{sTAG}, 0x9E3779B9")
    P(f"""s_lshl_b32 s84, s{sJ1}, 12
s_add_u32 s84, s84, {F0S}
s_lshl_b32 s85, s{sG1}, {cfg.fsh}
s_add_u32 s85, s85, s84
{f"v_lshl_add_u32 v44, v0, 2, s85" if (cfg.fullsec and cfg.fsh >= 5) else "v_mov_b32 v44, s85"}
v_cmp_gt_u32 vcc, {min(16, 1 << (cfg.fsh - 2)) if (cfg.fullsec and cfg.fsh >= 5) else 1}, v0
v_cndmask_b32 v44, v13, v44, vcc
v_and_b32 v45, 31, v{vL}
v_lshl_add_u32 v45, v45, {cfg.fsh}, s84
s_lshl_b32 s84, s{sJ2 if cfg.f0both else sJ1}, 12
s_add_u32 s84, s84, {F0S - (32 << cfg.fsh)}
v_lshl_add_u32 v5, v{vL}, {cfg.fsh}, s84
v_cmp_gt_u32 vcc, 32, v{vL}
v_cndmask_b32 v45, v5, v45, vcc""")
    def stats(groups, acc):
        order = sorted((r, gi, k) for gi, regs in enumerate(groups) for k, r in enumerate(regs))
        L = []
        for r, gi, k in order:
            a = acc + 4*gi + 2*(k & 1)
            c0 = "0" if k < 2 else f"v{a}"; c1 = "0" if k < 2 else f"v{a+1}"
            L.append(f"v_dot2_f32_bf16 v{a}, v{r}, s99, {c0}\nv_dot2_f32_bf16 v{a+1}, v{r}, v{r}, {c1}")
        for gi in range(len(groups)):
            a = acc + 4*gi
            L.append(f"v_add_f32 v{a}, v{a}, v{a+2}\nv_add_f32 v{a+1}, v{a+1}, v{a+3}")
        return L
    def finish_stats(A):
        for t in [f"v_mul_f32 v@0, {hexf(1/576)}, v@0", f"v_mul_f32 v@2, v@0, v@0", f"v_mul_f32 v@1, {hexf(1/576)}, v@1", "v_sub_f32 v@1, v@1, v@2",
                  "v_max_f32 v@1, 0, v@1", f"v_add_f32 v@1, {hexf(1e-5)}, v@1", "v_rsq_f32 v@1, v@1", "v_mul_f32 v@2, v@0, -v@1",
                  "v_mov_b32 v@0, v@1", "v_mov_b32 v@3, v@2"]:
            for a in A: P(t.replace("@0", str(a)).replace("@1", str(a+1)).replace("@2", str(a+2)).replace("@3", str(a+3)))
    def normalize(q, a, t, pk=True):
        L = []
        for d in range(4):
            L.append(f"v_lshlrev_b32 v{t+2*d}, 16, v{q+d}")
            L.append(f"v_and_b32 v{t+2*d+1}, s98, v{q+d}")
        if pk:
            for d in range(4): L.append(f"v_pk_fma_f32 {vq(t+2*d,2)}, {vq(t+2*d,2)}, {vq(a,2)}, {vq(a+2,2)}")
        else:
            for d in range(8): L.append(f"v_fma_f32 v{t+d}, v{t+d}, v{a}, v{a+2}")
        for d in range(4): L.append(f"v_cvt_pk_bf16_f32 v{q+d}, v{t+2*d}, v{t+2*d+1}")
        return L
    ST = 144; NT = 112
    st = stats([[XR + (q*2+hh)*4 + d for q in range(9) for d in range(4)] for hh in range(2)] + [[XH + k for k in range(20)]], ST)
    raw = {1: [], 2: []}
    for z in range(2):
        raw[1] += unit_dma(1, z, W1SCR); raw[2] += unit_dma(2, z, W2SCR0)
    raw[1].append(f"s_mul_i32 s84, s{sJF}, 1152\nv_lshlrev_b32 v5, 7, v{vI}")
    raw[1].append((f"buffer_load_dword v252, v5, {srd(sB1)}, s84 offen", "wr"))
    raw[1].append((f"buffer_load_dword v253, v5, {srd(sB2)}, 0 offen", "wr"))
    k = 0
    for n, l in enumerate(xrest + [None]):
        if n == cfg.nx2:
            if cfg.latemask == 1: emit_masks()
            if cfg.stfill and k < 4*cfg.nx1: P.extend(st[k:4*cfg.nx1]); k = 4*cfg.nx1
            stamp("@pre-ack")
            P("@waitvm r0s")
            stamp("@acked")
            P("s_barrier")
            set_flag(44)
            stamp("F0 set")
        if l is None: break
        P(l, "x")
        if cfg.nx1 + n + 1 - k//4 > cfg.lag: P.extend(st[k:k+4]); k += 4
    if cfg.rawat == 0: P.extend(raw[1])
    if cfg.w2at == -1: P.extend(raw[2])
    P.extend(st[k:])
    if cfg.rawat == 1: P.extend(raw[1])
    if cfg.w2at in (4, -2): P.extend(raw[2])
    for mod in ["quad_perm:[1,0,3,2]", "quad_perm:[2,3,0,1]", "row_half_mirror"]:
        for gi in range(3):
            for k in range(2):
                a = ST + 4*gi + k
                P(f"v_add_f32_dpp v{a}, v{a}, v{a} {mod} row_mask:0xf bank_mask:0xf")
    for k in range(2): P(f"v_add_f32_dpp v{ST+8+k}, v{ST+8+k}, v{ST+8+k} row_mirror row_mask:0xf bank_mask:0xf")
    finish_stats([ST, ST+4, ST+8])
    stamp("LN1 stats")
    P(f"""v_lshrrev_b32 v156, 2, v9
v_mul_u32_u24 v156, 5120, v156
v_and_b32 v157, 3, v9
v_lshl_add_u32 v156, v157, 8, v156
v_xor_b32 v157, v8, v9
v_lshl_add_u32 v156, v157, 4, v156
s_lshl_b32 s84, s{sW}, 10
s_add_u32 s84, s84, {XB}
v_add_u32 v156, s84, v156
v_add_u32 v157, {10240*5}, v156
v_lshrrev_b32 v158, 2, v{vI}
v_mul_u32_u24 v158, 5120, v158
v_lshl_add_u32 v158, v15, 8, v158
v_xor_b32 v159, v10, v9
v_lshl_add_u32 v158, v159, 4, v158
v_add_u32 v158, {XB + 4096}, v158
v_add_u32 v159, {20480*3}, v158""")
    ntc = [0]; NB = cfg.nb[0] + cfg.nb[1]
    def ln1_batch(b):
        L = []
        for q in range(2*b, min(2*b+2, 9)):
            for hh in range(2):
                r = XR + (q*2+hh)*4
                if not cfg.dtest: L += normalize(r, ST + 4*hh, NT + 8*(ntc[0] & 1), b < NB); ntc[0] += 1
                L.append(f"ds_write_b128 v{156 if q < 5 else 157}, {vq(r)} offset:{10240*(q % 5) + 128*hh}")
        if not cfg.dtest: L += normalize(XH + 4*b, ST + 8, NT + 8*(ntc[0] & 1), b < NB); ntc[0] += 1
        wr = f"ds_write_b128 v{158 if b < 3 else 159}, {vq(XH+4*b)} offset:{20480*(b % 3)}"
        if b == 4: wr = "s_mov_b32 exec_lo, 0x00ff00ff\ns_mov_b32 exec_hi, 0x00ff00ff\n" + wr + "\ns_mov_b64 exec, -1"
        L.append(wr)
        return L
    if cfg.rawat != 4:
        for b_ in range(cfg.nb[0]): P.extend(ln1_batch(b_))
    P(f"""s_lshl_b32 s74, s{sJ1}, 2
s_add_u32 s74, s74, s{sW}
s_mul_i32 s74, s74, {18*3584}
s_add_u32 s74, s74, {WQP}
s_add_u32 s75, s74, {18*3584}
s_mul_i32 s78, s{sRP}, {2*3584}
s_add_u32 s78, s78, s74
v_lshlrev_b32 v7, 7, v{vG}
v_lshl_add_u32 v7, v{vI}, 4, v7
v_cmp_gt_u32 vcc, 6, v{vI}
v_cndmask_b32 v7, v13, v7, vcc
v_xor_b32 v8, v{vI}, v{vG}
v_lshlrev_b32 v8, 4, v8
v_lshl_add_u32 v8, v{vG}, 8, v8
v_add_u32 v8, {XB}, v8
v_xor_b32 v9, 64, v8
v_add_u32 v10, 46080, v8
v_add_u32 v11, 46080, v9""")
    def warm(k):
        if cfg.isl: P(f"s_mov_b64 exec, 0\ns_branch L_chain{k}\nL_chainend{k}:\ns_mov_b64 exec, -1")
    warm(0)
    if cfg.latemask == 2: emit_masks()
    stamp("@LN1 b0")
    if cfg.poll1: P(f"s_waitcnt vmcnt(0)\ns_cmp_lg_u32 s{sW}, 0\ns_cbranch_scc1 L_pdone{npoll[0]}")
    poll(45, 5)
    if cfg.poll1: P("s_barrier")
    stamp("F0 seen")
    QA, KA, EA, VA = 16, 32, 52, 72
    WR = 64
    D = cfg.p1depth
    def wq_loads(s):
        b = WR + (s % D)*16
        L = [(f"buffer_load_dwordx4 {aq(b+4*t)}, v{vL16}, {srd(sWS)}, s78 offen offset:{1024*t}{cfg.wsc}", "wq") for t in range(3)]
        L.append((f"buffer_load_dwordx4 {aq(b+12)}, v7, {srd(sWS)}, s78 offen offset:3072{cfg.wsc}", "wq"))
        if s < 17: L.append(wrap(78, 3584, 75, 74))
        return L
    def x_reads(s):
        b = (s % 2)*20
        reg = (8 if s % 2 == 0 else 9) + (2 if s >= 9 else 0)
        return [f"ds_read_b128 {aq(b+4*m)}, v{reg} offset:{((s % 9)*5 + m)*1024}" for m in range(5)]
    def join(L):
        out = []; pend = ""
        for x in L:
            if isinstance(x, tuple): out.append((pend + x[0], x[1])); pend = ""
            else: pend += x + "\n"
        if pend: out.append(pend.strip())
        return out
    if cfg.rawat == 4:
        mem = join(sum([wq_loads(s) for s in range(D-1)], []))
        tail_ = [mem.pop()] if not isinstance(mem[-1], tuple) else []
        mem += tail_ + join(raw[1]) + (join(raw[2]) if cfg.w2at == 6 else [])
        work = ln1_batch(0) + ln1_batch(1)
        for l in mem[:cfg.nq1]: P.add(l)
        mem = mem[cfg.nq1:]
        for n, l in enumerate(work):
            P.add(l)
            if n % cfg.qgap == cfg.qgap - 1 and mem: P.add(mem.pop(0))
        for l in mem: P.add(l)
    else:
        for s in range(D-1): P.extend(wq_loads(s))
        if cfg.rawat == 2: P.extend(raw[1])
        if cfg.w2at == -3: P.extend(raw[2])
        for b_ in range(cfg.nb[0], NB): P.extend(ln1_batch(b_))
    P("@waitlg_all\ns_barrier")
    P.extend(x_reads(0))
    stamp("GEMM1 start")
    P("L_markA:")
    def lines(t): return t.split("\n")
    def own_flag(vd, base, sa, sha, sb, shb):
        return [f"s_lshl_b32 s86, s{sa}, {sha}", f"s_lshl_b32 s87, s{sb}, {shb}", "s_add_u32 s86, s86, s87", f"s_add_u32 s86, s86, {base}",
                (f"v_lshl_add_u32 v{vd}, v0, 2, s86" if (cfg.fullsec and shb >= 5) else f"v_mov_b32 v{vd}, s86"),
                f"v_cmp_gt_u32 vcc, {min(16, 1 << (shb - 2)) if (cfg.fullsec and shb >= 5) else 1}, v0\nv_cndmask_b32 v{vd}, v13, v{vd}, vcc"]
    def grp_poll_addr(vd, sg, base):
        return lines(f"""s_lshl_b32 s86, s{sg}, 12
s_add_u32 s86, s86, {base}
v_and_b32 v{vd}, 7, v{vL}
v_lshl_add_u32 v{vd}, v{vd}, {cfg.gsh}, s86""")
    def set_poll_addr(vd, sj, base):
        return lines(f"""s_lshl_b32 s86, s{sj}, 12
s_add_u32 s86, s86, {base}
v_and_b32 v{vd}, 31, v{vL}
v_lshl_add_u32 v{vd}, v{vd}, {cfg.fsh}, s86""")
    def flag_items(vaddr):
        return [f"v_mov_b32 v5, s{sTAG}", (f"buffer_store_dword v5, v{vaddr}, {srd(sWS)}, 0 offen sc1", "flag")]
    def unpack(dst, src, n):
        return sum([[f"v_lshlrev_b32 v{dst+2*k}, 16, v{src+k}", f"v_and_b32 v{dst+2*k+1}, s98, v{src+k}"] for k in range(n)], [])
    QO, KO, VO, XO = 112, 128, 148, 160
    flex = []
    T0 = 128
    if NB <= 2:
        for l in ln1_batch(2): flex.append((0, l))
    flex.append((0, "@mark0"))
    flex2 = []
    q1, q2, q3, q4 = cfg.gq
    if cfg.rawat == 3:
        for k, l in enumerate(join(raw[1])): flex2.append((int(19*q1) + 2*k, l))
    def repack(mat, scr, g0):
        flex2.append((g0, "@waitvm wr"))
        for z in range(2):
            for l in unit_tr(z, scr, T0, mat): flex2.append((g0 + 24*z, l))
            for k, l in enumerate(join(unit_st(mat, z, T0))): flex2.append((g0 + 24*z + 8 + 4*k, l))
    if cfg.w2at == 3 and q3 < q2:
        for k, l in enumerate(join(raw[2])): flex2.append((int(19*q3) + 2*k, l))
    repack(1, W1SCR, int(19*q2))
    if cfg.w2at >= 3:
        if q3 >= q2 and cfg.w2at == 3:
            for k, l in enumerate(join(raw[2])): flex2.append((int(19*q3) + 2*k, l))
        repack(2, W2SCR0, int(19*q4))
    if cfg.w2at < 0:
        flex2.append((19*cfg.w2tr, "@waitvm wr"))
        for z in range(2):
            for l in unit_tr(z, W2SCR0, 224 + 16*z): flex2.append((19*cfg.w2tr, l.replace("b16 v[", "b16 a[")))
    flex2.append((0, "@markb"))
    for l in (ln1_batch(3) if NB <= 3 else []) + own_flag(95, F1S, sJ1, 12, sG1, cfg.fsh): flex.append((0, l))
    flex.append((0, "@mark1"))
    if NB <= 4:
        for l in ln1_batch(4): flex.append((0, l))
    flex.append((0, "@mark2"))
    pre = lines(f"""s_lshl_b32 s84, s{sW}, 10
s_add_u32 s84, s84, {VXS}
v_lshl_add_u32 v234, v{vI}, 1, s84
v_add_u32 v235, 512, v234
v_cmp_eq_u32 vcc, 1, v{vG}@@v_cndmask_b32 v234, v235, v234, vcc
v_lshl_add_u32 v235, v{vL}, 2, s84
v_min_u32 v236, 2, v{vI}
v_mul_u32_u24 v236, 160, v236
v_lshl_add_u32 v236, v{vG}, 3, v236
v_add_u32 v236, s84, v236
v_mov_b32 v237, s99
s_mul_i32 s84, s{sG1}, 73728
s_add_u32 s84, s84, {OP}
s_lshl_b32 s85, s{sJ1}, 1
s_lshr_b32 s86, s{sW}, 1
s_add_u32 s85, s85, s86
s_lshl_b32 s85, s85, 12
s_and_b32 s86, s{sW}, 1
s_lshl_b32 s86, s86, 9
s_add_u32 s85, s85, s86
s_add_u32 s95, s85, s84
s_lshl_b32 s87, s{sJ1}, 2
s_add_u32 s87, s87, s{sW}
s_lshl_b32 s87, s87, 8
s_add_u32 s87, s87, 65536
s_add_u32 s96, s87, s84
v_and_b32 v232, 1, v{vG}
v_lshlrev_b32 v232, 10, v232
v_lshrrev_b32 v233, 1, v{vG}
v_lshl_add_u32 v232, v233, 8, v232
v_lshl_add_u32 v232, v{vI}, 4, v232
v_lshlrev_b32 v233, 2, v{vL}
s_mul_i32 s79, s{sJ2}, 82944
s_add_u32 s79, s79, {WOP}
s_lshl_b32 s84, s{sW}, 1
s_add_u32 s85, s84, s{sR2}
s_and_b32 s86, s85, 7
s_mul_i32 s86, s86, 9216
s_add_u32 s80, s86, s79
s_add_u32 s85, s85, 1
s_and_b32 s86, s85, 7
s_mul_i32 s86, s86, 9216
s_add_u32 s81, s86, s79
s_lshl_b32 s84, s84, 10
s_add_u32 s84, s84, 73728
s_add_u32 s82, s84, s79
s_mov_b32 s83, s84
s_mul_i32 s76, s{sW}, 18432
s_lshl_b32 s84, s{sG2}, 6
s_and_b32 s85, s{sW}, 1
s_lshl_b32 s85, s85, 5
s_add_u32 s85, s85, s84
s_lshr_b32 s86, s{sW}, 1
s_add_u32 s85, s85, s86
s_mul_i32 s85, s85, 1152
s_mul_i32 s86, s{sJ2}, 144
s_add_u32 s79, s85, s86
v_mul_u32_u24 v238, 7282, v{vL}
v_lshrrev_b32 v238, 16, v238
v_mul_u32_u24 v239, 9, v238
v_sub_u32 v239, v{vL}, v239
v_mul_u32_u24 v238, 2304, v238
v_lshl_add_u32 v238, v239, 4, v238
v_cmp_gt_u32 vcc, 54, v{vL}@@v_cndmask_b32 v238, v13, v238, vcc
s_mul_i32 s77, s{sW}, 3072
s_add_u32 s77, s77, {XRS}
s_mov_b32 s94, {hexf((18 ** -0.5) * 1.4426950408889634)}""") + set_poll_addr(15, sJF, F1S)
    pre += [f"v_mov_b32 v{KO+4*m+3}, 0" for m in range(5)] + [f"v_mov_b32 v{QO+4*m+3}, 0" for m in range(4)]
    for l in pre: flex.append((19*cfg.f1s + 1, l.replace("@@", "\n")))
    mains = []; fixed = {}
    for s in range(18):
        wb = WR + (s % D)*16; xb = (s % 2)*20
        base = len(mains)
        for m in range(5):
            x = aq(xb + 4*m)
            def acc(a): return (vq(a), "0" if s == 0 else vq(a))
            if cfg.g1ord == 0:
                d, c = acc(KA + 4*m); mains.append(f"{MF} {d}, {aq(wb+4)}, {x}, {c}")
                d, c = acc(VA + 4*m); mains.append(f"{MF} {d}, {x}, {aq(wb+8)}, {c}")
                d, c = acc(EA + 4*m); mains.append(f"{MF} {d}, {aq(wb+12)}, {x}, {c}" if not (cfg.etest and m in (1, 3) and s) else "s_nop 0")
                if m < 4:
                    d, c = acc(QA + 4*m); mains.append(f"{MF} {d}, {aq(wb)}, {x}, {c}")
                elif cfg.dtest == 2: fixed.setdefault(len(mains) - 1, []).append(f"{MF} v[244:247], {aq(wb)}, {x}, 0")
        if cfg.g1ord == 1:
            def acc(a): return (vq(a), "0" if s == 0 else vq(a))
            for m in range(5):
                d, c = acc(KA + 4*m); mains.append(f"{MF} {d}, {aq(wb+4)}, {aq(xb+4*m)}, {c}")
            for m in range(4, -1, -1):
                d, c = acc(EA + 4*m); mains.append(f"{MF} {d}, {aq(wb+12)}, {aq(xb+4*m)}, {c}")
            for m in range(4):
                d, c = acc(QA + 4*m); mains.append(f"{MF} {d}, {aq(wb)}, {aq(xb+4*m)}, {c}")
            for m in range(5):
                d, c = acc(VA + 4*m); mains.append(f"{MF} {d}, {aq(xb+4*m)}, {aq(wb+8)}, {c}")
        t_ = stamp_txt(f"@q{s}") if s else None
        if t_: fixed.setdefault(base - 1, []).append(t_)
        if s == 7 and NB <= 2: fixed.setdefault(base, []).extend(["@flexdone0", "@waitlg_all", "s_barrier"])
        fb_ = ["@flexdoneb", "@waitvm wrs"]
        if s == 11: fixed.setdefault(base, []).extend(["@flexdone1"] + (fb_ if cfg.f1s == 11 else []) + ["@waitlg_all", "s_barrier"] + (flag_items(95) if cfg.f1s == 11 else []))
        if s == 15: fixed.setdefault(base, []).extend(["@flexdone2"] + (fb_ if cfg.f1s == 15 else []) + ["@waitlg_all", "s_barrier"] + (flag_items(95) if cfg.f1s == 15 else []))
        if s + 1 < 18:
            for k, l in enumerate(x_reads(s+1)): fixed.setdefault(base + 1 + 2*k, []).append(l)
            fixed.setdefault(base + 18, []).append(f"@need {aq(WR + ((s+1) % D)*16, 16)} {aq(((s+1) % 2)*20, 20)}")
        if s + D - 1 < 18:
            for k, l in enumerate(wq_loads(s + D - 1)): fixed.setdefault(base + [2, 6, 10, 12, 14][k], []).append(l)
    dma = []
    for seg in range(2):
        for k in range(9):
            it = ""
            if k % 4 == 0:
                it = f"s_add_u32 s84, s76, {seg*9216 + 1024*k}\ns_mov_b32 m0, s84\n"
                if k: it += f"s_add_u32 s{80+seg}, s{80+seg}, 4096\n"
            dma.append((it + f"buffer_load_dwordx4 v{vL16}, {srd(sWS)}, s{80+seg} offen offset:{1024*(k % 4)} sc1 lds", "wo"))
    tail3 = [(("s_mov_b32 m0, s83\n" if k == 0 else "") + f"buffer_load_dwordx4 v{vL16}, {srd(sWS)}, s82 offen offset:{1024*k} sc1 lds", "wo") for k in range(3)]
    xres3 = [(("s_mov_b32 m0, s77\n" if k == 0 else f"s_add_u32 s79, s79, {13824 - 1024}\n") + f"buffer_load_dwordx4 v238, {srd(sX)}, s79 offen offset:{1024*k}{cfg.xrfl} lds", "wo") for k in range(3)]
    ne = cfg.wo_early
    if not cfg.f0both:
        for l in set_poll_addr(240, sJ2, F0S): flex.append((0, l))
        flex.append((0, poll_pre(240, 241)))
        flex.append((19*15, poll_check(240, 241)))
    for k in range(ne): flex.append((max(19*(18 - (ne*5 + 18)//19) + 5*k, 19*cfg.f1s + 1), dma[k]))
    sched(P, mains, fixed, flex, flex2=flex2)
    stamp("GEMM1 done")
    P("s_barrier")
    A = Prog()
    A(f"s_mov_b32 exec_hi, 0xffff\nds_write_b32 v235, v237 offset:320\ns_mov_b32 exec_hi, -1")
    if cfg.dtest == 2:
        for k in range(150): A(f"v_mul_f32 v{KA + k % 20}, 1.0, v{KA + k % 20}")
    for m in range(5):
        r = QO + 4*m + 2 if m < 4 else 172
        A(f"v_cvt_pk_bf16_f32 v{r}, v{EA+4*m}, v{EA+4*m+1}")
        A(f"ds_write_b16 v234, v{r} offset:{32*m}\nds_write_b16_d16_hi v234, v{r} offset:{160+32*m}")
    SA = 176
    prev = [4, 0, 4, 2]; pmask = [ME, MP, MO, MP]
    def kop(m): A(f"v_cvt_pk_bf16_f32 v{KO+4*m}, v{KA+4*m}, v{KA+4*m+1}\nv_cvt_pk_bf16_f32 v{KO+4*m+1}, v{KA+4*m+2}, v{KA+4*m+3}\nv_cvt_pk_bf16_f32 v{KO+4*m+2}, v{EA+4*m+2}, v{EA+4*m+3}")
    def qop(m): A(f"v_cvt_pk_bf16_f32 v{QO+4*m}, v{QA+4*m}, v{QA+4*m+1}\nv_cvt_pk_bf16_f32 v{QO+4*m+1}, v{QA+4*m+2}, v{QA+4*m+3}")
    kop(4)
    for m in range(4):
        qop(m); kop(m)
        if m: A(f"{MF} {vq(SA+8*(m-1)+4)}, {vq(KO+4*(m-1))}, {vq(QO+4*(m-1))}, {vq(MS)}")
        A(f"{MF} {vq(SA+8*m)}, {vq(KO+4*prev[m])}, {vq(QO+4*m)}, {vq(pmask[m])}")
    vorder = [4, 0, 1, 4, 2, 3]
    for k, m in enumerate(vorder):
        A(f"v_cvt_pk_bf16_f32 v{VO+2*k}, v{VA+4*m}, v{VA+4*m+1}\nv_cvt_pk_bf16_f32 v{VO+2*k+1}, v{VA+4*m+2}, v{VA+4*m+3}")
        if k == 0: A(f"{MF} {vq(SA+28)}, {vq(KO+12)}, {vq(QO+12)}, {vq(MS)}")
    A("@waitlg_all")
    for k, m in enumerate(vorder): A(f"ds_read_b64 {vq(XO+2*k,2)}, v236 offset:{32*m}")
    MX = 208
    for m in range(4):
        s = SA + 8*m
        A(f"v_max3_f32 v{MX+m}, v{s}, v{s+1}, v{s+2}\nv_max3_f32 v{MX+4+m}, v{s+3}, v{s+4}, v{s+5}")
    for m in range(4):
        s = SA + 8*m
        A(f"v_max3_f32 v{MX+m}, v{MX+m}, v{s+6}, v{s+7}")
    for m in range(4): A(f"v_max_f32 v{MX+m}, v{MX+m}, v{MX+4+m}")
    A(f"""v_permlane16_swap_b32 v{MX}, v{MX+1}
v_permlane16_swap_b32 v{MX+2}, v{MX+3}
v_max_f32 v{MX}, v{MX}, v{MX+1}
v_max_f32 v{MX+2}, v{MX+2}, v{MX+3}
v_permlane32_swap_b32 v{MX}, v{MX+2}
v_max_f32 v{MX}, v{MX}, v{MX+2}
v_mul_f32 v{MX}, s94, v{MX}
v_mov_b32 v{MX+2}, v{MX}
v_permlane32_swap_b32 v{MX}, v{MX+2}
v_mov_b32 v{MX+1}, v{MX}
v_mov_b32 v{MX+3}, v{MX+2}
v_permlane16_swap_b32 v{MX}, v{MX+1}
v_permlane16_swap_b32 v{MX+2}, v{MX+3}""")
    PO = 216; OA = 16; OX = 32
    for m in range(4):
        s = SA + 8*m
        h = m & 1
        for k in range(4): A(f"v_pk_fma_f32 {vq(s+2*k,2)}, {vq(s+2*k,2)}, s[94:95], {vq(MX+(m&2),2)} op_sel:[0,0,{h}] op_sel_hi:[1,0,{h}] neg_lo:[0,0,1] neg_hi:[0,0,1]")
        if m:
            o = [0, 2, 6, 8][m-1]
            A(f"{MF} {vq(OX+4*(m-1))}, {vq(XO+o)}, {vq(PO+4*(m-1))}, 0")
            A(f"{MF} {vq(OA+4*(m-1))}, {vq(VO+o)}, {vq(PO+4*(m-1))}, 0")
        for k in range(8): A(f"v_exp_f32 v{s+k}, v{s+k}")
        for k in range(4): A(f"v_cvt_pk_bf16_f32 v{PO+4*m+k}, v{s+2*k}, v{s+2*k+1}")
    A(f"v_rcp_f32 v{MX}, v{OX+2}\nv_rcp_f32 v{MX+1}, v{OX+6}")
    A(f"{MF} {vq(OX+12)}, {vq(XO+8)}, {vq(PO+12)}, 0\n{MF} {vq(OA+12)}, {vq(VO+8)}, {vq(PO+12)}, 0")
    OP0 = 112
    for p in range(2):
        if p: A(f"v_rcp_f32 v{MX+2}, v{OX+10}\nv_rcp_f32 v{MX+3}, v{OX+14}")
        for m in (2*p, 2*p+1):
            for r in range(2): A(f"v_pk_mul_f32 {vq(OA+4*m+2*r,2)}, {vq(OA+4*m+2*r,2)}, {vq(MX+(m&2),2)} op_sel:[0,{m&1}] op_sel_hi:[1,{m&1}]")
            A(f"v_cvt_pk_bf16_f32 v{OP0+2*m}, v{OA+4*m}, v{OA+4*m+1}\nv_cvt_pk_bf16_f32 v{OP0+2*m+1}, v{OA+4*m+2}, v{OA+4*m+3}")
        for m in (2*p, 2*p+1):
            A(f"v_pk_mul_f32 {vq(OX+4*m,2)}, {vq(OX+4*m,2)}, {vq(MX+(m&2),2)} op_sel:[0,{m&1}] op_sel_hi:[1,{m&1}]")
        b = OP0 + 4*p
        A(f"v_permlane16_swap_b32 v{b}, v{b+2}\nv_permlane16_swap_b32 v{b+1}, v{b+3}")
        A(f"buffer_store_dwordx4 {vq(OP0+4*p)}, v232, {srd(sWS)}, s95 offen offset:{2048*p} sc1", "o")
        for m in (2*p, 2*p+1): A(f"v_cvt_pk_bf16_f32 v{OP0+8+m}, v{OX+4*m}, v{OX+4*m+1}")
    A(f"v_permlane16_swap_b32 v{OP0+8}, v{OP0+9}\nv_permlane16_swap_b32 v{OP0+10}, v{OP0+11}")
    A(f"v_permlane32_swap_b32 v{OP0+8}, v{OP0+10}")
    A(f"buffer_store_dword v{OP0+8}, v233, {srd(sWS)}, s96 offen sc1", "o")
    late = dma[ne:] + tail3 + xres3 + [poll_pre(15, 14)]
    if cfg.w2at == 0:
        w2l = []
        for z in range(2):
            u = unit_dma(2, z, W2SCR)
            w2l.append((u[0] + "\n" + u[1][0], "wr"))
            for q in range(1, 4): w2l.append((u[2*q] + "\n" + u[2*q+1][0], "wr"))
        assert ne in (0, 4, 8, 9, 13)
        late = w2l + late
    k = 0
    for n, ins in enumerate(A.ins):
        P.add(ins)
        if n >= 3 and (n - 3) % cfg.dmagap == 0 and k < len(late): P.add(late[k]); k += 1
    assert k == len(late)
    stamp("attn done")
    NR = 56; AF = 224
    ACA, ACB = 16, 96
    CA, CB = 96, 160
    passes = [("A", [0, 1, 2, 3, 8], ACA, CA), ("B", [4, 5, 6, 7], ACB, CB), ("C", [4, 5, 8], 16, None), ("D", [0, 1], 96, None), ("E", [2, 3], 64, None), ("F", [6, 7], 16, None)]
    if cfg.p522: passes = passes[:2] + [("C", [0, 1, 2, 3, 8], 16, None), ("E", [4, 5], 96, None), ("F", [6, 7], 128, None)]
    steps = [(pi, p) for pi in range(len(passes)) for p in range(18)]
    cons = [(pi, p, t) for pi, p in steps for t in range(len(passes[pi][1]))]
    slot = {f: n % NR for n, f in enumerate(cons)}
    def wload(n):
        pi, p, t = cons[n]; L = []
        if t == 0 and n > 0:
            if pi == 1 and p == 0:
                L.append(f"s_mul_i32 s92, s{sRF}, 9216\ns_add_u32 s92, s92, s90")
            elif pi >= 2 and p in (0, 10):
                beg = 0 if p == 0 else 10*9216; end = (10 if p == 0 else 18)*9216
                L.append(f"s_add_u32 s90, s89, {beg}\ns_add_u32 s91, s89, {end}")
                L.append(f"s_mul_i32 s92, s{93 if p == 0 else 94}, 9216\ns_add_u32 s92, s92, s90")
            else: L.append(wrap(92, 9216, 91, 90))
        tile = passes[pi][1][t]
        L.append((f"buffer_load_dwordx4 {aq(4*(n % NR))}, v{[vL16, 12, 255][tile >> 2]}, {srd(sWS)}, s92 offen offset:{1024*(tile % 4)}{cfg.wsc}", "w"))
        return L
    npf = [0]
    def prefetch(n):
        L = []
        for k in range(n): L += wload(npf[0]); npf[0] += 1
        return L
    P(f"""s_lshl_b32 s88, s{sJF}, 2
s_add_u32 s88, s88, s{sW}
s_mul_i32 s88, s88, {162*1024}
s_add_u32 s89, s88, {W2R}
s_add_u32 s88, s88, {W1R}
s_mul_i32 s92, s{sRF}, 9216
s_add_u32 s92, s92, s88
s_mov_b32 s90, s88
s_add_u32 s91, s88, {162*1024}
v_add_u32 v12, 4096, v{vL16}
v_add_u32 v255, 8192, v{vL16}""")
    P(poll_check(15, 14))
    pa, pb, pc, pd, pe = cfg.pre
    P.extend(prefetch(pa))
    P.extend(own_flag(14, F1G, sG1, 12, sJ1, cfg.gsh)); P.extend(grp_poll_addr(15, sG2, F1G))
    HA = 16; HQ = 36; OF = 48; WB = 120; NW = 28
    P(f"""v_add_u32 v10, 41472, v{vL16}
v_and_b32 v11, 7, v{vI}
v_lshlrev_b32 v11, 4, v11
v_lshl_add_u32 v11, v{vG}, 7, v11
v_add_u32 v9, 41472, v11
v_mul_u32_u24 v7, 43, v{vI}
v_lshrrev_b32 v7, 8, v7
v_mul_u32_u24 v7, 160, v7
v_mul_u32_u24 v6, 144, v{vI}
v_add3_u32 v6, v6, v7, s77
v_and_b32 v7, 1, v{vG}
v_lshl_add_u32 v7, v7, 3, v6
v_lshl_add_u32 v6, v{vG}, 4, v6""")
    P("@waitvm o\ns_barrier")
    set_flag(14)
    stamp("F1 set")
    if cfg.p1early: P.add(poll_pre(15, 46))
    if cfg.w2at == 1:
        for z in range(2): P.extend(unit_dma(2, z, W2SCR))
    if cfg.ct2 == 2: code_touch(48, 1, 64, 49)
    P.extend(prefetch(pb))
    if cfg.w2h1:
        P(f"v_add_u32 v47, {W2SCR}, v94\n@waitvm wr")
        for z in range(cfg.w2h1): P.extend([l.replace("v94", "v47") for l in unit_tr(z, 0, 48 + 16*z)])
        for z in range(cfg.w2h1): P.extend(unit_st(2, z, 48 + 16*z))
    if not cfg.p1early and 1 not in cfg.pfast: P.add(poll_pre(15, 46))
    P(f"ds_read_b128 {vq(HQ)}, v6\nds_read_b128 {vq(HQ+4)}, v6 offset:64\nds_read_b64 {vq(HQ+8,2)}, v7 offset:128")
    def wo_reg(n): return vq(WB + 4*(n % NW))
    wor = []
    for s in range(18):
        for t in range(5):
            reg = (vL16 if s < 9 else 10) if t < 4 else (11 if s < 9 else 9)
            wor.append(f"ds_read_b128 {wo_reg(s*5+t)}, v{reg} offset:{WOB + (s % 9)*4608 + 1024*t}")
    P.extend(wor[:NW - 1])
    P(f"""s_mul_i32 s84, s{sG2}, 73728
s_lshl_b32 s85, s{sW}, 10
s_add_u32 s84, s84, s85
s_add_u32 s74, s84, {OP}
s_add_u32 s75, s74, 65536
s_mul_i32 s79, s{sW}, {1024 - 64}
s_sub_u32 s79, s75, s79
v_lshlrev_b32 v232, 10, v{vG}
v_lshl_add_u32 v232, v{vI}, 2, v232
s_lshl_b32 s78, s{sR2}, 13
s_add_u32 s78, s78, s74
s_add_u32 s84, s84, {HP}
s_mul_i32 s85, s{sJ2}, 9
v_add_u32 v6, s85, v{vG}
v_lshrrev_b32 v7, 2, v6
v_lshlrev_b32 v7, 12, v7
v_and_b32 v6, 3, v6
v_lshl_add_u32 v6, v6, 8, v7
v_lshl_add_u32 v6, v{vI}, 4, v6
v_add_u32 v6, s84, v6
s_add_u32 s85, s85, 8
s_lshr_b32 s86, s85, 2
s_lshl_b32 s86, s86, 12
s_and_b32 s85, s85, 3
s_lshl_b32 s85, s85, 8
s_add_u32 s85, s85, s86
s_add_u32 s85, s85, s84
v_lshlrev_b32 v7, 4, v{vI}
v_lshl_add_u32 v7, v{vG}, 3, v7
v_add_u32 v7, s85, v7
v_cmp_gt_u32 s[82:83], 2, v{vG}
v_add_u32 v8, 4096, v6
v_add_u32 v47, {W2SCR}, v94
v_mov_b32 v235, v93
v_cndmask_b32 v7, v13, v7, s[82:83]
s_lshl_b32 s84, s{sG2}, 2
s_add_u32 s84, s84, s{sW}
s_lshl_b32 s84, s84, 3
s_add_u32 s84, s84, s{sJ2}
s_lshl_b32 s84, s84, 7
s_add_u32 s84, s84, {STATS}
v_lshl_add_u32 v233, v{vI}, 3, s84
v_cmp_gt_u32 vcc, 16, v{vL}
v_cndmask_b32 v233, v13, v233, vcc""")
    P.extend(unpack(HA, HQ, 10))
    if cfg.isl == 1: warm(1)
    P(poll_fast(15, 236) if 1 in cfg.pfast else poll_check(15, 46))
    stamp("F1 seen")
    ol = []
    for s in range(16):
        ol.append([(f"buffer_load_dwordx4 {vq(OF+4*s)}, v{vL16}, {srd(sWS)}, s78 offen sc1", "of")] + ([wrap(78, 4096, 75, 74)] if s < 15 else []))
    for s in (16, 17):
        for ww in range(4): ol.append([(f"buffer_load_dword v{OF+4*s+ww}, v232, {srd(sWS)}, s79 offen offset:{256*ww} sc1", "of")] + (["s_add_u32 s79, s79, 4096"] if (s, ww) == (16, 3) else []))
    for L in ol[:cfg.no1]: P.extend(L)
    flex = []
    for l in own_flag(14, F2G, sG2, 12, sJ2, cfg.gsh) + grp_poll_addr(15, sGF, F2G): flex.append((0, l))
    for l in lines(f"""s_mul_i32 s84, s{sJF}, 1152
s_lshl_b32 s85, s{sW}, 8
s_add_u32 s80, s85, s84
s_lshr_b32 s86, s{sW}, 1
s_lshl_b32 s86, s86, 6
s_and_b32 s87, s{sW}, 1
s_lshl_b32 s87, s87, 3
s_add_u32 s86, s86, s87
s_add_u32 s81, s86, s84
v_lshlrev_b32 v234, 4, v{vG}"""): flex.append((0, l))
    for l in prefetch(pc): flex.append((64, l))
    mains = [f"{MF} {vq(HA+4*t)}, {wo_reg(s*5+t)}, {vq(OF+4*s)}, {vq(HA+4*t)}" for s in range(18) for t in range(5)]
    fixed = {n: [wor[n + NW - 1]] for n in range(90 - NW + 1)}
    for k, L in enumerate(ol[cfg.no1:]):
        g = int(k*cfg.ogap)
        fixed.setdefault(g, []).append(L[0])
        if len(L) > 1: fixed.setdefault(g + 1, []).append(L[1])
    sched(P, mains, fixed, flex)
    for k in range(4): P(f"v_cvt_pk_bf16_f32 v{HQ+k}, v{HA+2*k}, v{HA+2*k+1}")
    P(f"buffer_store_dwordx4 {vq(HQ)}, v6, {srd(sWS)}, 0 offen sc1", "h")
    for k in range(4, 8): P(f"v_cvt_pk_bf16_f32 v{HQ+k}, v{HA+2*k}, v{HA+2*k+1}")
    P(f"buffer_store_dwordx4 {vq(HQ+4)}, v8, {srd(sWS)}, 0 offen sc1", "h")
    for k in range(8, 10): P(f"v_cvt_pk_bf16_f32 v{HQ+k}, v{HA+2*k}, v{HA+2*k+1}")
    P(f"buffer_store_dwordx2 {vq(HQ+8,2)}, v7, {srd(sWS)}, 0 offen sc1", "h")
    P(f"v_cndmask_b32 v16, 0, v{HQ+8}, s[82:83]\nv_cndmask_b32 v17, 0, v{HQ+9}, s[82:83]")
    P.extend(stats([[16, 17] + [HQ + k for k in range(8)]], 20))
    def xsum(a):
        for sw in ["v_permlane16_swap_b32", "v_permlane32_swap_b32"]:
            for k in range(2): P(f"v_mov_b32 v{a+2+k}, v{a+k}")
            for k in range(2): P(f"{sw} v{a+k}, v{a+2+k}")
            for k in range(2): P(f"v_add_f32 v{a+k}, v{a+k}, v{a+2+k}")
    xsum(20)
    P(f"buffer_store_dwordx2 {vq(20,2)}, v233, {srd(sWS)}, 0 offen sc1", "h")
    stamp("proj done")
    B1P = 136; HR = 160; ST = 132; NT = 116; SR = 154
    for p in range(4): P(f"buffer_load_dwordx4 {vq(B1P+4*p)}, v234, {srd(sB1)}, s80 offen offset:{64*p}", "b1")
    P(f"buffer_load_dwordx2 {vq(B1P+16,2)}, v234, {srd(sB1)}, s81 offen offset:1024", "b1")
    P.extend(prefetch(pd))
    P("@waitvm h\n@waitlg_all\ns_barrier")
    set_flag(14)
    stamp("F2 set")
    P("L_markB:")
    if cfg.w2at == 2:
        P.add(poll_pre(15, 46))
        for z in range(2): P.extend(unit_dma(2, z, W2SCR, 235))
    if cfg.w2at < 0:
        for z in range(2): P.extend([(l[0].replace("dwordx4 v[", "dwordx4 a["), l[1]) if isinstance(l, tuple) else l for l in unit_st(2, z, 224 + 16*z)])
    elif cfg.w2st == 0 and cfg.w2at < 3:
        P("@waitvm wr")
        for z in range(cfg.w2h1, 2): P.extend([(l[0].replace("v94", "v47"), l[1]) if isinstance(l, tuple) else l.replace("v94", "v47") for l in unit_tr(z, 0, 48 + 16*z, 2)])
        for z in range(cfg.w2h1, 2): P.extend(unit_st(2, z, 48 + 16*z))
    if cfg.ct2 == 1: code_touch(16, 1, 64, 17)
    P.extend(prefetch(pe))
    if cfg.w2at != 2 and 2 not in cfg.pfast: P.add(poll_pre(15, 46))
    P.extend(unpack(CA, B1P, 8)); P.extend(unpack(CA+16, B1P+16, 2))
    P(f"""s_mul_i32 s84, s{sGF}, 73728
s_lshl_b32 s85, s{sW}, 10
s_add_u32 s84, s84, s85
s_add_u32 s74, s84, {HP}
s_add_u32 s75, s74, 73728
s_lshl_b32 s77, s{sRF}, 12
s_add_u32 s77, s77, s74
v_add_u32 v6, s85, v{vL16}
v_add_u32 v7, 36864, v6
v_add_u32 v8, 36864, v{vL16}
v_add_u32 v9, {HB}, v{vL16}
v_add_u32 v10, {HB + 36864}, v{vL16}
v_mov_b32 v11, v47
s_and_b32 s93, s{sGF}, 15
s_lshr_b32 s94, s93, 1
s_mul_i32 s93, s93, 5
s_lshr_b32 s93, s93, 3
s_lshl_b32 s84, s{sGF}, 12
s_add_u32 s84, s84, s85
s_add_u32 s84, s84, {STATS}
v_lshlrev_b32 v239, 8, v{vG}
v_lshl_add_u32 v239, v{vI}, 3, v239""")
    if cfg.fz == 8: P(f"s_lshr_b32 s94, s{sGF}, 2\ns_mul_i32 s93, s{sGF}, 5\ns_lshr_b32 s93, s93, 4")
    if cfg.fz == 2: P(f"s_and_b32 s94, s{sGF}, 7\ns_mul_i32 s93, s94, 5\ns_lshr_b32 s93, s93, 2")
    if not cfg.rot: P("s_mov_b32 s93, 0\ns_mov_b32 s94, 0")
    P.extend(own_flag(14, F2S, sJ1, 12, sG1, cfg.fsh))
    vPS, vSS, vF3, vP3, vL4, vL2, vLS, vH4, vH2, vPT, vC4, vC2, vO4, vO2, vOS = range(240, 255)
    P.extend(own_flag(vF3, F3A, sGF, 12, sJF, cfg.gsh)); P.extend(grp_poll_addr(vP3, sGF, F3A))
    if cfg.wflag:
        P(f"""s_lshl_b32 s87, s{sW}, 7
s_add_u32 s86, s86, s87
v_add_u32 v{vP3}, s87, v{vP3}
s_lshl_b32 s87, s{sJF}, 4
s_add_u32 s86, s86, s87
v_mov_b32 v{vF3}, s86
v_cmp_eq_u32 vcc, 0, v{vL}
v_cndmask_b32 v{vF3}, v13, v{vF3}, vcc""")
    P(f"""s_lshl_b32 s86, s{sGF}, 6
s_add_u32 s86, s86, s{sJF}
s_mul_i32 s86, s86, 9216
s_add_u32 s86, s86, {PART}
v_lshrrev_b32 v{vPS}, 3, v{vI}
v_mul_u32_u24 v{vPS}, {8*9216}, v{vPS}
v_and_b32 v5, 7, v{vI}
v_lshlrev_b32 v5, 3, v5
v_lshl_add_u32 v5, v{vG}, 6, v5
v_add3_u32 v{vSS}, v{vPS}, v5, s86
v_add_u32 v{vPS}, v{vSS}, v5
s_lshl_b32 s85, s{sW}, 8
s_add_u32 s87, s85, 8192
v_add_u32 v{vSS}, s87, v{vSS}
s_lshl_b32 s76, s{sW}, 11
v_add_u32 v{vPS}, s76, v{vPS}
s_lshl_b32 s86, s{sGF}, 3
s_add_u32 s86, s86, s{sJF}
s_mul_i32 s86, s86, {8*9216}
s_add_u32 s86, s86, {PART}
s_add_u32 s76, s76, s86
v_add_u32 v{vL4}, s76, v{vL16}
s_add_u32 s87, s87, s86
v_lshl_add_u32 v{vLS}, v{vL}, 3, s87
v_cmp_gt_u32 vcc, 32, v{vL}
v_lshrrev_b32 v5, 5, v{vL}
v_bfe_u32 v{vC4}, v{vL}, 3, 2
v_cndmask_b32 v{vLS}, v13, v{vLS}, vcc
v_and_b32 v{vO4}, 7, v{vL}
v_lshlrev_b32 v{vH4}, 12, v5
v_lshl_add_u32 v{vH4}, v{vC4}, 8, v{vH4}
v_lshl_add_u32 v{vH4}, v{vO4}, 4, v{vH4}
v_lshlrev_b32 v{vC4}, 4, v{vC4}
v_lshl_add_u32 v{vC4}, v5, 6, v{vC4}
s_lshr_b32 s87, s{sJF}, 1
s_and_b32 s86, s{sJF}, 1
s_lshl_b32 s76, s{sGF}, 6
s_and_b32 s32, s87, 1
s_lshl_b32 s32, s32, 5
s_add_u32 s76, s76, s32
s_lshr_b32 s32, s87, 1
s_add_u32 s76, s76, s32
s_lshl_b32 s32, s86, 4
s_add_u32 s76, s76, s32
s_mul_i32 s76, s76, 1152
v_mul_u32_u24 v{vO4}, 2304, v{vO4}
v_add3_u32 v{vO4}, v{vO4}, v{vC4}, s76
v_cndmask_b32 v{vOS}, v13, v{vO4}, vcc
s_mul_i32 s76, s{sGF}, 73728
s_lshl_b32 s87, s87, 10
s_add_u32 s76, s76, s87
s_lshl_b32 s86, s86, 7
s_add_u32 s76, s76, s86
s_add_u32 s76, s76, {HP}
s_lshl_b32 s86, s{sW}, 14
s_add_u32 s32, s76, s86
s_add_u32 s33, s32, 8192
s_lshr_b32 s86, s{sW}, 1
s_and_b32 s87, s{sW}, 1
s_lshl_b32 s87, s87, 3
s_lshl_b32 s36, s86, 12
s_add_u32 s36, s36, s87
s_add_u32 s36, s36, 65536
s_add_u32 s36, s36, s76
s_mov_b32 s38, s85
s_lshl_b32 s39, s86, 6
s_add_u32 s39, s39, s87
s_add_u32 s39, s39, 1024
s_mov_b32 s80, 0
s_mov_b32 s81, {16*9216}
s_mov_b32 s82, {32*9216}
s_mov_b32 s83, {48*9216}
s_mov_b32 s95, 0x00003f80
s_mov_b32 s96, 0x3f800000""")
    if cfg.isl == 2: warm(1)
    P("L_markC:")
    P(f"s_or_b32 s86, s2, s{sW}\ns_cbranch_scc0 L_epoch\nL_epoch_back:")
    slow.append(f"""L_epoch:
s_waitcnt vmcnt(0)
v_lshrrev_b32 v16, 5, v{vL}
v_lshlrev_b32 v16, 12, v16
v_and_b32 v17, 31, v{vL}
v_lshl_add_u32 v16, v17, {cfg.fsh}, v16
v_add_u32 v16, {F0S}, v16
v_add_u32 v17, 8192, v16
v_add_u32 v18, 16384, v16
v_add_u32 v19, 24576, v16
s_mov_b32 s97, 0
L_epoch_poll:
buffer_load_dword v20, v16, {srd(sWS)}, 0 offen sc1
buffer_load_dword v21, v17, {srd(sWS)}, 0 offen sc1
buffer_load_dword v22, v18, {srd(sWS)}, 0 offen sc1
buffer_load_dword v23, v19, {srd(sWS)}, 0 offen sc1
s_add_u32 s97, s97, 1
s_waitcnt vmcnt(0)
v_xor_b32 v20, s{sTAG}, v20
v_xor_b32 v21, s{sTAG}, v21
v_xor_b32 v22, s{sTAG}, v22
v_xor_b32 v23, s{sTAG}, v23
v_or_b32 v20, v20, v21
v_or3_b32 v20, v20, v22, v23
v_cmp_ne_u32 vcc, 0, v20
s_cmp_gt_u32 s97, 400000
s_cbranch_scc1 L_epoch_set
s_cbranch_vccnz L_epoch_poll
L_epoch_set:
v_mov_b32 v16, 0
v_mov_b32 v17, s{sTAG}
s_mov_b64 exec, 1
buffer_store_dword v17, v16, {srd(sWS)}, 0 offen sc1
s_mov_b64 exec, -1
s_waitcnt vmcnt(0)
s_branch L_epoch_back""")
    P(poll_fast(15, 232) if 2 in cfg.pfast else poll_check(15, 46))
    stamp("F2 seen")
    for k in range(2): P(f"buffer_load_dwordx2 {vq(SR+2*k,2)}, v239, {srd(sWS)}, s84 offen offset:{128*k} sc1", "hf")
    hl = []
    for s in range(18):
        hl.append([(f"buffer_load_dwordx4 {vq(HR+4*s)}, v{vL16}, {srd(sWS)}, s77 offen sc1", "hf")] + ([wrap(77, 4096, 75, 74)] if s < 17 else []))
    for s in range(cfg.nh1): P.extend(hl[s])
    P(f"v_add_f32 v{ST}, v{SR}, v{SR+2}\nv_add_f32 v{ST+1}, v{SR+1}, v{SR+3}")
    xsum(ST)
    finish_stats([ST])
    if not cfg.hilv:
        for s in range(cfg.nh1, cfg.nh2): P.extend(hl[s])
    stamp("LN2 stats")
    def ln2(s):
        return normalize(HR + 4*s, ST, NT + 8*(s & 1), s < 3) + [f"ds_write_b128 v{6 if s < 9 else 7}, {vq(HR+4*s)} offset:{XN + (s % 9)*4096}"]
    work = ln2(0) + ln2(1) + ln2(2)
    rest = [hl[s] for s in range(cfg.nh1, cfg.nh2)] if cfg.hilv else []
    for n, l in enumerate(work):
        P.add(l)
        if rest and n % cfg.hilv == cfg.hilv - 1: P.extend(rest.pop(0))
    for L in rest: P.extend(L)
    P("@waitlg_all\ns_barrier")
    def act_reads(i):
        pi, p = steps[i]
        b = AF + (i % 2)*16
        if pi < 2: reg = vL16 if p < 9 else 8
        else: reg = 9 if p < 9 else 10
        return [f"ds_read_b128 {aq(b+4*m)}, v{reg} offset:{((p % 9)*4 + m)*1024}" for m in range(4)]
    P.extend(act_reads(0))
    stamp("FFN start")
    mains = []; fixed = {}; start = []; load = {}
    first_use = {}; last_use = {}
    def put(g, it):
        fixed.setdefault(g, []).append(it); load[g] = load.get(g, 0) + cost(it)
    def place(items, g):
        for it in items:
            c = cost(it)
            while load.get(g, 0) > 0 and load.get(g, 0) + c > cfg.cap + 0.02: g += 1
            put(g, it)
        return g
    bar = {2: "a", 4: "b", 7: "c", 10: "d", 14: "f", 35: "0", 45: "1"}
    if cfg.w2st == 1: bar[17] = "e"
    fl2 = {0: "c", 1: "e", 2: cfg.w2bar}[cfg.w2st]
    if cfg.w2at >= 3: fl2 = None
    for i, (pi, p) in enumerate(steps):
        name, tiles, acc, cin = passes[pi]; nt = len(tiles)
        base = len(mains); start.append(base)
        b = AF + (i % 2)*16
        t_ = stamp_txt(f"@{name}{p}") if i else None
        if t_: fixed.setdefault(base - 1, []).append(t_)
        if i in bar:
            for it in [f"@flexdone{bar[i]}"] + (["@waitvm wrs"] if bar[i] == fl2 else []) + ["@waitlg_all", "s_barrier"]: put(base, it)
            if bar[i] == fl2:
                for it in flag_items(14): put(base, it)
        for t in range(nt):
            w = aq(4*slot[(pi, p, t)])
            first_use[(pi, p, t)] = len(mains); last_use[(pi, p, t)] = len(mains) + 3
            for m in (range(4) if not (cfg.snake and t % 2) else range(3, -1, -1)):
                d = vq(acc + (t*4 + m)*4)
                c = d if p > 0 else (vq(cin + 4*t) if cin is not None else "0")
                mains.append(f"{MF} {d}, {w}, {aq(b+4*m)}, {c}")
        if i + 1 < len(steps):
            for k, l in enumerate(act_reads(i+1)): put(base + (2*k if nt > 2 else k) + (1 if i in bar else 0), l)
            pj, pp = steps[i+1]
            nxt = " ".join(aq(4*slot[(pj, pp, t)]) for t in range(len(passes[pj][1])))
            fixed.setdefault(base + 4*nt - 1, []).append(f"@need {nxt} {aq(AF + ((i+1) % 2)*16, 16)}")
            load[base + 4*nt - 1] = load.get(base + 4*nt - 1, 0) + 0.67
    start.append(len(mains))
    S = lambda pi, p: start[pi*18 + p]
    path = {}
    TQ = 176
    tq = [0]
    def epi2(acc, tiles, m, st):
        q = TQ + 4*(tq[0] % 4); tq[0] += 1
        regs = [acc + (t*4 + m)*4 + r for t in tiles for r in range(4)]
        L = [f"v_cvt_pk_bf16_f32 v{q+k}, v{regs[2*k]}, v{regs[2*k+1]}" for k in range(len(regs)//2)]
        L += st(q)
        return L
    if cfg.noself:
        def pst(m, off, tag): return lambda q: [(f"buffer_store_dwordx4 {vq(q)}, v{160+m}, {srd(sWS)}, s{80+m} offen offset:{off} sc1", tag), f"ds_write_b128 v{168+m}, {vq(q)} offset:{off}"]
        def sst(m, tag): return lambda q: [(f"buffer_store_dwordx2 {vq(q,2)}, v{164+m}, {srd(sWS)}, s{80+m} offen sc1", tag), f"ds_write_b64 v{172+m}, {vq(q,2)} offset:2048"]
    else:
        def pst(m, off, tag): return lambda q: [(f"buffer_store_dwordx4 {vq(q)}, v{vPS}, {srd(sWS)}, s{80+m} offen offset:{off} sc1", tag)]
        def sst(m, tag): return lambda q: [(f"buffer_store_dwordx2 {vq(q,2)}, v{vSS}, {srd(sWS)}, s{80+m} offen sc1", tag)]
    RW = [4, 4, 2]; RH = [200, 208, 216]; RS = [220, 228, 236]; R0 = [16, 48, 80]
    rl = [(vL4, 0), (vL4, 1024), (vLS, 0)]
    SRC = [24, 25, 26, 27, 34, 35, 37]
    def red_loads(r):
        if cfg.noself:
            L = [(f"buffer_load_dwordx{RW[r]} {vq(R0[r]+RW[r]*j,RW[r])}, v{rl[r][0]}, {srd(sWS)}, s{SRC[j]} offen offset:{rl[r][1]}{cfg.rdfl}", "rd") for j in range(7)]
            return L
        L = ["s_mov_b32 s84, 0"]
        for j in range(8):
            L.append((f"buffer_load_dwordx{RW[r]} {vq(R0[r]+RW[r]*j,RW[r])}, v{rl[r][0]}, {srd(sWS)}, s84 offen offset:{rl[r][1]} sc1", "rd"))
            if j < 7: L.append("s_add_u32 s84, s84, 9216")
        return L
    def red_sum(r):
        T = RS[r]; L = []
        for j in ([7] + list(range(7)) if cfg.noself else range(8)):
            for d in range(RW[r]):
                q = R0[r] + RW[r]*j + d
                L.append(f"v_dot2_f32_bf16 v{T+2*d}, v{q}, s95, v{T+2*d}")
                L.append(f"v_dot2_f32_bf16 v{T+2*d+1}, v{q}, s96, v{T+2*d+1}")
        for d in range(RW[r]): L.append(f"v_cvt_pk_bf16_f32 v{T+d}, v{T+2*d}, v{T+2*d+1}")
        return L
    def red_store(r):
        vo, so, oo = [(vO4, 38, 0), (vO4, 38, 128), (vOS, 39, 0)][r]
        return [(f"buffer_store_dwordx{RW[r]} {vq(RS[r],RW[r])}, v{vo}, {srd(sOUT)}, s{so} offen offset:{oo}{cfg.outfl}", "out")]
    def add_path(g, c): path[g] = path.get(g, 0) + c
    G0, s4, s2 = cfg.late
    last = len(passes) - 1
    g = G0
    for m in range(4):
        for pr in range(2): g = place(epi2(16, [2*pr, 2*pr+1], m, pst(m, 512*pr, "p1")), g) + s4
    for m in range(4): g = place(epi2(16, [4], m, sst(m, "p1")), g) + s2
    two = cfg.two
    if two:
        gs = g + two[0]
        for it in ["@waitvm p1", "s_barrier"] + flag_items(vF3) + [f"v_add_u32 v{vF3}, 1024, v{vF3}"]: put(gs, it)
    gE = max(g, S(last, 0) + 3)
    for m in range(4): gE = place(epi2(96, [0, 1], m, pst(m, 1024, "p2")), gE) + s4
    assert gE - s4 < len(mains) - 1, gE
    nin = 0
    if two:
        erl = red_loads(0) + red_loads(2)
        gp = gs + two[1]
        if gp + two[2] < len(mains) - 4:
            put(gp, poll_pre(vP3, vPT))
            gq_ = place([poll_check(vP3, vPT), f"v_add_u32 v{vP3}, 1024, v{vP3}"], gp + two[2])
            while nin < len(erl) and gq_ + two[3] < len(mains) - 3:
                gq_ = place(erl[nin:nin+1], gq_ + two[3]); nin += 1
            inloop = True
        else: inloop = False
        if VERBOSE: print("two-phase: stores end", g, "flag", gs, "E stores end", gE, "in-loop loads", nin)
    g = 0
    for s in range(cfg.nh2, 18):
        g = place(hl[s], g); add_path(g, 110); g += cfg.hgap
    if cfg.w2st == 2:
        g = cfg.w2g
        for z in range(2):
            g = place([l.replace("v94", "v11") for l in unit_tr(z, 0, 96)], g) + 6
            for l in join(unit_st(2, z, 96)):
                g = place([l], g); add_path(g, cfg.scost if z == 0 else cfg.scost//4); g += cfg.w2gap
    g = S(2, 11)
    for r, (sh, sb, bo) in enumerate([(32, 38, 0), (33, 38, 128), (36, 39, 0)]):
        g = place([(f"buffer_load_dwordx{RW[r]} {vq(RH[r],RW[r])}, v{vH4}, {srd(sWS)}, s{sh} offen sc1", "rh")], g + 5); add_path(g, 70)
        g = place([(f"buffer_load_dwordx{RW[r]} {vq(RH[r]+RW[r],RW[r])}, v{vC4}, {srd(sB2)}, s{sb} offen offset:{bo}", "rh")], g + 3); add_path(g, 20)
    nl = npf[0]; free = cfg.backlog; g = 0
    while nl < len(cons):
        now = g*cfg.tgap
        if g in path: free = max(free, now) + path.pop(g)
        early = last_use[cons[nl - NR]] + 1 if nl >= NR else 0
        dead = first_use[cons[nl]] - cfg.margin
        if g >= early and (free <= now + cfg.slack or g >= dead):
            L = wload(nl)
            if nl == 162 - cfg.w2lead and fl2: L = [poll_pre(15, vPT)] + L
            if nl == 162 and fl2: L = [poll_check(15, vPT)] + L
            g2 = place(L, g)
            for x in range(g + 1, g2 + 1):
                if x in path: free = max(free, x*cfg.tgap) + path.pop(x)
            assert g2 < first_use[cons[nl]] - 8, (nl, g2, first_use[cons[nl]])
            if VERBOSE and nl % 18 == 0: print(f"   load {nl} at gap {g2}, first use {first_use[cons[nl]]}, backlog {free - g2*cfg.tgap:.0f}")
            g = g2; free = max(free, g*cfg.tgap) + cfg.wcost; nl += 1
        g += 1
    if VERBOSE: print("last weight load at gap", g, "of", len(mains), "pass starts", [S(k, 0) for k in range(len(passes))])
    flex = []
    for lo, hi, mk in [(3, 5, "a"), (5, 8, "b"), (8, 11, "c"), (11, 15, "d"), (15, 18, "f")]:
        for s in range(lo, hi):
            for l in ln2(s): flex.append((0, l))
        flex.append((0, f"@mark{mk}"))
    if cfg.w2st == 1:
        flex.append((0, "@waitvm wr"))
        for z in range(2):
            for l in unit_tr(z, 0, 176): flex.append((0, l.replace("v94", "v11")))
            for l in [f"@need {vq(176,16)}"] + unit_st(2, z, 176): flex.append((0, l))
    for l in set_poll_addr(15, sJF, F2S) + unpack(CB, B1P+8, 8): flex.append((0, l))
    flex.append((0, "@marke"))
    for k, (q, mod, sr, add) in enumerate([(f"s_lshl_b32 s84, s{sW}, 1", 10, 93, 0), (f"s_lshl_b32 s84, s{sW}, 1\ns_add_u32 s84, s84, 1", 10, 93, 0),
                                           (f"s_lshr_b32 s84, s{sW}, 1\ns_add_u32 s84, s84, 8", 10, 93, 0),
                                           (f"s_lshl_b32 s84, s{sW}, 1", 8, 94, 10), (f"s_lshl_b32 s84, s{sW}, 1\ns_add_u32 s84, s84, 1", 8, 94, 10)]):
        flex.append((0, q))
        flex.append((0, f"s_sub_u32 s84, s84, s{sr}\ns_cselect_b32 s85, {mod}, 0"))
        flex.append((0, f"s_add_u32 s84, s84, s85\ns_add_u32 s84, s84, {add}"))
        flex.append((0, "s_lshl_b32 s84, s84, 12"))
        if k == 2: flex.append((0, f"s_and_b32 s85, s{sW}, 1\ns_lshl_b32 s85, s85, 3\ns_add_u32 s84, s84, s85"))
        flex.append((0, f"v_add_u32 v{192+k}, s84, v9"))
    def epi1(acc, pair_tiles, m, wr):
        L = []
        q = TQ + 4*(tq[0] % 4); tq[0] += 1
        regs = [acc + (t*4 + m)*4 + r for t in pair_tiles for r in range(4)]
        for r in regs: L.append(f"v_mul_f32 v{r}, v{r}, |v{r}|")
        for k in range(len(regs)//2): L.append(f"v_cvt_pk_bf16_f32 v{q+k}, v{regs[2*k]}, v{regs[2*k+1]}")
        for k in range(len(regs)//2): L.append(f"v_pk_max_i16 v{q+k}, v{q+k}, 0")
        L.append(wr(q))
        return L
    at = S(1, 0) + 3
    for pr in range(2):
        for m in range(4):
            for l in epi1(ACA, [2*pr, 2*pr+1], m, lambda q: f"ds_write_b128 v{192+pr}, {vq(q)} offset:{m*1024}"): flex.append((at, l))
    for m in range(4):
        for l in epi1(ACA, [4], m, lambda q: f"ds_write_b64 v194, {vq(q,2)} offset:{m*1024}"): flex.append((at, l))
    flex.append((at, "@mark0"))
    at = S(2, 0) + 3
    for pr in range(2):
        for m in range(4):
            for l in epi1(ACB, [2*pr, 2*pr+1], m, lambda q: f"ds_write_b128 v{195+pr}, {vq(q)} offset:{m*1024}"): flex.append((at, l))
    flex.append((at, "@mark1"))
    if cfg.noself:
        at = S(2, 10)
        L = lines(f"""s_and_b32 s85, s{sJF}, 1
v_lshrrev_b32 v6, 3, v{vI}
v_cmp_eq_u32 s[64:65], s85, v6
s_mul_i32 s85, s{sW}, 2560
v_and_b32 v6, 7, v{vI}
v_lshl_add_u32 v6, v{vG}, 3, v6
v_lshl_add_u32 v7, v6, 3, s85
v_lshl_add_u32 v6, v6, 4, s85
v_add_u32 v8, s85, v{vL16}
v_lshl_add_u32 v11, v{vL}, 3, s85
v_add_u32 v14, 16384, v{vL16}
s_lshr_b32 s85, s{sJF}, 1""")
        for m in range(4):
            L.append(f"s_cmp_eq_u32 s85, {m}\ns_cselect_b64 s[66:67], s[64:65], 0")
            L += [f"v_cndmask_b32 v{160+m}, v{vPS}, v13, s[66:67]", f"v_cndmask_b32 v{164+m}, v{vSS}, v13, s[66:67]",
                  f"v_cndmask_b32 v{168+m}, v14, v6, s[66:67]", f"v_cndmask_b32 v{172+m}, v14, v7, s[66:67]"]
        for k in range(7): L.append(f"s_add_u32 s86, s{sJF}, {k+1}\ns_and_b32 s86, s86, 7\ns_mul_i32 s{SRC[k]}, s86, 9216")
        for l in L: flex.append((at, l))
        flex.append((at, "@marks"))
        put(S(3, 0), "@flexdones")
    at = S(3, 0)
    UT = 192
    for r in range(3):
        for l in unpack(RS[r], RH[r], RW[r]) + unpack(UT, RH[r]+RW[r], RW[r]): flex.append((at, l))
        for d in range(2*RW[r]): flex.append((at, f"v_add_f32 v{RS[r]+d}, v{RS[r]+d}, v{UT+d}"))
    if cfg.skip:
        def keep(it):
            t = it[0] if isinstance(it, tuple) else it
            tag = it[1] if isinstance(it, tuple) else None
            if "valu" in cfg.skip and re.match(r"v_lshlrev_b32 v\d+, 16,|v_and_b32 v\d+, s98|v_fma_f32|v_cvt_pk|v_mul_f32|v_pk_max|v_add_f32", t): return False
            if "dsw" in cfg.skip and t.startswith("ds_write"): return False
            if "bar" in cfg.skip and t == "s_barrier": return False
            if "pst" in cfg.skip and tag in ("p1", "p2", "p3"): return False
            if "rd" in cfg.skip and tag in ("rd", "rh"): return False
            if "w" in cfg.skip and tag == "w": return False
            if "chk" in cfg.skip and "L_slow" in t: return False
            return True
        flex = [f for f in flex if keep(f[1])]
        fixed = {g: [x for x in L if keep(x)] for g, L in fixed.items()}
        slow[:] = [x for x in slow if any(x.split(":")[0] in i.text for i in P.ins) or "chk" not in cfg.skip]
    sched(P, mains, fixed, flex, cap=cfg.cap)
    stamp("FFN done")
    lateds = []
    for m in ((3, 2, 1, 0) if cfg.snake else range(4)):
        L = epi2(128, [0, 1], m, pst(m, 1536, "p2"))
        if cfg.noself and cfg.lateds: lateds.append(L.pop())
        P.extend(L)
    P.extend(lateds)
    if two and not inloop: P.add(poll_pre(vP3, vPT))
    P("@waitvm p2\ns_barrier")
    set_flag(vF3)
    stamp("F3c set")
    if two:
        if not inloop: P(poll_check(vP3, vPT) + f"\nv_add_u32 v{vP3}, 1024, v{vP3}")
        P.extend(erl[nin:])
        P.add(poll_pre(vP3, vPT))
        P(f"@waitlg_all\nds_read_b128 {vq(R0[0]+28)}, v8\nds_read_b128 {vq(R0[1]+28)}, v8 offset:1024\nds_read_b64 {vq(R0[2]+14,2)}, v11 offset:2048")
        P.extend(red_sum(0) + red_sum(2))
        P(poll_check(vP3, vPT))
        stamp("F3c seen")
        P.extend(red_loads(1))
        P.extend(red_store(0) + red_store(2))
        P.extend(red_sum(1) + red_store(1))
    else:
        P.add(poll_pre(vP3, vPT))
        if cfg.noself:
            P(f"@waitlg_all\nds_read_b128 {vq(R0[0]+28)}, v8\nds_read_b128 {vq(R0[1]+28)}, v8 offset:1024\nds_read_b64 {vq(R0[2]+14,2)}, v11 offset:2048")
        P(poll_check(vP3, vPT))
        stamp("F3c seen")
        for r in cfg.rord: P.extend(red_loads(r))
        for r in cfg.rord: P.extend(red_sum(r) + red_store(r))
    if cfg.stamps:
        P("s_waitcnt vmcnt(0)")
        stamp("end")
        P(f"s_lshl_b32 s84, s2, 2\ns_add_u32 s84, s84, s{sW}\ns_lshl_b32 s84, s84, 7\ns_add_u32 s84, s84, {STAMPS}\nv_mov_b32 v6, s84\ns_mov_b64 exec, 1")
        if cfg.diag is not None:
            a, b = cfg.diag
            P(f"s_sub_u32 s84, s{STAMP0+b}, s{STAMP0+a}\ns_lshl_b32 s84, s84, 2\ns_add_u32 s84, s84, 10000\nL_spin:\ns_sleep 8\ns_memrealtime s[100:101]\ns_waitcnt lgkmcnt(0)\ns_sub_u32 s85, s100, s{STAMP0}\ns_cmp_lt_u32 s85, s84\ns_cbranch_scc1 L_spin")
        elif cfg.dbg:
            P(f"v_mov_b32 v6, 0\ns_not_b32 s84, s{STAMP0}\nv_mov_b32 v5, s84\nbuffer_atomic_umax v5, v6, {srd(sR)}, 0 offen")
            for k in range(min(nstamp[0], 15)):
                P(f"v_mov_b32 v{16+k}, s{STAMP0+k}\nbuffer_atomic_umax v{16+k}, v6, {srd(sR)}, 0 offen offset:{4*k+4}")
        else:
          for k in range(nstamp[0]):
            P(f"v_mov_b32 v5, s{STAMP0+k}\nbuffer_store_dword v5, v6, {srd(sWS)}, 0 offen offset:{4*k}")
    P("L_end:\ns_endpgm")
    for x in slow: P(x)
    P("L_code_end:")
    cfg.names = names
    return P

def cost(it):
    t = it[0] if isinstance(it, tuple) else it
    c = 0
    for l in t.split("\n"):
        if l.startswith("@") or l.endswith(":"): continue
        c += 0.67 if l.startswith("s_") else (2 if l.startswith("ds_write_b128") else 1)
    return c

def sched(P, mains, fixed, flex, cap=2, flex2=None):
    Q = [list(flex2 or []), list(flex)]; K = [0, 0]; marks = set()
    def put(it):
        t = it[0] if isinstance(it, tuple) else it
        if t.startswith("@mark"): marks.add(t[5:]); return 0
        if t.startswith("@flexdone"):
            for q in range(2):
                if any((x[1] if not isinstance(x[1], tuple) else x[1][0]) == "@mark" + t[9:] for x in Q[q]):
                    n0 = K[q]
                    while t[9:] not in marks:
                        it2 = Q[q][K[q]][1]; K[q] += 1; put(it2)
                    if K[q] - n0 > 1 and VERBOSE: print("flush", t, K[q] - n0)
            return 0
        P.add(it)
        return cost(t)
    for n, m in enumerate(mains):
        P.add(m)
        c = 0
        for it in fixed.get(n, []): c += put(it)
        for q in range(2):
            while K[q] < len(Q[q]) and Q[q][K[q]][0] <= n and (c == 0 or c + cost(Q[q][K[q]][1]) <= cap + 0.02):
                it = Q[q][K[q]][1]; K[q] += 1
                c += put(it)
    for q in range(2):
        if K[q] < len(Q[q]) and VERBOSE: print("left", len(Q[q]) - K[q])
        while K[q] < len(Q[q]):
            it = Q[q][K[q]][1]; K[q] += 1
            put(it)
VERBOSE = False

import struct
def hexf(x): return hex(struct.unpack("<I", struct.pack("<f", x))[0])

HEADER = open("cdna_kernels/" + NAME + ".s.ref").read().split("; Override launch geometry")[0]
NOTES = """;
; 32 row groups of 64 tokens x 8 column slices; rows of a group are kept in parity order (even tokens, odd tokens).
;  0. start-up : every workgroup transposes a share of wqkv / wo / w1 / w2 into MFMA fragment order in d_ws
; Hand-offs between workgroups: sc1 (write-through) stores, s_waitcnt, barrier, then a flag word holding a per-launch tag
; (word 0 of d_ws + constant, advanced once per launch); consumers poll with sc1 loads and read with sc1 loads, so any
"""

def add_islands(body):
    import subprocess, tempfile, os
    lines = body.rstrip("\n").split("\n")
    probe = []
    for n, l in enumerate(lines):
        probe.append(f"L_probe{n}:")
        probe.append(l)
    probe.append(f"L_probe{len(lines)}:\nL_chain0:\nL_chain1:")
    with tempfile.TemporaryDirectory() as d:
        open(d + "/p.s", "w").write('.amdgcn_target "amdgcn-amd-amdhsa--gfx950"\n.text\n' + "\n".join(probe) + "\n")
        subprocess.run(["clang", "-x", "assembler", "-target", "amdgcn-amd-amdhsa", "-mcpu=gfx950", "-c", d + "/p.s", "-o", d + "/p.o"], check=True)
        sym = subprocess.run(["llvm-readelf", "-s", "-W", d + "/p.o"], capture_output=True, text=True, check=True).stdout
    addr = {}
    for l in sym.split("\n"):
        f = l.split()
        if len(f) >= 8 and f[7].startswith("L_probe"): addr[int(f[7][7:])] = int(f[1], 16)
    size = [addr[n+1] - addr[n] for n in range(len(lines))]
    a0 = lines.index("L_aligned:"); end = lines.index("L_end:")
    mA = lines.index("L_chainend0:"); mB = max(lines.index("L_markB:"), lines.index("L_chainend1:"))
    out = lines[:a0] + [".p2align 12", lines[a0]]
    off = 0; nxt = 4096; isl = []
    for n in range(a0 + 1, len(lines)):
        if off >= nxt and n < end and size[n] > 0:
            if n > mA:
                isl.append((len(out), 0 if n < mB else 1)); out.append(None); off += 4
            nxt += 4096
        out.append(lines[n]); off += size[n]
    for c in range(2):
        L = [p for p, cc in isl if cc == c]
        for k, p in enumerate(L):
            tgt = f"L_isl{c}_{k+1}" if k + 1 < len(L) else f"L_chainend{c}"
            out[p] = (f"L_chain{c}:\n" if k == 0 else "") + f"L_isl{c}_{k}:\n  s_cbranch_execz {tgt}"
    return "\n".join(out) + "\n"

def build(cfg, verbose=False):
    body = finalize(gen(cfg), verbose)
    body = body.replace("  s_sleep 0\n", "")
    if cfg.isl: body = add_islands(body)
    k = NAME + "_kernel"
    return (HEADER + f"; @launch grid=(256,1,1) block=(256,1,1) lds={LDS_BYTES}\n" + NOTES
        + f'.amdgcn_target "amdgcn-amd-amdhsa--gfx950"\n.text\n.globl {k}\n.p2align 8\n.type {k},@function\n{k}:\n' + body
        + f""".section .rodata,"a"
.p2align 6
.amdhsa_kernel {k}
  .amdhsa_next_free_vgpr 512
  .amdhsa_next_free_sgpr 102
  .amdhsa_accum_offset 256
  .amdhsa_group_segment_fixed_size 0
  .amdhsa_kernarg_size 88
  .amdhsa_user_sgpr_count 2
  .amdhsa_user_sgpr_kernarg_segment_ptr 1
  .amdhsa_system_sgpr_workgroup_id_x 1
.end_amdhsa_kernel
""")

if __name__ == "__main__":
    cfg = Cfg(); VERBOSE = True
    out = sys.argv[1]
    for a in sys.argv[2:]:
        k, v = a.split("=")
        setattr(cfg, k, eval(v))
    open(out, "w").write(build(cfg, True))
    if cfg.stamps: open(out + ".names", "w").write("|".join(cfg.names))
```

```python
import sys
from ir import *

NAME = "sequential_preLN__sliding_local_dilated__dense_activation_squared_relu__prompt"

F0S, F1G, F1S, F2G, F2S, F3A, F3B, STATS, F3C = 0x10000, 0x20000, 0x48000, 0x50000, 0x78000, 0x80000, 0xA0000, 0xC0000, 0xE0000
WQP, WOP, OP, HP, W1R, W2R, PART, STAMPS = 0x100000, 0x300000, 0x400000, 0x700000, 0xA00000, 0x1000000, 0x1600000, 0x3000000
WS_BYTES = 0x4000000
OOB = 0x40000000
LDS_BYTES = 163840
XB = 71680
R0SCR = 49152
W1SCR = 0
WOB = 0
W2SCR0 = 32768
W2SCR = 98304
XRS = 131072
VXS = 143360
XN, HB = 0, 73728
sX, sWQ, sWO, sW1, sW2, sB1, sB2, sOUT, sWS, sR = 28, 32, 36, 40, 44, 48, 52, 56, 60, 88
sW, sG2, sJ2, sGF, sJF, sTAG = 68, 69, 70, 71, 72, 73
def srd(n): return f"s[{n}:{n+3}]"
def vq(n, k=4): return f"v[{n}:{n+k-1}]"
def aq(n, k=4): return f"a[{n}:{n+k-1}]"
MF = "v_mfma_f32_16x16x32_bf16"
vL, vI, vG, vL16 = 1, 2, 3, 4

class Cfg:
    stamps = False
    nx1 = 8
    p1depth = 4
    npre = 25
    rot = True
    npre1 = 12
    wospan = 10
    f3 = (10, 14)
    pre = (8, 8, 4, 8, 26)
    wo_early = 13
    dmagap = 9
    touch = 0
    g1cap = 2
    outr = (0, 1)
    esel = (2, 0)
    ppos = 11
    after = (0, 0)
    rawn = 0
    r0bar = False
    fullsec = False
    fsh = 2
    gsh = 4
    fz = 4
    hilv = 0
    lateds = True
    optz = False
    w2tr = 6
    latemask = 0
    stfill = True
    isl = 0
    ct2 = 1
    w2bar = 'd'
    w2g = 30
    w2gap = 8
    w2h1 = 0
    xfl = ''
    xrfl = ''
    rdfl = ' sc1'
    noself = True
    two = (50, 300, 24, 5, 1)
    etest = 0
    dtest = 0
    pfast = ()
    pfn = 4
    pfs = 2
    nb = (1, 1)
    nearly = None
    tsleep = 0
    ssleep = 0
    snake = True
    g1ord = 0
    p522 = True
    fl3 = 0
    late = (1012, 8, 4)
    rord = (0, 1, 2)
    norp = ()
    ctouch = 2
    nq1 = 4
    qgap = 8
    poll1 = False
    psleep = 0
    f0both = True
    outfl = ''
    no1 = 8
    ogap = 3.5
    nh2 = 18
    hgap = 5
    p1early = False
    wflag = False
    tail4 = (10, 110, 85, 85, 200, 185, 20)
    scost = 200
    lcost = 80
    skip = ()
    lag = 20
    gq = (0, 3, 0, 0)
    f1s = 11
    tail = (14, 13, 232, 44, 5, 11, 18)
    tailord = 0
    backlog = 0
    tgap = 18.5
    slack = 70
    margin = 205
    wcost = 60
    rawfl = ' nt'
    r0fl = ' nt'
    wrsfl = ' sc1'
    rawat = 0
    ilv = True
    w2at = 1
    w2st = 0
    nh1 = 4
    hold = 0
    w2lead = 16
    nleft = 60
    p1z4 = 2
    p2same = False
    nx2 = 15
    dbg = False
    diag = None
    wsbase = 0
    only = None
    cap = 2
    wsc = " sc1"
    nwo1 = 40
    stop = None

def gen(cfg):
    P = Prog()
    sG1, sJ1 = (sGF, sJF) if cfg.p1z4 == 1 else ((sG2, sJ2) if cfg.p1z4 == 0 else (22, 23))
    nstamp = [0]
    names = []
    def stamp_txt(name):
        if cfg.stamps and (cfg.only is None or name.replace(" ", "_") in cfg.only or name == "end") and not (cfg.only is None and name.startswith("@")):
            k = nstamp[0]; nstamp[0] += 1; names.append(name); assert k < (18 if cfg.p1z4 == 2 else 20), name
            return f"{'s_memtime' if cfg.stamps == 2 else 's_memrealtime'} s[100:101]\n@waitlg_all\ns_mov_b32 s{STAMP0+k}, s100"
        return None
    def stamp(name):
        t = stamp_txt(name)
        if t: P(t)
    STAMP0 = 4
    npoll = [0]
    def poll(vaddr, vtmp):
        k = npoll[0]; npoll[0] += 1
        P(f"""s_mov_b32 s97, 0
L_poll{k}:
s_sleep {cfg.psleep}
buffer_load_dword v{vtmp}, v{vaddr}, {srd(sWS)}, 0 offen sc1
s_add_u32 s97, s97, 1
s_waitcnt vmcnt(0)
v_cmp_ne_u32 vcc, s{sTAG}, v{vtmp}
s_cmp_gt_u32 s97, 400000
s_cbranch_scc1 L_pdone{k}
s_cbranch_vccnz L_poll{k}
L_pdone{k}:""")
    slow = []
    def poll_pre(vaddr, vtmp):
        return (f"buffer_load_dword v{vtmp}, v{vaddr}, {srd(sWS)}, 0 offen sc1", "pl")
    def poll_check(vaddr, vtmp):
        k = npoll[0]; npoll[0] += 1
        slow.append(f"""L_slow{k}:
s_mov_b32 s97, 0
L_poll{k}:
s_sleep {cfg.ssleep}
buffer_load_dword v{vtmp}, v{vaddr}, {srd(sWS)}, 0 offen sc1
s_add_u32 s97, s97, 1
s_waitcnt vmcnt(0)
v_cmp_ne_u32 vcc, s{sTAG}, v{vtmp}
s_cmp_gt_u32 s97, 400000
s_cbranch_scc1 L_back{k}
s_cbranch_vccnz L_poll{k}
s_branch L_back{k}""")
        return f"v_cmp_ne_u32 vcc, s{sTAG}, v{vtmp}\ns_cbranch_vccnz L_slow{k}\nL_back{k}:"
    def poll_fast(vaddr, vt):
        k = npoll[0]; npoll[0] += 1
        n = cfg.pfn
        ld = lambda q: f"buffer_load_dword v{vt+q}, v{vaddr}, {srd(sWS)}, 0 offen sc1"
        t = f"L_slow{k}:\ns_mov_b32 s97, 0\n"
        for q in range(n - 1): t += ld(q) + f"\ns_sleep {cfg.pfs}\n"
        t += f"L_poll{k}:\n"
        for q in range(n):
            t += ld((q + n - 1) % n) + f"\ns_waitcnt vmcnt({n-1})\nv_cmp_ne_u32 vcc, s{sTAG}, v{vt+q}\ns_cbranch_vccz L_back{k}\ns_sleep {cfg.pfs}\n"
        t += f"s_add_u32 s97, s97, 1\ns_cmp_gt_u32 s97, 200000\ns_cbranch_scc0 L_poll{k}\ns_branch L_back{k}"
        slow.append(t)
        return f"s_cmp_eq_u32 s{sW}, 0\ns_cbranch_scc1 L_slow{k}\nL_back{k}:\ns_barrier"
    def wrap(sr, step, send, sbeg):
        return f"s_add_u32 s{sr}, s{sr}, {step}\ns_cmp_eq_u32 s{sr}, s{send}\ns_cselect_b32 s{sr}, s{sbeg}, s{sr}"
    def set_flag(vaddr):
        P(f"v_mov_b32 v5, s{sTAG}")
        P(f"buffer_store_dword v5, v{vaddr}, {srd(sWS)}, 0 offen sc1", "flag")

    P("""s_cmp_ge_u32 s2, 256
s_cbranch_scc1 L_end
s_load_dwordx16 s[4:19], s[0:1], 0
s_load_dwordx2 s[20:21], s[0:1], 64
s_load_dwordx2 s[24:25], s[0:1], 80""")
    def code_touch(vd, first, sb=92, vt=62):
        P(f"""s_getpc_b64 s[{sb}:{sb+1}]
L_pc{first}:
s_and_b32 s{sb+1}, s{sb+1}, 0xffff
s_mov_b32 s{sb+2}, L_code_end - L_pc{first}
s_mov_b32 s{sb+3}, 0x00020000
s_lshr_b32 s84, s2, 3
s_lshl_b32 s84, s84, 2
v_lshrrev_b32 v{vt}, 6, v0
v_and_b32 v{vd}, 63, v0
v_lshlrev_b32 v{vd}, 7, v{vd}
v_add3_u32 v{vd}, v{vd}, v{vt}, s84
v_lshlrev_b32 v{vd}, 7, v{vd}""")
        P(f"buffer_load_dword v{vd}, v{vd}, s[{sb}:{sb+3}], 0 offen", "tch")
    if cfg.ctouch == 2: code_touch(63, 0)
    if cfg.stamps: P("s_memtime s[26:27]" if cfg.stamps == 2 else "s_memrealtime s[26:27]")
    P(f"""v_lshrrev_b32 v5, 6, v0
v_and_b32 v{vL}, 63, v0
v_readfirstlane_b32 s{sW}, v5
v_and_b32 v{vI}, 15, v0
v_lshrrev_b32 v{vG}, 4, v{vL}
v_lshlrev_b32 v{vL16}, 4, v{vL}
s_and_b32 s74, s2, 7
s_lshr_b32 s75, s2, 3
s_lshl_b32 s{sG2}, s74, 2
s_lshr_b32 s76, s75, 3
s_add_u32 s{sG2}, s{sG2}, s76
s_and_b32 s{sJ2}, s75, 7
s_lshr_b32 s{sGF}, s74, 2
s_lshl_b32 s{sGF}, s{sGF}, 4
s_lshr_b32 s76, s75, 1
s_add_u32 s{sGF}, s{sGF}, s76
s_and_b32 s{sJF}, s74, 3
s_lshl_b32 s{sJF}, s{sJF}, 1
s_and_b32 s76, s75, 1
s_add_u32 s{sJF}, s{sJF}, s76
""")
    if cfg.p1z4 == 2:
        P(f"""s_lshr_b32 s22, s74, 1
s_lshl_b32 s22, s22, 3
s_lshr_b32 s76, s75, 2
s_add_u32 s22, s22, s76
s_and_b32 s23, s74, 1
s_lshl_b32 s23, s23, 2
s_and_b32 s76, s75, 3
s_add_u32 s23, s23, s76""")
    if cfg.fz == 8: P(f"s_mov_b32 s{sJF}, s74\ns_mov_b32 s{sGF}, s75")
    if cfg.fz == 2: P(f"s_mov_b32 s{sJF}, s23\ns_mov_b32 s{sGF}, s22")
    if cfg.p2same: P(f"s_mov_b32 s{sG2}, s{sG1}\ns_mov_b32 s{sJ2}, s{sJ1}")
    P(f"""s_lshl_b32 s77, s{sW}, 5
s_add_u32 s77, s77, s{sG1}
s_mul_i32 s78, s{sJ1}, 144""")
    sRP, sRF, sR2 = 0, 1, 3
    P(f"""s_cmp_lt_u32 s77, 72
s_cbranch_scc0 L_r0_wo
v_mul_u32_u24 v6, 2428, v{vL}
v_lshrrev_b32 v6, 16, v6
v_mul_u32_u24 v7, 27, v6
v_sub_u32 v7, v{vL}, v7
v_mul_u32_u24 v8, 7282, v7
v_lshrrev_b32 v8, 16, v8
v_mul_u32_u24 v9, 9, v8
v_sub_u32 v9, v7, v9
v_mul_u32_u24 v6, 3456, v6
v_mul_u32_u24 v8, 1152, v8
v_lshlrev_b32 v9, 4, v9
v_add3_u32 v5, v6, v8, v9
v_cmp_gt_u32 vcc, 54, v{vL}
s_mul_i32 s80, s77, {8*3456}
s_add_u32 s80, s80, s78
s_add_u32 s81, s80, {6912-1024}
s_add_u32 s82, s81, {6912-1024}
s_add_u32 s83, s82, {6912-1024}
s_branch L_r0_join
L_r0_wo:
v_mul_u32_u24 v6, 7282, v{vL}
v_lshrrev_b32 v6, 16, v6
v_mul_u32_u24 v7, 9, v6
v_sub_u32 v7, v{vL}, v7
v_mul_u32_u24 v6, 1152, v6
v_lshl_add_u32 v5, v7, 4, v6
v_cmp_gt_u32 vcc, 36, v{vL}
s_sub_u32 s79, s77, 72""")
    for G in range(2):
        if G: P("s_add_u32 s79, s79, 36")
        P(f"""s_lshr_b32 s84, s79, 2
s_mul_i32 s84, s84, 36
s_bfe_u32 s85, s79, 0x10001
s_mul_i32 s85, s85, 20
s_add_u32 s84, s84, s85
s_and_b32 s85, s79, 1
s_lshl_b32 s85, s85, 3
s_add_u32 s84, s84, s85
s_add_u32 s85, s84, 4
s_sub_u32 s86, s79, 64
s_mul_i32 s86, s86, 72
s_add_u32 s86, s86, 16
s_add_u32 s87, s86, 36
s_cmp_lt_u32 s79, 64
s_cselect_b32 s84, s84, s86
s_cselect_b32 s85, s85, s87
s_mul_i32 s84, s84, 1152
s_mul_i32 s85, s85, 1152
s_add_u32 s84, s84, s78
s_add_u32 s85, s85, s78
s_sub_u32 s{80+2*G}, s84, {1024*(2*G)}
s_sub_u32 s{81+2*G}, s85, {1024*(2*G+1)}""")
    P(f"""s_cmp_lt_u32 s77, 108
s_cselect_b32 s80, s80, {OOB}
s_cselect_b32 s81, s81, {OOB}
s_cselect_b32 s82, s82, {OOB}
s_cselect_b32 s83, s83, {OOB}
L_r0_join:
s_nop 1
v_mov_b32 v6, {OOB}
v_cndmask_b32 v5, v6, v5, vcc
s_lshl_b32 s84, s{sW}, 12
s_add_u32 s84, s84, {R0SCR}
s_mov_b32 m0, s84
s_waitcnt lgkmcnt(0)""")
    def mksrd(d, p, n):
        P(f"s_mov_b32 s{d}, s{p}\ns_and_b32 s{d+1}, s{p+1}, 0xffff\ns_mov_b32 s{d+2}, {n}\ns_mov_b32 s{d+3}, 0x00020000")
    P(f"""s_cmp_lt_u32 s77, 72
s_cselect_b32 s{sR}, s6, s8
s_cselect_b32 s{sR+1}, s7, s9
s_mov_b32 s85, {576*1152}
s_cselect_b32 s{sR+2}, {576*3456}, s85
s_and_b32 s{sR+1}, s{sR+1}, 0xffff
s_mov_b32 s{sR+3}, 0x00020000""")
    if cfg.stamps: P(("s_memtime" if cfg.stamps == 2 else "s_memrealtime") + " s[38:39]")
    for q in range(4):
        P(f"buffer_load_dwordx4 v5, {srd(sR)}, s{80+q} offen offset:{1024*q}{cfg.r0fl} lds", "r0")
    if cfg.ctouch == 1: code_touch(63, 0)
    mksrd(sX, 4, 2048*1152)
    if cfg.wsbase: P(f"s_add_u32 s24, s24, {cfg.wsbase}\ns_addc_u32 s25, s25, 0")
    P(f"s_load_dword s{sTAG}, s[24:25], 0")
    XR, XH = 160, 232
    P(f"""s_lshl_b32 s84, s{sG1}, 6
s_and_b32 s85, s{sW}, 1
s_lshl_b32 s85, s85, 5
s_add_u32 s85, s85, s84
s_lshr_b32 s86, s{sW}, 1
s_add_u32 s85, s85, s86
s_mul_i32 s85, s85, 1152
v_lshrrev_b32 v8, 3, v{vL}
v_and_b32 v9, 7, v{vL}
v_mul_u32_u24 v6, 2304, v8
v_lshl_add_u32 v6, v9, 4, v6
v_add_u32 v6, s85, v6
v_add_u32 v7, {8*2304}, v6""")
    if cfg.rot:
        P(f"""s_and_b32 s86, s{sG2}, 3
s_mul_i32 s86, s86, 9
s_add_u32 s86, s86, 2
s_lshr_b32 s86, s86, 2
s_add_u32 s86, s86, s{sJ2}
s_sub_u32 s87, s86, 9
s_cmp_ge_u32 s86, 9
s_cselect_b32 s{sRP}, s87, s86
s_lshl_b32 s86, s{sJ2 if cfg.p2same else sG2}, 1
s_add_u32 s86, s86, s{sG2 if cfg.p2same else sJ2}
s_and_b32 s{sR2}, s86, 7
s_and_b32 s86, s{sJF}, 1
s_mul_i32 s86, s86, 9
s_and_b32 s87, s{sGF}, 15
s_add_u32 s86, s86, s87
s_sub_u32 s87, s86, 18
s_cmp_ge_u32 s86, 18
s_cselect_b32 s{sRF}, s87, s86""")
        if cfg.fz == 8: P(f"s_mul_i32 s86, s{sGF}, 9\ns_lshr_b32 s{sRF}, s86, 4")
        if cfg.fz == 2: P(f"""s_and_b32 s86, s{sJF}, 3
s_mul_i32 s86, s86, 9
s_lshr_b32 s86, s86, 1
s_and_b32 s87, s{sGF}, 7
s_lshl_b32 s87, s87, 1
s_add_u32 s86, s86, s87
s_sub_u32 s87, s86, 18
s_cmp_ge_u32 s86, 18
s_cselect_b32 s{sRF}, s87, s86""")
        if cfg.p1z4 == 1: P(f"s_lshr_b32 s{sRP}, s{sRF}, 1")
        if cfg.p1z4 == 2:
            P(f"""s_and_b32 s86, s23, 3
s_mul_i32 s86, s86, 9
s_add_u32 s86, s86, 2
s_lshr_b32 s86, s86, 2
s_and_b32 s87, s22, 7
s_add_u32 s86, s86, s87
s_sub_u32 s87, s86, 9
s_cmp_ge_u32 s86, 9
s_cselect_b32 s{sRP}, s87, s86""")
    else:
        P(f"s_mov_b32 s{sRP}, 0\ns_mov_b32 s{sRF}, 0\ns_mov_b32 s{sR2}, 0")
    P(f"s_lshl_b32 s88, s{sRP}, 7")
    for q in range(1, 9):
        P(f"s_add_u32 s{88+q}, s{87+q}, 128\ns_cmp_eq_u32 s{88+q}, 1152\ns_cselect_b32 s{88+q}, 0, s{88+q}")
    xl = []
    for q in range(9):
        for hh in range(2):
            xl.append(f"buffer_load_dwordx4 {vq(XR + (q*2+hh)*4)}, v{6+hh}, {srd(sX)}, s{88+q} offen{cfg.xfl}")
    if cfg.r0bar: P("s_barrier")
    for l in xl[:cfg.nx1]: P(l, "x")
    mksrd(sWS, 24, WS_BYTES)
    if cfg.isl: P("s_branch L_aligned\nL_aligned:")
    P(f"""s_lshl_b32 s85, s{sW}, 2
v_add_u32 v10, s85, v{vG}
v_and_b32 v11, 7, v10
v_lshrrev_b32 v12, 3, v10
v_lshl_add_u32 v11, v11, 1, v12
v_add_u32 v11, s84, v11
v_subrev_u32 v11, 16, v11
v_mul_u32_u24 v11, 1152, v11
s_cmp_eq_u32 s{sG1}, 0
s_cselect_b32 s85, {OOB}, 0
s_cselect_b32 s86, 0, -1
v_and_b32 v11, s86, v11
v_or_b32 v11, s85, v11
v_mov_b32 v13, {OOB}
s_lshl_b32 s85, s{sRP}, 3
v_add_u32 v12, s85, v{vI}""")
    for q in range(5):
        P(f"""v_add_u32 v{84+q}, {16*q}, v12
v_subrev_u32 v89, 72, v{84+q}
v_min_u32 v{84+q}, v{84+q}, v89
v_lshl_add_u32 v{84+q}, v{84+q}, 4, v11""")
    P(f"v_cmp_gt_u32 vcc, 8, v{vI}\nv_cndmask_b32 v88, v13, v88, vcc")
    hl = [f"buffer_load_dwordx4 {vq(XH + 4*q)}, v{84+q}, {srd(sX)}, 0 offen{cfg.xfl}" for q in range(5)]
    P(f"""v_bfe_u32 v14, v{vL}, 2, 2
v_and_b32 v15, 3, v{vL}
s_lshl_b32 s84, s{sW}, 12
s_add_u32 s84, s84, {R0SCR}
s_cmp_lt_u32 s77, 72
s_cbranch_scc0 L_r1_wo
v_lshrrev_b32 v16, 1, v14
v_lshlrev_b32 v16, 10, v16
v_and_b32 v17, 1, v14
v_mul_u32_u24 v17, 432, v17
v_add3_u32 v16, v16, v17, s84
v_mul_u32_u24 v17, 36, v{vG}
v_and_b32 v18, 1, v{vG}
v_lshl_add_u32 v17, v18, 2, v17
v_lshl_add_u32 v17, v15, 3, v17
v_add_u32 v32, v16, v17
v_add_u32 v34, 144, v32
v_add_u32 v36, 288, v32
v_min_u32 v17, 2, v15
v_mul_u32_u24 v17, 144, v17
v_mul_u32_u24 v18, 72, v18
v_add3_u32 v38, v16, v17, v18
v_add_u32 v38, 32, v38
s_mov_b32 s85, 2048
s_lshr_b32 s86, s77, 2
s_mul_i32 s87, s{sJ1}, 72
s_add_u32 s86, s86, s87
s_mul_i32 s86, s86, 3584
s_add_u32 s86, s86, {WQP}
s_and_b32 s87, s77, 3
v_mul_u32_u24 v16, {18*3584}, v{vG}
v_lshl_add_u32 v16, v{vI}, 4, v16
s_lshl_b32 s79, s87, 8
s_add_u32 s79, s79, s86
v_add_u32 v40, s79, v16
v_add_u32 v41, 1024, v40
v_add_u32 v42, 2048, v40
v_lshrrev_b32 v16, 1, v15
v_lshl_add_u32 v16, v{vG}, 1, v16
v_mul_u32_u24 v16, {18*3584}, v16
v_and_b32 v17, 1, v15
v_lshl_add_u32 v17, v14, 1, v17
v_lshl_add_u32 v16, v17, 4, v16
s_lshl_b32 s79, s87, 7
s_add_u32 s79, s79, s86
s_add_u32 s79, s79, 3072
v_add_u32 v16, s79, v16
v_cmp_gt_u32 vcc, 32, v{vL}
v_cndmask_b32 v43, v13, v16, vcc
s_branch L_r1_join
L_r1_wo:
v_mul_u32_u24 v16, 144, v14
v_add_u32 v16, s84, v16
v_lshrrev_b32 v17, 1, v{vG}
v_lshlrev_b32 v17, 6, v17
v_and_b32 v18, 1, v{vG}
v_lshl_add_u32 v17, v18, 3, v17
v_lshl_add_u32 v17, v15, 4, v17
v_add_u32 v32, v16, v17
v_and_b32 v17, 1, v15
v_lshl_add_u32 v34, v17, 3, v16
v_add_u32 v34, 128, v34
v_add_u32 v36, 2048, v32
v_add_u32 v38, 2048, v34
s_mov_b32 s85, 1024
v_lshlrev_b32 v16, 10, v{vG}
v_lshl_add_u32 v16, v{vI}, 4, v16
v_cmp_gt_u32 vcc, 8, v{vL}
v_cndmask_b32 v17, v13, v{vL16}, vcc
s_sub_u32 s79, s77, 72""")
    for G in range(2):
        if G: P("s_add_u32 s79, s79, 36")
        P(f"""s_lshr_b32 s86, s79, 2
s_mul_i32 s87, s{sJ1}, 18
s_add_u32 s86, s86, s87
s_mul_i32 s86, s86, 4608
s_add_u32 s86, s86, {WOP}
s_cmp_lt_u32 s77, 108
s_cselect_b32 s86, s86, {OOB}
s_and_b32 s87, s79, 3
s_lshl_b32 s76, s87, 8
s_add_u32 s76, s76, s86
v_add_u32 v{40+2*G}, s76, v16
s_lshl_b32 s76, s87, 7
s_add_u32 s76, s76, s86
s_add_u32 s76, s76, 4096
v_add_u32 v{41+2*G}, s76, v17""")
    P("L_r1_join:\ns_nop 1")
    for t in range(4): P(f"v_add_u32 v{33+2*t}, s85, v{32+2*t}")
    mksrd(sW1, 12, 576*9216); mksrd(sW2, 16, 4608*1152); mksrd(sB1, 14, 9216); mksrd(sB2, 18, 1152); mksrd(sOUT, 20, 2048*1152)
    if cfg.dbg: mksrd(sR, 22, 256)
    if cfg.stamps: P("@waitlg_all\ns_mov_b32 s4, s26"); P("s_mov_b32 s5, s38"); nstamp[0] = 2; names.append("start"); names.append("r0 issue")
    P("s_mov_b32 s99, 0x3f803f80\ns_mov_b32 s98, 0xffff0000")
    if cfg.touch:
        P(f"v_lshlrev_b32 v90, 21, v{vL}\nv_min_u32 v90, {0x2800000}, v90")
        P(f"buffer_load_dword v60, v90, {srd(sWS)}, 0 offen", "tch")
        if cfg.touch > 1:
            P(f"buffer_load_dword v61, v90, {srd(sW1)}, 0 offen", "tch")
            P(f"buffer_load_dword v62, v90, {srd(sW2)}, 0 offen", "tch")
            P(f"buffer_load_dword v63, v90, {srd(sOUT)}, 0 offen", "tch")
    UP = {(1, 0): (32, 33, 34), (1, 1): (35, 36, 37), (2, 0): (24, 25, 34), (2, 1): (26, 27, 37)}
    for z in range(2):
        a1, d1, st = UP[(1, z)]; a2, d2, _ = UP[(2, z)]
        P(f"""s_add_u32 s84, s77, {128*z}
s_mul_i32 s85, s84, 7282
s_lshr_b32 s85, s85, 16
s_mul_i32 s86, s85, 9
s_sub_u32 s86, s84, s86
s_lshl_b32 s76, s86, 7
s_mul_i32 s87, s85, {32*9216}
s_add_u32 s87, s87, s76
s_mul_i32 s75, s{sJ1}, 1152
s_add_u32 s{a1}, s87, s75
s_mul_i32 s87, s85, {32*1152}
s_add_u32 s87, s87, s76
s_mul_i32 s75, s{sJ1}, {576*1152}
s_add_u32 s{a2}, s87, s75
s_lshr_b32 s79, s85, 2
s_lshl_b32 s79, s79, 1
s_and_b32 s75, s85, 1
s_add_u32 s79, s79, s75
s_add_u32 s75, s79, 10
s_bitcmp1_b32 s85, 1
s_cselect_b32 s79, s75, s79
s_lshr_b32 s87, s86, 1
s_mul_i32 s87, s87, 162
s_and_b32 s76, s86, 1
s_lshl_b32 s76, s76, 2
s_add_u32 s87, s87, s76
s_cmp_eq_u32 s86, 8
s_cselect_b32 s87, 8, s87
s_cselect_b32 s{st}, 162, 1
s_lshl_b32 s{st}, s{st}, 10
s_mul_i32 s76, s{sJ1}, 648
s_add_u32 s87, s87, s76
s_mul_i32 s75, s85, 9
s_add_u32 s75, s75, s87
s_lshl_b32 s75, s75, 10
s_add_u32 s{d1}, s75, {W1R}
s_mul_i32 s75, s79, 9
s_add_u32 s75, s75, s87
s_lshl_b32 s75, s75, 10
s_add_u32 s{d2}, s75, {W2R}""")
        if z:
            P("s_cmp_lt_u32 s84, 162")
            for r in (a1, d1, a2, d2): P(f"s_cselect_b32 s{r}, s{r}, {OOB}")
    P(f"""v_mul_u32_u24 v92, 9216, v8
v_lshl_add_u32 v92, v9, 4, v92
v_mul_u32_u24 v93, 1152, v8
v_lshl_add_u32 v93, v9, 4, v93
v_lshl_add_u32 v94, v{vG}, 3, v14
v_lshlrev_b32 v94, 7, v94
v_lshl_add_u32 v94, v15, 4, v94
s_lshl_b32 s84, s{sW}, 13
v_add_u32 v94, s84, v94""")
    nopt = [0]
    def optional(L, sreg, tag):
        k = nopt[0]; nopt[0] += 1
        body = "\n".join(x[0] if isinstance(x, tuple) else x for x in L)
        return [(f"s_cmp_ge_u32 s{sreg}, {OOB}\ns_cbranch_scc1 L_opt{k}\n@opt_begin\n{body}\n@opt_end\nL_opt{k}:", tag)]
    def unit_dma(mat, z, scr, vs=None):
        L = unit_dma_(mat, z, scr, vs)
        return optional(L, UP[(mat, z)][0], "wr") if (z and cfg.optz and L) else L
    def unit_tr(z, scr, vt, mat=None):
        L = unit_tr_(z, scr, vt)
        return optional(L, UP[(mat, z)][1], None) if (z and cfg.optz and mat) else L
    def unit_st(mat, z, vt):
        L = unit_st_(mat, z, vt)
        return optional(L, UP[(mat, z)][1], "wrs") if (z and cfg.optz and L) else L
    def unit_dma_(mat, z, scr, vs=None):
        if mat in cfg.norp: return []
        a = UP[(mat, z)][0]; st = 9216 if mat == 1 else 1152
        L = [f"s_lshl_b32 s84, s{sW}, 13\ns_add_u32 s84, s84, {scr + 4096*z}\ns_mov_b32 m0, s84"]
        for q in range(4):
            if q: L.append(f"s_add_u32 s{a}, s{a}, {8*st - 1024}")
            L.append((f"buffer_load_dwordx4 v{vs or 91+mat}, {srd(sW1 if mat == 1 else sW2)}, s{a} offen offset:{1024*q}{cfg.rawfl} lds", "wr"))
        return L
    def unit_tr_(z, scr, vt):
        return [f"ds_read_b64_tr_b16 {vq(vt+4*t+2*hi,2)}, v94 offset:{scr + 4096*z + 64*(t>>1) + 8*(t&1) + 512*hi}" for t in range(4) for hi in range(2)]
    def unit_st_(mat, z, vt):
        if mat in cfg.norp: return []
        _, d, st = UP[(mat, z)]; L = []
        for t in range(4):
            if t: L.append(f"s_add_u32 s{d}, s{d}, s{st}")
            L.append((f"buffer_store_dwordx4 {vq(vt+4*t)}, v{vL16}, {srd(sWS)}, s{d} offen{cfg.wrsfl}", "wrs"))
        return L
    MS, MP, ME, MO = 96, 100, 104, 108
    def emit_masks():
        P(f"""v_mov_b32 v66, {hexf(-1e30)}
v_lshlrev_b32 v64, 2, v{vG}
v_sub_u32 v64, v64, v{vI}
s_cmp_eq_u32 s{sG1}, 0
s_cselect_b32 s84, 100, 0
v_cmp_gt_u32 s[80:81], 2, v{vG}""")
        for r in range(4):
            P(f"""v_add_u32 v65, {r+7}, v64
v_cmp_gt_u32 vcc, 8, v65
v_add_u32 v65, {r}, v64
v_subrev_u32 v67, s84, v65
v_cndmask_b32 v{MS+r}, v66, 0, vcc
v_cmp_lt_i32 vcc, 8, v65
v_cmp_lt_i32 s[82:83], 8, v67
v_cmp_lt_i32 s[86:87], 0, v67
v_cndmask_b32 v{MP+r}, v66, 0, vcc
s_and_b64 s[86:87], s[86:87], s[80:81]
v_cndmask_b32 v{MO+r}, v66, 0, s[82:83]
v_cndmask_b32 v{ME+r}, v66, 0, s[86:87]""")
    if not cfg.latemask: emit_masks()
    P("@waitvm r0")
    stamp("r0 landed")
    for t in range(4):
        P(f"ds_read_b64_tr_b16 {vq(16+4*t,2)}, v{32+2*t}")
        P(f"ds_read_b64_tr_b16 {vq(18+4*t,2)}, v{33+2*t}")
    for t in range(4):
        P(f"buffer_store_dwordx4 {vq(16+4*t)}, v{40+t}, {srd(sWS)}, 0 offen sc1", "r0s")
    stamp("@r0 st")
    xrest = xl[cfg.nx1:] + hl
    P(f"@waitlg_all\ns_add_u32 s{sTAG}, s{sTAG}, 0x9E3779B9")
    P(f"""s_lshl_b32 s84, s{sJ1}, 12
s_add_u32 s84, s84, {F0S}
s_lshl_b32 s85, s{sG1}, {cfg.fsh}
s_add_u32 s85, s85, s84
{f"v_lshl_add_u32 v44, v0, 2, s85" if (cfg.fullsec and cfg.fsh >= 5) else "v_mov_b32 v44, s85"}
v_cmp_gt_u32 vcc, {min(16, 1 << (cfg.fsh - 2)) if (cfg.fullsec and cfg.fsh >= 5) else 1}, v0
v_cndmask_b32 v44, v13, v44, vcc
v_and_b32 v45, 31, v{vL}
v_lshl_add_u32 v45, v45, {cfg.fsh}, s84
s_lshl_b32 s84, s{sJ2 if cfg.f0both else sJ1}, 12
s_add_u32 s84, s84, {F0S - (32 << cfg.fsh)}
v_lshl_add_u32 v5, v{vL}, {cfg.fsh}, s84
v_cmp_gt_u32 vcc, 32, v{vL}
v_cndmask_b32 v45, v5, v45, vcc""")
    def stats(groups, acc):
        order = sorted((r, gi, k) for gi, regs in enumerate(groups) for k, r in enumerate(regs))
        L = []
        for r, gi, k in order:
            a = acc + 4*gi + 2*(k & 1)
            c0 = "0" if k < 2 else f"v{a}"; c1 = "0" if k < 2 else f"v{a+1}"
            L.append(f"v_dot2_f32_bf16 v{a}, v{r}, s99, {c0}\nv_dot2_f32_bf16 v{a+1}, v{r}, v{r}, {c1}")
        for gi in range(len(groups)):
            a = acc + 4*gi
            L.append(f"v_add_f32 v{a}, v{a}, v{a+2}\nv_add_f32 v{a+1}, v{a+1}, v{a+3}")
        return L
    def finish_stats(A):
        for t in [f"v_mul_f32 v@0, {hexf(1/576)}, v@0", f"v_mul_f32 v@2, v@0, v@0", f"v_mul_f32 v@1, {hexf(1/576)}, v@1", "v_sub_f32 v@1, v@1, v@2",
                  "v_max_f32 v@1, 0, v@1", f"v_add_f32 v@1, {hexf(1e-5)}, v@1", "v_rsq_f32 v@1, v@1", "v_mul_f32 v@2, v@0, -v@1",
                  "v_mov_b32 v@0, v@1", "v_mov_b32 v@3, v@2"]:
            for a in A: P(t.replace("@0", str(a)).replace("@1", str(a+1)).replace("@2", str(a+2)).replace("@3", str(a+3)))
    def normalize(q, a, t, pk=True):
        L = []
        for d in range(4):
            L.append(f"v_lshlrev_b32 v{t+2*d}, 16, v{q+d}")
            L.append(f"v_and_b32 v{t+2*d+1}, s98, v{q+d}")
        if pk:
            for d in range(4): L.append(f"v_pk_fma_f32 {vq(t+2*d,2)}, {vq(t+2*d,2)}, {vq(a,2)}, {vq(a+2,2)}")
        else:
            for d in range(8): L.append(f"v_fma_f32 v{t+d}, v{t+d}, v{a}, v{a+2}")
        for d in range(4): L.append(f"v_cvt_pk_bf16_f32 v{q+d}, v{t+2*d}, v{t+2*d+1}")
        return L
    ST = 144; NT = 112
    st = stats([[XR + (q*2+hh)*4 + d for q in range(9) for d in range(4)] for hh in range(2)] + [[XH + k for k in range(20)]], ST)
    raw = {1: [], 2: []}
    for z in range(2):
        raw[1] += unit_dma(1, z, W1SCR); raw[2] += unit_dma(2, z, W2SCR0)
    raw[1].append(f"s_mul_i32 s84, s{sJF}, 1152\nv_lshlrev_b32 v5, 7, v{vI}")
    raw[1].append((f"buffer_load_dword v252, v5, {srd(sB1)}, s84 offen", "wr"))
    raw[1].append((f"buffer_load_dword v253, v5, {srd(sB2)}, 0 offen", "wr"))
    k = 0
    for n, l in enumerate(xrest + [None]):
        if n == cfg.nx2:
            if cfg.latemask == 1: emit_masks()
            if cfg.stfill and k < 4*cfg.nx1: P.extend(st[k:4*cfg.nx1]); k = 4*cfg.nx1
            stamp("@pre-ack")
            P("@waitvm r0s")
            stamp("@acked")
            P("s_barrier")
            set_flag(44)
            stamp("F0 set")
        if cfg.rawat == 5 and n == cfg.rawn: P.extend(raw[1])
        if l is None: break
        P(l, "x")
        if cfg.nx1 + n + 1 - k//4 > cfg.lag: P.extend(st[k:k+4]); k += 4
    if cfg.rawat == 0: P.extend(raw[1])
    if cfg.w2at == -1: P.extend(raw[2])
    P.extend(st[k:])
    if cfg.rawat == 1: P.extend(raw[1])
    if cfg.w2at in (4, -2): P.extend(raw[2])
    for mod in ["quad_perm:[1,0,3,2]", "quad_perm:[2,3,0,1]", "row_half_mirror"]:
        for gi in range(3):
            for k in range(2):
                a = ST + 4*gi + k
                P(f"v_add_f32_dpp v{a}, v{a}, v{a} {mod} row_mask:0xf bank_mask:0xf")
    for k in range(2): P(f"v_add_f32_dpp v{ST+8+k}, v{ST+8+k}, v{ST+8+k} row_mirror row_mask:0xf bank_mask:0xf")
    finish_stats([ST, ST+4, ST+8])
    stamp("LN1 stats")
    P(f"""v_lshrrev_b32 v156, 2, v9
v_mul_u32_u24 v156, 5120, v156
v_and_b32 v157, 3, v9
v_lshl_add_u32 v156, v157, 8, v156
v_xor_b32 v157, v8, v9
v_lshl_add_u32 v156, v157, 4, v156
s_lshl_b32 s84, s{sW}, 10
s_add_u32 s84, s84, {XB}
v_add_u32 v156, s84, v156
v_add_u32 v157, {10240*5}, v156
v_lshrrev_b32 v158, 2, v{vI}
v_mul_u32_u24 v158, 5120, v158
v_lshl_add_u32 v158, v15, 8, v158
v_xor_b32 v159, v10, v9
v_lshl_add_u32 v158, v159, 4, v158
v_add_u32 v158, {XB + 4096}, v158
v_add_u32 v159, {20480*3}, v158""")
    ntc = [0]; NB = cfg.nb[0] + cfg.nb[1]
    def ln1_batch(b):
        L = []
        for q in range(2*b, min(2*b+2, 9)):
            for hh in range(2):
                r = XR + (q*2+hh)*4
                if not cfg.dtest: L += normalize(r, ST + 4*hh, NT + 8*(ntc[0] & 1), b < NB); ntc[0] += 1
                L.append(f"ds_write_b128 v{156 if q < 5 else 157}, {vq(r)} offset:{10240*(q % 5) + 128*hh}")
        if not cfg.dtest: L += normalize(XH + 4*b, ST + 8, NT + 8*(ntc[0] & 1), b < NB); ntc[0] += 1
        wr = f"ds_write_b128 v{158 if b < 3 else 159}, {vq(XH+4*b)} offset:{20480*(b % 3)}"
        if b == 4: wr = "s_mov_b32 exec_lo, 0x00ff00ff\ns_mov_b32 exec_hi, 0x00ff00ff\n" + wr + "\ns_mov_b64 exec, -1"
        L.append(wr)
        return L
    if cfg.rawat != 4:
        for b_ in range(cfg.nb[0]): P.extend(ln1_batch(b_))
    P(f"""s_lshl_b32 s74, s{sJ1}, 2
s_add_u32 s74, s74, s{sW}
s_mul_i32 s74, s74, {18*3584}
s_add_u32 s74, s74, {WQP}
s_add_u32 s75, s74, {18*3584}
s_mul_i32 s78, s{sRP}, {2*3584}
s_add_u32 s78, s78, s74
v_lshlrev_b32 v7, 7, v{vG}
v_lshl_add_u32 v7, v{vI}, 4, v7
v_cmp_gt_u32 vcc, 6, v{vI}
v_cndmask_b32 v7, v13, v7, vcc
v_xor_b32 v8, v{vI}, v{vG}
v_lshlrev_b32 v8, 4, v8
v_lshl_add_u32 v8, v{vG}, 8, v8
v_add_u32 v8, {XB}, v8
v_xor_b32 v9, 64, v8
v_add_u32 v10, 46080, v8
v_add_u32 v11, 46080, v9""")
    def warm(k):
        if cfg.isl: P(f"s_mov_b64 exec, 0\ns_branch L_chain{k}\nL_chainend{k}:\ns_mov_b64 exec, -1")
    warm(0)
    if cfg.latemask == 2: emit_masks()
    stamp("@LN1 b0")
    if cfg.poll1: P(f"s_waitcnt vmcnt(0)\ns_cmp_lg_u32 s{sW}, 0\ns_cbranch_scc1 L_pdone{npoll[0]}")
    poll(45, 5)
    if cfg.poll1: P("s_barrier")
    stamp("F0 seen")
    QA, KA, EA, VA = 16, 32, 52, 72
    WR = 64
    D = cfg.p1depth
    def wq_loads(s):
        b = WR + (s % D)*16
        L = [(f"buffer_load_dwordx4 {aq(b+4*t)}, v{vL16}, {srd(sWS)}, s78 offen offset:{1024*t}{cfg.wsc}", "wq") for t in range(3)]
        L.append((f"buffer_load_dwordx4 {aq(b+12)}, v7, {srd(sWS)}, s78 offen offset:3072{cfg.wsc}", "wq"))
        if s < 17: L.append(wrap(78, 3584, 75, 74))
        return L
    def x_reads(s):
        b = (s % 2)*20
        reg = (8 if s % 2 == 0 else 9) + (2 if s >= 9 else 0)
        return [f"ds_read_b128 {aq(b+4*m)}, v{reg} offset:{((s % 9)*5 + m)*1024}" for m in range(5)]
    def join(L):
        out = []; pend = ""
        for x in L:
            if isinstance(x, tuple): out.append((pend + x[0], x[1])); pend = ""
            else: pend += x + "\n"
        if pend: out.append(pend.strip())
        return out
    if cfg.rawat == 4:
        mem = join(sum([wq_loads(s) for s in range(D-1)], []))
        tail_ = [mem.pop()] if not isinstance(mem[-1], tuple) else []
        mem += tail_ + join(raw[1]) + (join(raw[2]) if cfg.w2at == 6 else [])
        work = ln1_batch(0) + ln1_batch(1)
        for l in mem[:cfg.nq1]: P.add(l)
        mem = mem[cfg.nq1:]
        for n, l in enumerate(work):
            P.add(l)
            if n % cfg.qgap == cfg.qgap - 1 and mem: P.add(mem.pop(0))
        for l in mem: P.add(l)
    else:
        for s in range(D-1): P.extend(wq_loads(s))
        if cfg.rawat == 2: P.extend(raw[1])
        if cfg.w2at == -3: P.extend(raw[2])
        for b_ in range(cfg.nb[0], NB): P.extend(ln1_batch(b_))
    P("@waitlg_all\ns_barrier")
    P.extend(x_reads(0))
    stamp("GEMM1 start")
    P("L_markA:")
    def lines(t): return t.split("\n")
    def own_flag(vd, base, sa, sha, sb, shb):
        return [f"s_lshl_b32 s86, s{sa}, {sha}", f"s_lshl_b32 s87, s{sb}, {shb}", "s_add_u32 s86, s86, s87", f"s_add_u32 s86, s86, {base}",
                (f"v_lshl_add_u32 v{vd}, v0, 2, s86" if (cfg.fullsec and shb >= 5) else f"v_mov_b32 v{vd}, s86"),
                f"v_cmp_gt_u32 vcc, {min(16, 1 << (shb - 2)) if (cfg.fullsec and shb >= 5) else 1}, v0\nv_cndmask_b32 v{vd}, v13, v{vd}, vcc"]
    def grp_poll_addr(vd, sg, base):
        return lines(f"""s_lshl_b32 s86, s{sg}, 12
s_add_u32 s86, s86, {base}
v_and_b32 v{vd}, 7, v{vL}
v_lshl_add_u32 v{vd}, v{vd}, {cfg.gsh}, s86""")
    def set_poll_addr(vd, sj, base):
        return lines(f"""s_lshl_b32 s86, s{sj}, 12
s_add_u32 s86, s86, {base}
v_and_b32 v{vd}, 31, v{vL}
v_lshl_add_u32 v{vd}, v{vd}, {cfg.fsh}, s86""")
    def flag_items(vaddr):
        return [f"v_mov_b32 v5, s{sTAG}", (f"buffer_store_dword v5, v{vaddr}, {srd(sWS)}, 0 offen sc1", "flag")]
    def unpack(dst, src, n):
        return sum([[f"v_lshlrev_b32 v{dst+2*k}, 16, v{src+k}", f"v_and_b32 v{dst+2*k+1}, s98, v{src+k}"] for k in range(n)], [])
    QO, KO, VO, XO = 112, 128, 148, 160
    flex = []
    T0 = 128
    if NB <= 2:
        for l in ln1_batch(2): flex.append((0, l))
    flex.append((0, "@mark0"))
    flex2 = []
    q1, q2, q3, q4 = cfg.gq
    if cfg.rawat == 3:
        for k, l in enumerate(join(raw[1])): flex2.append((int(19*q1) + 2*k, l))
    def repack(mat, scr, g0):
        flex2.append((g0, "@waitvm wr"))
        for z in range(2):
            for l in unit_tr(z, scr, T0, mat): flex2.append((g0 + 24*z, l))
            for k, l in enumerate(join(unit_st(mat, z, T0))): flex2.append((g0 + 24*z + 8 + 4*k, l))
    if cfg.w2at == 3 and q3 < q2:
        for k, l in enumerate(join(raw[2])): flex2.append((int(19*q3) + 2*k, l))
    repack(1, W1SCR, int(19*q2))
    if cfg.w2at >= 3:
        if q3 >= q2 and cfg.w2at == 3:
            for k, l in enumerate(join(raw[2])): flex2.append((int(19*q3) + 2*k, l))
        repack(2, W2SCR0, int(19*q4))
    if cfg.w2at < 0:
        flex2.append((19*cfg.w2tr, "@waitvm wr"))
        for z in range(2):
            for l in unit_tr(z, W2SCR0, 224 + 16*z): flex2.append((19*cfg.w2tr, l.replace("b16 v[", "b16 a[")))
    flex2.append((0, "@markb"))
    for l in (ln1_batch(3) if NB <= 3 else []) + own_flag(95, F1S, sJ1, 12, sG1, cfg.fsh): flex.append((0, l))
    flex.append((0, "@mark1"))
    if NB <= 4:
        for l in ln1_batch(4): flex.append((0, l))
    flex.append((0, "@mark2"))
    pre = lines(f"""s_lshl_b32 s84, s{sW}, 10
s_add_u32 s84, s84, {VXS}
v_lshl_add_u32 v234, v{vI}, 1, s84
v_add_u32 v235, 512, v234
v_cmp_eq_u32 vcc, 1, v{vG}@@v_cndmask_b32 v234, v235, v234, vcc
v_lshl_add_u32 v235, v{vL}, 2, s84
v_min_u32 v236, 2, v{vI}
v_mul_u32_u24 v236, 160, v236
v_lshl_add_u32 v236, v{vG}, 3, v236
v_add_u32 v236, s84, v236
v_mov_b32 v237, s99
s_mul_i32 s84, s{sG1}, 73728
s_add_u32 s84, s84, {OP}
s_lshl_b32 s85, s{sJ1}, 1
s_lshr_b32 s86, s{sW}, 1
s_add_u32 s85, s85, s86
s_lshl_b32 s85, s85, 12
s_and_b32 s86, s{sW}, 1
s_lshl_b32 s86, s86, 9
s_add_u32 s85, s85, s86
s_add_u32 s95, s85, s84
s_lshl_b32 s87, s{sJ1}, 2
s_add_u32 s87, s87, s{sW}
s_lshl_b32 s87, s87, 8
s_add_u32 s87, s87, 65536
s_add_u32 s96, s87, s84
v_and_b32 v232, 1, v{vG}
v_lshlrev_b32 v232, 10, v232
v_lshrrev_b32 v233, 1, v{vG}
v_lshl_add_u32 v232, v233, 8, v232
v_lshl_add_u32 v232, v{vI}, 4, v232
v_lshlrev_b32 v233, 2, v{vL}
s_mul_i32 s79, s{sJ2}, 82944
s_add_u32 s79, s79, {WOP}
s_lshl_b32 s84, s{sW}, 1
s_add_u32 s85, s84, s{sR2}
s_and_b32 s86, s85, 7
s_mul_i32 s86, s86, 9216
s_add_u32 s80, s86, s79
s_add_u32 s85, s85, 1
s_and_b32 s86, s85, 7
s_mul_i32 s86, s86, 9216
s_add_u32 s81, s86, s79
s_lshl_b32 s84, s84, 10
s_add_u32 s84, s84, 73728
s_add_u32 s82, s84, s79
s_mov_b32 s83, s84
s_mul_i32 s76, s{sW}, 18432
s_lshl_b32 s84, s{sG2}, 6
s_and_b32 s85, s{sW}, 1
s_lshl_b32 s85, s85, 5
s_add_u32 s85, s85, s84
s_lshr_b32 s86, s{sW}, 1
s_add_u32 s85, s85, s86
s_mul_i32 s85, s85, 1152
s_mul_i32 s86, s{sJ2}, 144
s_add_u32 s79, s85, s86
v_mul_u32_u24 v238, 7282, v{vL}
v_lshrrev_b32 v238, 16, v238
v_mul_u32_u24 v239, 9, v238
v_sub_u32 v239, v{vL}, v239
v_mul_u32_u24 v238, 2304, v238
v_lshl_add_u32 v238, v239, 4, v238
v_cmp_gt_u32 vcc, 54, v{vL}@@v_cndmask_b32 v238, v13, v238, vcc
s_mul_i32 s77, s{sW}, 3072
s_add_u32 s77, s77, {XRS}
s_mov_b32 s94, {hexf((18 ** -0.5) * 1.4426950408889634)}""") + set_poll_addr(15, sJF, F1S)
    pre += [f"v_mov_b32 v{KO+4*m+3}, 0" for m in range(5)] + [f"v_mov_b32 v{QO+4*m+3}, 0" for m in range(4)]
    for l in pre: flex.append((19*cfg.f1s + 1, l.replace("@@", "\n")))
    mains = []; fixed = {}
    for s in range(18):
        wb = WR + (s % D)*16; xb = (s % 2)*20
        base = len(mains)
        for m in range(5):
            x = aq(xb + 4*m)
            def acc(a): return (vq(a), "0" if s == 0 else vq(a))
            if cfg.g1ord == 0:
                d, c = acc(KA + 4*m); mains.append(f"{MF} {d}, {aq(wb+4)}, {x}, {c}")
                d, c = acc(VA + 4*m); mains.append(f"{MF} {d}, {x}, {aq(wb+8)}, {c}")
                d, c = acc(EA + 4*m); mains.append(f"{MF} {d}, {aq(wb+12)}, {x}, {c}" if not (cfg.etest and m in (1, 3) and s) else "s_nop 0")
                if m < 4:
                    d, c = acc(QA + 4*m); mains.append(f"{MF} {d}, {aq(wb)}, {x}, {c}")
                elif cfg.dtest == 2: fixed.setdefault(len(mains) - 1, []).append(f"{MF} v[244:247], {aq(wb)}, {x}, 0")
        if cfg.g1ord == 1:
            def acc(a): return (vq(a), "0" if s == 0 else vq(a))
            for m in range(5):
                d, c = acc(KA + 4*m); mains.append(f"{MF} {d}, {aq(wb+4)}, {aq(xb+4*m)}, {c}")
            for m in range(4, -1, -1):
                d, c = acc(EA + 4*m); mains.append(f"{MF} {d}, {aq(wb+12)}, {aq(xb+4*m)}, {c}")
            for m in range(4):
                d, c = acc(QA + 4*m); mains.append(f"{MF} {d}, {aq(wb)}, {aq(xb+4*m)}, {c}")
            for m in range(5):
                d, c = acc(VA + 4*m); mains.append(f"{MF} {d}, {aq(xb+4*m)}, {aq(wb+8)}, {c}")
        t_ = stamp_txt(f"@q{s}") if s else None
        if t_: fixed.setdefault(base - 1, []).append(t_)
        if s == 7 and NB <= 2: fixed.setdefault(base, []).extend(["@flexdone0", "@waitlg_all", "s_barrier"])
        fb_ = ["@flexdoneb", "@waitvm wrs"]
        if s == 11: fixed.setdefault(base, []).extend(["@flexdone1"] + (fb_ if cfg.f1s == 11 else []) + ["@waitlg_all", "s_barrier"] + (flag_items(95) if cfg.f1s == 11 else []))
        if s == 15: fixed.setdefault(base, []).extend(["@flexdone2"] + (fb_ if cfg.f1s == 15 else []) + ["@waitlg_all", "s_barrier"] + (flag_items(95) if cfg.f1s == 15 else []))
        if s + 1 < 18:
            for k, l in enumerate(x_reads(s+1)): fixed.setdefault(base + 1 + 2*k, []).append(l)
            fixed.setdefault(base + 18, []).append(f"@need {aq(WR + ((s+1) % D)*16, 16)} {aq(((s+1) % 2)*20, 20)}")
        if s + D - 1 < 18:
            for k, l in enumerate(wq_loads(s + D - 1)): fixed.setdefault(base + [2, 6, 10, 12, 14][k], []).append(l)
    dma = []
    for seg in range(2):
        for k in range(9):
            it = ""
            if k % 4 == 0:
                it = f"s_add_u32 s84, s76, {seg*9216 + 1024*k}\ns_mov_b32 m0, s84\n"
                if k: it += f"s_add_u32 s{80+seg}, s{80+seg}, 4096\n"
            dma.append((it + f"buffer_load_dwordx4 v{vL16}, {srd(sWS)}, s{80+seg} offen offset:{1024*(k % 4)} sc1 lds", "wo"))
    tail3 = [(("s_mov_b32 m0, s83\n" if k == 0 else "") + f"buffer_load_dwordx4 v{vL16}, {srd(sWS)}, s82 offen offset:{1024*k} sc1 lds", "wo") for k in range(3)]
    xres3 = [(("s_mov_b32 m0, s77\n" if k == 0 else f"s_add_u32 s79, s79, {13824 - 1024}\n") + f"buffer_load_dwordx4 v238, {srd(sX)}, s79 offen offset:{1024*k}{cfg.xrfl} lds", "wo") for k in range(3)]
    ne = cfg.wo_early
    if not cfg.f0both:
        for l in set_poll_addr(240, sJ2, F0S): flex.append((0, l))
        flex.append((0, poll_pre(240, 241)))
        flex.append((19*15, poll_check(240, 241)))
    for k in range(ne): flex.append((max(19*(18 - (ne*5 + 18)//19) + 5*k, 19*cfg.f1s + 1), dma[k]))
    sched(P, mains, fixed, flex, flex2=flex2, cap=cfg.g1cap)
    stamp("GEMM1 done")
    P("s_barrier")
    A = Prog()
    A(f"s_mov_b32 exec_hi, 0xffff\nds_write_b32 v235, v237 offset:320\ns_mov_b32 exec_hi, -1")
    if cfg.dtest == 2:
        for k in range(150): A(f"v_mul_f32 v{KA + k % 20}, 1.0, v{KA + k % 20}")
    for m in range(5):
        r = QO + 4*m + 2 if m < 4 else 172
        A(f"v_cvt_pk_bf16_f32 v{r}, v{EA+4*m}, v{EA+4*m+1}")
        A(f"ds_write_b16 v234, v{r} offset:{32*m}\nds_write_b16_d16_hi v234, v{r} offset:{160+32*m}")
    SA = 176
    prev = [4, 0, 4, 2]; pmask = [ME, MP, MO, MP]
    def kop(m): A(f"v_cvt_pk_bf16_f32 v{KO+4*m}, v{KA+4*m}, v{KA+4*m+1}\nv_cvt_pk_bf16_f32 v{KO+4*m+1}, v{KA+4*m+2}, v{KA+4*m+3}\nv_cvt_pk_bf16_f32 v{KO+4*m+2}, v{EA+4*m+2}, v{EA+4*m+3}")
    def qop(m): A(f"v_cvt_pk_bf16_f32 v{QO+4*m}, v{QA+4*m}, v{QA+4*m+1}\nv_cvt_pk_bf16_f32 v{QO+4*m+1}, v{QA+4*m+2}, v{QA+4*m+3}")
    kop(4)
    for m in range(4):
        qop(m); kop(m)
        if m: A(f"{MF} {vq(SA+8*(m-1)+4)}, {vq(KO+4*(m-1))}, {vq(QO+4*(m-1))}, {vq(MS)}")
        A(f"{MF} {vq(SA+8*m)}, {vq(KO+4*prev[m])}, {vq(QO+4*m)}, {vq(pmask[m])}")
    vorder = [4, 0, 1, 4, 2, 3]
    for k, m in enumerate(vorder):
        A(f"v_cvt_pk_bf16_f32 v{VO+2*k}, v{VA+4*m}, v{VA+4*m+1}\nv_cvt_pk_bf16_f32 v{VO+2*k+1}, v{VA+4*m+2}, v{VA+4*m+3}")
        if k == 0: A(f"{MF} {vq(SA+28)}, {vq(KO+12)}, {vq(QO+12)}, {vq(MS)}")
    A("@waitlg_all")
    for k, m in enumerate(vorder): A(f"ds_read_b64 {vq(XO+2*k,2)}, v236 offset:{32*m}")
    MX = 208
    for m in range(4):
        s = SA + 8*m
        A(f"v_max3_f32 v{MX+m}, v{s}, v{s+1}, v{s+2}\nv_max3_f32 v{MX+4+m}, v{s+3}, v{s+4}, v{s+5}")
    for m in range(4):
        s = SA + 8*m
        A(f"v_max3_f32 v{MX+m}, v{MX+m}, v{s+6}, v{s+7}")
    for m in range(4): A(f"v_max_f32 v{MX+m}, v{MX+m}, v{MX+4+m}")
    A(f"""v_permlane16_swap_b32 v{MX}, v{MX+1}
v_permlane16_swap_b32 v{MX+2}, v{MX+3}
v_max_f32 v{MX}, v{MX}, v{MX+1}
v_max_f32 v{MX+2}, v{MX+2}, v{MX+3}
v_permlane32_swap_b32 v{MX}, v{MX+2}
v_max_f32 v{MX}, v{MX}, v{MX+2}
v_mul_f32 v{MX}, s94, v{MX}
v_mov_b32 v{MX+2}, v{MX}
v_permlane32_swap_b32 v{MX}, v{MX+2}
v_mov_b32 v{MX+1}, v{MX}
v_mov_b32 v{MX+3}, v{MX+2}
v_permlane16_swap_b32 v{MX}, v{MX+1}
v_permlane16_swap_b32 v{MX+2}, v{MX+3}""")
    PO = 216; OA = 16; OX = 32
    for m in range(4):
        s = SA + 8*m
        h = m & 1
        for k in range(4): A(f"v_pk_fma_f32 {vq(s+2*k,2)}, {vq(s+2*k,2)}, s[94:95], {vq(MX+(m&2),2)} op_sel:[0,0,{h}] op_sel_hi:[1,0,{h}] neg_lo:[0,0,1] neg_hi:[0,0,1]")
        if m:
            o = [0, 2, 6, 8][m-1]
            A(f"{MF} {vq(OX+4*(m-1))}, {vq(XO+o)}, {vq(PO+4*(m-1))}, 0")
            A(f"{MF} {vq(OA+4*(m-1))}, {vq(VO+o)}, {vq(PO+4*(m-1))}, 0")
        for k in range(8): A(f"v_exp_f32 v{s+k}, v{s+k}")
        for k in range(4): A(f"v_cvt_pk_bf16_f32 v{PO+4*m+k}, v{s+2*k}, v{s+2*k+1}")
    A(f"v_rcp_f32 v{MX}, v{OX+2}\nv_rcp_f32 v{MX+1}, v{OX+6}")
    A(f"{MF} {vq(OX+12)}, {vq(XO+8)}, {vq(PO+12)}, 0\n{MF} {vq(OA+12)}, {vq(VO+8)}, {vq(PO+12)}, 0")
    OP0 = 112
    for p in range(2):
        if p: A(f"v_rcp_f32 v{MX+2}, v{OX+10}\nv_rcp_f32 v{MX+3}, v{OX+14}")
        for m in (2*p, 2*p+1):
            for r in range(2): A(f"v_pk_mul_f32 {vq(OA+4*m+2*r,2)}, {vq(OA+4*m+2*r,2)}, {vq(MX+(m&2),2)} op_sel:[0,{m&1}] op_sel_hi:[1,{m&1}]")
            A(f"v_cvt_pk_bf16_f32 v{OP0+2*m}, v{OA+4*m}, v{OA+4*m+1}\nv_cvt_pk_bf16_f32 v{OP0+2*m+1}, v{OA+4*m+2}, v{OA+4*m+3}")
        for m in (2*p, 2*p+1):
            A(f"v_pk_mul_f32 {vq(OX+4*m,2)}, {vq(OX+4*m,2)}, {vq(MX+(m&2),2)} op_sel:[0,{m&1}] op_sel_hi:[1,{m&1}]")
        b = OP0 + 4*p
        A(f"v_permlane16_swap_b32 v{b}, v{b+2}\nv_permlane16_swap_b32 v{b+1}, v{b+3}")
        A(f"buffer_store_dwordx4 {vq(OP0+4*p)}, v232, {srd(sWS)}, s95 offen offset:{2048*p} sc1", "o")
        for m in (2*p, 2*p+1): A(f"v_cvt_pk_bf16_f32 v{OP0+8+m}, v{OX+4*m}, v{OX+4*m+1}")
    A(f"v_permlane16_swap_b32 v{OP0+8}, v{OP0+9}\nv_permlane16_swap_b32 v{OP0+10}, v{OP0+11}")
    A(f"v_permlane32_swap_b32 v{OP0+8}, v{OP0+10}")
    A(f"buffer_store_dword v{OP0+8}, v233, {srd(sWS)}, s96 offen sc1", "o")
    late = dma[ne:] + tail3 + xres3 + [poll_pre(15, 14)]
    if cfg.w2at == 0:
        w2l = []
        for z in range(2):
            u = unit_dma(2, z, W2SCR)
            w2l.append((u[0] + "\n" + u[1][0], "wr"))
            for q in range(1, 4): w2l.append((u[2*q] + "\n" + u[2*q+1][0], "wr"))
        assert ne in (0, 4, 8, 9, 13)
        late = w2l + late
    k = 0
    for n, ins in enumerate(A.ins):
        P.add(ins)
        if n >= 3 and (n - 3) % cfg.dmagap == 0 and k < len(late): P.add(late[k]); k += 1
    assert k == len(late)
    stamp("attn done")
    NR = 56; AF = 224
    ACA, ACB = 16, 96
    CA, CB = 96, 160
    passes = [("A", [0, 1, 2, 3, 8], ACA, CA), ("B", [4, 5, 6, 7], ACB, CB), ("C", [4, 5, 8], 16, None), ("D", [0, 1], 96, None), ("E", [2, 3], 64, None), ("F", [6, 7], 16, None)]
    if cfg.p522: passes = passes[:2] + [("C", [0, 1, 2, 3, 8], 16, None), ("E", [4, 5], 96, None), ("F", [6, 7], 128, None)]
    steps = [(pi, p) for pi in range(len(passes)) for p in range(18)]
    cons = [(pi, p, t) for pi, p in steps for t in range(len(passes[pi][1]))]
    slot = {f: n % NR for n, f in enumerate(cons)}
    def wload(n):
        pi, p, t = cons[n]; L = []
        if t == 0 and n > 0:
            if pi == 1 and p == 0:
                L.append(f"s_mul_i32 s92, s{sRF}, 9216\ns_add_u32 s92, s92, s90")
            elif pi >= 2 and p in (0, 10):
                beg = 0 if p == 0 else 10*9216; end = (10 if p == 0 else 18)*9216
                L.append(f"s_add_u32 s90, s89, {beg}\ns_add_u32 s91, s89, {end}")
                L.append(f"s_mul_i32 s92, s{93 if p == 0 else 94}, 9216\ns_add_u32 s92, s92, s90")
            else: L.append(wrap(92, 9216, 91, 90))
        tile = passes[pi][1][t]
        L.append((f"buffer_load_dwordx4 {aq(4*(n % NR))}, v{[vL16, 12, 255][tile >> 2]}, {srd(sWS)}, s92 offen offset:{1024*(tile % 4)}{cfg.wsc}", "w"))
        return L
    npf = [0]
    def prefetch(n):
        L = []
        for k in range(n): L += wload(npf[0]); npf[0] += 1
        return L
    P(f"""s_lshl_b32 s88, s{sJF}, 2
s_add_u32 s88, s88, s{sW}
s_mul_i32 s88, s88, {162*1024}
s_add_u32 s89, s88, {W2R}
s_add_u32 s88, s88, {W1R}
s_mul_i32 s92, s{sRF}, 9216
s_add_u32 s92, s92, s88
s_mov_b32 s90, s88
s_add_u32 s91, s88, {162*1024}
v_add_u32 v12, 4096, v{vL16}
v_add_u32 v255, 8192, v{vL16}""")
    P(poll_check(15, 14))
    pa, pb, pc, pd, pe = cfg.pre
    P.extend(prefetch(pa))
    P.extend(own_flag(14, F1G, sG1, 12, sJ1, cfg.gsh)); P.extend(grp_poll_addr(15, sG2, F1G))
    HA = 16; HQ = 36; OF = 48; WB = 120; NW = 28
    P(f"""v_add_u32 v10, 41472, v{vL16}
v_and_b32 v11, 7, v{vI}
v_lshlrev_b32 v11, 4, v11
v_lshl_add_u32 v11, v{vG}, 7, v11
v_add_u32 v9, 41472, v11
v_mul_u32_u24 v7, 43, v{vI}
v_lshrrev_b32 v7, 8, v7
v_mul_u32_u24 v7, 160, v7
v_mul_u32_u24 v6, 144, v{vI}
v_add3_u32 v6, v6, v7, s77
v_and_b32 v7, 1, v{vG}
v_lshl_add_u32 v7, v7, 3, v6
v_lshl_add_u32 v6, v{vG}, 4, v6""")
    P("@waitvm o\ns_barrier")
    set_flag(14)
    stamp("F1 set")
    if cfg.p1early: P.add(poll_pre(15, 46))
    if cfg.w2at == 1:
        for z in range(2): P.extend(unit_dma(2, z, W2SCR))
    if cfg.ct2 == 2: code_touch(48, 1, 64, 49)
    P.extend(prefetch(pb - cfg.after[0]))
    if cfg.w2h1:
        P(f"v_add_u32 v47, {W2SCR}, v94\n@waitvm wr")
        for z in range(cfg.w2h1): P.extend([l.replace("v94", "v47") for l in unit_tr(z, 0, 48 + 16*z)])
        for z in range(cfg.w2h1): P.extend(unit_st(2, z, 48 + 16*z))
    if not cfg.p1early and 1 not in cfg.pfast: P.add(poll_pre(15, 46))
    P.extend(prefetch(cfg.after[0]))
    P(f"ds_read_b128 {vq(HQ)}, v6\nds_read_b128 {vq(HQ+4)}, v6 offset:64\nds_read_b64 {vq(HQ+8,2)}, v7 offset:128")
    def wo_reg(n): return vq(WB + 4*(n % NW))
    wor = []
    for s in range(18):
        for t in range(5):
            reg = (vL16 if s < 9 else 10) if t < 4 else (11 if s < 9 else 9)
            wor.append(f"ds_read_b128 {wo_reg(s*5+t)}, v{reg} offset:{WOB + (s % 9)*4608 + 1024*t}")
    P.extend(wor[:NW - 1])
    P(f"""s_mul_i32 s84, s{sG2}, 73728
s_lshl_b32 s85, s{sW}, 10
s_add_u32 s84, s84, s85
s_add_u32 s74, s84, {OP}
s_add_u32 s75, s74, 65536
s_mul_i32 s79, s{sW}, {1024 - 64}
s_sub_u32 s79, s75, s79
v_lshlrev_b32 v232, 10, v{vG}
v_lshl_add_u32 v232, v{vI}, 2, v232
s_lshl_b32 s78, s{sR2}, 13
s_add_u32 s78, s78, s74
s_add_u32 s84, s84, {HP}
s_mul_i32 s85, s{sJ2}, 9
v_add_u32 v6, s85, v{vG}
v_lshrrev_b32 v7, 2, v6
v_lshlrev_b32 v7, 12, v7
v_and_b32 v6, 3, v6
v_lshl_add_u32 v6, v6, 8, v7
v_lshl_add_u32 v6, v{vI}, 4, v6
v_add_u32 v6, s84, v6
s_add_u32 s85, s85, 8
s_lshr_b32 s86, s85, 2
s_lshl_b32 s86, s86, 12
s_and_b32 s85, s85, 3
s_lshl_b32 s85, s85, 8
s_add_u32 s85, s85, s86
s_add_u32 s85, s85, s84
v_lshlrev_b32 v7, 4, v{vI}
v_lshl_add_u32 v7, v{vG}, 3, v7
v_add_u32 v7, s85, v7
v_cmp_gt_u32 s[82:83], 2, v{vG}
v_add_u32 v8, 4096, v6
v_add_u32 v47, {W2SCR}, v94
v_mov_b32 v235, v93
v_cndmask_b32 v7, v13, v7, s[82:83]
s_lshl_b32 s84, s{sG2}, 2
s_add_u32 s84, s84, s{sW}
s_lshl_b32 s84, s84, 3
s_add_u32 s84, s84, s{sJ2}
s_lshl_b32 s84, s84, 7
s_add_u32 s84, s84, {STATS}
v_lshl_add_u32 v233, v{vI}, 3, s84
v_cmp_gt_u32 vcc, 16, v{vL}
v_cndmask_b32 v233, v13, v233, vcc""")
    P.extend(unpack(HA, HQ, 10))
    if cfg.isl == 1: warm(1)
    P(poll_fast(15, 236) if 1 in cfg.pfast else poll_check(15, 46))
    stamp("F1 seen")
    ol = []
    for s in range(16):
        ol.append([(f"buffer_load_dwordx4 {vq(OF+4*s)}, v{vL16}, {srd(sWS)}, s78 offen sc1", "of")] + ([wrap(78, 4096, 75, 74)] if s < 15 else []))
    for s in (16, 17):
        for ww in range(4): ol.append([(f"buffer_load_dword v{OF+4*s+ww}, v232, {srd(sWS)}, s79 offen offset:{256*ww} sc1", "of")] + (["s_add_u32 s79, s79, 4096"] if (s, ww) == (16, 3) else []))
    for L in ol[:cfg.no1]: P.extend(L)
    flex = []
    for l in own_flag(14, F2G, sG2, 12, sJ2, cfg.gsh) + grp_poll_addr(15, sGF, F2G): flex.append((0, l))
    for l in lines(f"""s_mul_i32 s84, s{sJF}, 1152
s_lshl_b32 s85, s{sW}, 8
s_add_u32 s80, s85, s84
s_lshr_b32 s86, s{sW}, 1
s_lshl_b32 s86, s86, 6
s_and_b32 s87, s{sW}, 1
s_lshl_b32 s87, s87, 3
s_add_u32 s86, s86, s87
s_add_u32 s81, s86, s84
v_lshlrev_b32 v234, 4, v{vG}"""): flex.append((0, l))
    for l in prefetch(pc): flex.append((64, l))
    mains = [f"{MF} {vq(HA+4*t)}, {wo_reg(s*5+t)}, {vq(OF+4*s)}, {vq(HA+4*t)}" for s in range(18) for t in range(5)]
    fixed = {n: [wor[n + NW - 1]] for n in range(90 - NW + 1)}
    for k, L in enumerate(ol[cfg.no1:]):
        g = int(k*cfg.ogap)
        fixed.setdefault(g, []).append(L[0])
        if len(L) > 1: fixed.setdefault(g + 1, []).append(L[1])
    sched(P, mains, fixed, flex)
    for k in range(4): P(f"v_cvt_pk_bf16_f32 v{HQ+k}, v{HA+2*k}, v{HA+2*k+1}")
    P(f"buffer_store_dwordx4 {vq(HQ)}, v6, {srd(sWS)}, 0 offen sc1", "h")
    for k in range(4, 8): P(f"v_cvt_pk_bf16_f32 v{HQ+k}, v{HA+2*k}, v{HA+2*k+1}")
    P(f"buffer_store_dwordx4 {vq(HQ+4)}, v8, {srd(sWS)}, 0 offen sc1", "h")
    for k in range(8, 10): P(f"v_cvt_pk_bf16_f32 v{HQ+k}, v{HA+2*k}, v{HA+2*k+1}")
    P(f"buffer_store_dwordx2 {vq(HQ+8,2)}, v7, {srd(sWS)}, 0 offen sc1", "h")
    P(f"v_cndmask_b32 v16, 0, v{HQ+8}, s[82:83]\nv_cndmask_b32 v17, 0, v{HQ+9}, s[82:83]")
    P.extend(stats([[16, 17] + [HQ + k for k in range(8)]], 20))
    def xsum(a):
        for sw in ["v_permlane16_swap_b32", "v_permlane32_swap_b32"]:
            for k in range(2): P(f"v_mov_b32 v{a+2+k}, v{a+k}")
            for k in range(2): P(f"{sw} v{a+k}, v{a+2+k}")
            for k in range(2): P(f"v_add_f32 v{a+k}, v{a+k}, v{a+2+k}")
    xsum(20)
    P(f"buffer_store_dwordx2 {vq(20,2)}, v233, {srd(sWS)}, 0 offen sc1", "h")
    stamp("proj done")
    B1P = 136; HR = 160; ST = 132; NT = 116; SR = 154
    for p in range(4): P(f"buffer_load_dwordx4 {vq(B1P+4*p)}, v234, {srd(sB1)}, s80 offen offset:{64*p}", "b1")
    P(f"buffer_load_dwordx2 {vq(B1P+16,2)}, v234, {srd(sB1)}, s81 offen offset:1024", "b1")
    P.extend(prefetch(pd))
    P("@waitvm h\n@waitlg_all\ns_barrier")
    set_flag(14)
    stamp("F2 set")
    P("L_markB:")
    if cfg.w2at == 2:
        P.add(poll_pre(15, 46))
        for z in range(2): P.extend(unit_dma(2, z, W2SCR, 235))
    if cfg.w2at < 0:
        for z in range(2): P.extend([(l[0].replace("dwordx4 v[", "dwordx4 a["), l[1]) if isinstance(l, tuple) else l for l in unit_st(2, z, 224 + 16*z)])
    elif cfg.w2st == 0 and cfg.w2at < 3:
        P("@waitvm wr")
        for z in range(cfg.w2h1, 2): P.extend([(l[0].replace("v94", "v47"), l[1]) if isinstance(l, tuple) else l.replace("v94", "v47") for l in unit_tr(z, 0, 48 + 16*z, 2)])
        for z in range(cfg.w2h1, 2): P.extend(unit_st(2, z, 48 + 16*z))
    if cfg.ct2 == 1: code_touch(16, 1, 64, 17)
    P.extend(prefetch(pe - cfg.after[1]))
    if cfg.w2at != 2 and 2 not in cfg.pfast: P.add(poll_pre(15, 46))
    P.extend(prefetch(cfg.after[1]))
    P.extend(unpack(CA, B1P, 8)); P.extend(unpack(CA+16, B1P+16, 2))
    P(f"""s_mul_i32 s84, s{sGF}, 73728
s_lshl_b32 s85, s{sW}, 10
s_add_u32 s84, s84, s85
s_add_u32 s74, s84, {HP}
s_add_u32 s75, s74, 73728
s_lshl_b32 s77, s{sRF}, 12
s_add_u32 s77, s77, s74
v_add_u32 v6, s85, v{vL16}
v_add_u32 v7, 36864, v6
v_add_u32 v8, 36864, v{vL16}
v_add_u32 v9, {HB}, v{vL16}
v_add_u32 v10, {HB + 36864}, v{vL16}
v_mov_b32 v11, v47
s_and_b32 s93, s{sGF}, 15
s_lshr_b32 s94, s93, 1
s_mul_i32 s93, s93, 5
s_lshr_b32 s93, s93, 3
s_lshl_b32 s84, s{sGF}, 12
s_add_u32 s84, s84, s85
s_add_u32 s84, s84, {STATS}
v_lshlrev_b32 v239, 8, v{vG}
v_lshl_add_u32 v239, v{vI}, 3, v239""")
    if cfg.fz == 8: P(f"s_lshr_b32 s94, s{sGF}, 2\ns_mul_i32 s93, s{sGF}, 5\ns_lshr_b32 s93, s93, 4")
    if cfg.fz == 2: P(f"s_and_b32 s94, s{sGF}, 7\ns_mul_i32 s93, s94, 5\ns_lshr_b32 s93, s93, 2")
    if not cfg.rot: P("s_mov_b32 s93, 0\ns_mov_b32 s94, 0")
    P.extend(own_flag(14, F2S, sJ1, 12, sG1, cfg.fsh))
    vPS, vSS, vF3, vP3, vL4, vL2, vLS, vH4, vH2, vPT, vC4, vC2, vO4, vO2, vOS = range(240, 255)
    P.extend(own_flag(vF3, F3A, sGF, 12, sJF, cfg.gsh)); P.extend(grp_poll_addr(vP3, sGF, F3A))
    if cfg.wflag:
        P(f"""s_lshl_b32 s87, s{sW}, 7
s_add_u32 s86, s86, s87
v_add_u32 v{vP3}, s87, v{vP3}
s_lshl_b32 s87, s{sJF}, 4
s_add_u32 s86, s86, s87
v_mov_b32 v{vF3}, s86
v_cmp_eq_u32 vcc, 0, v{vL}
v_cndmask_b32 v{vF3}, v13, v{vF3}, vcc""")
    P(f"""s_lshl_b32 s86, s{sGF}, 6
s_add_u32 s86, s86, s{sJF}
s_mul_i32 s86, s86, 9216
s_add_u32 s86, s86, {PART}
v_lshrrev_b32 v{vPS}, 3, v{vI}
v_mul_u32_u24 v{vPS}, {8*9216}, v{vPS}
v_and_b32 v5, 7, v{vI}
v_lshlrev_b32 v5, 3, v5
v_lshl_add_u32 v5, v{vG}, 6, v5
v_add3_u32 v{vSS}, v{vPS}, v5, s86
v_add_u32 v{vPS}, v{vSS}, v5
s_lshl_b32 s85, s{sW}, 8
s_add_u32 s87, s85, 8192
v_add_u32 v{vSS}, s87, v{vSS}
s_lshl_b32 s76, s{sW}, 11
v_add_u32 v{vPS}, s76, v{vPS}
s_lshl_b32 s86, s{sGF}, 3
s_add_u32 s86, s86, s{sJF}
s_mul_i32 s86, s86, {8*9216}
s_add_u32 s86, s86, {PART}
s_add_u32 s76, s76, s86
v_add_u32 v{vL4}, s76, v{vL16}
s_add_u32 s87, s87, s86
v_lshl_add_u32 v{vLS}, v{vL}, 3, s87
v_cmp_gt_u32 vcc, 32, v{vL}
v_lshrrev_b32 v5, 5, v{vL}
v_bfe_u32 v{vC4}, v{vL}, 3, 2
v_cndmask_b32 v{vLS}, v13, v{vLS}, vcc
v_and_b32 v{vO4}, 7, v{vL}
v_lshlrev_b32 v{vH4}, 12, v5
v_lshl_add_u32 v{vH4}, v{vC4}, 8, v{vH4}
v_lshl_add_u32 v{vH4}, v{vO4}, 4, v{vH4}
v_lshlrev_b32 v{vC4}, 4, v{vC4}
v_lshl_add_u32 v{vC4}, v5, 6, v{vC4}
s_lshr_b32 s87, s{sJF}, 1
s_and_b32 s86, s{sJF}, 1
s_lshl_b32 s76, s{sGF}, 6
s_and_b32 s32, s87, 1
s_lshl_b32 s32, s32, 5
s_add_u32 s76, s76, s32
s_lshr_b32 s32, s87, 1
s_add_u32 s76, s76, s32
s_lshl_b32 s32, s86, 4
s_add_u32 s76, s76, s32
s_mul_i32 s76, s76, 1152
v_mul_u32_u24 v{vO4}, 2304, v{vO4}
v_add3_u32 v{vO4}, v{vO4}, v{vC4}, s76
v_cndmask_b32 v{vOS}, v13, v{vO4}, vcc
s_mul_i32 s76, s{sGF}, 73728
s_lshl_b32 s87, s87, 10
s_add_u32 s76, s76, s87
s_lshl_b32 s86, s86, 7
s_add_u32 s76, s76, s86
s_add_u32 s76, s76, {HP}
s_lshl_b32 s86, s{sW}, 14
s_add_u32 s32, s76, s86
s_add_u32 s33, s32, 8192
s_lshr_b32 s86, s{sW}, 1
s_and_b32 s87, s{sW}, 1
s_lshl_b32 s87, s87, 3
s_lshl_b32 s36, s86, 12
s_add_u32 s36, s36, s87
s_add_u32 s36, s36, 65536
s_add_u32 s36, s36, s76
s_mov_b32 s38, s85
s_lshl_b32 s39, s86, 6
s_add_u32 s39, s39, s87
s_add_u32 s39, s39, 1024
s_mov_b32 s80, 0
s_mov_b32 s81, {16*9216}
s_mov_b32 s82, {32*9216}
s_mov_b32 s83, {48*9216}
s_mov_b32 s95, 0x00003f80
s_mov_b32 s96, 0x3f800000""")
    if cfg.isl == 2: warm(1)
    P("L_markC:")
    P(f"s_or_b32 s86, s2, s{sW}\ns_cbranch_scc0 L_epoch\nL_epoch_back:")
    slow.append(f"""L_epoch:
s_waitcnt vmcnt(0)
v_lshrrev_b32 v16, 5, v{vL}
v_lshlrev_b32 v16, 12, v16
v_and_b32 v17, 31, v{vL}
v_lshl_add_u32 v16, v17, {cfg.fsh}, v16
v_add_u32 v16, {F0S}, v16
v_add_u32 v17, 8192, v16
v_add_u32 v18, 16384, v16
v_add_u32 v19, 24576, v16
s_mov_b32 s97, 0
L_epoch_poll:
buffer_load_dword v20, v16, {srd(sWS)}, 0 offen sc1
buffer_load_dword v21, v17, {srd(sWS)}, 0 offen sc1
buffer_load_dword v22, v18, {srd(sWS)}, 0 offen sc1
buffer_load_dword v23, v19, {srd(sWS)}, 0 offen sc1
s_add_u32 s97, s97, 1
s_waitcnt vmcnt(0)
v_xor_b32 v20, s{sTAG}, v20
v_xor_b32 v21, s{sTAG}, v21
v_xor_b32 v22, s{sTAG}, v22
v_xor_b32 v23, s{sTAG}, v23
v_or_b32 v20, v20, v21
v_or3_b32 v20, v20, v22, v23
v_cmp_ne_u32 vcc, 0, v20
s_cmp_gt_u32 s97, 400000
s_cbranch_scc1 L_epoch_set
s_cbranch_vccnz L_epoch_poll
L_epoch_set:
v_mov_b32 v16, 0
v_mov_b32 v17, s{sTAG}
s_mov_b64 exec, 1
buffer_store_dword v17, v16, {srd(sWS)}, 0 offen sc1
s_mov_b64 exec, -1
s_waitcnt vmcnt(0)
s_branch L_epoch_back""")
    P(poll_fast(15, 232) if 2 in cfg.pfast else poll_check(15, 46))
    stamp("F2 seen")
    for k in range(2): P(f"buffer_load_dwordx2 {vq(SR+2*k,2)}, v239, {srd(sWS)}, s84 offen offset:{128*k} sc1", "hf")
    hl = []
    for s in range(18):
        hl.append([(f"buffer_load_dwordx4 {vq(HR+4*s)}, v{vL16}, {srd(sWS)}, s77 offen sc1", "hf")] + ([wrap(77, 4096, 75, 74)] if s < 17 else []))
    for s in range(cfg.nh1): P.extend(hl[s])
    P(f"v_add_f32 v{ST}, v{SR}, v{SR+2}\nv_add_f32 v{ST+1}, v{SR+1}, v{SR+3}")
    xsum(ST)
    finish_stats([ST])
    if not cfg.hilv:
        for s in range(cfg.nh1, cfg.nh2): P.extend(hl[s])
    stamp("LN2 stats")
    def ln2(s):
        return normalize(HR + 4*s, ST, NT + 8*(s & 1), s < 3) + [f"ds_write_b128 v{6 if s < 9 else 7}, {vq(HR+4*s)} offset:{XN + (s % 9)*4096}"]
    work = ln2(0) + ln2(1) + ln2(2)
    rest = [hl[s] for s in range(cfg.nh1, cfg.nh2)] if cfg.hilv else []
    for n, l in enumerate(work):
        P.add(l)
        if rest and n % cfg.hilv == cfg.hilv - 1: P.extend(rest.pop(0))
    for L in rest: P.extend(L)
    P("@waitlg_all\ns_barrier")
    def act_reads(i):
        pi, p = steps[i]
        b = AF + (i % 2)*16
        if pi < 2: reg = vL16 if p < 9 else 8
        else: reg = 9 if p < 9 else 10
        return [f"ds_read_b128 {aq(b+4*m)}, v{reg} offset:{((p % 9)*4 + m)*1024}" for m in range(4)]
    P.extend(act_reads(0))
    stamp("FFN start")
    mains = []; fixed = {}; start = []; load = {}
    first_use = {}; last_use = {}
    def put(g, it):
        fixed.setdefault(g, []).append(it); load[g] = load.get(g, 0) + cost(it)
    def place(items, g):
        for it in items:
            c = cost(it)
            while load.get(g, 0) > 0 and load.get(g, 0) + c > cfg.cap + 0.02: g += 1
            put(g, it)
        return g
    bar = {2: "a", 4: "b", 7: "c", 10: "d", 14: "f", 35: "0", 45: "1"}
    if cfg.w2st == 1: bar[17] = "e"
    fl2 = {0: "c", 1: "e", 2: cfg.w2bar}[cfg.w2st]
    if cfg.w2at >= 3: fl2 = None
    for i, (pi, p) in enumerate(steps):
        name, tiles, acc, cin = passes[pi]; nt = len(tiles)
        base = len(mains); start.append(base)
        b = AF + (i % 2)*16
        t_ = stamp_txt(f"@{name}{p}") if i else None
        if t_: fixed.setdefault(base - 1, []).append(t_)
        if i in bar:
            for it in [f"@flexdone{bar[i]}"] + (["@waitvm wrs"] if bar[i] == fl2 else []) + ["@waitlg_all", "s_barrier"]: put(base, it)
            if bar[i] == fl2:
                for it in flag_items(14): put(base, it)
        for t in range(nt):
            w = aq(4*slot[(pi, p, t)])
            first_use[(pi, p, t)] = len(mains); last_use[(pi, p, t)] = len(mains) + 3
            for m in (range(4) if not (cfg.snake and t % 2) else range(3, -1, -1)):
                d = vq(acc + (t*4 + m)*4)
                c = d if p > 0 else (vq(cin + 4*t) if cin is not None else "0")
                mains.append(f"{MF} {d}, {w}, {aq(b+4*m)}, {c}")
        if i + 1 < len(steps):
            for k, l in enumerate(act_reads(i+1)): put(base + (2*k if nt > 2 else k) + (1 if i in bar else 0), l)
            pj, pp = steps[i+1]
            nxt = " ".join(aq(4*slot[(pj, pp, t)]) for t in range(len(passes[pj][1])))
            fixed.setdefault(base + 4*nt - 1, []).append(f"@need {nxt} {aq(AF + ((i+1) % 2)*16, 16)}")
            load[base + 4*nt - 1] = load.get(base + 4*nt - 1, 0) + 0.67
    start.append(len(mains))
    S = lambda pi, p: start[pi*18 + p]
    path = {}
    TQ = 176
    tq = [0]
    def epi2(acc, tiles, m, st):
        q = TQ + 4*(tq[0] % 4); tq[0] += 1
        regs = [acc + (t*4 + m)*4 + r for t in tiles for r in range(4)]
        L = [f"v_cvt_pk_bf16_f32 v{q+k}, v{regs[2*k]}, v{regs[2*k+1]}" for k in range(len(regs)//2)]
        L += st(q)
        return L
    if cfg.noself:
        def pst(m, off, tag): return lambda q: [(f"buffer_store_dwordx4 {vq(q)}, v{160+m}, {srd(sWS)}, s{80+m} offen offset:{off} sc1", tag), f"ds_write_b128 v{168+m}, {vq(q)} offset:{off}"]
        def sst(m, tag): return lambda q: [(f"buffer_store_dwordx2 {vq(q,2)}, v{164+m}, {srd(sWS)}, s{80+m} offen sc1", tag), f"ds_write_b64 v{172+m}, {vq(q,2)} offset:2048"]
    else:
        def pst(m, off, tag): return lambda q: [(f"buffer_store_dwordx4 {vq(q)}, v{vPS}, {srd(sWS)}, s{80+m} offen offset:{off} sc1", tag)]
        def sst(m, tag): return lambda q: [(f"buffer_store_dwordx2 {vq(q,2)}, v{vSS}, {srd(sWS)}, s{80+m} offen sc1", tag)]
    RW = [4, 4, 2]; RH = [200, 208, 216]; RS = [220, 228, 236]; R0 = [16, 48, 80]
    rl = [(vL4, 0), (vL4, 1024), (vLS, 0)]
    SRC = [24, 25, 26, 27, 34, 35, 37]
    def red_loads(r):
        if cfg.noself:
            L = [(f"buffer_load_dwordx{RW[r]} {vq(R0[r]+RW[r]*j,RW[r])}, v{rl[r][0]}, {srd(sWS)}, s{SRC[j]} offen offset:{rl[r][1]}{cfg.rdfl}", "rd") for j in range(7)]
            return L
        L = ["s_mov_b32 s84, 0"]
        for j in range(8):
            L.append((f"buffer_load_dwordx{RW[r]} {vq(R0[r]+RW[r]*j,RW[r])}, v{rl[r][0]}, {srd(sWS)}, s84 offen offset:{rl[r][1]} sc1", "rd"))
            if j < 7: L.append("s_add_u32 s84, s84, 9216")
        return L
    def red_sum(r):
        T = RS[r]; L = []
        for j in ([7] + list(range(7)) if cfg.noself else range(8)):
            for d in range(RW[r]):
                q = R0[r] + RW[r]*j + d
                L.append(f"v_dot2_f32_bf16 v{T+2*d}, v{q}, s95, v{T+2*d}")
                L.append(f"v_dot2_f32_bf16 v{T+2*d+1}, v{q}, s96, v{T+2*d+1}")
        for d in range(RW[r]): L.append(f"v_cvt_pk_bf16_f32 v{T+d}, v{T+2*d}, v{T+2*d+1}")
        return L
    def red_store(r):
        vo, so, oo = [(vO4, 38, 0), (vO4, 38, 128), (vOS, 39, 0)][r]
        return [(f"buffer_store_dwordx{RW[r]} {vq(RS[r],RW[r])}, v{vo}, {srd(sOUT)}, s{so} offen offset:{oo}{cfg.outfl if r in cfg.outr else ''}", "out")]
    def add_path(g, c): path[g] = path.get(g, 0) + c
    G0, s4, s2 = cfg.late
    last = len(passes) - 1
    g = G0
    for m in range(4):
        for pr in range(2): g = place(epi2(16, [2*pr, 2*pr+1], m, pst(m, 512*pr, "p1")), g) + s4
    for m in range(4): g = place(epi2(16, [4], m, sst(m, "p1")), g) + s2
    two = cfg.two
    if two:
        gs = g + two[0]
        for it in ["@waitvm p1", "s_barrier"] + flag_items(vF3) + [f"v_add_u32 v{vF3}, 1024, v{vF3}"]: put(gs, it)
    gE = max(g, S(last, 0) + 3)
    for m in range(4): gE = place(epi2(96, [0, 1], m, pst(m, 1024, "p2")), gE) + s4
    assert gE - s4 < len(mains) - 1, gE
    nin = 0
    if two:
        erl = sum([red_loads(r) for r in cfg.esel], [])
        gp = gs + two[1]
        if gp + two[2] < len(mains) - 4:
            put(gp, poll_pre(vP3, vPT))
            gq_ = place([poll_check(vP3, vPT), f"v_add_u32 v{vP3}, 1024, v{vP3}"], gp + two[2])
            while nin < len(erl) and gq_ + two[3] < len(mains) - 3:
                gq_ = place(erl[nin:nin+1], gq_ + two[3]); nin += 1
            inloop = True
        else: inloop = False
        if VERBOSE: print("two-phase: stores end", g, "flag", gs, "E stores end", gE, "in-loop loads", nin)
    g = 0
    for s in range(cfg.nh2, 18):
        g = place(hl[s], g); add_path(g, 110); g += cfg.hgap
    if cfg.w2st == 2:
        g = cfg.w2g
        for z in range(2):
            g = place([l.replace("v94", "v11") for l in unit_tr(z, 0, 96)], g) + 6
            for l in join(unit_st(2, z, 96)):
                g = place([l], g); add_path(g, cfg.scost if z == 0 else cfg.scost//4); g += cfg.w2gap
    g = S(2, 11)
    for r, (sh, sb, bo) in enumerate([(32, 38, 0), (33, 38, 128), (36, 39, 0)]):
        g = place([(f"buffer_load_dwordx{RW[r]} {vq(RH[r],RW[r])}, v{vH4}, {srd(sWS)}, s{sh} offen sc1", "rh")], g + 5); add_path(g, 70)
        g = place([(f"buffer_load_dwordx{RW[r]} {vq(RH[r]+RW[r],RW[r])}, v{vC4}, {srd(sB2)}, s{sb} offen offset:{bo}", "rh")], g + 3); add_path(g, 20)
    nl = npf[0]; free = cfg.backlog; g = 0
    while nl < len(cons):
        now = g*cfg.tgap
        if g in path: free = max(free, now) + path.pop(g)
        early = last_use[cons[nl - NR]] + 1 if nl >= NR else 0
        dead = first_use[cons[nl]] - cfg.margin
        if g >= early and (free <= now + cfg.slack or g >= dead):
            L = wload(nl)
            if nl == 162 - cfg.w2lead and fl2: L = [poll_pre(15, vPT)] + L
            if nl == 162 and fl2: L = [poll_check(15, vPT)] + L
            g2 = place(L, g)
            for x in range(g + 1, g2 + 1):
                if x in path: free = max(free, x*cfg.tgap) + path.pop(x)
            assert g2 < first_use[cons[nl]] - 8, (nl, g2, first_use[cons[nl]])
            if VERBOSE and nl % 18 == 0: print(f"   load {nl} at gap {g2}, first use {first_use[cons[nl]]}, backlog {free - g2*cfg.tgap:.0f}")
            g = g2; free = max(free, g*cfg.tgap) + cfg.wcost; nl += 1
        g += 1
    if VERBOSE: print("last weight load at gap", g, "of", len(mains), "pass starts", [S(k, 0) for k in range(len(passes))])
    flex = []
    for lo, hi, mk in [(3, 5, "a"), (5, 8, "b"), (8, 11, "c"), (11, 15, "d"), (15, 18, "f")]:
        for s in range(lo, hi):
            for l in ln2(s): flex.append((0, l))
        flex.append((0, f"@mark{mk}"))
    if cfg.w2st == 1:
        flex.append((0, "@waitvm wr"))
        for z in range(2):
            for l in unit_tr(z, 0, 176): flex.append((0, l.replace("v94", "v11")))
            for l in [f"@need {vq(176,16)}"] + unit_st(2, z, 176): flex.append((0, l))
    for l in set_poll_addr(15, sJF, F2S) + unpack(CB, B1P+8, 8): flex.append((0, l))
    flex.append((0, "@marke"))
    for k, (q, mod, sr, add) in enumerate([(f"s_lshl_b32 s84, s{sW}, 1", 10, 93, 0), (f"s_lshl_b32 s84, s{sW}, 1\ns_add_u32 s84, s84, 1", 10, 93, 0),
                                           (f"s_lshr_b32 s84, s{sW}, 1\ns_add_u32 s84, s84, 8", 10, 93, 0),
                                           (f"s_lshl_b32 s84, s{sW}, 1", 8, 94, 10), (f"s_lshl_b32 s84, s{sW}, 1\ns_add_u32 s84, s84, 1", 8, 94, 10)]):
        flex.append((0, q))
        flex.append((0, f"s_sub_u32 s84, s84, s{sr}\ns_cselect_b32 s85, {mod}, 0"))
        flex.append((0, f"s_add_u32 s84, s84, s85\ns_add_u32 s84, s84, {add}"))
        flex.append((0, "s_lshl_b32 s84, s84, 12"))
        if k == 2: flex.append((0, f"s_and_b32 s85, s{sW}, 1\ns_lshl_b32 s85, s85, 3\ns_add_u32 s84, s84, s85"))
        flex.append((0, f"v_add_u32 v{192+k}, s84, v9"))
    def epi1(acc, pair_tiles, m, wr):
        L = []
        q = TQ + 4*(tq[0] % 4); tq[0] += 1
        regs = [acc + (t*4 + m)*4 + r for t in pair_tiles for r in range(4)]
        for r in regs: L.append(f"v_mul_f32 v{r}, v{r}, |v{r}|")
        for k in range(len(regs)//2): L.append(f"v_cvt_pk_bf16_f32 v{q+k}, v{regs[2*k]}, v{regs[2*k+1]}")
        for k in range(len(regs)//2): L.append(f"v_pk_max_i16 v{q+k}, v{q+k}, 0")
        L.append(wr(q))
        return L
    at = S(1, 0) + 3
    for pr in range(2):
        for m in range(4):
            for l in epi1(ACA, [2*pr, 2*pr+1], m, lambda q: f"ds_write_b128 v{192+pr}, {vq(q)} offset:{m*1024}"): flex.append((at, l))
    for m in range(4):
        for l in epi1(ACA, [4], m, lambda q: f"ds_write_b64 v194, {vq(q,2)} offset:{m*1024}"): flex.append((at, l))
    flex.append((at, "@mark0"))
    at = S(2, 0) + 3
    for pr in range(2):
        for m in range(4):
            for l in epi1(ACB, [2*pr, 2*pr+1], m, lambda q: f"ds_write_b128 v{195+pr}, {vq(q)} offset:{m*1024}"): flex.append((at, l))
    flex.append((at, "@mark1"))
    if cfg.noself:
        at = S(2, 10)
        L = lines(f"""s_and_b32 s85, s{sJF}, 1
v_lshrrev_b32 v6, 3, v{vI}
v_cmp_eq_u32 s[64:65], s85, v6
s_mul_i32 s85, s{sW}, 2560
v_and_b32 v6, 7, v{vI}
v_lshl_add_u32 v6, v{vG}, 3, v6
v_lshl_add_u32 v7, v6, 3, s85
v_lshl_add_u32 v6, v6, 4, s85
v_add_u32 v8, s85, v{vL16}
v_lshl_add_u32 v11, v{vL}, 3, s85
v_add_u32 v14, 16384, v{vL16}
s_lshr_b32 s85, s{sJF}, 1""")
        for m in range(4):
            L.append(f"s_cmp_eq_u32 s85, {m}\ns_cselect_b64 s[66:67], s[64:65], 0")
            L += [f"v_cndmask_b32 v{160+m}, v{vPS}, v13, s[66:67]", f"v_cndmask_b32 v{164+m}, v{vSS}, v13, s[66:67]",
                  f"v_cndmask_b32 v{168+m}, v14, v6, s[66:67]", f"v_cndmask_b32 v{172+m}, v14, v7, s[66:67]"]
        for k in range(7): L.append(f"s_add_u32 s86, s{sJF}, {k+1}\ns_and_b32 s86, s86, 7\ns_mul_i32 s{SRC[k]}, s86, 9216")
        for l in L: flex.append((at, l))
        flex.append((at, "@marks"))
        put(S(3, 0), "@flexdones")
    at = S(3, 0)
    UT = 192
    for r in range(3):
        for l in unpack(RS[r], RH[r], RW[r]) + unpack(UT, RH[r]+RW[r], RW[r]): flex.append((at, l))
        for d in range(2*RW[r]): flex.append((at, f"v_add_f32 v{RS[r]+d}, v{RS[r]+d}, v{UT+d}"))
    if cfg.skip:
        def keep(it):
            t = it[0] if isinstance(it, tuple) else it
            tag = it[1] if isinstance(it, tuple) else None
            if "valu" in cfg.skip and re.match(r"v_lshlrev_b32 v\d+, 16,|v_and_b32 v\d+, s98|v_fma_f32|v_cvt_pk|v_mul_f32|v_pk_max|v_add_f32", t): return False
            if "dsw" in cfg.skip and t.startswith("ds_write"): return False
            if "bar" in cfg.skip and t == "s_barrier": return False
            if "pst" in cfg.skip and tag in ("p1", "p2", "p3"): return False
            if "rd" in cfg.skip and tag in ("rd", "rh"): return False
            if "w" in cfg.skip and tag == "w": return False
            if "chk" in cfg.skip and "L_slow" in t: return False
            return True
        flex = [f for f in flex if keep(f[1])]
        fixed = {g: [x for x in L if keep(x)] for g, L in fixed.items()}
        slow[:] = [x for x in slow if any(x.split(":")[0] in i.text for i in P.ins) or "chk" not in cfg.skip]
    sched(P, mains, fixed, flex, cap=cfg.cap)
    stamp("FFN done")
    lateds = []
    for m in ((3, 2, 1, 0) if cfg.snake else range(4)):
        L = epi2(128, [0, 1], m, pst(m, 1536, "p2"))
        if cfg.noself and cfg.lateds: lateds.append(L.pop())
        P.extend(L)
    P.extend(lateds)
    if two and not inloop: P.add(poll_pre(vP3, vPT))
    P("@waitvm p2\ns_barrier")
    set_flag(vF3)
    stamp("F3c set")
    if two:
        if not inloop: P(poll_check(vP3, vPT) + f"\nv_add_u32 v{vP3}, 1024, v{vP3}")
        P.extend(erl[nin:cfg.ppos])
        P.add(poll_pre(vP3, vPT))
        P.extend(erl[max(nin, cfg.ppos):])
        P(f"@waitlg_all\nds_read_b128 {vq(R0[0]+28)}, v8\nds_read_b128 {vq(R0[1]+28)}, v8 offset:1024\nds_read_b64 {vq(R0[2]+14,2)}, v11 offset:2048")
        nsum = len(cfg.esel) if cfg.ppos >= 14 else 1
        for r in cfg.esel[:nsum]: P.extend(red_sum(r))
        P(poll_check(vP3, vPT))
        stamp("F3c seen")
        fin = [r for r in cfg.rord if r not in cfg.esel]
        for r in fin: P.extend(red_loads(r))
        for r in cfg.esel[nsum:]: P.extend(red_sum(r))
        for r in cfg.esel: P.extend(red_store(r))
        for r in fin: P.extend(red_sum(r) + red_store(r))
    else:
        P.add(poll_pre(vP3, vPT))
        if cfg.noself:
            P(f"@waitlg_all\nds_read_b128 {vq(R0[0]+28)}, v8\nds_read_b128 {vq(R0[1]+28)}, v8 offset:1024\nds_read_b64 {vq(R0[2]+14,2)}, v11 offset:2048")
        P(poll_check(vP3, vPT))
        stamp("F3c seen")
        for r in cfg.rord: P.extend(red_loads(r))
        for r in cfg.rord: P.extend(red_sum(r) + red_store(r))
    if cfg.stamps:
        P("s_waitcnt vmcnt(0)")
        stamp("end")
        P(f"s_lshl_b32 s84, s2, 2\ns_add_u32 s84, s84, s{sW}\ns_lshl_b32 s84, s84, 7\ns_add_u32 s84, s84, {STAMPS}\nv_mov_b32 v6, s84\ns_mov_b64 exec, 1")
        if cfg.diag is not None:
            a, b = cfg.diag
            P(f"s_sub_u32 s84, s{STAMP0+b}, s{STAMP0+a}\ns_lshl_b32 s84, s84, 2\ns_add_u32 s84, s84, 10000\nL_spin:\ns_sleep 8\ns_memrealtime s[100:101]\ns_waitcnt lgkmcnt(0)\ns_sub_u32 s85, s100, s{STAMP0}\ns_cmp_lt_u32 s85, s84\ns_cbranch_scc1 L_spin")
        elif cfg.dbg:
            P(f"v_mov_b32 v6, 0\ns_not_b32 s84, s{STAMP0}\nv_mov_b32 v5, s84\nbuffer_atomic_umax v5, v6, {srd(sR)}, 0 offen")
            for k in range(min(nstamp[0], 15)):
                P(f"v_mov_b32 v{16+k}, s{STAMP0+k}\nbuffer_atomic_umax v{16+k}, v6, {srd(sR)}, 0 offen offset:{4*k+4}")
        else:
          for k in range(nstamp[0]):
            P(f"v_mov_b32 v5, s{STAMP0+k}\nbuffer_store_dword v5, v6, {srd(sWS)}, 0 offen offset:{4*k}")
    P("L_end:\ns_endpgm")
    for x in slow: P(x)
    P("L_code_end:")
    cfg.names = names
    return P

def cost(it):
    t = it[0] if isinstance(it, tuple) else it
    c = 0
    for l in t.split("\n"):
        if l.startswith("@") or l.endswith(":"): continue
        c += 0.67 if l.startswith("s_") else (2 if l.startswith("ds_write_b128") else 1)
    return c

def sched(P, mains, fixed, flex, cap=2, flex2=None):
    Q = [list(flex2 or []), list(flex)]; K = [0, 0]; marks = set()
    def put(it):
        t = it[0] if isinstance(it, tuple) else it
        if t.startswith("@mark"): marks.add(t[5:]); return 0
        if t.startswith("@flexdone"):
            for q in range(2):
                if any((x[1] if not isinstance(x[1], tuple) else x[1][0]) == "@mark" + t[9:] for x in Q[q]):
                    n0 = K[q]
                    while t[9:] not in marks:
                        it2 = Q[q][K[q]][1]; K[q] += 1; put(it2)
                    if K[q] - n0 > 1 and VERBOSE: print("flush", t, K[q] - n0)
            return 0
        P.add(it)
        return cost(t)
    for n, m in enumerate(mains):
        P.add(m)
        c = 0
        for it in fixed.get(n, []): c += put(it)
        for q in range(2):
            while K[q] < len(Q[q]) and Q[q][K[q]][0] <= n and (c == 0 or c + cost(Q[q][K[q]][1]) <= cap + 0.02):
                it = Q[q][K[q]][1]; K[q] += 1
                c += put(it)
    for q in range(2):
        if K[q] < len(Q[q]) and VERBOSE: print("left", len(Q[q]) - K[q])
        while K[q] < len(Q[q]):
            it = Q[q][K[q]][1]; K[q] += 1
            put(it)
VERBOSE = False

import struct
def hexf(x): return hex(struct.unpack("<I", struct.pack("<f", x))[0])

HEADER = open("cdna_kernels/" + NAME + ".s.ref").read().split("; Override launch geometry")[0]
NOTES = """;
; 32 row groups of 64 tokens x 8 column slices; rows of a group are kept in parity order (even tokens, odd tokens).
;  0. start-up : every workgroup transposes a share of wqkv / wo / w1 / w2 into MFMA fragment order in d_ws
; Hand-offs between workgroups: sc1 (write-through) stores, s_waitcnt, barrier, then a flag word holding a per-launch tag
; (word 0 of d_ws + constant, advanced once per launch); consumers poll with sc1 loads and read with sc1 loads, so any
"""

def add_islands(body):
    import subprocess, tempfile, os
    lines = body.rstrip("\n").split("\n")
    probe = []
    for n, l in enumerate(lines):
        probe.append(f"L_probe{n}:")
        probe.append(l)
    probe.append(f"L_probe{len(lines)}:\nL_chain0:\nL_chain1:")
    with tempfile.TemporaryDirectory() as d:
        open(d + "/p.s", "w").write('.amdgcn_target "amdgcn-amd-amdhsa--gfx950"\n.text\n' + "\n".join(probe) + "\n")
        subprocess.run(["clang", "-x", "assembler", "-target", "amdgcn-amd-amdhsa", "-mcpu=gfx950", "-c", d + "/p.s", "-o", d + "/p.o"], check=True)
        sym = subprocess.run(["llvm-readelf", "-s", "-W", d + "/p.o"], capture_output=True, text=True, check=True).stdout
    addr = {}
    for l in sym.split("\n"):
        f = l.split()
        if len(f) >= 8 and f[7].startswith("L_probe"): addr[int(f[7][7:])] = int(f[1], 16)
    size = [addr[n+1] - addr[n] for n in range(len(lines))]
    a0 = lines.index("L_aligned:"); end = lines.index("L_end:")
    mA = lines.index("L_chainend0:"); mB = max(lines.index("L_markB:"), lines.index("L_chainend1:"))
    out = lines[:a0] + [".p2align 12", lines[a0]]
    off = 0; nxt = 4096; isl = []
    for n in range(a0 + 1, len(lines)):
        if off >= nxt and n < end and size[n] > 0:
            if n > mA:
                isl.append((len(out), 0 if n < mB else 1)); out.append(None); off += 4
            nxt += 4096
        out.append(lines[n]); off += size[n]
    for c in range(2):
        L = [p for p, cc in isl if cc == c]
        for k, p in enumerate(L):
            tgt = f"L_isl{c}_{k+1}" if k + 1 < len(L) else f"L_chainend{c}"
            out[p] = (f"L_chain{c}:\n" if k == 0 else "") + f"L_isl{c}_{k}:\n  s_cbranch_execz {tgt}"
    return "\n".join(out) + "\n"

def build(cfg, verbose=False):
    body = finalize(gen(cfg), verbose)
    body = body.replace("  s_sleep 0\n", "")
    if cfg.isl: body = add_islands(body)
    k = NAME + "_kernel"
    return (HEADER + f"; @launch grid=(256,1,1) block=(256,1,1) lds={LDS_BYTES}\n" + NOTES
        + f'.amdgcn_target "amdgcn-amd-amdhsa--gfx950"\n.text\n.globl {k}\n.p2align 8\n.type {k},@function\n{k}:\n' + body
        + f""".section .rodata,"a"
.p2align 6
.amdhsa_kernel {k}
  .amdhsa_next_free_vgpr 512
  .amdhsa_next_free_sgpr 102
  .amdhsa_accum_offset 256
  .amdhsa_group_segment_fixed_size 0
  .amdhsa_kernarg_size 88
  .amdhsa_user_sgpr_count 2
  .amdhsa_user_sgpr_kernarg_segment_ptr 1
  .amdhsa_system_sgpr_workgroup_id_x 1
.end_amdhsa_kernel
""")

if __name__ == "__main__":
    cfg = Cfg(); VERBOSE = True
    out = sys.argv[1]
    for a in sys.argv[2:]:
        k, v = a.split("=")
        setattr(cfg, k, eval(v))
    open(out, "w").write(build(cfg, True))
    if cfg.stamps: open(out + ".names", "w").write("|".join(cfg.names))
```
